```python
import torch

def _softmax(x, axis=-1):
    return torch.softmax(x, dim=axis)

def _gelu(x):
    return torch.nn.functional.gelu(x, approximate='tanh')

def _silu(x):
    return torch.nn.functional.silu(x)

def _sigmoid(x):
    return torch.sigmoid(x)

def _layernorm(x, axis=-1, eps=1e-05):
    m = x.mean(dim=axis, keepdim=True)
    v = x.var(dim=axis, keepdim=True, unbiased=False)
    return (x - m) / torch.sqrt(v + eps)

def _scatter_add(tgt, idx, src, axis=0):
    return tgt.clone().index_add_(axis, idx, src)

def _segment_sum(src, seg, n):
    out = torch.zeros((n,) + src.shape[1:], dtype=src.dtype)
    return out.index_add_(0, seg, src)

def _pad(x, pw):
    flat = tuple((v for pair in reversed(pw) for v in pair))
    return torch.nn.functional.pad(x, flat)
kernel_name = 'adaLN_cond__gqa_block_cached__mixer_channel_mlp__decode'

def setup_inputs():

    _w = lambda a: (lambda t: t.to(torch.bfloat16) if t.is_floating_point() else t)(torch.as_tensor(a))

    def _A_setup():
        B, Sq, D = (2, 1, 1024)
        Hq, Hkv, Sk, Dh = (32, 4, 32768, 128)
        assert Hq % Hkv == 0, (Hq, Hkv)
        return {'x': _w((lambda *s: torch.randn(*s, dtype=torch.bfloat16) * 0.1)(B, Sq, D)), 'k_cache': _w((lambda *s: torch.randn(*s, dtype=torch.bfloat16) * 1.6)(B, Hkv, Sk, Dh)), 'v_cache': _w((lambda *s: torch.randn(*s, dtype=torch.bfloat16) * 0.8)(B, Hkv, Sk, Dh)), 'wq': _w((lambda *s: torch.randn(*s, dtype=torch.bfloat16) * 1.6)(D, Hq * Dh) * D ** (-0.5)), 'wo': _w((lambda *s: torch.randn(*s, dtype=torch.bfloat16) * 0.8)(Hq * Dh, D) * (Hq * Dh) ** (-0.5))}
    _A_in = _A_setup()

    def _B_setup():
        B, S, D, F = (2, 1, 1024, 3584)
        return {'x': _w((lambda *s: torch.randn(*s, dtype=torch.bfloat16) * 0.1)(B, S, D)), 'w1': _w((lambda *s: torch.randn(*s, dtype=torch.bfloat16) * 3.2)(D, F) * D ** (-0.5)), 'b1': _w((lambda *s: torch.randn(*s, dtype=torch.bfloat16) * 3.2)(F)), 'w2': _w((lambda *s: torch.randn(*s, dtype=torch.bfloat16) * 3.2)(F, D) * F ** (-0.5)), 'b2': _w((lambda *s: torch.randn(*s, dtype=torch.bfloat16) * 3.2)(D))}
    _B_in = _B_setup()
    return {'A_x': _A_in['x'], 'A_k_cache': _A_in['k_cache'], 'A_v_cache': _A_in['v_cache'], 'A_wq': _A_in['wq'], 'A_wo': _A_in['wo'], 'B_x': _B_in['x'], 'B_w1': _B_in['w1'], 'B_b1': _B_in['b1'], 'B_w2': _B_in['w2'], 'B_b2': _B_in['b2'], 'c': _w((lambda *s: torch.randn(*s, dtype=torch.bfloat16) * 0.2)(2, 1024) * 8.0), 'w_mod': _w((lambda *s: torch.randn(*s, dtype=torch.bfloat16) * 0.2)(1024, 6 * 1024) * 1024 ** (-0.5) * 8.0)}

def reference(A_x, A_k_cache, A_v_cache, A_wq, A_wo, B_x, B_w1, B_b1, B_w2, B_b2, c, w_mod):

    def _A_ref(x, k_cache, v_cache, wq, wo):
        B, Sq, D = x.shape
        Hq, Dh = (32, 128)
        Hkv = k_cache.shape[1]
        rep = Hq // Hkv
        q = (lambda x, *d: x.permute(*d))((x @ wq).reshape(B, Sq, Hq, Dh), 0, 2, 1, 3)
        k = (lambda x, n, axis: torch.repeat_interleave(x, n, dim=axis))(k_cache, rep, axis=1)
        v = (lambda x, n, axis: torch.repeat_interleave(x, n, dim=axis))(v_cache, rep, axis=1)
        scores = torch.einsum('bhqd,bhkd->bhqk', q, k) * Dh ** (-0.5)
        p = _softmax(scores, axis=-1)
        o = torch.einsum('bhqk,bhkd->bhqd', p, v)
        return (lambda x, *d: x.permute(*d))(o, 0, 2, 1, 3).reshape(B, Sq, Hq * Dh) @ wo

    def _B_ref(x, w1, b1, w2, b2):
        y = _layernorm(x, axis=-1)
        h = _gelu(torch.einsum('bsd,df->bsf', y, w1) + b1)
        return torch.einsum('bsf,fd->bsd', h, w2) + b2
    x = A_x
    mod = (_silu(c) @ w_mod).reshape(c.shape[0], 6, 1, -1)
    sa, ca, ga, sb, cb, gb = (mod[:, 0].clone(), mod[:, 1].clone(), mod[:, 2].clone(), mod[:, 3].clone(), mod[:, 4].clone(), mod[:, 5].clone())
    h = _layernorm(x, axis=-1) * (1 + ca) + sa
    x = x + ga * _A_ref(h, A_k_cache, A_v_cache, A_wq, A_wo)
    h = _layernorm(x, axis=-1) * (1 + cb) + sb
    x = x + gb * _B_ref(h, B_w1, B_b1, B_w2, B_b2)
    return x
```

```python
import re

TRANS = ("v_exp_f32", "v_log_f32", "v_rcp_f32", "v_rsq_f32", "v_sqrt_f32", "v_sin_f32", "v_cos_f32")


def regs_of(tok):
    tok = tok.strip()
    tok = re.sub(r"^-", "", tok)
    m = re.match(r"^abs\((.*)\)$", tok)
    if m:
        tok = m.group(1)
    m = re.match(r"^\|(.*)\|$", tok)
    if m:
        tok = m.group(1)
    m = re.match(r"^([vsa])\[(\d+):(\d+)\]$", tok)
    if m:
        return {(m.group(1), i) for i in range(int(m.group(2)), int(m.group(3)) + 1)}
    m = re.match(r"^([vsa])(\d+)$", tok)
    if m:
        return {(m.group(1), int(m.group(2)))}
    if tok in ("vcc", "vcc_lo", "vcc_hi"):
        return {("vcc", 0)}
    if tok in ("exec", "exec_lo", "exec_hi"):
        return {("exec", 0)}
    if tok == "m0":
        return {("m0", 0)}
    return set()


class Ins:
    def __init__(self, text):
        self.text = text
        t = text.split(";")[0].strip()
        self.label = t.endswith(":")
        self.directive = t.startswith(".") or t == ""
        self.op = ""
        self.dst = set()
        self.src = set()
        self.kind = "other"
        self.states = 1
        self.dpp = False
        self.srcC = set()
        self.srcAB = set()
        self.store_data = set()
        if self.label or self.directive:
            self.states = 0
            return
        parts = t.split(None, 1)
        op = parts[0]
        self.op = op
        rest = parts[1] if len(parts) > 1 else ""
        ops = [o.strip() for o in rest.split(",")] if rest else []
        mods = ""
        if ops:
            sp = ops[-1].split(None, 1)
            ops[-1] = sp[0]
            mods = sp[1] if len(sp) > 1 else ""
        self.mods = mods
        R = [regs_of(o) for o in ops]
        base = re.sub(r"_(e32|e64|dpp|sdwa)$", "", op)
        self.base = base
        if op == "s_nop":
            self.states = int(ops[0], 0) + 1
            self.kind = "salu"
        elif op.startswith("v_mfma"):
            self.kind = "mfma"
            self.dst = R[0]
            self.srcAB = R[1] | R[2]
            self.srcC = R[3]
            self.src = self.srcAB | self.srcC
            self.passes = 8 if "32x32" in op else 4
        elif op.startswith("v_"):
            self.kind = "valu"
            self.dpp = op.endswith("_dpp") or "row_" in mods or "quad_perm" in mods
            if base.startswith("v_permlane") and "swap" in base:
                self.dst = R[0] | R[1]
                self.src = R[0] | R[1]
            elif base in ("v_add_co_u32", "v_sub_co_u32", "v_addc_co_u32", "v_subb_co_u32"):
                self.dst = R[0] | R[1]
                self.src = set().union(*R[2:])
            else:
                self.dst = R[0]
                self.src = set().union(*R[1:]) if len(R) > 1 else set()
                if base in ("v_fmac_f32", "v_writelane_b32", "v_dot2c_f32_bf16") or self.dpp:
                    self.src |= R[0]
        elif op.startswith("buffer_") or op.startswith("global_"):
            self.kind = "vmem"
            is_lds = re.search(r"\blds\b", mods) is not None or "_lds_" in op
            if "load" in op and not is_lds:
                self.dst = R[0]
                self.src = set().union(*R[1:])
            else:
                self.src = set().union(*R)
                if is_lds:
                    self.src |= {("m0", 0)}
                    self.ldsdma = True
                if "store" in op and ("x4" in op or "x3" in op):
                    self.store_data = R[0] if op.startswith("buffer_") else R[1]
        elif op.startswith("ds_"):
            self.kind = "ds"
            if "_rtn_" in op or op.startswith("ds_read") or op.startswith("ds_bpermute") or op.startswith("ds_swizzle"):
                self.dst = R[0]
                self.src = set().union(*R[1:])
            else:
                self.src = set().union(*R)
        elif op.startswith("s_"):
            self.kind = "salu"
            if op.startswith("s_cmp") or op.startswith("s_cbranch") or op in (
                    "s_branch", "s_barrier", "s_waitcnt", "s_endpgm", "s_sleep", "s_setprio") or op.startswith("s_bitcmp"):
                self.src = set().union(*R) if R else set()
            else:
                self.dst = R[0] if R else set()
                self.src = set().union(*R[1:]) if len(R) > 1 else set()
                if "saveexec" in op:
                    self.dst |= {("exec", 0)}


def need_between(p, c):
    n = 0
    vd = {r for r in p.dst if r[0] in "va"}
    sd = {r for r in p.dst if r[0] in ("s", "vcc")}
    if p.kind == "valu":
        if c.kind == "mfma" and vd & c.src:
            n = max(n, 2)
        if c.kind == "valu":
            if c.dpp and vd & c.src:
                n = max(n, 2)
            if c.base.startswith("v_permlane") and vd & c.src:
                n = max(n, 2)
            if c.base in ("v_readlane_b32", "v_readfirstlane_b32") and vd & c.src:
                n = max(n, 1)
            if p.base in TRANS and c.base not in TRANS and vd & c.src:
                n = max(n, 1)
            if sd & c.src:
                n = max(n, 4 if c.base in ("v_readlane_b32", "v_writelane_b32") else 2)
            if ("exec", 0) in p.dst:
                n = max(n, 5)
        if c.kind == "vmem" and sd & c.src:
            n = max(n, 5)
        if c.kind == "mfma" and ("exec", 0) in p.dst:
            n = max(n, 4)
        if c.kind == "salu" and sd & c.src:
            n = max(n, 1)
    if p.kind == "mfma":
        big = {4: 8, 8: 12}[p.passes]
        if c.kind == "mfma":
            if p.dst & c.srcAB:
                n = max(n, big)
            if p.dst & c.srcC and not (p.dst == c.srcC and p.passes == c.passes):
                n = max(n, {4: 6, 8: 10}[p.passes])
            if p.dst & c.dst and not (p.dst == c.dst and p.dst == c.srcC):
                n = max(n, big)
        elif c.kind in ("valu", "vmem", "ds"):
            if p.dst & (c.src | c.dst):
                n = max(n, big)
        if c.kind == "valu" and p.srcC & c.dst:
            n = max(n, {4: 3, 8: 7}[p.passes])
    if p.kind == "salu" and ("m0", 0) in p.dst and getattr(c, "ldsdma", False):
        n = max(n, 1)
    if p.store_data and p.store_data & c.dst:
        n = max(n, 2)
    return n


class Asm:
    def __init__(self):
        self.lines = []
        self.nlab = 0

    def __call__(self, text):
        for t in text.split("\n"):
            t = t.strip()
            if t:
                self.lines.append(t)

    def label(self, stem="L"):
        self.nlab += 1
        return f"{stem}_{self.nlab}"

    def finish(self):
        ins = [Ins(t) for t in self.lines]
        changed = True
        while changed:
            changed = False
            labpos = {i.text.split(";")[0].strip()[:-1]: k for k, i in enumerate(ins) if i.label}
            preds = {}
            for k, i in enumerate(ins):
                if i.op == "s_branch" or i.op.startswith("s_cbranch"):
                    tgt = i.text.split(";")[0].split()[1]
                    preds.setdefault(labpos[tgt], []).append(k)
            out = []
            for k, c in enumerate(ins):
                if c.states == 0:
                    out.append(c)
                    continue
                deficit = 0
                stack = [(k - 1, 0)]
                seen = set()
                while stack:
                    j, dist = stack.pop()
                    while j >= 0 and dist < 14:
                        if (j, dist) in seen:
                            break
                        seen.add((j, dist))
                        p = ins[j]
                        if p.label:
                            for b in preds.get(j, []):
                                stack.append((b, dist))
                            j -= 1
                            continue
                        if p.states == 0:
                            j -= 1
                            continue
                        if p.op in ("s_branch", "s_endpgm") and j != k - 1 and not _reached_by_branch(j, seen, preds):
                            break
                        if p.op in ("s_branch", "s_endpgm") and j == k - 1:
                            break
                        nb = need_between(p, c)
                        if nb > dist:
                            deficit = max(deficit, nb - dist)
                        dist += p.states
                        j -= 1
                if deficit:
                    out.append(Ins(f"s_nop {deficit - 1}"))
                    changed = True
                out.append(c)
            ins = out
        res = []
        for i in ins:
            res.append(i.text if (i.label or i.directive) else "    " + i.text)
        return "\n".join(res) + "\n"


def _reached_by_branch(j, seen, preds):
    for lab, bl in preds.items():
        if j in bl and any(s[0] == lab for s in seen):
            return True
    return False


class Vm:
    def __init__(self, a):
        self.a = a
        self.n = 0

    def issue(self, text):
        self.a(text)
        self.n += 1
        return self.n

    def wait(self, tok):
        k = self.n - tok
        assert 0 <= k
        self.a(f"s_waitcnt vmcnt({min(k, 63)})")
```

```python
import sys
from asmlib import Asm, Vm

NAME = "adaLN_cond__gqa_block_cached__mixer_channel_mlp__decode"

EPOCH = 0
MODP = 0x1000
QP = 0x32000
ML = 0x52000
X1 = 0x5A000
XP = 0x60000
OP = 0x100000
YP = 0x200000
STAMP = 0x400000
WS_BYTES = 0x10000000
WT = 0
OC = 0x10000
QB = 0x18400
HB = 0x18C00
MX = 0x19000
LX = 0x19100
OB = 0x19200
ST = 0x19400
YB = 0x19600
RED = 0x1A600
H1B = 0x1AE00
LDS_BYTES = 0x1B200
TAGM = 0x3ff

sWAVE, sL, sXCD, sIDX, sAB, sTAG = 3, 4, 5, 6, 7, 8
pX, pK, pV, pWQ, pWO, pW1, pB1, pW2, pB2, pC, pWM, pOUT, pWS = 16, 18, 20, 22, 24, 28, 30, 32, 34, 36, 38, 40, 42
rK, rV, rWS, rT0, rT1, rT2, rT3 = 44, 48, 52, 56, 60, 64, 68
sSELLO, sSELHI, sHI, sLOG2E, sSCALE, sSPIN, sEP, sTM = 76, 77, 78, 79, 80, 81, 82, 83
sEX = 84
sRG = 86
sKV = 87
vTID, vLANE, vOK, vOV = 0, 1, 2, 3
vBAD, vTAG, vST = 12, 13, 14
QF, DT, SA, PT, SP, KV = 16, 24, 32, 64, 96, 128


def gen(stamps=False, mod2_on_b=True, codewarm=True, spin=200000, sleep=1, nt="nt", w1_early=False):
    a = Asm()
    hdr = open(f"cdna_kernels/{NAME}.s.ref").read().split("\n")
    head = [l for l in hdr if l.startswith(";") and "@launch" not in l]
    pre = "\n".join(head) + f"\n; @launch grid=(256,1,1) block=(512,1,1) lds={LDS_BYTES}\n"
    a('.amdgcn_target "amdgcn-amd-amdhsa--gfx950"')
    a(".text")
    a(f".globl {NAME}_kernel")
    a(".p2align 8")
    a(f".type {NAME}_kernel,@function")
    a(f"{NAME}_kernel:")

    def srd(d, p, n):
        a(f"s_mov_b32 s{d}, s{p}\ns_mov_b32 s{d+1}, s{p+1}\ns_mov_b32 s{d+2}, {n}\ns_mov_b32 s{d+3}, 0x20000")

    def R(b, n=4):
        return f"v[{b}:{b+n-1}]"

    def S4(b):
        return f"s[{b}:{b+3}]"

    def stamp(k):
        if stamps:
            a(f"s_memrealtime s[96:97]\ns_waitcnt lgkmcnt(0)\nv_writelane_b32 v{vST}, s96, {k}")

    def lo(d, p):
        a(f"v_lshlrev_b32 v{d}, 16, v{p}")

    def hi(d, p):
        a(f"v_and_b32 v{d}, s{sHI}, v{p}")

    def rnd1(d, s):
        a(f"v_cvt_pk_bf16_f32 v{d}, v{s}, v{s}")
        lo(d, d)

    def rnd2(x, y, t):
        a(f"v_cvt_pk_bf16_f32 v{t}, v{x}, v{y}")
        lo(x, t)
        hi(y, t)

    def tag_round(d, s):
        a(f"v_add_u32 v{d}, 0x200, v{s}")
        a(f"v_bfi_b32 v{d}, s{sTM}, v{vTAG}, v{d}")

    def tag_trunc(d, s):
        a(f"v_bfi_b32 v{d}, s{sTM}, v{vTAG}, v{s}")

    def check_regs(regs, first=True):
        for r in regs:
            a(f"v_xor_b32 v{r}, v{vTAG}, v{r}")
        regs = list(regs)
        if first:
            a(f"v_or_b32 v{vBAD}, v{regs[0]}, v{regs[1]}")
            regs = regs[2:]
        for i in range(0, len(regs), 2):
            a(f"v_or3_b32 v{vBAD}, v{vBAD}, v{regs[i]}, v{regs[i+1]}")

    def poll(body):
        lp, dn = a.label("Lpoll"), a.label("Ldone")
        a(f"s_mov_b32 s{sSPIN}, {spin}")
        a(f"{lp}:")
        body()
        a(f"v_and_b32 v{vBAD}, s{sTM}, v{vBAD}")
        a(f"v_cmp_ne_u32 vcc, 0, v{vBAD}")
        a(f"s_cbranch_vccz {dn}")
        if sleep:
            a(f"s_sleep {sleep}")
        a(f"s_sub_u32 s{sSPIN}, s{sSPIN}, 1")
        a(f"s_cbranch_scc0 {lp}")
        a(f"{dn}:")

    def dpp_add(d, s_rot, s1, ror):
        a(f"v_add_f32_dpp v{d}, v{s_rot}, v{s1} row_ror:{ror} row_mask:0xf bank_mask:0xf")

    def dpp_max(d, s_rot, s1, ror):
        a(f"v_max_f32_dpp v{d}, v{s_rot}, v{s1} row_ror:{ror} row_mask:0xf bank_mask:0xf")

    def allred(x, t, op, which):
        for w in which:
            a(f"v_mov_b32 v{t}, v{x}")
            a(f"v_permlane{w}_swap_b32 v{x}, v{t}")
            a(f"{op} v{x}, v{x}, v{t}")

    def red4(b, rors):
        a(f"v_permlane32_swap_b32 v{b}, v{b+1}")
        a(f"v_permlane32_swap_b32 v{b+2}, v{b+3}")
        a(f"v_add_f32 v{b}, v{b}, v{b+1}")
        a(f"v_add_f32 v{b+2}, v{b+2}, v{b+3}")
        a(f"v_permlane16_swap_b32 v{b}, v{b+2}")
        a(f"v_add_f32 v{b}, v{b}, v{b+2}")
        for r in rors:
            dpp_add(b, b, b, r)

    def perm_operand(dst, blk, d):
        sel = sSELHI if d & 1 else sSELLO
        for k in range(4):
            a(f"v_perm_b32 v{dst+k}, v{blk + (2*k+1)*4 + (d >> 1)}, v{blk + 2*k*4 + (d >> 1)}, s{sel}")

    def ln_stats(su, sq, t, mb, rs):
        a(f"v_mul_f32 v{su}, 0x3a800000, v{su}")
        a(f"v_mul_f32 v{sq}, 0x3a800000, v{sq}")
        a(f"v_fma_f32 v{sq}, -v{su}, v{su}, v{sq}")
        a(f"v_max_f32 v{sq}, 0, v{sq}")
        a(f"v_cvt_pk_bf16_f32 v{t}, v{su}, v{sq}")
        lo(mb, t)
        hi(sq, t)
        a(f"v_add_f32 v{sq}, 0x3727c5ac, v{sq}")
        rnd1(sq, sq)
        a(f"v_sqrt_f32 v{sq}, v{sq}")
        rnd1(sq, sq)
        a(f"v_rcp_f32 v{rs}, v{sq}")

    def ln_apply(x, y, t, mb, rs, last_round=True):
        a(f"v_sub_f32 v{x}, v{x}, v{mb}")
        a(f"v_sub_f32 v{y}, v{y}, v{mb}")
        rnd2(x, y, t)
        a(f"v_mul_f32 v{x}, v{x}, v{rs}")
        a(f"v_mul_f32 v{y}, v{y}, v{rs}")
        if last_round:
            rnd2(x, y, t)

    a("s_cmp_ge_u32 s2, 256")
    a("s_cbranch_scc1 L_end")
    a("s_load_dwordx16 s[16:31], s[0:1], 0")
    a("s_load_dwordx8 s[32:39], s[0:1], 64")
    a("s_load_dwordx2 s[40:41], s[0:1], 96")
    a("s_load_dwordx2 s[42:43], s[0:1], 112")
    if stamps:
        a(f"v_mov_b32 v{vST}, 0")
        a("s_memrealtime s[98:99]")
    a(f"v_lshrrev_b32 v4, 6, v0")
    a(f"v_and_b32 v{vLANE}, 63, v0")
    a(f"v_readfirstlane_b32 s{sWAVE}, v4")
    a(f"s_and_b32 s{sXCD}, s2, 7")
    a(f"s_lshr_b32 s{sIDX}, s2, 3")
    a(f"s_lshl_b32 s{sL}, s{sXCD}, 5")
    a(f"s_add_u32 s{sL}, s{sL}, s{sIDX}")
    a(f"s_lshr_b32 s{sRG}, s{sXCD}, 1")
    a(f"s_lshl_b32 s{sAB}, s{sRG}, 5")
    a(f"s_add_u32 s{sAB}, s{sAB}, s{sIDX}")
    a(f"s_lshl_b32 s{sKV}, s{sL}, 18")
    a(f"s_mov_b32 s{sSELLO}, 0x05040100")
    a(f"s_mov_b32 s{sSELHI}, 0x07060302")
    a(f"s_mov_b32 s{sHI}, 0xffff0000")
    a(f"s_mov_b32 s{sLOG2E}, 0x3fb8aa3b")
    a(f"s_mov_b32 s{sSCALE}, 0x3db504f3")
    a(f"s_mov_b32 s{sTM}, {TAGM}")
    a(f"v_lshlrev_b32 v5, 15, v4")
    a(f"v_lshl_add_u32 v{vOV}, v{vLANE}, 4, v5")
    a(f"v_and_b32 v6, 3, v{vLANE}")
    a(f"v_lshlrev_b32 v6, 10, v6")
    a(f"v_bfe_u32 v7, v{vLANE}, 2, 1")
    a(f"v_lshl_add_u32 v6, v7, 8, v6")
    a(f"v_lshrrev_b32 v7, 3, v{vLANE}")
    a(f"v_lshl_add_u32 v6, v7, 4, v6")
    a(f"v_add_u32 v{vOK}, v6, v5")
    a("s_waitcnt lgkmcnt(0)")
    if stamps:
        a(f"v_writelane_b32 v{vST}, s98, 0")
    a(f"s_load_dword s{sEP}, s[{pWS}:{pWS+1}], {EPOCH}")
    srd(rWS, pWS, WS_BYTES)
    srd(rK, pK, 0x4000000)
    srd(rV, pV, 0x4000000)

    def get_tag():
        a("s_waitcnt lgkmcnt(0)")
        a(f"s_add_u32 s{sEP}, s{sEP}, 1")
        a(f"s_and_b32 s{sTAG}, s{sEP}, {TAGM}")
        a(f"v_mov_b32 v{vTAG}, s{sTAG}")

    def tile_loads(vm, srdr, pitch, sorg):
        a(f"s_mov_b32 s9, {8*pitch}")
        a(f"v_mul_lo_u32 v8, v7, s9")
        a(f"v_and_b32 v9, 7, v{vLANE}")
        a(f"v_lshl_add_u32 v8, v9, 4, v8")
        toks = []
        for q4 in range(4):
            for e in range(8):
                a(f"s_add_u32 s9, s{sorg}, {(64*q4+e)*pitch}")
                t = vm.issue(f"buffer_load_dwordx4 {R(KV + q4*32 + e*4)}, v8, {S4(srdr)}, s9 offen {nt}")
            toks.append(t)
        return toks

    def tile_gemv(vm, toks, sdst, bstride):
        for q4 in range(4):
            if toks:
                vm.wait(toks[q4])
            for d in range(8):
                t = PT + (d & 1) * 4
                perm_operand(t, KV + q4 * 32, d)
                c = "0" if q4 == 0 else R(SA + d * 4)
                a(f"v_mfma_f32_16x16x32_bf16 {R(SA + d*4)}, {R(t)}, {R(16 + q4*4)}, {c}")
        O = 72
        for d in range(4):
            for r in range(4):
                a(f"v_permlane32_swap_b32 v{SA + d*4 + r}, v{SA + (d+4)*4 + r}")
        for d in range(4):
            for r in range(4):
                dpp_add(O + r * 4 + d, SA + (d + 4) * 4 + r, SA + d * 4 + r, 8)
        a(f"v_and_b32 v9, 3, v{vLANE}")
        for r in range(1, 4):
            a(f"v_cmp_eq_u32 vcc, {r}, v9")
            for d in range(4):
                a(f"v_cndmask_b32 v{O+d}, v{O+d}, v{O + r*4 + d}, vcc")
        for d in range(4):
            tag_round(O + d, O + d)
        a(f"v_bfe_u32 v10, v{vLANE}, 4, 1")
        a(f"v_lshl_add_u32 v9, v10, 2, v9")
        a(f"v_lshlrev_b32 v9, 5, v9")
        a(f"v_lshrrev_b32 v10, 5, v{vLANE}")
        a(f"v_lshl_add_u32 v9, v10, 4, v9")
        a(f"v_bfe_u32 v10, v{vLANE}, 2, 1")
        a(f"v_mul_u32_u24 v10, {bstride}, v10")
        a(f"v_add_u32 v9, v9, v10")
        a(f"s_mov_b32 exec_lo, 0x00ff00ff\ns_mov_b32 exec_hi, 0x00ff00ff")
        a(f"buffer_store_dwordx4 {R(O)}, v9, {S4(rWS)}, s{sdst} offen sc1")
        a("s_mov_b64 exec, -1")

    a(f"s_cmp_eq_u32 s{sWAVE}, 0")
    a("s_cbranch_scc1 L_chain")
    a(f"s_cmp_eq_u32 s{sWAVE}, 1")
    a("s_cbranch_scc1 L_modt")
    a(f"s_and_b32 s9, s2, 1")
    if not mod2_on_b:
        a("s_xor_b32 s9, s9, 1")
    a(f"s_lshl_b32 s9, s9, 1")
    a(f"s_cmp_eq_u32 s{sWAVE}, s9")
    a("s_cbranch_scc1 L_modt")
    if codewarm:
        lw = a.label("Lnowarm")
        a(f"s_cmp_lg_u32 s{sWAVE}, 7")
        a(f"s_cbranch_scc1 {lw}")
        a("s_getpc_b64 s[10:11]")
        a("L_pc0:")
        a(f"v_lshlrev_b32 v8, 4, v{vLANE}")
        a(f"s_mov_b32 s9, 0")
        lp = a.label("Lwarm")
        a(f"{lp}:")
        a(f"v_min_u32 v9, L_end-L_pc0-16, v8")
        a(f"global_load_dwordx4 {R(72)}, v9, s[10:11]")
        a(f"v_add_u32 v8, 1024, v8")
        a(f"s_add_u32 s9, s9, 1024")
        a(f"s_cmp_lt_u32 s9, L_end-L_pc0")
        a(f"s_cbranch_scc1 {lp}")
        a(f"{lw}:")
    a("s_barrier")
    get_tag()
    a("s_branch L_prefetch")

    a("L_modt:")
    a("s_setprio 2")
    vm = Vm(a)
    srd(rT0, pWM, 12582912)
    srd(rT1, pC, 4096)
    a(f"s_and_b32 s9, s2, 1")
    if not mod2_on_b:
        a("s_xor_b32 s9, s9, 1")
    a(f"s_mul_i32 s9, s9, s{sWAVE}")
    a(f"s_lshl_b32 s9, s9, 5")
    a(f"s_add_u32 s12, s9, s{sIDX}")
    a(f"s_mul_i32 s10, s{sRG}, {256*12288}")
    a(f"s_lshl_b32 s11, s12, 7")
    a(f"s_add_u32 s10, s10, s11")
    a(f"v_bfe_u32 v10, v{vLANE}, 2, 1")
    a(f"v_lshlrev_b32 v10, 11, v10")
    a(f"v_lshl_add_u32 v10, v7, 4, v10")
    a(f"s_lshl_b32 s11, s{sRG}, 9")
    for q4 in range(4):
        tc = vm.issue(f"buffer_load_dwordx4 {R(72 + q4*4)}, v10, {S4(rT1)}, s11 offen offset:{q4*128}")
    toks = tile_loads(vm, rT0, 12288, 10)
    a("s_barrier")
    get_tag()
    vm.wait(tc)
    a(f"s_mov_b32 s9, 0xbfb8aa3b")
    for i in range(16):
        lo(4, 72 + i)
        hi(5, 72 + i)
        a(f"v_mul_f32 v6, s9, v4\nv_mul_f32 v11, s9, v5")
        a(f"v_exp_f32 v6, v6\nv_exp_f32 v11, v11")
        a(f"v_add_f32 v6, 1.0, v6\nv_add_f32 v11, 1.0, v11")
        a(f"v_rcp_f32 v6, v6\nv_rcp_f32 v11, v11")
        a(f"v_mul_f32 v4, v4, v6\nv_mul_f32 v5, v5, v11")
        a(f"v_cvt_pk_bf16_f32 v{16+i}, v4, v5")
    a(f"s_mul_i32 s13, s{sRG}, {2*6144*4}")
    a(f"s_lshl_b32 s11, s12, 8")
    a(f"s_add_u32 s13, s13, s11")
    a(f"s_add_u32 s13, s13, {MODP}")
    tile_gemv(vm, toks, 13, 6144 * 4)
    stamp(1)
    a("s_setprio 0")
    a("s_branch L_prefetch")

    a("L_chain:")
    a("s_setprio 3")
    vm = Vm(a)
    srd(rT0, pWQ, 8388608)
    srd(rT1, pX, 4096)
    a(f"v_lshrrev_b32 v10, 5, v{vLANE}")
    a(f"v_and_b32 v11, 31, v{vLANE}")
    a(f"v_lshlrev_b32 v9, 11, v10")
    a(f"v_lshl_add_u32 v9, v11, 4, v9")
    for q in range(4):
        vm.issue(f"buffer_load_dwordx4 {R(72 + q*4)}, v9, {S4(rT1)}, 0 offen offset:{q*512}")
    a(f"s_lshl_b32 s11, s{sRG}, 9")
    tx = vm.issue(f"buffer_load_dwordx4 {R(88)}, v9, {S4(rT1)}, s11 offen")
    a(f"s_and_b32 s12, s{sL}, 63")
    a(f"s_lshl_b32 s10, s{sRG}, 21")
    a(f"s_lshl_b32 s11, s12, 7")
    a(f"s_add_u32 s10, s10, s11")
    toks = tile_loads(vm, rT0, 8192, 10)
    a("s_barrier")
    get_tag()
    vm.wait(tx)
    a("v_mov_b32 v4, 0\nv_mov_b32 v5, 0")
    for i in range(16):
        lo(6, 72 + i)
        hi(8, 72 + i)
        a(f"v_add_f32 v4, v4, v6\nv_fmac_f32 v5, v6, v6")
        a(f"v_add_f32 v4, v4, v8\nv_fmac_f32 v5, v8, v8")
    for r in (1, 2, 4, 8):
        dpp_add(4, 4, 4, r)
        dpp_add(5, 5, 5, r)
    allred(4, 6, "v_add_f32", (16,))
    allred(5, 6, "v_add_f32", (16,))
    ln_stats(4, 5, 6, 8, 9)
    for i in range(4):
        lo(24 + 2 * i, 88 + i)
        hi(25 + 2 * i, 88 + i)
        ln_apply(24 + 2 * i, 25 + 2 * i, 6, 8, 9)
    a(f"v_mul_u32_u24 v9, 24576, v10")
    a(f"v_lshl_add_u32 v9, v11, 5, v9")
    a(f"s_lshl_b32 s10, s{sRG}, 10")

    def bodyA():
        for which in range(2):
            for p in range(4):
                a(f"s_add_u32 s9, s10, {MODP + p*49152 + which*4096}")
                for h in range(2):
                    a(f"buffer_load_dwordx4 {R(64 + which*32 + p*8 + h*4)}, v9, {S4(rWS)}, s9 offen offset:{h*16} sc1")
        a("s_waitcnt vmcnt(0)")
        check_regs(range(64, 128))
    poll(bodyA)
    stamp(2)
    for which in range(2):
        b0 = 64 + which * 32
        for e in range(8):
            a(f"v_add_f32 v{b0+e}, v{b0+e}, v{b0+8+e}")
            a(f"v_add_f32 v{b0+16+e}, v{b0+16+e}, v{b0+24+e}")
        for e in range(8):
            a(f"v_add_f32 v{b0+e}, v{b0+e}, v{b0+16+e}")
    for i in range(4):
        s0, c0, l0 = 64 + 2 * i, 96 + 2 * i, 24 + 2 * i
        rnd2(s0, s0 + 1, 6)
        rnd2(c0, c0 + 1, 6)
        a(f"v_add_f32 v{c0}, 1.0, v{c0}\nv_add_f32 v{c0+1}, 1.0, v{c0+1}")
        rnd2(c0, c0 + 1, 6)
        a(f"v_mul_f32 v{c0}, v{c0}, v{l0}\nv_mul_f32 v{c0+1}, v{c0+1}, v{l0+1}")
        rnd2(c0, c0 + 1, 6)
        a(f"v_add_f32 v{c0}, v{c0}, v{s0}\nv_add_f32 v{c0+1}, v{c0+1}, v{s0+1}")
        a(f"v_cvt_pk_bf16_f32 v{72+i}, v{c0}, v{c0+1}")
    a(f"v_lshlrev_b32 v9, 4, v{vLANE}")
    a(f"v_add_u32 v9, {HB}, v9")
    a(f"ds_write_b128 v9, {R(72)}")
    a(f"v_bfe_u32 v10, v{vLANE}, 2, 1")
    a(f"v_lshlrev_b32 v10, 9, v10")
    a(f"v_lshl_add_u32 v10, v7, 4, v10")
    a(f"v_add_u32 v10, {HB}, v10")
    a("s_waitcnt lgkmcnt(0)")
    for q4 in range(4):
        a(f"ds_read_b128 {R(16 + q4*4)}, v10 offset:{q4*128}")
    a(f"s_lshl_b32 s13, s{sRG}, 15")
    a(f"s_lshl_b32 s11, s12, 8")
    a(f"s_add_u32 s13, s13, s11")
    a(f"s_add_u32 s13, s13, {QP}")
    a("s_waitcnt lgkmcnt(0)")
    tile_gemv(vm, None, 13, 4096 * 4)
    stamp(3)
    a(f"v_lshlrev_b32 v9, 4, v{vLANE}")
    a(f"s_lshl_b32 s10, s{sXCD}, 12")

    def bodyB():
        for p in range(4):
            a(f"s_add_u32 s9, s10, {QP + p*32768}")
            for i in range(4):
                a(f"buffer_load_dwordx4 {R(64 + p*16 + i*4)}, v9, {S4(rWS)}, s9 offen offset:{i*1024} sc1")
        a("s_waitcnt vmcnt(0)")
        check_regs(range(64, 128))
    poll(bodyB)
    for e in range(16):
        a(f"v_add_f32 v{64+e}, v{64+e}, v{80+e}")
        a(f"v_add_f32 v{96+e}, v{96+e}, v{112+e}")
    for e in range(16):
        a(f"v_add_f32 v{64+e}, v{64+e}, v{96+e}")
    for e in range(8):
        a(f"v_cvt_pk_bf16_f32 v{80+e}, v{64+2*e}, v{65+2*e}")
    a(f"v_lshlrev_b32 v9, 3, v{vLANE}")
    a(f"v_add_u32 v9, {QB}, v9")
    for i in range(4):
        a(f"ds_write_b64 v9, {R(80 + 2*i, 2)} offset:{i*512}")
    a("s_waitcnt lgkmcnt(0)")
    stamp(4)
    a("s_barrier")
    a("s_setprio 0")

    def w1_dma(vm):
        srd(rT0, pW1, 7340032)
        a(f"v_lshrrev_b32 v8, 2, v{vLANE}")
        a(f"v_mul_u32_u24 v8, 7168, v8")
        a(f"v_and_b32 v9, 3, v{vLANE}")
        a(f"v_lshl_add_u32 v8, v9, 4, v8")
        a(f"s_mul_i32 s10, s{sWAVE}, {128*7168}")
        a(f"s_lshl_b32 s11, s{sAB}, 6")
        a(f"s_add_u32 s10, s10, s11")
        a(f"s_lshl_b32 s11, s{sWAVE}, 13")
        t = None
        for i in range(8):
            a(f"s_add_u32 m0, s11, {WT + i*1024}")
            a(f"s_add_u32 s9, s10, {16*i*7168}")
            t = vm.issue(f"buffer_load_dwordx4 v8, {S4(rT0)}, s9 offen {nt} lds")
        return t

    a("L_prefetch:")
    a(f"s_bitcmp1_b32 s2, 0")
    a("s_cbranch_scc1 L_nowo")
    srd(rT2, pWO, 8388608)
    a(f"v_lshrrev_b32 v8, 5, v{vLANE}")
    a(f"v_lshlrev_b32 v8, 11, v8")
    a(f"v_and_b32 v9, 31, v{vLANE}")
    a(f"v_lshl_add_u32 v8, v9, 4, v8")
    a(f"s_lshr_b32 s10, s{sAB}, 2")
    a(f"s_lshl_b32 s10, s10, 18")
    a(f"s_and_b32 s11, s{sAB}, 3")
    a(f"s_lshl_b32 s11, s11, 9")
    a(f"s_add_u32 s10, s10, s11")
    a(f"s_lshl_b32 s11, s{sWAVE}, 15")
    a(f"s_add_u32 s10, s10, s11")
    a(f"s_lshl_b32 s11, s{sWAVE}, 13")
    for i in range(8):
        a(f"s_add_u32 m0, s11, {WT + i*1024}")
        a(f"s_add_u32 s9, s10, {i*4096}")
        a(f"buffer_load_dwordx4 v8, {S4(rT2)}, s9 offen {nt} lds")
    if w1_early:
        a("s_branch L_now1")
    a("L_nowo:")
    if w1_early:
        a(f"s_cmp_ge_u32 s{sAB}, 112")
        a("s_cbranch_scc1 L_now1")
        w1_dma(Vm(a))
        a("L_now1:")
    vm = Vm(a)
    tk = []
    for u in range(8):
        a(f"s_add_u32 s9, s{sKV}, {u*4096}")
        for t in range(2):
            for s in range(2):
                tok = vm.issue(f"buffer_load_dwordx4 {R(KV + u*16 + t*8 + s*4)}, v{vOK}, {S4(rK)}, s9 offen offset:{t*512 + s*128} {nt}")
        tk.append(tok)
    vblk = [SP, KV, KV + 32, KV + 64]
    tv = [None] * 4

    def vload(v):
        for e in range(8):
            if e % 4 == 0:
                a(f"s_add_u32 s9, s{sKV}, {(8*v+e)*1024}")
            tv[v] = vm.issue(f"buffer_load_dwordx4 {R(vblk[v] + e*4)}, v{vOV}, {S4(rV)}, s9 offen offset:{(e % 4)*1024} {nt}")
    vload(0)
    a(f"s_cmp_eq_u32 s{sWAVE}, 0")
    a("s_cbranch_scc1 L_haveq")
    a("s_barrier")
    a("L_haveq:")
    stamp(5)
    a(f"v_and_b32 v8, 7, v{vLANE}")
    a(f"v_lshrrev_b32 v7, 3, v{vLANE}")
    a(f"v_lshlrev_b32 v9, 8, v8")
    a(f"v_lshl_add_u32 v9, v7, 4, v9")
    a(f"v_add_u32 v9, {QB}, v9")
    a(f"ds_read_b128 {R(QF)}, v9")
    a(f"ds_read_b128 {R(QF+4)}, v9 offset:128")
    a("s_waitcnt lgkmcnt(0)")
    for u in range(8):
        vm.wait(tk[u])
        k0 = KV + u * 16
        X, Y = SA + u * 4, DT + (u & 1) * 4
        a(f"v_mfma_f32_16x16x32_bf16 {R(X)}, {R(k0)}, {R(QF)}, 0")
        a(f"v_mfma_f32_16x16x32_bf16 {R(Y)}, {R(k0+8)}, {R(QF)}, 0")
        a(f"v_mfma_f32_16x16x32_bf16 {R(X)}, {R(k0+4)}, {R(QF+4)}, {R(X)}")
        a(f"v_mfma_f32_16x16x32_bf16 {R(Y)}, {R(k0+12)}, {R(QF+4)}, {R(Y)}")
        if u in (1, 3, 5):
            vload((u + 1) // 2)
        for r in range(4):
            a(f"v_permlane32_swap_b32 v{X+r}, v{Y+r}")
        for r in range(4):
            dpp_add(X + r, Y + r, X + r, 8)
        for r in (0, 2):
            rnd2(X + r, X + r + 1, 4)
            a(f"v_mul_f32 v{X+r}, s{sSCALE}, v{X+r}\nv_mul_f32 v{X+r+1}, s{sSCALE}, v{X+r+1}")
            rnd2(X + r, X + r + 1, 4)
        if u == 0:
            a(f"v_max3_f32 v5, v{X}, v{X+1}, v{X+2}")
            a(f"v_max_f32 v5, v5, v{X+3}")
        else:
            a(f"v_max3_f32 v5, v5, v{X}, v{X+1}")
            a(f"v_max3_f32 v5, v5, v{X+2}, v{X+3}")
    allred(5, 6, "v_max_f32", (32, 16))
    a(f"v_lshlrev_b32 v9, 5, v8")
    a(f"v_add_u32 v10, {MX}, v9")
    a(f"s_lshl_b32 s9, s{sWAVE}, 2")
    a(f"v_add_u32 v11, s9, v10")
    a("s_mov_b64 exec, 0xff")
    a(f"ds_write_b32 v11, v5")
    a("s_mov_b64 exec, -1")
    a("s_waitcnt lgkmcnt(0)")
    stamp(6)
    a("s_barrier")
    a(f"ds_read_b128 {R(72)}, v10")
    a(f"ds_read_b128 {R(76)}, v10 offset:16")
    a("s_waitcnt lgkmcnt(0)")
    a(f"v_max3_f32 v5, v72, v73, v74\nv_max3_f32 v5, v5, v75, v76\nv_max3_f32 v5, v5, v77, v78\nv_max_f32 v5, v5, v79")
    a(f"v_mul_f32 v6, s{sLOG2E}, v5")
    a(f"v_readlane_b32 s14, v5, s{sWAVE}")
    a("v_mov_b32 v4, 0")
    for i in range(32):
        a(f"v_fma_f32 v{SA+i}, v{SA+i}, s{sLOG2E}, -v6")
        a(f"v_exp_f32 v{SA+i}, v{SA+i}")
        if i:
            a(f"v_add_f32 v4, v4, v{SA+i-1}")
    a(f"v_add_f32 v4, v4, v{SA+31}")
    for i in range(16):
        a(f"v_cvt_pk_bf16_f32 v{QF+i}, v{SA+2*i}, v{SA+2*i+1}")
    allred(4, 6, "v_add_f32", (32, 16))
    a("s_mov_b64 exec, 0xff")
    a(f"ds_write_b32 v11, v4 offset:{LX-MX}")
    a("s_mov_b64 exec, -1")
    for v in range(4):
        vm.wait(tv[v])
        for d in range(8):
            t = PT + (d & 1) * 4
            perm_operand(t, vblk[v], d)
            c = "0" if v == 0 else R(SA + d * 4)
            a(f"v_mfma_f32_16x16x32_bf16 {R(SA + d*4)}, {R(t)}, {R(QF + v*4)}, {c}")
    stamp(7)
    a(f"v_mul_u32_u24 v9, 528, v8")
    a(f"v_lshrrev_b32 v10, 4, v{vLANE}")
    a(f"v_lshl_add_u32 v9, v10, 4, v9")
    a(f"s_mul_i32 s9, s{sWAVE}, 4224")
    a(f"s_add_u32 s9, s9, {OC}")
    a(f"v_add_u32 v9, s9, v9")
    a(f"s_mov_b32 exec_lo, 0x00ff00ff\ns_mov_b32 exec_hi, 0x00ff00ff")
    for d in range(8):
        a(f"ds_write_b128 v9, {R(SA + d*4)} offset:{d*64}")
    a("s_mov_b64 exec, -1")
    a(f"v_lshrrev_b32 v10, 5, v{vLANE}")
    a(f"v_mul_u32_u24 v10, {4*4224}, v10")
    a(f"v_and_b32 v11, 31, v{vLANE}")
    a(f"v_lshlrev_b32 v11, 4, v11")
    a(f"s_mul_i32 s9, s{sWAVE}, 528")
    a(f"s_add_u32 s9, s9, {OC}")
    a(f"v_add3_u32 v10, v10, v11, s9")
    a(f"s_lshl_b32 s9, s{sWAVE}, 5")
    a(f"s_add_u32 s9, s9, {LX}")
    a(f"v_mov_b32 v9, s9")
    a(f"s_lshl_b32 s10, s{sXCD}, 3")
    a(f"s_add_u32 s10, s10, s{sWAVE}")
    a(f"s_lshl_b32 s10, s10, 5")
    a(f"s_add_u32 s10, s10, s{sIDX}")
    a(f"s_lshl_b32 s11, s10, 9")
    a(f"s_add_u32 s11, s11, {OP}")
    a(f"s_lshl_b32 s10, s10, 4")
    a(f"s_add_u32 s10, s10, {ML}")
    a("s_waitcnt lgkmcnt(0)")
    a("s_barrier")
    for k in range(4):
        a(f"ds_read_b128 {R(72 + 4*k)}, v10 offset:{k*4224}")
    a(f"ds_read_b128 {R(88)}, v9")
    a(f"ds_read_b128 {R(92)}, v9 offset:16")
    a("s_waitcnt lgkmcnt(2)")
    for r in range(4):
        a(f"v_add_f32 v{72+r}, v{72+r}, v{76+r}\nv_add_f32 v{80+r}, v{80+r}, v{84+r}")
    for r in range(4):
        a(f"v_add_f32 v{72+r}, v{72+r}, v{80+r}")
    for r in range(4):
        a(f"v_mov_b32 v{76+r}, v{72+r}")
    for r in range(4):
        a(f"v_permlane32_swap_b32 v{72+r}, v{76+r}")
    for r in range(4):
        a(f"v_add_f32 v{72+r}, v{72+r}, v{76+r}")
    for r in range(4):
        tag_trunc(72 + r, 72 + r)
    a("s_mov_b32 exec_hi, 0")
    a(f"buffer_store_dwordx4 {R(72)}, v11, {S4(rWS)}, s11 offen sc1")
    a("s_mov_b64 exec, -1")
    a("s_waitcnt lgkmcnt(0)")
    a("v_add_f32 v88, v88, v89\nv_add_f32 v90, v90, v91\nv_add_f32 v92, v92, v93\nv_add_f32 v94, v94, v95")
    a("v_add_f32 v88, v88, v90\nv_add_f32 v92, v92, v94\nv_add_f32 v89, v88, v92")
    a("v_mov_b32 v88, s14")
    tag_trunc(88, 88)
    tag_trunc(89, 89)
    a("v_mov_b32 v90, v88\nv_mov_b32 v91, v89")
    a("s_mov_b64 exec, 1")
    a(f"buffer_store_dwordx4 {R(88)}, v11, {S4(rWS)}, s10 offen sc1")
    a("s_mov_b64 exec, -1")
    stamp(8)
    a(f"s_bitcmp1_b32 s2, 0")
    a("s_cbranch_scc1 L_tailB")

    WOP = 192
    GA, GB, XV, B2V = 160, 164, 168, 169
    a(f"s_lshr_b32 s12, s{sAB}, 6")
    a(f"s_and_b32 s13, s{sAB}, 63")
    a(f"s_lshl_b32 s13, s13, 4")
    a(f"s_and_b32 s9, s{sWAVE}, 3")
    a(f"s_lshl_b32 s9, s9, 2")
    a(f"s_add_u32 s13, s13, s9")
    srd(rT0, pX, 4096)
    srd(rT1, pB2, 2048)
    srd(rT3, pOUT, 4096)
    a(f"v_bfe_u32 v4, v{vLANE}, 4, 1")
    a(f"v_lshlrev_b32 v4, 1, v4")
    a(f"v_lshrrev_b32 v5, 5, v{vLANE}")
    a(f"v_or_b32 v4, v4, v5")
    a(f"v_add_u32 v5, s13, v4")
    a(f"s_lshl_b32 s9, s12, 10")
    a(f"v_add_u32 v15, s9, v5")
    a(f"v_lshlrev_b32 v5, 1, v5")
    a(f"v_lshlrev_b32 v6, 1, v15")
    a(f"buffer_load_ushort v{XV}, v6, {S4(rT0)}, 0 offen")
    a(f"buffer_load_ushort v{B2V}, v5, {S4(rT1)}, 0 offen")
    for r in range(8):
        a(f"v_mov_b32 v{GA+r}, 0")
    a(f"v_mul_u32_u24 v170, 49152, v{vLANE}")
    a(f"s_mul_i32 s15, s12, 24576")
    a(f"s_lshl_b32 s9, s13, 2")
    a(f"s_add_u32 s15, s15, s9")
    a(f"s_add_u32 s15, s15, {MODP + 2*4096}")
    a(f"s_add_u32 s88, s15, {3*4096}")

    def gloads():
        a(f"buffer_load_dwordx4 {R(GA)}, v170, {S4(rWS)}, s15 offen sc1")
        a(f"buffer_load_dwordx4 {R(GB)}, v170, {S4(rWS)}, s88 offen sc1")
    a("s_mov_b64 exec, 0xf")
    gloads()
    a("s_mov_b64 exec, -1")
    a(f"v_lshrrev_b32 v7, 3, v{vLANE}")
    a(f"v_and_b32 v8, 7, v{vLANE}")
    a(f"v_lshlrev_b32 v9, 9, v7")
    a(f"v_lshl_add_u32 v9, v8, 4, v9")
    a(f"v_lshlrev_b32 v10, 4, v7")
    a(f"s_lshr_b32 s9, s{sWAVE}, 2")
    a(f"s_lshl_b32 s9, s9, 5")
    a(f"s_lshr_b32 s10, s{sAB}, 2")
    a(f"s_add_u32 s9, s9, s10")
    a(f"s_lshl_b32 s89, s9, 9")
    a(f"s_add_u32 s89, s89, {ML}")
    a(f"s_lshl_b32 s90, s9, 14")
    a(f"s_and_b32 s11, s{sWAVE}, 3")
    a(f"s_lshl_b32 s11, s11, 7")
    a(f"s_add_u32 s90, s90, s11")
    a(f"s_add_u32 s90, s90, {OP}")
    for i in range(1, 4):
        a(f"s_add_u32 s{90+i}, s90, {i*4096}")
    a(f"v_bfe_u32 v5, v{vLANE}, 4, 1")
    a(f"v_lshlrev_b32 v5, 6, v5")
    a(f"v_bfe_u32 v6, v{vLANE}, 2, 2")
    a(f"v_lshl_add_u32 v5, v6, 3, v5")
    a(f"v_lshrrev_b32 v6, 5, v{vLANE}")
    a(f"v_add_u32 v5, v5, v6")
    a(f"v_lshlrev_b32 v5, 9, v5")
    a(f"v_and_b32 v6, 3, v{vLANE}")
    a(f"v_lshl_add_u32 v5, v6, 3, v5")
    a(f"s_lshl_b32 s9, s{sWAVE}, 6")
    a(f"v_add_u32 v5, s9, v5")
    for ct in range(2):
        for s in range(4):
            for h in range(2):
                a(f"ds_read_b64_tr_b16 {R(WOP + ct*16 + s*4 + h*2, 2)}, v5 offset:{WT + 16384*h + 1024*s + 32*ct}")

    def bodyH1():
        for i in range(4):
            a(f"buffer_load_dwordx4 {R(144 + 4*i)}, v10, {S4(rWS)}, s89 offen offset:{i*128} sc1")
        for i in range(4):
            a(f"buffer_load_dwordx4 {R(128 + 4*i)}, v9, {S4(rWS)}, s{90+i} offen sc1")
        a("s_waitcnt vmcnt(0)")
        check_regs(range(128, 160))
    poll(bodyH1)
    stamp(9)
    a("v_max3_f32 v5, v144, v148, v152\nv_max_f32 v5, v5, v156")
    dpp_max(5, 5, 5, 8)
    allred(5, 6, "v_max_f32", (16, 32))
    for i in range(4):
        a(f"v_sub_f32 v{144+4*i}, v{144+4*i}, v5")
        a(f"v_mul_f32 v{144+4*i}, s{sLOG2E}, v{144+4*i}")
        a(f"v_exp_f32 v{144+4*i}, v{144+4*i}")
    a("v_mul_f32 v5, v144, v145")
    for i in range(1, 4):
        a(f"v_fmac_f32 v5, v{144+4*i}, v{145+4*i}")
    for k in range(4):
        a(f"v_mul_f32 v{128+k}, v144, v{128+k}")
    for i in range(1, 4):
        for k in range(4):
            a(f"v_fmac_f32 v{128+k}, v{144+4*i}, v{128+4*i+k}")
    dpp_add(5, 5, 5, 8)
    allred(5, 6, "v_add_f32", (16, 32))
    a("v_rcp_f32 v5, v5")
    red4(128, (8,))
    a("v_mul_f32 v128, v128, v5")
    a("v_cvt_pk_bf16_f32 v128, v128, v128")
    a(f"v_lshl_add_u32 v5, v8, 2, v4")
    a(f"s_lshl_b32 s9, s{sWAVE}, 6")
    a(f"s_add_u32 s9, s9, {OB}")
    a(f"v_lshl_add_u32 v5, v5, 1, s9")
    a("ds_write_b16 v5, v128")
    a(f"v_and_b32 v5, 1, v{vLANE}")
    a(f"v_lshlrev_b32 v6, 8, v5")
    a(f"v_lshrrev_b32 v7, 4, v{vLANE}")
    a(f"v_lshl_add_u32 v6, v7, 4, v6")
    a(f"v_add_u32 v6, {OB}, v6")
    a(f"v_lshlrev_b32 v9, 12, v5")
    a(f"v_lshl_add_u32 v9, v7, 4, v9")
    a(f"v_bfe_u32 v10, v{vLANE}, 1, 1")
    a(f"v_lshl_add_u32 v9, v10, 6, v9")
    a(f"v_cmp_eq_u32 vcc, 1, v10")
    a(f"s_lshr_b32 s10, s{sAB}, 2")
    a(f"s_lshl_b32 s10, s10, 13")
    a(f"s_and_b32 s11, s{sAB}, 3")
    a(f"s_lshl_b32 s11, s11, 10")
    a(f"s_add_u32 s10, s10, s11")
    a(f"s_lshl_b32 s11, s{sWAVE}, 7")
    a(f"s_add_u32 s10, s10, s11")
    a(f"s_add_u32 s10, s10, {XP}")
    a("s_waitcnt lgkmcnt(0)")
    a("s_barrier")
    for s in range(4):
        a(f"ds_read_b128 {R(128 + 4*s)}, v6 offset:{s*64}")
    for s in range(4):
        a(f"s_waitcnt lgkmcnt({3-s})")
        for ct in range(2):
            c = "0" if s == 0 else R(144 + 4 * ct)
            a(f"v_mfma_f32_16x16x32_bf16 {R(144 + 4*ct)}, {R(WOP + ct*16 + s*4)}, {R(128 + 4*s)}, {c}")
    for r in range(4):
        a(f"v_cndmask_b32 v{144+r}, v{144+r}, v{148+r}, vcc")
    for r in range(4):
        tag_trunc(144 + r, 144 + r)
    a(f"s_mov_b32 exec_lo, 0x000f000f\ns_mov_b32 exec_hi, 0x000f000f")
    a(f"buffer_store_dwordx4 {R(144)}, v9, {S4(rWS)}, s10 offen sc1")
    a("s_mov_b64 exec, -1")
    stamp(10)
    a(f"s_cmp_ge_u32 s{sWAVE}, 4")
    a("s_cbranch_scc1 L_fin")
    a("s_mov_b64 exec, 0xf")
    check_regs(range(GA, GA + 8))
    a(f"v_and_b32 v{vBAD}, s{sTM}, v{vBAD}")
    a(f"v_cmp_ne_u32 vcc, 0, v{vBAD}")
    a("s_cbranch_vccz L_gok")

    def bodyG():
        gloads()
        a("s_waitcnt vmcnt(0)")
        check_regs(range(GA, GA + 8))
    poll(bodyG)
    a("L_gok:")
    a("s_mov_b64 exec, -1")
    red4(GA, (1, 2, 4, 8))
    red4(GB, (1, 2, 4, 8))
    rnd2(GA, GB, 5)
    lo(XV, XV)
    lo(B2V, B2V)
    a(f"v_lshlrev_b32 v9, 13, v{vLANE}")
    a(f"s_lshl_b32 s10, s12, 12")
    a(f"s_lshl_b32 s9, s13, 2")
    a(f"s_add_u32 s10, s10, s9")
    a(f"s_add_u32 s11, s10, {XP}")
    for r in range(8):
        a(f"v_mov_b32 v{128+r}, 0")
    a("s_mov_b32 exec_hi, 0")

    def bodyH2():
        a(f"buffer_load_dwordx4 {R(128)}, v9, {S4(rWS)}, s11 offen sc1")
        a("s_waitcnt vmcnt(0)")
        check_regs(range(128, 132))
    poll(bodyH2)
    a("s_mov_b64 exec, -1")
    stamp(11)
    red4(128, (1, 2, 4, 8))
    rnd1(128, 128)
    a(f"v_mul_f32 v128, v{GA}, v128")
    rnd1(128, 128)
    a(f"v_add_f32 v128, v{XV}, v128")
    rnd1(XV, 128)
    a(f"v_or_b32 v128, v{vTAG}, v{XV}")
    a(f"v_lshlrev_b32 v10, 2, v15")
    a(f"s_mov_b32 s9, {X1}")
    a(f"s_mov_b32 exec_lo, 0x00010001\ns_mov_b32 exec_hi, 0x00010001")
    a(f"buffer_store_dword v128, v10, {S4(rWS)}, s9 offen sc1")
    a("s_mov_b64 exec, -1")
    stamp(12)
    a(f"s_add_u32 s11, s10, {YP}")
    a(f"s_add_u32 s15, s10, {YP + 64*8192}")

    def bodyH4():
        a(f"buffer_load_dwordx4 {R(128)}, v9, {S4(rWS)}, s11 offen sc1")
        a("s_mov_b32 exec_hi, 0xffff")
        a(f"buffer_load_dwordx4 {R(132)}, v9, {S4(rWS)}, s15 offen sc1")
        a("s_waitcnt vmcnt(0)")
        for r in range(132, 136):
            a(f"v_xor_b32 v{r}, v{vTAG}, v{r}")
        a("s_mov_b32 exec_hi, -1")
        check_regs(range(128, 132))
        a(f"v_or3_b32 v{vBAD}, v{vBAD}, v132, v133")
        a(f"v_or3_b32 v{vBAD}, v{vBAD}, v134, v135")
    poll(bodyH4)
    stamp(13)
    for r in range(4):
        a(f"v_add_f32 v{128+r}, v{128+r}, v{132+r}")
    red4(128, (1, 2, 4, 8))
    rnd1(128, 128)
    a(f"v_add_f32 v128, v{B2V}, v128")
    rnd1(128, 128)
    a(f"v_mul_f32 v128, v{GB}, v128")
    rnd1(128, 128)
    a(f"v_add_f32 v128, v{XV}, v128")
    a("v_cvt_pk_bf16_f32 v128, v128, v128")
    a(f"v_lshlrev_b32 v10, 1, v15")
    a(f"s_mov_b32 exec_lo, 0x00010001\ns_mov_b32 exec_hi, 0x00010001")
    a(f"buffer_store_short v128, v10, {S4(rT3)}, 0 offen")
    a("s_mov_b64 exec, -1")
    a(f"s_or_b32 s9, s2, s{sWAVE}")
    a("s_cmp_lg_u32 s9, 0")
    a("s_cbranch_scc1 L_fin")
    a(f"v_mov_b32 v4, s{sEP}")
    a("v_mov_b32 v5, 0")
    a("s_mov_b64 exec, 1")
    a(f"buffer_store_dword v4, v5, {S4(rWS)}, 0 offen offset:{EPOCH} sc1")
    a("s_mov_b64 exec, -1")
    a("s_branch L_fin")

    a("L_tailB:")
    a(f"s_cmp_ge_u32 s{sAB}, 112")
    a("s_cbranch_scc1 L_fin")
    vm = Vm(a)
    SB = 128
    W2R = 160
    W2O = 192
    W1O = 224
    AD = 32
    B1V = 72
    a(f"v_lshrrev_b32 v10, 5, v{vLANE}")
    a(f"v_and_b32 v11, 31, v{vLANE}")
    a(f"v_mul_u32_u24 v4, 24576, v10")
    a(f"v_lshl_add_u32 v4, v11, 4, v4")
    a(f"s_lshl_b32 s12, s{sWAVE}, 9")

    def sbloads(vm=None):
        t = None
        for which in range(2):
            for p in range(4):
                a(f"s_add_u32 s9, s12, {MODP + p*49152 + (3+which)*4096}")
                txt = f"buffer_load_dwordx4 {R(SB + which*16 + p*4)}, v4, {S4(rWS)}, s9 offen sc1"
                if vm:
                    t = vm.issue(txt)
                else:
                    a(txt)
        return t
    sbloads(vm)
    srd(rT1, pB1, 7168)
    a(f"v_lshlrev_b32 v5, 1, v11")
    a(f"s_lshl_b32 s9, s{sAB}, 6")
    tsb = vm.issue(f"buffer_load_ushort v{B1V}, v5, {S4(rT1)}, s9 offen")
    tw1 = tsb if w1_early else w1_dma(vm)
    srd(rT2, pW2, 7340032)
    a(f"v_lshrrev_b32 v7, 4, v{vLANE}")
    a(f"v_lshlrev_b32 v8, 14, v7")
    a(f"v_and_b32 v9, 15, v{vLANE}")
    a(f"v_lshl_add_u32 v8, v9, 4, v8")
    a(f"s_lshl_b32 s10, s{sAB}, 16")
    a(f"s_lshl_b32 s11, s{sWAVE}, 8")
    a(f"s_add_u32 s10, s10, s11")
    for e in range(8):
        if e % 2 == 0:
            a(f"s_add_u32 s9, s10, {e*2048}")
        tw2 = vm.issue(f"buffer_load_dwordx4 {R(W2R + e*4)}, v8, {S4(rT2)}, s9 offen offset:{(e % 2)*2048} {nt}")
    for r in range(32):
        a(f"v_mov_b32 v{AD+r}, 0")
    vm.wait(tsb)
    check_regs(range(SB, SB + 32))
    a(f"v_and_b32 v{vBAD}, s{sTM}, v{vBAD}")
    a(f"v_cmp_ne_u32 vcc, 0, v{vBAD}")
    a("s_cbranch_vccz L_sbok")

    def bodyS():
        sbloads()
        a("s_waitcnt vmcnt(0)")
        check_regs(range(SB, SB + 32))
    poll(bodyS)
    a("L_sbok:")
    for which in range(2):
        b0 = SB + which * 16
        for k in range(4):
            a(f"v_add_f32 v{b0+k}, v{b0+k}, v{b0+4+k}\nv_add_f32 v{b0+8+k}, v{b0+8+k}, v{b0+12+k}")
        for k in range(4):
            a(f"v_add_f32 v{b0+k}, v{b0+k}, v{b0+8+k}")
        rnd2(b0, b0 + 1, 5)
        rnd2(b0 + 2, b0 + 3, 5)
    CB = SB + 16
    for k in range(4):
        a(f"v_add_f32 v{CB+k}, 1.0, v{CB+k}")
    rnd2(CB, CB + 1, 5)
    rnd2(CB + 2, CB + 3, 5)
    lo(B1V, B1V)
    a(f"v_bfe_u32 v5, v{vLANE}, 2, 2")
    a(f"v_lshl_add_u32 v5, v7, 3, v5")
    a(f"v_lshlrev_b32 v5, 6, v5")
    a(f"v_and_b32 v6, 3, v{vLANE}")
    a(f"v_lshl_add_u32 v5, v6, 3, v5")
    a(f"s_lshl_b32 s9, s{sWAVE}, 13")
    a(f"v_add_u32 v5, s9, v5")
    vm.wait(tw1)
    for ct in range(2):
        for s in range(4):
            for h in range(2):
                a(f"ds_read_b64_tr_b16 {R(W1O + ct*16 + s*4 + h*2, 2)}, v5 offset:{WT + (32*s + 4*h)*64 + 32*ct}")
    a(f"v_lshlrev_b32 v4, 12, v10")
    a(f"v_lshl_add_u32 v4, v11, 4, v4")
    a(f"s_add_u32 s13, s12, {X1}")
    a(f"v_lshlrev_b32 v73, 5, v7")
    a(f"s_lshl_b32 s9, s{sWAVE}, 2")
    a(f"s_add_u32 s9, s9, {ST}")
    a(f"v_add_u32 v73, s9, v73")
    a(f"v_lshlrev_b32 v74, 6, v10")
    a(f"v_add_u32 v74, {ST}, v74")
    a(f"s_lshl_b32 s9, s{sWAVE}, 9")
    a(f"s_add_u32 s9, s9, {YB}")
    a(f"v_lshl_add_u32 v75, v{vLANE}, 3, s9")
    a(f"v_and_b32 v5, 1, v{vLANE}")
    a(f"v_lshlrev_b32 v76, 8, v5")
    a(f"v_lshl_add_u32 v76, v7, 4, v76")
    a(f"v_add_u32 v76, s9, v76")
    a(f"s_lshl_b32 s9, s{sWAVE}, 8")
    a(f"s_add_u32 s9, s9, {RED}")
    a(f"v_lshlrev_b32 v77, 7, v5")
    a(f"v_lshl_add_u32 v77, v7, 4, v77")
    a(f"v_add_u32 v77, s9, v77")
    a(f"v_lshlrev_b32 v78, 2, v{vLANE}")
    a(f"v_add_u32 v78, {RED}, v78")
    a(f"s_lshl_b32 s9, s{sWAVE}, 7")
    a(f"s_add_u32 s9, s9, {H1B}")
    a(f"v_lshl_add_u32 v79, v{vLANE}, 1, s9")
    a(f"v_bfe_u32 v5, v{vLANE}, 2, 1")
    a(f"v_lshlrev_b32 v80, 6, v5")
    a(f"v_lshl_add_u32 v80, v7, 4, v80")
    a(f"v_add_u32 v80, s9, v80")
    a(f"v_and_b32 v5, 1, v7")
    a(f"v_lshlrev_b32 v81, 12, v5")
    a(f"v_lshl_add_u32 v81, v9, 5, v81")
    a(f"v_lshl_add_u32 v81, v10, 4, v81")
    a(f"s_lshl_b32 s14, s{sAB}, 13")
    a(f"s_add_u32 s14, s14, s12")
    a(f"s_add_u32 s14, s14, {YP}")
    vm.wait(tw2)
    for d in range(8):
        perm_operand(W2O + d * 4, W2R, d)
    stamp(9)
    XR = 84

    def bodyH3():
        a(f"buffer_load_dwordx4 {R(XR)}, v4, {S4(rWS)}, s13 offen sc1")
        a("s_waitcnt vmcnt(0)")
        check_regs(range(XR, XR + 4))
    poll(bodyH3)
    stamp(10)

    def wg_stats(rnd):
        a(f"v_add_f32 v5, v{XR}, v{XR+1}\nv_mul_f32 v6, v{XR}, v{XR}")
        a(f"v_add_f32 v8, v{XR+2}, v{XR+3}\nv_fmac_f32 v6, v{XR+1}, v{XR+1}")
        a(f"v_add_f32 v5, v5, v8\nv_fmac_f32 v6, v{XR+2}, v{XR+2}\nv_fmac_f32 v6, v{XR+3}, v{XR+3}")
        a("v_permlane16_swap_b32 v5, v6")
        a("v_add_f32 v5, v5, v6")
        for r in (1, 2, 4, 8):
            dpp_add(5, 5, 5, r)
        a(f"ds_write_b32 v73, v5 offset:{rnd*128}")
        a("s_waitcnt lgkmcnt(0)")
        a("s_barrier")
        for k in range(4):
            a(f"ds_read_b128 {R(96 + 4*k)}, v74 offset:{rnd*128 + 16*k}")
        a("s_waitcnt lgkmcnt(0)")
        for k in range(4):
            a(f"v_add_f32 v{96+k}, v{96+k}, v{100+k}\nv_add_f32 v{104+k}, v{104+k}, v{108+k}")
        a("v_add_f32 v96, v96, v97\nv_add_f32 v104, v104, v105\nv_add_f32 v98, v98, v99\nv_add_f32 v106, v106, v107")
        a("v_add_f32 v5, v96, v98\nv_add_f32 v6, v104, v106")
        ln_stats(5, 6, 8, 100, 101)
    wg_stats(0)
    for k in (0, 2):
        ln_apply(XR + k, XR + k + 1, 8, 100, 101)
        a(f"v_mul_f32 v{XR+k}, v{XR+k}, v{CB+k}\nv_mul_f32 v{XR+k+1}, v{XR+k+1}, v{CB+k+1}")
        rnd2(XR + k, XR + k + 1, 8)
        a(f"v_add_f32 v{XR+k}, v{XR+k}, v{SB+k}\nv_add_f32 v{XR+k+1}, v{XR+k+1}, v{SB+k+1}")
        rnd2(XR + k, XR + k + 1, 8)
    wg_stats(1)
    for k in (0, 2):
        ln_apply(XR + k, XR + k + 1, 8, 100, 101, last_round=False)
    a(f"v_cvt_pk_bf16_f32 v88, v{XR}, v{XR+1}\nv_cvt_pk_bf16_f32 v89, v{XR+2}, v{XR+3}")
    a(f"ds_write_b64 v75, {R(88, 2)}")
    a("s_waitcnt lgkmcnt(0)")
    for s in range(4):
        a(f"ds_read_b128 {R(96 + 4*s)}, v76 offset:{s*64}")
    for s in range(4):
        a(f"s_waitcnt lgkmcnt({3-s})")
        for ct in range(2):
            c = "0" if s == 0 else R(112 + 4 * ct)
            a(f"v_mfma_f32_16x16x32_bf16 {R(112 + 4*ct)}, {R(W1O + ct*16 + s*4)}, {R(96 + 4*s)}, {c}")
    a(f"s_mov_b32 exec_lo, 0x00030003\ns_mov_b32 exec_hi, 0x00030003")
    a(f"ds_write_b128 v77, {R(112)}")
    a(f"ds_write_b128 v77, {R(116)} offset:64")
    a("s_mov_b64 exec, -1")
    a("s_waitcnt lgkmcnt(0)")
    a("s_barrier")
    for k in range(8):
        a(f"ds_read_b32 v{96+k}, v78 offset:{k*256}")
    a("s_waitcnt lgkmcnt(0)")
    a("v_add_f32 v96, v96, v97\nv_add_f32 v98, v98, v99\nv_add_f32 v100, v100, v101\nv_add_f32 v102, v102, v103")
    a("v_add_f32 v96, v96, v98\nv_add_f32 v100, v100, v102\nv_add_f32 v96, v96, v100")
    rnd1(96, 96)
    a(f"v_add_f32 v96, v96, v{B1V}")
    rnd1(96, 96)
    a("v_mul_f32 v97, v96, v96")
    a("v_mul_f32 v97, 0x3d372713, v97")
    a("v_fma_f32 v97, v97, v96, v96")
    a("v_mul_f32 v97, 0xc0135761, v97")
    a("v_exp_f32 v97, v97")
    a("v_add_f32 v97, 1.0, v97")
    a("v_rcp_f32 v97, v97")
    a("v_mul_f32 v96, v96, v97")
    a("v_cvt_pk_bf16_f32 v96, v96, v96")
    a("ds_write_b16 v79, v96")
    a("s_waitcnt lgkmcnt(0)")
    for d in range(8):
        m16 = (0x11 << (d & 3)) << (8 * (d >> 2))
        m32 = m16 | (m16 << 16)
        a(f"s_mov_b32 exec_lo, {m32:#x}\ns_mov_b32 exec_hi, {m32:#x}")
        a(f"ds_read_b128 {R(AD + 4*d)}, v80")
    a("s_mov_b64 exec, -1")
    for d in range(8):
        a(f"s_waitcnt lgkmcnt({7-d})")
        c = "0" if d == 0 else R(96)
        a(f"v_mfma_f32_16x16x32_bf16 {R(96)}, {R(AD + 4*d)}, {R(W2O + 4*d)}, {c}")
    for r in range(4):
        tag_trunc(96 + r, 96 + r)
    a(f"buffer_store_dwordx4 {R(96)}, v81, {S4(rWS)}, s14 offen sc1")
    stamp(11)

    a("L_fin:")
    if stamps:
        stamp(15)
        a(f"s_lshl_b32 s9, s2, 3")
        a(f"s_add_u32 s9, s9, s{sWAVE}")
        a(f"s_lshl_b32 s9, s9, 6")
        a(f"s_add_u32 s9, s9, {STAMP}")
        a(f"v_lshlrev_b32 v4, 2, v{vLANE}")
        a("s_mov_b64 exec, 0xffff")
        a(f"buffer_store_dword v{vST}, v4, {S4(rWS)}, s9 offen")
    a("L_end:")
    a("s_endpgm")
    a('.section .rodata,"a"')
    a(".p2align 6")
    a(f".amdhsa_kernel {NAME}_kernel")
    for l in (".amdhsa_next_free_vgpr 256", ".amdhsa_next_free_sgpr 102", ".amdhsa_accum_offset 256",
              ".amdhsa_group_segment_fixed_size 0", ".amdhsa_kernarg_size 120", ".amdhsa_user_sgpr_count 2",
              ".amdhsa_user_sgpr_kernarg_segment_ptr 1", ".amdhsa_system_sgpr_workgroup_id_x 1",
              ".amdhsa_float_denorm_mode_32 3"):
        a(l)
    a(".end_amdhsa_kernel")
    return pre + a.finish()


if __name__ == "__main__":
    out = sys.argv[1] if len(sys.argv) > 1 else f"cdna_kernels/{NAME}.s"
    kw = {}
    for arg in sys.argv[2:]:
        k, v = arg.split("=")
        kw[k] = eval(v)
    open(out, "w").write(gen(**kw))
```

```python
import sys
from asmlib import Asm, Vm

NAME = "adaLN_cond__gqa_block_cached__mixer_channel_mlp__decode"

EPOCH = 0
MODP = 0x1000
QP = 0x32000
ML = 0x52000
X1 = 0x5A000
XP = 0x60000
OP = 0x100000
YP = 0x200000
STAMP = 0x400000
WS_BYTES = 0x10000000
WT = 0
OC = 0x10000
QB = 0x18400
HB = 0x18C00
MX = 0x19000
LX = 0x19100
OB = 0x19200
ST = 0x19400
YB = 0x19600
RED = 0x1A600
H1B = 0x1AE00
LDS_BYTES = 0x1B200
TAGM = 0x3ff

sWAVE, sL, sXCD, sIDX, sAB, sTAG = 3, 4, 5, 6, 7, 8
pX, pK, pV, pWQ, pWO, pW1, pB1, pW2, pB2, pC, pWM, pOUT, pWS = 16, 18, 20, 22, 24, 28, 30, 32, 34, 36, 38, 40, 42
rK, rV, rWS, rT0, rT1, rT2, rT3 = 44, 48, 52, 56, 60, 64, 68
sSELLO, sSELHI, sHI, sLOG2E, sSCALE, sSPIN, sEP, sTM = 76, 77, 78, 79, 80, 81, 82, 83
sEX = 84
sRG = 86
sKV = 87
vTID, vLANE, vOK, vOV = 0, 1, 2, 3
vBAD, vTAG, vST = 12, 13, 14
QF, DT, SA, PT, SP, KV = 16, 24, 32, 64, 96, 128


def gen(stamps=False, dbgstamps=False, mod2_on_b=True, codewarm=True, spin=200000, sleep=1, nt="nt", w1_early=False):
    a = Asm()
    hdr = open(f"cdna_kernels/{NAME}.s.ref").read().split("\n")
    head = [l for l in hdr if l.startswith(";") and "@launch" not in l]
    pre = "\n".join(head) + f"\n; @launch grid=(256,1,1) block=(512,1,1) lds={LDS_BYTES}\n"
    a('.amdgcn_target "amdgcn-amd-amdhsa--gfx950"')
    a(".text")
    a(f".globl {NAME}_kernel")
    a(".p2align 8")
    a(f".type {NAME}_kernel,@function")
    a(f"{NAME}_kernel:")

    def srd(d, p, n):
        a(f"s_mov_b32 s{d}, s{p}\ns_mov_b32 s{d+1}, s{p+1}\ns_mov_b32 s{d+2}, {n}\ns_mov_b32 s{d+3}, 0x20000")

    def R(b, n=4):
        return f"v[{b}:{b+n-1}]"

    def S4(b):
        return f"s[{b}:{b+3}]"

    def stamp(k):
        if stamps:
            a(f"s_memrealtime s[96:97]\ns_waitcnt lgkmcnt(0)\nv_writelane_b32 v{vST}, s96, {k}")

    def lo(d, p):
        a(f"v_lshlrev_b32 v{d}, 16, v{p}")

    def hi(d, p):
        a(f"v_and_b32 v{d}, s{sHI}, v{p}")

    def rnd1(d, s):
        a(f"v_cvt_pk_bf16_f32 v{d}, v{s}, v{s}")
        lo(d, d)

    def rnd2(x, y, t):
        a(f"v_cvt_pk_bf16_f32 v{t}, v{x}, v{y}")
        lo(x, t)
        hi(y, t)

    def tag_round(d, s):
        a(f"v_add_u32 v{d}, 0x200, v{s}")
        a(f"v_bfi_b32 v{d}, s{sTM}, v{vTAG}, v{d}")

    def tag_trunc(d, s):
        a(f"v_bfi_b32 v{d}, s{sTM}, v{vTAG}, v{s}")

    def check_regs(regs, first=True):
        for r in regs:
            a(f"v_xor_b32 v{r}, v{vTAG}, v{r}")
        regs = list(regs)
        if first:
            a(f"v_or_b32 v{vBAD}, v{regs[0]}, v{regs[1]}")
            regs = regs[2:]
        for i in range(0, len(regs), 2):
            a(f"v_or3_b32 v{vBAD}, v{vBAD}, v{regs[i]}, v{regs[i+1]}")

    def poll(body):
        lp, dn = a.label("Lpoll"), a.label("Ldone")
        a(f"s_mov_b32 s{sSPIN}, {spin}")
        a(f"{lp}:")
        body()
        a(f"v_and_b32 v{vBAD}, s{sTM}, v{vBAD}")
        a(f"v_cmp_ne_u32 vcc, 0, v{vBAD}")
        a(f"s_cbranch_vccz {dn}")
        if sleep:
            a(f"s_sleep {sleep}")
        a(f"s_sub_u32 s{sSPIN}, s{sSPIN}, 1")
        a(f"s_cbranch_scc0 {lp}")
        a(f"{dn}:")

    def dpp_add(d, s_rot, s1, ror):
        a(f"v_add_f32_dpp v{d}, v{s_rot}, v{s1} row_ror:{ror} row_mask:0xf bank_mask:0xf")

    def dpp_max(d, s_rot, s1, ror):
        a(f"v_max_f32_dpp v{d}, v{s_rot}, v{s1} row_ror:{ror} row_mask:0xf bank_mask:0xf")

    def allred(x, t, op, which):
        for w in which:
            a(f"v_mov_b32 v{t}, v{x}")
            a(f"v_permlane{w}_swap_b32 v{x}, v{t}")
            a(f"{op} v{x}, v{x}, v{t}")

    def red4(b, rors):
        a(f"v_permlane32_swap_b32 v{b}, v{b+1}")
        a(f"v_permlane32_swap_b32 v{b+2}, v{b+3}")
        a(f"v_add_f32 v{b}, v{b}, v{b+1}")
        a(f"v_add_f32 v{b+2}, v{b+2}, v{b+3}")
        a(f"v_permlane16_swap_b32 v{b}, v{b+2}")
        a(f"v_add_f32 v{b}, v{b}, v{b+2}")
        for r in rors:
            dpp_add(b, b, b, r)

    def perm_operand(dst, blk, d):
        sel = sSELHI if d & 1 else sSELLO
        for k in range(4):
            a(f"v_perm_b32 v{dst+k}, v{blk + (2*k+1)*4 + (d >> 1)}, v{blk + 2*k*4 + (d >> 1)}, s{sel}")

    def ln_stats(su, sq, t, mb, rs):
        a(f"v_mul_f32 v{su}, 0x3a800000, v{su}")
        a(f"v_mul_f32 v{sq}, 0x3a800000, v{sq}")
        a(f"v_fma_f32 v{sq}, -v{su}, v{su}, v{sq}")
        a(f"v_max_f32 v{sq}, 0, v{sq}")
        a(f"v_cvt_pk_bf16_f32 v{t}, v{su}, v{sq}")
        lo(mb, t)
        hi(sq, t)
        a(f"v_add_f32 v{sq}, 0x3727c5ac, v{sq}")
        rnd1(sq, sq)
        a(f"v_sqrt_f32 v{sq}, v{sq}")
        rnd1(sq, sq)
        a(f"v_rcp_f32 v{rs}, v{sq}")

    def ln_apply(x, y, t, mb, rs, last_round=True):
        a(f"v_sub_f32 v{x}, v{x}, v{mb}")
        a(f"v_sub_f32 v{y}, v{y}, v{mb}")
        rnd2(x, y, t)
        a(f"v_mul_f32 v{x}, v{x}, v{rs}")
        a(f"v_mul_f32 v{y}, v{y}, v{rs}")
        if last_round:
            rnd2(x, y, t)

    a("s_cmp_ge_u32 s2, 256")
    a("s_cbranch_scc1 L_end")
    a("s_load_dwordx16 s[16:31], s[0:1], 0")
    a("s_load_dwordx8 s[32:39], s[0:1], 64")
    a("s_load_dwordx2 s[40:41], s[0:1], 96")
    a("s_load_dwordx2 s[42:43], s[0:1], 112")
    if stamps:
        a(f"v_mov_b32 v{vST}, 0")
        a("s_memrealtime s[98:99]")
    a(f"v_lshrrev_b32 v4, 6, v0")
    a(f"v_and_b32 v{vLANE}, 63, v0")
    a(f"v_readfirstlane_b32 s{sWAVE}, v4")
    a(f"s_and_b32 s{sXCD}, s2, 7")
    a(f"s_lshr_b32 s{sIDX}, s2, 3")
    a(f"s_lshl_b32 s{sL}, s{sXCD}, 5")
    a(f"s_add_u32 s{sL}, s{sL}, s{sIDX}")
    a(f"s_lshr_b32 s{sRG}, s{sXCD}, 1")
    a(f"s_lshl_b32 s{sAB}, s{sRG}, 5")
    a(f"s_add_u32 s{sAB}, s{sAB}, s{sIDX}")
    a(f"s_lshl_b32 s{sKV}, s{sL}, 18")
    a(f"s_mov_b32 s{sSELLO}, 0x05040100")
    a(f"s_mov_b32 s{sSELHI}, 0x07060302")
    a(f"s_mov_b32 s{sHI}, 0xffff0000")
    a(f"s_mov_b32 s{sLOG2E}, 0x3fb8aa3b")
    a(f"s_mov_b32 s{sSCALE}, 0x3db504f3")
    a(f"s_mov_b32 s{sTM}, {TAGM}")
    a(f"v_lshlrev_b32 v5, 15, v4")
    a(f"v_lshl_add_u32 v{vOV}, v{vLANE}, 4, v5")
    a(f"v_and_b32 v6, 3, v{vLANE}")
    a(f"v_lshlrev_b32 v6, 10, v6")
    a(f"v_bfe_u32 v7, v{vLANE}, 2, 1")
    a(f"v_lshl_add_u32 v6, v7, 8, v6")
    a(f"v_lshrrev_b32 v7, 3, v{vLANE}")
    a(f"v_lshl_add_u32 v6, v7, 4, v6")
    a(f"v_add_u32 v{vOK}, v6, v5")
    a("s_waitcnt lgkmcnt(0)")
    if stamps:
        a(f"v_writelane_b32 v{vST}, s98, 0")
    a(f"s_load_dword s{sEP}, s[{pWS}:{pWS+1}], {EPOCH}")
    srd(rWS, pWS, WS_BYTES)
    srd(rK, pK, 0x4000000)
    srd(rV, pV, 0x4000000)

    def get_tag():
        a("s_waitcnt lgkmcnt(0)")
        a(f"s_add_u32 s{sEP}, s{sEP}, 1")
        a(f"s_and_b32 s{sTAG}, s{sEP}, {TAGM}")
        a(f"v_mov_b32 v{vTAG}, s{sTAG}")

    def tile_loads(vm, srdr, pitch, sorg):
        a(f"s_mov_b32 s9, {8*pitch}")
        a(f"v_mul_lo_u32 v8, v7, s9")
        a(f"v_and_b32 v9, 7, v{vLANE}")
        a(f"v_lshl_add_u32 v8, v9, 4, v8")
        toks = []
        for q4 in range(4):
            for e in range(8):
                a(f"s_add_u32 s9, s{sorg}, {(64*q4+e)*pitch}")
                t = vm.issue(f"buffer_load_dwordx4 {R(KV + q4*32 + e*4)}, v8, {S4(srdr)}, s9 offen {nt}")
            toks.append(t)
        return toks

    def tile_gemv(vm, toks, sdst, bstride):
        for q4 in range(4):
            if toks:
                vm.wait(toks[q4])
            for d in range(8):
                t = PT + (d & 1) * 4
                perm_operand(t, KV + q4 * 32, d)
                c = "0" if q4 == 0 else R(SA + d * 4)
                a(f"v_mfma_f32_16x16x32_bf16 {R(SA + d*4)}, {R(t)}, {R(16 + q4*4)}, {c}")
        O = 72
        for d in range(4):
            for r in range(4):
                a(f"v_permlane32_swap_b32 v{SA + d*4 + r}, v{SA + (d+4)*4 + r}")
        for d in range(4):
            for r in range(4):
                dpp_add(O + r * 4 + d, SA + (d + 4) * 4 + r, SA + d * 4 + r, 8)
        a(f"v_and_b32 v9, 3, v{vLANE}")
        for r in range(1, 4):
            a(f"v_cmp_eq_u32 vcc, {r}, v9")
            for d in range(4):
                a(f"v_cndmask_b32 v{O+d}, v{O+d}, v{O + r*4 + d}, vcc")
        for d in range(4):
            tag_round(O + d, O + d)
        a(f"v_bfe_u32 v10, v{vLANE}, 4, 1")
        a(f"v_lshl_add_u32 v9, v10, 2, v9")
        a(f"v_lshlrev_b32 v9, 5, v9")
        a(f"v_lshrrev_b32 v10, 5, v{vLANE}")
        a(f"v_lshl_add_u32 v9, v10, 4, v9")
        a(f"v_bfe_u32 v10, v{vLANE}, 2, 1")
        a(f"v_mul_u32_u24 v10, {bstride}, v10")
        a(f"v_add_u32 v9, v9, v10")
        a(f"s_mov_b32 exec_lo, 0x00ff00ff\ns_mov_b32 exec_hi, 0x00ff00ff")
        a(f"buffer_store_dwordx4 {R(O)}, v9, {S4(rWS)}, s{sdst} offen sc1")
        a("s_mov_b64 exec, -1")

    a(f"s_cmp_eq_u32 s{sWAVE}, 0")
    a("s_cbranch_scc1 L_chain")
    a(f"s_cmp_eq_u32 s{sWAVE}, 1")
    a("s_cbranch_scc1 L_modt")
    a(f"s_and_b32 s9, s2, 1")
    if not mod2_on_b:
        a("s_xor_b32 s9, s9, 1")
    a(f"s_lshl_b32 s9, s9, 1")
    a(f"s_cmp_eq_u32 s{sWAVE}, s9")
    a("s_cbranch_scc1 L_modt")
    if codewarm:
        lw = a.label("Lnowarm")
        a(f"s_cmp_lg_u32 s{sWAVE}, 7")
        a(f"s_cbranch_scc1 {lw}")
        a("s_getpc_b64 s[10:11]")
        a("L_pc0:")
        a(f"v_lshlrev_b32 v8, 4, v{vLANE}")
        a(f"s_mov_b32 s9, 0")
        lp = a.label("Lwarm")
        a(f"{lp}:")
        a(f"v_min_u32 v9, L_end-L_pc0-16, v8")
        a(f"global_load_dwordx4 {R(72)}, v9, s[10:11]")
        a(f"v_add_u32 v8, 1024, v8")
        a(f"s_add_u32 s9, s9, 1024")
        a(f"s_cmp_lt_u32 s9, L_end-L_pc0")
        a(f"s_cbranch_scc1 {lp}")
        a(f"{lw}:")
    a("s_barrier")
    get_tag()
    a("s_branch L_prefetch")

    a("L_modt:")
    a("s_setprio 2")
    vm = Vm(a)
    srd(rT0, pWM, 12582912)
    srd(rT1, pC, 4096)
    a(f"s_and_b32 s9, s2, 1")
    if not mod2_on_b:
        a("s_xor_b32 s9, s9, 1")
    a(f"s_mul_i32 s9, s9, s{sWAVE}")
    a(f"s_lshl_b32 s9, s9, 5")
    a(f"s_add_u32 s12, s9, s{sIDX}")
    a(f"s_mul_i32 s10, s{sRG}, {256*12288}")
    a(f"s_lshl_b32 s11, s12, 7")
    a(f"s_add_u32 s10, s10, s11")
    a(f"v_bfe_u32 v10, v{vLANE}, 2, 1")
    a(f"v_lshlrev_b32 v10, 11, v10")
    a(f"v_lshl_add_u32 v10, v7, 4, v10")
    a(f"s_lshl_b32 s11, s{sRG}, 9")
    for q4 in range(4):
        tc = vm.issue(f"buffer_load_dwordx4 {R(72 + q4*4)}, v10, {S4(rT1)}, s11 offen offset:{q4*128}")
    toks = tile_loads(vm, rT0, 12288, 10)
    a("s_barrier")
    get_tag()
    vm.wait(tc)
    a(f"s_mov_b32 s9, 0xbfb8aa3b")
    for i in range(16):
        lo(4, 72 + i)
        hi(5, 72 + i)
        a(f"v_mul_f32 v6, s9, v4\nv_mul_f32 v11, s9, v5")
        a(f"v_exp_f32 v6, v6\nv_exp_f32 v11, v11")
        a(f"v_add_f32 v6, 1.0, v6\nv_add_f32 v11, 1.0, v11")
        a(f"v_rcp_f32 v6, v6\nv_rcp_f32 v11, v11")
        a(f"v_mul_f32 v4, v4, v6\nv_mul_f32 v5, v5, v11")
        a(f"v_cvt_pk_bf16_f32 v{16+i}, v4, v5")
    a(f"s_mul_i32 s13, s{sRG}, {2*6144*4}")
    a(f"s_lshl_b32 s11, s12, 8")
    a(f"s_add_u32 s13, s13, s11")
    a(f"s_add_u32 s13, s13, {MODP}")
    tile_gemv(vm, toks, 13, 6144 * 4)
    stamp(1)
    a("s_setprio 0")
    a("s_branch L_prefetch")

    a("L_chain:")
    a("s_setprio 3")
    vm = Vm(a)
    srd(rT0, pWQ, 8388608)
    srd(rT1, pX, 4096)
    a(f"v_lshrrev_b32 v10, 5, v{vLANE}")
    a(f"v_and_b32 v11, 31, v{vLANE}")
    a(f"v_lshlrev_b32 v9, 11, v10")
    a(f"v_lshl_add_u32 v9, v11, 4, v9")
    for q in range(4):
        vm.issue(f"buffer_load_dwordx4 {R(72 + q*4)}, v9, {S4(rT1)}, 0 offen offset:{q*512}")
    a(f"s_lshl_b32 s11, s{sRG}, 9")
    tx = vm.issue(f"buffer_load_dwordx4 {R(88)}, v9, {S4(rT1)}, s11 offen")
    a(f"s_and_b32 s12, s{sL}, 63")
    a(f"s_lshl_b32 s10, s{sRG}, 21")
    a(f"s_lshl_b32 s11, s12, 7")
    a(f"s_add_u32 s10, s10, s11")
    toks = tile_loads(vm, rT0, 8192, 10)
    a("s_barrier")
    get_tag()
    vm.wait(tx)
    a("v_mov_b32 v4, 0\nv_mov_b32 v5, 0")
    for i in range(16):
        lo(6, 72 + i)
        hi(8, 72 + i)
        a(f"v_add_f32 v4, v4, v6\nv_fmac_f32 v5, v6, v6")
        a(f"v_add_f32 v4, v4, v8\nv_fmac_f32 v5, v8, v8")
    for r in (1, 2, 4, 8):
        dpp_add(4, 4, 4, r)
        dpp_add(5, 5, 5, r)
    allred(4, 6, "v_add_f32", (16,))
    allred(5, 6, "v_add_f32", (16,))
    ln_stats(4, 5, 6, 8, 9)
    for i in range(4):
        lo(24 + 2 * i, 88 + i)
        hi(25 + 2 * i, 88 + i)
        ln_apply(24 + 2 * i, 25 + 2 * i, 6, 8, 9)
    a(f"v_mul_u32_u24 v9, 24576, v10")
    a(f"v_lshl_add_u32 v9, v11, 5, v9")
    a(f"s_lshl_b32 s10, s{sRG}, 10")

    def bodyA():
        for which in range(2):
            for p in range(4):
                a(f"s_add_u32 s9, s10, {MODP + p*49152 + which*4096}")
                for h in range(2):
                    a(f"buffer_load_dwordx4 {R(64 + which*32 + p*8 + h*4)}, v9, {S4(rWS)}, s9 offen offset:{h*16} sc1")
        a("s_waitcnt vmcnt(0)")
        check_regs(range(64, 128))
    poll(bodyA)
    stamp(2)
    for which in range(2):
        b0 = 64 + which * 32
        for e in range(8):
            a(f"v_add_f32 v{b0+e}, v{b0+e}, v{b0+8+e}")
            a(f"v_add_f32 v{b0+16+e}, v{b0+16+e}, v{b0+24+e}")
        for e in range(8):
            a(f"v_add_f32 v{b0+e}, v{b0+e}, v{b0+16+e}")
    for i in range(4):
        s0, c0, l0 = 64 + 2 * i, 96 + 2 * i, 24 + 2 * i
        rnd2(s0, s0 + 1, 6)
        rnd2(c0, c0 + 1, 6)
        a(f"v_add_f32 v{c0}, 1.0, v{c0}\nv_add_f32 v{c0+1}, 1.0, v{c0+1}")
        rnd2(c0, c0 + 1, 6)
        a(f"v_mul_f32 v{c0}, v{c0}, v{l0}\nv_mul_f32 v{c0+1}, v{c0+1}, v{l0+1}")
        rnd2(c0, c0 + 1, 6)
        a(f"v_add_f32 v{c0}, v{c0}, v{s0}\nv_add_f32 v{c0+1}, v{c0+1}, v{s0+1}")
        a(f"v_cvt_pk_bf16_f32 v{72+i}, v{c0}, v{c0+1}")
    a(f"v_lshlrev_b32 v9, 4, v{vLANE}")
    a(f"v_add_u32 v9, {HB}, v9")
    a(f"ds_write_b128 v9, {R(72)}")
    a(f"v_bfe_u32 v10, v{vLANE}, 2, 1")
    a(f"v_lshlrev_b32 v10, 9, v10")
    a(f"v_lshl_add_u32 v10, v7, 4, v10")
    a(f"v_add_u32 v10, {HB}, v10")
    a("s_waitcnt lgkmcnt(0)")
    for q4 in range(4):
        a(f"ds_read_b128 {R(16 + q4*4)}, v10 offset:{q4*128}")
    a(f"s_lshl_b32 s13, s{sRG}, 15")
    a(f"s_lshl_b32 s11, s12, 8")
    a(f"s_add_u32 s13, s13, s11")
    a(f"s_add_u32 s13, s13, {QP}")
    a("s_waitcnt lgkmcnt(0)")
    tile_gemv(vm, None, 13, 4096 * 4)
    stamp(3)
    a(f"v_lshlrev_b32 v9, 4, v{vLANE}")
    a(f"s_lshl_b32 s10, s{sXCD}, 12")

    def bodyB():
        for p in range(4):
            a(f"s_add_u32 s9, s10, {QP + p*32768}")
            for i in range(4):
                a(f"buffer_load_dwordx4 {R(64 + p*16 + i*4)}, v9, {S4(rWS)}, s9 offen offset:{i*1024} sc1")
        a("s_waitcnt vmcnt(0)")
        check_regs(range(64, 128))
    poll(bodyB)
    for e in range(16):
        a(f"v_add_f32 v{64+e}, v{64+e}, v{80+e}")
        a(f"v_add_f32 v{96+e}, v{96+e}, v{112+e}")
    for e in range(16):
        a(f"v_add_f32 v{64+e}, v{64+e}, v{96+e}")
    for e in range(8):
        a(f"v_cvt_pk_bf16_f32 v{80+e}, v{64+2*e}, v{65+2*e}")
    a(f"v_lshlrev_b32 v9, 3, v{vLANE}")
    a(f"v_add_u32 v9, {QB}, v9")
    for i in range(4):
        a(f"ds_write_b64 v9, {R(80 + 2*i, 2)} offset:{i*512}")
    a("s_waitcnt lgkmcnt(0)")
    stamp(4)
    a("s_barrier")
    a("s_setprio 0")

    def w1_dma(vm):
        srd(rT0, pW1, 7340032)
        a(f"v_lshrrev_b32 v8, 2, v{vLANE}")
        a(f"v_mul_u32_u24 v8, 7168, v8")
        a(f"v_and_b32 v9, 3, v{vLANE}")
        a(f"v_lshl_add_u32 v8, v9, 4, v8")
        a(f"s_mul_i32 s10, s{sWAVE}, {128*7168}")
        a(f"s_lshl_b32 s11, s{sAB}, 6")
        a(f"s_add_u32 s10, s10, s11")
        a(f"s_lshl_b32 s11, s{sWAVE}, 13")
        t = None
        for i in range(8):
            a(f"s_add_u32 m0, s11, {WT + i*1024}")
            a(f"s_add_u32 s9, s10, {16*i*7168}")
            t = vm.issue(f"buffer_load_dwordx4 v8, {S4(rT0)}, s9 offen {nt} lds")
        return t

    a("L_prefetch:")
    a(f"s_bitcmp1_b32 s2, 0")
    a("s_cbranch_scc1 L_nowo")
    srd(rT2, pWO, 8388608)
    a(f"v_lshrrev_b32 v8, 5, v{vLANE}")
    a(f"v_lshlrev_b32 v8, 11, v8")
    a(f"v_and_b32 v9, 31, v{vLANE}")
    a(f"v_lshl_add_u32 v8, v9, 4, v8")
    a(f"s_lshr_b32 s10, s{sAB}, 2")
    a(f"s_lshl_b32 s10, s10, 18")
    a(f"s_and_b32 s11, s{sAB}, 3")
    a(f"s_lshl_b32 s11, s11, 9")
    a(f"s_add_u32 s10, s10, s11")
    a(f"s_lshl_b32 s11, s{sWAVE}, 15")
    a(f"s_add_u32 s10, s10, s11")
    a(f"s_lshl_b32 s11, s{sWAVE}, 13")
    for i in range(8):
        a(f"s_add_u32 m0, s11, {WT + i*1024}")
        a(f"s_add_u32 s9, s10, {i*4096}")
        a(f"buffer_load_dwordx4 v8, {S4(rT2)}, s9 offen {nt} lds")
    if w1_early:
        a("s_branch L_now1")
    a("L_nowo:")
    if w1_early:
        a(f"s_cmp_ge_u32 s{sAB}, 112")
        a("s_cbranch_scc1 L_now1")
        w1_dma(Vm(a))
        a("L_now1:")
    vm = Vm(a)
    tk = []
    for u in range(8):
        a(f"s_add_u32 s9, s{sKV}, {u*4096}")
        for t in range(2):
            for s in range(2):
                tok = vm.issue(f"buffer_load_dwordx4 {R(KV + u*16 + t*8 + s*4)}, v{vOK}, {S4(rK)}, s9 offen offset:{t*512 + s*128} {nt}")
        tk.append(tok)
    vblk = [SP, KV, KV + 32, KV + 64]
    tv = [None] * 4

    def vload(v):
        for e in range(8):
            if e % 4 == 0:
                a(f"s_add_u32 s9, s{sKV}, {(8*v+e)*1024}")
            tv[v] = vm.issue(f"buffer_load_dwordx4 {R(vblk[v] + e*4)}, v{vOV}, {S4(rV)}, s9 offen offset:{(e % 4)*1024} {nt}")
    vload(0)
    a(f"s_cmp_eq_u32 s{sWAVE}, 0")
    a("s_cbranch_scc1 L_haveq")
    a("s_barrier")
    a("L_haveq:")
    stamp(5)
    a(f"v_and_b32 v8, 7, v{vLANE}")
    a(f"v_lshrrev_b32 v7, 3, v{vLANE}")
    a(f"v_lshlrev_b32 v9, 8, v8")
    a(f"v_lshl_add_u32 v9, v7, 4, v9")
    a(f"v_add_u32 v9, {QB}, v9")
    a(f"ds_read_b128 {R(QF)}, v9")
    a(f"ds_read_b128 {R(QF+4)}, v9 offset:128")
    a("s_waitcnt lgkmcnt(0)")
    for u in range(8):
        vm.wait(tk[u])
        k0 = KV + u * 16
        X, Y = SA + u * 4, DT + (u & 1) * 4
        a(f"v_mfma_f32_16x16x32_bf16 {R(X)}, {R(k0)}, {R(QF)}, 0")
        a(f"v_mfma_f32_16x16x32_bf16 {R(Y)}, {R(k0+8)}, {R(QF)}, 0")
        a(f"v_mfma_f32_16x16x32_bf16 {R(X)}, {R(k0+4)}, {R(QF+4)}, {R(X)}")
        a(f"v_mfma_f32_16x16x32_bf16 {R(Y)}, {R(k0+12)}, {R(QF+4)}, {R(Y)}")
        if u in (1, 3, 5):
            vload((u + 1) // 2)
        for r in range(4):
            a(f"v_permlane32_swap_b32 v{X+r}, v{Y+r}")
        for r in range(4):
            dpp_add(X + r, Y + r, X + r, 8)
        for r in (0, 2):
            rnd2(X + r, X + r + 1, 4)
            a(f"v_mul_f32 v{X+r}, s{sSCALE}, v{X+r}\nv_mul_f32 v{X+r+1}, s{sSCALE}, v{X+r+1}")
            rnd2(X + r, X + r + 1, 4)
        if u == 0:
            a(f"v_max3_f32 v5, v{X}, v{X+1}, v{X+2}")
            a(f"v_max_f32 v5, v5, v{X+3}")
        else:
            a(f"v_max3_f32 v5, v5, v{X}, v{X+1}")
            a(f"v_max3_f32 v5, v5, v{X+2}, v{X+3}")
    allred(5, 6, "v_max_f32", (32, 16))
    a(f"v_lshlrev_b32 v9, 5, v8")
    a(f"v_add_u32 v10, {MX}, v9")
    a(f"s_lshl_b32 s9, s{sWAVE}, 2")
    a(f"v_add_u32 v11, s9, v10")
    a("s_mov_b64 exec, 0xff")
    a(f"ds_write_b32 v11, v5")
    a("s_mov_b64 exec, -1")
    a("s_waitcnt lgkmcnt(0)")
    stamp(6)
    a("s_barrier")
    a(f"ds_read_b128 {R(72)}, v10")
    a(f"ds_read_b128 {R(76)}, v10 offset:16")
    a("s_waitcnt lgkmcnt(0)")
    a(f"v_max3_f32 v5, v72, v73, v74\nv_max3_f32 v5, v5, v75, v76\nv_max3_f32 v5, v5, v77, v78\nv_max_f32 v5, v5, v79")
    a(f"v_mul_f32 v6, s{sLOG2E}, v5")
    a(f"v_readlane_b32 s14, v5, s{sWAVE}")
    a("v_mov_b32 v4, 0")
    for i in range(32):
        a(f"v_fma_f32 v{SA+i}, v{SA+i}, s{sLOG2E}, -v6")
        a(f"v_exp_f32 v{SA+i}, v{SA+i}")
        if i:
            a(f"v_add_f32 v4, v4, v{SA+i-1}")
    a(f"v_add_f32 v4, v4, v{SA+31}")
    for i in range(16):
        a(f"v_cvt_pk_bf16_f32 v{QF+i}, v{SA+2*i}, v{SA+2*i+1}")
    allred(4, 6, "v_add_f32", (32, 16))
    a("s_mov_b64 exec, 0xff")
    a(f"ds_write_b32 v11, v4 offset:{LX-MX}")
    a("s_mov_b64 exec, -1")
    for v in range(4):
        vm.wait(tv[v])
        for d in range(8):
            t = PT + (d & 1) * 4
            perm_operand(t, vblk[v], d)
            c = "0" if v == 0 else R(SA + d * 4)
            a(f"v_mfma_f32_16x16x32_bf16 {R(SA + d*4)}, {R(t)}, {R(QF + v*4)}, {c}")
    stamp(7)
    a(f"v_mul_u32_u24 v9, 528, v8")
    a(f"v_lshrrev_b32 v10, 4, v{vLANE}")
    a(f"v_lshl_add_u32 v9, v10, 4, v9")
    a(f"s_mul_i32 s9, s{sWAVE}, 4224")
    a(f"s_add_u32 s9, s9, {OC}")
    a(f"v_add_u32 v9, s9, v9")
    a(f"s_mov_b32 exec_lo, 0x00ff00ff\ns_mov_b32 exec_hi, 0x00ff00ff")
    for d in range(8):
        a(f"ds_write_b128 v9, {R(SA + d*4)} offset:{d*64}")
    a("s_mov_b64 exec, -1")
    a(f"v_lshrrev_b32 v10, 5, v{vLANE}")
    a(f"v_mul_u32_u24 v10, {4*4224}, v10")
    a(f"v_and_b32 v11, 31, v{vLANE}")
    a(f"v_lshlrev_b32 v11, 4, v11")
    a(f"s_mul_i32 s9, s{sWAVE}, 528")
    a(f"s_add_u32 s9, s9, {OC}")
    a(f"v_add3_u32 v10, v10, v11, s9")
    a(f"s_lshl_b32 s9, s{sWAVE}, 5")
    a(f"s_add_u32 s9, s9, {LX}")
    a(f"v_mov_b32 v9, s9")
    a(f"s_lshl_b32 s10, s{sXCD}, 3")
    a(f"s_add_u32 s10, s10, s{sWAVE}")
    a(f"s_lshl_b32 s10, s10, 5")
    a(f"s_add_u32 s10, s10, s{sIDX}")
    a(f"s_lshl_b32 s11, s10, 9")
    a(f"s_add_u32 s11, s11, {OP}")
    a(f"s_lshl_b32 s10, s10, 4")
    a(f"s_add_u32 s10, s10, {ML}")
    a("s_waitcnt lgkmcnt(0)")
    a("s_barrier")
    for k in range(4):
        a(f"ds_read_b128 {R(72 + 4*k)}, v10 offset:{k*4224}")
    a(f"ds_read_b128 {R(88)}, v9")
    a(f"ds_read_b128 {R(92)}, v9 offset:16")
    a("s_waitcnt lgkmcnt(2)")
    for r in range(4):
        a(f"v_add_f32 v{72+r}, v{72+r}, v{76+r}\nv_add_f32 v{80+r}, v{80+r}, v{84+r}")
    for r in range(4):
        a(f"v_add_f32 v{72+r}, v{72+r}, v{80+r}")
    for r in range(4):
        a(f"v_mov_b32 v{76+r}, v{72+r}")
    for r in range(4):
        a(f"v_permlane32_swap_b32 v{72+r}, v{76+r}")
    for r in range(4):
        a(f"v_add_f32 v{72+r}, v{72+r}, v{76+r}")
    for r in range(4):
        tag_trunc(72 + r, 72 + r)
    a("s_mov_b32 exec_hi, 0")
    a(f"buffer_store_dwordx4 {R(72)}, v11, {S4(rWS)}, s11 offen sc1")
    a("s_mov_b64 exec, -1")
    a("s_waitcnt lgkmcnt(0)")
    a("v_add_f32 v88, v88, v89\nv_add_f32 v90, v90, v91\nv_add_f32 v92, v92, v93\nv_add_f32 v94, v94, v95")
    a("v_add_f32 v88, v88, v90\nv_add_f32 v92, v92, v94\nv_add_f32 v89, v88, v92")
    a("v_mov_b32 v88, s14")
    tag_trunc(88, 88)
    tag_trunc(89, 89)
    a("v_mov_b32 v90, v88\nv_mov_b32 v91, v89")
    a("s_mov_b64 exec, 1")
    a(f"buffer_store_dwordx4 {R(88)}, v11, {S4(rWS)}, s10 offen sc1")
    a("s_mov_b64 exec, -1")
    stamp(8)
    a(f"s_bitcmp1_b32 s2, 0")
    a("s_cbranch_scc1 L_tailB")

    WOP = 192
    GA, GB, XV, B2V = 160, 164, 168, 169
    a(f"s_lshr_b32 s12, s{sAB}, 6")
    a(f"s_and_b32 s13, s{sAB}, 63")
    a(f"s_lshl_b32 s13, s13, 4")
    a(f"s_and_b32 s9, s{sWAVE}, 3")
    a(f"s_lshl_b32 s9, s9, 2")
    a(f"s_add_u32 s13, s13, s9")
    srd(rT0, pX, 4096)
    srd(rT1, pB2, 2048)
    srd(rT3, pOUT, 4096)
    a(f"v_bfe_u32 v4, v{vLANE}, 4, 1")
    a(f"v_lshlrev_b32 v4, 1, v4")
    a(f"v_lshrrev_b32 v5, 5, v{vLANE}")
    a(f"v_or_b32 v4, v4, v5")
    a(f"v_add_u32 v5, s13, v4")
    a(f"s_lshl_b32 s9, s12, 10")
    a(f"v_add_u32 v15, s9, v5")
    a(f"v_lshlrev_b32 v5, 1, v5")
    a(f"v_lshlrev_b32 v6, 1, v15")
    a(f"buffer_load_ushort v{XV}, v6, {S4(rT0)}, 0 offen")
    a(f"buffer_load_ushort v{B2V}, v5, {S4(rT1)}, 0 offen")
    for r in range(8):
        a(f"v_mov_b32 v{GA+r}, 0")
    a(f"v_mul_u32_u24 v170, 49152, v{vLANE}")
    a(f"s_mul_i32 s15, s12, 24576")
    a(f"s_lshl_b32 s9, s13, 2")
    a(f"s_add_u32 s15, s15, s9")
    a(f"s_add_u32 s15, s15, {MODP + 2*4096}")
    a(f"s_add_u32 s88, s15, {3*4096}")

    def gloads():
        a(f"buffer_load_dwordx4 {R(GA)}, v170, {S4(rWS)}, s15 offen sc1")
        a(f"buffer_load_dwordx4 {R(GB)}, v170, {S4(rWS)}, s88 offen sc1")
    a("s_mov_b64 exec, 0xf")
    gloads()
    a("s_mov_b64 exec, -1")
    a(f"v_lshrrev_b32 v7, 3, v{vLANE}")
    a(f"v_and_b32 v8, 7, v{vLANE}")
    a(f"v_lshlrev_b32 v9, 9, v7")
    a(f"v_lshl_add_u32 v9, v8, 4, v9")
    a(f"v_lshlrev_b32 v10, 4, v7")
    a(f"s_lshr_b32 s9, s{sWAVE}, 2")
    a(f"s_lshl_b32 s9, s9, 5")
    a(f"s_lshr_b32 s10, s{sAB}, 2")
    a(f"s_add_u32 s9, s9, s10")
    a(f"s_lshl_b32 s89, s9, 9")
    a(f"s_add_u32 s89, s89, {ML}")
    a(f"s_lshl_b32 s90, s9, 14")
    a(f"s_and_b32 s11, s{sWAVE}, 3")
    a(f"s_lshl_b32 s11, s11, 7")
    a(f"s_add_u32 s90, s90, s11")
    a(f"s_add_u32 s90, s90, {OP}")
    for i in range(1, 4):
        a(f"s_add_u32 s{90+i}, s90, {i*4096}")
    a(f"v_bfe_u32 v5, v{vLANE}, 4, 1")
    a(f"v_lshlrev_b32 v5, 6, v5")
    a(f"v_bfe_u32 v6, v{vLANE}, 2, 2")
    a(f"v_lshl_add_u32 v5, v6, 3, v5")
    a(f"v_lshrrev_b32 v6, 5, v{vLANE}")
    a(f"v_add_u32 v5, v5, v6")
    a(f"v_lshlrev_b32 v5, 9, v5")
    a(f"v_and_b32 v6, 3, v{vLANE}")
    a(f"v_lshl_add_u32 v5, v6, 3, v5")
    a(f"s_lshl_b32 s9, s{sWAVE}, 6")
    a(f"v_add_u32 v5, s9, v5")
    for ct in range(2):
        for s in range(4):
            for h in range(2):
                a(f"ds_read_b64_tr_b16 {R(WOP + ct*16 + s*4 + h*2, 2)}, v5 offset:{WT + 16384*h + 1024*s + 32*ct}")

    def bodyH1():
        for i in range(4):
            a(f"buffer_load_dwordx4 {R(144 + 4*i)}, v10, {S4(rWS)}, s89 offen offset:{i*128} sc1")
        for i in range(4):
            a(f"buffer_load_dwordx4 {R(128 + 4*i)}, v9, {S4(rWS)}, s{90+i} offen sc1")
        a("s_waitcnt vmcnt(0)")
        check_regs(range(128, 160))
    poll(bodyH1)
    stamp(9)
    a("v_max3_f32 v5, v144, v148, v152\nv_max_f32 v5, v5, v156")
    dpp_max(5, 5, 5, 8)
    allred(5, 6, "v_max_f32", (16, 32))
    for i in range(4):
        a(f"v_sub_f32 v{144+4*i}, v{144+4*i}, v5")
        a(f"v_mul_f32 v{144+4*i}, s{sLOG2E}, v{144+4*i}")
        a(f"v_exp_f32 v{144+4*i}, v{144+4*i}")
    a("v_mul_f32 v5, v144, v145")
    for i in range(1, 4):
        a(f"v_fmac_f32 v5, v{144+4*i}, v{145+4*i}")
    for k in range(4):
        a(f"v_mul_f32 v{128+k}, v144, v{128+k}")
    for i in range(1, 4):
        for k in range(4):
            a(f"v_fmac_f32 v{128+k}, v{144+4*i}, v{128+4*i+k}")
    dpp_add(5, 5, 5, 8)
    allred(5, 6, "v_add_f32", (16, 32))
    a("v_rcp_f32 v5, v5")
    red4(128, (8,))
    a("v_mul_f32 v128, v128, v5")
    a("v_cvt_pk_bf16_f32 v128, v128, v128")
    a(f"v_lshl_add_u32 v5, v8, 2, v4")
    a(f"s_lshl_b32 s9, s{sWAVE}, 6")
    a(f"s_add_u32 s9, s9, {OB}")
    a(f"v_lshl_add_u32 v5, v5, 1, s9")
    a("ds_write_b16 v5, v128")
    a(f"v_and_b32 v5, 1, v{vLANE}")
    a(f"v_lshlrev_b32 v6, 8, v5")
    a(f"v_lshrrev_b32 v7, 4, v{vLANE}")
    a(f"v_lshl_add_u32 v6, v7, 4, v6")
    a(f"v_add_u32 v6, {OB}, v6")
    a(f"v_lshlrev_b32 v9, 12, v5")
    a(f"v_lshl_add_u32 v9, v7, 4, v9")
    a(f"v_bfe_u32 v10, v{vLANE}, 1, 1")
    a(f"v_lshl_add_u32 v9, v10, 6, v9")
    a(f"v_cmp_eq_u32 vcc, 1, v10")
    a(f"s_lshr_b32 s10, s{sAB}, 2")
    a(f"s_lshl_b32 s10, s10, 13")
    a(f"s_and_b32 s11, s{sAB}, 3")
    a(f"s_lshl_b32 s11, s11, 10")
    a(f"s_add_u32 s10, s10, s11")
    a(f"s_lshl_b32 s11, s{sWAVE}, 7")
    a(f"s_add_u32 s10, s10, s11")
    a(f"s_add_u32 s10, s10, {XP}")
    a("s_waitcnt lgkmcnt(0)")
    a("s_barrier")
    for s in range(4):
        a(f"ds_read_b128 {R(128 + 4*s)}, v6 offset:{s*64}")
    for s in range(4):
        a(f"s_waitcnt lgkmcnt({3-s})")
        for ct in range(2):
            c = "0" if s == 0 else R(144 + 4 * ct)
            a(f"v_mfma_f32_16x16x32_bf16 {R(144 + 4*ct)}, {R(WOP + ct*16 + s*4)}, {R(128 + 4*s)}, {c}")
    for r in range(4):
        a(f"v_cndmask_b32 v{144+r}, v{144+r}, v{148+r}, vcc")
    for r in range(4):
        tag_trunc(144 + r, 144 + r)
    a(f"s_mov_b32 exec_lo, 0x000f000f\ns_mov_b32 exec_hi, 0x000f000f")
    a(f"buffer_store_dwordx4 {R(144)}, v9, {S4(rWS)}, s10 offen sc1")
    a("s_mov_b64 exec, -1")
    stamp(10)
    a(f"s_cmp_ge_u32 s{sWAVE}, 4")
    a("s_cbranch_scc1 L_fin")
    a("s_mov_b64 exec, 0xf")
    check_regs(range(GA, GA + 8))
    a(f"v_and_b32 v{vBAD}, s{sTM}, v{vBAD}")
    a(f"v_cmp_ne_u32 vcc, 0, v{vBAD}")
    a("s_cbranch_vccz L_gok")

    def bodyG():
        gloads()
        a("s_waitcnt vmcnt(0)")
        check_regs(range(GA, GA + 8))
    poll(bodyG)
    a("L_gok:")
    a("s_mov_b64 exec, -1")
    red4(GA, (1, 2, 4, 8))
    red4(GB, (1, 2, 4, 8))
    rnd2(GA, GB, 5)
    lo(XV, XV)
    lo(B2V, B2V)
    a(f"v_lshlrev_b32 v9, 13, v{vLANE}")
    a(f"s_lshl_b32 s10, s12, 12")
    a(f"s_lshl_b32 s9, s13, 2")
    a(f"s_add_u32 s10, s10, s9")
    a(f"s_add_u32 s11, s10, {XP}")
    for r in range(8):
        a(f"v_mov_b32 v{128+r}, 0")
    a("s_mov_b32 exec_hi, 0")

    def bodyH2():
        a(f"buffer_load_dwordx4 {R(128)}, v9, {S4(rWS)}, s11 offen sc1")
        a("s_waitcnt vmcnt(0)")
        check_regs(range(128, 132))
    poll(bodyH2)
    a("s_mov_b64 exec, -1")
    stamp(11)
    red4(128, (1, 2, 4, 8))
    rnd1(128, 128)
    a(f"v_mul_f32 v128, v{GA}, v128")
    rnd1(128, 128)
    a(f"v_add_f32 v128, v{XV}, v128")
    rnd1(XV, 128)
    a(f"v_or_b32 v128, v{vTAG}, v{XV}")
    a(f"v_lshlrev_b32 v10, 2, v15")
    a(f"s_mov_b32 s9, {X1}")
    a(f"s_mov_b32 exec_lo, 0x00010001\ns_mov_b32 exec_hi, 0x00010001")
    a(f"buffer_store_dword v128, v10, {S4(rWS)}, s9 offen sc1")
    a("s_mov_b64 exec, -1")
    stamp(12)
    a(f"s_add_u32 s11, s10, {YP}")
    a(f"s_add_u32 s15, s10, {YP + 64*8192}")

    def bodyH4():
        a(f"buffer_load_dwordx4 {R(128)}, v9, {S4(rWS)}, s11 offen sc1")
        a("s_mov_b32 exec_hi, 0xffff")
        a(f"buffer_load_dwordx4 {R(132)}, v9, {S4(rWS)}, s15 offen sc1")
        a("s_waitcnt vmcnt(0)")
        for r in range(132, 136):
            a(f"v_xor_b32 v{r}, v{vTAG}, v{r}")
        a("s_mov_b32 exec_hi, -1")
        check_regs(range(128, 132))
        a(f"v_or3_b32 v{vBAD}, v{vBAD}, v132, v133")
        a(f"v_or3_b32 v{vBAD}, v{vBAD}, v134, v135")
    poll(bodyH4)
    stamp(13)
    for r in range(4):
        a(f"v_add_f32 v{128+r}, v{128+r}, v{132+r}")
    red4(128, (1, 2, 4, 8))
    rnd1(128, 128)
    a(f"v_add_f32 v128, v{B2V}, v128")
    rnd1(128, 128)
    a(f"v_mul_f32 v128, v{GB}, v128")
    rnd1(128, 128)
    a(f"v_add_f32 v128, v{XV}, v128")
    a("v_cvt_pk_bf16_f32 v128, v128, v128")
    a(f"v_lshlrev_b32 v10, 1, v15")
    a(f"s_mov_b32 exec_lo, 0x00010001\ns_mov_b32 exec_hi, 0x00010001")
    a(f"buffer_store_short v128, v10, {S4(rT3)}, 0 offen")
    a("s_mov_b64 exec, -1")
    a(f"s_or_b32 s9, s2, s{sWAVE}")
    a("s_cmp_lg_u32 s9, 0")
    a("s_cbranch_scc1 L_fin")
    a(f"v_mov_b32 v4, s{sEP}")
    a("v_mov_b32 v5, 0")
    a("s_mov_b64 exec, 1")
    a(f"buffer_store_dword v4, v5, {S4(rWS)}, 0 offen offset:{EPOCH} sc1")
    a("s_mov_b64 exec, -1")
    a("s_branch L_fin")

    a("L_tailB:")
    a(f"s_cmp_ge_u32 s{sAB}, 112")
    a("s_cbranch_scc1 L_fin")
    vm = Vm(a)
    SB = 128
    W2R = 160
    W2O = 192
    W1O = 224
    AD = 32
    B1V = 72
    a(f"v_lshrrev_b32 v10, 5, v{vLANE}")
    a(f"v_and_b32 v11, 31, v{vLANE}")
    a(f"v_mul_u32_u24 v4, 24576, v10")
    a(f"v_lshl_add_u32 v4, v11, 4, v4")
    a(f"s_lshl_b32 s12, s{sWAVE}, 9")

    def sbloads(vm=None):
        t = None
        for which in range(2):
            for p in range(4):
                a(f"s_add_u32 s9, s12, {MODP + p*49152 + (3+which)*4096}")
                txt = f"buffer_load_dwordx4 {R(SB + which*16 + p*4)}, v4, {S4(rWS)}, s9 offen sc1"
                if vm:
                    t = vm.issue(txt)
                else:
                    a(txt)
        return t
    sbloads(vm)
    srd(rT1, pB1, 7168)
    a(f"v_lshlrev_b32 v5, 1, v11")
    a(f"s_lshl_b32 s9, s{sAB}, 6")
    tsb = vm.issue(f"buffer_load_ushort v{B1V}, v5, {S4(rT1)}, s9 offen")
    tw1 = tsb if w1_early else w1_dma(vm)
    srd(rT2, pW2, 7340032)
    a(f"v_lshrrev_b32 v7, 4, v{vLANE}")
    a(f"v_lshlrev_b32 v8, 14, v7")
    a(f"v_and_b32 v9, 15, v{vLANE}")
    a(f"v_lshl_add_u32 v8, v9, 4, v8")
    a(f"s_lshl_b32 s10, s{sAB}, 16")
    a(f"s_lshl_b32 s11, s{sWAVE}, 8")
    a(f"s_add_u32 s10, s10, s11")
    for e in range(8):
        if e % 2 == 0:
            a(f"s_add_u32 s9, s10, {e*2048}")
        tw2 = vm.issue(f"buffer_load_dwordx4 {R(W2R + e*4)}, v8, {S4(rT2)}, s9 offen offset:{(e % 2)*2048} {nt}")
    for r in range(32):
        a(f"v_mov_b32 v{AD+r}, 0")
    vm.wait(tsb)
    check_regs(range(SB, SB + 32))
    a(f"v_and_b32 v{vBAD}, s{sTM}, v{vBAD}")
    a(f"v_cmp_ne_u32 vcc, 0, v{vBAD}")
    a("s_cbranch_vccz L_sbok")

    def bodyS():
        sbloads()
        a("s_waitcnt vmcnt(0)")
        check_regs(range(SB, SB + 32))
    poll(bodyS)
    a("L_sbok:")
    for which in range(2):
        b0 = SB + which * 16
        for k in range(4):
            a(f"v_add_f32 v{b0+k}, v{b0+k}, v{b0+4+k}\nv_add_f32 v{b0+8+k}, v{b0+8+k}, v{b0+12+k}")
        for k in range(4):
            a(f"v_add_f32 v{b0+k}, v{b0+k}, v{b0+8+k}")
        rnd2(b0, b0 + 1, 5)
        rnd2(b0 + 2, b0 + 3, 5)
    CB = SB + 16
    for k in range(4):
        a(f"v_add_f32 v{CB+k}, 1.0, v{CB+k}")
    rnd2(CB, CB + 1, 5)
    rnd2(CB + 2, CB + 3, 5)
    lo(B1V, B1V)
    a(f"v_bfe_u32 v5, v{vLANE}, 2, 2")
    a(f"v_lshl_add_u32 v5, v7, 3, v5")
    a(f"v_lshlrev_b32 v5, 6, v5")
    a(f"v_and_b32 v6, 3, v{vLANE}")
    a(f"v_lshl_add_u32 v5, v6, 3, v5")
    a(f"s_lshl_b32 s9, s{sWAVE}, 13")
    a(f"v_add_u32 v5, s9, v5")
    vm.wait(tw1)
    for ct in range(2):
        for s in range(4):
            for h in range(2):
                a(f"ds_read_b64_tr_b16 {R(W1O + ct*16 + s*4 + h*2, 2)}, v5 offset:{WT + (32*s + 4*h)*64 + 32*ct}")
    a(f"v_lshlrev_b32 v4, 12, v10")
    a(f"v_lshl_add_u32 v4, v11, 4, v4")
    a(f"s_add_u32 s13, s12, {X1}")
    a(f"v_lshlrev_b32 v73, 5, v7")
    a(f"s_lshl_b32 s9, s{sWAVE}, 2")
    a(f"s_add_u32 s9, s9, {ST}")
    a(f"v_add_u32 v73, s9, v73")
    a(f"v_lshlrev_b32 v74, 6, v10")
    a(f"v_add_u32 v74, {ST}, v74")
    a(f"s_lshl_b32 s9, s{sWAVE}, 9")
    a(f"s_add_u32 s9, s9, {YB}")
    a(f"v_lshl_add_u32 v75, v{vLANE}, 3, s9")
    a(f"v_and_b32 v5, 1, v{vLANE}")
    a(f"v_lshlrev_b32 v76, 8, v5")
    a(f"v_lshl_add_u32 v76, v7, 4, v76")
    a(f"v_add_u32 v76, s9, v76")
    a(f"s_lshl_b32 s9, s{sWAVE}, 8")
    a(f"s_add_u32 s9, s9, {RED}")
    a(f"v_lshlrev_b32 v77, 7, v5")
    a(f"v_lshl_add_u32 v77, v7, 4, v77")
    a(f"v_add_u32 v77, s9, v77")
    a(f"v_lshlrev_b32 v78, 2, v{vLANE}")
    a(f"v_add_u32 v78, {RED}, v78")
    a(f"s_lshl_b32 s9, s{sWAVE}, 7")
    a(f"s_add_u32 s9, s9, {H1B}")
    a(f"v_lshl_add_u32 v79, v{vLANE}, 1, s9")
    a(f"v_bfe_u32 v5, v{vLANE}, 2, 1")
    a(f"v_lshlrev_b32 v80, 6, v5")
    a(f"v_lshl_add_u32 v80, v7, 4, v80")
    a(f"v_add_u32 v80, s9, v80")
    a(f"v_and_b32 v5, 1, v7")
    a(f"v_lshlrev_b32 v81, 12, v5")
    a(f"v_lshl_add_u32 v81, v9, 5, v81")
    a(f"v_lshl_add_u32 v81, v10, 4, v81")
    a(f"s_lshl_b32 s14, s{sAB}, 13")
    a(f"s_add_u32 s14, s14, s12")
    a(f"s_add_u32 s14, s14, {YP}")
    vm.wait(tw2)
    for d in range(8):
        perm_operand(W2O + d * 4, W2R, d)
    stamp(9)
    XR = 84

    def bodyH3():
        a(f"buffer_load_dwordx4 {R(XR)}, v4, {S4(rWS)}, s13 offen sc1")
        a("s_waitcnt vmcnt(0)")
        check_regs(range(XR, XR + 4))
    poll(bodyH3)
    stamp(10)

    def wg_stats(rnd):
        a(f"v_add_f32 v5, v{XR}, v{XR+1}\nv_mul_f32 v6, v{XR}, v{XR}")
        a(f"v_add_f32 v8, v{XR+2}, v{XR+3}\nv_fmac_f32 v6, v{XR+1}, v{XR+1}")
        a(f"v_add_f32 v5, v5, v8\nv_fmac_f32 v6, v{XR+2}, v{XR+2}\nv_fmac_f32 v6, v{XR+3}, v{XR+3}")
        a("v_permlane16_swap_b32 v5, v6")
        a("v_add_f32 v5, v5, v6")
        for r in (1, 2, 4, 8):
            dpp_add(5, 5, 5, r)
        a(f"ds_write_b32 v73, v5 offset:{rnd*128}")
        a("s_waitcnt lgkmcnt(0)")
        a("s_barrier")
        for k in range(4):
            a(f"ds_read_b128 {R(96 + 4*k)}, v74 offset:{rnd*128 + 16*k}")
        a("s_waitcnt lgkmcnt(0)")
        for k in range(4):
            a(f"v_add_f32 v{96+k}, v{96+k}, v{100+k}\nv_add_f32 v{104+k}, v{104+k}, v{108+k}")
        a("v_add_f32 v96, v96, v97\nv_add_f32 v104, v104, v105\nv_add_f32 v98, v98, v99\nv_add_f32 v106, v106, v107")
        a("v_add_f32 v5, v96, v98\nv_add_f32 v6, v104, v106")
        ln_stats(5, 6, 8, 100, 101)
    wg_stats(0)
    for k in (0, 2):
        ln_apply(XR + k, XR + k + 1, 8, 100, 101)
        a(f"v_mul_f32 v{XR+k}, v{XR+k}, v{CB+k}\nv_mul_f32 v{XR+k+1}, v{XR+k+1}, v{CB+k+1}")
        rnd2(XR + k, XR + k + 1, 8)
        a(f"v_add_f32 v{XR+k}, v{XR+k}, v{SB+k}\nv_add_f32 v{XR+k+1}, v{XR+k+1}, v{SB+k+1}")
        rnd2(XR + k, XR + k + 1, 8)
    wg_stats(1)
    for k in (0, 2):
        ln_apply(XR + k, XR + k + 1, 8, 100, 101, last_round=False)
    a(f"v_cvt_pk_bf16_f32 v88, v{XR}, v{XR+1}\nv_cvt_pk_bf16_f32 v89, v{XR+2}, v{XR+3}")
    a(f"ds_write_b64 v75, {R(88, 2)}")
    a("s_waitcnt lgkmcnt(0)")
    for s in range(4):
        a(f"ds_read_b128 {R(96 + 4*s)}, v76 offset:{s*64}")
    for s in range(4):
        a(f"s_waitcnt lgkmcnt({3-s})")
        for ct in range(2):
            c = "0" if s == 0 else R(112 + 4 * ct)
            a(f"v_mfma_f32_16x16x32_bf16 {R(112 + 4*ct)}, {R(W1O + ct*16 + s*4)}, {R(96 + 4*s)}, {c}")
    a(f"s_mov_b32 exec_lo, 0x00030003\ns_mov_b32 exec_hi, 0x00030003")
    a(f"ds_write_b128 v77, {R(112)}")
    a(f"ds_write_b128 v77, {R(116)} offset:64")
    a("s_mov_b64 exec, -1")
    a("s_waitcnt lgkmcnt(0)")
    a("s_barrier")
    for k in range(8):
        a(f"ds_read_b32 v{96+k}, v78 offset:{k*256}")
    a("s_waitcnt lgkmcnt(0)")
    a("v_add_f32 v96, v96, v97\nv_add_f32 v98, v98, v99\nv_add_f32 v100, v100, v101\nv_add_f32 v102, v102, v103")
    a("v_add_f32 v96, v96, v98\nv_add_f32 v100, v100, v102\nv_add_f32 v96, v96, v100")
    rnd1(96, 96)
    a(f"v_add_f32 v96, v96, v{B1V}")
    rnd1(96, 96)
    a("v_mul_f32 v97, v96, v96")
    a("v_mul_f32 v97, 0x3d372713, v97")
    a("v_fma_f32 v97, v97, v96, v96")
    a("v_mul_f32 v97, 0xc0135761, v97")
    a("v_exp_f32 v97, v97")
    a("v_add_f32 v97, 1.0, v97")
    a("v_rcp_f32 v97, v97")
    a("v_mul_f32 v96, v96, v97")
    a("v_cvt_pk_bf16_f32 v96, v96, v96")
    a("ds_write_b16 v79, v96")
    a("s_waitcnt lgkmcnt(0)")
    for d in range(8):
        m16 = (0x11 << (d & 3)) << (8 * (d >> 2))
        m32 = m16 | (m16 << 16)
        a(f"s_mov_b32 exec_lo, {m32:#x}\ns_mov_b32 exec_hi, {m32:#x}")
        a(f"ds_read_b128 {R(AD + 4*d)}, v80")
    a("s_mov_b64 exec, -1")
    for d in range(8):
        a(f"s_waitcnt lgkmcnt({7-d})")
        c = "0" if d == 0 else R(96)
        a(f"v_mfma_f32_16x16x32_bf16 {R(96)}, {R(AD + 4*d)}, {R(W2O + 4*d)}, {c}")
    for r in range(4):
        tag_trunc(96 + r, 96 + r)
    a(f"buffer_store_dwordx4 {R(96)}, v81, {S4(rWS)}, s14 offen sc1")
    stamp(11)

    a("L_fin:")
    if stamps and dbgstamps:
        stamp(15)
        a("s_load_dwordx2 s[10:11], s[0:1], 104")
        a("s_waitcnt lgkmcnt(0)")
        srd(rT0, 10, 256)
        a(f"v_lshlrev_b32 v4, 2, v{vLANE}")
        a(f"v_not_b32 v5, v{vST}")
        a(f"v_cmp_eq_u32 vcc, 0, v{vLANE}")
        a(f"v_cndmask_b32 v5, v{vST}, v5, vcc")
        a("s_and_b32 s9, s2, 1")
        a("s_lshl_b32 s9, s9, 6")
        a("s_mov_b64 exec, 0xffff")
        a(f"buffer_atomic_umax v5, v4, {S4(rT0)}, s9 offen sc1")
    elif stamps:
        stamp(15)
        a(f"s_lshl_b32 s9, s2, 3")
        a(f"s_add_u32 s9, s9, s{sWAVE}")
        a(f"s_lshl_b32 s9, s9, 6")
        a(f"s_add_u32 s9, s9, {STAMP}")
        a(f"v_lshlrev_b32 v4, 2, v{vLANE}")
        a("s_mov_b64 exec, 0xffff")
        a(f"buffer_store_dword v{vST}, v4, {S4(rWS)}, s9 offen")
    a("L_end:")
    a("s_endpgm")
    a('.section .rodata,"a"')
    a(".p2align 6")
    a(f".amdhsa_kernel {NAME}_kernel")
    for l in (".amdhsa_next_free_vgpr 256", ".amdhsa_next_free_sgpr 102", ".amdhsa_accum_offset 256",
              ".amdhsa_group_segment_fixed_size 0", ".amdhsa_kernarg_size 120", ".amdhsa_user_sgpr_count 2",
              ".amdhsa_user_sgpr_kernarg_segment_ptr 1", ".amdhsa_system_sgpr_workgroup_id_x 1",
              ".amdhsa_float_denorm_mode_32 3"):
        a(l)
    a(".end_amdhsa_kernel")
    return pre + a.finish()


if __name__ == "__main__":
    out = sys.argv[1] if len(sys.argv) > 1 else f"cdna_kernels/{NAME}.s"
    kw = {}
    for arg in sys.argv[2:]:
        k, v = arg.split("=")
        kw[k] = eval(v)
    open(out, "w").write(gen(**kw))
```

```python
import sys
from asmlib import Asm, Vm

NAME = "adaLN_cond__gqa_block_cached__mixer_channel_mlp__decode"

EPOCH = 0
ML = 0x1000
X1 = 0x9000
MODP = 0x10000
QP = 0x30000
MA = 0xB0000
HP = 0xE0000
XP = 0x100000
DUAL = 0x90000
OP = 0x200000
YP = 0x300000
STAMP = 0x400000
WS_BYTES = 0x10000000
WT = 0
OC = 0x10000
QB = 0x18400
HB = 0x18C00
ZB = 0x18E00
MX = 0x19000
LX = 0x19100
OB = 0x19200
ST = 0x19600
YB = 0x19800
RED = 0x1A800
H1B = 0x1B000
QFL = 0x1B400
XB = 0x1B480
FB = 0x1B800
LDS_BYTES = 0x1BC00
TAGM = 0x3ff
NWAVES = 12

sWAVE, sL, sXCD, sIDX, sAI, sTAG = 3, 4, 5, 6, 7, 8
pX, pK, pV, pWQ, pWO, pW1, pB1, pW2, pB2, pC, pWM, pOUT, pWS = 16, 18, 20, 22, 24, 28, 30, 32, 34, 36, 38, 40, 42
rK, rV, rWS, rT0, rT1, rT2, rT3 = 44, 48, 52, 56, 60, 64, 68
sDU = 72
sSELLO, sSELHI, sHI, sLOG2E, sSCALE, sSPIN, sEP, sTM = 76, 77, 78, 79, 80, 81, 82, 83
sEX = 84
sBI = 86
sKV = 87
sW12 = 100
vLANE, vOK, vOV = 1, 2, 3
vBAD, vTAG, vST = 12, 13, 14


def gen(stamps=False, dbgstamps=False, codewarm=True, spin=200000, sleep=1, nt="nt", w1_early=True,
        thr=4, thr2=6, thrq=0, thrb=0, thrv=0, notail=False, quiet=0, fake=0, attdma=True, thrw=0, cslp=1, w1pol=None):
    a = Asm()
    hdr = open(f"cdna_kernels/{NAME}.s.ref").read().split("\n")
    head = [l for l in hdr if l.startswith(";") and "@launch" not in l]
    pre = "\n".join(head) + f"\n; @launch grid=(256,1,1) block=({64*NWAVES},1,1) lds={LDS_BYTES}\n"
    a('.amdgcn_target "amdgcn-amd-amdhsa--gfx950"')
    a(".text")
    a(f".globl {NAME}_kernel")
    a(".p2align 8")
    a(f".type {NAME}_kernel,@function")
    a(f"{NAME}_kernel:")

    def srd(d, p, n):
        a(f"s_mov_b32 s{d}, s{p}\ns_mov_b32 s{d+1}, s{p+1}\ns_mov_b32 s{d+2}, {n}\ns_mov_b32 s{d+3}, 0x20000")

    def R(b, n=4):
        return f"v[{b}:{b+n-1}]"

    def S4(b):
        return f"s[{b}:{b+3}]"

    def stamp(k):
        if stamps:
            a(f"s_memrealtime s[96:97]\ns_waitcnt lgkmcnt(0)\nv_writelane_b32 v{vST}, s96, {k}")

    def lo(d, p):
        a(f"v_lshlrev_b32 v{d}, 16, v{p}")

    def hi(d, p):
        a(f"v_and_b32 v{d}, s{sHI}, v{p}")

    def rnd1(d, s):
        a(f"v_cvt_pk_bf16_f32 v{d}, v{s}, v{s}")
        lo(d, d)

    def rnd2(x, y, t):
        a(f"v_cvt_pk_bf16_f32 v{t}, v{x}, v{y}")
        lo(x, t)
        hi(y, t)

    def tag_round(d, s):
        a(f"v_add_u32 v{d}, 0x200, v{s}")
        a(f"v_bfi_b32 v{d}, s{sTM}, v{vTAG}, v{d}")

    def tag_trunc(d, s):
        a(f"v_bfi_b32 v{d}, s{sTM}, v{vTAG}, v{s}")

    def check_regs(regs, first=True):
        for r in regs:
            a(f"v_xor_b32 v{r}, v{vTAG}, v{r}")
        regs = list(regs)
        if first:
            a(f"v_or_b32 v{vBAD}, v{regs[0]}, v{regs[1]}")
            regs = regs[2:]
        for i in range(0, len(regs), 2):
            a(f"v_or3_b32 v{vBAD}, v{vBAD}, v{regs[i]}, v{regs[i+1]}")

    def dpp_add(d, s_rot, s1, ror):
        a(f"v_add_f32_dpp v{d}, v{s_rot}, v{s1} row_ror:{ror} row_mask:0xf bank_mask:0xf")

    def dpp_max(d, s_rot, s1, ror):
        a(f"v_max_f32_dpp v{d}, v{s_rot}, v{s1} row_ror:{ror} row_mask:0xf bank_mask:0xf")

    def allred(x, t, op, which):
        for w in which:
            a(f"v_mov_b32 v{t}, v{x}")
            a(f"v_permlane{w}_swap_b32 v{x}, v{t}")
            a(f"{op} v{x}, v{x}, v{t}")

    def red4(b, rors):
        a(f"v_permlane32_swap_b32 v{b}, v{b+1}")
        a(f"v_permlane32_swap_b32 v{b+2}, v{b+3}")
        a(f"v_add_f32 v{b}, v{b}, v{b+1}")
        a(f"v_add_f32 v{b+2}, v{b+2}, v{b+3}")
        a(f"v_permlane16_swap_b32 v{b}, v{b+2}")
        a(f"v_add_f32 v{b}, v{b}, v{b+2}")
        for r in rors:
            dpp_add(b, b, b, r)

    def perm_operand(dst, blk, d):
        sel = sSELHI if d & 1 else sSELLO
        for k in range(4):
            a(f"v_perm_b32 v{dst+k}, v{blk + (2*k+1)*4 + (d >> 1)}, v{blk + 2*k*4 + (d >> 1)}, s{sel}")

    def ln_stats(su, sq, t, mb, rs):
        a(f"v_mul_f32 v{su}, 0x3a800000, v{su}")
        a(f"v_mul_f32 v{sq}, 0x3a800000, v{sq}")
        a(f"v_fma_f32 v{sq}, -v{su}, v{su}, v{sq}")
        a(f"v_max_f32 v{sq}, 0, v{sq}")
        a(f"v_cvt_pk_bf16_f32 v{t}, v{su}, v{sq}")
        lo(mb, t)
        hi(sq, t)
        a(f"v_add_f32 v{sq}, 0x3727c5ac, v{sq}")
        rnd1(sq, sq)
        a(f"v_sqrt_f32 v{sq}, v{sq}")
        rnd1(sq, sq)
        a(f"v_rcp_f32 v{rs}, v{sq}")

    def ln_apply(x, y, t, mb, rs, last_round=True):
        a(f"v_sub_f32 v{x}, v{x}, v{mb}")
        a(f"v_sub_f32 v{y}, v{y}, v{mb}")
        rnd2(x, y, t)
        a(f"v_mul_f32 v{x}, v{x}, v{rs}")
        a(f"v_mul_f32 v{y}, v{y}, v{rs}")
        if last_round:
            rnd2(x, y, t)

    def check2(pairs_regs):
        first = True
        for b in pairs_regs:
            a(f"v_xor_b32 v{b+1}, s{sEP}, v{b+1}")
            a(f"v_xor_b32 v{b+3}, s{sEP}, v{b+3}")
            if first:
                a(f"v_or_b32 v{vBAD}, v{b+1}, v{b+3}")
                first = False
            else:
                a(f"v_or3_b32 v{vBAD}, v{vBAD}, v{b+1}, v{b+3}")

    def pollx(loads, check, f2=False, dual=False, pre_issued=False, between=None, slp=None):
        lp, dn, ck = a.label("Lpoll"), a.label("Ldone"), a.label("Lchk")
        a(f"s_mov_b32 s{sSPIN}, {0 if (fake and slp == cslp) else spin | 7}")
        if pre_issued:
            a(f"s_branch {ck}")
        a(f"{lp}:")
        if dual:
            a(f"s_and_b32 s{sDU}, s{sSPIN}, 7")
            a(f"s_cselect_b32 s{sDU}, {DUAL}, 0")
        loads()
        a(f"{ck}:")
        a("s_waitcnt vmcnt(0)")
        check()
        if not f2:
            a(f"v_and_b32 v{vBAD}, s{sTM}, v{vBAD}")
        a(f"v_cmp_ne_u32 vcc, 0, v{vBAD}")
        a(f"s_cbranch_vccz {dn}")
        a("s_mov_b64 exec, vcc")
        sl = sleep if slp is None else slp
        if sl:
            a(f"s_sleep {sl}")
        a(f"s_sub_u32 s{sSPIN}, s{sSPIN}, 1")
        a(f"s_cbranch_scc0 {lp}")
        a(f"{dn}:")
        a("s_mov_b64 exec, -1")

    def dual_exchange(store_wt, loads, check):
        l1, ok, dn = a.label("Lfx"), a.label("Lfxok"), a.label("Lfxdn")
        a(f"s_mov_b32 s{sDU}, {DUAL}")
        a(f"s_mov_b32 s{sSPIN}, 24")
        a(f"{l1}:")
        loads()
        a("s_waitcnt vmcnt(0)")
        check()
        a(f"v_and_b32 v{vBAD}, s{sTM}, v{vBAD}")
        a(f"v_cmp_ne_u32 vcc, 0, v{vBAD}")
        a(f"s_cbranch_vccz {ok}")
        a("s_mov_b64 exec, vcc")
        a(f"s_sub_u32 s{sSPIN}, s{sSPIN}, 1")
        a(f"s_cbranch_scc0 {l1}")
        a(f"s_mov_b64 s[{sEX}:{sEX+1}], exec")
        store_wt()
        a(f"s_mov_b64 exec, s[{sEX}:{sEX+1}]")
        pollx(loads, check, dual=True)
        a(f"s_branch {dn}")
        a(f"{ok}:")
        store_wt()
        a("s_mov_b64 exec, -1")
        a(f"{dn}:")

    def store_dual(op, data, vaddr, soff, off=0):
        a(f"s_add_u32 s9, s{soff}, {DUAL}")
        a(f"{op} {data}, v{vaddr}, {S4(rWS)}, s9 offen offset:{off}")
        a(f"{op} {data}, v{vaddr}, {S4(rWS)}, s{soff} offen offset:{off} sc1")

    def kperm(d, t):
        a(f"v_bfe_u32 v{d}, v{vLANE}, 4, 1")
        a(f"v_lshrrev_b32 v{t}, 5, v{vLANE}")
        a(f"v_lshl_or_b32 v{d}, v{d}, 1, v{t}")

    MASK8 = "s_mov_b32 exec_lo, 0x00ff00ff\ns_mov_b32 exec_hi, 0x00ff00ff"
    FULL = "s_mov_b64 exec, -1"

    a("s_cmp_ge_u32 s2, 256")
    a("s_cbranch_scc1 L_end")
    a("s_load_dwordx16 s[16:31], s[0:1], 0")
    a("s_load_dwordx8 s[32:39], s[0:1], 64")
    a("s_load_dwordx2 s[40:41], s[0:1], 96")
    a("s_load_dwordx2 s[42:43], s[0:1], 112")
    if stamps:
        a(f"v_mov_b32 v{vST}, 0")
        a("s_memrealtime s[98:99]")
    a(f"v_lshrrev_b32 v4, 6, v0")
    a(f"v_and_b32 v{vLANE}, 63, v0")
    a(f"v_readfirstlane_b32 s{sW12}, v4")
    a(f"s_and_b32 s{sXCD}, s2, 7")
    a(f"s_lshr_b32 s{sIDX}, s2, 3")
    a(f"s_lshl_b32 s{sL}, s{sXCD}, 5")
    a(f"s_add_u32 s{sL}, s{sL}, s{sIDX}")
    a(f"s_lshr_b32 s{sAI}, s{sIDX}, 1")
    a(f"s_lshr_b32 s9, s{sAI}, 2")
    a(f"s_lshl_b32 s9, s9, 3")
    a(f"s_add_u32 s9, s9, s{sXCD}")
    a(f"s_lshl_b32 s{sBI}, s9, 2")
    a(f"s_and_b32 s9, s{sAI}, 3")
    a(f"s_add_u32 s{sBI}, s{sBI}, s9")
    a(f"s_mov_b32 s{sSELLO}, 0x05040100")
    a(f"s_mov_b32 s{sSELHI}, 0x07060302")
    a(f"s_mov_b32 s{sHI}, 0xffff0000")
    a(f"s_mov_b32 s{sLOG2E}, 0x3fb8aa3b")
    a(f"s_mov_b32 s{sSCALE}, 0x3db504f3")
    a(f"s_mov_b32 s{sTM}, {TAGM}")
    a(f"v_lshrrev_b32 v7, 3, v{vLANE}")
    a(f"s_sub_u32 s{sWAVE}, s{sW12}, 4")
    a("s_waitcnt lgkmcnt(0)")
    if stamps:
        a(f"v_writelane_b32 v{vST}, s98, 0")
    a(f"s_load_dword s{sEP}, s[{pWS}:{pWS+1}], {EPOCH}")

    def get_tag():
        a("s_waitcnt lgkmcnt(0)")
        a(f"s_add_u32 s{sEP}, s{sEP}, 1")
        a(f"s_and_b32 s{sTAG}, s{sEP}, {TAGM}")
        a(f"v_mov_b32 v{vTAG}, s{sTAG}")

    def wait_q():
        lp, dn = a.label("Lwq"), a.label("Lwqd")
        a(f"v_mov_b32 v4, {QFL}")
        a(f"s_mov_b32 s{sSPIN}, {spin*20}")
        a(f"{lp}:")
        a("ds_read_b32 v5, v4")
        a("s_waitcnt lgkmcnt(0)")
        a("v_cmp_ne_u32 vcc, 0, v5")
        a(f"s_cbranch_vccnz {dn}")
        a("s_sleep 1")
        a(f"s_sub_u32 s{sSPIN}, s{sSPIN}, 1")
        a(f"s_cbranch_scc0 {lp}")
        a(f"{dn}:")

    def wait_n(T):
        if T:
            a(f"s_waitcnt vmcnt({T-1})")

    def mod_tile(ngrp, srow0, scol, T, after_issue):
        ACC, PT, W = 32, 64, 72
        vm = Vm(a)
        srd(rT0, pWM, 12582912)
        srd(rT1, pC, 4096)
        a(f"s_mul_i32 s10, s{srow0}, 12288")
        a(f"s_add_u32 s10, s10, s{scol}")
        a(f"s_mov_b32 s9, {8*12288}")
        a(f"v_mul_lo_u32 v8, v7, s9")
        a(f"v_and_b32 v9, 7, v{vLANE}")
        a(f"v_lshl_add_u32 v8, v9, 4, v8")
        a(f"v_bfe_u32 v10, v{vLANE}, 2, 1")
        a(f"v_lshlrev_b32 v10, 11, v10")
        a(f"v_lshl_add_u32 v10, v7, 4, v10")
        a(f"s_lshl_b32 s11, s{srow0}, 1")
        for q4 in range(ngrp):
            tc = vm.issue(f"buffer_load_dwordx4 {R(ACC + q4*4)}, v10, {S4(rT1)}, s11 offen offset:{q4*128}")
        toks = {}

        def grp(q4):
            for e in range(8):
                a(f"s_add_u32 s9, s10, {(64*q4+e)*12288}")
                wait_n(T)
                toks[q4] = vm.issue(f"buffer_load_dwordx4 {R(W + (q4 % 3)*32 + e*4)}, v8, {S4(rT0)}, s9 offen {nt}")
        for q4 in range(min(ngrp, 3)):
            grp(q4)
        after_issue()
        vm.wait(tc)
        a(f"s_mov_b32 s9, 0xbfb8aa3b")
        for i in range(4 * ngrp):
            lo(4, ACC + i)
            hi(5, ACC + i)
            a(f"v_mul_f32 v6, s9, v4\nv_mul_f32 v11, s9, v5")
            a(f"v_exp_f32 v6, v6\nv_exp_f32 v11, v11")
            a(f"v_add_f32 v6, 1.0, v6\nv_add_f32 v11, 1.0, v11")
            a(f"v_rcp_f32 v6, v6\nv_rcp_f32 v11, v11")
            a(f"v_mul_f32 v4, v4, v6\nv_mul_f32 v5, v5, v11")
            a(f"v_cvt_pk_bf16_f32 v{16+i}, v4, v5")
        a(f"v_and_b32 v11, 3, v{vLANE}")
        a(f"v_bfe_u32 v10, v{vLANE}, 4, 1")
        a(f"v_lshl_add_u32 v9, v10, 2, v11")
        a(f"v_lshrrev_b32 v10, 5, v{vLANE}")
        a(f"v_lshl_add_u32 v9, v9, 1, v10")
        a(f"v_bfe_u32 v10, v{vLANE}, 2, 1")
        for q4 in range(ngrp):
            vm.wait(toks[q4])
            for d in range(8):
                t = PT + (d & 1) * 4
                perm_operand(t, W + (q4 % 3) * 32, d)
                c = "0" if q4 == 0 else R(ACC + d * 4)
                a(f"v_mfma_f32_16x16x32_bf16 {R(ACC + d*4)}, {R(t)}, {R(16 + q4*4)}, {c}")
            if q4 + 3 < ngrp:
                grp(q4 + 3)
        O = 72
        for d in range(4):
            for r in range(4):
                a(f"v_permlane32_swap_b32 v{ACC + d*4 + r}, v{ACC + (d+4)*4 + r}")
        for d in range(4):
            for r in range(4):
                dpp_add(O + r * 4 + d, ACC + (d + 4) * 4 + r, ACC + d * 4 + r, 8)
        for r in range(1, 4):
            a(f"v_cmp_eq_u32 vcc, {r}, v11")
            for d in range(4):
                a(f"v_cndmask_b32 v{O+d}, v{O+d}, v{O + r*4 + d}, vcc")

    def tag4(d):
        a(f"v_add_u32 v{d}, 8, v{d}")
        a(f"v_bfi_b32 v{d}, 15, v{vTAG}, v{d}")

    def check4(regs):
        regs = list(regs)
        for r in regs:
            a(f"v_xor_b32 v{r}, v15, v{r}")
        a(f"v_or_b32 v{vBAD}, v{regs[0]}, v{regs[1]}")
        for i in range(2, len(regs), 2):
            a(f"v_or3_b32 v{vBAD}, v{vBAD}, v{regs[i]}, v{regs[i+1]}")
        a(f"v_and_b32 v{vBAD}, 15, v{vBAD}")
        a(f"v_or_b32_dpp v{vBAD}, v{vBAD}, v{vBAD} quad_perm:[1,0,3,2] row_mask:0xf bank_mask:0xf")
        a(f"v_or_b32_dpp v{vBAD}, v{vBAD}, v{vBAD} quad_perm:[2,3,0,1] row_mask:0xf bank_mask:0xf")
        a(f"v_or_b32_dpp v{vBAD}, v{vBAD}, v{vBAD} row_half_mirror row_mask:0xf bank_mask:0xf")

    def lds_wait(addr, val):
        lp, dn = a.label("Lw"), a.label("Lwd")
        a(f"v_mov_b32 v4, {addr}")
        a(f"s_mov_b32 s{sSPIN}, {spin*20}")
        a(f"{lp}:")
        a("ds_read_b32 v5, v4")
        a("s_waitcnt lgkmcnt(0)")
        a(f"v_cmp_eq_u32 vcc, {val}, v5")
        a(f"s_cbranch_vccnz {dn}")
        a("s_sleep 1")
        a(f"s_sub_u32 s{sSPIN}, s{sSPIN}, 1")
        a(f"s_cbranch_scc0 {lp}")
        a(f"{dn}:")

    def hopB(half):
        a(f"v_and_b32 v15, 15, v{vTAG}")
        a(f"v_lshlrev_b32 v9, 4, v{vLANE}")
        a(f"s_lshl_b32 s10, s{sXCD}, 12")
        a(f"s_add_u32 s10, s10, {QP + half*2048}")

        def ld():
            for p in range(8):
                a(f"s_add_u32 s9, s10, {p*32768}")
                for i in range(2):
                    a(f"buffer_load_dwordx4 {R(32 + p*8 + i*4)}, v9, {S4(rWS)}, s9 offen offset:{i*1024} sc1")
        pollx(ld, lambda: check4(range(32, 96)), f2=True, slp=cslp)
        for st in (32, 16, 8):
            for e in range(st):
                a(f"v_add_f32 v{32+e}, v{32+e}, v{32+st+e}")
        for e in range(4):
            a(f"v_cvt_pk_bf16_f32 v{40+e}, v{32+2*e}, v{33+2*e}")
        a(f"v_lshlrev_b32 v9, 3, v{vLANE}")
        a(f"v_add_u32 v9, {QB + half*1024}, v9")
        for i in range(2):
            a(f"ds_write_b64 v9, {R(40 + 2*i, 2)} offset:{i*512}")
        a(f"v_mov_b32 v4, {QFL}\nv_mov_b32 v5, 1")
        a("s_waitcnt lgkmcnt(0)")
        a("s_mov_b64 exec, 1")
        a("ds_add_u32 v4, v5")
        a(FULL)
        a("s_waitcnt lgkmcnt(0)")
        stamp(4)
        a("s_branch L_fin")

    def f2_pack(src, dst):
        for k in range(4):
            a(f"v_mov_b32 v{dst+2*k}, v{src+k}")
            a(f"v_mov_b32 v{dst+2*k+1}, s{sEP}")

    def consumer_ids():
        a(f"s_lshr_b32 s12, s{sAI}, 2")
        a(f"s_and_b32 s13, s{sAI}, 3")
        a(f"s_lshl_b32 s13, s13, 5")
        a(f"s_lshl_b32 s9, s{sXCD}, 7")
        a(f"s_add_u32 s13, s13, s9")
        a(f"s_lshl_b32 s75, s12, 12")
        a(f"s_lshl_b32 s9, s13, 2")
        a(f"s_add_u32 s75, s75, s9")

    def w1_dma(vm, T):
        srd(rT0, pW1, 7340032)
        a(f"v_lshrrev_b32 v8, 4, v{vLANE}")
        a(f"v_mul_u32_u24 v8, 7168, v8")
        a(f"v_and_b32 v9, 15, v{vLANE}")
        a(f"v_lshl_add_u32 v8, v9, 4, v8")
        a(f"s_and_b32 s10, s{sBI}, 3")
        a(f"s_lshl_b32 s10, s10, 3")
        a(f"s_add_u32 s10, s10, s{sWAVE}")
        a(f"s_mul_i32 s10, s10, {32*7168}")
        a(f"s_lshr_b32 s11, s{sBI}, 2")
        a(f"s_lshl_b32 s11, s11, 8")
        a(f"s_add_u32 s10, s10, s11")
        a(f"s_lshl_b32 s11, s{sWAVE}, 13")
        t = None
        for i in range(8):
            a(f"s_add_u32 m0, s11, {WT + i*1024}")
            a(f"s_add_u32 s9, s10, {4*i*7168}")
            wait_n(T)
            t = vm.issue(f"buffer_load_dwordx4 v8, {S4(rT0)}, s9 offen {nt} lds")
        return t

    a(f"s_cmp_eq_u32 s{sW12}, 1")
    a("s_cbranch_scc1 L_moda")
    srd(rWS, pWS, WS_BYTES)
    a(f"s_cmp_ge_u32 s{sW12}, 4")
    a("s_cbranch_scc1 L_att")
    a(f"s_cmp_eq_u32 s{sW12}, 0")
    a("s_cbranch_scc1 L_chain")
    a(f"s_cmp_eq_u32 s{sW12}, 2")
    a("s_cbranch_scc1 L_red")

    if codewarm:
        lw = a.label("Lnowarm")
        a(f"s_cmp_lt_u32 s{sIDX}, 30")
        a(f"s_cbranch_scc1 {lw}")
        a("s_getpc_b64 s[10:11]")
        a("L_pc0:")
        a(f"v_lshlrev_b32 v8, 4, v{vLANE}")
        a(f"s_mov_b32 s9, 0")
        lp = a.label("Lwarm")
        a(f"{lp}:")
        a(f"v_min_u32 v9, L_end-L_pc0-16, v8")
        a(f"global_load_dwordx4 {R(64)}, v9, s[10:11]")
        a(f"v_add_u32 v8, 1024, v8")
        a(f"s_add_u32 s9, s9, 1024")
        a(f"s_cmp_lt_u32 s9, L_end-L_pc0")
        a(f"s_cbranch_scc1 {lp}")
        a(f"{lw}:")
    a("s_barrier")
    get_tag()
    if quiet & 1:
        lds_wait(QFL, 2)
    a(f"s_lshr_b32 s12, s{sXCD}, 1")
    a(f"s_lshl_b32 s13, s12, 8")
    a(f"s_and_b32 s14, s{sL}, 63")
    a(f"s_lshl_b32 s88, s14, 7")
    a(f"s_add_u32 s88, s88, 4096")
    mod_tile(4, 13, 88, thrb, lambda: None)
    for d in range(4):
        tag_round(72 + d, 72 + d)
    a(f"v_lshlrev_b32 v9, 4, v9")
    a(f"v_lshl_add_u32 v9, v10, 14, v9")
    a(f"s_lshl_b32 s13, s12, 15")
    a(f"s_lshl_b32 s9, s14, 8")
    a(f"s_add_u32 s13, s13, s9")
    a(f"s_add_u32 s13, s13, {MODP}")
    a(MASK8)
    a(f"buffer_store_dwordx4 {R(72)}, v9, {S4(rWS)}, s13 offen sc1")
    a(FULL)
    stamp(16)
    a(f"s_bitcmp1_b32 s{sIDX}, 0")
    a("s_cbranch_scc1 L_fin")
    a(f"s_cmp_ge_u32 s{sAI}, 8")
    a("s_cbranch_scc1 L_fin")
    GA, XV, B2V = 32, 48, 49
    consumer_ids()
    srd(rT0, pX, 4096)
    srd(rT1, pB2, 2048)
    kperm(4, 5)
    a(f"v_and_b32 v8, 7, v{vLANE}")
    a(f"v_lshl_add_u32 v11, v8, 2, v4")
    a(f"v_lshlrev_b32 v5, 1, v11")
    a(f"s_lshr_b32 s9, s75, 1")
    a(f"buffer_load_ushort v{XV}, v5, {S4(rT0)}, s9 offen")
    a(f"s_lshl_b32 s9, s13, 1")
    a(f"buffer_load_ushort v{B2V}, v5, {S4(rT1)}, s9 offen")
    for r in range(16):
        a(f"v_mov_b32 v{GA+r}, 0")
    a(f"v_lshlrev_b32 v10, 15, v7")
    a(f"v_lshl_add_u32 v10, v8, 4, v10")
    a(f"s_lshl_b32 s14, s12, 14")
    a(f"s_lshl_b32 s9, s13, 2")
    a(f"s_add_u32 s14, s14, s9")

    def gloads():
        for k in range(4):
            a(f"s_add_u32 s9, s14, {MODP + k*4096}")
            a(f"buffer_load_dwordx4 {R(GA + 4*k)}, v10, {S4(rWS)}, s9 offen sc1")
    a("s_mov_b32 exec_hi, 0")
    pollx(gloads, lambda: check_regs(range(GA, GA + 16)), slp=16)
    for k in range(4):
        red4(GA + 4 * k, (8,))
    rnd2(GA, GA + 12, 5)
    rnd2(GA + 4, GA + 8, 5)
    a(f"v_add_f32 v{GA+8}, 1.0, v{GA+8}")
    rnd1(GA + 8, GA + 8)
    a(f"v_or_b32 v{GA+4}, v{vTAG}, v{GA+4}\nv_or_b32 v{GA+8}, v{vTAG}, v{GA+8}")
    a(f"v_lshlrev_b32 v9, 2, v11")
    a(f"s_add_u32 s9, s75, {X1 + 8192}")
    a(f"s_add_u32 s10, s75, {X1 + 16384}")
    a(MASK8)
    a(f"buffer_store_dword v{GA+4}, v9, {S4(rWS)}, s9 offen sc1")
    a(f"buffer_store_dword v{GA+8}, v9, {S4(rWS)}, s10 offen sc1")
    a(FULL)
    lo(XV, XV)
    lo(B2V, B2V)
    a(f"v_add_u32 v5, {XB}, v9")
    a(f"ds_write_b32 v5, v{GA+12} offset:128")
    a(f"ds_write_b32 v5, v{B2V} offset:256")
    a(f"ds_write_b32 v5, v{GA} offset:384")
    a(f"ds_write_b32 v5, v{XV} offset:512")
    a("s_waitcnt lgkmcnt(0)")
    a("s_branch L_fin")

    a("L_moda:")
    a("s_setprio 3")
    a(f"s_lshr_b32 s12, s{sIDX}, 2")
    a(f"s_lshl_b32 s13, s12, 7")
    a(f"s_bfe_u32 s14, s{sIDX}, 0x10001")
    a(f"s_and_b32 s15, s{sIDX}, 1")
    a(f"s_lshl_b32 s88, s14, 11")
    a(f"s_lshl_b32 s9, s{sXCD}, 8")
    a(f"s_add_u32 s88, s88, s9")
    a(f"s_lshl_b32 s9, s15, 7")
    a(f"s_add_u32 s88, s88, s9")

    def after_a():
        a("s_barrier")
        srd(rWS, pWS, WS_BYTES)
        get_tag()
    mod_tile(2, 13, 88, 0, after_a)
    for d in range(4):
        tag4(72 + d)
    a(f"v_lshlrev_b32 v9, 4, v9")
    a(f"v_lshl_add_u32 v9, v10, 9, v9")
    a(f"s_lshl_b32 s13, s{sXCD}, 14")
    a(f"s_lshl_b32 s9, s12, 11")
    a(f"s_add_u32 s13, s13, s9")
    a(f"s_lshl_b32 s9, s14, 10")
    a(f"s_add_u32 s13, s13, s9")
    a(f"s_lshl_b32 s9, s15, 8")
    a(f"s_add_u32 s13, s13, s9")
    a(f"s_add_u32 s13, s13, {MA}")
    a(MASK8)
    store_dual("buffer_store_dwordx4", R(72), 9, 13)
    a(FULL)
    stamp(1)
    lds_wait(QFL + 4, 2)
    hopB(0)

    a("L_red:")
    a("s_setprio 3")
    vm = Vm(a)
    srd(rT1, pX, 4096)
    a(f"v_lshrrev_b32 v10, 5, v{vLANE}")
    a(f"v_and_b32 v11, 31, v{vLANE}")
    a(f"v_lshlrev_b32 v9, 11, v10")
    a(f"v_lshl_add_u32 v9, v11, 4, v9")
    for q in range(4):
        vm.issue(f"buffer_load_dwordx4 {R(72 + q*4)}, v9, {S4(rT1)}, 0 offen offset:{q*512}")
    a(f"v_lshlrev_b32 v9, 11, v10")
    a(f"v_lshl_add_u32 v9, v11, 3, v9")
    a(f"s_lshl_b32 s11, s{sXCD}, 8")
    tx = vm.issue(f"buffer_load_dwordx2 {R(88, 2)}, v9, {S4(rT1)}, s11 offen")
    get_tag()
    a("s_barrier")
    vm.wait(tx)
    a("v_mov_b32 v4, 0\nv_mov_b32 v5, 0")
    for i in range(16):
        lo(6, 72 + i)
        hi(8, 72 + i)
        a(f"v_add_f32 v4, v4, v6\nv_fmac_f32 v5, v6, v6")
        a(f"v_add_f32 v4, v4, v8\nv_fmac_f32 v5, v8, v8")
    for r in (1, 2, 4, 8):
        dpp_add(4, 4, 4, r)
        dpp_add(5, 5, 5, r)
    allred(4, 6, "v_add_f32", (16,))
    allred(5, 6, "v_add_f32", (16,))
    ln_stats(4, 5, 6, 8, 9)
    for i in range(2):
        lo(24 + 2 * i, 88 + i)
        hi(25 + 2 * i, 88 + i)
        ln_apply(24 + 2 * i, 25 + 2 * i, 6, 8, 9)
    a(f"v_and_b32 v15, 15, v{vTAG}")
    a(f"v_lshlrev_b32 v9, 4, v{vLANE}")
    a(f"s_lshl_b32 s10, s{sXCD}, 14")
    a(f"s_add_u32 s10, s10, {MA}")

    def ldA():
        a(f"s_add_u32 s11, s10, s{sDU}")
        for p in range(8):
            if p % 2 == 0:
                a(f"s_add_u32 s9, s11, {p*2048}")
            for wh in range(2):
                a(f"buffer_load_dwordx4 {R(32 + p*8 + wh*4)}, v9, {S4(rWS)}, s9 offen offset:{(p % 2)*2048 + wh*1024} sc1")
    pollx(ldA, lambda: check4(range(32, 96)), f2=True, dual=True, slp=cslp)
    stamp(2)
    for st in (32, 16, 8):
        for e in range(st):
            a(f"v_add_f32 v{32+e}, v{32+e}, v{32+st+e}")
    for i in range(2):
        s0, c0, l0 = 32 + 2 * i, 36 + 2 * i, 24 + 2 * i
        rnd2(s0, s0 + 1, 6)
        rnd2(c0, c0 + 1, 6)
        a(f"v_add_f32 v{c0}, 1.0, v{c0}\nv_add_f32 v{c0+1}, 1.0, v{c0+1}")
        rnd2(c0, c0 + 1, 6)
        a(f"v_mul_f32 v{c0}, v{c0}, v{l0}\nv_mul_f32 v{c0+1}, v{c0+1}, v{l0+1}")
        rnd2(c0, c0 + 1, 6)
        a(f"v_add_f32 v{c0}, v{c0}, v{s0}\nv_add_f32 v{c0+1}, v{c0+1}, v{s0+1}")
        a(f"v_cvt_pk_bf16_f32 v{40+i}, v{c0}, v{c0+1}")
    a(f"v_lshlrev_b32 v9, 3, v{vLANE}")
    a(f"v_add_u32 v9, {HB}, v9")
    a(f"ds_write_b64 v9, {R(40, 2)}")
    a(f"v_mov_b32 v4, {QFL+4}\nv_mov_b32 v5, 1")
    a("s_waitcnt lgkmcnt(0)")
    a("ds_write_b32 v4, v5")
    stamp(17)
    lds_wait(QFL + 4, 2)
    hopB(1)

    a("L_chain:")
    a("s_setprio 3")
    W = 40
    srd(rT0, pWQ, 8388608)
    a(f"v_mov_b32 v4, {QFL}\nv_mov_b32 v5, 0")
    a("ds_write_b32 v4, v5")
    a("ds_write_b32 v4, v5 offset:4")
    a(f"v_lshlrev_b32 v4, 2, v{vLANE}")
    a(f"v_add_u32 v4, {ZB}, v4")
    a("ds_write_b32 v4, v5")
    a(f"v_lshrrev_b32 v11, 4, v{vLANE}")
    a(f"v_lshlrev_b32 v8, 16, v11")
    a(f"v_and_b32 v15, 15, v{vLANE}")
    a(f"v_lshl_add_u32 v8, v15, 4, v8")
    a(f"s_lshl_b32 s10, s{sXCD}, 20")
    a(f"s_lshl_b32 s11, s{sIDX}, 8")
    a(f"s_add_u32 s10, s10, s11")
    get_tag()
    a("s_barrier")
    for blk in range(4):
        for e in range(8):
            a(f"s_add_u32 s9, s10, {(32*blk+e)*8192}")
            wait_n(thrq)
            a(f"buffer_load_dwordx4 {R(W + blk*32 + e*4)}, v8, {S4(rT0)}, s9 offen {nt}")
    if stamps:
        a("s_waitcnt vmcnt(0)")
        stamp(18)
    a(f"v_bfe_u32 v6, v{vLANE}, 2, 1")
    a(f"v_lshlrev_b32 v8, 8, v6")
    a(f"v_lshl_add_u32 v8, v11, 4, v8")
    a(f"v_add_u32 v8, {HB}, v8")
    a(f"v_mov_b32 v7, {ZB}")
    a(f"v_lshrrev_b32 v9, 5, v{vLANE}")
    a(f"v_lshl_add_u32 v9, v15, 1, v9")
    a(f"v_lshlrev_b32 v9, 4, v9")
    a(f"v_and_b32 v6, 1, v11")
    a(f"v_lshl_add_u32 v9, v6, 14, v9")
    a(f"s_lshl_b32 s10, s{sXCD}, 15")
    a(f"s_lshl_b32 s11, s{sIDX}, 9")
    a(f"s_add_u32 s10, s10, s11")
    a(f"s_add_u32 s10, s10, {QP}")
    lds_wait(QFL + 4, 1)
    a("s_waitcnt vmcnt(0)")
    stamp(19)
    ACC = 4
    first = True
    for d in range(8):
        m16 = (0x11 << (d & 3)) << (8 * (d >> 2))
        m32 = m16 | (m16 << 16)
        a(f"s_mov_b32 vcc_lo, {m32:#x}\ns_mov_b32 vcc_hi, {m32:#x}")
        a(f"v_cndmask_b32 v10, v7, v8, vcc")
        for blk in range(4):
            a(f"ds_read_b128 {R(16 + blk*4)}, v10 offset:{blk*64}")
        for blk in range(4):
            t = 32 + (blk & 1) * 4
            perm_operand(t, W + blk * 32, d)
            a(f"s_waitcnt lgkmcnt({3-blk})")
            a(f"v_mfma_f32_16x16x32_bf16 {R(2)}, {R(16 + blk*4)}, {R(t)}, {'0' if first else R(2)}")
            first = False
    for d in range(4):
        tag4(2 + d)
    a(f"buffer_store_dwordx4 {R(2)}, v9, {S4(rWS)}, s10 offen sc1")
    a(f"v_mov_b32 v8, {QFL+4}\nv_mov_b32 v7, 2")
    a("ds_write_b32 v8, v7")
    a("s_waitcnt lgkmcnt(0)")
    stamp(3)
    a("s_branch L_fin")

    QF, DT, PT, KV = 16, 24, 32, 40
    a("L_att:")
    srd(rK, pK, 0x4000000)
    srd(rV, pV, 0x4000000)
    a(f"s_lshl_b32 s{sKV}, s{sL}, 18")
    a(f"s_lshl_b32 s9, s{sWAVE}, 12")
    a(f"s_add_u32 s{sKV}, s{sKV}, s9")
    a(f"v_lshlrev_b32 v{vOV}, 4, v{vLANE}")
    a(f"v_and_b32 v6, 3, v{vLANE}")
    a(f"v_lshlrev_b32 v6, 10, v6")
    a(f"v_bfe_u32 v5, v{vLANE}, 2, 1")
    a(f"v_lshl_add_u32 v6, v5, 8, v6")
    a(f"v_lshl_add_u32 v{vOK}, v7, 4, v6")
    a(f"v_mov_b32 v4, {QFL}")
    a("s_mov_b64 vcc, 0")
    get_tag()
    a("s_barrier")
    if attdma:
        a(f"s_bitcmp1_b32 s{sIDX}, 0")
        a("s_cbranch_scc1 L_adw1")
        srd(rT2, pWO, 8388608)
        a(f"v_lshrrev_b32 v8, 4, v{vLANE}")
        a(f"v_lshlrev_b32 v8, 11, v8")
        a(f"v_and_b32 v9, 15, v{vLANE}")
        a(f"v_lshl_add_u32 v8, v9, 4, v8")
        a(f"s_lshl_b32 s10, s{sAI}, 19")
        a(f"s_lshl_b32 s11, s{sXCD}, 8")
        a(f"s_add_u32 s10, s10, s11")
        a(f"s_lshl_b32 s11, s{sWAVE}, 16")
        a(f"s_add_u32 s10, s10, s11")
        a(f"s_lshl_b32 s11, s{sWAVE}, 13")
        for i in range(8):
            a(f"s_add_u32 m0, s11, {WT + i*1024}")
            a(f"s_add_u32 s9, s10, {i*8192}")
            wait_n(thrw)
            a(f"buffer_load_dwordx4 v8, {S4(rT2)}, s9 offen {nt} lds")
        a("s_branch L_adone")
        a("L_adw1:")
        if w1_early:
            a(f"s_cmp_ge_u32 s{sBI}, 112")
            a("s_cbranch_scc1 L_adone")
            w1_dma(Vm(a), thrw)
        a("L_adone:")
        stamp(21)
    if quiet & 4:
        lds_wait(QFL, 2)
    thr_n = [0]

    def thr_wait():
        thr_n[0] += 1
        lsk = a.label("Lthr")
        a(f"s_cbranch_vccnz {lsk}")
        if thr_n[0] % 2 == 0:
            a("ds_read_b32 v5, v4")
        a(f"s_waitcnt vmcnt({thr-1})")
        if thr_n[0] % 2 == 0:
            a("s_waitcnt lgkmcnt(0)")
            a("v_cmp_eq_u32 vcc, 2, v5")
        a(f"{lsk}:")
        wait_n(thr2)

    vm = Vm(a)
    order = [2, 3, 0, 1, 4, 5, 6, 7]
    pos = {s: i for i, s in enumerate(order)}
    tk = {}
    for s in order:
        a(f"s_add_u32 s9, s{sKV}, {pos[s]*32768}")
        for t in range(2):
            for h in range(2):
                if thr:
                    thr_wait()
                tk[s] = vm.issue(f"buffer_load_dwordx4 {R(KV + s*16 + t*8 + h*4)}, v{vOK}, {S4(rK)}, s9 offen offset:{t*512 + h*128} {nt}")
    vblk = [KV + 32, KV + 64, KV + 96, KV + 32]
    tv = [None] * 4

    def vload(v):
        for e in range(8):
            if e % 4 == 0:
                a(f"s_add_u32 s9, s{sKV}, {(2*v + e//4)*32768}")
            wait_n(thrv)
            tv[v] = vm.issue(f"buffer_load_dwordx4 {R(vblk[v] + e*4)}, v{vOV}, {S4(rV)}, s9 offen offset:{(e % 4)*1024} {nt}")
    stamp(20)
    lds_wait(QFL, 2)
    stamp(5)
    a(f"v_and_b32 v8, 7, v{vLANE}")
    a(f"v_lshlrev_b32 v9, 8, v8")
    a(f"v_lshl_add_u32 v9, v7, 4, v9")
    a(f"v_add_u32 v9, {QB}, v9")
    a(f"ds_read_b128 {R(QF)}, v9")
    a(f"ds_read_b128 {R(QF+4)}, v9 offset:128")
    a("s_waitcnt lgkmcnt(0)")
    Sreg = [PT, PT + 4, KV, KV + 4, KV + 8, KV + 12, KV + 16, KV + 20]

    def qk_mfma(s, X, Y):
        vm.wait(tk[s])
        k0 = KV + s * 16
        a(f"v_mfma_f32_16x16x32_bf16 {R(X)}, {R(k0)}, {R(QF)}, 0")
        a(f"v_mfma_f32_16x16x32_bf16 {R(Y)}, {R(k0+8)}, {R(QF)}, 0")
        a(f"v_mfma_f32_16x16x32_bf16 {R(X)}, {R(k0+4)}, {R(QF+4)}, {R(X)}")
        a(f"v_mfma_f32_16x16x32_bf16 {R(Y)}, {R(k0+12)}, {R(QF+4)}, {R(Y)}")

    def qk_post(p, X, Y):
        S = Sreg[p]
        for r in range(4):
            a(f"v_permlane32_swap_b32 v{X+r}, v{Y+r}")
        for r in range(4):
            dpp_add(S + r, Y + r, X + r, 8)
        for r in (0, 2):
            rnd2(S + r, S + r + 1, 4)
            a(f"v_mul_f32 v{S+r}, s{sSCALE}, v{S+r}\nv_mul_f32 v{S+r+1}, s{sSCALE}, v{S+r+1}")
            rnd2(S + r, S + r + 1, 4)
        if p == 0:
            a(f"v_max3_f32 v5, v{S}, v{S+1}, v{S+2}")
            a(f"v_max_f32 v5, v5, v{S+3}")
        else:
            a(f"v_max3_f32 v5, v5, v{S}, v{S+1}")
            a(f"v_max3_f32 v5, v5, v{S+2}, v{S+3}")
    qk_mfma(2, PT, DT)
    qk_mfma(3, PT + 4, DT + 4)
    vload(0)
    qk_post(0, PT, DT)
    qk_post(1, PT + 4, DT + 4)
    for s in (0, 1, 4, 5, 6, 7):
        qk_mfma(s, DT, DT + 4)
        if s == 5:
            vload(1)
        qk_post(pos[s], DT, DT + 4)
    allred(5, 6, "v_max_f32", (32, 16))
    a(f"v_lshlrev_b32 v9, 5, v8")
    a(f"v_add_u32 v10, {MX}, v9")
    a(f"s_lshl_b32 s9, s{sWAVE}, 2")
    a(f"v_add_u32 v11, s9, v10")
    a("s_mov_b64 exec, 0xff")
    a(f"ds_write_b32 v11, v5")
    a(FULL)
    a("s_waitcnt lgkmcnt(0)")
    stamp(6)
    a("s_barrier")
    a(f"ds_read_b128 {R(16)}, v10")
    a(f"ds_read_b128 {R(20)}, v10 offset:16")
    a("s_waitcnt lgkmcnt(0)")
    a(f"v_max3_f32 v5, v16, v17, v18\nv_max3_f32 v5, v5, v19, v20\nv_max3_f32 v5, v5, v21, v22\nv_max_f32 v5, v5, v23")
    a(f"v_mul_f32 v6, s{sLOG2E}, v5")
    a("v_mov_b32 v4, 0")
    sl = [Sreg[p] + r for p in range(8) for r in range(4)]
    for i, x in enumerate(sl):
        a(f"v_fma_f32 v{x}, v{x}, s{sLOG2E}, -v6")
        a(f"v_exp_f32 v{x}, v{x}")
        if i:
            a(f"v_add_f32 v4, v4, v{sl[i-1]}")
    a(f"v_add_f32 v4, v4, v{sl[31]}")
    for i in range(16):
        a(f"v_cvt_pk_bf16_f32 v{QF+i}, v{sl[2*i]}, v{sl[2*i+1]}")
    allred(4, 6, "v_add_f32", (32, 16))
    a("s_mov_b64 exec, 0xff")
    a(f"ds_write_b32 v11, v4 offset:{LX-MX}")
    a(FULL)
    a("s_waitcnt lgkmcnt(0)")
    a("s_barrier")
    a(f"s_cmp_lg_u32 s{sWAVE}, 4")
    a("s_cbranch_scc1 L_noml")
    a(f"ds_read_b128 {R(32)}, v10 offset:{LX-MX}")
    a(f"ds_read_b128 {R(36)}, v10 offset:{LX-MX+16}")
    a(f"s_lshl_b32 s10, s{sL}, 7")
    a(f"s_add_u32 s10, s10, {ML}")
    a(f"v_lshlrev_b32 v9, 4, v8")
    a("s_waitcnt lgkmcnt(0)")
    a("v_add_f32 v32, v32, v33\nv_add_f32 v34, v34, v35\nv_add_f32 v36, v36, v37\nv_add_f32 v38, v38, v39")
    a("v_add_f32 v32, v32, v34\nv_add_f32 v36, v36, v38\nv_add_f32 v33, v32, v36")
    tag_trunc(32, 5)
    tag_trunc(33, 33)
    a("v_mov_b32 v34, v32\nv_mov_b32 v35, v33")
    a("s_mov_b64 exec, 0xff")
    a(f"buffer_store_dwordx4 {R(32)}, v9, {S4(rWS)}, s10 offen sc1")
    a(FULL)
    a("L_noml:")
    vload(2)
    a(f"v_mul_u32_u24 v9, 528, v8")
    a(f"v_lshrrev_b32 v10, 4, v{vLANE}")
    a(f"v_lshl_add_u32 v9, v10, 4, v9")
    a(f"s_mul_i32 s9, s{sWAVE}, 4224")
    a(f"s_add_u32 s9, s9, {OC}")
    a(f"v_add_u32 v9, s9, v9")
    a(f"v_lshrrev_b32 v10, 5, v{vLANE}")
    a(f"v_mul_u32_u24 v10, {4*4224}, v10")
    a(f"v_and_b32 v11, 31, v{vLANE}")
    a(f"v_lshlrev_b32 v11, 4, v11")
    a(f"s_mul_i32 s9, s{sWAVE}, 528")
    a(f"s_add_u32 s9, s9, {OC}")
    a(f"v_add3_u32 v10, v10, v11, s9")
    a(f"s_lshl_b32 s10, s{sXCD}, 3")
    a(f"s_add_u32 s10, s10, s{sWAVE}")
    a(f"s_lshl_b32 s10, s10, 5")
    a(f"s_add_u32 s10, s10, s{sIDX}")
    a(f"s_lshl_b32 s11, s10, 9")
    a(f"s_add_u32 s11, s11, {OP}")
    SA = KV
    for v in range(4):
        vm.wait(tv[v])
        for d in range(8):
            t = PT + (d & 1) * 4
            perm_operand(t, vblk[v], d)
            c = "0" if v == 0 else R(SA + d * 4)
            a(f"v_mfma_f32_16x16x32_bf16 {R(SA + d*4)}, {R(t)}, {R(QF + v*4)}, {c}")
        if v == 0:
            vload(3)
    stamp(7)
    a(MASK8)
    for d in range(8):
        a(f"ds_write_b128 v9, {R(SA + d*4)} offset:{d*64}")
    a(FULL)
    a("s_waitcnt lgkmcnt(0)")
    a("s_barrier")
    for k in range(4):
        a(f"ds_read_b128 {R(16 + 4*k)}, v10 offset:{k*4224}")
    a("s_waitcnt lgkmcnt(0)")
    for r in range(4):
        a(f"v_add_f32 v{16+r}, v{16+r}, v{20+r}\nv_add_f32 v{24+r}, v{24+r}, v{28+r}")
    for r in range(4):
        a(f"v_add_f32 v{16+r}, v{16+r}, v{24+r}")
    for r in range(4):
        a(f"v_mov_b32 v{20+r}, v{16+r}")
    for r in range(4):
        a(f"v_permlane32_swap_b32 v{16+r}, v{20+r}")
    for r in range(4):
        a(f"v_add_f32 v{16+r}, v{16+r}, v{20+r}")
    for r in range(4):
        tag_trunc(16 + r, 16 + r)
    a("s_mov_b32 exec_hi, 0")
    a(f"buffer_store_dwordx4 {R(16)}, v11, {S4(rWS)}, s11 offen sc1")
    a(FULL)
    stamp(8)
    if notail:
        a("s_branch L_fin")
    a(f"s_bitcmp1_b32 s{sIDX}, 0")
    a("s_cbranch_scc1 L_tailB")

    WOP = 72
    GA, XV, B2V = 110, 111, 112
    F = 116
    a(f"s_and_b32 s12, s{sWAVE}, 1")
    a(f"s_bfe_u32 s13, s{sWAVE}, 0x10001")
    a(f"s_lshl_b32 s14, s{sAI}, 1")
    a(f"s_add_u32 s14, s14, s13")
    a(f"v_and_b32 v11, 31, v{vLANE}")
    a(f"v_lshlrev_b32 v10, 7, v11")
    a(f"s_lshl_b32 s89, s12, 14")
    a(f"s_lshr_b32 s9, s14, 3")
    a(f"s_lshl_b32 s9, s9, 12")
    a(f"s_add_u32 s89, s89, s9")
    a(f"s_and_b32 s9, s14, 7")
    a(f"s_lshl_b32 s9, s9, 4")
    a(f"s_add_u32 s89, s89, s9")
    a(f"s_add_u32 s89, s89, {ML}")

    def mlloads():
        a(f"buffer_load_dwordx4 {R(104)}, v10, {S4(rWS)}, s89 offen sc1")
    mlloads()
    a(f"v_lshrrev_b32 v6, 4, v{vLANE}")
    a(f"v_and_b32 v8, 15, v{vLANE}")
    a(f"v_lshlrev_b32 v9, 9, v6")
    a(f"v_lshl_add_u32 v9, v8, 4, v9")
    a(f"s_lshl_b32 s9, s12, 5")
    a(f"s_add_u32 s9, s9, s14")
    a(f"s_lshl_b32 s90, s9, 14")
    a(f"s_lshr_b32 s15, s{sWAVE}, 2")
    a(f"s_lshl_b32 s9, s15, 8")
    a(f"s_add_u32 s90, s90, s9")
    a(f"s_add_u32 s90, s90, {OP}")
    for i in range(1, 4):
        a(f"s_add_u32 s{90+i}, s90, {i*4096}")

    def oloads():
        for i in range(8):
            a(f"buffer_load_dwordx4 {R(40 + 4*i)}, v9, {S4(rWS)}, s{90+i//2} offen offset:{(i % 2)*2048} sc1")
    oloads()
    kperm(4, 5)
    a(f"v_lshl_add_u32 v5, v8, 2, v4")
    a(f"s_lshl_b32 s9, s13, 9")
    a(f"s_lshl_b32 s10, s12, 8")
    a(f"s_add_u32 s9, s9, s10")
    a(f"s_lshl_b32 s10, s15, 7")
    a(f"s_add_u32 s9, s9, s10")
    a(f"s_add_u32 s9, s9, {OB}")
    a(f"v_lshl_add_u32 v124, v5, 1, s9")
    a(f"v_and_b32 v5, 3, v11")
    a(f"v_lshrrev_b32 v7, 2, v11")
    a(f"v_lshl_add_u32 v5, v5, 3, v7")
    a(f"s_lshl_b32 s9, s{sWAVE}, 7")
    a(f"s_add_u32 s9, s9, {FB}")
    a(f"v_lshl_add_u32 v108, v5, 2, s9")
    a(f"v_lshl_add_u32 v109, v6, 5, s9")
    a(f"v_bfe_u32 v5, v{vLANE}, 4, 1")
    a(f"v_lshlrev_b32 v5, 6, v5")
    a(f"v_bfe_u32 v7, v{vLANE}, 2, 2")
    a(f"v_lshl_add_u32 v5, v7, 3, v5")
    a(f"v_lshrrev_b32 v7, 5, v{vLANE}")
    a(f"v_add_u32 v5, v5, v7")
    a(f"v_lshlrev_b32 v5, 8, v5")
    a(f"v_and_b32 v7, 3, v{vLANE}")
    a(f"v_lshl_add_u32 v5, v7, 3, v5")
    a(f"s_lshl_b32 s9, s15, 15")
    a(f"s_and_b32 s11, s{sWAVE}, 3")
    a(f"s_lshl_b32 s10, s11, 6")
    a(f"s_add_u32 s9, s9, s10")
    a(f"v_add_u32 v5, s9, v5")
    for ct in range(2):
        for s in range(4):
            for h in range(2):
                a(f"ds_read_b64_tr_b16 {R(WOP + ct*16 + s*4 + h*2, 2)}, v5 offset:{WT + 8192*h + 512*s + 32*ct}")
    a(f"v_and_b32 v5, 1, v{vLANE}")
    a(f"v_lshlrev_b32 v125, 8, v5")
    a(f"v_lshl_add_u32 v125, v6, 4, v125")
    a(f"s_lshl_b32 s9, s15, 9")
    a(f"s_add_u32 s9, s9, {OB}")
    a(f"v_add_u32 v125, s9, v125")
    a(f"v_lshlrev_b32 v126, 12, v5")
    a(f"v_lshl_add_u32 v126, v6, 4, v126")
    a(f"v_bfe_u32 v5, v{vLANE}, 1, 1")
    a(f"v_lshl_add_u32 v126, v5, 6, v126")
    a(f"v_cmp_eq_u32 s[94:95], 1, v5")
    a(f"s_lshl_b32 s10, s{sAI}, 1")
    a(f"s_add_u32 s10, s10, s15")
    a(f"s_lshl_b32 s10, s10, 13")
    a(f"s_lshl_b32 s9, s{sXCD}, 9")
    a(f"s_add_u32 s10, s10, s9")
    a(f"s_lshl_b32 s9, s11, 7")
    a(f"s_add_u32 s10, s10, s9")
    a(f"s_add_u32 s73, s10, {XP}")
    a(f"s_add_u32 s74, s10, {XP + DUAL}")
    a("s_waitcnt vmcnt(8)")
    check_regs(range(104, 108))
    a(f"v_and_b32 v{vBAD}, s{sTM}, v{vBAD}")
    a(f"v_cmp_ne_u32 vcc, 0, v{vBAD}")
    a("s_cbranch_vccz L_mlok")
    a("s_mov_b64 exec, vcc")
    pollx(mlloads, lambda: check_regs(range(104, 108)))
    a("L_mlok:")
    dpp_max(5, 104, 104, 1)
    for r in (2, 4, 8):
        dpp_max(5, 5, 5, r)
    allred(5, 7, "v_max_f32", (16,))
    a(f"v_sub_f32 v104, v104, v5")
    a(f"v_mul_f32 v104, s{sLOG2E}, v104")
    a(f"v_exp_f32 v104, v104")
    a(f"v_mul_f32 v5, v104, v105")
    for r in (1, 2, 4, 8):
        dpp_add(5, 5, 5, r)
    allred(5, 7, "v_add_f32", (16,))
    a("v_rcp_f32 v5, v5")
    a("v_mul_f32 v104, v104, v5")
    a("ds_write_b32 v108, v104")
    a("s_waitcnt lgkmcnt(0)")
    a(f"ds_read_b128 {R(F)}, v109")
    a(f"ds_read_b128 {R(F+4)}, v109 offset:16")
    consumer_ids()
    a(f"v_lshrrev_b32 v7, 3, v{vLANE}")
    a(f"v_and_b32 v8, 7, v{vLANE}")
    a(f"v_lshl_add_u32 v11, v8, 2, v4")
    a(f"v_lshlrev_b32 v114, 2, v11")
    a(f"v_add_u32 v5, {XB}, v114")
    a(f"ds_read_b32 v{GA}, v5 offset:384")
    a(f"ds_read_b32 v{XV}, v5 offset:512")
    a(f"s_add_u32 s14, s75, {X1}")
    a(f"v_lshlrev_b32 v113, 13, v7")
    a(f"v_lshl_add_u32 v113, v8, 4, v113")
    a("L_h1:")
    pollx(oloads, lambda: check_regs(range(40, 72)), pre_issued=True)
    stamp(9)
    a("s_waitcnt lgkmcnt(0)")
    for k in range(4):
        a(f"v_mul_f32 v{40+k}, v{F}, v{40+k}")
        a(f"v_mul_f32 v{44+k}, v{F+1}, v{44+k}")
    for i in range(2, 8):
        for k in range(4):
            a(f"v_fmac_f32 v{40 + 4*(i & 1) + k}, v{F+i}, v{40+4*i+k}")
    for k in range(4):
        a(f"v_add_f32 v{40+k}, v{40+k}, v{44+k}")
    red4(40, ())
    a("v_cvt_pk_bf16_f32 v40, v40, v40")
    a("ds_write_b16 v124, v40")
    a("s_waitcnt lgkmcnt(0)")
    a("s_barrier")
    for s in range(4):
        a(f"ds_read_b128 {R(40 + 4*s)}, v125 offset:{s*64}")
    for s in range(4):
        a(f"s_waitcnt lgkmcnt({3-s})")
        for ct in range(2):
            c = "0" if s == 0 else R(56 + 4 * ct)
            a(f"v_mfma_f32_16x16x32_bf16 {R(56 + 4*ct)}, {R(WOP + ct*16 + s*4)}, {R(40 + 4*s)}, {c}")
    for r in range(4):
        a(f"v_cndmask_b32 v{56+r}, v{56+r}, v{60+r}, s[94:95]")
    for r in range(4):
        tag_trunc(56 + r, 56 + r)
    a(f"s_mov_b32 exec_lo, 0x000f000f\ns_mov_b32 exec_hi, 0x000f000f")
    a(f"buffer_store_dwordx4 {R(56)}, v126, {S4(rWS)}, s74 offen")
    a(f"s_cmp_ge_u32 s{sAI}, 8")
    a("s_cbranch_scc1 L_xpq")
    a(f"s_cmp_eq_u32 s{sWAVE}, 7")
    a("s_cbranch_scc1 L_h2")
    a("L_xpq:")
    a(f"buffer_store_dwordx4 {R(56)}, v126, {S4(rWS)}, s73 offen sc1")
    a("s_mov_b64 exec, -1")
    stamp(10)
    a(f"s_cmp_ge_u32 s{sAI}, 8")
    a("s_cbranch_scc1 L_fin")
    a("s_branch L_h4")
    a("L_h2:")

    def xloads():
        for i in range(4):
            a(f"s_add_u32 s9, s{sDU}, {XP + i*65536}")
            a(f"s_add_u32 s9, s9, s75")
            a(f"buffer_load_dwordx4 {R(40 + 4*i)}, v113, {S4(rWS)}, s9 offen sc1")
    a("s_mov_b64 exec, -1")

    def xp_wt():
        a(f"s_mov_b32 exec_lo, 0x000f000f\ns_mov_b32 exec_hi, 0x000f000f")
        a(f"buffer_store_dwordx4 {R(56)}, v126, {S4(rWS)}, s73 offen sc1")
    dual_exchange(xp_wt, xloads, lambda: check_regs(range(40, 56)))
    stamp(11)
    for k in range(4):
        a(f"v_add_f32 v{40+k}, v{40+k}, v{44+k}\nv_add_f32 v{48+k}, v{48+k}, v{52+k}")
    for k in range(4):
        a(f"v_add_f32 v{40+k}, v{40+k}, v{48+k}")
    red4(40, (8,))
    rnd1(40, 40)
    a(f"v_mul_f32 v40, v{GA}, v40")
    rnd1(40, 40)
    a(f"v_add_f32 v40, v{XV}, v40")
    rnd1(XV, 40)
    a(f"v_or_b32 v40, v{vTAG}, v{XV}")
    a(f"s_mov_b32 exec_lo, 0x00ff00ff\ns_mov_b32 exec_hi, 0x00ff00ff")
    a(f"buffer_store_dword v40, v114, {S4(rWS)}, s14 offen sc1")
    a("s_mov_b64 exec, -1")
    stamp(12)
    a(f"v_add_u32 v5, {XB}, v114")
    a(f"ds_write_b32 v5, v{XV}")
    a("s_waitcnt lgkmcnt(0)")
    a("L_h4:")
    a("s_barrier")
    srd(rT3, pOUT, 4096)
    a(f"s_lshl_b32 s9, s{sWAVE}, 4")
    a(f"s_add_u32 s10, s75, s9")
    a(f"s_add_u32 s11, s10, {YP}")
    a(f"s_add_u32 s15, s10, {YP + 64*8192}")
    a(f"s_add_u32 s9, s9, {XB}")
    a(f"v_lshl_add_u32 v5, v4, 2, s9")
    a(f"ds_read_b32 v{XV}, v5")
    a(f"ds_read_b32 v{GA}, v5 offset:128")
    a(f"ds_read_b32 v{B2V}, v5 offset:256")
    a(f"v_lshlrev_b32 v9, 13, v{vLANE}")
    a(f"s_lshr_b32 s10, s10, 1")
    a(f"v_lshl_add_u32 v10, v4, 1, s10")
    for r in range(44, 48):
        a(f"v_mov_b32 v{r}, 0")
    a(f"s_mov_b32 s94, -1\ns_mov_b32 s95, 0xffff")

    def ldH4():
        a(f"buffer_load_dwordx4 {R(40)}, v9, {S4(rWS)}, s11 offen sc1")
        a(f"s_and_saveexec_b64 s[{sEX}:{sEX+1}], s[94:95]")
        a(f"buffer_load_dwordx4 {R(44)}, v9, {S4(rWS)}, s15 offen sc1")

    def ckH4():
        for r in range(44, 48):
            a(f"v_xor_b32 v{r}, v{vTAG}, v{r}")
        a(f"s_mov_b64 exec, s[{sEX}:{sEX+1}]")
        check_regs(range(40, 44))
        a(f"v_or3_b32 v{vBAD}, v{vBAD}, v44, v45")
        a(f"v_or3_b32 v{vBAD}, v{vBAD}, v46, v47")
    pollx(ldH4, ckH4)
    stamp(13)
    for r in range(4):
        a(f"v_add_f32 v{40+r}, v{40+r}, v{44+r}")
    red4(40, (1, 2, 4, 8))
    a("s_waitcnt lgkmcnt(0)")
    rnd1(40, 40)
    a(f"v_add_f32 v40, v{B2V}, v40")
    rnd1(40, 40)
    a(f"v_mul_f32 v40, v{GA}, v40")
    rnd1(40, 40)
    a(f"v_add_f32 v40, v{XV}, v40")
    a("v_cvt_pk_bf16_f32 v40, v40, v40")
    a(f"s_mov_b32 exec_lo, 0x00010001\ns_mov_b32 exec_hi, 0x00010001")
    a(f"buffer_store_short v40, v10, {S4(rT3)}, 0 offen")
    a("s_mov_b64 exec, -1")
    a(f"s_or_b32 s9, s2, s{sWAVE}")
    a("s_cmp_lg_u32 s9, 0")
    a("s_cbranch_scc1 L_fin")
    a(f"v_mov_b32 v4, s{sEP}")
    a("v_mov_b32 v5, 0")
    a("s_mov_b64 exec, 1")
    a(f"buffer_store_dword v4, v5, {S4(rWS)}, 0 offen offset:{EPOCH} sc1")
    a("s_mov_b64 exec, -1")
    a("s_branch L_fin")

    a("L_tailB:")
    a(f"s_cmp_ge_u32 s{sBI}, 112")
    a("s_cbranch_scc1 L_fin")
    vm = Vm(a)
    W2R = 136
    W2O = 104
    W1O = 72
    AD = 40
    B1V = 29
    XR, SB, CB = 32, 36, 16
    srd(rT2, pW2, 7340032)
    a(f"v_lshrrev_b32 v7, 4, v{vLANE}")
    a(f"v_lshlrev_b32 v8, 14, v7")
    a(f"v_and_b32 v9, 15, v{vLANE}")
    a(f"v_lshl_add_u32 v8, v9, 4, v8")
    a(f"s_lshl_b32 s10, s{sBI}, 16")
    a(f"s_lshl_b32 s11, s{sWAVE}, 8")
    a(f"s_add_u32 s10, s10, s11")
    for e in range(8):
        if e % 2 == 0:
            a(f"s_add_u32 s9, s10, {e*2048}")
        tw2 = vm.issue(f"buffer_load_dwordx4 {R(W2R + e*4)}, v8, {S4(rT2)}, s9 offen offset:{(e % 2)*2048} {nt}")
    a(f"v_lshrrev_b32 v10, 5, v{vLANE}")
    a(f"v_and_b32 v11, 31, v{vLANE}")
    a(f"s_lshl_b32 s12, s{sWAVE}, 9")
    srd(rT1, pB1, 7168)
    kperm(4, 5)
    a(f"v_and_b32 v6, 7, v{vLANE}")
    a(f"v_lshl_add_u32 v5, v6, 2, v4")
    a(f"v_lshlrev_b32 v5, 1, v5")
    a(f"s_lshl_b32 s9, s{sBI}, 6")
    a(f"buffer_load_ushort v{B1V}, v5, {S4(rT1)}, s9 offen")
    a(f"v_bfe_u32 v8, v{vLANE}, 3, 1")
    a(f"v_lshl_add_u32 v26, v8, 6, v5")
    a(f"s_lshl_b32 s9, s{sWAVE}, 7")
    a(f"s_add_u32 s9, s9, {H1B}")
    a(f"v_add_u32 v26, s9, v26")
    a(f"v_bfe_u32 v5, v{vLANE}, 2, 1")
    a(f"v_lshlrev_b32 v27, 6, v5")
    a(f"v_lshl_add_u32 v27, v7, 4, v27")
    a(f"v_add_u32 v27, s9, v27")
    a(f"v_lshlrev_b32 v25, 10, v7")
    a(f"v_lshl_add_u32 v25, v8, 9, v25")
    a(f"v_lshl_add_u32 v25, v6, 4, v25")
    a(f"s_and_b32 s9, s{sBI}, 3")
    a(f"s_lshl_b32 s89, s9, 7")
    a(f"s_andn2_b32 s10, s{sBI}, 3")
    a(f"s_lshl_b32 s10, s10, 10")
    a(f"s_add_u32 s89, s89, s10")
    a(f"s_add_u32 s89, s89, {HP}")
    a(f"v_and_b32 v5, 1, v{vLANE}")
    a(f"v_lshlrev_b32 v23, 11, v5")
    a(f"v_lshl_add_u32 v23, v7, 4, v23")
    a(f"s_lshl_b32 s9, s9, 9")
    a(f"s_add_u32 s9, s9, {YB}")
    a(f"v_add_u32 v23, s9, v23")
    a(f"v_lshlrev_b32 v24, 9, v5")
    a(f"v_lshl_add_u32 v24, v7, 4, v24")
    a(f"s_lshl_b32 s90, s{sBI}, 10")
    a(f"s_lshl_b32 s9, s{sWAVE}, 6")
    a(f"s_add_u32 s90, s90, s9")
    a(f"s_add_u32 s91, s90, {HP + DUAL}")
    a(f"s_add_u32 s90, s90, {HP}")
    for r in range(32):
        a(f"v_mov_b32 v{AD+r}, 0")
    a(f"v_bfe_u32 v5, v{vLANE}, 2, 2")
    a(f"v_lshl_add_u32 v5, v7, 3, v5")
    a(f"v_lshlrev_b32 v5, 8, v5")
    a(f"v_and_b32 v6, 3, v{vLANE}")
    a(f"v_lshl_add_u32 v5, v6, 3, v5")
    a(f"s_lshl_b32 s9, s{sWAVE}, 5")
    a(f"v_add_u32 v5, s9, v5")
    for s in range(8):
        for h in range(2):
            a(f"ds_read_b64_tr_b16 {R(W1O + s*4 + h*2, 2)}, v5 offset:{WT + 8192*s + 1024*h}")
    a(f"v_lshlrev_b32 v4, 12, v10")
    a(f"v_lshl_add_u32 v4, v11, 4, v4")
    a(f"s_add_u32 s13, s12, {X1}")
    a(f"v_lshlrev_b32 v20, 5, v7")
    a(f"s_lshl_b32 s9, s{sWAVE}, 2")
    a(f"s_add_u32 s9, s9, {ST}")
    a(f"v_add_u32 v20, s9, v20")
    a(f"v_lshlrev_b32 v21, 6, v10")
    a(f"v_add_u32 v21, {ST}, v21")
    a(f"v_lshrrev_b32 v22, 1, v4")
    a(f"s_lshl_b32 s9, s{sWAVE}, 8")
    a(f"s_add_u32 s9, s9, {YB}")
    a(f"v_add_u32 v22, s9, v22")
    a(f"v_and_b32 v5, 1, v7")
    a(f"v_lshlrev_b32 v28, 12, v5")
    a(f"v_lshl_add_u32 v28, v9, 5, v28")
    a(f"v_lshl_add_u32 v28, v10, 4, v28")
    a(f"s_lshl_b32 s14, s{sBI}, 13")
    a(f"s_add_u32 s14, s14, s12")
    a(f"s_add_u32 s14, s14, {YP}")
    a(f"s_add_u32 s15, s13, 8192")
    a(f"s_add_u32 s88, s13, 16384")

    def ldS():
        a(f"buffer_load_dwordx4 {R(SB)}, v4, {S4(rWS)}, s15 offen sc1")
        a(f"buffer_load_dwordx4 {R(CB)}, v4, {S4(rWS)}, s88 offen sc1")
    pollx(ldS, lambda: check_regs(list(range(SB, SB + 4)) + list(range(CB, CB + 4))))
    for d in range(8):
        perm_operand(W2O + d * 4, W2R, d)
    lo(B1V, B1V)
    stamp(9)

    def ldH3():
        a(f"buffer_load_dwordx4 {R(XR)}, v4, {S4(rWS)}, s13 offen sc1")
    pollx(ldH3, lambda: check_regs(range(XR, XR + 4)))
    stamp(10)

    def wg_stats(rnd):
        a(f"v_add_f32 v5, v{XR}, v{XR+1}\nv_mul_f32 v6, v{XR}, v{XR}")
        a(f"v_add_f32 v8, v{XR+2}, v{XR+3}\nv_fmac_f32 v6, v{XR+1}, v{XR+1}")
        a(f"v_add_f32 v5, v5, v8\nv_fmac_f32 v6, v{XR+2}, v{XR+2}\nv_fmac_f32 v6, v{XR+3}, v{XR+3}")
        a("v_permlane16_swap_b32 v5, v6")
        a("v_add_f32 v5, v5, v6")
        for r in (1, 2, 4, 8):
            dpp_add(5, 5, 5, r)
        a(f"ds_write_b32 v20, v5 offset:{rnd*128}")
        a("s_waitcnt lgkmcnt(0)")
        a("s_barrier")
        for k in range(4):
            a(f"ds_read_b128 {R(136 + 4*k)}, v21 offset:{rnd*128 + 16*k}")
        a("s_waitcnt lgkmcnt(0)")
        for k in range(4):
            a(f"v_add_f32 v{136+k}, v{136+k}, v{140+k}\nv_add_f32 v{144+k}, v{144+k}, v{148+k}")
        a("v_add_f32 v136, v136, v137\nv_add_f32 v144, v144, v145\nv_add_f32 v138, v138, v139\nv_add_f32 v146, v146, v147")
        a("v_add_f32 v5, v136, v138\nv_add_f32 v6, v144, v146")
        ln_stats(5, 6, 8, 140, 141)
    wg_stats(0)
    for k in (0, 2):
        ln_apply(XR + k, XR + k + 1, 8, 140, 141)
        a(f"v_mul_f32 v{XR+k}, v{XR+k}, v{CB+k}\nv_mul_f32 v{XR+k+1}, v{XR+k+1}, v{CB+k+1}")
        rnd2(XR + k, XR + k + 1, 8)
        a(f"v_add_f32 v{XR+k}, v{XR+k}, v{SB+k}\nv_add_f32 v{XR+k+1}, v{XR+k+1}, v{SB+k+1}")
        rnd2(XR + k, XR + k + 1, 8)
    wg_stats(1)
    for k in (0, 2):
        ln_apply(XR + k, XR + k + 1, 8, 140, 141, last_round=False)
    a(f"v_cvt_pk_bf16_f32 v30, v{XR}, v{XR+1}\nv_cvt_pk_bf16_f32 v31, v{XR+2}, v{XR+3}")
    a(f"ds_write_b64 v22, {R(30, 2)}")
    a("s_waitcnt lgkmcnt(0)")
    a("s_barrier")
    for s in range(8):
        a(f"ds_read_b128 {R(136 + 4*s)}, v23 offset:{s*64}")
    for s in range(8):
        a(f"s_waitcnt lgkmcnt({7-s})")
        c = "0" if s == 0 else R(32)
        a(f"v_mfma_f32_16x16x32_bf16 {R(32)}, {R(W1O + s*4)}, {R(136 + 4*s)}, {c}")
    for r in range(4):
        tag_trunc(32 + r, 32 + r)
    a(f"s_mov_b32 exec_lo, 0x00030003\ns_mov_b32 exec_hi, 0x00030003")
    a(f"buffer_store_dwordx4 {R(32)}, v24, {S4(rWS)}, s91 offen")
    a(FULL)
    stamp(22)

    def hp_wt():
        a(f"s_mov_b32 exec_lo, 0x00030003\ns_mov_b32 exec_hi, 0x00030003")
        a(f"buffer_store_dwordx4 {R(32)}, v24, {S4(rWS)}, s90 offen sc1")

    def ldHP():
        a(f"s_add_u32 s9, s89, s{sDU}")
        a(f"buffer_load_dwordx4 {R(136)}, v25, {S4(rWS)}, s9 offen sc1")
    dual_exchange(hp_wt, ldHP, lambda: check_regs(range(136, 140)))
    stamp(23)
    red4(136, ())
    rnd1(136, 136)
    a(f"v_add_f32 v136, v136, v{B1V}")
    rnd1(136, 136)
    a("v_mul_f32 v137, v136, v136")
    a("v_mul_f32 v137, 0x3d372713, v137")
    a("v_fma_f32 v137, v137, v136, v136")
    a("v_mul_f32 v137, 0xc0135761, v137")
    a("v_exp_f32 v137, v137")
    a("v_add_f32 v137, 1.0, v137")
    a("v_rcp_f32 v137, v137")
    a("v_mul_f32 v136, v136, v137")
    a("v_cvt_pk_bf16_f32 v136, v136, v136")
    a("ds_write_b16 v26, v136")
    a("s_waitcnt lgkmcnt(0)")
    for d in range(8):
        m16 = (0x11 << (d & 3)) << (8 * (d >> 2))
        m32 = m16 | (m16 << 16)
        a(f"s_mov_b32 exec_lo, {m32:#x}\ns_mov_b32 exec_hi, {m32:#x}")
        a(f"ds_read_b128 {R(AD + 4*d)}, v27")
    a("s_mov_b64 exec, -1")
    for d in range(8):
        a(f"s_waitcnt lgkmcnt({7-d})")
        c = "0" if d == 0 else R(136)
        a(f"v_mfma_f32_16x16x32_bf16 {R(136)}, {R(AD + 4*d)}, {R(W2O + 4*d)}, {c}")
    for r in range(4):
        tag_trunc(136 + r, 136 + r)
    a(f"buffer_store_dwordx4 {R(136)}, v28, {S4(rWS)}, s14 offen sc1")
    stamp(11)

    a("L_fin:")
    if stamps and dbgstamps:
        stamp(15)
        a("s_load_dwordx2 s[10:11], s[0:1], 104")
        a("s_waitcnt lgkmcnt(0)")
        srd(rT0, 10, 256)
        a(f"v_lshlrev_b32 v4, 2, v{vLANE}")
        a(f"v_not_b32 v5, v{vST}")
        a(f"v_cmp_eq_u32 vcc, 0, v{vLANE}")
        a(f"v_cndmask_b32 v5, v{vST}, v5, vcc")
        a(f"s_and_b32 s9, s{sIDX}, 1")
        a("s_lshl_b32 s9, s9, 6")
        a("s_mov_b64 exec, 0xffff")
        a(f"buffer_atomic_umax v5, v4, {S4(rT0)}, s9 offen sc1")
    elif stamps:
        stamp(15)
        a(f"s_mul_i32 s9, s2, {NWAVES}")
        a(f"s_add_u32 s9, s9, s{sW12}")
        a(f"s_lshl_b32 s9, s9, 7")
        a(f"s_add_u32 s9, s9, {STAMP}")
        a(f"v_lshlrev_b32 v4, 2, v{vLANE}")
        a("s_mov_b32 exec_hi, 0")
        a(f"buffer_store_dword v{vST}, v4, {S4(rWS)}, s9 offen")
    a("L_end:")
    a("s_endpgm")
    a('.section .rodata,"a"')
    a(".p2align 6")
    a(f".amdhsa_kernel {NAME}_kernel")
    for l in (".amdhsa_next_free_vgpr 168", ".amdhsa_next_free_sgpr 102", ".amdhsa_accum_offset 168",
              ".amdhsa_group_segment_fixed_size 0", ".amdhsa_kernarg_size 120", ".amdhsa_user_sgpr_count 2",
              ".amdhsa_user_sgpr_kernarg_segment_ptr 1", ".amdhsa_system_sgpr_workgroup_id_x 1",
              ".amdhsa_float_denorm_mode_32 3"):
        a(l)
    a(".end_amdhsa_kernel")
    return pre + a.finish()


if __name__ == "__main__":
    out = sys.argv[1] if len(sys.argv) > 1 else f"cdna_kernels/{NAME}.s"
    kw = {}
    for arg in sys.argv[2:]:
        k, v = arg.split("=")
        kw[k] = eval(v)
    open(out, "w").write(gen(**kw))
```

```python
import sys
from asmlib import Asm, Vm

NAME = "adaLN_cond__gqa_block_cached__mixer_channel_mlp__decode"

EPOCH = 0
ML = 0x1000
X1 = 0x9000
MODP = 0x10000
QP = 0x30000
MA = 0xB0000
HP = 0xE0000
XP = 0x100000
DUAL = 0x90000
OF = 0x70000
QFN = 0x80000
XS = 0x88000
XID = 0x78000
OP = 0x200000
YP = 0x300000
STAMP = 0x400000
WS_BYTES = 0x10000000
WT = 0
OC = 0x10000
QB = 0x18400
HB = 0x18C00
ZB = 0x18E00
MX = 0x19000
LX = 0x19100
OB = 0x19800
ST = 0x19600
YB = 0x19800
RED = 0x1A800
H1B = 0x1B000
QFL = 0x1B400
XB = 0x1B480
FB = 0x1B800
LDS_BYTES = 0x1BC00
TAGM = 0x3ff
NWAVES = 12

sWAVE, sL, sXCD, sIDX, sAI, sTAG = 3, 4, 5, 6, 7, 8
pX, pK, pV, pWQ, pWO, pW1, pB1, pW2, pB2, pC, pWM, pOUT, pWS = 16, 18, 20, 22, 24, 28, 30, 32, 34, 36, 38, 40, 42
rK, rV, rWS, rT0, rT1, rT2, rT3 = 44, 48, 52, 56, 60, 64, 68
sDU = 72
sSELLO, sSELHI, sHI, sLOG2E, sSCALE, sSPIN, sEP, sTM = 76, 77, 78, 79, 80, 81, 82, 83
sEX = 84
sBI = 86
sKV = 87
sW12 = 100
sLOC = 101
vLANE, vOK, vOV = 1, 2, 3
vBAD, vTAG, vST = 12, 13, 14


def gen(stamps=False, dbgstamps=False, codewarm=True, spin=200000, sleep=1, nt="nt", w1_early=True,
        thr=3, thr2=5, thrq=0, thrb=0, thrv=0, notail=False, quiet=0, ptpol='sc1', agate=1, xdelay=20, skip='', hpt=1, prew=0, b2stage=1, h4delay=0, pretouch=0, noloc=0, noma=0, bdelay=0, adelay=0, nomodfin=0, pure=0, klin=0, vearly=0, fake=0, attdma=True, thrw=0, cslp=1, w1pol=None):
    a = Asm()
    hdr = open(f"cdna_kernels/{NAME}.s.ref").read().split("\n")
    head = [l for l in hdr if l.startswith(";") and "@launch" not in l]
    pre = "\n".join(head) + f"\n; @launch grid=(256,1,1) block=({64*NWAVES},1,1) lds={LDS_BYTES}\n"
    a('.amdgcn_target "amdgcn-amd-amdhsa--gfx950"')
    a(".text")
    a(f".globl {NAME}_kernel")
    a(".p2align 8")
    a(f".type {NAME}_kernel,@function")
    a(f"{NAME}_kernel:")

    def srd(d, p, n):
        a(f"s_mov_b32 s{d}, s{p}\ns_mov_b32 s{d+1}, s{p+1}\ns_mov_b32 s{d+2}, {n}\ns_mov_b32 s{d+3}, 0x20000")

    def R(b, n=4):
        return f"v[{b}:{b+n-1}]"

    def S4(b):
        return f"s[{b}:{b+3}]"

    def stamp(k):
        if stamps == 1 or (stamps == 2 and k in (8, 15)):
            a(f"s_memrealtime s[96:97]\ns_waitcnt lgkmcnt(0)\nv_writelane_b32 v{vST}, s96, {k}")

    def lo(d, p):
        a(f"v_lshlrev_b32 v{d}, 16, v{p}")

    def hi(d, p):
        a(f"v_and_b32 v{d}, s{sHI}, v{p}")

    def rnd1(d, s):
        a(f"v_cvt_pk_bf16_f32 v{d}, v{s}, v{s}")
        lo(d, d)

    def rnd2(x, y, t):
        a(f"v_cvt_pk_bf16_f32 v{t}, v{x}, v{y}")
        lo(x, t)
        hi(y, t)

    def tag_round(d, s):
        a(f"v_add_u32 v{d}, 0x200, v{s}")
        a(f"v_bfi_b32 v{d}, s{sTM}, v{vTAG}, v{d}")

    def tag_trunc(d, s):
        a(f"v_bfi_b32 v{d}, s{sTM}, v{vTAG}, v{s}")

    def check_regs(regs, first=True):
        for r in regs:
            a(f"v_xor_b32 v{r}, v{vTAG}, v{r}")
        regs = list(regs)
        if first:
            a(f"v_or_b32 v{vBAD}, v{regs[0]}, v{regs[1]}")
            regs = regs[2:]
        for i in range(0, len(regs), 2):
            a(f"v_or3_b32 v{vBAD}, v{vBAD}, v{regs[i]}, v{regs[i+1]}")

    def dpp_add(d, s_rot, s1, ror):
        a(f"v_add_f32_dpp v{d}, v{s_rot}, v{s1} row_ror:{ror} row_mask:0xf bank_mask:0xf")

    def dpp_max(d, s_rot, s1, ror):
        a(f"v_max_f32_dpp v{d}, v{s_rot}, v{s1} row_ror:{ror} row_mask:0xf bank_mask:0xf")

    def allred(x, t, op, which):
        for w in which:
            a(f"v_mov_b32 v{t}, v{x}")
            a(f"v_permlane{w}_swap_b32 v{x}, v{t}")
            a(f"{op} v{x}, v{x}, v{t}")

    def red4(b, rors):
        a(f"v_permlane32_swap_b32 v{b}, v{b+1}")
        a(f"v_permlane32_swap_b32 v{b+2}, v{b+3}")
        a(f"v_add_f32 v{b}, v{b}, v{b+1}")
        a(f"v_add_f32 v{b+2}, v{b+2}, v{b+3}")
        a(f"v_permlane16_swap_b32 v{b}, v{b+2}")
        a(f"v_add_f32 v{b}, v{b}, v{b+2}")
        for r in rors:
            dpp_add(b, b, b, r)

    def perm_operand(dst, blk, d):
        sel = sSELHI if d & 1 else sSELLO
        for k in range(4):
            a(f"v_perm_b32 v{dst+k}, v{blk + (2*k+1)*4 + (d >> 1)}, v{blk + 2*k*4 + (d >> 1)}, s{sel}")

    def ln_stats(su, sq, t, mb, rs):
        a(f"v_mul_f32 v{su}, 0x3a800000, v{su}")
        a(f"v_mul_f32 v{sq}, 0x3a800000, v{sq}")
        a(f"v_fma_f32 v{sq}, -v{su}, v{su}, v{sq}")
        a(f"v_max_f32 v{sq}, 0, v{sq}")
        a(f"v_cvt_pk_bf16_f32 v{t}, v{su}, v{sq}")
        lo(mb, t)
        hi(sq, t)
        a(f"v_add_f32 v{sq}, 0x3727c5ac, v{sq}")
        rnd1(sq, sq)
        a(f"v_sqrt_f32 v{sq}, v{sq}")
        rnd1(sq, sq)
        a(f"v_rcp_f32 v{rs}, v{sq}")

    def ln_apply(x, y, t, mb, rs, last_round=True):
        a(f"v_sub_f32 v{x}, v{x}, v{mb}")
        a(f"v_sub_f32 v{y}, v{y}, v{mb}")
        rnd2(x, y, t)
        a(f"v_mul_f32 v{x}, v{x}, v{rs}")
        a(f"v_mul_f32 v{y}, v{y}, v{rs}")
        if last_round:
            rnd2(x, y, t)

    def check2(pairs_regs):
        first = True
        for b in pairs_regs:
            a(f"v_xor_b32 v{b+1}, s{sEP}, v{b+1}")
            a(f"v_xor_b32 v{b+3}, s{sEP}, v{b+3}")
            if first:
                a(f"v_or_b32 v{vBAD}, v{b+1}, v{b+3}")
                first = False
            else:
                a(f"v_or3_b32 v{vBAD}, v{vBAD}, v{b+1}, v{b+3}")

    def pollx(loads, check, f2=False, dual=False, pre_issued=False, between=None, slp=None, name=None):
        if name and name in skip:
            a("s_waitcnt vmcnt(0)")
            a("s_mov_b64 exec, -1")
            return
        lp, dn, ck = a.label("Lpoll"), a.label("Ldone"), a.label("Lchk")
        a(f"s_mov_b32 s{sSPIN}, {0 if (fake and slp in (cslp, 16)) else spin | 7}")
        if pre_issued:
            a(f"s_branch {ck}")
        a(f"{lp}:")
        if dual:
            a(f"s_and_b32 s{sDU}, s{sSPIN}, 7")
            a(f"s_cselect_b32 s{sDU}, {DUAL}, 0")
        loads()
        a(f"{ck}:")
        a("s_waitcnt vmcnt(0)")
        check()
        if not f2:
            a(f"v_and_b32 v{vBAD}, s{sTM}, v{vBAD}")
        a(f"v_cmp_ne_u32 vcc, 0, v{vBAD}")
        a(f"s_cbranch_vccz {dn}")
        a("s_mov_b64 exec, vcc")
        sl = sleep if slp is None else slp
        if sl:
            a(f"s_sleep {sl}")
        a(f"s_sub_u32 s{sSPIN}, s{sSPIN}, 1")
        a(f"s_cbranch_scc0 {lp}")
        a(f"{dn}:")
        a("s_mov_b64 exec, -1")

    def dual_exchange(store_wt, loads, check):
        l1, ok, dn = a.label("Lfx"), a.label("Lfxok"), a.label("Lfxdn")
        a(f"s_mov_b32 s{sDU}, {DUAL}")
        a(f"s_mov_b32 s{sSPIN}, 24")
        a(f"{l1}:")
        loads()
        a("s_waitcnt vmcnt(0)")
        check()
        a(f"v_and_b32 v{vBAD}, s{sTM}, v{vBAD}")
        a(f"v_cmp_ne_u32 vcc, 0, v{vBAD}")
        a(f"s_cbranch_vccz {ok}")
        a("s_mov_b64 exec, vcc")
        a(f"s_sub_u32 s{sSPIN}, s{sSPIN}, 1")
        a(f"s_cbranch_scc0 {l1}")
        a(f"s_mov_b64 s[{sEX}:{sEX+1}], exec")
        store_wt()
        a(f"s_mov_b64 exec, s[{sEX}:{sEX+1}]")
        pollx(loads, check, dual=True)
        a(f"s_branch {dn}")
        a(f"{ok}:")
        store_wt()
        a("s_mov_b64 exec, -1")
        a(f"{dn}:")

    def store_grp(op, data, vaddr, soff):
        l1, l2 = a.label("Lsg"), a.label("Lsgd")
        a(f"s_cmp_eq_u32 s{sLOC}, 1")
        a(f"s_cbranch_scc1 {l1}")
        a(f"{op} {data}, v{vaddr}, {S4(rWS)}, s{soff} offen sc1")
        a(f"s_branch {l2}")
        a(f"{l1}:")
        a(f"{op} {data}, v{vaddr}, {S4(rWS)}, s{soff} offen")
        a(f"{l2}:")

    def prewrite(t, nl_log2, bshift, soff):
        if not prew:
            return
        for k in range(4):
            a(f"v_xor_b32 v{t+k}, 1, v{vTAG}")
        a(f"v_lshrrev_b32 v{t+4}, {nl_log2}, v{vLANE}")
        a(f"v_lshlrev_b32 v{t+4}, {bshift-4}, v{t+4}")
        a(f"v_and_or_b32 v{t+4}, v{vLANE}, {(1 << nl_log2) - 1}, v{t+4}")
        a(f"v_lshlrev_b32 v{t+4}, 4, v{t+4}")
        n = 2 << nl_log2
        a(f"s_mov_b64 exec, {(1 << n) - 1:#x}" if n < 32 else "s_mov_b32 exec_hi, 0")
        a(f"buffer_store_dwordx4 {R(t)}, v{t+4}, {S4(rWS)}, s{soff} offen")
        a("s_mov_b64 exec, -1")

    def store_dual(op, data, vaddr, soff, off=0):
        a(f"s_add_u32 s9, s{soff}, {DUAL}")
        a(f"{op} {data}, v{vaddr}, {S4(rWS)}, s9 offen offset:{off}")
        a(f"{op} {data}, v{vaddr}, {S4(rWS)}, s{soff} offen offset:{off} sc1")

    def kperm(d, t):
        a(f"v_bfe_u32 v{d}, v{vLANE}, 4, 1")
        a(f"v_lshrrev_b32 v{t}, 5, v{vLANE}")
        a(f"v_lshl_or_b32 v{d}, v{d}, 1, v{t}")

    MASK8 = "s_mov_b32 exec_lo, 0x00ff00ff\ns_mov_b32 exec_hi, 0x00ff00ff"
    FULL = "s_mov_b64 exec, -1"

    a("s_cmp_ge_u32 s2, 256")
    a("s_cbranch_scc1 L_end")
    a("s_load_dwordx16 s[16:31], s[0:1], 0")
    a("s_load_dwordx8 s[32:39], s[0:1], 64")
    a("s_load_dwordx2 s[40:41], s[0:1], 96")
    a("s_load_dwordx2 s[42:43], s[0:1], 112")
    if stamps:
        a(f"v_mov_b32 v{vST}, 0")
        a("s_memrealtime s[98:99]")
    a(f"v_lshrrev_b32 v4, 6, v0")
    a(f"v_and_b32 v{vLANE}, 63, v0")
    a(f"v_readfirstlane_b32 s{sW12}, v4")
    a(f"s_and_b32 s{sXCD}, s2, 7")
    a(f"s_lshr_b32 s{sIDX}, s2, 3")
    a(f"s_lshl_b32 s{sL}, s{sXCD}, 5")
    a(f"s_add_u32 s{sL}, s{sL}, s{sIDX}")
    a(f"s_lshr_b32 s{sAI}, s{sIDX}, 1")
    a(f"s_lshr_b32 s9, s{sAI}, 2")
    a(f"s_lshl_b32 s9, s9, 3")
    a(f"s_add_u32 s9, s9, s{sXCD}")
    a(f"s_lshl_b32 s{sBI}, s9, 2")
    a(f"s_and_b32 s9, s{sAI}, 3")
    a(f"s_add_u32 s{sBI}, s{sBI}, s9")
    a(f"s_mov_b32 s{sSELLO}, 0x05040100")
    a(f"s_mov_b32 s{sSELHI}, 0x07060302")
    a(f"s_mov_b32 s{sHI}, 0xffff0000")
    a(f"s_mov_b32 s{sLOG2E}, 0x3fb8aa3b")
    a(f"s_mov_b32 s{sSCALE}, 0x3db504f3")
    a(f"s_mov_b32 s{sTM}, {TAGM}")
    a(f"v_lshrrev_b32 v7, 3, v{vLANE}")
    a(f"s_sub_u32 s{sWAVE}, s{sW12}, 4")
    a("s_waitcnt lgkmcnt(0)")
    if stamps:
        a(f"v_writelane_b32 v{vST}, s98, 0")
    a(f"s_load_dword s{sEP}, s[{pWS}:{pWS+1}], {EPOCH}")

    def get_tag():
        a("s_waitcnt lgkmcnt(0)")
        a(f"s_add_u32 s{sEP}, s{sEP}, 1")
        a(f"s_and_b32 s{sTAG}, s{sEP}, {TAGM}")
        a(f"v_mov_b32 v{vTAG}, s{sTAG}")

    def wait_q():
        lp, dn = a.label("Lwq"), a.label("Lwqd")
        a(f"v_mov_b32 v4, {QFL}")
        a(f"s_mov_b32 s{sSPIN}, {spin*20}")
        a(f"{lp}:")
        a("ds_read_b32 v5, v4")
        a("s_waitcnt lgkmcnt(0)")
        a("v_cmp_ne_u32 vcc, 0, v5")
        a(f"s_cbranch_vccnz {dn}")
        a("s_sleep 1")
        a(f"s_sub_u32 s{sSPIN}, s{sSPIN}, 1")
        a(f"s_cbranch_scc0 {lp}")
        a(f"{dn}:")

    def wait_n(T):
        if T:
            a(f"s_waitcnt vmcnt({T-1})")

    def mod_tile(ngrp, srow0, scol, T, after_issue):
        ACC, PT, W = 32, 64, 72
        vm = Vm(a)
        srd(rT0, pWM, 12582912)
        srd(rT1, pC, 4096)
        a(f"s_mul_i32 s10, s{srow0}, 12288")
        a(f"s_add_u32 s10, s10, s{scol}")
        a(f"s_mov_b32 s9, {8*12288}")
        a(f"v_mul_lo_u32 v8, v7, s9")
        a(f"v_and_b32 v9, 7, v{vLANE}")
        a(f"v_lshl_add_u32 v8, v9, 4, v8")
        a(f"v_bfe_u32 v10, v{vLANE}, 2, 1")
        a(f"v_lshlrev_b32 v10, 11, v10")
        a(f"v_lshl_add_u32 v10, v7, 4, v10")
        a(f"s_lshl_b32 s11, s{srow0}, 1")
        for q4 in range(ngrp):
            tc = vm.issue(f"buffer_load_dwordx4 {R(ACC + q4*4)}, v10, {S4(rT1)}, s11 offen offset:{q4*128}")
        toks = {}

        def grp(q4):
            for e in range(8):
                a(f"s_add_u32 s9, s10, {(64*q4+e)*12288}")
                wait_n(T)
                toks[q4] = vm.issue(f"buffer_load_dwordx4 {R(W + (q4 % 3)*32 + e*4)}, v8, {S4(rT0)}, s9 offen {nt}")
        for q4 in range(min(ngrp, 3)):
            grp(q4)
        after_issue()
        if pure == 1:
            if ngrp == 4:
                vm.wait(toks[0])
                grp(3)
            a("s_waitcnt vmcnt(0)")
            a("s_branch L_fin")
        vm.wait(tc)
        a(f"s_mov_b32 s9, 0xbfb8aa3b")
        for i in range(4 * ngrp):
            lo(4, ACC + i)
            hi(5, ACC + i)
            a(f"v_mul_f32 v6, s9, v4\nv_mul_f32 v11, s9, v5")
            a(f"v_exp_f32 v6, v6\nv_exp_f32 v11, v11")
            a(f"v_add_f32 v6, 1.0, v6\nv_add_f32 v11, 1.0, v11")
            a(f"v_rcp_f32 v6, v6\nv_rcp_f32 v11, v11")
            a(f"v_mul_f32 v4, v4, v6\nv_mul_f32 v5, v5, v11")
            a(f"v_cvt_pk_bf16_f32 v{16+i}, v4, v5")
        a(f"v_and_b32 v11, 3, v{vLANE}")
        a(f"v_bfe_u32 v10, v{vLANE}, 4, 1")
        a(f"v_lshl_add_u32 v9, v10, 2, v11")
        a(f"v_lshrrev_b32 v10, 5, v{vLANE}")
        a(f"v_lshl_add_u32 v9, v9, 1, v10")
        a(f"v_bfe_u32 v10, v{vLANE}, 2, 1")
        for q4 in range(ngrp):
            vm.wait(toks[q4])
            for d in range(8):
                t = PT + (d & 1) * 4
                perm_operand(t, W + (q4 % 3) * 32, d)
                c = "0" if q4 == 0 else R(ACC + d * 4)
                a(f"v_mfma_f32_16x16x32_bf16 {R(ACC + d*4)}, {R(t)}, {R(16 + q4*4)}, {c}")
            if q4 + 3 < ngrp:
                grp(q4 + 3)
        O = 72
        for d in range(4):
            for r in range(4):
                a(f"v_permlane32_swap_b32 v{ACC + d*4 + r}, v{ACC + (d+4)*4 + r}")
        for d in range(4):
            for r in range(4):
                dpp_add(O + r * 4 + d, ACC + (d + 4) * 4 + r, ACC + d * 4 + r, 8)
        for r in range(1, 4):
            a(f"v_cmp_eq_u32 vcc, {r}, v11")
            for d in range(4):
                a(f"v_cndmask_b32 v{O+d}, v{O+d}, v{O + r*4 + d}, vcc")

    def tag4(d):
        a(f"v_add_u32 v{d}, 8, v{d}")
        a(f"v_bfi_b32 v{d}, 15, v{vTAG}, v{d}")

    def check4(regs):
        regs = list(regs)
        for r in regs:
            a(f"v_xor_b32 v{r}, v15, v{r}")
        a(f"v_or_b32 v{vBAD}, v{regs[0]}, v{regs[1]}")
        for i in range(2, len(regs), 2):
            a(f"v_or3_b32 v{vBAD}, v{vBAD}, v{regs[i]}, v{regs[i+1]}")
        a(f"v_and_b32 v{vBAD}, 15, v{vBAD}")
        a(f"v_or_b32_dpp v{vBAD}, v{vBAD}, v{vBAD} quad_perm:[1,0,3,2] row_mask:0xf bank_mask:0xf")
        a(f"v_or_b32_dpp v{vBAD}, v{vBAD}, v{vBAD} quad_perm:[2,3,0,1] row_mask:0xf bank_mask:0xf")
        a(f"v_or_b32_dpp v{vBAD}, v{vBAD}, v{vBAD} row_half_mirror row_mask:0xf bank_mask:0xf")

    def lds_wait(addr, val):
        lp, dn = a.label("Lw"), a.label("Lwd")
        a(f"v_mov_b32 v4, {addr}")
        a(f"s_mov_b32 s{sSPIN}, {spin*20}")
        a(f"{lp}:")
        a("ds_read_b32 v5, v4")
        a("s_waitcnt lgkmcnt(0)")
        a(f"v_cmp_eq_u32 vcc, {val}, v5")
        a(f"s_cbranch_vccnz {dn}")
        a("s_sleep 1")
        a(f"s_sub_u32 s{sSPIN}, s{sSPIN}, 1")
        a(f"s_cbranch_scc0 {lp}")
        a(f"{dn}:")

    def get_loc():
        lp, dn = a.label("Lw"), a.label("Lwd")
        a(f"v_mov_b32 v4, {QFL+8}")
        a(f"s_mov_b32 s{sSPIN}, {spin*20}")
        a(f"{lp}:")
        a("ds_read_b32 v5, v4")
        a("s_waitcnt lgkmcnt(0)")
        a(f"v_cmp_ne_u32 vcc, 0, v5")
        a(f"s_cbranch_vccnz {dn}")
        a("s_sleep 1")
        a(f"s_sub_u32 s{sSPIN}, s{sSPIN}, 1")
        a(f"s_cbranch_scc0 {lp}")
        a(f"{dn}:")
        a(f"v_readfirstlane_b32 s{sLOC}, v5")

    def publish_moments(M, soff):
        red4(M, ())
        a(f"v_add_f32_dpp v{M}, v{M}, v{M} quad_perm:[1,0,3,2] row_mask:0xf bank_mask:0xf")
        a(f"v_add_f32_dpp v{M}, v{M}, v{M} quad_perm:[2,3,0,1] row_mask:0xf bank_mask:0xf")
        a(f"v_add_f32_dpp v{M}, v{M}, v{M} row_half_mirror row_mask:0xf bank_mask:0xf")
        tag_round(M, M)
        a("s_mov_b32 exec_lo, 0x01010101\ns_mov_b32 exec_hi, 0x01010101")
        a(f"buffer_store_dword v{M}, v{M+4}, {S4(rWS)}, s{soff} offen sc1")
        a(FULL)

    def moment_addr(d, kp, soff, kind):
        a(f"v_bfe_u32 v{d}, v{vLANE}, 3, 1")
        a(f"v_lshl_add_u32 v{d}, v{d}, 2, v{kp}")
        a(f"v_lshlrev_b32 v{d}, 2, v{d}")
        a(f"s_add_u32 s{soff}, s75, {XS + kind*8192}")

    def hopB1():
        a(f"v_and_b32 v15, 15, v{vTAG}")
        a(f"v_lshrrev_b32 v7, 3, v{vLANE}")
        a(f"v_and_b32 v8, 7, v{vLANE}")
        a(f"v_lshlrev_b32 v9, 15, v7")
        a(f"v_lshl_add_u32 v9, v8, 4, v9")
        a(f"s_lshl_b32 s10, s{sL}, 7")
        a(f"s_add_u32 s11, s10, {QFN}")
        a(f"s_add_u32 s10, s10, {QP}")
        kperm(6, 10)
        a(f"v_lshl_add_u32 v10, v8, 2, v6")
        a(f"v_lshlrev_b32 v10, 2, v10")
        get_loc()
        lds_wait(QFL + 4, 2)
        if bdelay:
            a(f"s_sleep {bdelay}")
        pollx(lambda: a(f"buffer_load_dwordx4 {R(32)}, v9, {S4(rWS)}, s10 offen sc1"), lambda: check4(range(32, 36)),
              f2=True, slp=cslp, name='b')
        red4(32, (8,))
        a("v_cvt_pk_bf16_f32 v32, v32, v32")
        a(f"v_bfi_b32 v32, s{sHI}, v32, v{vTAG}")
        a(MASK8)
        store_grp("buffer_store_dword", "v32", 10, 11)
        a(FULL)
        a(f"v_mov_b32 v4, {QFL+4}\nv_mov_b32 v5, 3")
        a("ds_write_b32 v4, v5")
        a("s_waitcnt lgkmcnt(0)")
        stamp(14)
        a("s_branch L_fin")

    def hopB2():
        a(f"v_lshlrev_b32 v9, 4, v{vLANE}")
        a(f"s_lshl_b32 s10, s{sXCD}, 12")
        a(f"s_add_u32 s10, s10, {QFN}")
        lds_wait(QFL + 4, 3)

        def ld():
            for i in range(4):
                a(f"buffer_load_dwordx4 {R(32 + i*4)}, v9, {S4(rWS)}, s10 offen offset:{i*1024} sc1")
        pollx(ld, lambda: check_regs(range(32, 48)), slp=cslp, name='c')
        for e in range(8):
            a(f"v_perm_b32 v{48+e}, v{33+2*e}, v{32+2*e}, s{sSELHI}")
        a(f"v_lshlrev_b32 v9, 3, v{vLANE}")
        a(f"v_add_u32 v9, {QB}, v9")
        for i in range(4):
            a(f"ds_write_b64 v9, {R(48 + 2*i, 2)} offset:{i*512}")
        a(f"v_mov_b32 v4, {QFL}\nv_mov_b32 v5, 2")
        a("s_waitcnt lgkmcnt(0)")
        a("ds_write_b32 v4, v5")
        a("s_waitcnt lgkmcnt(0)")
        stamp(4)
        a("s_branch L_fin")

    def hopB(half):
        a(f"v_and_b32 v15, 15, v{vTAG}")
        a(f"v_lshlrev_b32 v9, 4, v{vLANE}")
        a(f"s_lshl_b32 s10, s{sXCD}, 12")
        a(f"s_add_u32 s10, s10, {QP + half*2048}")
        for i in range(bdelay):
            a("s_sleep 37")

        def ld():
            for p in range(8):
                a(f"s_add_u32 s9, s10, {p*32768}")
                for i in range(2):
                    a(f"buffer_load_dwordx4 {R(32 + p*8 + i*4)}, v9, {S4(rWS)}, s9 offen offset:{i*1024} sc1")
        pollx(ld, lambda: check4(range(32, 96)), f2=True, slp=cslp)
        for st in (32, 16, 8):
            for e in range(st):
                a(f"v_add_f32 v{32+e}, v{32+e}, v{32+st+e}")
        for e in range(4):
            a(f"v_cvt_pk_bf16_f32 v{40+e}, v{32+2*e}, v{33+2*e}")
        a(f"v_lshlrev_b32 v9, 3, v{vLANE}")
        a(f"v_add_u32 v9, {QB + half*1024}, v9")
        for i in range(2):
            a(f"ds_write_b64 v9, {R(40 + 2*i, 2)} offset:{i*512}")
        a(f"v_mov_b32 v4, {QFL}\nv_mov_b32 v5, 1")
        a("s_waitcnt lgkmcnt(0)")
        a("s_mov_b64 exec, 1")
        a("ds_add_u32 v4, v5")
        a(FULL)
        a("s_waitcnt lgkmcnt(0)")
        stamp(4)
        a("s_branch L_fin")

    def f2_pack(src, dst):
        for k in range(4):
            a(f"v_mov_b32 v{dst+2*k}, v{src+k}")
            a(f"v_mov_b32 v{dst+2*k+1}, s{sEP}")

    def consumer_ids():
        a(f"s_lshr_b32 s12, s{sAI}, 2")
        a(f"s_and_b32 s13, s{sAI}, 3")
        a(f"s_lshl_b32 s13, s13, 5")
        a(f"s_lshl_b32 s9, s{sXCD}, 7")
        a(f"s_add_u32 s13, s13, s9")
        a(f"s_lshl_b32 s75, s12, 12")
        a(f"s_lshl_b32 s9, s13, 2")
        a(f"s_add_u32 s75, s75, s9")

    def w1_dma(vm, T):
        srd(rT0, pW1, 7340032)
        a(f"v_lshrrev_b32 v8, 4, v{vLANE}")
        a(f"v_mul_u32_u24 v8, 7168, v8")
        a(f"v_and_b32 v9, 15, v{vLANE}")
        a(f"v_lshl_add_u32 v8, v9, 4, v8")
        a(f"s_and_b32 s10, s{sBI}, 3")
        a(f"s_lshl_b32 s10, s10, 3")
        a(f"s_add_u32 s10, s10, s{sWAVE}")
        a(f"s_mul_i32 s10, s10, {32*7168}")
        a(f"s_lshr_b32 s11, s{sBI}, 2")
        a(f"s_lshl_b32 s11, s11, 8")
        a(f"s_add_u32 s10, s10, s11")
        a(f"s_lshl_b32 s11, s{sWAVE}, 13")
        t = None
        for i in range(8):
            a(f"s_add_u32 m0, s11, {WT + i*1024}")
            a(f"s_add_u32 s9, s10, {4*i*7168}")
            wait_n(T)
            t = vm.issue(f"buffer_load_dwordx4 v8, {S4(rT0)}, s9 offen {nt} lds")
        return t

    a(f"s_cmp_eq_u32 s{sW12}, 1")
    a("s_cbranch_scc1 L_moda")
    srd(rWS, pWS, WS_BYTES)
    a(f"s_cmp_ge_u32 s{sW12}, 4")
    a("s_cbranch_scc1 L_att")
    a(f"s_cmp_eq_u32 s{sW12}, 0")
    a("s_cbranch_scc1 L_chain")
    a(f"s_cmp_eq_u32 s{sW12}, 2")
    a("s_cbranch_scc1 L_red")

    if codewarm:
        lw = a.label("Lnowarm")
        a(f"s_cmp_lt_u32 s{sIDX}, 30")
        a(f"s_cbranch_scc1 {lw}")
        a("s_getpc_b64 s[10:11]")
        a("L_pc0:")
        a(f"v_lshlrev_b32 v8, 4, v{vLANE}")
        a(f"s_mov_b32 s9, 0")
        lp = a.label("Lwarm")
        a(f"{lp}:")
        a(f"v_min_u32 v9, L_end-L_pc0-16, v8")
        a(f"global_load_dwordx4 {R(64)}, v9, s[10:11]")
        a(f"v_add_u32 v8, 1024, v8")
        a(f"s_add_u32 s9, s9, 1024")
        a(f"s_cmp_lt_u32 s9, L_end-L_pc0")
        a(f"s_cbranch_scc1 {lp}")
        a(f"{lw}:")
    a("s_barrier")
    get_tag()
    if quiet & 1:
        lds_wait(QFL, 2)
    a(f"s_and_b32 s12, s{sIDX}, 3")
    a(f"s_lshl_b32 s13, s12, 8")
    a(f"s_lshr_b32 s14, s{sIDX}, 3")
    a(f"s_lshl_b32 s14, s14, 4")
    a(f"s_lshl_b32 s9, s{sXCD}, 1")
    a(f"s_add_u32 s14, s14, s9")
    a(f"s_bfe_u32 s9, s{sIDX}, 0x10002")
    a(f"s_add_u32 s14, s14, s9")
    a(f"s_lshl_b32 s88, s14, 7")
    a(f"s_add_u32 s88, s88, 4096")
    a(f"s_lshl_b32 s15, s12, 15")
    a(f"s_lshl_b32 s9, s14, 8")
    a(f"s_add_u32 s15, s15, s9")
    a(f"s_add_u32 s15, s15, {MODP}")
    prewrite(64, 4, 14, 15)
    mod_tile(4, 13, 88, thrb, lambda: None)
    for d in range(4):
        tag_round(72 + d, 72 + d)
    a(f"v_lshlrev_b32 v9, 4, v9")
    a(f"v_lshl_add_u32 v9, v10, 14, v9")
    get_loc()
    a(MASK8)
    store_grp("buffer_store_dwordx4", R(72), 9, 15)
    a(FULL)
    stamp(16)
    if nomodfin:
        a("s_branch L_fin")
    a(f"s_bitcmp1_b32 s{sIDX}, 0")
    a("s_cbranch_scc1 L_fin")
    a(f"s_cmp_ge_u32 s{sAI}, 8")
    a("s_cbranch_scc1 L_fin")
    GA, XV, B2V = 32, 48, 49
    lds_wait(QFL, 2)
    consumer_ids()
    srd(rT0, pX, 4096)
    srd(rT1, pB2, 2048)
    kperm(4, 5)
    a(f"v_and_b32 v8, 7, v{vLANE}")
    a(f"v_lshl_add_u32 v11, v8, 2, v4")
    a(f"v_lshlrev_b32 v5, 1, v11")
    a(f"s_lshr_b32 s9, s75, 1")
    a(f"buffer_load_ushort v{XV}, v5, {S4(rT0)}, s9 offen")
    a(f"s_lshl_b32 s9, s13, 1")
    a(f"buffer_load_ushort v{B2V}, v5, {S4(rT1)}, s9 offen")
    for r in range(16):
        a(f"v_mov_b32 v{GA+r}, 0")
    a(f"v_lshlrev_b32 v10, 15, v7")
    a(f"v_lshl_add_u32 v10, v8, 4, v10")
    a(f"s_lshl_b32 s14, s12, 14")
    a(f"s_lshl_b32 s9, s13, 2")
    a(f"s_add_u32 s14, s14, s9")

    def gloads():
        for k in range(4):
            a(f"s_add_u32 s9, s14, {MODP + k*4096}")
            a(f"buffer_load_dwordx4 {R(GA + 4*k)}, v10, {S4(rWS)}, s9 offen sc1")
    a("s_mov_b32 exec_hi, 0")
    pollx(gloads, lambda: check_regs(range(GA, GA + 16)), slp=16, name='m')
    for k in range(4):
        red4(GA + 4 * k, (8,))
    rnd2(GA, GA + 12, 5)
    rnd2(GA + 4, GA + 8, 5)
    a(f"v_add_f32 v{GA+8}, 1.0, v{GA+8}")
    rnd1(GA + 8, GA + 8)
    a(f"v_or_b32 v{GA+4}, v{vTAG}, v{GA+4}\nv_or_b32 v{GA+8}, v{vTAG}, v{GA+8}")
    a(f"v_lshlrev_b32 v9, 2, v11")
    a(f"s_add_u32 s9, s75, {X1 + 8192}")
    a(f"s_add_u32 s10, s75, {X1 + 16384}")
    a(MASK8)
    a(f"buffer_store_dword v{GA+4}, v9, {S4(rWS)}, s9 offen sc1")
    a(f"buffer_store_dword v{GA+8}, v9, {S4(rWS)}, s10 offen sc1")
    a(FULL)
    lo(XV, XV)
    lo(B2V, B2V)
    a(f"v_add_u32 v5, {XB}, v9")
    a(f"ds_write_b32 v5, v{GA+12} offset:128")
    a(f"ds_write_b32 v5, v{B2V} offset:256")
    a(f"ds_write_b32 v5, v{GA} offset:384")
    a(f"ds_write_b32 v5, v{XV} offset:512")
    a(f"v_xor_b32 v{GA+4}, v{vTAG}, v{GA+4}\nv_xor_b32 v{GA+8}, v{vTAG}, v{GA+8}")
    a(f"ds_write_b32 v5, v{GA+4}")
    a(f"ds_write_b32 v5, v{GA+8} offset:640")
    moment_addr(56, 4, 10, 1)
    a(f"v_mov_b32 v52, v{GA+8}")
    a(f"v_mul_f32 v53, v{GA+8}, v{GA+8}")
    a(f"v_mul_f32 v54, v{GA+8}, v{GA+4}")
    a(f"v_mov_b32 v55, v{GA+4}")
    a("s_mov_b32 exec_lo, 0xff00ff00\ns_mov_b32 exec_hi, 0xff00ff00")
    a(f"v_mul_f32 v52, v{GA+4}, v{GA+4}")
    a("v_mov_b32 v53, 0\nv_mov_b32 v54, 0\nv_mov_b32 v55, 0")
    a(FULL)
    publish_moments(52, 10)
    a("s_waitcnt lgkmcnt(0)")
    a("s_branch L_fin")

    a("L_moda:")
    a("s_setprio 3")
    a(f"s_lshr_b32 s12, s{sIDX}, 2")
    a(f"s_lshl_b32 s13, s12, 7")
    a(f"s_bfe_u32 s14, s{sIDX}, 0x10001")
    a(f"s_and_b32 s15, s{sIDX}, 1")
    a(f"s_lshl_b32 s88, s14, 11")
    a(f"s_lshl_b32 s9, s{sXCD}, 8")
    a(f"s_add_u32 s88, s88, s9")
    a(f"s_lshl_b32 s9, s15, 7")
    a(f"s_add_u32 s88, s88, s9")

    def after_a():
        a("s_barrier")
        srd(rWS, pWS, WS_BYTES)
        get_tag()
        a(f"s_lshl_b32 s13, s{sXCD}, 14")
        a(f"s_lshl_b32 s9, s12, 11")
        a(f"s_add_u32 s13, s13, s9")
        a(f"s_lshl_b32 s9, s14, 10")
        a(f"s_add_u32 s13, s13, s9")
        a(f"s_lshl_b32 s9, s15, 8")
        a(f"s_add_u32 s13, s13, s9")
        a(f"s_add_u32 s13, s13, {MA}")
        prewrite(64, 4, 9, 13)
    mod_tile(2, 13, 88, 0, after_a)
    for d in range(4):
        tag4(72 + d)
    a(f"v_lshlrev_b32 v9, 4, v9")
    a(f"v_lshl_add_u32 v9, v10, 9, v9")
    a(MASK8)
    a(f"buffer_store_dwordx4 {R(72)}, v9, {S4(rWS)}, s13 offen")
    a(FULL)
    a(f"v_mov_b32 v4, {QFL+12}\nv_mov_b32 v5, 1")
    a("ds_write_b32 v4, v5")
    stamp(1)
    a("s_getreg_b32 s88, hwreg(HW_REG_XCC_ID)")
    a("s_lshl_b32 s88, s88, 12")
    if xdelay:
        a(f"s_sleep {xdelay}")
    a(f"v_and_b32 v8, 31, v{vLANE}")
    a(f"v_lshlrev_b32 v8, 7, v8")
    a(f"s_lshl_b32 s10, s{sXCD}, 12")
    a(f"s_add_u32 s10, s10, {XID}")
    pollx(lambda: a(f"buffer_load_dwordx4 {R(32)}, v8, {S4(rWS)}, s10 offen sc1"), lambda: check_regs(range(32, 36)), name='x')
    if 'x' in skip:
        a("v_mov_b32 v32, s88")
    a("v_cmp_ne_u32 vcc, s88, v32")
    a("s_cmp_eq_u64 vcc, 0")
    a(f"s_cselect_b32 s{sLOC}, {2 if noloc else 1}, 2")
    a(f"v_mov_b32 v4, {QFL+8}\nv_mov_b32 v5, s{sLOC}")
    a("ds_write_b32 v4, v5")
    stamp(25)
    a(f"s_cmp_eq_u32 s{sLOC}, 1")
    a("s_cbranch_scc1 L_maok")
    a(MASK8)
    a(f"buffer_store_dwordx4 {R(72)}, v9, {S4(rWS)}, s13 offen sc1")
    a(FULL)
    a("L_maok:")
    if b2stage:
        hopB2()
    else:
        lds_wait(QFL + 4, 2)
        hopB(0)

    a("L_red:")
    a("s_setprio 3")
    vm = Vm(a)
    srd(rT1, pX, 4096)
    a(f"v_lshrrev_b32 v10, 5, v{vLANE}")
    a(f"v_and_b32 v11, 31, v{vLANE}")
    a(f"v_lshlrev_b32 v9, 11, v10")
    a(f"v_lshl_add_u32 v9, v11, 4, v9")
    for q in range(4):
        vm.issue(f"buffer_load_dwordx4 {R(72 + q*4)}, v9, {S4(rT1)}, 0 offen offset:{q*512}")
    a(f"v_lshlrev_b32 v9, 11, v10")
    a(f"v_lshl_add_u32 v9, v11, 3, v9")
    a(f"s_lshl_b32 s11, s{sXCD}, 8")
    tx = vm.issue(f"buffer_load_dwordx2 {R(88, 2)}, v9, {S4(rT1)}, s11 offen")
    a("s_getreg_b32 s88, hwreg(HW_REG_XCC_ID)")
    a("s_lshl_b32 s88, s88, 12")
    a(f"v_lshlrev_b32 v4, 4, v{vLANE}")
    a(f"s_lshl_b32 s9, s{sL}, 7")
    a(f"s_add_u32 s9, s9, {XID}")
    get_tag()
    a(f"v_or_b32 v96, s88, v{vTAG}")
    a("v_mov_b32 v97, v96\nv_mov_b32 v98, v96\nv_mov_b32 v99, v96")
    a("s_mov_b64 exec, 0xff")
    if 'X' not in skip:
        a(f"buffer_store_dwordx4 {R(96)}, v4, {S4(rWS)}, s9 offen sc1")
    a(FULL)
    a(f"s_add_u32 s9, s9, {QFN - XID}")
    prewrite(100, 2, 6, 9)
    a("s_barrier")
    if pure == 1:
        a("s_branch L_fin")
    a("s_waitcnt vmcnt(0)")
    a("v_mov_b32 v4, 0\nv_mov_b32 v5, 0")
    for i in range(16):
        lo(6, 72 + i)
        hi(8, 72 + i)
        a(f"v_add_f32 v4, v4, v6\nv_fmac_f32 v5, v6, v6")
        a(f"v_add_f32 v4, v4, v8\nv_fmac_f32 v5, v8, v8")
    for r in (1, 2, 4, 8):
        dpp_add(4, 4, 4, r)
        dpp_add(5, 5, 5, r)
    allred(4, 6, "v_add_f32", (16,))
    allred(5, 6, "v_add_f32", (16,))
    ln_stats(4, 5, 6, 8, 9)
    for i in range(2):
        lo(24 + 2 * i, 88 + i)
        hi(25 + 2 * i, 88 + i)
        ln_apply(24 + 2 * i, 25 + 2 * i, 6, 8, 9)
    a(f"v_and_b32 v15, 15, v{vTAG}")
    a(f"v_lshlrev_b32 v9, 4, v{vLANE}")
    a(f"s_lshl_b32 s10, s{sXCD}, 14")
    a(f"s_add_u32 s10, s10, {MA}")

    if agate:
        lds_wait(QFL + 12, 1)
    if adelay:
        a(f"s_sleep {adelay}")

    def ldA():
        for p in range(8):
            if p % 2 == 0:
                a(f"s_add_u32 s9, s10, {p*2048}")
            for wh in range(2):
                a(f"buffer_load_dwordx4 {R(32 + p*8 + wh*4)}, v9, {S4(rWS)}, s9 offen offset:{(p % 2)*2048 + wh*1024} sc1")
    pollx(ldA, lambda: check4(range(32, 96)), f2=True, slp=cslp, name='a')
    stamp(2)
    for st in (32, 16, 8):
        for e in range(st):
            a(f"v_add_f32 v{32+e}, v{32+e}, v{32+st+e}")
    for i in range(2):
        s0, c0, l0 = 32 + 2 * i, 36 + 2 * i, 24 + 2 * i
        rnd2(s0, s0 + 1, 6)
        rnd2(c0, c0 + 1, 6)
        a(f"v_add_f32 v{c0}, 1.0, v{c0}\nv_add_f32 v{c0+1}, 1.0, v{c0+1}")
        rnd2(c0, c0 + 1, 6)
        a(f"v_mul_f32 v{c0}, v{c0}, v{l0}\nv_mul_f32 v{c0+1}, v{c0+1}, v{l0+1}")
        rnd2(c0, c0 + 1, 6)
        a(f"v_add_f32 v{c0}, v{c0}, v{s0}\nv_add_f32 v{c0+1}, v{c0+1}, v{s0+1}")
        a(f"v_cvt_pk_bf16_f32 v{40+i}, v{c0}, v{c0+1}")
    a(f"v_lshlrev_b32 v9, 3, v{vLANE}")
    a(f"v_add_u32 v9, {HB}, v9")
    a(f"ds_write_b64 v9, {R(40, 2)}")
    a(f"v_mov_b32 v4, {QFL+4}\nv_mov_b32 v5, 1")
    a("s_waitcnt lgkmcnt(0)")
    a("ds_write_b32 v4, v5")
    stamp(17)
    if b2stage:
        hopB1()
    else:
        lds_wait(QFL + 4, 2)
        hopB(1)

    a("L_chain:")
    a("s_setprio 3")
    W = 40
    srd(rT0, pWQ, 8388608)
    a(f"v_mov_b32 v4, {QFL}\nv_mov_b32 v5, 0")
    a("ds_write_b32 v4, v5")
    a("ds_write_b32 v4, v5 offset:4")
    a("ds_write_b32 v4, v5 offset:8")
    a("ds_write_b32 v4, v5 offset:12")
    a(f"v_lshlrev_b32 v4, 2, v{vLANE}")
    a(f"v_add_u32 v4, {ZB}, v4")
    a("ds_write_b32 v4, v5")
    a(f"v_lshrrev_b32 v11, 4, v{vLANE}")
    a(f"v_lshlrev_b32 v8, 16, v11")
    a(f"v_and_b32 v15, 15, v{vLANE}")
    a(f"v_lshl_add_u32 v8, v15, 4, v8")
    a(f"s_lshl_b32 s10, s{sXCD}, 20")
    a(f"s_lshl_b32 s11, s{sIDX}, 8")
    a(f"s_add_u32 s10, s10, s11")
    get_tag()
    a("s_barrier")
    for blk in range(4):
        for e in range(8):
            a(f"s_add_u32 s9, s10, {(32*blk+e)*8192}")
            wait_n(thrq)
            a(f"buffer_load_dwordx4 {R(W + blk*32 + e*4)}, v8, {S4(rT0)}, s9 offen {nt}")
    if stamps == 1:
        a("s_waitcnt vmcnt(0)")
        stamp(18)
    if pure == 1:
        a("s_branch L_fin")
    a(f"v_bfe_u32 v6, v{vLANE}, 2, 1")
    a(f"v_lshlrev_b32 v8, 8, v6")
    a(f"v_lshl_add_u32 v8, v11, 4, v8")
    a(f"v_add_u32 v8, {HB}, v8")
    a(f"v_mov_b32 v7, {ZB}")
    a(f"v_lshrrev_b32 v9, 5, v{vLANE}")
    a(f"v_lshl_add_u32 v9, v15, 1, v9")
    a(f"v_lshlrev_b32 v9, 4, v9")
    a(f"v_and_b32 v6, 1, v11")
    a(f"v_lshl_add_u32 v9, v6, 14, v9")
    a(f"s_lshl_b32 s10, s{sXCD}, 15")
    a(f"s_lshl_b32 s11, s{sIDX}, 9")
    a(f"s_add_u32 s10, s10, s11")
    a(f"s_add_u32 s10, s10, {QP}")
    lds_wait(QFL + 4, 1)
    a("s_waitcnt vmcnt(0)")
    stamp(19)
    ACC = 4
    first = True
    for d in range(8):
        m16 = (0x11 << (d & 3)) << (8 * (d >> 2))
        m32 = m16 | (m16 << 16)
        a(f"s_mov_b32 vcc_lo, {m32:#x}\ns_mov_b32 vcc_hi, {m32:#x}")
        a(f"v_cndmask_b32 v10, v7, v8, vcc")
        for blk in range(4):
            a(f"ds_read_b128 {R(16 + blk*4)}, v10 offset:{blk*64}")
        for blk in range(4):
            t = 32 + (blk & 1) * 4
            perm_operand(t, W + blk * 32, d)
            a(f"s_waitcnt lgkmcnt({3-blk})")
            a(f"v_mfma_f32_16x16x32_bf16 {R(2)}, {R(16 + blk*4)}, {R(t)}, {'0' if first else R(2)}")
            first = False
    for d in range(4):
        tag4(2 + d)
    if 'Q' not in skip:
        a(f"buffer_store_dwordx4 {R(2)}, v9, {S4(rWS)}, s10 offen sc1")
    a(f"v_mov_b32 v8, {QFL+4}\nv_mov_b32 v7, 2")
    a("ds_write_b32 v8, v7")
    a("s_waitcnt lgkmcnt(0)")
    stamp(3)
    if hpt:
        a(f"s_bitcmp1_b32 s{sIDX}, 0")
        a("s_cbranch_scc1 L_ptB")
        a(f"v_lshrrev_b32 v9, 1, v{vLANE}")
        a(f"v_lshlrev_b32 v9, 9, v9")
        a(f"v_and_b32 v10, 1, v{vLANE}")
        a(f"v_lshl_add_u32 v9, v10, 7, v9")
        a(f"s_lshr_b32 s9, s{sL}, 2")
        a(f"s_lshl_b32 s10, s9, 14")
        a(f"s_and_b32 s9, s{sIDX}, 3")
        a(f"s_lshl_b32 s9, s9, 7")
        a(f"s_add_u32 s10, s10, s9")
        a(f"s_add_u32 s10, s10, {OP}")
        a(f"buffer_load_dword v16, v9, {S4(rWS)}, s10 offen {ptpol}")
        a(f"v_bfe_u32 v9, v{vLANE}, 2, 2")
        a(f"v_lshlrev_b32 v9, 12, v9")
        a(f"v_and_b32 v10, 3, v{vLANE}")
        a(f"v_lshl_add_u32 v9, v10, 7, v9")
        a(f"s_lshl_b32 s10, s{sIDX}, 13")
        a(f"s_lshl_b32 s9, s{sXCD}, 9")
        a(f"s_add_u32 s10, s10, s9")
        a(f"s_add_u32 s10, s10, {XP}")
        a(f"buffer_load_dword v17, v9, {S4(rWS)}, s10 offen {ptpol}")
        a("s_branch L_fin")
        a("L_ptB:")
        a(f"v_and_b32 v9, 7, v{vLANE}")
        a(f"v_lshlrev_b32 v9, 7, v9")
        a(f"s_lshl_b32 s10, s{sBI}, 10")
        a(f"s_add_u32 s10, s10, {HP}")
        a(f"buffer_load_dword v16, v9, {S4(rWS)}, s10 offen {ptpol}")
    a("s_branch L_fin")

    QF, DT, PT, KV = 16, 24, 32, 40
    if pure >= 2:
        def drop(l):
            if "buffer_store" in l:
                if pure in (3, 4): return True
                if pure == 5 and "sc1" in l: return True
                if pure == 6 and "sc1" not in l: return True
            if "buffer_load" in l and "sc1" in l and pure in (2, 4, 5, 6): return True
            return False
        a.lines = [l for l in a.lines if not drop(l)]
    a("L_att:")
    srd(rK, pK, 0x4000000)
    srd(rV, pV, 0x4000000)
    a(f"s_lshl_b32 s{sKV}, s{sL}, 18")
    a(f"s_lshl_b32 s9, s{sWAVE}, 12")
    a(f"s_add_u32 s{sKV}, s{sKV}, s9")
    a(f"v_lshlrev_b32 v{vOV}, 4, v{vLANE}")
    a(f"v_and_b32 v6, 3, v{vLANE}")
    a(f"v_lshlrev_b32 v6, 10, v6")
    a(f"v_bfe_u32 v5, v{vLANE}, 2, 1")
    a(f"v_lshl_add_u32 v6, v5, 8, v6")
    a(f"v_lshl_add_u32 v{vOK}, v7, 4, v6")
    if klin == 1:
        a(f"v_and_b32 v6, 7, v{vLANE}\nv_lshlrev_b32 v6, 8, v6\nv_lshl_add_u32 v{vOK}, v7, 4, v6")
    if klin == 2:
        a(f"v_mov_b32 v{vOK}, v{vOV}")
    a(f"v_mov_b32 v4, {QFL}")
    a("s_mov_b64 vcc, 0")
    get_tag()
    a("s_barrier")
    if attdma:
        a(f"s_bitcmp1_b32 s{sIDX}, 0")
        a("s_cbranch_scc1 L_adw1")
        srd(rT2, pWO, 8388608)
        a(f"v_lshrrev_b32 v8, 4, v{vLANE}")
        a(f"v_lshlrev_b32 v8, 11, v8")
        a(f"v_and_b32 v9, 15, v{vLANE}")
        a(f"v_lshl_add_u32 v8, v9, 4, v8")
        a(f"s_lshl_b32 s10, s{sAI}, 19")
        a(f"s_lshl_b32 s11, s{sXCD}, 8")
        a(f"s_add_u32 s10, s10, s11")
        a(f"s_lshl_b32 s11, s{sWAVE}, 16")
        a(f"s_add_u32 s10, s10, s11")
        a(f"s_lshl_b32 s11, s{sWAVE}, 13")
        for i in range(8):
            a(f"s_add_u32 m0, s11, {WT + i*1024}")
            a(f"s_add_u32 s9, s10, {i*8192}")
            wait_n(thrw)
            a(f"buffer_load_dwordx4 v8, {S4(rT2)}, s9 offen {nt} lds")
        a("s_branch L_adone")
        a("L_adw1:")
        if w1_early:
            a(f"s_cmp_ge_u32 s{sBI}, 112")
            a("s_cbranch_scc1 L_adone")
            w1_dma(Vm(a), thrw)
        a("L_adone:")
        stamp(21)
    if quiet & 4:
        lds_wait(QFL, 2)
    thr_n = [0]

    def thr_wait():
        thr_n[0] += 1
        lsk = a.label("Lthr")
        a(f"s_cbranch_vccnz {lsk}")
        if thr_n[0] % 2 == 0:
            a("ds_read_b32 v5, v4")
        a(f"s_waitcnt vmcnt({thr-1})")
        if thr_n[0] % 2 == 0:
            a("s_waitcnt lgkmcnt(0)")
            a("v_cmp_eq_u32 vcc, 2, v5")
        a(f"{lsk}:")
        wait_n(thr2)

    vm = Vm(a)
    order = [2, 3, 0, 1, 4, 5, 6, 7]
    pos = {s: i for i, s in enumerate(order)}
    tk = {}
    for s in order:
        a(f"s_add_u32 s9, s{sKV}, {pos[s]*32768}")
        for t in range(2):
            for h in range(2):
                if thr:
                    thr_wait()
                tk[s] = vm.issue(f"buffer_load_dwordx4 {R(KV + s*16 + t*8 + h*4)}, v{vOK}, {S4(rK)}, s9 offen offset:{(t*512 + h*128, t*2048 + h*128, t*2048 + h*1024)[klin]} {nt}")
    vblk = [KV + 32, KV + 64, KV + 96, KV + 32]
    tv = [None] * 4

    def vload(v):
        for e in range(8):
            if e % 4 == 0:
                a(f"s_add_u32 s9, s{sKV}, {(2*v + e//4)*32768}")
            wait_n(thrv)
            tv[v] = vm.issue(f"buffer_load_dwordx4 {R(vblk[v] + e*4)}, v{vOV}, {S4(rV)}, s9 offen offset:{(e % 4)*1024} {nt}")
    stamp(20)
    if pure:
        vm.wait(tk[3]); vload(0); vm.wait(tk[5]); vload(1); vm.wait(tk[7]); vload(2); vm.wait(tv[0]); vload(3)
        a("s_waitcnt vmcnt(0)")
        stamp(8)
        a("s_branch L_fin")
    lds_wait(QFL, 2)
    stamp(5)
    a(f"v_and_b32 v8, 7, v{vLANE}")
    a(f"v_lshlrev_b32 v9, 8, v8")
    a(f"v_lshl_add_u32 v9, v7, 4, v9")
    a(f"v_add_u32 v9, {QB}, v9")
    a(f"ds_read_b128 {R(QF)}, v9")
    a(f"ds_read_b128 {R(QF+4)}, v9 offset:128")
    a("s_waitcnt lgkmcnt(0)")
    Sreg = [PT, PT + 4, KV, KV + 4, KV + 8, KV + 12, KV + 16, KV + 20]

    def qk_mfma(s, X, Y):
        vm.wait(tk[s])
        k0 = KV + s * 16
        a(f"v_mfma_f32_16x16x32_bf16 {R(X)}, {R(k0)}, {R(QF)}, 0")
        a(f"v_mfma_f32_16x16x32_bf16 {R(Y)}, {R(k0+8)}, {R(QF)}, 0")
        a(f"v_mfma_f32_16x16x32_bf16 {R(X)}, {R(k0+4)}, {R(QF+4)}, {R(X)}")
        a(f"v_mfma_f32_16x16x32_bf16 {R(Y)}, {R(k0+12)}, {R(QF+4)}, {R(Y)}")

    def qk_post(p, X, Y):
        S = Sreg[p]
        for r in range(4):
            a(f"v_permlane32_swap_b32 v{X+r}, v{Y+r}")
        for r in range(4):
            dpp_add(S + r, Y + r, X + r, 8)
        for r in (0, 2):
            rnd2(S + r, S + r + 1, 4)
            a(f"v_mul_f32 v{S+r}, s{sSCALE}, v{S+r}\nv_mul_f32 v{S+r+1}, s{sSCALE}, v{S+r+1}")
            rnd2(S + r, S + r + 1, 4)
        if p == 0:
            a(f"v_max3_f32 v5, v{S}, v{S+1}, v{S+2}")
            a(f"v_max_f32 v5, v5, v{S+3}")
        else:
            a(f"v_max3_f32 v5, v5, v{S}, v{S+1}")
            a(f"v_max3_f32 v5, v5, v{S+2}, v{S+3}")
    qk_mfma(2, PT, DT)
    qk_mfma(3, PT + 4, DT + 4)
    vload(0)
    qk_post(0, PT, DT)
    qk_post(1, PT + 4, DT + 4)
    for s in (0, 1, 4, 5, 6, 7):
        qk_mfma(s, DT, DT + 4)
        if s == 5:
            vload(1)
        qk_post(pos[s], DT, DT + 4)
    allred(5, 6, "v_max_f32", (32, 16))
    a(f"v_lshlrev_b32 v9, 5, v8")
    a(f"v_add_u32 v10, {MX}, v9")
    a(f"s_lshl_b32 s9, s{sWAVE}, 2")
    a(f"v_add_u32 v11, s9, v10")
    a("s_mov_b64 exec, 0xff")
    a(f"ds_write_b32 v11, v5")
    a(FULL)
    if vearly:
        vload(2)
    a("s_waitcnt lgkmcnt(0)")
    stamp(6)
    a("s_barrier")
    a(f"v_mov_b32 v4, {QFL+8}")
    a(f"ds_read_b128 {R(16)}, v10")
    a(f"ds_read_b128 {R(20)}, v10 offset:16")
    a(f"ds_read_b32 v4, v4")
    a("s_waitcnt lgkmcnt(0)")
    a(f"v_readfirstlane_b32 s{sLOC}, v4")
    a(f"v_max3_f32 v5, v16, v17, v18\nv_max3_f32 v5, v5, v19, v20\nv_max3_f32 v5, v5, v21, v22\nv_max_f32 v5, v5, v23")
    a(f"v_mul_f32 v6, s{sLOG2E}, v5")
    a("v_mov_b32 v4, 0")
    sl = [Sreg[p] + r for p in range(8) for r in range(4)]
    for i, x in enumerate(sl):
        a(f"v_fma_f32 v{x}, v{x}, s{sLOG2E}, -v6")
        a(f"v_exp_f32 v{x}, v{x}")
        if i:
            a(f"v_add_f32 v4, v4, v{sl[i-1]}")
    a(f"v_add_f32 v4, v4, v{sl[31]}")
    for i in range(16):
        a(f"v_cvt_pk_bf16_f32 v{QF+i}, v{sl[2*i]}, v{sl[2*i+1]}")
    allred(4, 6, "v_add_f32", (32, 16))
    a("s_mov_b64 exec, 0xff")
    a(f"ds_write_b32 v11, v4 offset:{LX-MX}")
    a(FULL)
    a("s_waitcnt lgkmcnt(0)")
    a("s_barrier")
    a(f"s_cmp_lg_u32 s{sWAVE}, 4")
    a("s_cbranch_scc1 L_noml")
    a(f"ds_read_b128 {R(32)}, v10 offset:{LX-MX}")
    a(f"ds_read_b128 {R(36)}, v10 offset:{LX-MX+16}")
    a(f"s_lshl_b32 s10, s{sL}, 7")
    a(f"s_add_u32 s10, s10, {ML}")
    a(f"v_lshlrev_b32 v9, 4, v8")
    a("s_waitcnt lgkmcnt(0)")
    a("v_add_f32 v32, v32, v33\nv_add_f32 v34, v34, v35\nv_add_f32 v36, v36, v37\nv_add_f32 v38, v38, v39")
    a("v_add_f32 v32, v32, v34\nv_add_f32 v36, v36, v38\nv_add_f32 v33, v32, v36")
    tag_trunc(32, 5)
    tag_trunc(33, 33)
    a("v_mov_b32 v34, v32\nv_mov_b32 v35, v33")
    a("s_mov_b64 exec, 0xff")
    store_grp("buffer_store_dwordx4", R(32), 9, 10)
    a(FULL)
    a("L_noml:")
    if not vearly:
        vload(2)
    a(f"v_mul_u32_u24 v9, 528, v8")
    a(f"v_lshrrev_b32 v10, 4, v{vLANE}")
    a(f"v_lshl_add_u32 v9, v10, 4, v9")
    a(f"s_mul_i32 s9, s{sWAVE}, 4224")
    a(f"s_add_u32 s9, s9, {OC}")
    a(f"v_add_u32 v9, s9, v9")
    a(f"v_lshrrev_b32 v10, 5, v{vLANE}")
    a(f"v_mul_u32_u24 v10, {4*4224}, v10")
    a(f"v_and_b32 v11, 31, v{vLANE}")
    a(f"v_lshlrev_b32 v11, 4, v11")
    a(f"s_mul_i32 s9, s{sWAVE}, 528")
    a(f"s_add_u32 s9, s9, {OC}")
    a(f"v_add3_u32 v10, v10, v11, s9")
    a(f"s_lshl_b32 s10, s{sXCD}, 3")
    a(f"s_add_u32 s10, s10, s{sWAVE}")
    a(f"s_lshl_b32 s10, s10, 5")
    a(f"s_add_u32 s10, s10, s{sIDX}")
    a(f"s_lshl_b32 s11, s10, 9")
    a(f"s_add_u32 s11, s11, {OP}")
    if prew:
        prewrite(PT, 4, 8, 11)
        a(f"s_bitcmp1_b32 s{sIDX}, 0")
        a("s_cbranch_scc1 L_pwB")
        a(f"s_lshr_b32 s9, s{sWAVE}, 2")
        a(f"s_add_u32 s9, s9, s{sIDX}")
        a(f"s_lshl_b32 s9, s9, 13")
        a(f"s_lshl_b32 s10, s{sXCD}, 9")
        a(f"s_add_u32 s9, s9, s10")
        a(f"s_and_b32 s10, s{sWAVE}, 3")
        a(f"s_lshl_b32 s10, s10, 7")
        a(f"s_add_u32 s9, s9, s10")
        a(f"s_add_u32 s9, s9, {XP}")
        prewrite(PT, 3, 12, 9)
        a("s_branch L_pwD")
        a("L_pwB:")
        a(f"s_cmp_ge_u32 s{sBI}, 112")
        a("s_cbranch_scc1 L_pwD")
        a(f"s_lshl_b32 s9, s{sBI}, 10")
        a(f"s_lshl_b32 s10, s{sWAVE}, 6")
        a(f"s_add_u32 s9, s9, s10")
        a(f"s_add_u32 s9, s9, {HP}")
        prewrite(PT, 2, 9, 9)
        a("L_pwD:")
    SA = KV
    MLR, F = 104, 120

    def mlloads():
        for i in range(4):
            a(f"buffer_load_dwordx4 {R(MLR + 4*i)}, v15, {S4(rWS)}, s89 offen offset:{i*1024} sc1")
    for v in range(4):
        vm.wait(tv[v])
        for d in range(8):
            t = PT + (d & 1) * 4
            perm_operand(t, vblk[v], d)
            c = "0" if v == 0 else R(SA + d * 4)
            a(f"v_mfma_f32_16x16x32_bf16 {R(SA + d*4)}, {R(t)}, {R(QF + v*4)}, {c}")
        if v == 0:
            vload(3)
        if v == 1:
            a(f"v_lshlrev_b32 v15, 7, v7")
            a(f"s_and_b32 s88, s{sIDX}, 1")
            a(f"s_lshl_b32 s88, s88, 3")
            a(f"s_or_b32 s88, s88, s{sWAVE}")
            a(f"s_cmp_ge_u32 s88, 2")
            a("s_cbranch_scc1 L_noml2")
            a(f"s_lshl_b32 s89, s{sXCD}, 12")
            a(f"s_lshr_b32 s9, s{sIDX}, 2")
            a(f"s_lshl_b32 s9, s9, 4")
            a(f"s_add_u32 s89, s89, s9")
            a(f"s_add_u32 s89, s89, {ML}")
            mlloads()
            a(f"v_lshlrev_b32 v0, 9, v7")
            a(f"v_lshl_add_u32 v0, v8, 4, v0")
            a(f"s_lshr_b32 s9, s{sL}, 2")
            a(f"s_lshl_b32 s90, s9, 14")
            a(f"s_and_b32 s9, s{sIDX}, 3")
            a(f"s_add_u32 s9, s9, s{sWAVE}")
            a(f"s_lshl_b32 s9, s9, 7")
            a(f"s_add_u32 s90, s90, s9")
            a(f"s_add_u32 s90, s90, {OP}")
            for i in range(1, 4):
                a(f"s_add_u32 s{90+i}, s90, {i*4096}")
            if pretouch:
                for i in range(4):
                    a(f"buffer_load_dword v{MLR+16+i}, v0, {S4(rWS)}, s{90+i} offen sc1")
            a("L_noml2:")
    stamp(7)
    a(MASK8)
    for d in range(8):
        a(f"ds_write_b128 v9, {R(SA + d*4)} offset:{d*64}")
    a(FULL)
    a("v_mov_b32 v124, 0")
    a(f"s_cmp_ge_u32 s88, 2")
    a("s_cbranch_scc1 L_nof")
    pollx(mlloads, lambda: check_regs(range(MLR, MLR + 16)), pre_issued=True)
    a(f"v_max3_f32 v5, v{MLR}, v{MLR+4}, v{MLR+8}\nv_max_f32 v5, v5, v{MLR+12}")
    dpp_max(5, 5, 5, 8)
    allred(5, 6, "v_max_f32", (16, 32))
    for i in range(4):
        a(f"v_sub_f32 v{F+i}, v{MLR+4*i}, v5")
        a(f"v_mul_f32 v{F+i}, s{sLOG2E}, v{F+i}")
        a(f"v_exp_f32 v{F+i}, v{F+i}")
    a(f"v_mul_f32 v5, v{F}, v{MLR+1}")
    for i in range(1, 4):
        a(f"v_fmac_f32 v5, v{F+i}, v{MLR+1+4*i}")
    dpp_add(5, 5, 5, 8)
    allred(5, 6, "v_add_f32", (16, 32))
    a("v_rcp_f32 v5, v5")
    for i in range(4):
        a(f"v_mul_f32 v{F+i}, v{F+i}, v5")
    kperm(4, 5)
    a(f"v_lshl_add_u32 v124, v8, 2, v4")
    a(f"v_lshlrev_b32 v124, 2, v124")
    a(f"s_add_u32 s89, s{sL}, s{sWAVE}")
    a(f"s_lshl_b32 s89, s89, 7")
    a(f"s_add_u32 s89, s89, {OF}")
    a("L_nof:")
    a("s_waitcnt lgkmcnt(0)")
    a("s_barrier")
    for k in range(4):
        a(f"ds_read_b128 {R(16 + 4*k)}, v10 offset:{k*4224}")
    a("s_waitcnt lgkmcnt(0)")
    for r in range(4):
        a(f"v_add_f32 v{16+r}, v{16+r}, v{20+r}\nv_add_f32 v{24+r}, v{24+r}, v{28+r}")
    for r in range(4):
        a(f"v_add_f32 v{16+r}, v{16+r}, v{24+r}")
    for r in range(4):
        a(f"v_mov_b32 v{20+r}, v{16+r}")
    for r in range(4):
        a(f"v_permlane32_swap_b32 v{16+r}, v{20+r}")
    for r in range(4):
        a(f"v_add_f32 v{16+r}, v{16+r}, v{20+r}")
    for r in range(4):
        tag_trunc(16 + r, 16 + r)
    a("s_mov_b32 exec_hi, 0")
    store_grp("buffer_store_dwordx4", R(16), 11, 11)
    a(FULL)
    stamp(8)

    def h1a():
        ln = a.label("Lnoh1a")
        a(f"s_cmp_ge_u32 s88, 2")
        a(f"s_cbranch_scc1 {ln}")

        def oloads():
            for i in range(4):
                a(f"buffer_load_dwordx4 {R(MLR + 4*i)}, v0, {S4(rWS)}, s{90+i} offen sc1")
        pollx(oloads, lambda: check_regs(range(MLR, MLR + 16)), slp=0)
        for k in range(4):
            a(f"v_mul_f32 v{MLR+k}, v{F}, v{MLR+k}")
            a(f"v_mul_f32 v{MLR+8+k}, v{F+2}, v{MLR+8+k}")
        for k in range(4):
            a(f"v_fmac_f32 v{MLR+k}, v{F+1}, v{MLR+4+k}")
            a(f"v_fmac_f32 v{MLR+8+k}, v{F+3}, v{MLR+12+k}")
        for k in range(4):
            a(f"v_add_f32 v{MLR+k}, v{MLR+k}, v{MLR+8+k}")
        red4(MLR, (8,))
        a(f"v_cvt_pk_bf16_f32 v{MLR}, v{MLR}, v{MLR}")
        a(f"v_bfi_b32 v{MLR}, s{sHI}, v{MLR}, v{vTAG}")
        a(MASK8)
        a(f"buffer_store_dword v{MLR}, v124, {S4(rWS)}, s89 offen sc1")
        a(FULL)
        stamp(24)
        a(f"{ln}:")
    h1a()
    if notail:
        a("s_branch L_fin")
    a(f"s_bitcmp1_b32 s{sIDX}, 0")
    a("s_cbranch_scc1 L_tailB")

    WOP = 72
    GA, XV, B2V = 110, 111, 112
    a(f"s_lshr_b32 s15, s{sWAVE}, 2")
    a(f"v_lshrrev_b32 v6, 4, v{vLANE}")
    kperm(4, 5)
    a(f"v_bfe_u32 v5, v{vLANE}, 4, 1")
    a(f"v_lshlrev_b32 v5, 6, v5")
    a(f"v_bfe_u32 v7, v{vLANE}, 2, 2")
    a(f"v_lshl_add_u32 v5, v7, 3, v5")
    a(f"v_lshrrev_b32 v7, 5, v{vLANE}")
    a(f"v_add_u32 v5, v5, v7")
    a(f"v_lshlrev_b32 v5, 8, v5")
    a(f"v_and_b32 v7, 3, v{vLANE}")
    a(f"v_lshl_add_u32 v5, v7, 3, v5")
    a(f"s_lshl_b32 s9, s15, 15")
    a(f"s_and_b32 s11, s{sWAVE}, 3")
    a(f"s_lshl_b32 s10, s11, 6")
    a(f"s_add_u32 s9, s9, s10")
    a(f"v_add_u32 v5, s9, v5")
    for ct in range(2):
        for s in range(4):
            for h in range(2):
                a(f"ds_read_b64_tr_b16 {R(WOP + ct*16 + s*4 + h*2, 2)}, v5 offset:{WT + 8192*h + 512*s + 32*ct}")
    a(f"s_lshl_b32 s9, s{sWAVE}, 9")
    a(f"s_add_u32 s9, s9, {OB}")
    a(f"v_lshl_add_u32 v124, v{vLANE}, 3, s9")
    a(f"v_and_b32 v5, 1, v{vLANE}")
    a(f"v_lshlrev_b32 v125, 8, v5")
    a(f"v_lshl_add_u32 v125, v6, 4, v125")
    a(f"v_add_u32 v125, s9, v125")
    a(f"v_lshlrev_b32 v126, 12, v5")
    a(f"v_lshl_add_u32 v126, v6, 4, v126")
    a(f"v_bfe_u32 v5, v{vLANE}, 1, 1")
    a(f"v_lshl_add_u32 v126, v5, 6, v126")
    a(f"v_cmp_eq_u32 s[94:95], 1, v5")
    a(f"s_lshl_b32 s14, s{sAI}, 1")
    a(f"s_add_u32 s14, s14, s15")
    a(f"s_lshl_b32 s10, s14, 13")
    a(f"s_lshl_b32 s9, s{sXCD}, 9")
    a(f"s_add_u32 s10, s10, s9")
    a(f"s_lshl_b32 s9, s11, 7")
    a(f"s_add_u32 s10, s10, s9")
    a(f"s_add_u32 s73, s10, {XP}")
    a(f"v_lshrrev_b32 v9, 5, v{vLANE}")
    a(f"v_lshlrev_b32 v9, 14, v9")
    a(f"v_and_b32 v10, 31, v{vLANE}")
    a(f"v_lshl_add_u32 v9, v10, 4, v9")
    a(f"s_lshl_b32 s74, s14, 9")
    a(f"s_add_u32 s74, s74, {OF}")
    consumer_ids()
    a(f"v_lshrrev_b32 v7, 3, v{vLANE}")
    a(f"v_and_b32 v8, 7, v{vLANE}")
    a(f"v_lshl_add_u32 v11, v8, 2, v4")
    a(f"v_lshlrev_b32 v114, 2, v11")
    a(f"v_add_u32 v5, {XB}, v114")
    a(f"ds_read_b32 v{GA}, v5 offset:384")
    a(f"ds_read_b32 v{XV}, v5 offset:512")
    a(f"ds_read_b32 v{B2V}, v5 offset:256")
    a(f"ds_read_b32 v115, v5 offset:128")
    a(f"ds_read_b32 v116, v5")
    a(f"ds_read_b32 v117, v5 offset:640")
    moment_addr(132, 4, 15, 0)
    a(f"v_bfe_u32 v5, v{vLANE}, 3, 1")
    a(f"v_cmp_eq_u32 s[96:97], 1, v5" if not stamps else f"v_cmp_eq_u32 s[98:99], 1, v5")
    a(f"s_add_u32 s14, s75, {X1}")
    a(f"v_lshlrev_b32 v113, 13, v7")
    a(f"v_lshl_add_u32 v113, v8, 4, v113")
    for i in range(4):
        a(f"s_add_u32 s{90+i}, s75, {XP + i*65536}")

    def xloads():
        for i in range(4):
            a(f"buffer_load_dwordx4 {R(40 + 4*i)}, v113, {S4(rWS)}, s{90+i} offen sc1")
    if pretouch:
        a(f"s_cmp_lg_u32 s{sWAVE}, 7")
        a("s_cbranch_scc1 L_nopt")
        a(f"s_cmp_ge_u32 s{sAI}, 8")
        a("s_cbranch_scc1 L_nopt")
        xloads()
        a("L_nopt:")
    a("s_barrier")
    pollx(lambda: a(f"buffer_load_dwordx4 {R(60)}, v9, {S4(rWS)}, s74 offen sc1"), lambda: check_regs(range(60, 64)))
    stamp(9)
    a(f"v_perm_b32 v60, v61, v60, s{sSELHI}")
    a(f"v_perm_b32 v61, v63, v62, s{sSELHI}")
    a(f"ds_write_b64 v124, {R(60, 2)}")
    a("s_waitcnt lgkmcnt(0)")
    for s in range(4):
        a(f"ds_read_b128 {R(40 + 4*s)}, v125 offset:{s*64}")
    for s in range(4):
        a(f"s_waitcnt lgkmcnt({3-s})")
        for ct in range(2):
            c = "0" if s == 0 else R(56 + 4 * ct)
            a(f"v_mfma_f32_16x16x32_bf16 {R(56 + 4*ct)}, {R(WOP + ct*16 + s*4)}, {R(40 + 4*s)}, {c}")
    for r in range(4):
        a(f"v_cndmask_b32 v{56+r}, v{56+r}, v{60+r}, s[94:95]")
    for r in range(4):
        tag_trunc(56 + r, 56 + r)
    a(f"s_mov_b32 exec_lo, 0x000f000f\ns_mov_b32 exec_hi, 0x000f000f")
    store_grp("buffer_store_dwordx4", R(56), 126, 73)
    a(FULL)
    stamp(10)
    a(f"s_cmp_ge_u32 s{sAI}, 8")
    a("s_cbranch_scc1 L_fin")
    a(f"s_cmp_lg_u32 s{sWAVE}, 7")
    a("s_cbranch_scc1 L_h4")
    pollx(xloads, lambda: check_regs(range(40, 56)), slp=0)
    stamp(11)
    for k in range(4):
        a(f"v_add_f32 v{40+k}, v{40+k}, v{44+k}\nv_add_f32 v{48+k}, v{48+k}, v{52+k}")
    for k in range(4):
        a(f"v_add_f32 v{40+k}, v{40+k}, v{48+k}")
    red4(40, (8,))
    rnd1(40, 40)
    a(f"v_mul_f32 v40, v{GA}, v40")
    rnd1(40, 40)
    a(f"v_add_f32 v40, v{XV}, v40")
    rnd1(XV, 40)
    a(f"v_or_b32 v40, v{vTAG}, v{XV}")
    a(f"s_mov_b32 exec_lo, 0x00ff00ff\ns_mov_b32 exec_hi, 0x00ff00ff")
    a(f"buffer_store_dword v40, v114, {S4(rWS)}, s14 offen sc1")
    a("s_mov_b64 exec, -1")
    SM = "s[96:97]" if not stamps else "s[98:99]"
    a(f"v_mul_f32 v130, v{XV}, v117")
    a(f"v_cndmask_b32 v118, v{XV}, v130, {SM}")
    a(f"v_cndmask_b32 v119, 1.0, v117, {SM}")
    a(f"v_cndmask_b32 v120, v{XV}, v116, {SM}")
    a(f"v_cndmask_b32 v130, v130, 0, {SM}")
    a(f"v_mul_f32 v128, v118, v119")
    a(f"v_mul_f32 v129, v118, v120")
    a(f"v_mul_f32 v131, v130, v130")
    publish_moments(128, 15)
    stamp(12)
    a("L_h4:")
    srd(rT3, pOUT, 4096)
    a(f"s_mul_i32 s11, s{sWAVE}, {14*8192}")
    a(f"s_add_u32 s11, s11, s75")
    a(f"s_add_u32 s11, s11, {YP}")
    a(f"s_add_u32 s15, s11, {8*8192}")
    a(f"s_lshl_b32 s9, s{sWAVE}, 2")
    a(f"s_add_u32 s9, s9, {FB}")
    a(f"v_lshl_add_u32 v9, v11, 5, s9")
    a(f"v_lshlrev_b32 v8, 5, v11")
    a(f"v_add_u32 v8, {FB}, v8")
    a(f"s_lshr_b32 s10, s75, 1")
    a(f"v_lshlrev_b32 v10, 1, v11")
    for r in range(44, 48):
        a(f"v_mov_b32 v{r}, 0")
    a(f"s_mov_b32 s94, -1\ns_mov_b32 s95, 0xffff")

    def ldH4():
        a(f"buffer_load_dwordx4 {R(40)}, v113, {S4(rWS)}, s11 offen sc1")
        a(f"s_and_saveexec_b64 s[{sEX}:{sEX+1}], s[94:95]")
        a(f"buffer_load_dwordx4 {R(44)}, v113, {S4(rWS)}, s15 offen sc1")

    def ckH4():
        for r in range(44, 48):
            a(f"v_xor_b32 v{r}, v{vTAG}, v{r}")
        a(f"s_mov_b64 exec, s[{sEX}:{sEX+1}]")
        check_regs(range(40, 44))
        a(f"v_or3_b32 v{vBAD}, v{vBAD}, v44, v45")
        a(f"v_or3_b32 v{vBAD}, v{vBAD}, v46, v47")
    a("s_barrier")
    if h4delay:
        a(f"s_sleep {h4delay}")
    pollx(ldH4, ckH4)
    stamp(13)
    for r in range(4):
        a(f"v_add_f32 v{40+r}, v{40+r}, v{44+r}")
    red4(40, (8,))
    a("ds_write_b32 v9, v40")
    a("s_waitcnt lgkmcnt(0)")
    a("s_barrier")
    a(f"s_cmp_lg_u32 s{sWAVE}, 7")
    a("s_cbranch_scc1 L_fin")
    a(f"ds_read_b128 {R(40)}, v8")
    a(f"ds_read_b128 {R(44)}, v8 offset:16")
    a("s_waitcnt lgkmcnt(0)")
    for r in range(4):
        a(f"v_add_f32 v{40+r}, v{40+r}, v{44+r}")
    a("v_add_f32 v40, v40, v41\nv_add_f32 v42, v42, v43\nv_add_f32 v40, v40, v42")
    rnd1(40, 40)
    a(f"v_add_f32 v40, v{B2V}, v40")
    rnd1(40, 40)
    a(f"v_mul_f32 v40, v115, v40")
    rnd1(40, 40)
    a(f"v_add_f32 v40, v{XV}, v40")
    a("v_cvt_pk_bf16_f32 v40, v40, v40")
    a(MASK8)
    a(f"buffer_store_short v40, v10, {S4(rT3)}, s10 offen")
    a(FULL)
    a("s_cmp_lg_u32 s2, 0")
    a("s_cbranch_scc1 L_fin")
    a(f"v_mov_b32 v4, s{sEP}")
    a("v_mov_b32 v5, 0")
    a("s_mov_b64 exec, 1")
    a(f"buffer_store_dword v4, v5, {S4(rWS)}, 0 offen offset:{EPOCH} sc1")
    a("s_mov_b64 exec, -1")
    a("s_branch L_fin")

    a("L_tailB:")
    a(f"s_cmp_ge_u32 s{sBI}, 112")
    a("s_cbranch_scc1 L_fin")
    vm = Vm(a)
    W2R = 136
    W2O = 104
    W1O = 72
    AD = 40
    B1V = 29
    XR, SB, CB = 32, 36, 16
    srd(rT2, pW2, 7340032)
    a(f"v_lshrrev_b32 v7, 4, v{vLANE}")
    a(f"v_lshlrev_b32 v8, 14, v7")
    a(f"v_and_b32 v9, 15, v{vLANE}")
    a(f"v_lshl_add_u32 v8, v9, 4, v8")
    a(f"s_lshl_b32 s10, s{sBI}, 16")
    a(f"s_lshl_b32 s11, s{sWAVE}, 8")
    a(f"s_add_u32 s10, s10, s11")
    for e in range(8):
        if e % 2 == 0:
            a(f"s_add_u32 s9, s10, {e*2048}")
        tw2 = vm.issue(f"buffer_load_dwordx4 {R(W2R + e*4)}, v8, {S4(rT2)}, s9 offen offset:{(e % 2)*2048} {nt}")
    a(f"v_lshrrev_b32 v10, 5, v{vLANE}")
    a(f"v_and_b32 v11, 31, v{vLANE}")
    a(f"s_lshl_b32 s12, s{sWAVE}, 9")
    srd(rT1, pB1, 7168)
    kperm(4, 5)
    a(f"v_and_b32 v6, 7, v{vLANE}")
    a(f"v_lshl_add_u32 v5, v6, 2, v4")
    a(f"v_lshlrev_b32 v5, 1, v5")
    a(f"s_lshl_b32 s9, s{sBI}, 6")
    a(f"buffer_load_ushort v{B1V}, v5, {S4(rT1)}, s9 offen")
    a(f"v_bfe_u32 v8, v{vLANE}, 3, 1")
    a(f"v_lshl_add_u32 v26, v8, 6, v5")
    a(f"s_lshl_b32 s9, s{sWAVE}, 7")
    a(f"s_add_u32 s9, s9, {H1B}")
    a(f"v_add_u32 v26, s9, v26")
    a(f"v_bfe_u32 v5, v{vLANE}, 2, 1")
    a(f"v_lshlrev_b32 v27, 6, v5")
    a(f"v_lshl_add_u32 v27, v7, 4, v27")
    a(f"v_add_u32 v27, s9, v27")
    a(f"v_lshlrev_b32 v25, 10, v7")
    a(f"v_lshl_add_u32 v25, v8, 9, v25")
    a(f"v_lshl_add_u32 v25, v6, 4, v25")
    a(f"s_and_b32 s9, s{sBI}, 3")
    a(f"s_lshl_b32 s89, s9, 7")
    a(f"s_andn2_b32 s10, s{sBI}, 3")
    a(f"s_lshl_b32 s10, s10, 10")
    a(f"s_add_u32 s89, s89, s10")
    a(f"s_add_u32 s89, s89, {HP}")
    a(f"v_and_b32 v5, 1, v{vLANE}")
    a(f"v_lshlrev_b32 v23, 9, v5")
    a(f"v_lshl_add_u32 v23, v7, 4, v23")
    a(f"v_add_u32 v23, {YB}, v23")
    a(f"v_lshlrev_b32 v24, 9, v5")
    a(f"v_lshl_add_u32 v24, v7, 4, v24")
    a(f"s_lshl_b32 s90, s{sBI}, 10")
    a(f"s_lshl_b32 s9, s{sWAVE}, 6")
    a(f"s_add_u32 s90, s90, s9")
    a(f"s_add_u32 s90, s90, {HP}")
    for r in range(32):
        a(f"v_mov_b32 v{AD+r}, 0")
    a(f"v_bfe_u32 v5, v{vLANE}, 2, 2")
    a(f"v_lshl_add_u32 v5, v7, 3, v5")
    a(f"v_lshlrev_b32 v5, 8, v5")
    a(f"v_and_b32 v6, 3, v{vLANE}")
    a(f"v_lshl_add_u32 v5, v6, 3, v5")
    a(f"s_lshl_b32 s9, s{sWAVE}, 5")
    a(f"v_add_u32 v5, s9, v5")
    for s in range(8):
        for h in range(2):
            a(f"ds_read_b64_tr_b16 {R(W1O + s*4 + h*2, 2)}, v5 offset:{WT + 8192*s + 1024*h}")
    a(f"v_and_b32 v5, 1, v7")
    a(f"v_lshlrev_b32 v28, 12, v5")
    a(f"v_lshl_add_u32 v28, v9, 5, v28")
    a(f"v_lshl_add_u32 v28, v10, 4, v28")
    a(f"s_lshl_b32 s14, s{sBI}, 13")
    a(f"s_add_u32 s14, s14, s12")
    a(f"s_add_u32 s14, s14, {YP}")

    def ldHP(dst=136):
        a(f"buffer_load_dwordx4 {R(dst)}, v25, {S4(rWS)}, s89 offen sc1")
    a("s_waitcnt vmcnt(0)")
    for d in range(8):
        perm_operand(W2O + d * 4, W2R, d)
    lo(B1V, B1V)
    stamp(9)
    a(f"s_cmp_ge_u32 s{sWAVE}, 2")
    a("s_cbranch_scc1 L_ydone")
    MR = 136
    a(f"v_lshlrev_b32 v4, 4, v{vLANE}")
    a(f"s_and_b32 s9, s{sBI}, 3")
    a(f"s_lshl_b32 s13, s9, 10")
    a(f"s_lshl_b32 s10, s{sWAVE}, 12")
    a(f"s_add_u32 s13, s13, s10")
    a(f"s_add_u32 s13, s13, {X1}")
    a(f"s_add_u32 s15, s13, 8192")
    a(f"s_add_u32 s88, s13, 16384")
    a(f"v_lshrrev_b32 v20, 1, v{vLANE}")
    a(f"v_lshlrev_b32 v20, 7, v20")
    a(f"v_and_b32 v5, 1, v{vLANE}")
    a(f"v_lshl_add_u32 v20, v5, 4, v20")
    a(f"s_add_u32 s91, s10, {XS}")
    a(f"s_add_u32 s92, s10, {XS + 8192}")
    a(f"s_lshl_b32 s10, s{sWAVE}, 9")
    a(f"s_add_u32 s10, s10, {YB}")
    a(f"v_lshl_add_u32 v22, v{vLANE}, 3, s10")

    def ldS():
        a(f"buffer_load_dwordx4 {R(SB)}, v4, {S4(rWS)}, s15 offen sc1")
        a(f"buffer_load_dwordx4 {R(CB)}, v4, {S4(rWS)}, s88 offen sc1")
        a(f"buffer_load_dwordx4 {R(MR)}, v20, {S4(rWS)}, s92 offen sc1")
    pollx(ldS, lambda: check_regs(list(range(SB, SB + 4)) + list(range(CB, CB + 4)) + list(range(MR, MR + 4))))
    LANE_OF = [0, 32, 16, 48, 1, 33]
    red4(MR, (2, 4, 8))
    a(f"v_mul_f32 v{MR}, 0x3a800000, v{MR}")
    for k in range(5):
        a(f"v_readlane_b32 s9, v{MR}, {LANE_OF[k]}")
        a(f"v_mov_b32 v{144+k}, s9")

    def ldH3():
        a(f"buffer_load_dwordx4 {R(XR)}, v4, {S4(rWS)}, s13 offen sc1")
        a(f"buffer_load_dwordx4 {R(MR)}, v20, {S4(rWS)}, s91 offen sc1")
    pollx(ldH3, lambda: check_regs(list(range(XR, XR + 4)) + list(range(MR, MR + 4))))
    stamp(10)
    red4(MR, (2, 4, 8))
    a(f"v_mul_f32 v{MR}, 0x3a800000, v{MR}")
    for k, sr in enumerate((10, 11, 12, 13, 15, 88)):
        a(f"v_readlane_b32 s{sr}, v{MR}, {LANE_OF[k]}")

    def stats_tail(mean, ex2, t, mb, rs):
        a(f"v_fma_f32 v{ex2}, -v{mean}, v{mean}, v{ex2}")
        a(f"v_max_f32 v{ex2}, 0, v{ex2}")
        a(f"v_cvt_pk_bf16_f32 v{t}, v{mean}, v{ex2}")
        hi(ex2, t)
        lo(mb, t)
        a(f"v_add_f32 v{ex2}, 0x3727c5ac, v{ex2}")
        rnd1(ex2, ex2)
        a(f"v_sqrt_f32 v{ex2}, v{ex2}")
        rnd1(ex2, ex2)
        a(f"v_rcp_f32 v{rs}, v{ex2}")
    a("v_mov_b32 v5, s10\nv_mov_b32 v6, s11")
    stats_tail(5, 6, 8, 140, 141)
    a(f"v_fma_f32 v150, -v140, v144, s12")
    a(f"v_mul_f32 v151, v140, v145")
    a(f"v_fma_f32 v151, -2.0, s15, v151")
    a(f"v_fma_f32 v151, v140, v151, s13")
    a(f"v_fma_f32 v152, -v140, v146, s88")
    for k in (0, 2):
        a(f"v_sub_f32 v{XR+k}, v{XR+k}, v140\nv_sub_f32 v{XR+k+1}, v{XR+k+1}, v140")
    for k in (0, 2):
        rnd2(XR + k, XR + k + 1, 8 + k // 2)
    a(f"v_fma_f32 v5, v141, v150, v147")
    a(f"v_mul_f32 v151, v141, v151")
    a(f"v_fma_f32 v151, 2.0, v152, v151")
    a(f"v_fma_f32 v6, v141, v151, v148")
    for k in range(4):
        a(f"v_mul_f32 v{XR+k}, v{XR+k}, v141")
    for k in (0, 2):
        rnd2(XR + k, XR + k + 1, 8 + k // 2)
    stats_tail(5, 6, 10, 142, 143)
    for k in range(4):
        a(f"v_mul_f32 v{XR+k}, v{XR+k}, v{CB+k}")
    for k in (0, 2):
        rnd2(XR + k, XR + k + 1, 8 + k // 2)
    for k in range(4):
        a(f"v_add_f32 v{XR+k}, v{XR+k}, v{SB+k}")
    for k in (0, 2):
        rnd2(XR + k, XR + k + 1, 8 + k // 2)
    for k in range(4):
        a(f"v_sub_f32 v{XR+k}, v{XR+k}, v142")
    for k in (0, 2):
        rnd2(XR + k, XR + k + 1, 8 + k // 2)
    for k in range(4):
        a(f"v_mul_f32 v{XR+k}, v{XR+k}, v143")
    a(f"v_cvt_pk_bf16_f32 v30, v{XR}, v{XR+1}\nv_cvt_pk_bf16_f32 v31, v{XR+2}, v{XR+3}")
    a(f"ds_write_b64 v22, {R(30, 2)}")
    a("s_waitcnt lgkmcnt(0)")
    a("L_ydone:")
    a("s_barrier")
    for s in range(8):
        a(f"ds_read_b128 {R(136 + 4*s)}, v23 offset:{s*64}")
    for s in range(8):
        a(f"s_waitcnt lgkmcnt({7-s})")
        c = "0" if s == 0 else R(32)
        a(f"v_mfma_f32_16x16x32_bf16 {R(32)}, {R(W1O + s*4)}, {R(136 + 4*s)}, {c}")
    for r in range(4):
        tag_trunc(32 + r, 32 + r)
    a(f"s_mov_b32 exec_lo, 0x00030003\ns_mov_b32 exec_hi, 0x00030003")
    store_grp("buffer_store_dwordx4", R(32), 24, 90)
    a(FULL)
    stamp(22)
    pollx(ldHP, lambda: check_regs(range(136, 140)), slp=0)
    stamp(23)
    red4(136, ())
    rnd1(136, 136)
    a(f"v_add_f32 v136, v136, v{B1V}")
    rnd1(136, 136)
    a("v_mul_f32 v137, v136, v136")
    a("v_mul_f32 v137, 0x3d372713, v137")
    a("v_fma_f32 v137, v137, v136, v136")
    a("v_mul_f32 v137, 0xc0135761, v137")
    a("v_exp_f32 v137, v137")
    a("v_add_f32 v137, 1.0, v137")
    a("v_rcp_f32 v137, v137")
    a("v_mul_f32 v136, v136, v137")
    a("v_cvt_pk_bf16_f32 v136, v136, v136")
    a("ds_write_b16 v26, v136")
    a("s_waitcnt lgkmcnt(0)")
    for d in range(8):
        m16 = (0x11 << (d & 3)) << (8 * (d >> 2))
        m32 = m16 | (m16 << 16)
        a(f"s_mov_b32 exec_lo, {m32:#x}\ns_mov_b32 exec_hi, {m32:#x}")
        a(f"ds_read_b128 {R(AD + 4*d)}, v27")
    a("s_mov_b64 exec, -1")
    for d in range(8):
        a(f"s_waitcnt lgkmcnt({7-d})")
        c = "0" if d == 0 else R(136)
        a(f"v_mfma_f32_16x16x32_bf16 {R(136)}, {R(AD + 4*d)}, {R(W2O + 4*d)}, {c}")
    for r in range(4):
        tag_trunc(136 + r, 136 + r)
    a(f"buffer_store_dwordx4 {R(136)}, v28, {S4(rWS)}, s14 offen sc1")
    stamp(11)

    a("L_fin:")
    if stamps and dbgstamps:
        stamp(15)
        a("s_load_dwordx2 s[10:11], s[0:1], 104")
        a("s_waitcnt lgkmcnt(0)")
        srd(rT0, 10, 256)
        a(f"v_lshlrev_b32 v4, 2, v{vLANE}")
        a(f"v_not_b32 v5, v{vST}")
        a(f"v_cmp_eq_u32 vcc, 0, v{vLANE}")
        a(f"v_cndmask_b32 v5, v{vST}, v5, vcc")
        a(f"s_and_b32 s9, s{sIDX}, 1")
        a("s_lshl_b32 s9, s9, 6")
        a("s_mov_b64 exec, 0xffff")
        a(f"buffer_atomic_umax v5, v4, {S4(rT0)}, s9 offen sc1")
    elif stamps:
        stamp(15)
        a(f"s_mul_i32 s9, s2, {NWAVES}")
        a(f"s_add_u32 s9, s9, s{sW12}")
        a(f"s_lshl_b32 s9, s9, 7")
        a(f"s_add_u32 s9, s9, {STAMP}")
        a(f"v_lshlrev_b32 v4, 2, v{vLANE}")
        a("s_mov_b32 exec_hi, 0")
        a(f"buffer_store_dword v{vST}, v4, {S4(rWS)}, s9 offen")
    a("L_end:")
    a("s_endpgm")
    a('.section .rodata,"a"')
    a(".p2align 6")
    a(f".amdhsa_kernel {NAME}_kernel")
    for l in (".amdhsa_next_free_vgpr 168", ".amdhsa_next_free_sgpr 102", ".amdhsa_accum_offset 168",
              ".amdhsa_group_segment_fixed_size 0", ".amdhsa_kernarg_size 120", ".amdhsa_user_sgpr_count 2",
              ".amdhsa_user_sgpr_kernarg_segment_ptr 1", ".amdhsa_system_sgpr_workgroup_id_x 1",
              ".amdhsa_float_denorm_mode_32 3"):
        a(l)
    a(".end_amdhsa_kernel")
    return pre + a.finish()


if __name__ == "__main__":
    out = sys.argv[1] if len(sys.argv) > 1 else f"cdna_kernels/{NAME}.s"
    kw = {}
    for arg in sys.argv[2:]:
        k, v = arg.split("=")
        kw[k] = eval(v)
    open(out, "w").write(gen(**kw))
```

```python
import sys
from asmlib import Asm, Vm

NAME = "adaLN_cond__gqa_block_cached__mixer_channel_mlp__decode"

EPOCH = 0
ML = 0x1000
X1 = 0x9000
MODP = 0x10000
QP = 0x30000
MA = 0xB0000
HP = 0xE0000
XP = 0x100000
DUAL = 0x90000
OF = 0x70000
QFN = 0x80000
XS = 0x88000
XID = 0x78000
OP = 0x200000
YP = 0x300000
STAMP = 0x400000
WS_BYTES = 0x10000000
WT = 0
OC = 0x10000
QB = 0x18400
HB = 0x18C00
ZB = 0x18E00
MX = 0x19000
LX = 0x19100
OB = 0x19800
ST = 0x19600
YB = 0x19800
RED = 0x1A800
H1B = 0x1B000
QFL = 0x1B400
XB = 0x1B480
FB = 0x1B800
LDS_BYTES = 0x1BC00
TAGM = 0x3ff
T4 = 3
NWAVES = 12

sWAVE, sL, sXCD, sIDX, sAI, sTAG = 3, 4, 5, 6, 7, 8
pX, pK, pV, pWQ, pWO, pW1, pB1, pW2, pB2, pC, pWM, pOUT, pWS = 16, 18, 20, 22, 24, 28, 30, 32, 34, 36, 38, 40, 42
rK, rV, rWS, rT0, rT1, rT2, rT3 = 44, 48, 52, 56, 60, 64, 68
sDU = 72
sSELLO, sSELHI, sHI, sLOG2E, sSCALE, sSPIN, sEP, sTM = 76, 77, 78, 79, 80, 81, 82, 83
sEX = 84
sBI = 86
sKV = 87
sW12 = 100
sLOC = 101
vLANE, vOK, vOV = 1, 2, 3
vBAD, vTAG, vST = 12, 13, 14


def gen(stamps=False, dbgstamps=False, codewarm=True, spin=200000, sleep=0, nt="nt", w1_early=True,
        thr=3, thr2=5, thrq=0, thrb=0, thrv=0, notail=False, quiet=0, ptpol='sc1', agate=1, xdelay=20, skip='', hpt=1, prew=0, b2stage=1, h4delay=0, pretouch=0, noloc=0, noma=0, bdelay=0, adelay=0, nomodfin=0, pure=0, klin=0, vearly=0, fake=0, attdma=True, thrw=0, cslp=1, w1pol=None):
    a = Asm()
    hdr = open(f"cdna_kernels/{NAME}.s.ref").read().split("\n")
    head = [l for l in hdr if l.startswith(";") and "@launch" not in l]
    pre = "\n".join(head) + f"\n; @launch grid=(256,1,1) block=({64*NWAVES},1,1) lds={LDS_BYTES}\n"
    a('.amdgcn_target "amdgcn-amd-amdhsa--gfx950"')
    a(".text")
    a(f".globl {NAME}_kernel")
    a(".p2align 8")
    a(f".type {NAME}_kernel,@function")
    a(f"{NAME}_kernel:")

    def srd(d, p, n):
        a(f"s_mov_b32 s{d}, s{p}\ns_mov_b32 s{d+1}, s{p+1}\ns_mov_b32 s{d+2}, {n}\ns_mov_b32 s{d+3}, 0x20000")

    def R(b, n=4):
        return f"v[{b}:{b+n-1}]"

    def S4(b):
        return f"s[{b}:{b+3}]"

    def stamp(k):
        if stamps == 1 or (stamps == 2 and k in (8, 15)):
            a(f"s_memrealtime s[96:97]\ns_waitcnt lgkmcnt(0)\nv_writelane_b32 v{vST}, s96, {k}")

    def lo(d, p):
        a(f"v_lshlrev_b32 v{d}, 16, v{p}")

    def hi(d, p):
        a(f"v_and_b32 v{d}, s{sHI}, v{p}")

    def rnd1(d, s):
        a(f"v_cvt_pk_bf16_f32 v{d}, v{s}, v{s}")
        lo(d, d)

    def rnd2(x, y, t):
        a(f"v_cvt_pk_bf16_f32 v{t}, v{x}, v{y}")
        lo(x, t)
        hi(y, t)

    def tag_round(d, s):
        a(f"v_add_u32 v{d}, 0x200, v{s}")
        a(f"v_bfi_b32 v{d}, s{sTM}, v{vTAG}, v{d}")

    def tag_trunc(d, s):
        a(f"v_bfi_b32 v{d}, s{sTM}, v{vTAG}, v{s}")

    def check_regs(regs, first=True):
        for r in regs:
            a(f"v_xor_b32 v{r}, v{vTAG}, v{r}")
        regs = list(regs)
        if first:
            a(f"v_or_b32 v{vBAD}, v{regs[0]}, v{regs[1]}")
            regs = regs[2:]
        for i in range(0, len(regs), 2):
            a(f"v_or3_b32 v{vBAD}, v{vBAD}, v{regs[i]}, v{regs[i+1]}")

    def dpp_add(d, s_rot, s1, ror):
        a(f"v_add_f32_dpp v{d}, v{s_rot}, v{s1} row_ror:{ror} row_mask:0xf bank_mask:0xf")

    def dpp_max(d, s_rot, s1, ror):
        a(f"v_max_f32_dpp v{d}, v{s_rot}, v{s1} row_ror:{ror} row_mask:0xf bank_mask:0xf")

    def allred(x, t, op, which):
        for w in which:
            a(f"v_mov_b32 v{t}, v{x}")
            a(f"v_permlane{w}_swap_b32 v{x}, v{t}")
            a(f"{op} v{x}, v{x}, v{t}")

    def red4(b, rors):
        a(f"v_permlane32_swap_b32 v{b}, v{b+1}")
        a(f"v_permlane32_swap_b32 v{b+2}, v{b+3}")
        a(f"v_add_f32 v{b}, v{b}, v{b+1}")
        a(f"v_add_f32 v{b+2}, v{b+2}, v{b+3}")
        a(f"v_permlane16_swap_b32 v{b}, v{b+2}")
        a(f"v_add_f32 v{b}, v{b}, v{b+2}")
        for r in rors:
            dpp_add(b, b, b, r)

    def perm_operand(dst, blk, d):
        sel = sSELHI if d & 1 else sSELLO
        for k in range(4):
            a(f"v_perm_b32 v{dst+k}, v{blk + (2*k+1)*4 + (d >> 1)}, v{blk + 2*k*4 + (d >> 1)}, s{sel}")

    def ln_stats(su, sq, t, mb, rs):
        a(f"v_mul_f32 v{su}, 0x3a800000, v{su}")
        a(f"v_mul_f32 v{sq}, 0x3a800000, v{sq}")
        a(f"v_fma_f32 v{sq}, -v{su}, v{su}, v{sq}")
        a(f"v_max_f32 v{sq}, 0, v{sq}")
        a(f"v_cvt_pk_bf16_f32 v{t}, v{su}, v{sq}")
        lo(mb, t)
        hi(sq, t)
        a(f"v_add_f32 v{sq}, 0x3727c5ac, v{sq}")
        rnd1(sq, sq)
        a(f"v_sqrt_f32 v{sq}, v{sq}")
        rnd1(sq, sq)
        a(f"v_rcp_f32 v{rs}, v{sq}")

    def ln_apply(x, y, t, mb, rs, last_round=True):
        a(f"v_sub_f32 v{x}, v{x}, v{mb}")
        a(f"v_sub_f32 v{y}, v{y}, v{mb}")
        rnd2(x, y, t)
        a(f"v_mul_f32 v{x}, v{x}, v{rs}")
        a(f"v_mul_f32 v{y}, v{y}, v{rs}")
        if last_round:
            rnd2(x, y, t)

    def check2(pairs_regs):
        first = True
        for b in pairs_regs:
            a(f"v_xor_b32 v{b+1}, s{sEP}, v{b+1}")
            a(f"v_xor_b32 v{b+3}, s{sEP}, v{b+3}")
            if first:
                a(f"v_or_b32 v{vBAD}, v{b+1}, v{b+3}")
                first = False
            else:
                a(f"v_or3_b32 v{vBAD}, v{vBAD}, v{b+1}, v{b+3}")

    def pollx(loads, check, f2=False, dual=False, pre_issued=False, between=None, slp=None, name=None):
        if name and name in skip:
            a("s_waitcnt vmcnt(0)")
            a("s_mov_b64 exec, -1")
            return
        lp, dn, ck = a.label("Lpoll"), a.label("Ldone"), a.label("Lchk")
        a(f"s_mov_b32 s{sSPIN}, {0 if (fake and slp in (cslp, 16)) else spin | 7}")
        if pre_issued:
            a(f"s_branch {ck}")
        a(f"{lp}:")
        if dual:
            a(f"s_and_b32 s{sDU}, s{sSPIN}, 7")
            a(f"s_cselect_b32 s{sDU}, {DUAL}, 0")
        loads()
        a(f"{ck}:")
        a("s_waitcnt vmcnt(0)")
        check()
        if not f2:
            a(f"v_and_b32 v{vBAD}, s{sTM}, v{vBAD}")
        a(f"v_cmp_ne_u32 vcc, 0, v{vBAD}")
        a(f"s_cbranch_vccz {dn}")
        a("s_mov_b64 exec, vcc")
        sl = sleep if slp is None else slp
        if sl:
            a(f"s_sleep {sl}")
        a(f"s_sub_u32 s{sSPIN}, s{sSPIN}, 1")
        a(f"s_cbranch_scc0 {lp}")
        a(f"{dn}:")
        a("s_mov_b64 exec, -1")

    def dual_exchange(store_wt, loads, check):
        l1, ok, dn = a.label("Lfx"), a.label("Lfxok"), a.label("Lfxdn")
        a(f"s_mov_b32 s{sDU}, {DUAL}")
        a(f"s_mov_b32 s{sSPIN}, 24")
        a(f"{l1}:")
        loads()
        a("s_waitcnt vmcnt(0)")
        check()
        a(f"v_and_b32 v{vBAD}, s{sTM}, v{vBAD}")
        a(f"v_cmp_ne_u32 vcc, 0, v{vBAD}")
        a(f"s_cbranch_vccz {ok}")
        a("s_mov_b64 exec, vcc")
        a(f"s_sub_u32 s{sSPIN}, s{sSPIN}, 1")
        a(f"s_cbranch_scc0 {l1}")
        a(f"s_mov_b64 s[{sEX}:{sEX+1}], exec")
        store_wt()
        a(f"s_mov_b64 exec, s[{sEX}:{sEX+1}]")
        pollx(loads, check, dual=True)
        a(f"s_branch {dn}")
        a(f"{ok}:")
        store_wt()
        a("s_mov_b64 exec, -1")
        a(f"{dn}:")

    def store_grp(op, data, vaddr, soff):
        l1, l2 = a.label("Lsg"), a.label("Lsgd")
        a(f"s_cmp_eq_u32 s{sLOC}, 1")
        a(f"s_cbranch_scc1 {l1}")
        a(f"{op} {data}, v{vaddr}, {S4(rWS)}, s{soff} offen sc1")
        a(f"s_branch {l2}")
        a(f"{l1}:")
        a(f"{op} {data}, v{vaddr}, {S4(rWS)}, s{soff} offen")
        a(f"{l2}:")

    def prewrite(t, nl_log2, bshift, soff):
        if not prew:
            return
        for k in range(4):
            a(f"v_xor_b32 v{t+k}, 1, v{vTAG}")
        a(f"v_lshrrev_b32 v{t+4}, {nl_log2}, v{vLANE}")
        a(f"v_lshlrev_b32 v{t+4}, {bshift-4}, v{t+4}")
        a(f"v_and_or_b32 v{t+4}, v{vLANE}, {(1 << nl_log2) - 1}, v{t+4}")
        a(f"v_lshlrev_b32 v{t+4}, 4, v{t+4}")
        n = 2 << nl_log2
        a(f"s_mov_b64 exec, {(1 << n) - 1:#x}" if n < 32 else "s_mov_b32 exec_hi, 0")
        a(f"buffer_store_dwordx4 {R(t)}, v{t+4}, {S4(rWS)}, s{soff} offen")
        a("s_mov_b64 exec, -1")

    def store_dual(op, data, vaddr, soff, off=0):
        a(f"s_add_u32 s9, s{soff}, {DUAL}")
        a(f"{op} {data}, v{vaddr}, {S4(rWS)}, s9 offen offset:{off}")
        a(f"{op} {data}, v{vaddr}, {S4(rWS)}, s{soff} offen offset:{off} sc1")

    def kperm(d, t):
        a(f"v_bfe_u32 v{d}, v{vLANE}, 4, 1")
        a(f"v_lshrrev_b32 v{t}, 5, v{vLANE}")
        a(f"v_lshl_or_b32 v{d}, v{d}, 1, v{t}")

    MASK8 = "s_mov_b32 exec_lo, 0x00ff00ff\ns_mov_b32 exec_hi, 0x00ff00ff"
    FULL = "s_mov_b64 exec, -1"

    a("s_cmp_ge_u32 s2, 256")
    a("s_cbranch_scc1 L_end")
    a("s_load_dwordx16 s[16:31], s[0:1], 0")
    a("s_load_dwordx8 s[32:39], s[0:1], 64")
    a("s_load_dwordx2 s[40:41], s[0:1], 96")
    a("s_load_dwordx2 s[42:43], s[0:1], 112")
    if stamps:
        a(f"v_mov_b32 v{vST}, 0")
        a("s_memrealtime s[98:99]")
    a(f"v_lshrrev_b32 v4, 6, v0")
    a(f"v_and_b32 v{vLANE}, 63, v0")
    a(f"v_readfirstlane_b32 s{sW12}, v4")
    a(f"s_and_b32 s{sXCD}, s2, 7")
    a(f"s_lshr_b32 s{sIDX}, s2, 3")
    a(f"s_lshl_b32 s{sL}, s{sXCD}, 5")
    a(f"s_add_u32 s{sL}, s{sL}, s{sIDX}")
    a(f"s_lshr_b32 s{sAI}, s{sIDX}, 1")
    a(f"s_lshr_b32 s9, s{sAI}, 2")
    a(f"s_lshl_b32 s9, s9, 3")
    a(f"s_add_u32 s9, s9, s{sXCD}")
    a(f"s_lshl_b32 s{sBI}, s9, 2")
    a(f"s_and_b32 s9, s{sAI}, 3")
    a(f"s_add_u32 s{sBI}, s{sBI}, s9")
    a(f"s_mov_b32 s{sSELLO}, 0x05040100")
    a(f"s_mov_b32 s{sSELHI}, 0x07060302")
    a(f"s_mov_b32 s{sHI}, 0xffff0000")
    a(f"s_mov_b32 s{sLOG2E}, 0x3fb8aa3b")
    a(f"s_mov_b32 s{sSCALE}, 0x3db504f3")
    a(f"s_mov_b32 s{sTM}, {TAGM}")
    a(f"v_lshrrev_b32 v7, 3, v{vLANE}")
    a(f"s_sub_u32 s{sWAVE}, s{sW12}, 4")
    a("s_waitcnt lgkmcnt(0)")
    if stamps:
        a(f"v_writelane_b32 v{vST}, s98, 0")
    a(f"s_load_dword s{sEP}, s[{pWS}:{pWS+1}], {EPOCH}")

    def get_tag():
        a("s_waitcnt lgkmcnt(0)")
        a(f"s_add_u32 s{sEP}, s{sEP}, 1")
        a(f"s_and_b32 s{sTAG}, s{sEP}, {TAGM}")
        a(f"v_mov_b32 v{vTAG}, s{sTAG}")

    def wait_q():
        lp, dn = a.label("Lwq"), a.label("Lwqd")
        a(f"v_mov_b32 v4, {QFL}")
        a(f"s_mov_b32 s{sSPIN}, {spin*20}")
        a(f"{lp}:")
        a("ds_read_b32 v5, v4")
        a("s_waitcnt lgkmcnt(0)")
        a("v_cmp_ne_u32 vcc, 0, v5")
        a(f"s_cbranch_vccnz {dn}")
        a("s_sleep 1")
        a(f"s_sub_u32 s{sSPIN}, s{sSPIN}, 1")
        a(f"s_cbranch_scc0 {lp}")
        a(f"{dn}:")

    def wait_n(T):
        if T:
            a(f"s_waitcnt vmcnt({T-1})")

    def mod_tile(ngrp, srow0, scol, T, after_issue):
        ACC, PT, W = 32, 64, 72
        vm = Vm(a)
        srd(rT0, pWM, 12582912)
        srd(rT1, pC, 4096)
        a(f"s_mul_i32 s10, s{srow0}, 12288")
        a(f"s_add_u32 s10, s10, s{scol}")
        a(f"s_mov_b32 s9, {8*12288}")
        a(f"v_mul_lo_u32 v8, v7, s9")
        a(f"v_and_b32 v9, 7, v{vLANE}")
        a(f"v_lshl_add_u32 v8, v9, 4, v8")
        a(f"v_bfe_u32 v10, v{vLANE}, 2, 1")
        a(f"v_lshlrev_b32 v10, 11, v10")
        a(f"v_lshl_add_u32 v10, v7, 4, v10")
        a(f"s_lshl_b32 s11, s{srow0}, 1")
        for q4 in range(ngrp):
            tc = vm.issue(f"buffer_load_dwordx4 {R(ACC + q4*4)}, v10, {S4(rT1)}, s11 offen offset:{q4*128}")
        toks = {}

        def grp(q4):
            for e in range(8):
                a(f"s_add_u32 s9, s10, {(64*q4+e)*12288}")
                wait_n(T)
                toks[q4] = vm.issue(f"buffer_load_dwordx4 {R(W + (q4 % 3)*32 + e*4)}, v8, {S4(rT0)}, s9 offen {nt}")
        for q4 in range(min(ngrp, 3)):
            grp(q4)
        after_issue()
        if pure == 1:
            if ngrp == 4:
                vm.wait(toks[0])
                grp(3)
            a("s_waitcnt vmcnt(0)")
            a("s_branch L_fin")
        vm.wait(tc)
        a(f"s_mov_b32 s9, 0xbfb8aa3b")
        for i in range(4 * ngrp):
            lo(4, ACC + i)
            hi(5, ACC + i)
            a(f"v_mul_f32 v6, s9, v4\nv_mul_f32 v11, s9, v5")
            a(f"v_exp_f32 v6, v6\nv_exp_f32 v11, v11")
            a(f"v_add_f32 v6, 1.0, v6\nv_add_f32 v11, 1.0, v11")
            a(f"v_rcp_f32 v6, v6\nv_rcp_f32 v11, v11")
            a(f"v_mul_f32 v4, v4, v6\nv_mul_f32 v5, v5, v11")
            a(f"v_cvt_pk_bf16_f32 v{16+i}, v4, v5")
        a(f"v_and_b32 v11, 3, v{vLANE}")
        a(f"v_bfe_u32 v10, v{vLANE}, 4, 1")
        a(f"v_lshl_add_u32 v9, v10, 2, v11")
        a(f"v_lshrrev_b32 v10, 5, v{vLANE}")
        a(f"v_lshl_add_u32 v9, v9, 1, v10")
        a(f"v_bfe_u32 v10, v{vLANE}, 2, 1")
        for q4 in range(ngrp):
            vm.wait(toks[q4])
            for d in range(8):
                t = PT + (d & 1) * 4
                perm_operand(t, W + (q4 % 3) * 32, d)
                c = "0" if q4 == 0 else R(ACC + d * 4)
                a(f"v_mfma_f32_16x16x32_bf16 {R(ACC + d*4)}, {R(t)}, {R(16 + q4*4)}, {c}")
            if q4 + 3 < ngrp:
                grp(q4 + 3)
        O = 72
        for d in range(4):
            for r in range(4):
                a(f"v_permlane32_swap_b32 v{ACC + d*4 + r}, v{ACC + (d+4)*4 + r}")
        for d in range(4):
            for r in range(4):
                dpp_add(O + r * 4 + d, ACC + (d + 4) * 4 + r, ACC + d * 4 + r, 8)
        for r in range(1, 4):
            a(f"v_cmp_eq_u32 vcc, {r}, v11")
            for d in range(4):
                a(f"v_cndmask_b32 v{O+d}, v{O+d}, v{O + r*4 + d}, vcc")

    def tag4(d):
        a(f"v_add_u32 v{d}, {(T4+1)//2}, v{d}")
        a(f"v_bfi_b32 v{d}, {T4}, v{vTAG}, v{d}")

    def check4(regs):
        regs = list(regs)
        for r in regs:
            a(f"v_xor_b32 v{r}, v15, v{r}")
        a(f"v_or_b32 v{vBAD}, v{regs[0]}, v{regs[1]}")
        for i in range(2, len(regs), 2):
            a(f"v_or3_b32 v{vBAD}, v{vBAD}, v{regs[i]}, v{regs[i+1]}")
        a(f"v_and_b32 v{vBAD}, {T4}, v{vBAD}")
        a(f"v_or_b32_dpp v{vBAD}, v{vBAD}, v{vBAD} quad_perm:[1,0,3,2] row_mask:0xf bank_mask:0xf")
        a(f"v_or_b32_dpp v{vBAD}, v{vBAD}, v{vBAD} quad_perm:[2,3,0,1] row_mask:0xf bank_mask:0xf")
        a(f"v_or_b32_dpp v{vBAD}, v{vBAD}, v{vBAD} row_half_mirror row_mask:0xf bank_mask:0xf")

    def lds_wait(addr, val):
        lp, dn = a.label("Lw"), a.label("Lwd")
        a(f"v_mov_b32 v4, {addr}")
        a(f"s_mov_b32 s{sSPIN}, {spin*20}")
        a(f"{lp}:")
        a("ds_read_b32 v5, v4")
        a("s_waitcnt lgkmcnt(0)")
        a(f"v_cmp_eq_u32 vcc, {val}, v5")
        a(f"s_cbranch_vccnz {dn}")
        a("s_sleep 1")
        a(f"s_sub_u32 s{sSPIN}, s{sSPIN}, 1")
        a(f"s_cbranch_scc0 {lp}")
        a(f"{dn}:")

    def get_loc():
        lp, dn = a.label("Lw"), a.label("Lwd")
        a(f"v_mov_b32 v4, {QFL+8}")
        a(f"s_mov_b32 s{sSPIN}, {spin*20}")
        a(f"{lp}:")
        a("ds_read_b32 v5, v4")
        a("s_waitcnt lgkmcnt(0)")
        a(f"v_cmp_ne_u32 vcc, 0, v5")
        a(f"s_cbranch_vccnz {dn}")
        a("s_sleep 1")
        a(f"s_sub_u32 s{sSPIN}, s{sSPIN}, 1")
        a(f"s_cbranch_scc0 {lp}")
        a(f"{dn}:")
        a(f"v_readfirstlane_b32 s{sLOC}, v5")

    def publish_moments(M, soff):
        red4(M, ())
        a(f"v_add_f32_dpp v{M}, v{M}, v{M} quad_perm:[1,0,3,2] row_mask:0xf bank_mask:0xf")
        a(f"v_add_f32_dpp v{M}, v{M}, v{M} quad_perm:[2,3,0,1] row_mask:0xf bank_mask:0xf")
        a(f"v_add_f32_dpp v{M}, v{M}, v{M} row_half_mirror row_mask:0xf bank_mask:0xf")
        tag_round(M, M)
        a("s_mov_b32 exec_lo, 0x01010101\ns_mov_b32 exec_hi, 0x01010101")
        a(f"buffer_store_dword v{M}, v{M+4}, {S4(rWS)}, s{soff} offen sc1")
        a(FULL)

    def moment_addr(d, kp, soff, kind):
        a(f"v_bfe_u32 v{d}, v{vLANE}, 3, 1")
        a(f"v_lshl_add_u32 v{d}, v{d}, 2, v{kp}")
        a(f"v_lshlrev_b32 v{d}, 2, v{d}")
        a(f"s_add_u32 s{soff}, s75, {XS + kind*8192}")

    def hopB1():
        a(f"v_and_b32 v15, {T4}, v{vTAG}")
        a(f"v_lshrrev_b32 v7, 3, v{vLANE}")
        a(f"v_and_b32 v8, 7, v{vLANE}")
        a(f"v_lshlrev_b32 v9, 15, v7")
        a(f"v_lshl_add_u32 v9, v8, 4, v9")
        a(f"s_lshl_b32 s10, s{sL}, 7")
        a(f"s_add_u32 s11, s10, {QFN}")
        a(f"s_add_u32 s10, s10, {QP}")
        kperm(6, 10)
        a(f"v_lshl_add_u32 v10, v8, 2, v6")
        a(f"v_lshlrev_b32 v10, 2, v10")
        get_loc()
        lds_wait(QFL + 4, 2)
        if bdelay:
            a(f"s_sleep {bdelay}")
        pollx(lambda: a(f"buffer_load_dwordx4 {R(32)}, v9, {S4(rWS)}, s10 offen sc1"), lambda: check4(range(32, 36)),
              f2=True, slp=cslp, name='b')
        red4(32, (8,))
        a("v_cvt_pk_bf16_f32 v32, v32, v32")
        a(f"v_bfi_b32 v32, s{sHI}, v32, v{vTAG}")
        a(MASK8)
        store_grp("buffer_store_dword", "v32", 10, 11)
        a(FULL)
        a(f"v_mov_b32 v4, {QFL+4}\nv_mov_b32 v5, 3")
        a("ds_write_b32 v4, v5")
        a("s_waitcnt lgkmcnt(0)")
        stamp(14)
        a("s_branch L_fin")

    def hopB2():
        a(f"v_lshlrev_b32 v9, 4, v{vLANE}")
        a(f"s_lshl_b32 s10, s{sXCD}, 12")
        a(f"s_add_u32 s10, s10, {QFN}")
        lds_wait(QFL + 4, 3)

        def ld():
            for i in range(4):
                a(f"buffer_load_dwordx4 {R(32 + i*4)}, v9, {S4(rWS)}, s10 offen offset:{i*1024} sc1")
        pollx(ld, lambda: check_regs(range(32, 48)), slp=cslp, name='c')
        for e in range(8):
            a(f"v_perm_b32 v{48+e}, v{33+2*e}, v{32+2*e}, s{sSELHI}")
        a(f"v_lshlrev_b32 v9, 3, v{vLANE}")
        a(f"v_add_u32 v9, {QB}, v9")
        for i in range(4):
            a(f"ds_write_b64 v9, {R(48 + 2*i, 2)} offset:{i*512}")
        a(f"v_mov_b32 v4, {QFL}\nv_mov_b32 v5, 2")
        a("s_waitcnt lgkmcnt(0)")
        a("ds_write_b32 v4, v5")
        a("s_waitcnt lgkmcnt(0)")
        stamp(4)
        a("s_branch L_fin")

    def hopB(half):
        a(f"v_and_b32 v15, {T4}, v{vTAG}")
        a(f"v_lshlrev_b32 v9, 4, v{vLANE}")
        a(f"s_lshl_b32 s10, s{sXCD}, 12")
        a(f"s_add_u32 s10, s10, {QP + half*2048}")
        for i in range(bdelay):
            a("s_sleep 37")

        def ld():
            for p in range(8):
                a(f"s_add_u32 s9, s10, {p*32768}")
                for i in range(2):
                    a(f"buffer_load_dwordx4 {R(32 + p*8 + i*4)}, v9, {S4(rWS)}, s9 offen offset:{i*1024} sc1")
        pollx(ld, lambda: check4(range(32, 96)), f2=True, slp=cslp)
        for st in (32, 16, 8):
            for e in range(st):
                a(f"v_add_f32 v{32+e}, v{32+e}, v{32+st+e}")
        for e in range(4):
            a(f"v_cvt_pk_bf16_f32 v{40+e}, v{32+2*e}, v{33+2*e}")
        a(f"v_lshlrev_b32 v9, 3, v{vLANE}")
        a(f"v_add_u32 v9, {QB + half*1024}, v9")
        for i in range(2):
            a(f"ds_write_b64 v9, {R(40 + 2*i, 2)} offset:{i*512}")
        a(f"v_mov_b32 v4, {QFL}\nv_mov_b32 v5, 1")
        a("s_waitcnt lgkmcnt(0)")
        a("s_mov_b64 exec, 1")
        a("ds_add_u32 v4, v5")
        a(FULL)
        a("s_waitcnt lgkmcnt(0)")
        stamp(4)
        a("s_branch L_fin")

    def f2_pack(src, dst):
        for k in range(4):
            a(f"v_mov_b32 v{dst+2*k}, v{src+k}")
            a(f"v_mov_b32 v{dst+2*k+1}, s{sEP}")

    def consumer_ids():
        a(f"s_lshr_b32 s12, s{sAI}, 2")
        a(f"s_and_b32 s13, s{sAI}, 3")
        a(f"s_lshl_b32 s13, s13, 5")
        a(f"s_lshl_b32 s9, s{sXCD}, 7")
        a(f"s_add_u32 s13, s13, s9")
        a(f"s_lshl_b32 s75, s12, 12")
        a(f"s_lshl_b32 s9, s13, 2")
        a(f"s_add_u32 s75, s75, s9")

    def w1_dma(vm, T):
        srd(rT0, pW1, 7340032)
        a(f"v_lshrrev_b32 v8, 4, v{vLANE}")
        a(f"v_mul_u32_u24 v8, 7168, v8")
        a(f"v_and_b32 v9, 15, v{vLANE}")
        a(f"v_lshl_add_u32 v8, v9, 4, v8")
        a(f"s_and_b32 s10, s{sBI}, 3")
        a(f"s_lshl_b32 s10, s10, 3")
        a(f"s_add_u32 s10, s10, s{sWAVE}")
        a(f"s_mul_i32 s10, s10, {32*7168}")
        a(f"s_lshr_b32 s11, s{sBI}, 2")
        a(f"s_lshl_b32 s11, s11, 8")
        a(f"s_add_u32 s10, s10, s11")
        a(f"s_lshl_b32 s11, s{sWAVE}, 13")
        t = None
        for i in range(8):
            a(f"s_add_u32 m0, s11, {WT + i*1024}")
            a(f"s_add_u32 s9, s10, {4*i*7168}")
            wait_n(T)
            t = vm.issue(f"buffer_load_dwordx4 v8, {S4(rT0)}, s9 offen {nt} lds")
        return t

    a(f"s_cmp_eq_u32 s{sW12}, 1")
    a("s_cbranch_scc1 L_moda")
    srd(rWS, pWS, WS_BYTES)
    a(f"s_cmp_ge_u32 s{sW12}, 4")
    a("s_cbranch_scc1 L_att")
    a(f"s_cmp_eq_u32 s{sW12}, 0")
    a("s_cbranch_scc1 L_chain")
    a(f"s_cmp_eq_u32 s{sW12}, 2")
    a("s_cbranch_scc1 L_red")

    if codewarm:
        lw = a.label("Lnowarm")
        a(f"s_cmp_lt_u32 s{sIDX}, 30")
        a(f"s_cbranch_scc1 {lw}")
        a("s_getpc_b64 s[10:11]")
        a("L_pc0:")
        a(f"v_lshlrev_b32 v8, 4, v{vLANE}")
        a(f"s_mov_b32 s9, 0")
        lp = a.label("Lwarm")
        a(f"{lp}:")
        a(f"v_min_u32 v9, L_end-L_pc0-16, v8")
        a(f"global_load_dwordx4 {R(64)}, v9, s[10:11]")
        a(f"v_add_u32 v8, 1024, v8")
        a(f"s_add_u32 s9, s9, 1024")
        a(f"s_cmp_lt_u32 s9, L_end-L_pc0")
        a(f"s_cbranch_scc1 {lp}")
        a(f"{lw}:")
    a("s_barrier")
    get_tag()
    if quiet & 1:
        lds_wait(QFL, 2)
    a(f"s_and_b32 s12, s{sIDX}, 3")
    a(f"s_lshl_b32 s13, s12, 8")
    a(f"s_lshr_b32 s14, s{sIDX}, 3")
    a(f"s_lshl_b32 s14, s14, 4")
    a(f"s_lshl_b32 s9, s{sXCD}, 1")
    a(f"s_add_u32 s14, s14, s9")
    a(f"s_bfe_u32 s9, s{sIDX}, 0x10002")
    a(f"s_add_u32 s14, s14, s9")
    a(f"s_lshl_b32 s88, s14, 7")
    a(f"s_add_u32 s88, s88, 4096")
    a(f"s_lshl_b32 s15, s12, 15")
    a(f"s_lshl_b32 s9, s14, 8")
    a(f"s_add_u32 s15, s15, s9")
    a(f"s_add_u32 s15, s15, {MODP}")
    prewrite(64, 4, 14, 15)
    mod_tile(4, 13, 88, thrb, lambda: None)
    for d in range(4):
        tag_round(72 + d, 72 + d)
    a(f"v_lshlrev_b32 v9, 4, v9")
    a(f"v_lshl_add_u32 v9, v10, 14, v9")
    get_loc()
    a(MASK8)
    store_grp("buffer_store_dwordx4", R(72), 9, 15)
    a(FULL)
    stamp(16)
    if nomodfin:
        a("s_branch L_fin")
    a(f"s_bitcmp1_b32 s{sIDX}, 0")
    a("s_cbranch_scc1 L_fin")
    a(f"s_cmp_ge_u32 s{sAI}, 8")
    a("s_cbranch_scc1 L_fin")
    GA, XV, B2V = 32, 48, 49
    lds_wait(QFL, 2)
    consumer_ids()
    srd(rT0, pX, 4096)
    srd(rT1, pB2, 2048)
    kperm(4, 5)
    a(f"v_and_b32 v8, 7, v{vLANE}")
    a(f"v_lshl_add_u32 v11, v8, 2, v4")
    a(f"v_lshlrev_b32 v5, 1, v11")
    a(f"s_lshr_b32 s9, s75, 1")
    a(f"buffer_load_ushort v{XV}, v5, {S4(rT0)}, s9 offen")
    a(f"s_lshl_b32 s9, s13, 1")
    a(f"buffer_load_ushort v{B2V}, v5, {S4(rT1)}, s9 offen")
    for r in range(16):
        a(f"v_mov_b32 v{GA+r}, 0")
    a(f"v_lshlrev_b32 v10, 15, v7")
    a(f"v_lshl_add_u32 v10, v8, 4, v10")
    a(f"s_lshl_b32 s14, s12, 14")
    a(f"s_lshl_b32 s9, s13, 2")
    a(f"s_add_u32 s14, s14, s9")

    def gloads():
        for k in range(4):
            a(f"s_add_u32 s9, s14, {MODP + k*4096}")
            a(f"buffer_load_dwordx4 {R(GA + 4*k)}, v10, {S4(rWS)}, s9 offen sc1")
    a("s_mov_b32 exec_hi, 0")
    pollx(gloads, lambda: check_regs(range(GA, GA + 16)), slp=16, name='m')
    for k in range(4):
        red4(GA + 4 * k, (8,))
    rnd2(GA, GA + 12, 5)
    rnd2(GA + 4, GA + 8, 5)
    a(f"v_add_f32 v{GA+8}, 1.0, v{GA+8}")
    rnd1(GA + 8, GA + 8)
    a(f"v_or_b32 v{GA+4}, v{vTAG}, v{GA+4}\nv_or_b32 v{GA+8}, v{vTAG}, v{GA+8}")
    a(f"v_lshlrev_b32 v9, 2, v11")
    a(f"s_add_u32 s9, s75, {X1 + 8192}")
    a(f"s_add_u32 s10, s75, {X1 + 16384}")
    a(MASK8)
    a(f"buffer_store_dword v{GA+4}, v9, {S4(rWS)}, s9 offen sc1")
    a(f"buffer_store_dword v{GA+8}, v9, {S4(rWS)}, s10 offen sc1")
    a(FULL)
    lo(XV, XV)
    lo(B2V, B2V)
    a(f"v_add_u32 v5, {XB}, v9")
    a(f"ds_write_b32 v5, v{GA+12} offset:128")
    a(f"ds_write_b32 v5, v{B2V} offset:256")
    a(f"ds_write_b32 v5, v{GA} offset:384")
    a(f"ds_write_b32 v5, v{XV} offset:512")
    a(f"v_xor_b32 v{GA+4}, v{vTAG}, v{GA+4}\nv_xor_b32 v{GA+8}, v{vTAG}, v{GA+8}")
    a(f"ds_write_b32 v5, v{GA+4}")
    a(f"ds_write_b32 v5, v{GA+8} offset:640")
    moment_addr(56, 4, 10, 1)
    a(f"v_mov_b32 v52, v{GA+8}")
    a(f"v_mul_f32 v53, v{GA+8}, v{GA+8}")
    a(f"v_mul_f32 v54, v{GA+8}, v{GA+4}")
    a(f"v_mov_b32 v55, v{GA+4}")
    a("s_mov_b32 exec_lo, 0xff00ff00\ns_mov_b32 exec_hi, 0xff00ff00")
    a(f"v_mul_f32 v52, v{GA+4}, v{GA+4}")
    a("v_mov_b32 v53, 0\nv_mov_b32 v54, 0\nv_mov_b32 v55, 0")
    a(FULL)
    publish_moments(52, 10)
    a("s_waitcnt lgkmcnt(0)")
    a("s_branch L_fin")

    a("L_moda:")
    a("s_setprio 3")
    a(f"s_lshr_b32 s12, s{sIDX}, 2")
    a(f"s_lshl_b32 s13, s12, 7")
    a(f"s_bfe_u32 s14, s{sIDX}, 0x10001")
    a(f"s_and_b32 s15, s{sIDX}, 1")
    a(f"s_lshl_b32 s88, s14, 11")
    a(f"s_lshl_b32 s9, s{sXCD}, 8")
    a(f"s_add_u32 s88, s88, s9")
    a(f"s_lshl_b32 s9, s15, 7")
    a(f"s_add_u32 s88, s88, s9")

    def after_a():
        a("s_barrier")
        srd(rWS, pWS, WS_BYTES)
        get_tag()
        a(f"s_lshl_b32 s13, s{sXCD}, 14")
        a(f"s_lshl_b32 s9, s12, 11")
        a(f"s_add_u32 s13, s13, s9")
        a(f"s_lshl_b32 s9, s14, 10")
        a(f"s_add_u32 s13, s13, s9")
        a(f"s_lshl_b32 s9, s15, 8")
        a(f"s_add_u32 s13, s13, s9")
        a(f"s_add_u32 s13, s13, {MA}")
        prewrite(64, 4, 9, 13)
    mod_tile(2, 13, 88, 0, after_a)
    for d in range(4):
        tag4(72 + d)
    a(f"v_lshlrev_b32 v9, 4, v9")
    a(f"v_lshl_add_u32 v9, v10, 9, v9")
    a(MASK8)
    a(f"buffer_store_dwordx4 {R(72)}, v9, {S4(rWS)}, s13 offen")
    a(FULL)
    a(f"v_mov_b32 v4, {QFL+12}\nv_mov_b32 v5, 1")
    a("ds_write_b32 v4, v5")
    stamp(1)
    a("s_getreg_b32 s88, hwreg(HW_REG_XCC_ID)")
    a("s_lshl_b32 s88, s88, 12")
    if xdelay:
        a(f"s_sleep {xdelay}")
    a(f"v_and_b32 v8, 31, v{vLANE}")
    a(f"v_lshlrev_b32 v8, 7, v8")
    a(f"s_lshl_b32 s10, s{sXCD}, 12")
    a(f"s_add_u32 s10, s10, {XID}")
    pollx(lambda: a(f"buffer_load_dwordx4 {R(32)}, v8, {S4(rWS)}, s10 offen sc1"), lambda: check_regs(range(32, 36)), name='x')
    if 'x' in skip:
        a("v_mov_b32 v32, s88")
    a("v_cmp_ne_u32 vcc, s88, v32")
    a("s_cmp_eq_u64 vcc, 0")
    a(f"s_cselect_b32 s{sLOC}, {2 if noloc else 1}, 2")
    a(f"v_mov_b32 v4, {QFL+8}\nv_mov_b32 v5, s{sLOC}")
    a("ds_write_b32 v4, v5")
    stamp(25)
    a(f"s_cmp_eq_u32 s{sLOC}, 1")
    a("s_cbranch_scc1 L_maok")
    a(MASK8)
    a(f"buffer_store_dwordx4 {R(72)}, v9, {S4(rWS)}, s13 offen sc1")
    a(FULL)
    a("L_maok:")
    if b2stage:
        hopB2()
    else:
        lds_wait(QFL + 4, 2)
        hopB(0)

    a("L_red:")
    a("s_setprio 3")
    vm = Vm(a)
    srd(rT1, pX, 4096)
    a(f"v_lshrrev_b32 v10, 5, v{vLANE}")
    a(f"v_and_b32 v11, 31, v{vLANE}")
    a(f"v_lshlrev_b32 v9, 11, v10")
    a(f"v_lshl_add_u32 v9, v11, 4, v9")
    for q in range(4):
        vm.issue(f"buffer_load_dwordx4 {R(72 + q*4)}, v9, {S4(rT1)}, 0 offen offset:{q*512}")
    a(f"v_lshlrev_b32 v9, 11, v10")
    a(f"v_lshl_add_u32 v9, v11, 3, v9")
    a(f"s_lshl_b32 s11, s{sXCD}, 8")
    tx = vm.issue(f"buffer_load_dwordx2 {R(88, 2)}, v9, {S4(rT1)}, s11 offen")
    a("s_getreg_b32 s88, hwreg(HW_REG_XCC_ID)")
    a("s_lshl_b32 s88, s88, 12")
    a(f"v_lshlrev_b32 v4, 4, v{vLANE}")
    a(f"s_lshl_b32 s9, s{sL}, 7")
    a(f"s_add_u32 s9, s9, {XID}")
    get_tag()
    a(f"v_or_b32 v96, s88, v{vTAG}")
    a("v_mov_b32 v97, v96\nv_mov_b32 v98, v96\nv_mov_b32 v99, v96")
    a("s_mov_b64 exec, 0xff")
    if 'X' not in skip:
        a(f"buffer_store_dwordx4 {R(96)}, v4, {S4(rWS)}, s9 offen sc1")
    a(FULL)
    a(f"s_add_u32 s9, s9, {QFN - XID}")
    prewrite(100, 2, 6, 9)
    a("s_barrier")
    if pure == 1:
        a("s_branch L_fin")
    a("s_waitcnt vmcnt(0)")
    a("v_mov_b32 v4, 0\nv_mov_b32 v5, 0")
    for i in range(16):
        lo(6, 72 + i)
        hi(8, 72 + i)
        a(f"v_add_f32 v4, v4, v6\nv_fmac_f32 v5, v6, v6")
        a(f"v_add_f32 v4, v4, v8\nv_fmac_f32 v5, v8, v8")
    for r in (1, 2, 4, 8):
        dpp_add(4, 4, 4, r)
        dpp_add(5, 5, 5, r)
    allred(4, 6, "v_add_f32", (16,))
    allred(5, 6, "v_add_f32", (16,))
    ln_stats(4, 5, 6, 8, 9)
    for i in range(2):
        lo(24 + 2 * i, 88 + i)
        hi(25 + 2 * i, 88 + i)
        ln_apply(24 + 2 * i, 25 + 2 * i, 6, 8, 9)
    a(f"v_and_b32 v15, {T4}, v{vTAG}")
    a(f"v_lshlrev_b32 v9, 4, v{vLANE}")
    a(f"s_lshl_b32 s10, s{sXCD}, 14")
    a(f"s_add_u32 s10, s10, {MA}")

    if agate:
        lds_wait(QFL + 12, 1)
    if adelay:
        a(f"s_sleep {adelay}")

    def ldA():
        for p in range(8):
            if p % 2 == 0:
                a(f"s_add_u32 s9, s10, {p*2048}")
            for wh in range(2):
                a(f"buffer_load_dwordx4 {R(32 + p*8 + wh*4)}, v9, {S4(rWS)}, s9 offen offset:{(p % 2)*2048 + wh*1024} sc1")
    pollx(ldA, lambda: check4(range(32, 96)), f2=True, slp=cslp, name='a')
    stamp(2)
    for st in (32, 16, 8):
        for e in range(st):
            a(f"v_add_f32 v{32+e}, v{32+e}, v{32+st+e}")
    for i in range(2):
        s0, c0, l0 = 32 + 2 * i, 36 + 2 * i, 24 + 2 * i
        rnd2(s0, s0 + 1, 6)
        rnd2(c0, c0 + 1, 6)
        a(f"v_add_f32 v{c0}, 1.0, v{c0}\nv_add_f32 v{c0+1}, 1.0, v{c0+1}")
        rnd2(c0, c0 + 1, 6)
        a(f"v_mul_f32 v{c0}, v{c0}, v{l0}\nv_mul_f32 v{c0+1}, v{c0+1}, v{l0+1}")
        rnd2(c0, c0 + 1, 6)
        a(f"v_add_f32 v{c0}, v{c0}, v{s0}\nv_add_f32 v{c0+1}, v{c0+1}, v{s0+1}")
        a(f"v_cvt_pk_bf16_f32 v{40+i}, v{c0}, v{c0+1}")
    a(f"v_lshlrev_b32 v9, 3, v{vLANE}")
    a(f"v_add_u32 v9, {HB}, v9")
    a(f"ds_write_b64 v9, {R(40, 2)}")
    a(f"v_mov_b32 v4, {QFL+4}\nv_mov_b32 v5, 1")
    a("s_waitcnt lgkmcnt(0)")
    a("ds_write_b32 v4, v5")
    stamp(17)
    if b2stage:
        hopB1()
    else:
        lds_wait(QFL + 4, 2)
        hopB(1)

    a("L_chain:")
    a("s_setprio 3")
    W = 40
    srd(rT0, pWQ, 8388608)
    a(f"v_mov_b32 v4, {QFL}\nv_mov_b32 v5, 0")
    a("ds_write_b32 v4, v5")
    a("ds_write_b32 v4, v5 offset:4")
    a("ds_write_b32 v4, v5 offset:8")
    a("ds_write_b32 v4, v5 offset:12")
    a(f"v_lshlrev_b32 v4, 2, v{vLANE}")
    a(f"v_add_u32 v4, {ZB}, v4")
    a("ds_write_b32 v4, v5")
    a(f"v_lshrrev_b32 v11, 4, v{vLANE}")
    a(f"v_lshlrev_b32 v8, 16, v11")
    a(f"v_and_b32 v15, 15, v{vLANE}")
    a(f"v_lshl_add_u32 v8, v15, 4, v8")
    a(f"s_lshl_b32 s10, s{sXCD}, 20")
    a(f"s_lshl_b32 s11, s{sIDX}, 8")
    a(f"s_add_u32 s10, s10, s11")
    get_tag()
    a("s_barrier")
    for blk in range(4):
        for e in range(8):
            a(f"s_add_u32 s9, s10, {(32*blk+e)*8192}")
            wait_n(thrq)
            a(f"buffer_load_dwordx4 {R(W + blk*32 + e*4)}, v8, {S4(rT0)}, s9 offen {nt}")
    if stamps == 1:
        a("s_waitcnt vmcnt(0)")
        stamp(18)
    if pure == 1:
        a("s_branch L_fin")
    a(f"v_bfe_u32 v6, v{vLANE}, 2, 1")
    a(f"v_lshlrev_b32 v8, 8, v6")
    a(f"v_lshl_add_u32 v8, v11, 4, v8")
    a(f"v_add_u32 v8, {HB}, v8")
    a(f"v_mov_b32 v7, {ZB}")
    a(f"v_lshrrev_b32 v9, 5, v{vLANE}")
    a(f"v_lshl_add_u32 v9, v15, 1, v9")
    a(f"v_lshlrev_b32 v9, 4, v9")
    a(f"v_and_b32 v6, 1, v11")
    a(f"v_lshl_add_u32 v9, v6, 14, v9")
    a(f"s_lshl_b32 s10, s{sXCD}, 15")
    a(f"s_lshl_b32 s11, s{sIDX}, 9")
    a(f"s_add_u32 s10, s10, s11")
    a(f"s_add_u32 s10, s10, {QP}")
    lds_wait(QFL + 4, 1)
    a("s_waitcnt vmcnt(0)")
    stamp(19)
    ACC = 4
    first = True
    for d in range(8):
        m16 = (0x11 << (d & 3)) << (8 * (d >> 2))
        m32 = m16 | (m16 << 16)
        a(f"s_mov_b32 vcc_lo, {m32:#x}\ns_mov_b32 vcc_hi, {m32:#x}")
        a(f"v_cndmask_b32 v10, v7, v8, vcc")
        for blk in range(4):
            a(f"ds_read_b128 {R(16 + blk*4)}, v10 offset:{blk*64}")
        for blk in range(4):
            t = 32 + (blk & 1) * 4
            perm_operand(t, W + blk * 32, d)
            a(f"s_waitcnt lgkmcnt({3-blk})")
            a(f"v_mfma_f32_16x16x32_bf16 {R(2)}, {R(16 + blk*4)}, {R(t)}, {'0' if first else R(2)}")
            first = False
    for d in range(4):
        tag4(2 + d)
    if 'Q' not in skip:
        a(f"buffer_store_dwordx4 {R(2)}, v9, {S4(rWS)}, s10 offen sc1")
    a(f"v_mov_b32 v8, {QFL+4}\nv_mov_b32 v7, 2")
    a("ds_write_b32 v8, v7")
    a("s_waitcnt lgkmcnt(0)")
    stamp(3)
    if hpt:
        a(f"s_bitcmp1_b32 s{sIDX}, 0")
        a("s_cbranch_scc1 L_ptB")
        a(f"v_lshrrev_b32 v9, 1, v{vLANE}")
        a(f"v_lshlrev_b32 v9, 9, v9")
        a(f"v_and_b32 v10, 1, v{vLANE}")
        a(f"v_lshl_add_u32 v9, v10, 7, v9")
        a(f"s_lshr_b32 s9, s{sL}, 2")
        a(f"s_lshl_b32 s10, s9, 14")
        a(f"s_and_b32 s9, s{sIDX}, 3")
        a(f"s_lshl_b32 s9, s9, 7")
        a(f"s_add_u32 s10, s10, s9")
        a(f"s_add_u32 s10, s10, {OP}")
        a(f"buffer_load_dword v16, v9, {S4(rWS)}, s10 offen {ptpol}")
        a(f"v_bfe_u32 v9, v{vLANE}, 2, 2")
        a(f"v_lshlrev_b32 v9, 12, v9")
        a(f"v_and_b32 v10, 3, v{vLANE}")
        a(f"v_lshl_add_u32 v9, v10, 7, v9")
        a(f"s_lshl_b32 s10, s{sIDX}, 13")
        a(f"s_lshl_b32 s9, s{sXCD}, 9")
        a(f"s_add_u32 s10, s10, s9")
        a(f"s_add_u32 s10, s10, {XP}")
        a(f"buffer_load_dword v17, v9, {S4(rWS)}, s10 offen {ptpol}")
        a("s_branch L_fin")
        a("L_ptB:")
        a(f"v_and_b32 v9, 7, v{vLANE}")
        a(f"v_lshlrev_b32 v9, 7, v9")
        a(f"s_lshl_b32 s10, s{sBI}, 10")
        a(f"s_add_u32 s10, s10, {HP}")
        a(f"buffer_load_dword v16, v9, {S4(rWS)}, s10 offen {ptpol}")
    a("s_branch L_fin")

    QF, DT, PT, KV = 16, 24, 32, 40
    if pure >= 2:
        def drop(l):
            if "buffer_store" in l:
                if pure in (3, 4): return True
                if pure == 5 and "sc1" in l: return True
                if pure == 6 and "sc1" not in l: return True
            if "buffer_load" in l and "sc1" in l and pure in (2, 4, 5, 6): return True
            return False
        a.lines = [l for l in a.lines if not drop(l)]
    a("L_att:")
    srd(rK, pK, 0x4000000)
    srd(rV, pV, 0x4000000)
    a(f"s_lshl_b32 s{sKV}, s{sL}, 18")
    a(f"s_lshl_b32 s9, s{sWAVE}, 12")
    a(f"s_add_u32 s{sKV}, s{sKV}, s9")
    a(f"v_lshlrev_b32 v{vOV}, 4, v{vLANE}")
    a(f"v_and_b32 v6, 3, v{vLANE}")
    a(f"v_lshlrev_b32 v6, 10, v6")
    a(f"v_bfe_u32 v5, v{vLANE}, 2, 1")
    a(f"v_lshl_add_u32 v6, v5, 8, v6")
    a(f"v_lshl_add_u32 v{vOK}, v7, 4, v6")
    if klin == 1:
        a(f"v_and_b32 v6, 7, v{vLANE}\nv_lshlrev_b32 v6, 8, v6\nv_lshl_add_u32 v{vOK}, v7, 4, v6")
    if klin == 2:
        a(f"v_mov_b32 v{vOK}, v{vOV}")
    a(f"v_mov_b32 v4, {QFL}")
    a("s_mov_b64 vcc, 0")
    get_tag()
    a("s_barrier")
    if attdma:
        a(f"s_bitcmp1_b32 s{sIDX}, 0")
        a("s_cbranch_scc1 L_adw1")
        srd(rT2, pWO, 8388608)
        a(f"v_lshrrev_b32 v8, 4, v{vLANE}")
        a(f"v_lshlrev_b32 v8, 11, v8")
        a(f"v_and_b32 v9, 15, v{vLANE}")
        a(f"v_lshl_add_u32 v8, v9, 4, v8")
        a(f"s_lshl_b32 s10, s{sAI}, 19")
        a(f"s_lshl_b32 s11, s{sXCD}, 8")
        a(f"s_add_u32 s10, s10, s11")
        a(f"s_lshl_b32 s11, s{sWAVE}, 16")
        a(f"s_add_u32 s10, s10, s11")
        a(f"s_lshl_b32 s11, s{sWAVE}, 13")
        for i in range(8):
            a(f"s_add_u32 m0, s11, {WT + i*1024}")
            a(f"s_add_u32 s9, s10, {i*8192}")
            wait_n(thrw)
            a(f"buffer_load_dwordx4 v8, {S4(rT2)}, s9 offen {nt} lds")
        a("s_branch L_adone")
        a("L_adw1:")
        if w1_early:
            a(f"s_cmp_ge_u32 s{sBI}, 112")
            a("s_cbranch_scc1 L_adone")
            w1_dma(Vm(a), thrw)
        a("L_adone:")
        stamp(21)
    if quiet & 4:
        lds_wait(QFL, 2)
    thr_n = [0]

    def thr_wait():
        thr_n[0] += 1
        lsk = a.label("Lthr")
        a(f"s_cbranch_vccnz {lsk}")
        if thr_n[0] % 2 == 0:
            a("ds_read_b32 v5, v4")
        a(f"s_waitcnt vmcnt({thr-1})")
        if thr_n[0] % 2 == 0:
            a("s_waitcnt lgkmcnt(0)")
            a("v_cmp_eq_u32 vcc, 2, v5")
        a(f"{lsk}:")
        wait_n(thr2)

    vm = Vm(a)
    order = [2, 3, 0, 1, 4, 5, 6, 7]
    pos = {s: i for i, s in enumerate(order)}
    tk = {}
    for s in order:
        a(f"s_add_u32 s9, s{sKV}, {pos[s]*32768}")
        for t in range(2):
            for h in range(2):
                if thr:
                    thr_wait()
                tk[s] = vm.issue(f"buffer_load_dwordx4 {R(KV + s*16 + t*8 + h*4)}, v{vOK}, {S4(rK)}, s9 offen offset:{(t*512 + h*128, t*2048 + h*128, t*2048 + h*1024)[klin]} {nt}")
    vblk = [KV + 32, KV + 64, KV + 96, KV + 32]
    tv = [None] * 4

    def vload(v):
        for e in range(8):
            if e % 4 == 0:
                a(f"s_add_u32 s9, s{sKV}, {(2*v + e//4)*32768}")
            wait_n(thrv)
            tv[v] = vm.issue(f"buffer_load_dwordx4 {R(vblk[v] + e*4)}, v{vOV}, {S4(rV)}, s9 offen offset:{(e % 4)*1024} {nt}")
    stamp(20)
    if pure:
        vm.wait(tk[3]); vload(0); vm.wait(tk[5]); vload(1); vm.wait(tk[7]); vload(2); vm.wait(tv[0]); vload(3)
        a("s_waitcnt vmcnt(0)")
        stamp(8)
        a("s_branch L_fin")
    lds_wait(QFL, 2)
    stamp(5)
    a(f"v_and_b32 v8, 7, v{vLANE}")
    a(f"v_lshlrev_b32 v9, 8, v8")
    a(f"v_lshl_add_u32 v9, v7, 4, v9")
    a(f"v_add_u32 v9, {QB}, v9")
    a(f"ds_read_b128 {R(QF)}, v9")
    a(f"ds_read_b128 {R(QF+4)}, v9 offset:128")
    a("s_waitcnt lgkmcnt(0)")
    Sreg = [PT, PT + 4, KV, KV + 4, KV + 8, KV + 12, KV + 16, KV + 20]

    def qk_mfma(s, X, Y):
        vm.wait(tk[s])
        k0 = KV + s * 16
        a(f"v_mfma_f32_16x16x32_bf16 {R(X)}, {R(k0)}, {R(QF)}, 0")
        a(f"v_mfma_f32_16x16x32_bf16 {R(Y)}, {R(k0+8)}, {R(QF)}, 0")
        a(f"v_mfma_f32_16x16x32_bf16 {R(X)}, {R(k0+4)}, {R(QF+4)}, {R(X)}")
        a(f"v_mfma_f32_16x16x32_bf16 {R(Y)}, {R(k0+12)}, {R(QF+4)}, {R(Y)}")

    def qk_post(p, X, Y):
        S = Sreg[p]
        for r in range(4):
            a(f"v_permlane32_swap_b32 v{X+r}, v{Y+r}")
        for r in range(4):
            dpp_add(S + r, Y + r, X + r, 8)
        for r in (0, 2):
            rnd2(S + r, S + r + 1, 4)
            a(f"v_mul_f32 v{S+r}, s{sSCALE}, v{S+r}\nv_mul_f32 v{S+r+1}, s{sSCALE}, v{S+r+1}")
            rnd2(S + r, S + r + 1, 4)
        if p == 0:
            a(f"v_max3_f32 v5, v{S}, v{S+1}, v{S+2}")
            a(f"v_max_f32 v5, v5, v{S+3}")
        else:
            a(f"v_max3_f32 v5, v5, v{S}, v{S+1}")
            a(f"v_max3_f32 v5, v5, v{S+2}, v{S+3}")
    qk_mfma(2, PT, DT)
    qk_mfma(3, PT + 4, DT + 4)
    vload(0)
    qk_post(0, PT, DT)
    qk_post(1, PT + 4, DT + 4)
    for s in (0, 1, 4, 5, 6, 7):
        qk_mfma(s, DT, DT + 4)
        if s == 5:
            vload(1)
        qk_post(pos[s], DT, DT + 4)
    allred(5, 6, "v_max_f32", (32, 16))
    a(f"v_lshlrev_b32 v9, 5, v8")
    a(f"v_add_u32 v10, {MX}, v9")
    a(f"s_lshl_b32 s9, s{sWAVE}, 2")
    a(f"v_add_u32 v11, s9, v10")
    a("s_mov_b64 exec, 0xff")
    a(f"ds_write_b32 v11, v5")
    a(FULL)
    if vearly:
        vload(2)
    a("s_waitcnt lgkmcnt(0)")
    stamp(6)
    a("s_barrier")
    a(f"v_mov_b32 v4, {QFL+8}")
    a(f"ds_read_b128 {R(16)}, v10")
    a(f"ds_read_b128 {R(20)}, v10 offset:16")
    a(f"ds_read_b32 v4, v4")
    a("s_waitcnt lgkmcnt(0)")
    a(f"v_readfirstlane_b32 s{sLOC}, v4")
    a(f"v_max3_f32 v5, v16, v17, v18\nv_max3_f32 v5, v5, v19, v20\nv_max3_f32 v5, v5, v21, v22\nv_max_f32 v5, v5, v23")
    a(f"v_mul_f32 v6, s{sLOG2E}, v5")
    a("v_mov_b32 v4, 0")
    sl = [Sreg[p] + r for p in range(8) for r in range(4)]
    for i, x in enumerate(sl):
        a(f"v_fma_f32 v{x}, v{x}, s{sLOG2E}, -v6")
        a(f"v_exp_f32 v{x}, v{x}")
        if i:
            a(f"v_add_f32 v4, v4, v{sl[i-1]}")
    a(f"v_add_f32 v4, v4, v{sl[31]}")
    for i in range(16):
        a(f"v_cvt_pk_bf16_f32 v{QF+i}, v{sl[2*i]}, v{sl[2*i+1]}")
    allred(4, 6, "v_add_f32", (32, 16))
    a("s_mov_b64 exec, 0xff")
    a(f"ds_write_b32 v11, v4 offset:{LX-MX}")
    a(FULL)
    a("s_waitcnt lgkmcnt(0)")
    a("s_barrier")
    a(f"s_cmp_lg_u32 s{sWAVE}, 4")
    a("s_cbranch_scc1 L_noml")
    a(f"ds_read_b128 {R(32)}, v10 offset:{LX-MX}")
    a(f"ds_read_b128 {R(36)}, v10 offset:{LX-MX+16}")
    a(f"s_lshl_b32 s10, s{sL}, 7")
    a(f"s_add_u32 s10, s10, {ML}")
    a(f"v_lshlrev_b32 v9, 4, v8")
    a("s_waitcnt lgkmcnt(0)")
    a("v_add_f32 v32, v32, v33\nv_add_f32 v34, v34, v35\nv_add_f32 v36, v36, v37\nv_add_f32 v38, v38, v39")
    a("v_add_f32 v32, v32, v34\nv_add_f32 v36, v36, v38\nv_add_f32 v33, v32, v36")
    tag_trunc(32, 5)
    tag_trunc(33, 33)
    a("v_mov_b32 v34, v32\nv_mov_b32 v35, v33")
    a("s_mov_b64 exec, 0xff")
    store_grp("buffer_store_dwordx4", R(32), 9, 10)
    a(FULL)
    a("L_noml:")
    if not vearly:
        vload(2)
    a(f"v_mul_u32_u24 v9, 528, v8")
    a(f"v_lshrrev_b32 v10, 4, v{vLANE}")
    a(f"v_lshl_add_u32 v9, v10, 4, v9")
    a(f"s_mul_i32 s9, s{sWAVE}, 4224")
    a(f"s_add_u32 s9, s9, {OC}")
    a(f"v_add_u32 v9, s9, v9")
    a(f"v_lshrrev_b32 v10, 5, v{vLANE}")
    a(f"v_mul_u32_u24 v10, {4*4224}, v10")
    a(f"v_and_b32 v11, 31, v{vLANE}")
    a(f"v_lshlrev_b32 v11, 4, v11")
    a(f"s_mul_i32 s9, s{sWAVE}, 528")
    a(f"s_add_u32 s9, s9, {OC}")
    a(f"v_add3_u32 v10, v10, v11, s9")
    a(f"s_lshl_b32 s10, s{sXCD}, 3")
    a(f"s_add_u32 s10, s10, s{sWAVE}")
    a(f"s_lshl_b32 s10, s10, 5")
    a(f"s_add_u32 s10, s10, s{sIDX}")
    a(f"s_lshl_b32 s11, s10, 9")
    a(f"s_add_u32 s11, s11, {OP}")
    if prew:
        prewrite(PT, 4, 8, 11)
        a(f"s_bitcmp1_b32 s{sIDX}, 0")
        a("s_cbranch_scc1 L_pwB")
        a(f"s_lshr_b32 s9, s{sWAVE}, 2")
        a(f"s_add_u32 s9, s9, s{sIDX}")
        a(f"s_lshl_b32 s9, s9, 13")
        a(f"s_lshl_b32 s10, s{sXCD}, 9")
        a(f"s_add_u32 s9, s9, s10")
        a(f"s_and_b32 s10, s{sWAVE}, 3")
        a(f"s_lshl_b32 s10, s10, 7")
        a(f"s_add_u32 s9, s9, s10")
        a(f"s_add_u32 s9, s9, {XP}")
        prewrite(PT, 3, 12, 9)
        a("s_branch L_pwD")
        a("L_pwB:")
        a(f"s_cmp_ge_u32 s{sBI}, 112")
        a("s_cbranch_scc1 L_pwD")
        a(f"s_lshl_b32 s9, s{sBI}, 10")
        a(f"s_lshl_b32 s10, s{sWAVE}, 6")
        a(f"s_add_u32 s9, s9, s10")
        a(f"s_add_u32 s9, s9, {HP}")
        prewrite(PT, 2, 9, 9)
        a("L_pwD:")
    SA = KV
    MLR, F = 104, 120

    def mlloads():
        for i in range(4):
            a(f"buffer_load_dwordx4 {R(MLR + 4*i)}, v15, {S4(rWS)}, s89 offen offset:{i*1024} sc1")
    for v in range(4):
        vm.wait(tv[v])
        for d in range(8):
            t = PT + (d & 1) * 4
            perm_operand(t, vblk[v], d)
            c = "0" if v == 0 else R(SA + d * 4)
            a(f"v_mfma_f32_16x16x32_bf16 {R(SA + d*4)}, {R(t)}, {R(QF + v*4)}, {c}")
        if v == 0:
            vload(3)
        if v == 1:
            a(f"v_lshlrev_b32 v15, 7, v7")
            a(f"s_and_b32 s88, s{sIDX}, 1")
            a(f"s_lshl_b32 s88, s88, 3")
            a(f"s_or_b32 s88, s88, s{sWAVE}")
            a(f"s_cmp_ge_u32 s88, 2")
            a("s_cbranch_scc1 L_noml2")
            a(f"s_lshl_b32 s89, s{sXCD}, 12")
            a(f"s_lshr_b32 s9, s{sIDX}, 2")
            a(f"s_lshl_b32 s9, s9, 4")
            a(f"s_add_u32 s89, s89, s9")
            a(f"s_add_u32 s89, s89, {ML}")
            mlloads()
            a(f"v_lshlrev_b32 v0, 9, v7")
            a(f"v_lshl_add_u32 v0, v8, 4, v0")
            a(f"s_lshr_b32 s9, s{sL}, 2")
            a(f"s_lshl_b32 s90, s9, 14")
            a(f"s_and_b32 s9, s{sIDX}, 3")
            a(f"s_add_u32 s9, s9, s{sWAVE}")
            a(f"s_lshl_b32 s9, s9, 7")
            a(f"s_add_u32 s90, s90, s9")
            a(f"s_add_u32 s90, s90, {OP}")
            for i in range(1, 4):
                a(f"s_add_u32 s{90+i}, s90, {i*4096}")
            if pretouch:
                for i in range(4):
                    a(f"buffer_load_dword v{MLR+16+i}, v0, {S4(rWS)}, s{90+i} offen sc1")
            a("L_noml2:")
    stamp(7)
    a(MASK8)
    for d in range(8):
        a(f"ds_write_b128 v9, {R(SA + d*4)} offset:{d*64}")
    a(FULL)
    a("v_mov_b32 v124, 0")
    a(f"s_cmp_ge_u32 s88, 2")
    a("s_cbranch_scc1 L_nof")
    pollx(mlloads, lambda: check_regs(range(MLR, MLR + 16)), pre_issued=True)
    a(f"v_max3_f32 v5, v{MLR}, v{MLR+4}, v{MLR+8}\nv_max_f32 v5, v5, v{MLR+12}")
    dpp_max(5, 5, 5, 8)
    allred(5, 6, "v_max_f32", (16, 32))
    for i in range(4):
        a(f"v_sub_f32 v{F+i}, v{MLR+4*i}, v5")
        a(f"v_mul_f32 v{F+i}, s{sLOG2E}, v{F+i}")
        a(f"v_exp_f32 v{F+i}, v{F+i}")
    a(f"v_mul_f32 v5, v{F}, v{MLR+1}")
    for i in range(1, 4):
        a(f"v_fmac_f32 v5, v{F+i}, v{MLR+1+4*i}")
    dpp_add(5, 5, 5, 8)
    allred(5, 6, "v_add_f32", (16, 32))
    a("v_rcp_f32 v5, v5")
    for i in range(4):
        a(f"v_mul_f32 v{F+i}, v{F+i}, v5")
    kperm(4, 5)
    a(f"v_lshl_add_u32 v124, v8, 2, v4")
    a(f"v_lshlrev_b32 v124, 2, v124")
    a(f"s_add_u32 s89, s{sL}, s{sWAVE}")
    a(f"s_lshl_b32 s89, s89, 7")
    a(f"s_add_u32 s89, s89, {OF}")
    a("L_nof:")
    a("s_waitcnt lgkmcnt(0)")
    a("s_barrier")
    for k in range(4):
        a(f"ds_read_b128 {R(16 + 4*k)}, v10 offset:{k*4224}")
    a("s_waitcnt lgkmcnt(0)")
    for r in range(4):
        a(f"v_add_f32 v{16+r}, v{16+r}, v{20+r}\nv_add_f32 v{24+r}, v{24+r}, v{28+r}")
    for r in range(4):
        a(f"v_add_f32 v{16+r}, v{16+r}, v{24+r}")
    for r in range(4):
        a(f"v_mov_b32 v{20+r}, v{16+r}")
    for r in range(4):
        a(f"v_permlane32_swap_b32 v{16+r}, v{20+r}")
    for r in range(4):
        a(f"v_add_f32 v{16+r}, v{16+r}, v{20+r}")
    for r in range(4):
        tag_trunc(16 + r, 16 + r)
    a("s_mov_b32 exec_hi, 0")
    store_grp("buffer_store_dwordx4", R(16), 11, 11)
    a(FULL)
    stamp(8)

    def h1a():
        ln = a.label("Lnoh1a")
        a(f"s_cmp_ge_u32 s88, 2")
        a(f"s_cbranch_scc1 {ln}")

        def oloads():
            for i in range(4):
                a(f"buffer_load_dwordx4 {R(MLR + 4*i)}, v0, {S4(rWS)}, s{90+i} offen sc1")
        pollx(oloads, lambda: check_regs(range(MLR, MLR + 16)), slp=0)
        for k in range(4):
            a(f"v_mul_f32 v{MLR+k}, v{F}, v{MLR+k}")
            a(f"v_mul_f32 v{MLR+8+k}, v{F+2}, v{MLR+8+k}")
        for k in range(4):
            a(f"v_fmac_f32 v{MLR+k}, v{F+1}, v{MLR+4+k}")
            a(f"v_fmac_f32 v{MLR+8+k}, v{F+3}, v{MLR+12+k}")
        for k in range(4):
            a(f"v_add_f32 v{MLR+k}, v{MLR+k}, v{MLR+8+k}")
        red4(MLR, (8,))
        a(f"v_cvt_pk_bf16_f32 v{MLR}, v{MLR}, v{MLR}")
        a(f"v_bfi_b32 v{MLR}, s{sHI}, v{MLR}, v{vTAG}")
        a(MASK8)
        a(f"buffer_store_dword v{MLR}, v124, {S4(rWS)}, s89 offen sc1")
        a(FULL)
        stamp(24)
        a(f"{ln}:")
    h1a()
    if notail:
        a("s_branch L_fin")
    a(f"s_bitcmp1_b32 s{sIDX}, 0")
    a("s_cbranch_scc1 L_tailB")

    WOP = 72
    GA, XV, B2V = 110, 111, 112
    a(f"s_lshr_b32 s15, s{sWAVE}, 2")
    a(f"v_lshrrev_b32 v6, 4, v{vLANE}")
    kperm(4, 5)
    a(f"v_bfe_u32 v5, v{vLANE}, 4, 1")
    a(f"v_lshlrev_b32 v5, 6, v5")
    a(f"v_bfe_u32 v7, v{vLANE}, 2, 2")
    a(f"v_lshl_add_u32 v5, v7, 3, v5")
    a(f"v_lshrrev_b32 v7, 5, v{vLANE}")
    a(f"v_add_u32 v5, v5, v7")
    a(f"v_lshlrev_b32 v5, 8, v5")
    a(f"v_and_b32 v7, 3, v{vLANE}")
    a(f"v_lshl_add_u32 v5, v7, 3, v5")
    a(f"s_lshl_b32 s9, s15, 15")
    a(f"s_and_b32 s11, s{sWAVE}, 3")
    a(f"s_lshl_b32 s10, s11, 6")
    a(f"s_add_u32 s9, s9, s10")
    a(f"v_add_u32 v5, s9, v5")
    for ct in range(2):
        for s in range(4):
            for h in range(2):
                a(f"ds_read_b64_tr_b16 {R(WOP + ct*16 + s*4 + h*2, 2)}, v5 offset:{WT + 8192*h + 512*s + 32*ct}")
    a(f"s_lshl_b32 s9, s{sWAVE}, 9")
    a(f"s_add_u32 s9, s9, {OB}")
    a(f"v_lshl_add_u32 v124, v{vLANE}, 3, s9")
    a(f"v_and_b32 v5, 1, v{vLANE}")
    a(f"v_lshlrev_b32 v125, 8, v5")
    a(f"v_lshl_add_u32 v125, v6, 4, v125")
    a(f"v_add_u32 v125, s9, v125")
    a(f"v_lshlrev_b32 v126, 12, v5")
    a(f"v_lshl_add_u32 v126, v6, 4, v126")
    a(f"v_bfe_u32 v5, v{vLANE}, 1, 1")
    a(f"v_lshl_add_u32 v126, v5, 6, v126")
    a(f"v_cmp_eq_u32 s[94:95], 1, v5")
    a(f"s_lshl_b32 s14, s{sAI}, 1")
    a(f"s_add_u32 s14, s14, s15")
    a(f"s_lshl_b32 s10, s14, 13")
    a(f"s_lshl_b32 s9, s{sXCD}, 9")
    a(f"s_add_u32 s10, s10, s9")
    a(f"s_lshl_b32 s9, s11, 7")
    a(f"s_add_u32 s10, s10, s9")
    a(f"s_add_u32 s73, s10, {XP}")
    a(f"v_lshrrev_b32 v9, 5, v{vLANE}")
    a(f"v_lshlrev_b32 v9, 14, v9")
    a(f"v_and_b32 v10, 31, v{vLANE}")
    a(f"v_lshl_add_u32 v9, v10, 4, v9")
    a(f"s_lshl_b32 s74, s14, 9")
    a(f"s_add_u32 s74, s74, {OF}")
    consumer_ids()
    a(f"v_lshrrev_b32 v7, 3, v{vLANE}")
    a(f"v_and_b32 v8, 7, v{vLANE}")
    a(f"v_lshl_add_u32 v11, v8, 2, v4")
    a(f"v_lshlrev_b32 v114, 2, v11")
    a(f"v_add_u32 v5, {XB}, v114")
    a(f"ds_read_b32 v{GA}, v5 offset:384")
    a(f"ds_read_b32 v{XV}, v5 offset:512")
    a(f"ds_read_b32 v{B2V}, v5 offset:256")
    a(f"ds_read_b32 v115, v5 offset:128")
    a(f"ds_read_b32 v116, v5")
    a(f"ds_read_b32 v117, v5 offset:640")
    moment_addr(132, 4, 15, 0)
    a(f"v_bfe_u32 v5, v{vLANE}, 3, 1")
    a(f"v_cmp_eq_u32 s[96:97], 1, v5" if not stamps else f"v_cmp_eq_u32 s[98:99], 1, v5")
    a(f"s_add_u32 s14, s75, {X1}")
    a(f"v_lshlrev_b32 v113, 13, v7")
    a(f"v_lshl_add_u32 v113, v8, 4, v113")
    for i in range(4):
        a(f"s_add_u32 s{90+i}, s75, {XP + i*65536}")

    def xloads():
        for i in range(4):
            a(f"buffer_load_dwordx4 {R(40 + 4*i)}, v113, {S4(rWS)}, s{90+i} offen sc1")
    if pretouch:
        a(f"s_cmp_lg_u32 s{sWAVE}, 7")
        a("s_cbranch_scc1 L_nopt")
        a(f"s_cmp_ge_u32 s{sAI}, 8")
        a("s_cbranch_scc1 L_nopt")
        xloads()
        a("L_nopt:")
    a("s_barrier")
    pollx(lambda: a(f"buffer_load_dwordx4 {R(60)}, v9, {S4(rWS)}, s74 offen sc1"), lambda: check_regs(range(60, 64)))
    stamp(9)
    a(f"v_perm_b32 v60, v61, v60, s{sSELHI}")
    a(f"v_perm_b32 v61, v63, v62, s{sSELHI}")
    a(f"ds_write_b64 v124, {R(60, 2)}")
    a("s_waitcnt lgkmcnt(0)")
    for s in range(4):
        a(f"ds_read_b128 {R(40 + 4*s)}, v125 offset:{s*64}")
    for s in range(4):
        a(f"s_waitcnt lgkmcnt({3-s})")
        for ct in range(2):
            c = "0" if s == 0 else R(56 + 4 * ct)
            a(f"v_mfma_f32_16x16x32_bf16 {R(56 + 4*ct)}, {R(WOP + ct*16 + s*4)}, {R(40 + 4*s)}, {c}")
    for r in range(4):
        a(f"v_cndmask_b32 v{56+r}, v{56+r}, v{60+r}, s[94:95]")
    for r in range(4):
        tag_trunc(56 + r, 56 + r)
    a(f"s_mov_b32 exec_lo, 0x000f000f\ns_mov_b32 exec_hi, 0x000f000f")
    store_grp("buffer_store_dwordx4", R(56), 126, 73)
    a(FULL)
    stamp(10)
    a(f"s_cmp_ge_u32 s{sAI}, 8")
    a("s_cbranch_scc1 L_fin")
    a(f"s_cmp_lg_u32 s{sWAVE}, 7")
    a("s_cbranch_scc1 L_h4")
    pollx(xloads, lambda: check_regs(range(40, 56)), slp=0)
    stamp(11)
    for k in range(4):
        a(f"v_add_f32 v{40+k}, v{40+k}, v{44+k}\nv_add_f32 v{48+k}, v{48+k}, v{52+k}")
    for k in range(4):
        a(f"v_add_f32 v{40+k}, v{40+k}, v{48+k}")
    red4(40, (8,))
    rnd1(40, 40)
    a(f"v_mul_f32 v40, v{GA}, v40")
    rnd1(40, 40)
    a(f"v_add_f32 v40, v{XV}, v40")
    rnd1(XV, 40)
    a(f"v_or_b32 v40, v{vTAG}, v{XV}")
    a(f"s_mov_b32 exec_lo, 0x00ff00ff\ns_mov_b32 exec_hi, 0x00ff00ff")
    a(f"buffer_store_dword v40, v114, {S4(rWS)}, s14 offen sc1")
    a("s_mov_b64 exec, -1")
    SM = "s[96:97]" if not stamps else "s[98:99]"
    a(f"v_mul_f32 v130, v{XV}, v117")
    a(f"v_cndmask_b32 v118, v{XV}, v130, {SM}")
    a(f"v_cndmask_b32 v119, 1.0, v117, {SM}")
    a(f"v_cndmask_b32 v120, v{XV}, v116, {SM}")
    a(f"v_cndmask_b32 v130, v130, 0, {SM}")
    a(f"v_mul_f32 v128, v118, v119")
    a(f"v_mul_f32 v129, v118, v120")
    a(f"v_mul_f32 v131, v130, v130")
    publish_moments(128, 15)
    stamp(12)
    a("L_h4:")
    srd(rT3, pOUT, 4096)
    a(f"s_mul_i32 s11, s{sWAVE}, {14*8192}")
    a(f"s_add_u32 s11, s11, s75")
    a(f"s_add_u32 s11, s11, {YP}")
    a(f"s_add_u32 s15, s11, {8*8192}")
    a(f"s_lshl_b32 s9, s{sWAVE}, 2")
    a(f"s_add_u32 s9, s9, {FB}")
    a(f"v_lshl_add_u32 v9, v11, 5, s9")
    a(f"v_lshlrev_b32 v8, 5, v11")
    a(f"v_add_u32 v8, {FB}, v8")
    a(f"s_lshr_b32 s10, s75, 1")
    a(f"v_lshlrev_b32 v10, 1, v11")
    for r in range(44, 48):
        a(f"v_mov_b32 v{r}, 0")
    a(f"s_mov_b32 s94, -1\ns_mov_b32 s95, 0xffff")

    def ldH4():
        a(f"buffer_load_dwordx4 {R(40)}, v113, {S4(rWS)}, s11 offen sc1")
        a(f"s_and_saveexec_b64 s[{sEX}:{sEX+1}], s[94:95]")
        a(f"buffer_load_dwordx4 {R(44)}, v113, {S4(rWS)}, s15 offen sc1")

    def ckH4():
        for r in range(44, 48):
            a(f"v_xor_b32 v{r}, v{vTAG}, v{r}")
        a(f"s_mov_b64 exec, s[{sEX}:{sEX+1}]")
        check_regs(range(40, 44))
        a(f"v_or3_b32 v{vBAD}, v{vBAD}, v44, v45")
        a(f"v_or3_b32 v{vBAD}, v{vBAD}, v46, v47")
    a("s_barrier")
    if h4delay:
        a(f"s_sleep {h4delay}")
    pollx(ldH4, ckH4)
    stamp(13)
    for r in range(4):
        a(f"v_add_f32 v{40+r}, v{40+r}, v{44+r}")
    red4(40, (8,))
    a("ds_write_b32 v9, v40")
    a("s_waitcnt lgkmcnt(0)")
    a("s_barrier")
    a(f"s_cmp_lg_u32 s{sWAVE}, 7")
    a("s_cbranch_scc1 L_fin")
    a(f"ds_read_b128 {R(40)}, v8")
    a(f"ds_read_b128 {R(44)}, v8 offset:16")
    a("s_waitcnt lgkmcnt(0)")
    for r in range(4):
        a(f"v_add_f32 v{40+r}, v{40+r}, v{44+r}")
    a("v_add_f32 v40, v40, v41\nv_add_f32 v42, v42, v43\nv_add_f32 v40, v40, v42")
    rnd1(40, 40)
    a(f"v_add_f32 v40, v{B2V}, v40")
    rnd1(40, 40)
    a(f"v_mul_f32 v40, v115, v40")
    rnd1(40, 40)
    a(f"v_add_f32 v40, v{XV}, v40")
    a("v_cvt_pk_bf16_f32 v40, v40, v40")
    a(MASK8)
    a(f"buffer_store_short v40, v10, {S4(rT3)}, s10 offen")
    a(FULL)
    a("s_cmp_lg_u32 s2, 0")
    a("s_cbranch_scc1 L_fin")
    a(f"v_mov_b32 v4, s{sEP}")
    a("v_mov_b32 v5, 0")
    a("s_mov_b64 exec, 1")
    a(f"buffer_store_dword v4, v5, {S4(rWS)}, 0 offen offset:{EPOCH} sc1")
    a("s_mov_b64 exec, -1")
    a("s_branch L_fin")

    a("L_tailB:")
    a(f"s_cmp_ge_u32 s{sBI}, 112")
    a("s_cbranch_scc1 L_fin")
    vm = Vm(a)
    W2R = 136
    W2O = 104
    W1O = 72
    AD = 40
    B1V = 29
    XR, SB, CB = 32, 36, 16
    srd(rT2, pW2, 7340032)
    a(f"v_lshrrev_b32 v7, 4, v{vLANE}")
    a(f"v_lshlrev_b32 v8, 14, v7")
    a(f"v_and_b32 v9, 15, v{vLANE}")
    a(f"v_lshl_add_u32 v8, v9, 4, v8")
    a(f"s_lshl_b32 s10, s{sBI}, 16")
    a(f"s_lshl_b32 s11, s{sWAVE}, 8")
    a(f"s_add_u32 s10, s10, s11")
    for e in range(8):
        if e % 2 == 0:
            a(f"s_add_u32 s9, s10, {e*2048}")
        tw2 = vm.issue(f"buffer_load_dwordx4 {R(W2R + e*4)}, v8, {S4(rT2)}, s9 offen offset:{(e % 2)*2048} {nt}")
    a(f"v_lshrrev_b32 v10, 5, v{vLANE}")
    a(f"v_and_b32 v11, 31, v{vLANE}")
    a(f"s_lshl_b32 s12, s{sWAVE}, 9")
    srd(rT1, pB1, 7168)
    kperm(4, 5)
    a(f"v_and_b32 v6, 7, v{vLANE}")
    a(f"v_lshl_add_u32 v5, v6, 2, v4")
    a(f"v_lshlrev_b32 v5, 1, v5")
    a(f"s_lshl_b32 s9, s{sBI}, 6")
    a(f"buffer_load_ushort v{B1V}, v5, {S4(rT1)}, s9 offen")
    a(f"v_bfe_u32 v8, v{vLANE}, 3, 1")
    a(f"v_lshl_add_u32 v26, v8, 6, v5")
    a(f"s_lshl_b32 s9, s{sWAVE}, 7")
    a(f"s_add_u32 s9, s9, {H1B}")
    a(f"v_add_u32 v26, s9, v26")
    a(f"v_bfe_u32 v5, v{vLANE}, 2, 1")
    a(f"v_lshlrev_b32 v27, 6, v5")
    a(f"v_lshl_add_u32 v27, v7, 4, v27")
    a(f"v_add_u32 v27, s9, v27")
    a(f"v_lshlrev_b32 v25, 10, v7")
    a(f"v_lshl_add_u32 v25, v8, 9, v25")
    a(f"v_lshl_add_u32 v25, v6, 4, v25")
    a(f"s_and_b32 s9, s{sBI}, 3")
    a(f"s_lshl_b32 s89, s9, 7")
    a(f"s_andn2_b32 s10, s{sBI}, 3")
    a(f"s_lshl_b32 s10, s10, 10")
    a(f"s_add_u32 s89, s89, s10")
    a(f"s_add_u32 s89, s89, {HP}")
    a(f"v_and_b32 v5, 1, v{vLANE}")
    a(f"v_lshlrev_b32 v23, 9, v5")
    a(f"v_lshl_add_u32 v23, v7, 4, v23")
    a(f"v_add_u32 v23, {YB}, v23")
    a(f"v_lshlrev_b32 v24, 9, v5")
    a(f"v_lshl_add_u32 v24, v7, 4, v24")
    a(f"s_lshl_b32 s90, s{sBI}, 10")
    a(f"s_lshl_b32 s9, s{sWAVE}, 6")
    a(f"s_add_u32 s90, s90, s9")
    a(f"s_add_u32 s90, s90, {HP}")
    for r in range(32):
        a(f"v_mov_b32 v{AD+r}, 0")
    a(f"v_bfe_u32 v5, v{vLANE}, 2, 2")
    a(f"v_lshl_add_u32 v5, v7, 3, v5")
    a(f"v_lshlrev_b32 v5, 8, v5")
    a(f"v_and_b32 v6, 3, v{vLANE}")
    a(f"v_lshl_add_u32 v5, v6, 3, v5")
    a(f"s_lshl_b32 s9, s{sWAVE}, 5")
    a(f"v_add_u32 v5, s9, v5")
    for s in range(8):
        for h in range(2):
            a(f"ds_read_b64_tr_b16 {R(W1O + s*4 + h*2, 2)}, v5 offset:{WT + 8192*s + 1024*h}")
    a(f"v_and_b32 v5, 1, v7")
    a(f"v_lshlrev_b32 v28, 12, v5")
    a(f"v_lshl_add_u32 v28, v9, 5, v28")
    a(f"v_lshl_add_u32 v28, v10, 4, v28")
    a(f"s_lshl_b32 s14, s{sBI}, 13")
    a(f"s_add_u32 s14, s14, s12")
    a(f"s_add_u32 s14, s14, {YP}")

    def ldHP(dst=136):
        a(f"buffer_load_dwordx4 {R(dst)}, v25, {S4(rWS)}, s89 offen sc1")
    a("s_waitcnt vmcnt(0)")
    for d in range(8):
        perm_operand(W2O + d * 4, W2R, d)
    lo(B1V, B1V)
    stamp(9)
    a(f"s_cmp_ge_u32 s{sWAVE}, 2")
    a("s_cbranch_scc1 L_ydone")
    MR = 136
    a(f"v_lshlrev_b32 v4, 4, v{vLANE}")
    a(f"s_and_b32 s9, s{sBI}, 3")
    a(f"s_lshl_b32 s13, s9, 10")
    a(f"s_lshl_b32 s10, s{sWAVE}, 12")
    a(f"s_add_u32 s13, s13, s10")
    a(f"s_add_u32 s13, s13, {X1}")
    a(f"s_add_u32 s15, s13, 8192")
    a(f"s_add_u32 s88, s13, 16384")
    a(f"v_lshrrev_b32 v20, 1, v{vLANE}")
    a(f"v_lshlrev_b32 v20, 7, v20")
    a(f"v_and_b32 v5, 1, v{vLANE}")
    a(f"v_lshl_add_u32 v20, v5, 4, v20")
    a(f"s_add_u32 s91, s10, {XS}")
    a(f"s_add_u32 s92, s10, {XS + 8192}")
    a(f"s_lshl_b32 s10, s{sWAVE}, 9")
    a(f"s_add_u32 s10, s10, {YB}")
    a(f"v_lshl_add_u32 v22, v{vLANE}, 3, s10")

    def ldS():
        a(f"buffer_load_dwordx4 {R(SB)}, v4, {S4(rWS)}, s15 offen sc1")
        a(f"buffer_load_dwordx4 {R(CB)}, v4, {S4(rWS)}, s88 offen sc1")
        a(f"buffer_load_dwordx4 {R(MR)}, v20, {S4(rWS)}, s92 offen sc1")
    pollx(ldS, lambda: check_regs(list(range(SB, SB + 4)) + list(range(CB, CB + 4)) + list(range(MR, MR + 4))))
    LANE_OF = [0, 32, 16, 48, 1, 33]
    red4(MR, (2, 4, 8))
    a(f"v_mul_f32 v{MR}, 0x3a800000, v{MR}")
    for k in range(5):
        a(f"v_readlane_b32 s9, v{MR}, {LANE_OF[k]}")
        a(f"v_mov_b32 v{144+k}, s9")

    def ldH3():
        a(f"buffer_load_dwordx4 {R(XR)}, v4, {S4(rWS)}, s13 offen sc1")
        a(f"buffer_load_dwordx4 {R(MR)}, v20, {S4(rWS)}, s91 offen sc1")
    pollx(ldH3, lambda: check_regs(list(range(XR, XR + 4)) + list(range(MR, MR + 4))))
    stamp(10)
    red4(MR, (2, 4, 8))
    a(f"v_mul_f32 v{MR}, 0x3a800000, v{MR}")
    for k, sr in enumerate((10, 11, 12, 13, 15, 88)):
        a(f"v_readlane_b32 s{sr}, v{MR}, {LANE_OF[k]}")

    def stats_tail(mean, ex2, t, mb, rs):
        a(f"v_fma_f32 v{ex2}, -v{mean}, v{mean}, v{ex2}")
        a(f"v_max_f32 v{ex2}, 0, v{ex2}")
        a(f"v_cvt_pk_bf16_f32 v{t}, v{mean}, v{ex2}")
        hi(ex2, t)
        lo(mb, t)
        a(f"v_add_f32 v{ex2}, 0x3727c5ac, v{ex2}")
        rnd1(ex2, ex2)
        a(f"v_sqrt_f32 v{ex2}, v{ex2}")
        rnd1(ex2, ex2)
        a(f"v_rcp_f32 v{rs}, v{ex2}")
    a("v_mov_b32 v5, s10\nv_mov_b32 v6, s11")
    stats_tail(5, 6, 8, 140, 141)
    a(f"v_fma_f32 v150, -v140, v144, s12")
    a(f"v_mul_f32 v151, v140, v145")
    a(f"v_fma_f32 v151, -2.0, s15, v151")
    a(f"v_fma_f32 v151, v140, v151, s13")
    a(f"v_fma_f32 v152, -v140, v146, s88")
    for k in (0, 2):
        a(f"v_sub_f32 v{XR+k}, v{XR+k}, v140\nv_sub_f32 v{XR+k+1}, v{XR+k+1}, v140")
    for k in (0, 2):
        rnd2(XR + k, XR + k + 1, 8 + k // 2)
    a(f"v_fma_f32 v5, v141, v150, v147")
    a(f"v_mul_f32 v151, v141, v151")
    a(f"v_fma_f32 v151, 2.0, v152, v151")
    a(f"v_fma_f32 v6, v141, v151, v148")
    for k in range(4):
        a(f"v_mul_f32 v{XR+k}, v{XR+k}, v141")
    for k in (0, 2):
        rnd2(XR + k, XR + k + 1, 8 + k // 2)
    stats_tail(5, 6, 10, 142, 143)
    for k in range(4):
        a(f"v_mul_f32 v{XR+k}, v{XR+k}, v{CB+k}")
    for k in (0, 2):
        rnd2(XR + k, XR + k + 1, 8 + k // 2)
    for k in range(4):
        a(f"v_add_f32 v{XR+k}, v{XR+k}, v{SB+k}")
    for k in (0, 2):
        rnd2(XR + k, XR + k + 1, 8 + k // 2)
    for k in range(4):
        a(f"v_sub_f32 v{XR+k}, v{XR+k}, v142")
    for k in (0, 2):
        rnd2(XR + k, XR + k + 1, 8 + k // 2)
    for k in range(4):
        a(f"v_mul_f32 v{XR+k}, v{XR+k}, v143")
    a(f"v_cvt_pk_bf16_f32 v30, v{XR}, v{XR+1}\nv_cvt_pk_bf16_f32 v31, v{XR+2}, v{XR+3}")
    a(f"ds_write_b64 v22, {R(30, 2)}")
    a("s_waitcnt lgkmcnt(0)")
    a("L_ydone:")
    a("s_barrier")
    for s in range(8):
        a(f"ds_read_b128 {R(136 + 4*s)}, v23 offset:{s*64}")
    for s in range(8):
        a(f"s_waitcnt lgkmcnt({7-s})")
        c = "0" if s == 0 else R(32)
        a(f"v_mfma_f32_16x16x32_bf16 {R(32)}, {R(W1O + s*4)}, {R(136 + 4*s)}, {c}")
    for r in range(4):
        tag_trunc(32 + r, 32 + r)
    a(f"s_mov_b32 exec_lo, 0x00030003\ns_mov_b32 exec_hi, 0x00030003")
    store_grp("buffer_store_dwordx4", R(32), 24, 90)
    a(FULL)
    stamp(22)
    pollx(ldHP, lambda: check_regs(range(136, 140)), slp=0)
    stamp(23)
    red4(136, ())
    rnd1(136, 136)
    a(f"v_add_f32 v136, v136, v{B1V}")
    rnd1(136, 136)
    a("v_mul_f32 v137, v136, v136")
    a("v_mul_f32 v137, 0x3d372713, v137")
    a("v_fma_f32 v137, v137, v136, v136")
    a("v_mul_f32 v137, 0xc0135761, v137")
    a("v_exp_f32 v137, v137")
    a("v_add_f32 v137, 1.0, v137")
    a("v_rcp_f32 v137, v137")
    a("v_mul_f32 v136, v136, v137")
    a("v_cvt_pk_bf16_f32 v136, v136, v136")
    a("ds_write_b16 v26, v136")
    a("s_waitcnt lgkmcnt(0)")
    for d in range(8):
        m16 = (0x11 << (d & 3)) << (8 * (d >> 2))
        m32 = m16 | (m16 << 16)
        a(f"s_mov_b32 exec_lo, {m32:#x}\ns_mov_b32 exec_hi, {m32:#x}")
        a(f"ds_read_b128 {R(AD + 4*d)}, v27")
    a("s_mov_b64 exec, -1")
    for d in range(8):
        a(f"s_waitcnt lgkmcnt({7-d})")
        c = "0" if d == 0 else R(136)
        a(f"v_mfma_f32_16x16x32_bf16 {R(136)}, {R(AD + 4*d)}, {R(W2O + 4*d)}, {c}")
    for r in range(4):
        tag_trunc(136 + r, 136 + r)
    a(f"buffer_store_dwordx4 {R(136)}, v28, {S4(rWS)}, s14 offen sc1")
    stamp(11)

    a("L_fin:")
    if stamps and dbgstamps:
        stamp(15)
        a(f"s_cmp_lg_u32 s2, {dbgstamps - 1}")
        a("s_cbranch_scc1 L_end")
        a("s_load_dwordx2 s[10:11], s[0:1], 104")
        a("s_waitcnt lgkmcnt(0)")
        srd(rT0, 10, 256)
        slots = [1, 2, 3, 4, 20, 6, 8, 24, 9, 10, 11, 12, 22, 13, 15, 21]
        a("v_mov_b32 v4, 200")
        for i, k in enumerate(slots):
            a(f"s_mov_b32 s9, {4*i}")
            a(f"v_writelane_b32 v4, s9, {k}")
        a(f"v_readlane_b32 s9, v{vST}, 0")
        a(f"v_subrev_u32 v5, s9, v{vST}")
        a(f"v_cmp_ne_u32 vcc, 0, v{vST}")
        a("s_mov_b64 exec, vcc")
        a(f"buffer_atomic_umax v5, v4, {S4(rT0)}, 0 offen sc1")
    elif stamps:
        stamp(15)
        a(f"s_mul_i32 s9, s2, {NWAVES}")
        a(f"s_add_u32 s9, s9, s{sW12}")
        a(f"s_lshl_b32 s9, s9, 7")
        a(f"s_add_u32 s9, s9, {STAMP}")
        a(f"v_lshlrev_b32 v4, 2, v{vLANE}")
        a("s_mov_b32 exec_hi, 0")
        a(f"buffer_store_dword v{vST}, v4, {S4(rWS)}, s9 offen")
    a("L_end:")
    a("s_endpgm")
    a('.section .rodata,"a"')
    a(".p2align 6")
    a(f".amdhsa_kernel {NAME}_kernel")
    for l in (".amdhsa_next_free_vgpr 168", ".amdhsa_next_free_sgpr 102", ".amdhsa_accum_offset 168",
              ".amdhsa_group_segment_fixed_size 0", ".amdhsa_kernarg_size 120", ".amdhsa_user_sgpr_count 2",
              ".amdhsa_user_sgpr_kernarg_segment_ptr 1", ".amdhsa_system_sgpr_workgroup_id_x 1",
              ".amdhsa_float_denorm_mode_32 3"):
        a(l)
    a(".end_amdhsa_kernel")
    return pre + a.finish()


if __name__ == "__main__":
    out = sys.argv[1] if len(sys.argv) > 1 else f"cdna_kernels/{NAME}.s"
    kw = {}
    for arg in sys.argv[2:]:
        k, v = arg.split("=")
        kw[k] = eval(v)
    open(out, "w").write(gen(**kw))
```

```python
import sys
from asmlib import Asm, Vm

NAME = "adaLN_cond__gqa_block_cached__mixer_channel_mlp__decode"

EPOCH = 0
ML = 0x1000
X1 = 0x9000
MODP = 0x10000
QP = 0x30000
MA = 0xB0000
HP = 0xE0000
XP = 0x100000
DUAL = 0x90000
OF = 0x70000
QFN = 0x80000
XS = 0x88000
XID = 0x78000
OP = 0x200000
YP = 0x300000
STAMP = 0x400000
WS_BYTES = 0x10000000
WT = 0
OC = 0x10000
QB = 0x18400
HB = 0x18C00
ZB = 0x18E00
MX = 0x19000
LX = 0x19100
OB = 0x19800
ST = 0x19600
YB = 0x19800
RED = 0x1A800
H1B = 0x1B000
QFL = 0x1B400
XB = 0x1B480
FB = 0x1B800
LDS_BYTES = 0x1BC00
TAGM = 0x3ff
T4 = 3
NWAVES = 12

sWAVE, sL, sXCD, sIDX, sAI, sTAG = 3, 4, 5, 6, 7, 8
pX, pK, pV, pWQ, pWO, pW1, pB1, pW2, pB2, pC, pWM, pOUT, pWS = 16, 18, 20, 22, 24, 28, 30, 32, 34, 36, 38, 40, 42
rK, rV, rWS, rT0, rT1, rT2, rT3 = 44, 48, 52, 56, 60, 64, 68
sDU = 72
sSELLO, sSELHI, sHI, sLOG2E, sSCALE, sSPIN, sEP, sTM = 76, 77, 78, 79, 80, 81, 82, 83
sEX = 84
sBI = 86
sKV = 87
sW12 = 100
sLOC = 101
vLANE, vOK, vOV = 1, 2, 3
vBAD, vTAG, vST = 12, 13, 14


def gen(stamps=False, dbgstamps=False, codewarm=True, spin=200000, sleep=0, nt="nt", w1_early=True,
        thr=3, thr2=3, thrq=0, thrb=12, thrv=6, notail=False, quiet=0, w1late=1, h3slp=None, h3split=0, fullrec=0, ptall='mqfdox', wq_dyn=1, fine=1, qpol='sc1', ptpol='sc1', agate=1, xdelay=20, skip='', hpt=0, prew=0, b2stage=1, h4delay=0, pretouch=0, noloc=0, noma=0, bdelay=0, adelay=0, nomodfin=0, pure=0, klin=0, vearly=0, fake=0, attdma=True, thrw=3, cslp=1, w1pol=None):
    a = Asm()
    hdr = open(f"cdna_kernels/{NAME}.s.ref").read().split("\n")
    head = [l for l in hdr if l.startswith(";") and "@launch" not in l]
    pre = "\n".join(head) + f"\n; @launch grid=(256,1,1) block=({64*NWAVES},1,1) lds={LDS_BYTES}\n"
    a('.amdgcn_target "amdgcn-amd-amdhsa--gfx950"')
    a(".text")
    a(f".globl {NAME}_kernel")
    a(".p2align 8")
    a(f".type {NAME}_kernel,@function")
    a(f"{NAME}_kernel:")

    def srd(d, p, n):
        a(f"s_mov_b32 s{d}, s{p}\ns_mov_b32 s{d+1}, s{p+1}\ns_mov_b32 s{d+2}, {n}\ns_mov_b32 s{d+3}, 0x20000")

    def R(b, n=4):
        return f"v[{b}:{b+n-1}]"

    def S4(b):
        return f"s[{b}:{b+3}]"

    def stamp(k):
        if stamps == 1 or (stamps == 2 and k in (8, 15)):
            a(f"s_memrealtime s[96:97]\ns_waitcnt lgkmcnt(0)\nv_writelane_b32 v{vST}, s96, {k}")

    def lo(d, p):
        a(f"v_lshlrev_b32 v{d}, 16, v{p}")

    def hi(d, p):
        a(f"v_and_b32 v{d}, s{sHI}, v{p}")

    def rnd1(d, s):
        a(f"v_cvt_pk_bf16_f32 v{d}, v{s}, v{s}")
        lo(d, d)

    def rnd2(x, y, t):
        a(f"v_cvt_pk_bf16_f32 v{t}, v{x}, v{y}")
        lo(x, t)
        hi(y, t)

    def tag_round(d, s):
        a(f"v_add_u32 v{d}, 0x200, v{s}")
        a(f"v_bfi_b32 v{d}, s{sTM}, v{vTAG}, v{d}")

    def tag_trunc(d, s):
        a(f"v_bfi_b32 v{d}, s{sTM}, v{vTAG}, v{s}")

    def check_regs(regs, first=True):
        for r in regs:
            a(f"v_xor_b32 v{r}, v{vTAG}, v{r}")
        regs = list(regs)
        if first:
            a(f"v_or_b32 v{vBAD}, v{regs[0]}, v{regs[1]}")
            regs = regs[2:]
        for i in range(0, len(regs), 2):
            a(f"v_or3_b32 v{vBAD}, v{vBAD}, v{regs[i]}, v{regs[i+1]}")

    def dpp_add(d, s_rot, s1, ror):
        a(f"v_add_f32_dpp v{d}, v{s_rot}, v{s1} row_ror:{ror} row_mask:0xf bank_mask:0xf")

    def dpp_max(d, s_rot, s1, ror):
        a(f"v_max_f32_dpp v{d}, v{s_rot}, v{s1} row_ror:{ror} row_mask:0xf bank_mask:0xf")

    def allred(x, t, op, which):
        for w in which:
            a(f"v_mov_b32 v{t}, v{x}")
            a(f"v_permlane{w}_swap_b32 v{x}, v{t}")
            a(f"{op} v{x}, v{x}, v{t}")

    def red4(b, rors):
        a(f"v_permlane32_swap_b32 v{b}, v{b+1}")
        a(f"v_permlane32_swap_b32 v{b+2}, v{b+3}")
        a(f"v_add_f32 v{b}, v{b}, v{b+1}")
        a(f"v_add_f32 v{b+2}, v{b+2}, v{b+3}")
        a(f"v_permlane16_swap_b32 v{b}, v{b+2}")
        a(f"v_add_f32 v{b}, v{b}, v{b+2}")
        for r in rors:
            dpp_add(b, b, b, r)

    def perm_operand(dst, blk, d):
        sel = sSELHI if d & 1 else sSELLO
        for k in range(4):
            a(f"v_perm_b32 v{dst+k}, v{blk + (2*k+1)*4 + (d >> 1)}, v{blk + 2*k*4 + (d >> 1)}, s{sel}")

    def ln_stats(su, sq, t, mb, rs):
        a(f"v_mul_f32 v{su}, 0x3a800000, v{su}")
        a(f"v_mul_f32 v{sq}, 0x3a800000, v{sq}")
        a(f"v_fma_f32 v{sq}, -v{su}, v{su}, v{sq}")
        a(f"v_max_f32 v{sq}, 0, v{sq}")
        a(f"v_cvt_pk_bf16_f32 v{t}, v{su}, v{sq}")
        lo(mb, t)
        hi(sq, t)
        a(f"v_add_f32 v{sq}, 0x3727c5ac, v{sq}")
        rnd1(sq, sq)
        a(f"v_sqrt_f32 v{sq}, v{sq}")
        rnd1(sq, sq)
        a(f"v_rcp_f32 v{rs}, v{sq}")

    def ln_apply(x, y, t, mb, rs, last_round=True):
        a(f"v_sub_f32 v{x}, v{x}, v{mb}")
        a(f"v_sub_f32 v{y}, v{y}, v{mb}")
        rnd2(x, y, t)
        a(f"v_mul_f32 v{x}, v{x}, v{rs}")
        a(f"v_mul_f32 v{y}, v{y}, v{rs}")
        if last_round:
            rnd2(x, y, t)

    def check2(pairs_regs):
        first = True
        for b in pairs_regs:
            a(f"v_xor_b32 v{b+1}, s{sEP}, v{b+1}")
            a(f"v_xor_b32 v{b+3}, s{sEP}, v{b+3}")
            if first:
                a(f"v_or_b32 v{vBAD}, v{b+1}, v{b+3}")
                first = False
            else:
                a(f"v_or3_b32 v{vBAD}, v{vBAD}, v{b+1}, v{b+3}")

    def pollx(loads, check, f2=False, dual=False, pre_issued=False, between=None, slp=None, name=None):
        if name and name in skip:
            a("s_waitcnt vmcnt(0)")
            a("s_mov_b64 exec, -1")
            return
        lp, dn, ck = a.label("Lpoll"), a.label("Ldone"), a.label("Lchk")
        a(f"s_mov_b32 s{sSPIN}, {0 if (fake and slp in (cslp, 16)) else spin | 7}")
        if pre_issued:
            a(f"s_branch {ck}")
        inst = stamps == 1 and name in ("a", "b", "c", "x")
        if inst:
            a("s_mov_b32 s94, 0\ns_mov_b32 s95, 0")
        a(f"{lp}:")
        if inst:
            a("s_memrealtime s[90:91]")
        loads()
        a(f"{ck}:")
        a("s_waitcnt vmcnt(0)")
        if inst:
            a("s_memrealtime s[92:93]\ns_waitcnt lgkmcnt(0)")
            a("s_sub_u32 s92, s92, s90\ns_max_u32 s94, s94, s92\ns_add_u32 s95, s95, 1")
        check()
        if not f2:
            a(f"v_and_b32 v{vBAD}, s{sTM}, v{vBAD}")
        a(f"v_cmp_ne_u32 vcc, 0, v{vBAD}")
        a(f"s_cbranch_vccz {dn}")
        a("s_mov_b64 exec, vcc")
        sl = sleep if slp is None else slp
        if sl:
            a(f"s_sleep {sl}")
        a(f"s_sub_u32 s{sSPIN}, s{sSPIN}, 1")
        a(f"s_cbranch_scc0 {lp}")
        a(f"{dn}:")
        a("s_mov_b64 exec, -1")
        if inst:
            k = {"a": 26, "b": 28, "c": 28, "x": 26}[name]
            a(f"v_writelane_b32 v{vST}, s94, {k}\nv_writelane_b32 v{vST}, s95, {k+1}")

    def dual_exchange(store_wt, loads, check):
        l1, ok, dn = a.label("Lfx"), a.label("Lfxok"), a.label("Lfxdn")
        a(f"s_mov_b32 s{sDU}, {DUAL}")
        a(f"s_mov_b32 s{sSPIN}, 24")
        a(f"{l1}:")
        loads()
        a("s_waitcnt vmcnt(0)")
        check()
        a(f"v_and_b32 v{vBAD}, s{sTM}, v{vBAD}")
        a(f"v_cmp_ne_u32 vcc, 0, v{vBAD}")
        a(f"s_cbranch_vccz {ok}")
        a("s_mov_b64 exec, vcc")
        a(f"s_sub_u32 s{sSPIN}, s{sSPIN}, 1")
        a(f"s_cbranch_scc0 {l1}")
        a(f"s_mov_b64 s[{sEX}:{sEX+1}], exec")
        store_wt()
        a(f"s_mov_b64 exec, s[{sEX}:{sEX+1}]")
        pollx(loads, check, dual=True)
        a(f"s_branch {dn}")
        a(f"{ok}:")
        store_wt()
        a("s_mov_b64 exec, -1")
        a(f"{dn}:")

    def store_grp(op, data, vaddr, soff):
        l1, l2 = a.label("Lsg"), a.label("Lsgd")
        a(f"s_cmp_eq_u32 s{sLOC}, 1")
        a(f"s_cbranch_scc1 {l1}")
        a(f"{op} {data}, v{vaddr}, {S4(rWS)}, s{soff} offen sc1")
        a(f"s_branch {l2}")
        a(f"{l1}:")
        a(f"{op} {data}, v{vaddr}, {S4(rWS)}, s{soff} offen")
        a(f"{l2}:")

    def prewrite(t, nl_log2, bshift, soff):
        if not prew:
            return
        for k in range(4):
            a(f"v_xor_b32 v{t+k}, 1, v{vTAG}")
        a(f"v_lshrrev_b32 v{t+4}, {nl_log2}, v{vLANE}")
        a(f"v_lshlrev_b32 v{t+4}, {bshift-4}, v{t+4}")
        a(f"v_and_or_b32 v{t+4}, v{vLANE}, {(1 << nl_log2) - 1}, v{t+4}")
        a(f"v_lshlrev_b32 v{t+4}, 4, v{t+4}")
        n = 2 << nl_log2
        a(f"s_mov_b64 exec, {(1 << n) - 1:#x}" if n < 32 else "s_mov_b32 exec_hi, 0")
        a(f"buffer_store_dwordx4 {R(t)}, v{t+4}, {S4(rWS)}, s{soff} offen")
        a("s_mov_b64 exec, -1")

    def store_dual(op, data, vaddr, soff, off=0):
        a(f"s_add_u32 s9, s{soff}, {DUAL}")
        a(f"{op} {data}, v{vaddr}, {S4(rWS)}, s9 offen offset:{off}")
        a(f"{op} {data}, v{vaddr}, {S4(rWS)}, s{soff} offen offset:{off} sc1")

    def kperm(d, t):
        a(f"v_bfe_u32 v{d}, v{vLANE}, 4, 1")
        a(f"v_lshrrev_b32 v{t}, 5, v{vLANE}")
        a(f"v_lshl_or_b32 v{d}, v{d}, 1, v{t}")

    MASK8 = "s_mov_b32 exec_lo, 0x00ff00ff\ns_mov_b32 exec_hi, 0x00ff00ff"
    FULL = "s_mov_b64 exec, -1"

    a("s_cmp_ge_u32 s2, 256")
    a("s_cbranch_scc1 L_end")
    a("s_load_dwordx16 s[16:31], s[0:1], 0")
    a("s_load_dwordx8 s[32:39], s[0:1], 64")
    a("s_load_dwordx2 s[40:41], s[0:1], 96")
    a("s_load_dwordx2 s[42:43], s[0:1], 112")
    if stamps:
        a(f"v_mov_b32 v{vST}, 0")
        a("s_memrealtime s[98:99]")
    a(f"v_lshrrev_b32 v4, 6, v0")
    a(f"v_and_b32 v{vLANE}, 63, v0")
    a(f"v_readfirstlane_b32 s{sW12}, v4")
    a(f"s_and_b32 s{sXCD}, s2, 7")
    a(f"s_lshr_b32 s{sIDX}, s2, 3")
    a(f"s_lshl_b32 s{sL}, s{sXCD}, 5")
    a(f"s_add_u32 s{sL}, s{sL}, s{sIDX}")
    a(f"s_lshr_b32 s{sAI}, s{sIDX}, 1")
    a(f"s_lshr_b32 s9, s{sAI}, 2")
    a(f"s_lshl_b32 s9, s9, 3")
    a(f"s_add_u32 s9, s9, s{sXCD}")
    a(f"s_lshl_b32 s{sBI}, s9, 2")
    a(f"s_and_b32 s9, s{sAI}, 3")
    a(f"s_add_u32 s{sBI}, s{sBI}, s9")
    a(f"s_mov_b32 s{sSELLO}, 0x05040100")
    a(f"s_mov_b32 s{sSELHI}, 0x07060302")
    a(f"s_mov_b32 s{sHI}, 0xffff0000")
    a(f"s_mov_b32 s{sLOG2E}, 0x3fb8aa3b")
    a(f"s_mov_b32 s{sSCALE}, 0x3db504f3")
    a(f"s_mov_b32 s{sTM}, {TAGM}")
    a(f"v_lshrrev_b32 v7, 3, v{vLANE}")
    a(f"s_sub_u32 s{sWAVE}, s{sW12}, 4")
    a(f"s_cmp_lg_u32 s{sW12}, 0")
    a("s_cbranch_scc1 L_noinit")
    a(f"v_lshlrev_b32 v4, 2, v{vLANE}")
    a(f"v_add_u32 v4, {ZB}, v4")
    a("v_mov_b32 v5, 0")
    a("ds_write_b32 v4, v5")
    a(f"ds_write_b32 v4, v5 offset:{QFL - ZB - 128}")
    a("L_noinit:")

    def kargs():
        a("s_waitcnt lgkmcnt(0)")
        if stamps:
            a(f"v_writelane_b32 v{vST}, s98, 0")

    def load_epoch():
        a(f"s_load_dword s{sEP}, s[{pWS}:{pWS+1}], {EPOCH}")

    def get_tag():
        a("s_waitcnt lgkmcnt(0)")
        a(f"s_add_u32 s{sEP}, s{sEP}, 1")
        a(f"s_and_b32 s{sTAG}, s{sEP}, {TAGM}")
        a(f"v_mov_b32 v{vTAG}, s{sTAG}")

    def wait_q():
        lp, dn = a.label("Lwq"), a.label("Lwqd")
        a(f"v_mov_b32 v4, {QFL}")
        a(f"s_mov_b32 s{sSPIN}, {spin*20}")
        a(f"{lp}:")
        a("ds_read_b32 v5, v4")
        a("s_waitcnt lgkmcnt(0)")
        a("v_cmp_ne_u32 vcc, 0, v5")
        a(f"s_cbranch_vccnz {dn}")
        a("s_sleep 1")
        a(f"s_sub_u32 s{sSPIN}, s{sSPIN}, 1")
        a(f"s_cbranch_scc0 {lp}")
        a(f"{dn}:")

    def wait_n(T):
        if T:
            a(f"s_waitcnt vmcnt({T-1})")

    def mod_tile(ngrp, srow0, scol, T, after_issue, before_issue):
        ACC, PT, W = 32, 64, 72
        vm = Vm(a)
        a(f"s_mul_i32 s10, s{srow0}, 12288")
        a(f"s_add_u32 s10, s10, s{scol}")
        a(f"s_mov_b32 s9, {8*12288}")
        a(f"v_mul_lo_u32 v8, v7, s9")
        a(f"v_and_b32 v9, 7, v{vLANE}")
        a(f"v_lshl_add_u32 v8, v9, 4, v8")
        a(f"v_bfe_u32 v10, v{vLANE}, 2, 1")
        a(f"v_lshlrev_b32 v10, 11, v10")
        a(f"v_lshl_add_u32 v10, v7, 4, v10")
        a(f"s_lshl_b32 s11, s{srow0}, 1")
        before_issue()
        srd(rT0, pWM, 12582912)
        srd(rT1, pC, 4096)
        for q4 in range(ngrp):
            tc = vm.issue(f"buffer_load_dwordx4 {R(ACC + q4*4)}, v10, {S4(rT1)}, s11 offen offset:{q4*128}")
        toks = {}

        def grp(q4):
            for e in range(8):
                a(f"s_add_u32 s9, s10, {(64*q4+e)*12288}")
                wait_n(T)
                toks[q4] = vm.issue(f"buffer_load_dwordx4 {R(W + (q4 % 3)*32 + e*4)}, v8, {S4(rT0)}, s9 offen {nt}")
        for q4 in range(min(ngrp, 3)):
            grp(q4)
        after_issue()
        if pure == 1:
            if ngrp == 4:
                vm.wait(toks[0])
                grp(3)
            a("s_waitcnt vmcnt(0)")
            a("s_branch L_fin")
        vm.wait(tc)
        a(f"s_mov_b32 s9, 0xbfb8aa3b")
        for i in range(4 * ngrp):
            lo(4, ACC + i)
            hi(5, ACC + i)
            a(f"v_mul_f32 v6, s9, v4\nv_mul_f32 v11, s9, v5")
            a(f"v_exp_f32 v6, v6\nv_exp_f32 v11, v11")
            a(f"v_add_f32 v6, 1.0, v6\nv_add_f32 v11, 1.0, v11")
            a(f"v_rcp_f32 v6, v6\nv_rcp_f32 v11, v11")
            a(f"v_mul_f32 v4, v4, v6\nv_mul_f32 v5, v5, v11")
            a(f"v_cvt_pk_bf16_f32 v{16+i}, v4, v5")
        a(f"v_and_b32 v11, 3, v{vLANE}")
        a(f"v_bfe_u32 v10, v{vLANE}, 4, 1")
        a(f"v_lshl_add_u32 v9, v10, 2, v11")
        a(f"v_lshrrev_b32 v10, 5, v{vLANE}")
        a(f"v_lshl_add_u32 v9, v9, 1, v10")
        a(f"v_bfe_u32 v10, v{vLANE}, 2, 1")
        for q4 in range(ngrp):
            vm.wait(toks[q4])
            for d in range(8):
                t = PT + (d & 1) * 4
                perm_operand(t, W + (q4 % 3) * 32, d)
                c = "0" if q4 == 0 else R(ACC + d * 4)
                a(f"v_mfma_f32_16x16x32_bf16 {R(ACC + d*4)}, {R(t)}, {R(16 + q4*4)}, {c}")
            if q4 + 3 < ngrp:
                grp(q4 + 3)
        O = 72
        for d in range(4):
            for r in range(4):
                a(f"v_permlane32_swap_b32 v{ACC + d*4 + r}, v{ACC + (d+4)*4 + r}")
        for d in range(4):
            for r in range(4):
                dpp_add(O + r * 4 + d, ACC + (d + 4) * 4 + r, ACC + d * 4 + r, 8)
        for r in range(1, 4):
            a(f"v_cmp_eq_u32 vcc, {r}, v11")
            for d in range(4):
                a(f"v_cndmask_b32 v{O+d}, v{O+d}, v{O + r*4 + d}, vcc")

    def tag4(d):
        a(f"v_add_u32 v{d}, {(T4+1)//2}, v{d}")
        a(f"v_bfi_b32 v{d}, {T4}, v{vTAG}, v{d}")

    def check4(regs):
        regs = list(regs)
        for r in regs:
            a(f"v_xor_b32 v{r}, v15, v{r}")
        a(f"v_or_b32 v{vBAD}, v{regs[0]}, v{regs[1]}")
        for i in range(2, len(regs), 2):
            a(f"v_or3_b32 v{vBAD}, v{vBAD}, v{regs[i]}, v{regs[i+1]}")
        a(f"v_and_b32 v{vBAD}, {T4}, v{vBAD}")
        a(f"v_or_b32_dpp v{vBAD}, v{vBAD}, v{vBAD} quad_perm:[1,0,3,2] row_mask:0xf bank_mask:0xf")
        a(f"v_or_b32_dpp v{vBAD}, v{vBAD}, v{vBAD} quad_perm:[2,3,0,1] row_mask:0xf bank_mask:0xf")
        a(f"v_or_b32_dpp v{vBAD}, v{vBAD}, v{vBAD} row_half_mirror row_mask:0xf bank_mask:0xf")

    def lds_wait(addr, val):
        lp, dn = a.label("Lw"), a.label("Lwd")
        a(f"v_mov_b32 v4, {addr}")
        a(f"s_mov_b32 s{sSPIN}, {spin*20}")
        a(f"{lp}:")
        a("ds_read_b32 v5, v4")
        a("s_waitcnt lgkmcnt(0)")
        a(f"v_cmp_eq_u32 vcc, {val}, v5")
        a(f"s_cbranch_vccnz {dn}")
        a("s_sleep 1")
        a(f"s_sub_u32 s{sSPIN}, s{sSPIN}, 1")
        a(f"s_cbranch_scc0 {lp}")
        a(f"{dn}:")

    def get_loc():
        lp, dn = a.label("Lw"), a.label("Lwd")
        a(f"v_mov_b32 v4, {QFL+8}")
        a(f"s_mov_b32 s{sSPIN}, {spin*20}")
        a(f"{lp}:")
        a("ds_read_b32 v5, v4")
        a("s_waitcnt lgkmcnt(0)")
        a(f"v_cmp_ne_u32 vcc, 0, v5")
        a(f"s_cbranch_vccnz {dn}")
        a("s_sleep 1")
        a(f"s_sub_u32 s{sSPIN}, s{sSPIN}, 1")
        a(f"s_cbranch_scc0 {lp}")
        a(f"{dn}:")
        a(f"v_readfirstlane_b32 s{sLOC}, v5")

    def publish_moments(M, soff):
        red4(M, ())
        a(f"v_add_f32_dpp v{M}, v{M}, v{M} quad_perm:[1,0,3,2] row_mask:0xf bank_mask:0xf")
        a(f"v_add_f32_dpp v{M}, v{M}, v{M} quad_perm:[2,3,0,1] row_mask:0xf bank_mask:0xf")
        a(f"v_add_f32_dpp v{M}, v{M}, v{M} row_half_mirror row_mask:0xf bank_mask:0xf")
        tag_round(M, M)
        if fullrec:
            a("s_mov_b32 exec_lo, 0x0f0f0f0f\ns_mov_b32 exec_hi, 0x0f0f0f0f")
        else:
            a("s_mov_b32 exec_lo, 0x01010101\ns_mov_b32 exec_hi, 0x01010101")
        a(f"buffer_store_dword v{M}, v{M+4}, {S4(rWS)}, s{soff} offen sc1")
        a(FULL)

    def moment_addr(d, kp, soff, kind):
        a(f"v_bfe_u32 v{d}, v{vLANE}, 3, 1")
        a(f"v_lshl_add_u32 v{d}, v{d}, 2, v{kp}")
        a(f"v_lshlrev_b32 v{d}, 2, v{d}")
        if fullrec:
            a(f"v_and_b32 v{d+1}, 3, v{vLANE}")
            a(f"v_lshl_add_u32 v{d}, v{d+1}, 5, v{d}")
        a(f"s_add_u32 s{soff}, s75, {XS + kind*8192}")

    def hopB1():
        a(f"v_and_b32 v15, {T4}, v{vTAG}")
        a(f"v_lshrrev_b32 v7, 3, v{vLANE}")
        a(f"v_and_b32 v8, 7, v{vLANE}")
        a(f"v_lshlrev_b32 v9, 15, v7")
        a(f"v_lshl_add_u32 v9, v8, 4, v9")
        a(f"s_lshl_b32 s10, s{sL}, 7")
        a(f"s_add_u32 s11, s10, {QFN}")
        a(f"s_add_u32 s10, s10, {QP}")
        kperm(6, 10)
        a(f"v_lshl_add_u32 v10, v8, 2, v6")
        a(f"v_lshlrev_b32 v10, 2, v10")
        get_loc()
        lds_wait(QFL + 4, 2)
        if bdelay:
            a(f"s_sleep {bdelay}")
        pollx(lambda: a(f"buffer_load_dwordx4 {R(32)}, v9, {S4(rWS)}, s10 offen sc1"), lambda: check4(range(32, 36)),
              f2=True, slp=cslp, name='b')
        red4(32, (8,))
        a("v_cvt_pk_bf16_f32 v32, v32, v32")
        a(f"v_bfi_b32 v32, s{sHI}, v32, v{vTAG}")
        a(MASK8)
        store_grp("buffer_store_dword", "v32", 10, 11)
        a(FULL)
        a(f"v_mov_b32 v4, {QFL+4}\nv_mov_b32 v5, 3")
        a("ds_write_b32 v4, v5")
        a("s_waitcnt lgkmcnt(0)")
        stamp(14)
        a("s_branch L_fin")

    def hopB2():
        a(f"v_lshlrev_b32 v9, 4, v{vLANE}")
        a(f"s_lshl_b32 s10, s{sXCD}, 12")
        a(f"s_add_u32 s10, s10, {QFN}")
        lds_wait(QFL + 4, 3)

        def ld():
            for i in range(4):
                a(f"buffer_load_dwordx4 {R(32 + i*4)}, v9, {S4(rWS)}, s10 offen offset:{i*1024} sc1")
        pollx(ld, lambda: check_regs(range(32, 48)), slp=cslp, name='c')
        for e in range(8):
            a(f"v_perm_b32 v{48+e}, v{33+2*e}, v{32+2*e}, s{sSELHI}")
        a(f"v_lshlrev_b32 v9, 3, v{vLANE}")
        a(f"v_add_u32 v9, {QB}, v9")
        for i in range(4):
            a(f"ds_write_b64 v9, {R(48 + 2*i, 2)} offset:{i*512}")
        a(f"v_mov_b32 v4, {QFL}\nv_mov_b32 v5, 2")
        a("s_waitcnt lgkmcnt(0)")
        a("ds_write_b32 v4, v5")
        a("s_waitcnt lgkmcnt(0)")
        stamp(4)
        a("s_branch L_fin")

    def hopB(half):
        a(f"v_and_b32 v15, {T4}, v{vTAG}")
        a(f"v_lshlrev_b32 v9, 4, v{vLANE}")
        a(f"s_lshl_b32 s10, s{sXCD}, 12")
        a(f"s_add_u32 s10, s10, {QP + half*2048}")
        for i in range(bdelay):
            a("s_sleep 37")

        def ld():
            for p in range(8):
                a(f"s_add_u32 s9, s10, {p*32768}")
                for i in range(2):
                    a(f"buffer_load_dwordx4 {R(32 + p*8 + i*4)}, v9, {S4(rWS)}, s9 offen offset:{i*1024} sc1")
        pollx(ld, lambda: check4(range(32, 96)), f2=True, slp=cslp)
        for st in (32, 16, 8):
            for e in range(st):
                a(f"v_add_f32 v{32+e}, v{32+e}, v{32+st+e}")
        for e in range(4):
            a(f"v_cvt_pk_bf16_f32 v{40+e}, v{32+2*e}, v{33+2*e}")
        a(f"v_lshlrev_b32 v9, 3, v{vLANE}")
        a(f"v_add_u32 v9, {QB + half*1024}, v9")
        for i in range(2):
            a(f"ds_write_b64 v9, {R(40 + 2*i, 2)} offset:{i*512}")
        a(f"v_mov_b32 v4, {QFL}\nv_mov_b32 v5, 1")
        a("s_waitcnt lgkmcnt(0)")
        a("s_mov_b64 exec, 1")
        a("ds_add_u32 v4, v5")
        a(FULL)
        a("s_waitcnt lgkmcnt(0)")
        stamp(4)
        a("s_branch L_fin")

    def f2_pack(src, dst):
        for k in range(4):
            a(f"v_mov_b32 v{dst+2*k}, v{src+k}")
            a(f"v_mov_b32 v{dst+2*k+1}, s{sEP}")

    def consumer_ids():
        a(f"s_lshr_b32 s12, s{sAI}, 2")
        a(f"s_and_b32 s13, s{sAI}, 3")
        a(f"s_lshl_b32 s13, s13, 5")
        a(f"s_lshl_b32 s9, s{sXCD}, 7")
        a(f"s_add_u32 s13, s13, s9")
        a(f"s_lshl_b32 s75, s12, 12")
        a(f"s_lshl_b32 s9, s13, 2")
        a(f"s_add_u32 s75, s75, s9")

    def w1_dma(vm, T):
        srd(rT0, pW1, 7340032)
        a(f"v_lshrrev_b32 v8, 4, v{vLANE}")
        a(f"v_mul_u32_u24 v8, 7168, v8")
        a(f"v_and_b32 v9, 15, v{vLANE}")
        a(f"v_lshl_add_u32 v8, v9, 4, v8")
        a(f"s_and_b32 s10, s{sBI}, 3")
        a(f"s_lshl_b32 s10, s10, 3")
        a(f"s_add_u32 s10, s10, s{sWAVE}")
        a(f"s_mul_i32 s10, s10, {32*7168}")
        a(f"s_lshr_b32 s11, s{sBI}, 2")
        a(f"s_lshl_b32 s11, s11, 8")
        a(f"s_add_u32 s10, s10, s11")
        a(f"s_lshl_b32 s11, s{sWAVE}, 13")
        t = None
        for i in range(8):
            a(f"s_add_u32 m0, s11, {WT + i*1024}")
            a(f"s_add_u32 s9, s10, {4*i*7168}")
            wait_n(T)
            t = vm.issue(f"buffer_load_dwordx4 v8, {S4(rT0)}, s9 offen {nt} lds")
        return t

    a(f"s_cmp_eq_u32 s{sW12}, 1")
    a("s_cbranch_scc1 L_moda")
    a(f"s_cmp_ge_u32 s{sW12}, 4")
    a("s_cbranch_scc1 L_att")
    a(f"s_cmp_eq_u32 s{sW12}, 0")
    a("s_cbranch_scc1 L_chain")
    a(f"s_cmp_eq_u32 s{sW12}, 2")
    a("s_cbranch_scc1 L_red")

    if codewarm:
        lw = a.label("Lnowarm")
        a(f"s_cmp_lt_u32 s{sIDX}, 30")
        a(f"s_cbranch_scc1 {lw}")
        a("s_getpc_b64 s[10:11]")
        a("L_pc0:")
        a(f"v_lshlrev_b32 v8, 4, v{vLANE}")
        a(f"s_mov_b32 s9, 0")
        lp = a.label("Lwarm")
        a(f"{lp}:")
        a(f"v_min_u32 v9, L_end-L_pc0-16, v8")
        a(f"global_load_dwordx4 {R(64)}, v9, s[10:11]")
        a(f"v_add_u32 v8, 1024, v8")
        a(f"s_add_u32 s9, s9, 1024")
        a(f"s_cmp_lt_u32 s9, L_end-L_pc0")
        a(f"s_cbranch_scc1 {lp}")
        a(f"{lw}:")
    if w1late:
        kargs()
        load_epoch()
        srd(rWS, pWS, WS_BYTES)
        a("s_barrier")
        get_tag()
        a(f"s_bitcmp1_b32 s{sIDX}, 0")
        a("s_cbranch_scc0 L_mbfin")
        a(f"s_sub_u32 s89, s{sIDX}, 1")
        a("L_mbl:")
    else:
        a(f"s_mov_b32 s89, s{sIDX}")
    a(f"s_and_b32 s12, s89, 3")
    a(f"s_lshl_b32 s13, s12, 8")
    a(f"s_lshr_b32 s14, s89, 3")
    a(f"s_lshl_b32 s14, s14, 4")
    a(f"s_lshl_b32 s9, s{sXCD}, 1")
    a(f"s_add_u32 s14, s14, s9")
    a(f"s_bfe_u32 s9, s89, 0x10002")
    a(f"s_add_u32 s14, s14, s9")
    a(f"s_lshl_b32 s88, s14, 7")
    a(f"s_add_u32 s88, s88, 4096")
    a(f"s_lshl_b32 s15, s12, 15")
    a(f"s_lshl_b32 s9, s14, 8")
    a(f"s_add_u32 s15, s15, s9")
    a(f"s_add_u32 s15, s15, {MODP}")

    def before_b():
        kargs()
        load_epoch()
        srd(rWS, pWS, WS_BYTES)
        a("s_barrier")
    if w1late:
        mod_tile(4, 13, 88, thrb, lambda: None, lambda: None)
    else:
        mod_tile(4, 13, 88, thrb, get_tag, before_b)
    for d in range(4):
        tag_round(72 + d, 72 + d)
    a(f"v_lshlrev_b32 v9, 4, v9")
    a(f"v_lshl_add_u32 v9, v10, 14, v9")
    get_loc()
    a(MASK8)
    store_grp("buffer_store_dwordx4", R(72), 9, 15)
    a(FULL)
    stamp(16)
    if w1late:
        a(f"s_add_u32 s89, s89, 1")
        a(f"s_cmp_le_u32 s89, s{sIDX}")
        a("s_cbranch_scc1 L_mbl")
    a(f"s_bitcmp1_b32 s{sIDX}, 0")
    a("s_cbranch_scc1 L_fin")
    a("L_mbfin:")
    a(f"s_cmp_ge_u32 s{sAI}, 8")
    a("s_cbranch_scc1 L_fin")
    GA, XV, B2V = 32, 48, 49
    lds_wait(QFL, 2)
    consumer_ids()
    srd(rT0, pX, 4096)
    srd(rT1, pB2, 2048)
    kperm(4, 5)
    a(f"v_and_b32 v8, 7, v{vLANE}")
    a(f"v_lshl_add_u32 v11, v8, 2, v4")
    a(f"v_lshlrev_b32 v5, 1, v11")
    a(f"s_lshr_b32 s9, s75, 1")
    a(f"buffer_load_ushort v{XV}, v5, {S4(rT0)}, s9 offen")
    a(f"s_lshl_b32 s9, s13, 1")
    a(f"buffer_load_ushort v{B2V}, v5, {S4(rT1)}, s9 offen")
    for r in range(16):
        a(f"v_mov_b32 v{GA+r}, 0")
    a(f"v_lshlrev_b32 v10, 15, v7")
    a(f"v_lshl_add_u32 v10, v8, 4, v10")
    a(f"s_lshl_b32 s14, s12, 14")
    a(f"s_lshl_b32 s9, s13, 2")
    a(f"s_add_u32 s14, s14, s9")

    def gloads():
        for k in range(4):
            a(f"s_add_u32 s9, s14, {MODP + k*4096}")
            a(f"buffer_load_dwordx4 {R(GA + 4*k)}, v10, {S4(rWS)}, s9 offen sc1")
    a("s_mov_b32 exec_hi, 0")
    pollx(gloads, lambda: check_regs(range(GA, GA + 16)), slp=16, name='m')
    for k in range(4):
        red4(GA + 4 * k, (8,))
    rnd2(GA, GA + 12, 5)
    rnd2(GA + 4, GA + 8, 5)
    a(f"v_add_f32 v{GA+8}, 1.0, v{GA+8}")
    rnd1(GA + 8, GA + 8)
    a(f"v_or_b32 v{GA+4}, v{vTAG}, v{GA+4}\nv_or_b32 v{GA+8}, v{vTAG}, v{GA+8}")
    a(f"v_lshlrev_b32 v9, 2, v11")
    a(f"s_add_u32 s9, s75, {X1 + 8192}")
    a(f"s_add_u32 s10, s75, {X1 + 16384}")
    a(MASK8)
    a(f"buffer_store_dword v{GA+4}, v9, {S4(rWS)}, s9 offen sc1")
    a(f"buffer_store_dword v{GA+8}, v9, {S4(rWS)}, s10 offen sc1")
    a(FULL)
    lo(XV, XV)
    lo(B2V, B2V)
    a(f"v_add_u32 v5, {XB}, v9")
    a(f"ds_write_b32 v5, v{GA+12} offset:128")
    a(f"ds_write_b32 v5, v{B2V} offset:256")
    a(f"ds_write_b32 v5, v{GA} offset:384")
    a(f"ds_write_b32 v5, v{XV} offset:512")
    a(f"v_xor_b32 v{GA+4}, v{vTAG}, v{GA+4}\nv_xor_b32 v{GA+8}, v{vTAG}, v{GA+8}")
    a(f"ds_write_b32 v5, v{GA+4}")
    a(f"ds_write_b32 v5, v{GA+8} offset:640")
    moment_addr(56, 4, 10, 1)
    a(f"v_mov_b32 v52, v{GA+8}")
    a(f"v_mul_f32 v53, v{GA+8}, v{GA+8}")
    a(f"v_mul_f32 v54, v{GA+8}, v{GA+4}")
    a(f"v_mov_b32 v55, v{GA+4}")
    a("s_mov_b32 exec_lo, 0xff00ff00\ns_mov_b32 exec_hi, 0xff00ff00")
    a(f"v_mul_f32 v52, v{GA+4}, v{GA+4}")
    a("v_mov_b32 v53, 0\nv_mov_b32 v54, 0\nv_mov_b32 v55, 0")
    a(FULL)
    publish_moments(52, 10)
    a("s_waitcnt lgkmcnt(0)")
    a("s_branch L_fin")

    a("L_moda:")
    a("s_setprio 3")
    a(f"s_lshr_b32 s12, s{sIDX}, 2")
    a(f"s_lshl_b32 s13, s12, 7")
    a(f"s_bfe_u32 s14, s{sIDX}, 0x10001")
    a(f"s_and_b32 s15, s{sIDX}, 1")
    a(f"s_lshl_b32 s88, s14, 11")
    a(f"s_lshl_b32 s9, s{sXCD}, 8")
    a(f"s_add_u32 s88, s88, s9")
    a(f"s_lshl_b32 s9, s15, 7")
    a(f"s_add_u32 s88, s88, s9")

    def after_a():
        a("s_barrier")
        load_epoch()
        srd(rWS, pWS, WS_BYTES)
        get_tag()
        a(f"s_lshl_b32 s13, s{sXCD}, 14")
        a(f"s_lshl_b32 s9, s12, 11")
        a(f"s_add_u32 s13, s13, s9")
        a(f"s_lshl_b32 s9, s14, 10")
        a(f"s_add_u32 s13, s13, s9")
        a(f"s_lshl_b32 s9, s15, 8")
        a(f"s_add_u32 s13, s13, s9")
        a(f"s_add_u32 s13, s13, {MA}")
        prewrite(64, 4, 9, 13)
    mod_tile(2, 13, 88, 0, after_a, kargs)
    for d in range(4):
        tag4(72 + d)
    a(f"v_lshlrev_b32 v9, 4, v9")
    a(f"v_lshl_add_u32 v9, v10, 9, v9")
    a(MASK8)
    a(f"buffer_store_dwordx4 {R(72)}, v9, {S4(rWS)}, s13 offen")
    a(FULL)
    a(f"v_mov_b32 v4, {QFL+12}\nv_mov_b32 v5, 1")
    a("ds_write_b32 v4, v5")
    stamp(1)
    a("s_getreg_b32 s88, hwreg(HW_REG_XCC_ID)")
    a("s_lshl_b32 s88, s88, 12")
    if xdelay:
        a(f"s_sleep {xdelay}")
    a(f"v_and_b32 v8, 31, v{vLANE}")
    a(f"v_lshlrev_b32 v8, 7, v8")
    a(f"s_lshl_b32 s10, s{sXCD}, 12")
    a(f"s_add_u32 s10, s10, {XID}")
    pollx(lambda: a(f"buffer_load_dwordx4 {R(32)}, v8, {S4(rWS)}, s10 offen sc1"), lambda: check_regs(range(32, 36)), name='x')
    if 'x' in skip:
        a("v_mov_b32 v32, s88")
    a("v_cmp_ne_u32 vcc, s88, v32")
    a("s_cmp_eq_u64 vcc, 0")
    a(f"s_cselect_b32 s{sLOC}, {2 if noloc else 1}, 2")
    a(f"v_mov_b32 v4, {QFL+8}\nv_mov_b32 v5, s{sLOC}")
    a("ds_write_b32 v4, v5")
    stamp(25)
    a(f"s_cmp_eq_u32 s{sLOC}, 1")
    a("s_cbranch_scc1 L_maok")
    a(MASK8)
    a(f"buffer_store_dwordx4 {R(72)}, v9, {S4(rWS)}, s13 offen sc1")
    a(FULL)
    a("L_maok:")
    if b2stage:
        hopB2()
    else:
        lds_wait(QFL + 4, 2)
        hopB(0)

    a("L_red:")
    kargs()
    srd(rWS, pWS, WS_BYTES)
    load_epoch()
    a("s_barrier")
    a("s_setprio 3")
    vm = Vm(a)
    srd(rT1, pX, 4096)
    a(f"v_lshrrev_b32 v10, 5, v{vLANE}")
    a(f"v_and_b32 v11, 31, v{vLANE}")
    a(f"v_lshlrev_b32 v9, 11, v10")
    a(f"v_lshl_add_u32 v9, v11, 4, v9")
    for q in range(4):
        vm.issue(f"buffer_load_dwordx4 {R(72 + q*4)}, v9, {S4(rT1)}, 0 offen offset:{q*512}")
    a(f"v_lshlrev_b32 v9, 11, v10")
    a(f"v_lshl_add_u32 v9, v11, 3, v9")
    a(f"s_lshl_b32 s11, s{sXCD}, 8")
    tx = vm.issue(f"buffer_load_dwordx2 {R(88, 2)}, v9, {S4(rT1)}, s11 offen")
    a("s_getreg_b32 s88, hwreg(HW_REG_XCC_ID)")
    a("s_lshl_b32 s88, s88, 12")
    a(f"v_lshlrev_b32 v4, 4, v{vLANE}")
    a(f"s_lshl_b32 s9, s{sL}, 7")
    a(f"s_add_u32 s9, s9, {XID}")
    get_tag()
    a(f"v_or_b32 v96, s88, v{vTAG}")
    a("v_mov_b32 v97, v96\nv_mov_b32 v98, v96\nv_mov_b32 v99, v96")
    a("s_mov_b64 exec, 0xff")
    if 'X' not in skip:
        a(f"buffer_store_dwordx4 {R(96)}, v4, {S4(rWS)}, s9 offen sc1")
    a(FULL)
    a(f"s_add_u32 s9, s9, {QFN - XID}")
    prewrite(100, 2, 6, 9)
    if pure == 1:
        a("s_branch L_fin")
    def touch(n, lo_bits, hi_shift, base):
        a(f"v_lshrrev_b32 v101, {lo_bits}, v{vLANE}")
        a(f"v_lshlrev_b32 v101, {hi_shift - 7}, v101")
        a(f"v_and_or_b32 v101, v{vLANE}, {(1 << lo_bits) - 1}, v101")
        a(f"v_lshlrev_b32 v101, 7, v101")
        a(f"s_add_u32 s9, s9, {base}")
        if n < 64:
            a(f"s_mov_b64 exec, {(1 << n) - 1:#x}" if n < 32 else "s_mov_b32 exec_hi, 0")
        a(f"buffer_load_dword v100, v101, {S4(rWS)}, s9 offen")
        if n < 64:
            a(FULL)
    if 'm' in ptall:
        a(f"s_lshl_b32 s9, s{sXCD}, 14\ns_lshl_b32 s10, s{sAI}, 10\ns_add_u32 s9, s9, s10")
        a(f"s_and_b32 s10, s{sIDX}, 1\ns_lshl_b32 s10, s10, 8\ns_add_u32 s9, s9, s10")
        touch(4, 1, 9, MA)
    if 'q' in ptall:
        a(f"s_lshl_b32 s9, s{sXCD}, 15\ns_lshl_b32 s10, s{sIDX}, 9\ns_add_u32 s9, s9, s10")
        touch(8, 2, 14, QP)
    if 'f' in ptall:
        for base in (QFN, OF, ML):
            a(f"s_lshl_b32 s9, s{sL}, 7")
            touch(1, 0, 7, base)
    if 'd' in ptall:
        a(f"s_and_b32 s9, s{sIDX}, 3\ns_lshl_b32 s9, s9, 15")
        a(f"s_lshr_b32 s10, s{sIDX}, 3\ns_lshl_b32 s10, s10, 12\ns_add_u32 s9, s9, s10")
        a(f"s_lshl_b32 s10, s{sXCD}, 9\ns_add_u32 s9, s9, s10")
        a(f"s_bfe_u32 s10, s{sIDX}, 0x10002\ns_lshl_b32 s10, s10, 8\ns_add_u32 s9, s9, s10")
        touch(4, 1, 14, MODP)
    if 'o' in ptall:
        a(f"s_lshl_b32 s9, s{sXCD}, 17\ns_lshl_b32 s10, s{sIDX}, 9\ns_add_u32 s9, s9, s10")
        touch(32, 2, 14, OP)
    a(f"s_bitcmp1_b32 s{sIDX}, 0")
    a("s_cbranch_scc1 L_tB")
    if 'x' in ptall:
        a(f"s_lshl_b32 s9, s{sIDX}, 13\ns_lshl_b32 s10, s{sXCD}, 9\ns_add_u32 s9, s9, s10")
        touch(16, 2, 12, XP)
        a(f"s_cmp_ge_u32 s{sAI}, 8")
        a("s_cbranch_scc1 L_tD")
        consumer_ids()
        a("s_mov_b32 s9, s75")
        touch(3, 0, 13, X1)
        a("s_mov_b32 s9, s75")
        touch(2, 0, 13, XS)
    a("s_branch L_tD")
    a("L_tB:")
    a(f"s_cmp_ge_u32 s{sBI}, 112")
    a("s_cbranch_scc1 L_tD")
    if 'x' in ptall:
        a(f"s_lshl_b32 s9, s{sBI}, 10")
        touch(8, 3, 10, HP)
    if 'y' in ptall:
        a(f"s_lshl_b32 s9, s{sBI}, 13")
        touch(64, 6, 13, YP)
    a("L_tD:")
    nmin = ('X' not in skip) + ('m' in ptall) + ('q' in ptall) + 3 * ('f' in ptall) + ('d' in ptall) + ('o' in ptall)
    a(f"s_waitcnt vmcnt({nmin})")
    a("v_mov_b32 v4, 0\nv_mov_b32 v5, 0")
    for i in range(16):
        lo(6, 72 + i)
        hi(8, 72 + i)
        a(f"v_add_f32 v4, v4, v6\nv_fmac_f32 v5, v6, v6")
        a(f"v_add_f32 v4, v4, v8\nv_fmac_f32 v5, v8, v8")
    for r in (1, 2, 4, 8):
        dpp_add(4, 4, 4, r)
        dpp_add(5, 5, 5, r)
    allred(4, 6, "v_add_f32", (16,))
    allred(5, 6, "v_add_f32", (16,))
    ln_stats(4, 5, 6, 8, 9)
    for i in range(2):
        lo(24 + 2 * i, 88 + i)
        hi(25 + 2 * i, 88 + i)
        ln_apply(24 + 2 * i, 25 + 2 * i, 6, 8, 9)
    a(f"v_and_b32 v15, {T4}, v{vTAG}")
    a(f"v_lshlrev_b32 v9, 4, v{vLANE}")
    a(f"s_lshl_b32 s10, s{sXCD}, 14")
    a(f"s_add_u32 s10, s10, {MA}")

    if agate:
        lds_wait(QFL + 12, 1)
    if adelay:
        a(f"s_sleep {adelay}")

    def ldA():
        for p in range(8):
            if p % 2 == 0:
                a(f"s_add_u32 s9, s10, {p*2048}")
            for wh in range(2):
                a(f"buffer_load_dwordx4 {R(32 + p*8 + wh*4)}, v9, {S4(rWS)}, s9 offen offset:{(p % 2)*2048 + wh*1024} sc1")
    pollx(ldA, lambda: check4(range(32, 96)), f2=True, slp=cslp, name='a')
    stamp(2)
    for st in (32, 16, 8):
        for e in range(st):
            a(f"v_add_f32 v{32+e}, v{32+e}, v{32+st+e}")
    for i in range(2):
        s0, c0, l0 = 32 + 2 * i, 36 + 2 * i, 24 + 2 * i
        rnd2(s0, s0 + 1, 6)
        rnd2(c0, c0 + 1, 6)
        a(f"v_add_f32 v{c0}, 1.0, v{c0}\nv_add_f32 v{c0+1}, 1.0, v{c0+1}")
        rnd2(c0, c0 + 1, 6)
        a(f"v_mul_f32 v{c0}, v{c0}, v{l0}\nv_mul_f32 v{c0+1}, v{c0+1}, v{l0+1}")
        rnd2(c0, c0 + 1, 6)
        a(f"v_add_f32 v{c0}, v{c0}, v{s0}\nv_add_f32 v{c0+1}, v{c0+1}, v{s0+1}")
        a(f"v_cvt_pk_bf16_f32 v{40+i}, v{c0}, v{c0+1}")
    a(f"v_lshlrev_b32 v9, 3, v{vLANE}")
    a(f"v_add_u32 v9, {HB}, v9")
    a(f"ds_write_b64 v9, {R(40, 2)}")
    a(f"v_mov_b32 v4, {QFL+4}\nv_mov_b32 v5, 1")
    a("s_waitcnt lgkmcnt(0)")
    a("ds_write_b32 v4, v5")
    stamp(17)
    if b2stage:
        hopB1()
    else:
        lds_wait(QFL + 4, 2)
        hopB(1)

    a("L_chain:")
    a("s_setprio 3")
    W = 40
    a(f"v_lshrrev_b32 v11, 4, v{vLANE}")
    a(f"v_lshlrev_b32 v8, 16, v11")
    a(f"v_and_b32 v15, 15, v{vLANE}")
    a(f"v_lshl_add_u32 v8, v15, 4, v8")
    a(f"s_lshl_b32 s10, s{sXCD}, 20")
    a(f"s_lshl_b32 s11, s{sIDX}, 8")
    a(f"s_add_u32 s10, s10, s11")
    kargs()
    srd(rT0, pWQ, 8388608)
    srd(rWS, pWS, WS_BYTES)
    load_epoch()
    a("s_barrier")
    for blk in range(4):
        for e in range(8):
            a(f"s_add_u32 s9, s10, {(32*blk+e)*8192}")
            wait_n(thrq)
            a(f"buffer_load_dwordx4 {R(W + blk*32 + e*4)}, v8, {S4(rT0)}, s9 offen {nt}")
    if stamps == 1:
        a("s_waitcnt vmcnt(0)")
        stamp(18)
    if pure == 1:
        a("s_branch L_fin")
    get_tag()
    a(f"v_bfe_u32 v6, v{vLANE}, 2, 1")
    a(f"v_lshlrev_b32 v8, 8, v6")
    a(f"v_lshl_add_u32 v8, v11, 4, v8")
    a(f"v_add_u32 v8, {HB}, v8")
    a(f"v_mov_b32 v7, {ZB}")
    a(f"v_lshrrev_b32 v9, 5, v{vLANE}")
    a(f"v_lshl_add_u32 v9, v15, 1, v9")
    a(f"v_lshlrev_b32 v9, 4, v9")
    a(f"v_and_b32 v6, 1, v11")
    a(f"v_lshl_add_u32 v9, v6, 14, v9")
    a(f"s_lshl_b32 s10, s{sXCD}, 15")
    a(f"s_lshl_b32 s11, s{sIDX}, 9")
    a(f"s_add_u32 s10, s10, s11")
    a(f"s_add_u32 s10, s10, {QP}")
    lds_wait(QFL + 4, 1)
    a("s_waitcnt vmcnt(0)")
    stamp(19)
    ACC = 4
    first = True
    for d in range(8):
        m16 = (0x11 << (d & 3)) << (8 * (d >> 2))
        m32 = m16 | (m16 << 16)
        a(f"s_mov_b32 vcc_lo, {m32:#x}\ns_mov_b32 vcc_hi, {m32:#x}")
        a(f"v_cndmask_b32 v10, v7, v8, vcc")
        for blk in range(4):
            a(f"ds_read_b128 {R(16 + blk*4)}, v10 offset:{blk*64}")
        for blk in range(4):
            t = 32 + (blk & 1) * 4
            perm_operand(t, W + blk * 32, d)
            a(f"s_waitcnt lgkmcnt({3-blk})")
            a(f"v_mfma_f32_16x16x32_bf16 {R(2)}, {R(16 + blk*4)}, {R(t)}, {'0' if first else R(2)}")
            first = False
    for d in range(4):
        tag4(2 + d)
    if 'Q' not in skip:
        a(f"buffer_store_dwordx4 {R(2)}, v9, {S4(rWS)}, s10 offen {qpol}")
    a(f"v_mov_b32 v8, {QFL+4}\nv_mov_b32 v7, 2")
    a("ds_write_b32 v8, v7")
    a("s_waitcnt lgkmcnt(0)")
    stamp(3)
    if hpt:
        a(f"s_bitcmp1_b32 s{sIDX}, 0")
        a("s_cbranch_scc1 L_ptB")
        a(f"v_lshrrev_b32 v9, 1, v{vLANE}")
        a(f"v_lshlrev_b32 v9, 9, v9")
        a(f"v_and_b32 v10, 1, v{vLANE}")
        a(f"v_lshl_add_u32 v9, v10, 7, v9")
        a(f"s_lshr_b32 s9, s{sL}, 2")
        a(f"s_lshl_b32 s10, s9, 14")
        a(f"s_and_b32 s9, s{sIDX}, 3")
        a(f"s_lshl_b32 s9, s9, 7")
        a(f"s_add_u32 s10, s10, s9")
        a(f"s_add_u32 s10, s10, {OP}")
        a(f"buffer_load_dword v16, v9, {S4(rWS)}, s10 offen {ptpol}")
        a(f"v_bfe_u32 v9, v{vLANE}, 2, 2")
        a(f"v_lshlrev_b32 v9, 12, v9")
        a(f"v_and_b32 v10, 3, v{vLANE}")
        a(f"v_lshl_add_u32 v9, v10, 7, v9")
        a(f"s_lshl_b32 s10, s{sIDX}, 13")
        a(f"s_lshl_b32 s9, s{sXCD}, 9")
        a(f"s_add_u32 s10, s10, s9")
        a(f"s_add_u32 s10, s10, {XP}")
        a(f"buffer_load_dword v17, v9, {S4(rWS)}, s10 offen {ptpol}")
        a("s_branch L_fin")
        a("L_ptB:")
        a(f"v_and_b32 v9, 7, v{vLANE}")
        a(f"v_lshlrev_b32 v9, 7, v9")
        a(f"s_lshl_b32 s10, s{sBI}, 10")
        a(f"s_add_u32 s10, s10, {HP}")
        a(f"buffer_load_dword v16, v9, {S4(rWS)}, s10 offen {ptpol}")
    a("s_branch L_fin")

    QF, DT, PT, KV = 16, 24, 32, 40
    if pure >= 2:
        def drop(l):
            if "buffer_store" in l:
                if pure in (3, 4): return True
                if pure == 5 and "sc1" in l: return True
                if pure == 6 and "sc1" not in l: return True
            if "buffer_load" in l and "sc1" in l and pure in (2, 4, 5, 6): return True
            return False
        a.lines = [l for l in a.lines if not drop(l)]
    a("L_att:")
    a(f"s_lshl_b32 s{sKV}, s{sL}, 18")
    a(f"s_lshl_b32 s9, s{sWAVE}, 12")
    a(f"s_add_u32 s{sKV}, s{sKV}, s9")
    a(f"v_lshlrev_b32 v{vOV}, 4, v{vLANE}")
    a(f"v_and_b32 v6, 3, v{vLANE}")
    a(f"v_lshlrev_b32 v6, 10, v6")
    a(f"v_bfe_u32 v5, v{vLANE}, 2, 1")
    a(f"v_lshl_add_u32 v6, v5, 8, v6")
    a(f"v_lshl_add_u32 v{vOK}, v7, 4, v6")
    if klin == 1:
        a(f"v_and_b32 v6, 7, v{vLANE}\nv_lshlrev_b32 v6, 8, v6\nv_lshl_add_u32 v{vOK}, v7, 4, v6")
    if klin == 2:
        a(f"v_mov_b32 v{vOK}, v{vOV}")
    a(f"v_mov_b32 v4, {QFL}")
    a("s_mov_b64 vcc, 0")
    kargs()
    srd(rK, pK, 0x4000000)
    srd(rV, pV, 0x4000000)
    srd(rWS, pWS, WS_BYTES)
    a("s_barrier")
    if wq_dyn:
        a(f"v_lshrrev_b32 v8, 4, v{vLANE}")
        a(f"v_and_b32 v9, 15, v{vLANE}")
        a(f"s_bitcmp1_b32 s{sIDX}, 0")
        a("s_cbranch_scc1 L_adw1")
        srd(rT2, pWO, 8388608)
        a(f"s_lshl_b32 s10, s{sAI}, 19")
        a(f"s_lshl_b32 s11, s{sXCD}, 8")
        a(f"s_add_u32 s10, s10, s11")
        a(f"s_mov_b32 s12, 2048")
        a("s_branch L_adgo")
        a("L_adw1:")
        if w1late:
            a("s_branch L_adone")
        a(f"s_cmp_ge_u32 s{sBI}, 112")
        a("s_cbranch_scc1 L_adone")
        srd(rT2, pW1, 7340032)
        a(f"s_and_b32 s10, s{sBI}, 3")
        a(f"s_mul_i32 s10, s10, {256*7168}")
        a(f"s_lshr_b32 s11, s{sBI}, 2")
        a(f"s_lshl_b32 s11, s11, 8")
        a(f"s_add_u32 s10, s10, s11")
        a(f"s_mov_b32 s12, 7168")
        a("L_adgo:")
        a(f"v_mul_lo_u32 v8, v8, s12")
        a(f"v_lshl_add_u32 v8, v9, 4, v8")
        a(f"s_lshl_b32 s12, s12, 2")
        a(f"v_mov_b32 v9, 1")
        a("L_adl:")
        wait_n(thrw)
        a("s_mov_b64 exec, 1")
        a(f"ds_add_rtn_u32 v5, v4, v9 offset:16")
        a(FULL)
        a("s_waitcnt lgkmcnt(0)")
        a("v_readfirstlane_b32 s11, v5")
        a("s_cmp_ge_u32 s11, 64")
        a("s_cbranch_scc1 L_adone")
        a("s_lshl_b32 m0, s11, 10")
        a("s_mul_i32 s9, s11, s12")
        a("s_add_u32 s9, s9, s10")
        a(f"buffer_load_dwordx4 v8, {S4(rT2)}, s9 offen {nt} lds")
        a("s_branch L_adl")
        a("L_adone:")
        stamp(21)
    elif attdma:
        a(f"s_bitcmp1_b32 s{sIDX}, 0")
        a("s_cbranch_scc1 L_adw1")
        srd(rT2, pWO, 8388608)
        a(f"v_lshrrev_b32 v8, 4, v{vLANE}")
        a(f"v_lshlrev_b32 v8, 11, v8")
        a(f"v_and_b32 v9, 15, v{vLANE}")
        a(f"v_lshl_add_u32 v8, v9, 4, v8")
        a(f"s_lshl_b32 s10, s{sAI}, 19")
        a(f"s_lshl_b32 s11, s{sXCD}, 8")
        a(f"s_add_u32 s10, s10, s11")
        a(f"s_lshl_b32 s11, s{sWAVE}, 16")
        a(f"s_add_u32 s10, s10, s11")
        a(f"s_lshl_b32 s11, s{sWAVE}, 13")
        for i in range(8):
            a(f"s_add_u32 m0, s11, {WT + i*1024}")
            a(f"s_add_u32 s9, s10, {i*8192}")
            wait_n(thrw)
            a(f"buffer_load_dwordx4 v8, {S4(rT2)}, s9 offen {nt} lds")
        a("s_branch L_adone")
        a("L_adw1:")
        if w1_early:
            a(f"s_cmp_ge_u32 s{sBI}, 112")
            a("s_cbranch_scc1 L_adone")
            w1_dma(Vm(a), thrw)
        a("L_adone:")
        stamp(21)
    load_epoch()
    thr_n = [0]

    def thr_wait():
        if thr2 == thr:
            wait_n(thr)
            return
        thr_n[0] += 1
        lsk = a.label("Lthr")
        a(f"s_cbranch_vccnz {lsk}")
        if thr_n[0] % 2 == 0:
            a("ds_read_b32 v5, v4")
        a(f"s_waitcnt vmcnt({thr-1})")
        if thr_n[0] % 2 == 0:
            a("s_waitcnt lgkmcnt(0)")
            a("v_cmp_eq_u32 vcc, 2, v5")
        a(f"{lsk}:")
        wait_n(thr2)

    vm = Vm(a)
    order = [2, 3, 0, 1, 4, 5, 6, 7]
    pos = {s: i for i, s in enumerate(order)}
    tk = {}
    for s in order:
        a(f"s_add_u32 s9, s{sKV}, {pos[s]*32768}")
        for t in range(2):
            for h in range(2):
                if thr:
                    thr_wait()
                tk[s] = vm.issue(f"buffer_load_dwordx4 {R(KV + s*16 + t*8 + h*4)}, v{vOK}, {S4(rK)}, s9 offen offset:{(t*512 + h*128, t*2048 + h*128, t*2048 + h*1024)[klin]} {nt}")
    vblk = [KV + 32, KV + 64, KV + 96, KV + 32]
    tv = [None] * 4

    def vload(v):
        for e in range(8):
            if e % 4 == 0:
                a(f"s_add_u32 s9, s{sKV}, {(2*v + e//4)*32768}")
            wait_n(thrv)
            tv[v] = vm.issue(f"buffer_load_dwordx4 {R(vblk[v] + e*4)}, v{vOV}, {S4(rV)}, s9 offen offset:{(e % 4)*1024} {nt}")
    vnext = [0]

    def vslot():
        if not fine:
            return
        n = vnext[0]
        vnext[0] += 1
        v, e = n // 8, n % 8
        if e % 4 == 0:
            a(f"s_add_u32 s{sDU}, s{sKV}, {(2*v + e//4)*32768}")
        wait_n(thrv)
        tv[v] = vm.issue(f"buffer_load_dwordx4 {R(vblk[v] + e*4)}, v{vOV}, {S4(rV)}, s{sDU} offen offset:{(e % 4)*1024} {nt}")
    stamp(20)
    if pure:
        vm.wait(tk[3]); vload(0); vm.wait(tk[5]); vload(1); vm.wait(tk[7]); vload(2); vm.wait(tv[0]); vload(3)
        a("s_waitcnt vmcnt(0)")
        stamp(8)
        a("s_branch L_fin")
    get_tag()
    lds_wait(QFL, 2)
    stamp(5)
    a(f"v_and_b32 v8, 7, v{vLANE}")
    a(f"v_lshlrev_b32 v9, 8, v8")
    a(f"v_lshl_add_u32 v9, v7, 4, v9")
    a(f"v_add_u32 v9, {QB}, v9")
    a(f"ds_read_b128 {R(QF)}, v9")
    a(f"ds_read_b128 {R(QF+4)}, v9 offset:128")
    a("s_waitcnt lgkmcnt(0)")
    Sreg = [PT, PT + 4, KV, KV + 4, KV + 8, KV + 12, KV + 16, KV + 20]

    def qk_mfma(s, X, Y):
        vm.wait(tk[s])
        k0 = KV + s * 16
        a(f"v_mfma_f32_16x16x32_bf16 {R(X)}, {R(k0)}, {R(QF)}, 0")
        a(f"v_mfma_f32_16x16x32_bf16 {R(Y)}, {R(k0+8)}, {R(QF)}, 0")
        a(f"v_mfma_f32_16x16x32_bf16 {R(X)}, {R(k0+4)}, {R(QF+4)}, {R(X)}")
        a(f"v_mfma_f32_16x16x32_bf16 {R(Y)}, {R(k0+12)}, {R(QF+4)}, {R(Y)}")

    def qk_post(p, X, Y):
        S = Sreg[p]
        for r in range(4):
            a(f"v_permlane32_swap_b32 v{X+r}, v{Y+r}")
        for r in range(4):
            dpp_add(S + r, Y + r, X + r, 8)
        for r in (0, 2):
            rnd2(S + r, S + r + 1, 4)
            a(f"v_mul_f32 v{S+r}, s{sSCALE}, v{S+r}\nv_mul_f32 v{S+r+1}, s{sSCALE}, v{S+r+1}")
            rnd2(S + r, S + r + 1, 4)
        if p == 0:
            a(f"v_max3_f32 v5, v{S}, v{S+1}, v{S+2}")
            a(f"v_max_f32 v5, v5, v{S+3}")
        else:
            a(f"v_max3_f32 v5, v5, v{S}, v{S+1}")
            a(f"v_max3_f32 v5, v5, v{S+2}, v{S+3}")
    qk_mfma(2, PT, DT)
    qk_mfma(3, PT + 4, DT + 4)
    if not fine:
        vload(0)
    vslot()
    qk_post(0, PT, DT)
    vslot()
    qk_post(1, PT + 4, DT + 4)
    for s in (0, 1, 4, 5, 6, 7):
        vslot()
        qk_mfma(s, DT, DT + 4)
        if s == 5 and not fine:
            vload(1)
        qk_post(pos[s], DT, DT + 4)
    vslot()
    allred(5, 6, "v_max_f32", (32, 16))
    a(f"v_lshlrev_b32 v9, 5, v8")
    a(f"v_add_u32 v10, {MX}, v9")
    a(f"s_lshl_b32 s9, s{sWAVE}, 2")
    a(f"v_add_u32 v11, s9, v10")
    a("s_mov_b64 exec, 0xff")
    a(f"ds_write_b32 v11, v5")
    a(FULL)
    if vearly and not fine:
        vload(2)
    vslot()
    a("s_waitcnt lgkmcnt(0)")
    stamp(6)
    a("s_barrier")
    vslot()
    a(f"v_mov_b32 v4, {QFL+8}")
    a(f"ds_read_b128 {R(16)}, v10")
    a(f"ds_read_b128 {R(20)}, v10 offset:16")
    a(f"ds_read_b32 v4, v4")
    a("s_waitcnt lgkmcnt(0)")
    a(f"v_readfirstlane_b32 s{sLOC}, v4")
    a(f"v_max3_f32 v5, v16, v17, v18\nv_max3_f32 v5, v5, v19, v20\nv_max3_f32 v5, v5, v21, v22\nv_max_f32 v5, v5, v23")
    a(f"v_mul_f32 v6, s{sLOG2E}, v5")
    a("v_mov_b32 v4, 0")
    sl = [Sreg[p] + r for p in range(8) for r in range(4)]
    for i, x in enumerate(sl):
        if i in (8, 20):
            vslot()
        a(f"v_fma_f32 v{x}, v{x}, s{sLOG2E}, -v6")
        a(f"v_exp_f32 v{x}, v{x}")
        if i:
            a(f"v_add_f32 v4, v4, v{sl[i-1]}")
    a(f"v_add_f32 v4, v4, v{sl[31]}")
    vslot()
    for i in range(16):
        a(f"v_cvt_pk_bf16_f32 v{QF+i}, v{sl[2*i]}, v{sl[2*i+1]}")
    allred(4, 6, "v_add_f32", (32, 16))
    a("s_mov_b64 exec, 0xff")
    a(f"ds_write_b32 v11, v4 offset:{LX-MX}")
    a(FULL)
    vslot()
    a("s_waitcnt lgkmcnt(0)")
    a("s_barrier")
    vslot()
    a(f"s_cmp_lg_u32 s{sWAVE}, 4")
    a("s_cbranch_scc1 L_noml")
    a(f"ds_read_b128 {R(32)}, v10 offset:{LX-MX}")
    a(f"ds_read_b128 {R(36)}, v10 offset:{LX-MX+16}")
    a(f"s_lshl_b32 s10, s{sL}, 7")
    a(f"s_add_u32 s10, s10, {ML}")
    a(f"v_lshlrev_b32 v9, 4, v8")
    a("s_waitcnt lgkmcnt(0)")
    a("v_add_f32 v32, v32, v33\nv_add_f32 v34, v34, v35\nv_add_f32 v36, v36, v37\nv_add_f32 v38, v38, v39")
    a("v_add_f32 v32, v32, v34\nv_add_f32 v36, v36, v38\nv_add_f32 v33, v32, v36")
    tag_trunc(32, 5)
    tag_trunc(33, 33)
    a("v_mov_b32 v34, v32\nv_mov_b32 v35, v33")
    a("s_mov_b64 exec, 0xff")
    store_grp("buffer_store_dwordx4", R(32), 9, 10)
    a(FULL)
    a("L_noml:")
    if not vearly and not fine:
        vload(2)
    a(f"v_mul_u32_u24 v9, 528, v8")
    a(f"v_lshrrev_b32 v10, 4, v{vLANE}")
    a(f"v_lshl_add_u32 v9, v10, 4, v9")
    a(f"s_mul_i32 s9, s{sWAVE}, 4224")
    a(f"s_add_u32 s9, s9, {OC}")
    a(f"v_add_u32 v9, s9, v9")
    a(f"v_lshrrev_b32 v10, 5, v{vLANE}")
    a(f"v_mul_u32_u24 v10, {4*4224}, v10")
    a(f"v_and_b32 v11, 31, v{vLANE}")
    a(f"v_lshlrev_b32 v11, 4, v11")
    a(f"s_mul_i32 s9, s{sWAVE}, 528")
    a(f"s_add_u32 s9, s9, {OC}")
    a(f"v_add3_u32 v10, v10, v11, s9")
    a(f"s_lshl_b32 s10, s{sXCD}, 3")
    a(f"s_add_u32 s10, s10, s{sWAVE}")
    a(f"s_lshl_b32 s10, s10, 5")
    a(f"s_add_u32 s10, s10, s{sIDX}")
    a(f"s_lshl_b32 s11, s10, 9")
    a(f"s_add_u32 s11, s11, {OP}")
    if prew:
        prewrite(PT, 4, 8, 11)
        a(f"s_bitcmp1_b32 s{sIDX}, 0")
        a("s_cbranch_scc1 L_pwB")
        a(f"s_lshr_b32 s9, s{sWAVE}, 2")
        a(f"s_add_u32 s9, s9, s{sIDX}")
        a(f"s_lshl_b32 s9, s9, 13")
        a(f"s_lshl_b32 s10, s{sXCD}, 9")
        a(f"s_add_u32 s9, s9, s10")
        a(f"s_and_b32 s10, s{sWAVE}, 3")
        a(f"s_lshl_b32 s10, s10, 7")
        a(f"s_add_u32 s9, s9, s10")
        a(f"s_add_u32 s9, s9, {XP}")
        prewrite(PT, 3, 12, 9)
        a("s_branch L_pwD")
        a("L_pwB:")
        a(f"s_cmp_ge_u32 s{sBI}, 112")
        a("s_cbranch_scc1 L_pwD")
        a(f"s_lshl_b32 s9, s{sBI}, 10")
        a(f"s_lshl_b32 s10, s{sWAVE}, 6")
        a(f"s_add_u32 s9, s9, s10")
        a(f"s_add_u32 s9, s9, {HP}")
        prewrite(PT, 2, 9, 9)
        a("L_pwD:")
    SA = KV
    MLR, F = 104, 120

    def mlloads():
        for i in range(4):
            a(f"buffer_load_dwordx4 {R(MLR + 4*i)}, v15, {S4(rWS)}, s89 offen offset:{i*1024} sc1")
    for v in range(4):
        vm.wait(tv[v])
        for d in range(8):
            if v == 0 or (v in (1, 2) and d % 2 == 0):
                vslot()
            t = PT + (d & 1) * 4
            perm_operand(t, vblk[v], d)
            c = "0" if v == 0 else R(SA + d * 4)
            a(f"v_mfma_f32_16x16x32_bf16 {R(SA + d*4)}, {R(t)}, {R(QF + v*4)}, {c}")
        if v == 0 and not fine:
            vload(3)
        if v == 1:
            a(f"v_lshlrev_b32 v15, 7, v7")
            a(f"s_and_b32 s88, s{sIDX}, 1")
            a(f"s_lshl_b32 s88, s88, 3")
            a(f"s_or_b32 s88, s88, s{sWAVE}")
            a(f"s_cmp_ge_u32 s88, 2")
            a("s_cbranch_scc1 L_noml2")
            a(f"s_lshl_b32 s89, s{sXCD}, 12")
            a(f"s_lshr_b32 s9, s{sIDX}, 2")
            a(f"s_lshl_b32 s9, s9, 4")
            a(f"s_add_u32 s89, s89, s9")
            a(f"s_add_u32 s89, s89, {ML}")
            mlloads()
            a(f"v_lshlrev_b32 v0, 9, v7")
            a(f"v_lshl_add_u32 v0, v8, 4, v0")
            a(f"s_lshr_b32 s9, s{sL}, 2")
            a(f"s_lshl_b32 s90, s9, 14")
            a(f"s_and_b32 s9, s{sIDX}, 3")
            a(f"s_add_u32 s9, s9, s{sWAVE}")
            a(f"s_lshl_b32 s9, s9, 7")
            a(f"s_add_u32 s90, s90, s9")
            a(f"s_add_u32 s90, s90, {OP}")
            for i in range(1, 4):
                a(f"s_add_u32 s{90+i}, s90, {i*4096}")
            if pretouch:
                for i in range(4):
                    a(f"buffer_load_dword v{MLR+16+i}, v0, {S4(rWS)}, s{90+i} offen sc1")
            a("L_noml2:")
    assert not fine or vnext[0] == 32
    stamp(7)
    a(MASK8)
    for d in range(8):
        a(f"ds_write_b128 v9, {R(SA + d*4)} offset:{d*64}")
    a(FULL)
    a("v_mov_b32 v124, 0")
    a(f"s_cmp_ge_u32 s88, 2")
    a("s_cbranch_scc1 L_nof")
    pollx(mlloads, lambda: check_regs(range(MLR, MLR + 16)), pre_issued=True)
    a(f"v_max3_f32 v5, v{MLR}, v{MLR+4}, v{MLR+8}\nv_max_f32 v5, v5, v{MLR+12}")
    dpp_max(5, 5, 5, 8)
    allred(5, 6, "v_max_f32", (16, 32))
    for i in range(4):
        a(f"v_sub_f32 v{F+i}, v{MLR+4*i}, v5")
        a(f"v_mul_f32 v{F+i}, s{sLOG2E}, v{F+i}")
        a(f"v_exp_f32 v{F+i}, v{F+i}")
    a(f"v_mul_f32 v5, v{F}, v{MLR+1}")
    for i in range(1, 4):
        a(f"v_fmac_f32 v5, v{F+i}, v{MLR+1+4*i}")
    dpp_add(5, 5, 5, 8)
    allred(5, 6, "v_add_f32", (16, 32))
    a("v_rcp_f32 v5, v5")
    for i in range(4):
        a(f"v_mul_f32 v{F+i}, v{F+i}, v5")
    kperm(4, 5)
    a(f"v_lshl_add_u32 v124, v8, 2, v4")
    a(f"v_lshlrev_b32 v124, 2, v124")
    a(f"s_add_u32 s89, s{sL}, s{sWAVE}")
    a(f"s_lshl_b32 s89, s89, 7")
    a(f"s_add_u32 s89, s89, {OF}")
    a("L_nof:")
    a("s_waitcnt lgkmcnt(0)")
    a("s_barrier")
    for k in range(4):
        a(f"ds_read_b128 {R(16 + 4*k)}, v10 offset:{k*4224}")
    a("s_waitcnt lgkmcnt(0)")
    for r in range(4):
        a(f"v_add_f32 v{16+r}, v{16+r}, v{20+r}\nv_add_f32 v{24+r}, v{24+r}, v{28+r}")
    for r in range(4):
        a(f"v_add_f32 v{16+r}, v{16+r}, v{24+r}")
    for r in range(4):
        a(f"v_mov_b32 v{20+r}, v{16+r}")
    for r in range(4):
        a(f"v_permlane32_swap_b32 v{16+r}, v{20+r}")
    for r in range(4):
        a(f"v_add_f32 v{16+r}, v{16+r}, v{20+r}")
    for r in range(4):
        tag_trunc(16 + r, 16 + r)
    a("s_mov_b32 exec_hi, 0")
    store_grp("buffer_store_dwordx4", R(16), 11, 11)
    a(FULL)
    stamp(8)

    def h1a():
        ln = a.label("Lnoh1a")
        a(f"s_cmp_ge_u32 s88, 2")
        a(f"s_cbranch_scc1 {ln}")

        def oloads():
            for i in range(4):
                a(f"buffer_load_dwordx4 {R(MLR + 4*i)}, v0, {S4(rWS)}, s{90+i} offen sc1")
        pollx(oloads, lambda: check_regs(range(MLR, MLR + 16)), slp=0)
        for k in range(4):
            a(f"v_mul_f32 v{MLR+k}, v{F}, v{MLR+k}")
            a(f"v_mul_f32 v{MLR+8+k}, v{F+2}, v{MLR+8+k}")
        for k in range(4):
            a(f"v_fmac_f32 v{MLR+k}, v{F+1}, v{MLR+4+k}")
            a(f"v_fmac_f32 v{MLR+8+k}, v{F+3}, v{MLR+12+k}")
        for k in range(4):
            a(f"v_add_f32 v{MLR+k}, v{MLR+k}, v{MLR+8+k}")
        red4(MLR, (8,))
        a(f"v_cvt_pk_bf16_f32 v{MLR}, v{MLR}, v{MLR}")
        a(f"v_bfi_b32 v{MLR}, s{sHI}, v{MLR}, v{vTAG}")
        a(MASK8)
        a(f"buffer_store_dword v{MLR}, v124, {S4(rWS)}, s89 offen sc1")
        a(FULL)
        stamp(24)
        a(f"{ln}:")
    h1a()
    if notail:
        a("s_branch L_fin")
    a(f"s_bitcmp1_b32 s{sIDX}, 0")
    a("s_cbranch_scc1 L_tailB")

    WOP = 72
    GA, XV, B2V = 110, 111, 112
    a(f"s_lshr_b32 s15, s{sWAVE}, 2")
    a(f"v_lshrrev_b32 v6, 4, v{vLANE}")
    kperm(4, 5)
    a(f"v_bfe_u32 v5, v{vLANE}, 4, 1")
    a(f"v_lshlrev_b32 v5, 6, v5")
    a(f"v_bfe_u32 v7, v{vLANE}, 2, 2")
    a(f"v_lshl_add_u32 v5, v7, 3, v5")
    a(f"v_lshrrev_b32 v7, 5, v{vLANE}")
    a(f"v_add_u32 v5, v5, v7")
    a(f"v_lshlrev_b32 v5, 8, v5")
    a(f"v_and_b32 v7, 3, v{vLANE}")
    a(f"v_lshl_add_u32 v5, v7, 3, v5")
    a(f"s_lshl_b32 s9, s15, 15")
    a(f"s_and_b32 s11, s{sWAVE}, 3")
    a(f"s_lshl_b32 s10, s11, 6")
    a(f"s_add_u32 s9, s9, s10")
    a(f"v_add_u32 v5, s9, v5")
    for ct in range(2):
        for s in range(4):
            for h in range(2):
                a(f"ds_read_b64_tr_b16 {R(WOP + ct*16 + s*4 + h*2, 2)}, v5 offset:{WT + 8192*h + 512*s + 32*ct}")
    a(f"s_lshl_b32 s9, s{sWAVE}, 9")
    a(f"s_add_u32 s9, s9, {OB}")
    a(f"v_lshl_add_u32 v124, v{vLANE}, 3, s9")
    a(f"v_and_b32 v5, 1, v{vLANE}")
    a(f"v_lshlrev_b32 v125, 8, v5")
    a(f"v_lshl_add_u32 v125, v6, 4, v125")
    a(f"v_add_u32 v125, s9, v125")
    a(f"v_lshlrev_b32 v126, 12, v5")
    a(f"v_lshl_add_u32 v126, v6, 4, v126")
    a(f"v_bfe_u32 v5, v{vLANE}, 1, 1")
    a(f"v_lshl_add_u32 v126, v5, 6, v126")
    a(f"v_cmp_eq_u32 s[94:95], 1, v5")
    a(f"s_lshl_b32 s14, s{sAI}, 1")
    a(f"s_add_u32 s14, s14, s15")
    a(f"s_lshl_b32 s10, s14, 13")
    a(f"s_lshl_b32 s9, s{sXCD}, 9")
    a(f"s_add_u32 s10, s10, s9")
    a(f"s_lshl_b32 s9, s11, 7")
    a(f"s_add_u32 s10, s10, s9")
    a(f"s_add_u32 s73, s10, {XP}")
    a(f"v_lshrrev_b32 v9, 5, v{vLANE}")
    a(f"v_lshlrev_b32 v9, 14, v9")
    a(f"v_and_b32 v10, 31, v{vLANE}")
    a(f"v_lshl_add_u32 v9, v10, 4, v9")
    a(f"s_lshl_b32 s74, s14, 9")
    a(f"s_add_u32 s74, s74, {OF}")
    consumer_ids()
    a(f"v_lshrrev_b32 v7, 3, v{vLANE}")
    a(f"v_and_b32 v8, 7, v{vLANE}")
    a(f"v_lshl_add_u32 v11, v8, 2, v4")
    a(f"v_lshlrev_b32 v114, 2, v11")
    a(f"v_add_u32 v5, {XB}, v114")
    a(f"ds_read_b32 v{GA}, v5 offset:384")
    a(f"ds_read_b32 v{XV}, v5 offset:512")
    a(f"ds_read_b32 v{B2V}, v5 offset:256")
    a(f"ds_read_b32 v115, v5 offset:128")
    a(f"ds_read_b32 v116, v5")
    a(f"ds_read_b32 v117, v5 offset:640")
    moment_addr(132, 4, 15, 0)
    a(f"v_bfe_u32 v5, v{vLANE}, 3, 1")
    a(f"v_cmp_eq_u32 s[96:97], 1, v5" if not stamps else f"v_cmp_eq_u32 s[98:99], 1, v5")
    a(f"s_add_u32 s14, s75, {X1}")
    a(f"v_lshlrev_b32 v113, 13, v7")
    a(f"v_lshl_add_u32 v113, v8, 4, v113")
    for i in range(4):
        a(f"s_add_u32 s{90+i}, s75, {XP + i*65536}")

    def xloads():
        for i in range(4):
            a(f"buffer_load_dwordx4 {R(40 + 4*i)}, v113, {S4(rWS)}, s{90+i} offen sc1")
    if pretouch:
        a(f"s_cmp_lg_u32 s{sWAVE}, 7")
        a("s_cbranch_scc1 L_nopt")
        a(f"s_cmp_ge_u32 s{sAI}, 8")
        a("s_cbranch_scc1 L_nopt")
        xloads()
        a("L_nopt:")
    a("s_barrier")
    pollx(lambda: a(f"buffer_load_dwordx4 {R(60)}, v9, {S4(rWS)}, s74 offen sc1"), lambda: check_regs(range(60, 64)))
    stamp(9)
    a(f"v_perm_b32 v60, v61, v60, s{sSELHI}")
    a(f"v_perm_b32 v61, v63, v62, s{sSELHI}")
    a(f"ds_write_b64 v124, {R(60, 2)}")
    a("s_waitcnt lgkmcnt(0)")
    for s in range(4):
        a(f"ds_read_b128 {R(40 + 4*s)}, v125 offset:{s*64}")
    for s in range(4):
        a(f"s_waitcnt lgkmcnt({3-s})")
        for ct in range(2):
            c = "0" if s == 0 else R(56 + 4 * ct)
            a(f"v_mfma_f32_16x16x32_bf16 {R(56 + 4*ct)}, {R(WOP + ct*16 + s*4)}, {R(40 + 4*s)}, {c}")
    for r in range(4):
        a(f"v_cndmask_b32 v{56+r}, v{56+r}, v{60+r}, s[94:95]")
    for r in range(4):
        tag_trunc(56 + r, 56 + r)
    a(f"s_mov_b32 exec_lo, 0x000f000f\ns_mov_b32 exec_hi, 0x000f000f")
    store_grp("buffer_store_dwordx4", R(56), 126, 73)
    a(FULL)
    stamp(10)
    a(f"s_cmp_ge_u32 s{sAI}, 8")
    a("s_cbranch_scc1 L_fin")
    a(f"s_cmp_lg_u32 s{sWAVE}, 7")
    a("s_cbranch_scc1 L_h4")
    pollx(xloads, lambda: check_regs(range(40, 56)), slp=0)
    stamp(11)
    for k in range(4):
        a(f"v_add_f32 v{40+k}, v{40+k}, v{44+k}\nv_add_f32 v{48+k}, v{48+k}, v{52+k}")
    for k in range(4):
        a(f"v_add_f32 v{40+k}, v{40+k}, v{48+k}")
    red4(40, (8,))
    rnd1(40, 40)
    a(f"v_mul_f32 v40, v{GA}, v40")
    rnd1(40, 40)
    a(f"v_add_f32 v40, v{XV}, v40")
    rnd1(XV, 40)
    a(f"v_or_b32 v40, v{vTAG}, v{XV}")
    a(f"s_mov_b32 exec_lo, 0x00ff00ff\ns_mov_b32 exec_hi, 0x00ff00ff")
    a(f"buffer_store_dword v40, v114, {S4(rWS)}, s14 offen sc1")
    a("s_mov_b64 exec, -1")
    SM = "s[96:97]" if not stamps else "s[98:99]"
    a(f"v_mul_f32 v130, v{XV}, v117")
    a(f"v_cndmask_b32 v118, v{XV}, v130, {SM}")
    a(f"v_cndmask_b32 v119, 1.0, v117, {SM}")
    a(f"v_cndmask_b32 v120, v{XV}, v116, {SM}")
    a(f"v_cndmask_b32 v130, v130, 0, {SM}")
    a(f"v_mul_f32 v128, v118, v119")
    a(f"v_mul_f32 v129, v118, v120")
    a(f"v_mul_f32 v131, v130, v130")
    publish_moments(128, 15)
    stamp(12)
    a("L_h4:")
    srd(rT3, pOUT, 4096)
    a(f"s_mul_i32 s11, s{sWAVE}, {14*8192}")
    a(f"s_add_u32 s11, s11, s75")
    a(f"s_add_u32 s11, s11, {YP}")
    a(f"s_add_u32 s15, s11, {8*8192}")
    a(f"s_lshl_b32 s9, s{sWAVE}, 2")
    a(f"s_add_u32 s9, s9, {FB}")
    a(f"v_lshl_add_u32 v9, v11, 5, s9")
    a(f"v_lshlrev_b32 v8, 5, v11")
    a(f"v_add_u32 v8, {FB}, v8")
    a(f"s_lshr_b32 s10, s75, 1")
    a(f"v_lshlrev_b32 v10, 1, v11")
    for r in range(44, 48):
        a(f"v_mov_b32 v{r}, 0")
    a(f"s_mov_b32 s94, -1\ns_mov_b32 s95, 0xffff")

    def ldH4():
        a(f"buffer_load_dwordx4 {R(40)}, v113, {S4(rWS)}, s11 offen sc1")
        a(f"s_and_saveexec_b64 s[{sEX}:{sEX+1}], s[94:95]")
        a(f"buffer_load_dwordx4 {R(44)}, v113, {S4(rWS)}, s15 offen sc1")

    def ckH4():
        for r in range(44, 48):
            a(f"v_xor_b32 v{r}, v{vTAG}, v{r}")
        a(f"s_mov_b64 exec, s[{sEX}:{sEX+1}]")
        check_regs(range(40, 44))
        a(f"v_or3_b32 v{vBAD}, v{vBAD}, v44, v45")
        a(f"v_or3_b32 v{vBAD}, v{vBAD}, v46, v47")
    a("s_barrier")
    if h4delay:
        a(f"s_sleep {h4delay}")
    pollx(ldH4, ckH4)
    stamp(13)
    for r in range(4):
        a(f"v_add_f32 v{40+r}, v{40+r}, v{44+r}")
    red4(40, (8,))
    a("ds_write_b32 v9, v40")
    a("s_waitcnt lgkmcnt(0)")
    a("s_barrier")
    a(f"s_cmp_lg_u32 s{sWAVE}, 7")
    a("s_cbranch_scc1 L_fin")
    a(f"ds_read_b128 {R(40)}, v8")
    a(f"ds_read_b128 {R(44)}, v8 offset:16")
    a("s_waitcnt lgkmcnt(0)")
    for r in range(4):
        a(f"v_add_f32 v{40+r}, v{40+r}, v{44+r}")
    a("v_add_f32 v40, v40, v41\nv_add_f32 v42, v42, v43\nv_add_f32 v40, v40, v42")
    rnd1(40, 40)
    a(f"v_add_f32 v40, v{B2V}, v40")
    rnd1(40, 40)
    a(f"v_mul_f32 v40, v115, v40")
    rnd1(40, 40)
    a(f"v_add_f32 v40, v{XV}, v40")
    a("v_cvt_pk_bf16_f32 v40, v40, v40")
    a(MASK8)
    a(f"buffer_store_short v40, v10, {S4(rT3)}, s10 offen")
    a(FULL)
    a("s_cmp_lg_u32 s2, 0")
    a("s_cbranch_scc1 L_fin")
    a(f"v_mov_b32 v4, s{sEP}")
    a("v_mov_b32 v5, 0")
    a("s_mov_b64 exec, 1")
    a(f"buffer_store_dword v4, v5, {S4(rWS)}, 0 offen offset:{EPOCH} sc1")
    a("s_mov_b64 exec, -1")
    a("s_branch L_fin")

    a("L_tailB:")
    a(f"s_cmp_ge_u32 s{sBI}, 112")
    a("s_cbranch_scc1 L_fin")
    vm = Vm(a)
    W2R = 136
    W2O = 104
    W1O = 72
    AD = 40
    B1V = 29
    XR, SB, CB = 32, 36, 16
    if w1late:
        tw1 = w1_dma(vm, 0)
    srd(rT2, pW2, 7340032)
    a(f"v_lshrrev_b32 v7, 4, v{vLANE}")
    a(f"v_lshlrev_b32 v8, 14, v7")
    a(f"v_and_b32 v9, 15, v{vLANE}")
    a(f"v_lshl_add_u32 v8, v9, 4, v8")
    a(f"s_lshl_b32 s10, s{sBI}, 16")
    a(f"s_lshl_b32 s11, s{sWAVE}, 8")
    a(f"s_add_u32 s10, s10, s11")
    for e in range(8):
        if e % 2 == 0:
            a(f"s_add_u32 s9, s10, {e*2048}")
        tw2 = vm.issue(f"buffer_load_dwordx4 {R(W2R + e*4)}, v8, {S4(rT2)}, s9 offen offset:{(e % 2)*2048} {nt}")
    a(f"v_lshrrev_b32 v10, 5, v{vLANE}")
    a(f"v_and_b32 v11, 31, v{vLANE}")
    a(f"s_lshl_b32 s12, s{sWAVE}, 9")
    srd(rT1, pB1, 7168)
    kperm(4, 5)
    a(f"v_and_b32 v6, 7, v{vLANE}")
    a(f"v_lshl_add_u32 v5, v6, 2, v4")
    a(f"v_lshlrev_b32 v5, 1, v5")
    a(f"s_lshl_b32 s9, s{sBI}, 6")
    vm.issue(f"buffer_load_ushort v{B1V}, v5, {S4(rT1)}, s9 offen")
    a(f"v_bfe_u32 v8, v{vLANE}, 3, 1")
    a(f"v_lshl_add_u32 v26, v8, 6, v5")
    a(f"s_lshl_b32 s9, s{sWAVE}, 7")
    a(f"s_add_u32 s9, s9, {H1B}")
    a(f"v_add_u32 v26, s9, v26")
    a(f"v_bfe_u32 v5, v{vLANE}, 2, 1")
    a(f"v_lshlrev_b32 v27, 6, v5")
    a(f"v_lshl_add_u32 v27, v7, 4, v27")
    a(f"v_add_u32 v27, s9, v27")
    a(f"v_lshlrev_b32 v25, 10, v7")
    a(f"v_lshl_add_u32 v25, v8, 9, v25")
    a(f"v_lshl_add_u32 v25, v6, 4, v25")
    a(f"s_and_b32 s9, s{sBI}, 3")
    a(f"s_lshl_b32 s89, s9, 7")
    a(f"s_andn2_b32 s10, s{sBI}, 3")
    a(f"s_lshl_b32 s10, s10, 10")
    a(f"s_add_u32 s89, s89, s10")
    a(f"s_add_u32 s89, s89, {HP}")
    a(f"v_and_b32 v5, 1, v{vLANE}")
    a(f"v_lshlrev_b32 v23, 9, v5")
    a(f"v_lshl_add_u32 v23, v7, 4, v23")
    a(f"v_add_u32 v23, {YB}, v23")
    a(f"v_lshlrev_b32 v24, 9, v5")
    a(f"v_lshl_add_u32 v24, v7, 4, v24")
    a(f"s_lshl_b32 s90, s{sBI}, 10")
    a(f"s_lshl_b32 s9, s{sWAVE}, 6")
    a(f"s_add_u32 s90, s90, s9")
    a(f"s_add_u32 s90, s90, {HP}")
    for r in range(32):
        a(f"v_mov_b32 v{AD+r}, 0")
    a(f"v_bfe_u32 v5, v{vLANE}, 2, 2")
    a(f"v_lshl_add_u32 v5, v7, 3, v5")
    a(f"v_lshlrev_b32 v5, 8, v5")
    a(f"v_and_b32 v6, 3, v{vLANE}")
    a(f"v_lshl_add_u32 v5, v6, 3, v5")
    a(f"s_lshl_b32 s9, s{sWAVE}, 5")
    a(f"v_add_u32 v5, s9, v5")
    if w1late:
        vm.wait(tw1)
        a("s_barrier")
    for s in range(8):
        for h in range(2):
            a(f"ds_read_b64_tr_b16 {R(W1O + s*4 + h*2, 2)}, v5 offset:{WT + 8192*s + 1024*h}")
    a(f"v_and_b32 v5, 1, v7")
    a(f"v_lshlrev_b32 v28, 12, v5")
    a(f"v_lshl_add_u32 v28, v9, 5, v28")
    a(f"v_lshl_add_u32 v28, v10, 4, v28")
    a(f"s_lshl_b32 s14, s{sBI}, 13")
    a(f"s_add_u32 s14, s14, s12")
    a(f"s_add_u32 s14, s14, {YP}")

    def ldHP(dst=136):
        a(f"buffer_load_dwordx4 {R(dst)}, v25, {S4(rWS)}, s89 offen sc1")
    a("s_waitcnt vmcnt(0)")
    for d in range(8):
        perm_operand(W2O + d * 4, W2R, d)
    lo(B1V, B1V)
    stamp(9)
    a(f"s_cmp_ge_u32 s{sWAVE}, 2")
    a("s_cbranch_scc1 L_ydone")
    MR = 136
    a(f"v_lshlrev_b32 v4, 4, v{vLANE}")
    a(f"s_and_b32 s9, s{sBI}, 3")
    a(f"s_lshl_b32 s13, s9, 10")
    a(f"s_lshl_b32 s10, s{sWAVE}, 12")
    a(f"s_add_u32 s13, s13, s10")
    a(f"s_add_u32 s13, s13, {X1}")
    a(f"s_add_u32 s15, s13, 8192")
    a(f"s_add_u32 s88, s13, 16384")
    a("s_mov_b32 s93, s13")
    a(f"v_lshrrev_b32 v20, 1, v{vLANE}")
    a(f"v_lshlrev_b32 v20, 7, v20")
    a(f"v_and_b32 v5, 1, v{vLANE}")
    a(f"v_lshl_add_u32 v20, v5, 4, v20")
    a(f"s_add_u32 s91, s10, {XS}")
    a(f"s_add_u32 s92, s10, {XS + 8192}")
    a(f"s_lshl_b32 s10, s{sWAVE}, 9")
    a(f"s_add_u32 s10, s10, {YB}")
    a(f"v_lshl_add_u32 v22, v{vLANE}, 3, s10")

    def ldS():
        a(f"buffer_load_dwordx4 {R(SB)}, v4, {S4(rWS)}, s15 offen sc1")
        a(f"buffer_load_dwordx4 {R(CB)}, v4, {S4(rWS)}, s88 offen sc1")
        a(f"buffer_load_dwordx4 {R(MR)}, v20, {S4(rWS)}, s92 offen sc1")
    pollx(ldS, lambda: check_regs(list(range(SB, SB + 4)) + list(range(CB, CB + 4)) + list(range(MR, MR + 4))))
    LANE_OF = [0, 32, 16, 48, 1, 33]
    red4(MR, (2, 4, 8))
    a(f"v_mul_f32 v{MR}, 0x3a800000, v{MR}")
    for k in range(5):
        a(f"v_readlane_b32 s9, v{MR}, {LANE_OF[k]}")
        a(f"v_mov_b32 v{144+k}, s9")

    def ldH3():
        a(f"buffer_load_dwordx4 {R(XR)}, v4, {S4(rWS)}, s13 offen sc1")
        a(f"buffer_load_dwordx4 {R(MR)}, v20, {S4(rWS)}, s91 offen sc1")
    if h3split:
        pollx(lambda: a(f"buffer_load_dwordx4 {R(MR)}, v20, {S4(rWS)}, s91 offen sc1"), lambda: check_regs(range(MR, MR + 4)), slp=h3slp)
        a(f"buffer_load_dwordx4 {R(XR)}, v4, {S4(rWS)}, s13 offen sc1")
    else:
        pollx(ldH3, lambda: check_regs(list(range(XR, XR + 4)) + list(range(MR, MR + 4))), slp=h3slp)
    stamp(10)
    red4(MR, (2, 4, 8))
    a(f"v_mul_f32 v{MR}, 0x3a800000, v{MR}")
    for k, sr in enumerate((10, 11, 12, 13, 15, 88)):
        a(f"v_readlane_b32 s{sr}, v{MR}, {LANE_OF[k]}")

    def stats_tail(mean, ex2, t, mb, rs):
        a(f"v_fma_f32 v{ex2}, -v{mean}, v{mean}, v{ex2}")
        a(f"v_max_f32 v{ex2}, 0, v{ex2}")
        a(f"v_cvt_pk_bf16_f32 v{t}, v{mean}, v{ex2}")
        hi(ex2, t)
        lo(mb, t)
        a(f"v_add_f32 v{ex2}, 0x3727c5ac, v{ex2}")
        rnd1(ex2, ex2)
        a(f"v_sqrt_f32 v{ex2}, v{ex2}")
        rnd1(ex2, ex2)
        a(f"v_rcp_f32 v{rs}, v{ex2}")
    a("v_mov_b32 v5, s10\nv_mov_b32 v6, s11")
    stats_tail(5, 6, 8, 140, 141)
    a(f"v_fma_f32 v150, -v140, v144, s12")
    a(f"v_mul_f32 v151, v140, v145")
    a(f"v_fma_f32 v151, -2.0, s15, v151")
    a(f"v_fma_f32 v151, v140, v151, s13")
    a(f"v_fma_f32 v152, -v140, v146, s88")
    if h3split:
        pollx(lambda: a(f"buffer_load_dwordx4 {R(XR)}, v4, {S4(rWS)}, s93 offen sc1"), lambda: check_regs(range(XR, XR + 4)), pre_issued=True)
    for k in (0, 2):
        a(f"v_sub_f32 v{XR+k}, v{XR+k}, v140\nv_sub_f32 v{XR+k+1}, v{XR+k+1}, v140")
    for k in (0, 2):
        rnd2(XR + k, XR + k + 1, 8 + k // 2)
    a(f"v_fma_f32 v5, v141, v150, v147")
    a(f"v_mul_f32 v151, v141, v151")
    a(f"v_fma_f32 v151, 2.0, v152, v151")
    a(f"v_fma_f32 v6, v141, v151, v148")
    for k in range(4):
        a(f"v_mul_f32 v{XR+k}, v{XR+k}, v141")
    for k in (0, 2):
        rnd2(XR + k, XR + k + 1, 8 + k // 2)
    stats_tail(5, 6, 10, 142, 143)
    for k in range(4):
        a(f"v_mul_f32 v{XR+k}, v{XR+k}, v{CB+k}")
    for k in (0, 2):
        rnd2(XR + k, XR + k + 1, 8 + k // 2)
    for k in range(4):
        a(f"v_add_f32 v{XR+k}, v{XR+k}, v{SB+k}")
    for k in (0, 2):
        rnd2(XR + k, XR + k + 1, 8 + k // 2)
    for k in range(4):
        a(f"v_sub_f32 v{XR+k}, v{XR+k}, v142")
    for k in (0, 2):
        rnd2(XR + k, XR + k + 1, 8 + k // 2)
    for k in range(4):
        a(f"v_mul_f32 v{XR+k}, v{XR+k}, v143")
    a(f"v_cvt_pk_bf16_f32 v30, v{XR}, v{XR+1}\nv_cvt_pk_bf16_f32 v31, v{XR+2}, v{XR+3}")
    a(f"ds_write_b64 v22, {R(30, 2)}")
    a("s_waitcnt lgkmcnt(0)")
    a("L_ydone:")
    a("s_barrier")
    for s in range(8):
        a(f"ds_read_b128 {R(136 + 4*s)}, v23 offset:{s*64}")
    for s in range(8):
        a(f"s_waitcnt lgkmcnt({7-s})")
        c = "0" if s == 0 else R(32)
        a(f"v_mfma_f32_16x16x32_bf16 {R(32)}, {R(W1O + s*4)}, {R(136 + 4*s)}, {c}")
    for r in range(4):
        tag_trunc(32 + r, 32 + r)
    a(f"s_mov_b32 exec_lo, 0x00030003\ns_mov_b32 exec_hi, 0x00030003")
    store_grp("buffer_store_dwordx4", R(32), 24, 90)
    a(FULL)
    stamp(22)
    pollx(ldHP, lambda: check_regs(range(136, 140)), slp=0)
    stamp(23)
    red4(136, ())
    rnd1(136, 136)
    a(f"v_add_f32 v136, v136, v{B1V}")
    rnd1(136, 136)
    a("v_mul_f32 v137, v136, v136")
    a("v_mul_f32 v137, 0x3d372713, v137")
    a("v_fma_f32 v137, v137, v136, v136")
    a("v_mul_f32 v137, 0xc0135761, v137")
    a("v_exp_f32 v137, v137")
    a("v_add_f32 v137, 1.0, v137")
    a("v_rcp_f32 v137, v137")
    a("v_mul_f32 v136, v136, v137")
    a("v_cvt_pk_bf16_f32 v136, v136, v136")
    a("ds_write_b16 v26, v136")
    a("s_waitcnt lgkmcnt(0)")
    for d in range(8):
        m16 = (0x11 << (d & 3)) << (8 * (d >> 2))
        m32 = m16 | (m16 << 16)
        a(f"s_mov_b32 exec_lo, {m32:#x}\ns_mov_b32 exec_hi, {m32:#x}")
        a(f"ds_read_b128 {R(AD + 4*d)}, v27")
    a("s_mov_b64 exec, -1")
    for d in range(8):
        a(f"s_waitcnt lgkmcnt({7-d})")
        c = "0" if d == 0 else R(136)
        a(f"v_mfma_f32_16x16x32_bf16 {R(136)}, {R(AD + 4*d)}, {R(W2O + 4*d)}, {c}")
    for r in range(4):
        tag_trunc(136 + r, 136 + r)
    a(f"buffer_store_dwordx4 {R(136)}, v28, {S4(rWS)}, s14 offen sc1")
    stamp(11)

    a("L_fin:")
    if stamps and dbgstamps:
        stamp(15)
        a(f"s_cmp_lg_u32 s2, {dbgstamps - 1}")
        a("s_cbranch_scc1 L_end")
        a("s_load_dwordx2 s[10:11], s[0:1], 104")
        a("s_waitcnt lgkmcnt(0)")
        srd(rT0, 10, 256)
        slots = [1, 2, 3, 4, 20, 6, 8, 24, 9, 10, 11, 12, 22, 13, 15, 21]
        a("v_mov_b32 v4, 200")
        for i, k in enumerate(slots):
            a(f"s_mov_b32 s9, {4*i}")
            a(f"v_writelane_b32 v4, s9, {k}")
        a(f"v_readlane_b32 s9, v{vST}, 0")
        a(f"v_subrev_u32 v5, s9, v{vST}")
        a(f"v_cmp_ne_u32 vcc, 0, v{vST}")
        a("s_mov_b64 exec, vcc")
        a(f"buffer_atomic_umax v5, v4, {S4(rT0)}, 0 offen sc1")
    elif stamps:
        stamp(15)
        a(f"s_mul_i32 s9, s2, {NWAVES}")
        a(f"s_add_u32 s9, s9, s{sW12}")
        a(f"s_lshl_b32 s9, s9, 7")
        a(f"s_add_u32 s9, s9, {STAMP}")
        a(f"v_lshlrev_b32 v4, 2, v{vLANE}")
        a("s_mov_b32 exec_hi, 0")
        a(f"buffer_store_dword v{vST}, v4, {S4(rWS)}, s9 offen")
    a("L_end:")
    a("s_endpgm")
    a('.section .rodata,"a"')
    a(".p2align 6")
    a(f".amdhsa_kernel {NAME}_kernel")
    for l in (".amdhsa_next_free_vgpr 168", ".amdhsa_next_free_sgpr 102", ".amdhsa_accum_offset 168",
              ".amdhsa_group_segment_fixed_size 0", ".amdhsa_kernarg_size 120", ".amdhsa_user_sgpr_count 2",
              ".amdhsa_user_sgpr_kernarg_segment_ptr 1", ".amdhsa_system_sgpr_workgroup_id_x 1",
              ".amdhsa_float_denorm_mode_32 3"):
        a(l)
    a(".end_amdhsa_kernel")
    return pre + a.finish()


if __name__ == "__main__":
    out = sys.argv[1] if len(sys.argv) > 1 else f"cdna_kernels/{NAME}.s"
    kw = {}
    for arg in sys.argv[2:]:
        k, v = arg.split("=")
        kw[k] = eval(v)
    open(out, "w").write(gen(**kw))
```

```python
import re

TRANS = ("v_exp_f32", "v_log_f32", "v_rcp_f32", "v_rsq_f32", "v_sqrt_f32", "v_sin_f32", "v_cos_f32")


def regs_of(tok):
    tok = tok.strip()
    tok = re.sub(r"^-", "", tok)
    m = re.match(r"^abs\((.*)\)$", tok)
    if m:
        tok = m.group(1)
    m = re.match(r"^\|(.*)\|$", tok)
    if m:
        tok = m.group(1)
    m = re.match(r"^([vsa])\[(\d+):(\d+)\]$", tok)
    if m:
        return {(m.group(1), i) for i in range(int(m.group(2)), int(m.group(3)) + 1)}
    m = re.match(r"^([vsa])(\d+)$", tok)
    if m:
        return {(m.group(1), int(m.group(2)))}
    if tok in ("vcc", "vcc_lo", "vcc_hi"):
        return {("vcc", 0)}
    if tok in ("exec", "exec_lo", "exec_hi"):
        return {("exec", 0)}
    if tok == "m0":
        return {("m0", 0)}
    return set()


class Ins:
    def __init__(self, text):
        self.text = text
        t = text.split(";")[0].strip()
        self.label = t.endswith(":")
        self.directive = t.startswith(".") or t == ""
        self.op = ""
        self.dst = set()
        self.src = set()
        self.kind = "other"
        self.states = 1
        self.dpp = False
        self.srcC = set()
        self.srcAB = set()
        self.store_data = set()
        if self.label or self.directive:
            self.states = 0
            return
        parts = t.split(None, 1)
        op = parts[0]
        self.op = op
        rest = parts[1] if len(parts) > 1 else ""
        rest = re.sub(r"(quad_perm|op_sel|op_sel_hi|neg_lo|neg_hi):\[([^\]]*)\]", lambda m: m.group(1) + ":" + m.group(2).replace(",", "_"), rest)
        ops = [o.strip() for o in rest.split(",")] if rest else []
        mods = ""
        if ops:
            sp = ops[-1].split(None, 1)
            ops[-1] = sp[0]
            mods = sp[1] if len(sp) > 1 else ""
        self.mods = mods
        R = [regs_of(o) for o in ops]
        base = re.sub(r"_(e32|e64|dpp|sdwa)$", "", op)
        self.base = base
        if op == "s_nop":
            self.states = int(ops[0], 0) + 1
            self.kind = "salu"
        elif op.startswith("v_mfma"):
            self.kind = "mfma"
            self.dst = R[0]
            self.srcAB = R[1] | R[2]
            self.srcC = R[3]
            self.src = self.srcAB | self.srcC
            self.passes = 8 if "32x32" in op else 4
        elif op.startswith("v_"):
            self.kind = "valu"
            self.dpp = op.endswith("_dpp") or "row_" in mods or "quad_perm" in mods
            if base.startswith("v_permlane") and "swap" in base:
                self.dst = R[0] | R[1]
                self.src = R[0] | R[1]
            elif base in ("v_add_co_u32", "v_sub_co_u32", "v_addc_co_u32", "v_subb_co_u32"):
                self.dst = R[0] | R[1]
                self.src = set().union(*R[2:])
            else:
                self.dst = R[0]
                self.src = set().union(*R[1:]) if len(R) > 1 else set()
                if base in ("v_fmac_f32", "v_writelane_b32", "v_dot2c_f32_bf16") or self.dpp:
                    self.src |= R[0]
        elif op.startswith("buffer_") or op.startswith("global_"):
            self.kind = "vmem"
            is_lds = re.search(r"\blds\b", mods) is not None or "_lds_" in op
            if "load" in op and not is_lds:
                self.dst = R[0]
                self.src = set().union(*R[1:])
            else:
                self.src = set().union(*R)
                if is_lds:
                    self.src |= {("m0", 0)}
                    self.ldsdma = True
                if "store" in op and ("x4" in op or "x3" in op):
                    self.store_data = R[0] if op.startswith("buffer_") else R[1]
        elif op.startswith("ds_"):
            self.kind = "ds"
            if "_rtn_" in op or op.startswith("ds_read") or op.startswith("ds_bpermute") or op.startswith("ds_swizzle"):
                self.dst = R[0]
                self.src = set().union(*R[1:])
            else:
                self.src = set().union(*R)
        elif op.startswith("s_"):
            self.kind = "salu"
            if op.startswith("s_cmp") or op.startswith("s_cbranch") or op in (
                    "s_branch", "s_barrier", "s_waitcnt", "s_endpgm", "s_sleep", "s_setprio") or op.startswith("s_bitcmp"):
                self.src = set().union(*R) if R else set()
            else:
                self.dst = R[0] if R else set()
                self.src = set().union(*R[1:]) if len(R) > 1 else set()
                if "saveexec" in op:
                    self.dst |= {("exec", 0)}


def need_between(p, c):
    n = 0
    vd = {r for r in p.dst if r[0] in "va"}
    sd = {r for r in p.dst if r[0] in ("s", "vcc")}
    if p.kind == "valu":
        if c.kind == "mfma" and vd & c.src:
            n = max(n, 2)
        if c.kind == "valu":
            if c.dpp and vd & c.src:
                n = max(n, 2)
            if c.base.startswith("v_permlane") and vd & c.src:
                n = max(n, 2)
            if c.base in ("v_readlane_b32", "v_readfirstlane_b32") and vd & c.src:
                n = max(n, 1)
            if p.base in TRANS and c.base not in TRANS and vd & c.src:
                n = max(n, 1)
            if sd & c.src:
                n = max(n, 4 if c.base in ("v_readlane_b32", "v_writelane_b32") else 2)
            if ("exec", 0) in p.dst:
                n = max(n, 5)
        if c.kind == "vmem" and sd & c.src:
            n = max(n, 5)
        if c.kind == "mfma" and ("exec", 0) in p.dst:
            n = max(n, 4)
        if c.kind == "salu" and sd & c.src:
            n = max(n, 1)
    if p.kind == "mfma":
        big = {4: 8, 8: 12}[p.passes]
        if c.kind == "mfma":
            if p.dst & c.srcAB:
                n = max(n, big)
            if p.dst & c.srcC and not (p.dst == c.srcC and p.passes == c.passes):
                n = max(n, {4: 6, 8: 10}[p.passes])
            if p.dst & c.dst and not (p.dst == c.dst and p.dst == c.srcC):
                n = max(n, big)
        elif c.kind in ("valu", "vmem", "ds"):
            if p.dst & (c.src | c.dst):
                n = max(n, big)
        if c.kind == "valu" and p.srcC & c.dst:
            n = max(n, {4: 3, 8: 7}[p.passes])
    if p.kind == "salu" and ("m0", 0) in p.dst and getattr(c, "ldsdma", False):
        n = max(n, 1)
    if p.store_data and p.store_data & c.dst:
        n = max(n, 2)
    return n


class Asm:
    def __init__(self):
        self.lines = []
        self.nlab = 0

    def __call__(self, text):
        for t in text.split("\n"):
            t = t.strip()
            if t:
                self.lines.append(t)

    def label(self, stem="L"):
        self.nlab += 1
        return f"{stem}_{self.nlab}"

    def finish(self):
        ins = [Ins(t) for t in self.lines]
        changed = True
        while changed:
            changed = False
            k = 0
            labpos = preds = None
            while k < len(ins):
                if labpos is None:
                    labpos = {i.text.split(";")[0].strip()[:-1]: n for n, i in enumerate(ins) if i.label}
                    preds = {}
                    for n, i in enumerate(ins):
                        if i.op == "s_branch" or i.op.startswith("s_cbranch"):
                            tgt = i.text.split(";")[0].split()[1]
                            preds.setdefault(labpos[tgt], []).append(n)
                c = ins[k]
                if c.states == 0 or c.kind == "salu" and not c.src:
                    k += 1
                    continue
                deficit = 0
                stack = [(k - 1, 0, False)]
                seen = set()
                while stack:
                    j, dist, via = stack.pop()
                    while j >= 0 and dist < 14:
                        if (j, dist, via) in seen:
                            break
                        seen.add((j, dist, via))
                        p = ins[j]
                        if p.label:
                            for b in preds.get(j, []):
                                stack.append((b, dist, True))
                            j -= 1
                            continue
                        if p.states == 0:
                            j -= 1
                            continue
                        if p.op in ("s_branch", "s_endpgm") and not via:
                            break
                        via = False
                        nb = need_between(p, c)
                        if nb > dist:
                            deficit = max(deficit, nb - dist)
                        dist += p.states
                        j -= 1
                if deficit:
                    ins.insert(k, Ins(f"s_nop {deficit - 1}"))
                    labpos = None
                    changed = True
                    k += 1
                k += 1
        res = []
        for i in ins:
            res.append(i.text if (i.label or i.directive) else "    " + i.text)
        return "\n".join(res) + "\n"


def _reached_by_branch(j, seen, preds):
    for lab, bl in preds.items():
        if j in bl and any(s[0] == lab for s in seen):
            return True
    return False


class Vm:
    def __init__(self, a):
        self.a = a
        self.n = 0

    def issue(self, text):
        self.a(text)
        self.n += 1
        return self.n

    def wait(self, tok):
        k = self.n - tok
        assert 0 <= k
        self.a(f"s_waitcnt vmcnt({min(k, 63)})")
```

```python
import sys
from asmlib import Asm, Vm

NAME = "adaLN_cond__gqa_block_cached__mixer_channel_mlp__decode"

EPOCH = 0
ML = 0x1000
X1 = 0x9000
MODP = 0x140000
QP = 0x30000
MA = 0xB0000
HP = 0xE0000
XP = 0x100000
DUAL = 0x90000
OF = 0x500000
QFN = 0x80000
XS = 0x88000
XH = 0x180000
XID = 0x78000
OP = 0x200000
YP = 0x300000
STAMP = 0x800000
WS_BYTES = 0x10000000
WT = 0
OC = 0x10000
QB = 0x18400
HB = 0x18C00
ZB = 0x18E00
MX = 0x19000
LX = 0x19100
OB = 0x10000
ST = 0x19600
YB = 0x19800
RED = 0x1A800
H1B = 0x1B000
QFL = 0x1B400
XB = 0x1B480
FB = 0x1B800
LDS_BYTES = 0x1BC00
TAGM = 0x3ff
T4 = 3
NWAVES = 12

sWAVE, sL, sXCD, sIDX, sAI, sTAG = 3, 4, 5, 6, 7, 8
pX, pK, pV, pWQ, pWO, pW1, pB1, pW2, pB2, pC, pWM, pOUT, pWS = 16, 18, 20, 22, 24, 28, 30, 32, 34, 36, 38, 40, 42
rK, rV, rWS, rT0, rT1, rT2, rT3 = 44, 48, 52, 56, 60, 64, 68
sDU = 72
sSELLO, sSELHI, sHI, sLOG2E, sSCALE, sSPIN, sEP, sTM = 76, 77, 78, 79, 80, 81, 82, 83
sEX = 84
sBI = 86
sKV = 87
sW12 = 100
sLOC = 101
vLANE, vOK, vOV = 1, 2, 3
vBAD, vTAG, vST = 12, 13, 14


def gen(stamps=False, dbgstamps=False, codewarm=True, spin=200000, sleep=0, nt="nt", w1_early=True,
        thr=4, thr2=4, thrq=0, thrb=12, thrv=6, notail=False, quiet=0, fill=0, mbgate=0, kgate=0, bpre=0, w2delay=0, wpre=0, xmask=0, xk=1, xv=2, ofstr=1, xstr=33, onest=1, w2x2=0, pipe='', spread=0, ackst=0, pslp=2, w1pre=4, ovl=1, w1late=1, h3slp=None, h3split=0, fullrec=0, ptall='mqfdoxy', wq_dyn=1, fine=1, qpol='sc1', ptpol='sc1', agate=1, xdelay=20, skip='', hpt=0, prew=0, b2stage=1, h4delay=0, pretouch=0, noloc=0, noma=0, bdelay=0, adelay=0, nomodfin=0, pure=0, klin=0, vearly=0, fake=0, attdma=True, thrw=3, cslp=1, w1pol=None):
    a = Asm()
    hdr = open(f"cdna_kernels/{NAME}.s.ref").read().split("\n")
    head = [l for l in hdr if l.startswith(";") and "@launch" not in l]
    pre = "\n".join(head) + f"\n; @launch grid=(256,1,1) block=({64*NWAVES},1,1) lds={LDS_BYTES}\n"
    a('.amdgcn_target "amdgcn-amd-amdhsa--gfx950"')
    a(".text")
    a(f".globl {NAME}_kernel")
    a(".p2align 8")
    a(f".type {NAME}_kernel,@function")
    a(f"{NAME}_kernel:")

    def srd(d, p, n):
        a(f"s_mov_b32 s{d}, s{p}\ns_mov_b32 s{d+1}, s{p+1}\ns_mov_b32 s{d+2}, {n}\ns_mov_b32 s{d+3}, 0x20000")

    def R(b, n=4):
        return f"v[{b}:{b+n-1}]"

    def S4(b):
        return f"s[{b}:{b+3}]"

    def stamp(k):
        if stamps == 1 or (stamps == 2 and k in (8, 15)):
            a(f"s_memrealtime s[96:97]\ns_waitcnt lgkmcnt(0)\nv_writelane_b32 v{vST}, s96, {k}")

    def lo(d, p):
        a(f"v_lshlrev_b32 v{d}, 16, v{p}")

    def hi(d, p):
        a(f"v_and_b32 v{d}, s{sHI}, v{p}")

    def rnd1(d, s):
        a(f"v_cvt_pk_bf16_f32 v{d}, v{s}, v{s}")
        lo(d, d)

    def rnd2(x, y, t):
        a(f"v_cvt_pk_bf16_f32 v{t}, v{x}, v{y}")
        lo(x, t)
        hi(y, t)

    def tag_round(d, s):
        a(f"v_add_u32 v{d}, 0x200, v{s}")
        a(f"v_bfi_b32 v{d}, s{sTM}, v{vTAG}, v{d}")

    def tag_trunc(d, s):
        a(f"v_bfi_b32 v{d}, s{sTM}, v{vTAG}, v{s}")

    def check_regs(regs, first=True):
        for r in regs:
            a(f"v_xor_b32 v{r}, v{vTAG}, v{r}")
        regs = list(regs)
        if first:
            a(f"v_or_b32 v{vBAD}, v{regs[0]}, v{regs[1]}")
            regs = regs[2:]
        for i in range(0, len(regs), 2):
            a(f"v_or3_b32 v{vBAD}, v{vBAD}, v{regs[i]}, v{regs[i+1]}")

    def dpp_add(d, s_rot, s1, ror):
        a(f"v_add_f32_dpp v{d}, v{s_rot}, v{s1} row_ror:{ror} row_mask:0xf bank_mask:0xf")

    def dpp_max(d, s_rot, s1, ror):
        a(f"v_max_f32_dpp v{d}, v{s_rot}, v{s1} row_ror:{ror} row_mask:0xf bank_mask:0xf")

    def allred(x, t, op, which):
        for w in which:
            a(f"v_mov_b32 v{t}, v{x}")
            a(f"v_permlane{w}_swap_b32 v{x}, v{t}")
            a(f"{op} v{x}, v{x}, v{t}")

    def red4(b, rors):
        a(f"v_permlane32_swap_b32 v{b}, v{b+1}")
        a(f"v_permlane32_swap_b32 v{b+2}, v{b+3}")
        a(f"v_add_f32 v{b}, v{b}, v{b+1}")
        a(f"v_add_f32 v{b+2}, v{b+2}, v{b+3}")
        a(f"v_permlane16_swap_b32 v{b}, v{b+2}")
        a(f"v_add_f32 v{b}, v{b}, v{b+2}")
        for r in rors:
            dpp_add(b, b, b, r)

    def perm_operand(dst, blk, d):
        sel = sSELHI if d & 1 else sSELLO
        for k in range(4):
            a(f"v_perm_b32 v{dst+k}, v{blk + (2*k+1)*4 + (d >> 1)}, v{blk + 2*k*4 + (d >> 1)}, s{sel}")

    def ln_stats(su, sq, t, mb, rs):
        a(f"v_mul_f32 v{su}, 0x3a800000, v{su}")
        a(f"v_mul_f32 v{sq}, 0x3a800000, v{sq}")
        a(f"v_fma_f32 v{sq}, -v{su}, v{su}, v{sq}")
        a(f"v_max_f32 v{sq}, 0, v{sq}")
        a(f"v_cvt_pk_bf16_f32 v{t}, v{su}, v{sq}")
        lo(mb, t)
        hi(sq, t)
        a(f"v_add_f32 v{sq}, 0x3727c5ac, v{sq}")
        rnd1(sq, sq)
        a(f"v_sqrt_f32 v{sq}, v{sq}")
        rnd1(sq, sq)
        a(f"v_rcp_f32 v{rs}, v{sq}")

    def ln_apply(x, y, t, mb, rs, last_round=True):
        a(f"v_sub_f32 v{x}, v{x}, v{mb}")
        a(f"v_sub_f32 v{y}, v{y}, v{mb}")
        rnd2(x, y, t)
        a(f"v_mul_f32 v{x}, v{x}, v{rs}")
        a(f"v_mul_f32 v{y}, v{y}, v{rs}")
        if last_round:
            rnd2(x, y, t)

    def check2(pairs_regs):
        first = True
        for b in pairs_regs:
            a(f"v_xor_b32 v{b+1}, s{sEP}, v{b+1}")
            a(f"v_xor_b32 v{b+3}, s{sEP}, v{b+3}")
            if first:
                a(f"v_or_b32 v{vBAD}, v{b+1}, v{b+3}")
                first = False
            else:
                a(f"v_or3_b32 v{vBAD}, v{vBAD}, v{b+1}, v{b+3}")

    def pollx(loads, check, f2=False, dual=False, pre_issued=False, between=None, slp=None, name=None):
        if name and name in skip:
            a("s_waitcnt vmcnt(0)")
            a("s_mov_b64 exec, -1")
            return
        lp, dn, ck = a.label("Lpoll"), a.label("Ldone"), a.label("Lchk")
        a(f"s_mov_b32 s{sSPIN}, {0 if (fake and slp in (cslp, 16)) else spin | 7}")
        if pre_issued:
            a(f"s_branch {ck}")
        inst = stamps == 1 and name in ("a", "b", "c", "x")
        if inst:
            a("s_mov_b32 s94, 0\ns_mov_b32 s95, 0")
        a(f"{lp}:")
        if inst:
            a("s_memrealtime s[90:91]")
        loads()
        if pre_issued != "landed":
            a(f"{ck}:")
        a("s_waitcnt vmcnt(0)")
        if pre_issued == "landed":
            a(f"{ck}:")
        if inst:
            a("s_memrealtime s[92:93]\ns_waitcnt lgkmcnt(0)")
            a("s_sub_u32 s92, s92, s90\ns_max_u32 s94, s94, s92\ns_add_u32 s95, s95, 1")
        check()
        if not f2:
            a(f"v_and_b32 v{vBAD}, s{sTM}, v{vBAD}")
        a(f"v_cmp_ne_u32 vcc, 0, v{vBAD}")
        a(f"s_cbranch_vccz {dn}")
        a("s_mov_b64 exec, vcc")
        sl = sleep if slp is None else slp
        if sl:
            a(f"s_sleep {sl}")
        a(f"s_sub_u32 s{sSPIN}, s{sSPIN}, 1")
        a(f"s_cbranch_scc0 {lp}")
        a(f"{dn}:")
        a("s_mov_b64 exec, -1")
        if inst:
            k = {"a": 26, "b": 28, "c": 28, "x": 26}[name]
            a(f"v_writelane_b32 v{vST}, s94, {k}\nv_writelane_b32 v{vST}, s95, {k+1}")

    def pollp(load, nl, final, sets, sm=94, init=None):
        lp, dn = a.label("Lpp"), a.label("Lppd")
        M = f"s[{sm}:{sm+1}]"
        n = 4 * nl
        a(f"s_mov_b64 {M}, exec")
        a(f"s_mov_b32 s{sSPIN}, {spin}")
        load(sets[0])
        if pslp:
            a(f"s_sleep {pslp}")
        load(sets[1])
        a(f"{lp}:")
        for k in range(3):
            if pslp:
                a(f"s_sleep {pslp}")
            load(sets[(k + 2) % 3])
            a(f"s_waitcnt vmcnt({2*nl})")
            b = sets[k]
            check_regs(range(b, b + n))
            a(f"v_and_b32 v{vBAD}, s{sTM}, v{vBAD}")
            a(f"v_cmp_eq_u32 vcc, 0, v{vBAD}")
            a("s_mov_b64 exec, vcc")
            for i in range(n):
                a(f"v_mov_b32 v{final[i]}, v{b+i}")
            a(f"s_andn2_b64 {M}, {M}, vcc")
            a(f"s_cbranch_scc0 {dn}")
            a(f"s_mov_b64 exec, {M}")
        a(f"s_sub_u32 s{sSPIN}, s{sSPIN}, 1")
        a(f"s_cbranch_scc0 {lp}")
        a(f"{dn}:")
        a("s_mov_b64 exec, -1")

    def dual_exchange(store_wt, loads, check):
        l1, ok, dn = a.label("Lfx"), a.label("Lfxok"), a.label("Lfxdn")
        a(f"s_mov_b32 s{sDU}, {DUAL}")
        a(f"s_mov_b32 s{sSPIN}, 24")
        a(f"{l1}:")
        loads()
        a("s_waitcnt vmcnt(0)")
        check()
        a(f"v_and_b32 v{vBAD}, s{sTM}, v{vBAD}")
        a(f"v_cmp_ne_u32 vcc, 0, v{vBAD}")
        a(f"s_cbranch_vccz {ok}")
        a("s_mov_b64 exec, vcc")
        a(f"s_sub_u32 s{sSPIN}, s{sSPIN}, 1")
        a(f"s_cbranch_scc0 {l1}")
        a(f"s_mov_b64 s[{sEX}:{sEX+1}], exec")
        store_wt()
        a(f"s_mov_b64 exec, s[{sEX}:{sEX+1}]")
        pollx(loads, check, dual=True)
        a(f"s_branch {dn}")
        a(f"{ok}:")
        store_wt()
        a("s_mov_b64 exec, -1")
        a(f"{dn}:")

    def store_grp(op, data, vaddr, soff):
        l1, l2 = a.label("Lsg"), a.label("Lsgd")
        a(f"s_cmp_eq_u32 s{sLOC}, 1")
        a(f"s_cbranch_scc1 {l1}")
        a(f"{op} {data}, v{vaddr}, {S4(rWS)}, s{soff} offen sc1")
        a(f"s_branch {l2}")
        a(f"{l1}:")
        a(f"{op} {data}, v{vaddr}, {S4(rWS)}, s{soff} offen")
        a(f"{l2}:")

    def prewrite(t, nl_log2, bshift, soff):
        if not prew:
            return
        for k in range(4):
            a(f"v_xor_b32 v{t+k}, 1, v{vTAG}")
        a(f"v_lshrrev_b32 v{t+4}, {nl_log2}, v{vLANE}")
        a(f"v_lshlrev_b32 v{t+4}, {bshift-4}, v{t+4}")
        a(f"v_and_or_b32 v{t+4}, v{vLANE}, {(1 << nl_log2) - 1}, v{t+4}")
        a(f"v_lshlrev_b32 v{t+4}, 4, v{t+4}")
        n = 2 << nl_log2
        a(f"s_mov_b64 exec, {(1 << n) - 1:#x}" if n < 32 else "s_mov_b32 exec_hi, 0")
        a(f"buffer_store_dwordx4 {R(t)}, v{t+4}, {S4(rWS)}, s{soff} offen")
        a("s_mov_b64 exec, -1")

    def store_dual(op, data, vaddr, soff, off=0):
        a(f"s_add_u32 s9, s{soff}, {DUAL}")
        a(f"{op} {data}, v{vaddr}, {S4(rWS)}, s9 offen offset:{off}")
        a(f"{op} {data}, v{vaddr}, {S4(rWS)}, s{soff} offen offset:{off} sc1")

    def untr(b):
        a(f"v_mov_b32 v{b+1}, v{b}")
        a(f"v_permlane32_swap_b32 v{b}, v{b+1}")
        a(f"v_mov_b32 v{b+2}, v{b}")
        a(f"v_mov_b32 v{b+3}, v{b+1}")
        a(f"v_permlane16_swap_b32 v{b}, v{b+2}")
        a(f"v_permlane16_swap_b32 v{b+1}, v{b+3}")

    def kperm(d, t):
        a(f"v_bfe_u32 v{d}, v{vLANE}, 4, 1")
        a(f"v_lshrrev_b32 v{t}, 5, v{vLANE}")
        a(f"v_lshl_or_b32 v{d}, v{d}, 1, v{t}")

    xrec = 128 * (xstr // 2)
    MASK8 = "s_mov_b32 exec_lo, 0x00ff00ff\ns_mov_b32 exec_hi, 0x00ff00ff"
    FULL = "s_mov_b64 exec, -1"

    a("s_cmp_ge_u32 s2, 256")
    a("s_cbranch_scc1 L_end")
    a("s_load_dwordx16 s[16:31], s[0:1], 0")
    a("s_load_dwordx8 s[32:39], s[0:1], 64")
    a("s_load_dwordx2 s[40:41], s[0:1], 96")
    a("s_load_dwordx2 s[42:43], s[0:1], 112")
    if stamps:
        a(f"v_mov_b32 v{vST}, 0")
        a("s_memrealtime s[98:99]")
    a(f"v_lshrrev_b32 v4, 6, v0")
    a(f"v_and_b32 v{vLANE}, 63, v0")
    a(f"v_readfirstlane_b32 s{sW12}, v4")
    a(f"s_and_b32 s{sXCD}, s2, 7")
    a(f"s_lshr_b32 s{sIDX}, s2, 3")
    a(f"s_lshl_b32 s{sL}, s{sXCD}, 5")
    a(f"s_add_u32 s{sL}, s{sL}, s{sIDX}")
    a(f"s_lshr_b32 s{sAI}, s{sIDX}, 1")
    a(f"s_lshr_b32 s9, s{sAI}, 2")
    a(f"s_lshl_b32 s9, s9, 3")
    a(f"s_add_u32 s9, s9, s{sXCD}")
    a(f"s_lshl_b32 s{sBI}, s9, 2")
    a(f"s_and_b32 s9, s{sAI}, 3")
    a(f"s_add_u32 s{sBI}, s{sBI}, s9")
    a(f"s_mov_b32 s{sSELLO}, 0x05040100")
    a(f"s_mov_b32 s{sSELHI}, 0x07060302")
    a(f"s_mov_b32 s{sHI}, 0xffff0000")
    a(f"s_mov_b32 s{sLOG2E}, 0x3fb8aa3b")
    a(f"s_mov_b32 s{sSCALE}, 0x3db504f3")
    a(f"s_mov_b32 s{sTM}, {TAGM}")
    a(f"v_lshrrev_b32 v7, 3, v{vLANE}")
    a(f"s_sub_u32 s{sWAVE}, s{sW12}, 4")
    a(f"s_cmp_lg_u32 s{sW12}, 0")
    a("s_cbranch_scc1 L_noinit")
    a(f"v_lshlrev_b32 v4, 2, v{vLANE}")
    a(f"v_add_u32 v4, {ZB}, v4")
    a("v_mov_b32 v5, 0")
    a("ds_write_b32 v4, v5")
    a(f"ds_write_b32 v4, v5 offset:{QFL - ZB - 128}")
    a("L_noinit:")

    def kargs():
        a("s_waitcnt lgkmcnt(0)")
        if stamps:
            a(f"v_writelane_b32 v{vST}, s98, 0")

    def load_epoch():
        a(f"s_load_dword s{sEP}, s[{pWS}:{pWS+1}], {EPOCH}")

    def get_tag():
        a("s_waitcnt lgkmcnt(0)")
        a(f"s_add_u32 s{sEP}, s{sEP}, 1")
        a(f"s_and_b32 s{sTAG}, s{sEP}, {TAGM}")
        a(f"v_mov_b32 v{vTAG}, s{sTAG}")

    def wait_q():
        lp, dn = a.label("Lwq"), a.label("Lwqd")
        a(f"v_mov_b32 v4, {QFL}")
        a(f"s_mov_b32 s{sSPIN}, {spin*20}")
        a(f"{lp}:")
        a("ds_read_b32 v5, v4")
        a("s_waitcnt lgkmcnt(0)")
        a("v_cmp_ne_u32 vcc, 0, v5")
        a(f"s_cbranch_vccnz {dn}")
        a("s_sleep 1")
        a(f"s_sub_u32 s{sSPIN}, s{sSPIN}, 1")
        a(f"s_cbranch_scc0 {lp}")
        a(f"{dn}:")

    def wait_n(T):
        if T:
            a(f"s_waitcnt vmcnt({T-1})")

    def mod_tile(ngrp, srow0, scol, T, after_issue, before_issue):
        ACC, PT, W = 32, 64, 72
        vm = Vm(a)
        a(f"s_mul_i32 s10, s{srow0}, 12288")
        a(f"s_add_u32 s10, s10, s{scol}")
        a(f"s_mov_b32 s9, {8*12288}")
        a(f"v_mul_lo_u32 v8, v7, s9")
        a(f"v_and_b32 v9, 7, v{vLANE}")
        a(f"v_lshl_add_u32 v8, v9, 4, v8")
        a(f"v_bfe_u32 v10, v{vLANE}, 2, 1")
        a(f"v_lshlrev_b32 v10, 11, v10")
        a(f"v_lshl_add_u32 v10, v7, 4, v10")
        a(f"s_lshl_b32 s11, s{srow0}, 1")
        before_issue()
        srd(rT0, pWM, 12582912)
        srd(rT1, pC, 4096)
        for q4 in range(ngrp):
            tc = vm.issue(f"buffer_load_dwordx4 {R(ACC + q4*4)}, v10, {S4(rT1)}, s11 offen offset:{q4*128}")
        toks = {}

        def grp(q4):
            for e in range(8):
                a(f"s_add_u32 s9, s10, {(64*q4+e)*12288}")
                wait_n(T)
                toks[q4] = vm.issue(f"buffer_load_dwordx4 {R(W + (q4 % 3)*32 + e*4)}, v8, {S4(rT0)}, s9 offen {nt}")
        for q4 in range(min(ngrp, 3)):
            grp(q4)
        after_issue()
        if pure == 1:
            if ngrp == 4:
                vm.wait(toks[0])
                grp(3)
            a("s_waitcnt vmcnt(0)")
            a("s_branch L_fin")
        vm.wait(tc)
        a(f"s_mov_b32 s9, 0xbfb8aa3b")
        for i in range(4 * ngrp):
            lo(4, ACC + i)
            hi(5, ACC + i)
            a(f"v_mul_f32 v6, s9, v4\nv_mul_f32 v11, s9, v5")
            a(f"v_exp_f32 v6, v6\nv_exp_f32 v11, v11")
            a(f"v_add_f32 v6, 1.0, v6\nv_add_f32 v11, 1.0, v11")
            a(f"v_rcp_f32 v6, v6\nv_rcp_f32 v11, v11")
            a(f"v_mul_f32 v4, v4, v6\nv_mul_f32 v5, v5, v11")
            a(f"v_cvt_pk_bf16_f32 v{16+i}, v4, v5")
        a(f"v_and_b32 v11, 3, v{vLANE}")
        a(f"v_bfe_u32 v10, v{vLANE}, 4, 1")
        a(f"v_lshl_add_u32 v9, v10, 2, v11")
        a(f"v_lshrrev_b32 v10, 5, v{vLANE}")
        a(f"v_lshl_add_u32 v9, v9, 1, v10")
        a(f"v_bfe_u32 v10, v{vLANE}, 2, 1")
        for q4 in range(ngrp):
            vm.wait(toks[q4])
            for d in range(8):
                t = PT + (d & 1) * 4
                perm_operand(t, W + (q4 % 3) * 32, d)
                c = "0" if q4 == 0 else R(ACC + d * 4)
                a(f"v_mfma_f32_16x16x32_bf16 {R(ACC + d*4)}, {R(t)}, {R(16 + q4*4)}, {c}")
            if q4 + 3 < ngrp:
                grp(q4 + 3)
        O = 72
        for d in range(4):
            for r in range(4):
                a(f"v_permlane32_swap_b32 v{ACC + d*4 + r}, v{ACC + (d+4)*4 + r}")
        for d in range(4):
            for r in range(4):
                dpp_add(O + r * 4 + d, ACC + (d + 4) * 4 + r, ACC + d * 4 + r, 8)
        for r in range(1, 4):
            a(f"v_cmp_eq_u32 vcc, {r}, v11")
            for d in range(4):
                a(f"v_cndmask_b32 v{O+d}, v{O+d}, v{O + r*4 + d}, vcc")

    def tag4(d):
        a(f"v_add_u32 v{d}, {(T4+1)//2}, v{d}")
        a(f"v_bfi_b32 v{d}, {T4}, v{vTAG}, v{d}")

    def check4(regs):
        regs = list(regs)
        for r in regs:
            a(f"v_xor_b32 v{r}, v15, v{r}")
        a(f"v_or_b32 v{vBAD}, v{regs[0]}, v{regs[1]}")
        for i in range(2, len(regs), 2):
            a(f"v_or3_b32 v{vBAD}, v{vBAD}, v{regs[i]}, v{regs[i+1]}")
        a(f"v_and_b32 v{vBAD}, {T4}, v{vBAD}")
        a(f"v_or_b32_dpp v{vBAD}, v{vBAD}, v{vBAD} quad_perm:[1,0,3,2] row_mask:0xf bank_mask:0xf")
        a(f"v_or_b32_dpp v{vBAD}, v{vBAD}, v{vBAD} quad_perm:[2,3,0,1] row_mask:0xf bank_mask:0xf")
        a(f"v_or_b32_dpp v{vBAD}, v{vBAD}, v{vBAD} row_half_mirror row_mask:0xf bank_mask:0xf")

    def lds_wait(addr, val, cmp="eq"):
        lp, dn = a.label("Lw"), a.label("Lwd")
        a(f"v_mov_b32 v4, {addr}")
        a(f"s_mov_b32 s{sSPIN}, {spin*20}")
        a(f"{lp}:")
        a("ds_read_b32 v5, v4")
        a("s_waitcnt lgkmcnt(0)")
        a(f"v_cmp_{cmp}_u32 vcc, {val}, v5")
        a(f"s_cbranch_vccnz {dn}")
        a("s_sleep 1")
        a(f"s_sub_u32 s{sSPIN}, s{sSPIN}, 1")
        a(f"s_cbranch_scc0 {lp}")
        a(f"{dn}:")

    def get_loc():
        lp, dn = a.label("Lw"), a.label("Lwd")
        a(f"v_mov_b32 v4, {QFL+8}")
        a(f"s_mov_b32 s{sSPIN}, {spin*20}")
        a(f"{lp}:")
        a("ds_read_b32 v5, v4")
        a("s_waitcnt lgkmcnt(0)")
        a(f"v_cmp_ne_u32 vcc, 0, v5")
        a(f"s_cbranch_vccnz {dn}")
        a("s_sleep 1")
        a(f"s_sub_u32 s{sSPIN}, s{sSPIN}, 1")
        a(f"s_cbranch_scc0 {lp}")
        a(f"{dn}:")
        a(f"v_readfirstlane_b32 s{sLOC}, v5")

    def publish_moments(M, soff, with_quad=None):
        red4(M, ())
        a(f"v_add_f32_dpp v{M}, v{M}, v{M} quad_perm:[1,0,3,2] row_mask:0xf bank_mask:0xf")
        a(f"v_add_f32_dpp v{M}, v{M}, v{M} quad_perm:[2,3,0,1] row_mask:0xf bank_mask:0xf")
        a(f"v_add_f32_dpp v{M}, v{M}, v{M} row_half_mirror row_mask:0xf bank_mask:0xf")
        tag_round(M, M)
        untr(M)
        if with_quad is not None:
            a("s_mov_b64 exec, 0xff")
            for k in range(4):
                a(f"v_mov_b32 v{M+k}, v{with_quad+k}")
            a("s_mov_b64 exec, 0x101ff")
            a(f"buffer_store_dwordx4 {R(M)}, v{M+4}, {S4(rWS)}, s{soff} offen sc1")
            a(FULL)
            return
        a("s_mov_b64 exec, 0x101")
        a(f"buffer_store_dwordx4 {R(M)}, v{M+4}, {S4(rWS)}, s{soff} offen sc1")
        a(FULL)

    def moment_addr(d, kp, soff, kind):
        a(f"v_lshlrev_b32 v{d}, 1, v{vLANE}")
        a(f"s_add_u32 s{soff}, s75, {XS + kind*8192}")

    def hopB1():
        a(f"v_and_b32 v15, {T4}, v{vTAG}")
        a(f"v_lshrrev_b32 v7, 3, v{vLANE}")
        a(f"v_and_b32 v8, 7, v{vLANE}")
        a(f"v_lshlrev_b32 v9, 15, v7")
        a(f"v_lshl_add_u32 v9, v8, 4, v9")
        a(f"s_lshl_b32 s10, s{sL}, 7")
        a(f"s_add_u32 s11, s10, {QFN}")
        a(f"s_add_u32 s10, s10, {QP}")
        a(f"v_lshlrev_b32 v10, 4, v{vLANE}")
        get_loc()
        lds_wait(QFL + 4, 2)
        if bdelay:
            a(f"s_sleep {bdelay}")
        pollx(lambda: a(f"buffer_load_dwordx4 {R(32)}, v9, {S4(rWS)}, s10 offen sc1"), lambda: check4(range(32, 36)),
              f2=True, slp=cslp, name='b')
        red4(32, (8,))
        a("v_cvt_pk_bf16_f32 v32, v32, v32")
        a(f"v_bfi_b32 v32, s{sHI}, v32, v{vTAG}")
        untr(32)
        a("s_mov_b64 exec, 0xff")
        store_grp("buffer_store_dwordx4", R(32), 10, 11)
        a(FULL)
        a(f"v_mov_b32 v4, {QFL+4}\nv_mov_b32 v5, 3")
        a("ds_write_b32 v4, v5")
        a("s_waitcnt lgkmcnt(0)")
        stamp(14)
        a("s_branch L_fin")

    def hopB2():
        a(f"v_lshlrev_b32 v9, 4, v{vLANE}")
        a(f"s_lshl_b32 s10, s{sXCD}, 12")
        a(f"s_add_u32 s10, s10, {QFN}")
        lds_wait(QFL + 4, 3)

        def ld():
            for i in range(4):
                a(f"buffer_load_dwordx4 {R(32 + i*4)}, v9, {S4(rWS)}, s10 offen offset:{i*1024} sc1")
        pollx(ld, lambda: check_regs(range(32, 48)), slp=cslp, name='c')
        for e in range(8):
            a(f"v_perm_b32 v{48+e}, v{33+2*e}, v{32+2*e}, s{sSELHI}")
        a(f"v_and_b32 v9, 15, v{vLANE}")
        a(f"v_lshlrev_b32 v9, 4, v9")
        a(f"v_bfe_u32 v10, v{vLANE}, 4, 1")
        a(f"v_lshl_add_u32 v9, v10, 3, v9")
        a(f"v_lshrrev_b32 v10, 5, v{vLANE}")
        a(f"v_lshl_add_u32 v9, v10, 8, v9")
        a(f"v_add_u32 v9, {QB}, v9")
        for i in range(4):
            a(f"ds_write_b64 v9, {R(48 + 2*i, 2)} offset:{i*512}")
        a(f"v_mov_b32 v4, {QFL}\nv_mov_b32 v5, 2")
        a("s_waitcnt lgkmcnt(0)")
        a("ds_write_b32 v4, v5")
        a("s_waitcnt lgkmcnt(0)")
        stamp(4)
        a("s_branch L_fin")

    def hopB(half):
        a(f"v_and_b32 v15, {T4}, v{vTAG}")
        a(f"v_lshlrev_b32 v9, 4, v{vLANE}")
        a(f"s_lshl_b32 s10, s{sXCD}, 12")
        a(f"s_add_u32 s10, s10, {QP + half*2048}")
        for i in range(bdelay):
            a("s_sleep 37")

        def ld():
            for p in range(8):
                a(f"s_add_u32 s9, s10, {p*32768}")
                for i in range(2):
                    a(f"buffer_load_dwordx4 {R(32 + p*8 + i*4)}, v9, {S4(rWS)}, s9 offen offset:{i*1024} sc1")
        pollx(ld, lambda: check4(range(32, 96)), f2=True, slp=cslp)
        for st in (32, 16, 8):
            for e in range(st):
                a(f"v_add_f32 v{32+e}, v{32+e}, v{32+st+e}")
        for e in range(4):
            a(f"v_cvt_pk_bf16_f32 v{40+e}, v{32+2*e}, v{33+2*e}")
        a(f"v_lshlrev_b32 v9, 3, v{vLANE}")
        a(f"v_add_u32 v9, {QB + half*1024}, v9")
        for i in range(2):
            a(f"ds_write_b64 v9, {R(40 + 2*i, 2)} offset:{i*512}")
        a(f"v_mov_b32 v4, {QFL}\nv_mov_b32 v5, 1")
        a("s_waitcnt lgkmcnt(0)")
        a("s_mov_b64 exec, 1")
        a("ds_add_u32 v4, v5")
        a(FULL)
        a("s_waitcnt lgkmcnt(0)")
        stamp(4)
        a("s_branch L_fin")

    def f2_pack(src, dst):
        for k in range(4):
            a(f"v_mov_b32 v{dst+2*k}, v{src+k}")
            a(f"v_mov_b32 v{dst+2*k+1}, s{sEP}")

    def consumer_ids():
        a(f"s_lshr_b32 s12, s{sAI}, 2")
        a(f"s_and_b32 s13, s{sAI}, 3")
        a(f"s_lshl_b32 s13, s13, 5")
        a(f"s_lshl_b32 s9, s{sXCD}, 7")
        a(f"s_add_u32 s13, s13, s9")
        a(f"s_lshl_b32 s75, s12, 12")
        a(f"s_lshl_b32 s9, s13, 2")
        a(f"s_add_u32 s75, s75, s9")

    def w1_dma(vm, T, lo_=0, hi_=8, va=8, vb=9, sa=10, sb=11):
        srd(rT0, pW1, 7340032)
        a(f"v_lshrrev_b32 v{va}, 4, v{vLANE}")
        a(f"v_mul_u32_u24 v{va}, 7168, v{va}")
        a(f"v_and_b32 v{vb}, 15, v{vLANE}")
        a(f"v_lshl_add_u32 v{va}, v{vb}, 4, v{va}")
        a(f"s_and_b32 s{sa}, s{sBI}, 3")
        a(f"s_lshl_b32 s{sa}, s{sa}, 3")
        a(f"s_add_u32 s{sa}, s{sa}, s{sWAVE}")
        a(f"s_mul_i32 s{sa}, s{sa}, {32*7168}")
        a(f"s_lshr_b32 s{sb}, s{sBI}, 2")
        a(f"s_lshl_b32 s{sb}, s{sb}, 8")
        a(f"s_add_u32 s{sa}, s{sa}, s{sb}")
        a(f"s_lshl_b32 s{sb}, s{sWAVE}, 13")
        t = None
        for i in range(lo_, hi_):
            a(f"s_add_u32 m0, s{sb}, {WT + i*1024}")
            a(f"s_add_u32 s9, s{sa}, {4*i*7168}")
            wait_n(T)
            t = vm.issue(f"buffer_load_dwordx4 v{va}, {S4(rT0)}, s9 offen {nt} lds")
        return t

    a(f"s_cmp_eq_u32 s{sW12}, 1")
    a("s_cbranch_scc1 L_moda")
    a(f"s_cmp_ge_u32 s{sW12}, 4")
    a("s_cbranch_scc1 L_att")
    a(f"s_cmp_eq_u32 s{sW12}, 0")
    a("s_cbranch_scc1 L_chain")
    a(f"s_cmp_eq_u32 s{sW12}, 2")
    a("s_cbranch_scc1 L_red")

    if codewarm:
        lw = a.label("Lnowarm")
        a(f"s_cmp_lt_u32 s{sIDX}, 30")
        a(f"s_cbranch_scc1 {lw}")
        a("s_getpc_b64 s[10:11]")
        a("L_pc0:")
        a(f"v_lshlrev_b32 v8, 4, v{vLANE}")
        a(f"s_mov_b32 s9, 0")
        lp = a.label("Lwarm")
        a(f"{lp}:")
        a(f"v_min_u32 v9, L_end-L_pc0-16, v8")
        a(f"global_load_dwordx4 {R(64)}, v9, s[10:11]")
        a(f"v_add_u32 v8, 1024, v8")
        a(f"s_add_u32 s9, s9, 1024")
        a(f"s_cmp_lt_u32 s9, L_end-L_pc0")
        a(f"s_cbranch_scc1 {lp}")
        a(f"{lw}:")
    a(f"v_lshrrev_b32 v11, 4, v{vLANE}")
    a(f"s_mov_b32 s9, {8*12288}")
    a(f"v_mul_lo_u32 v8, v11, s9")
    a(f"v_and_b32 v9, 15, v{vLANE}")
    a(f"v_lshl_add_u32 v8, v9, 4, v8")
    a(f"v_and_b32 v6, 1, v{vLANE}")
    a(f"v_lshlrev_b32 v10, 11, v6")
    a(f"v_lshl_add_u32 v10, v11, 4, v10")
    a(f"s_and_b32 s12, s{sIDX}, 7")
    a(f"s_lshr_b32 s14, s{sIDX}, 3")
    a(f"s_mul_i32 s10, s12, {128*12288}")
    a(f"s_lshl_b32 s14, s14, 3")
    a(f"s_add_u32 s14, s14, s{sXCD}")
    a(f"s_lshl_b32 s9, s14, 8")
    a(f"s_add_u32 s10, s10, s9")
    a(f"s_add_u32 s10, s10, 4096")
    a(f"s_lshl_b32 s11, s12, 8")
    a(f"s_lshl_b32 s15, s12, 15")
    a(f"s_lshl_b32 s9, s14, 9")
    a(f"s_add_u32 s15, s15, s9")
    a(f"s_add_u32 s15, s15, {MODP}")
    kargs()
    load_epoch()
    srd(rWS, pWS, WS_BYTES)
    srd(rT0, pWM, 12582912)
    srd(rT1, pC, 4096)
    a("s_barrier")
    if mbgate:
        lds_wait(QFL + 4, mbgate, "le")
    BO, ACC, PTm, Wm = 16, 32, 64, 72
    vm = Vm(a)
    for blk in range(4):
        tc = vm.issue(f"buffer_load_dwordx4 {R(BO + blk*4)}, v10, {S4(rT1)}, s11 offen offset:{blk*64}")
    toks = {}

    def mblk(blk):
        for e in range(8):
            a(f"s_add_u32 s9, s10, {(32*blk+e)*12288}")
            wait_n(thrb)
            toks[blk] = vm.issue(f"buffer_load_dwordx4 {R(Wm + (blk % 3)*32 + e*4)}, v8, {S4(rT0)}, s9 offen {nt}")
    mblk(0)
    mblk(1)
    mblk(2)
    get_tag()
    vm.wait(tc)
    a(f"s_mov_b32 s13, 0xbfb8aa3b")
    for blk in range(4):
        for i in range(4 * blk, 4 * blk + 4):
            lo(4, BO + i)
            hi(5, BO + i)
            a(f"v_mul_f32 v2, s13, v4\nv_mul_f32 v3, s13, v5")
            a(f"v_exp_f32 v2, v2\nv_exp_f32 v3, v3")
            a(f"v_add_f32 v2, 1.0, v2\nv_add_f32 v3, 1.0, v3")
            a(f"v_rcp_f32 v2, v2\nv_rcp_f32 v3, v3")
            a(f"v_mul_f32 v4, v4, v2\nv_mul_f32 v5, v5, v3")
            a(f"v_cvt_pk_bf16_f32 v{BO+i}, v4, v5")
        vm.wait(toks[blk])
        for d in range(8):
            t = PTm + (d & 1) * 4
            perm_operand(t, Wm + (blk % 3) * 32, d)
            c = "0" if blk == 0 else R(ACC + d * 4)
            a(f"v_mfma_f32_16x16x32_bf16 {R(ACC + d*4)}, {R(t)}, {R(BO + blk*4)}, {c}")
        if blk + 3 < 4:
            mblk(blk + 3)
    a(f"v_bfe_u32 v9, v{vLANE}, 1, 1")
    a(f"v_bfe_u32 v10, v{vLANE}, 2, 2")
    a("v_cmp_eq_u32 vcc, 1, v9")
    for i in range(16):
        a(f"v_cndmask_b32 v{ACC+i}, v{ACC+i}, v{ACC+16+i}, vcc")
    for r in range(1, 4):
        a(f"v_cmp_eq_u32 vcc, {r}, v10")
        for k in range(4):
            a(f"v_cndmask_b32 v{ACC+4*k}, v{ACC+4*k}, v{ACC+4*k+r}, vcc")
    for k in range(4):
        tag_round(16 + k, ACC + 4 * k)
    a(f"v_lshl_add_u32 v10, v11, 2, v10")
    a(f"v_lshl_add_u32 v9, v10, 1, v9")
    a(f"v_lshlrev_b32 v9, 4, v9")
    a(f"v_lshl_add_u32 v9, v6, 14, v9")
    get_loc()
    store_grp("buffer_store_dwordx4", R(16), 9, 15)
    stamp(16)
    a(f"s_bitcmp1_b32 s{sIDX}, 0")
    a("s_cbranch_scc1 L_fin")
    a(f"s_cmp_ge_u32 s{sAI}, 8")
    a("s_cbranch_scc1 L_fin")
    GA, XV, B2V = 32, 48, 49
    lds_wait(QFL, 2)
    consumer_ids()
    srd(rT0, pX, 4096)
    srd(rT1, pB2, 2048)
    kperm(4, 5)
    a(f"v_and_b32 v8, 7, v{vLANE}")
    a(f"v_lshl_add_u32 v11, v8, 2, v4")
    a(f"v_lshlrev_b32 v5, 1, v11")
    a(f"s_lshr_b32 s9, s75, 1")
    a(f"buffer_load_ushort v{XV}, v5, {S4(rT0)}, s9 offen")
    a(f"s_lshl_b32 s9, s13, 1")
    a(f"buffer_load_ushort v{B2V}, v5, {S4(rT1)}, s9 offen")
    a(f"v_lshlrev_b32 v10, 15, v7")
    a(f"v_lshl_add_u32 v10, v8, 4, v10")
    a(f"s_lshl_b32 s14, s12, 14")
    a(f"s_lshl_b32 s9, s13, 2")
    a(f"s_add_u32 s14, s14, s9")

    def gloads():
        for k in range(4):
            a(f"s_add_u32 s9, s14, {MODP + k*4096}")
            a(f"buffer_load_dwordx4 {R(GA + 4*k)}, v10, {S4(rWS)}, s9 offen sc1")
    pollx(gloads, lambda: check_regs(range(GA, GA + 16)), slp=16, name='m')
    for k in range(4):
        red4(GA + 4 * k, (8,))
    rnd2(GA, GA + 12, 5)
    rnd2(GA + 4, GA + 8, 5)
    a(f"v_add_f32 v{GA+8}, 1.0, v{GA+8}")
    rnd1(GA + 8, GA + 8)
    a(f"v_or_b32 v{GA+4}, v{vTAG}, v{GA+4}\nv_or_b32 v{GA+8}, v{vTAG}, v{GA+8}")
    a(f"v_lshlrev_b32 v9, 2, v11")
    a(f"s_add_u32 s9, s75, {X1 + 8192}")
    a(f"s_add_u32 s10, s75, {X1 + 16384}")
    a(f"v_mov_b32 v60, v{GA+4}\nv_mov_b32 v64, v{GA+8}")
    untr(60)
    untr(64)
    a(f"v_lshlrev_b32 v68, 4, v{vLANE}")
    a("s_mov_b64 exec, 0xff")
    a(f"buffer_store_dwordx4 {R(60)}, v68, {S4(rWS)}, s9 offen sc1")
    a(f"buffer_store_dwordx4 {R(64)}, v68, {S4(rWS)}, s10 offen sc1")
    a(FULL)
    lo(XV, XV)
    lo(B2V, B2V)
    a(f"v_add_u32 v5, {XB}, v9")
    a(f"ds_write_b32 v5, v{GA+12} offset:128")
    a(f"ds_write_b32 v5, v{B2V} offset:256")
    a(f"ds_write_b32 v5, v{GA} offset:384")
    a(f"ds_write_b32 v5, v{XV} offset:512")
    a(f"v_xor_b32 v{GA+4}, v{vTAG}, v{GA+4}\nv_xor_b32 v{GA+8}, v{vTAG}, v{GA+8}")
    a(f"ds_write_b32 v5, v{GA+4}")
    a(f"ds_write_b32 v5, v{GA+8} offset:640")
    moment_addr(56, 4, 10, 1)
    a(f"v_mov_b32 v52, v{GA+8}")
    a(f"v_mul_f32 v53, v{GA+8}, v{GA+8}")
    a(f"v_mul_f32 v54, v{GA+8}, v{GA+4}")
    a(f"v_mov_b32 v55, v{GA+4}")
    a("s_mov_b32 exec_lo, 0xff00ff00\ns_mov_b32 exec_hi, 0xff00ff00")
    a(f"v_mul_f32 v52, v{GA+4}, v{GA+4}")
    a("v_mov_b32 v53, 0\nv_mov_b32 v54, 0\nv_mov_b32 v55, 0")
    a(FULL)
    publish_moments(52, 10)
    a("s_waitcnt lgkmcnt(0)")
    a("s_branch L_fin")

    a("L_moda:")
    a("s_setprio 3")
    a(f"s_lshr_b32 s12, s{sIDX}, 2")
    a(f"s_lshl_b32 s13, s12, 7")
    a(f"s_bfe_u32 s14, s{sIDX}, 0x10001")
    a(f"s_and_b32 s15, s{sIDX}, 1")
    a(f"s_lshl_b32 s88, s14, 11")
    a(f"s_lshl_b32 s9, s{sXCD}, 8")
    a(f"s_add_u32 s88, s88, s9")
    a(f"s_lshl_b32 s9, s15, 7")
    a(f"s_add_u32 s88, s88, s9")

    def after_a():
        a("s_barrier")
        load_epoch()
        srd(rWS, pWS, WS_BYTES)
        get_tag()
        a(f"s_lshl_b32 s13, s{sXCD}, 14")
        a(f"s_lshl_b32 s9, s12, 11")
        a(f"s_add_u32 s13, s13, s9")
        a(f"s_lshl_b32 s9, s14, 10")
        a(f"s_add_u32 s13, s13, s9")
        a(f"s_lshl_b32 s9, s15, 8")
        a(f"s_add_u32 s13, s13, s9")
        a(f"s_add_u32 s13, s13, {MA}")
        prewrite(64, 4, 9, 13)
    mod_tile(2, 13, 88, 0, after_a, kargs)
    for d in range(4):
        tag4(72 + d)
    a(f"v_lshlrev_b32 v9, 4, v9")
    a(f"v_lshl_add_u32 v9, v10, 9, v9")
    a(MASK8)
    a(f"buffer_store_dwordx4 {R(72)}, v9, {S4(rWS)}, s13 offen")
    a(FULL)
    a(f"v_mov_b32 v4, {QFL+12}\nv_mov_b32 v5, 1")
    a("ds_write_b32 v4, v5")
    stamp(1)
    a("s_getreg_b32 s88, hwreg(HW_REG_XCC_ID)")
    a("s_lshl_b32 s88, s88, 12")
    if xdelay:
        a(f"s_sleep {xdelay}")
    a(f"v_and_b32 v8, 31, v{vLANE}")
    a(f"v_lshlrev_b32 v8, 7, v8")
    a(f"s_lshl_b32 s10, s{sXCD}, 12")
    a(f"s_add_u32 s10, s10, {XID}")
    pollx(lambda: a(f"buffer_load_dwordx4 {R(32)}, v8, {S4(rWS)}, s10 offen sc1"), lambda: check_regs(range(32, 36)), name='x')
    if 'x' in skip:
        a("v_mov_b32 v32, s88")
    a("v_cmp_ne_u32 vcc, s88, v32")
    a("s_cmp_eq_u64 vcc, 0")
    a(f"s_cselect_b32 s{sLOC}, {2 if noloc else 1}, 2")
    a(f"v_mov_b32 v4, {QFL+8}\nv_mov_b32 v5, s{sLOC}")
    a("ds_write_b32 v4, v5")
    stamp(25)
    a(f"s_cmp_eq_u32 s{sLOC}, 1")
    a("s_cbranch_scc1 L_maok")
    a(MASK8)
    a(f"buffer_store_dwordx4 {R(72)}, v9, {S4(rWS)}, s13 offen sc1")
    a(FULL)
    a("L_maok:")
    if b2stage:
        hopB2()
    else:
        lds_wait(QFL + 4, 2)
        hopB(0)

    a("L_red:")
    kargs()
    srd(rWS, pWS, WS_BYTES)
    load_epoch()
    a("s_barrier")
    a("s_setprio 3")
    vm = Vm(a)
    srd(rT1, pX, 4096)
    a(f"v_lshrrev_b32 v10, 5, v{vLANE}")
    a(f"v_and_b32 v11, 31, v{vLANE}")
    a(f"v_lshlrev_b32 v9, 11, v10")
    a(f"v_lshl_add_u32 v9, v11, 4, v9")
    for q in range(4):
        vm.issue(f"buffer_load_dwordx4 {R(72 + q*4)}, v9, {S4(rT1)}, 0 offen offset:{q*512}")
    a(f"v_lshlrev_b32 v9, 11, v10")
    a(f"v_lshl_add_u32 v9, v11, 3, v9")
    a(f"s_lshl_b32 s11, s{sXCD}, 8")
    tx = vm.issue(f"buffer_load_dwordx2 {R(88, 2)}, v9, {S4(rT1)}, s11 offen")
    a("s_getreg_b32 s88, hwreg(HW_REG_XCC_ID)")
    a("s_lshl_b32 s88, s88, 12")
    a(f"v_lshlrev_b32 v4, 4, v{vLANE}")
    a(f"s_lshl_b32 s9, s{sL}, 7")
    a(f"s_add_u32 s9, s9, {XID}")
    get_tag()
    a(f"v_or_b32 v96, s88, v{vTAG}")
    a("v_mov_b32 v97, v96\nv_mov_b32 v98, v96\nv_mov_b32 v99, v96")
    a("s_mov_b64 exec, 0xff")
    if 'X' not in skip:
        a(f"buffer_store_dwordx4 {R(96)}, v4, {S4(rWS)}, s9 offen sc1")
    a(FULL)
    a(f"s_add_u32 s9, s9, {QFN - XID}")
    prewrite(100, 2, 6, 9)
    if pure == 1:
        a("s_branch L_fin")
    def touch(n, lo_bits, hi_shift, base):
        a(f"v_lshrrev_b32 v101, {lo_bits}, v{vLANE}")
        a(f"v_lshlrev_b32 v101, {hi_shift - 7}, v101")
        a(f"v_and_or_b32 v101, v{vLANE}, {(1 << lo_bits) - 1}, v101")
        a(f"v_lshlrev_b32 v101, 7, v101")
        a(f"s_add_u32 s9, s9, {base}")
        if n < 64:
            a(f"s_mov_b64 exec, {(1 << n) - 1:#x}" if n < 32 else "s_mov_b32 exec_hi, 0")
        a(f"buffer_load_dword v100, v101, {S4(rWS)}, s9 offen")
        if n < 64:
            a(FULL)
    if 'm' in ptall:
        a(f"s_lshl_b32 s9, s{sXCD}, 14\ns_lshl_b32 s10, s{sAI}, 10\ns_add_u32 s9, s9, s10")
        a(f"s_and_b32 s10, s{sIDX}, 1\ns_lshl_b32 s10, s10, 8\ns_add_u32 s9, s9, s10")
        touch(4, 1, 9, MA)
    if 'q' in ptall:
        a(f"s_lshl_b32 s9, s{sXCD}, 15\ns_lshl_b32 s10, s{sIDX}, 9\ns_add_u32 s9, s9, s10")
        touch(8, 2, 14, QP)
    if 'f' in ptall:
        for base in (QFN, OF, ML):
            a(f"s_mul_i32 s9, s{sL}, {128 * (ofstr if base == OF else 1)}")
            touch(1, 0, 7, base)
    if 'd' in ptall:
        a(f"s_and_b32 s9, s{sIDX}, 7\ns_lshl_b32 s9, s9, 15")
        a(f"s_lshr_b32 s10, s{sIDX}, 3\ns_lshl_b32 s10, s10, 12\ns_add_u32 s9, s9, s10")
        a(f"s_lshl_b32 s10, s{sXCD}, 9\ns_add_u32 s9, s9, s10")
        touch(8, 2, 14, MODP)
    if 'o' in ptall:
        a(f"s_lshl_b32 s9, s{sXCD}, 17\ns_lshl_b32 s10, s{sIDX}, 9\ns_add_u32 s9, s9, s10")
        touch(32, 2, 14, OP)
    a(f"s_bitcmp1_b32 s{sIDX}, 0")
    a("s_cbranch_scc1 L_tB")
    if 'x' in ptall:
        a(f"s_lshl_b32 s9, s{sAI}, 13\ns_lshl_b32 s10, s{sXCD}, 9\ns_add_u32 s9, s9, s10")
        touch(8, 2, 12, XP)
    a(f"s_cmp_ge_u32 s{sBI}, 112")
    a("s_cbranch_scc1 L_tD")
    if 'y' in ptall:
        a(f"s_lshl_b32 s9, s{sBI}, 13")
        touch(64, 6, 13, YP)
    if 'x' in ptall:
        a(f"s_cmp_ge_u32 s{sAI}, 8")
        a("s_cbranch_scc1 L_tD")
        consumer_ids()
        a("s_mov_b32 s9, s75")
        touch(2, 0, 13, X1 + 8192)
        a("s_mov_b32 s9, s75")
        touch(1, 0, 13, XS + 8192)
        a(f"s_mul_i32 s9, s75, {xstr}")
        touch(1, 0, 7, XH)
        a(f"s_mul_i32 s9, s75, {xstr}")
        touch(1, 0, 7, XH + xrec)
    a("s_branch L_tD")
    a("L_tB:")
    a(f"s_cmp_ge_u32 s{sBI}, 112")
    a("s_cbranch_scc1 L_tD")
    if 'x' in ptall:
        a(f"s_lshl_b32 s9, s{sBI}, 10")
        touch(8, 3, 10, HP)
    a("L_tD:")
    nmin = ('X' not in skip) + ('m' in ptall) + ('q' in ptall) + 3 * ('f' in ptall) + ('d' in ptall) + ('o' in ptall)
    a(f"s_waitcnt vmcnt({nmin})")
    a("v_mov_b32 v4, 0\nv_mov_b32 v5, 0")
    for i in range(16):
        lo(6, 72 + i)
        hi(8, 72 + i)
        a(f"v_add_f32 v4, v4, v6\nv_fmac_f32 v5, v6, v6")
        a(f"v_add_f32 v4, v4, v8\nv_fmac_f32 v5, v8, v8")
    for r in (1, 2, 4, 8):
        dpp_add(4, 4, 4, r)
        dpp_add(5, 5, 5, r)
    allred(4, 6, "v_add_f32", (16,))
    allred(5, 6, "v_add_f32", (16,))
    ln_stats(4, 5, 6, 8, 9)
    for i in range(2):
        lo(24 + 2 * i, 88 + i)
        hi(25 + 2 * i, 88 + i)
        ln_apply(24 + 2 * i, 25 + 2 * i, 6, 8, 9)
    a(f"v_and_b32 v15, {T4}, v{vTAG}")
    a(f"v_lshlrev_b32 v9, 4, v{vLANE}")
    a(f"s_lshl_b32 s10, s{sXCD}, 14")
    a(f"s_add_u32 s10, s10, {MA}")

    if agate:
        lds_wait(QFL + 12, 1)
    if adelay:
        a(f"s_sleep {adelay}")

    def ldA():
        for p in range(8):
            if p % 2 == 0:
                a(f"s_add_u32 s9, s10, {p*2048}")
            for wh in range(2):
                a(f"buffer_load_dwordx4 {R(32 + p*8 + wh*4)}, v9, {S4(rWS)}, s9 offen offset:{(p % 2)*2048 + wh*1024} sc1")
    pollx(ldA, lambda: check4(range(32, 96)), f2=True, slp=cslp, name='a')
    stamp(2)
    for st in (32, 16, 8):
        for e in range(st):
            a(f"v_add_f32 v{32+e}, v{32+e}, v{32+st+e}")
    for i in range(2):
        s0, c0, l0 = 32 + 2 * i, 36 + 2 * i, 24 + 2 * i
        rnd2(s0, s0 + 1, 6)
        rnd2(c0, c0 + 1, 6)
        a(f"v_add_f32 v{c0}, 1.0, v{c0}\nv_add_f32 v{c0+1}, 1.0, v{c0+1}")
        rnd2(c0, c0 + 1, 6)
        a(f"v_mul_f32 v{c0}, v{c0}, v{l0}\nv_mul_f32 v{c0+1}, v{c0+1}, v{l0+1}")
        rnd2(c0, c0 + 1, 6)
        a(f"v_add_f32 v{c0}, v{c0}, v{s0}\nv_add_f32 v{c0+1}, v{c0+1}, v{s0+1}")
        a(f"v_cvt_pk_bf16_f32 v{40+i}, v{c0}, v{c0+1}")
    a(f"v_lshlrev_b32 v9, 3, v{vLANE}")
    a(f"v_add_u32 v9, {HB}, v9")
    a(f"ds_write_b64 v9, {R(40, 2)}")
    a(f"v_mov_b32 v4, {QFL+4}\nv_mov_b32 v5, 1")
    a("s_waitcnt lgkmcnt(0)")
    a("ds_write_b32 v4, v5")
    stamp(17)
    if b2stage:
        hopB1()
    else:
        lds_wait(QFL + 4, 2)
        hopB(1)

    a("L_chain:")
    a("s_setprio 3")
    W = 40
    a(f"v_lshrrev_b32 v11, 4, v{vLANE}")
    a(f"v_lshlrev_b32 v8, 16, v11")
    a(f"v_and_b32 v15, 15, v{vLANE}")
    a(f"v_lshl_add_u32 v8, v15, 4, v8")
    a(f"s_lshl_b32 s10, s{sXCD}, 20")
    a(f"s_lshl_b32 s11, s{sIDX}, 8")
    a(f"s_add_u32 s10, s10, s11")
    kargs()
    srd(rT0, pWQ, 8388608)
    srd(rWS, pWS, WS_BYTES)
    load_epoch()
    a("s_barrier")
    for blk in range(4):
        for e in range(8):
            a(f"s_add_u32 s9, s10, {(32*blk+e)*8192}")
            wait_n(thrq)
            a(f"buffer_load_dwordx4 {R(W + blk*32 + e*4)}, v8, {S4(rT0)}, s9 offen {nt}")
    if kgate:
        a(f"s_waitcnt vmcnt({kgate})")
        a(f"v_mov_b32 v4, {QFL+20}\nv_mov_b32 v5, 1")
        a("ds_write_b32 v4, v5")
    if stamps == 1:
        a("s_waitcnt vmcnt(0)")
        stamp(18)
    if pure == 1:
        a("s_branch L_fin")
    get_tag()
    a(f"v_bfe_u32 v6, v{vLANE}, 2, 1")
    a(f"v_lshlrev_b32 v8, 8, v6")
    a(f"v_lshl_add_u32 v8, v11, 4, v8")
    a(f"v_add_u32 v8, {HB}, v8")
    a(f"v_mov_b32 v7, {ZB}")
    a(f"v_lshrrev_b32 v9, 5, v{vLANE}")
    a(f"v_lshl_add_u32 v9, v9, 4, v15")
    a(f"v_lshlrev_b32 v9, 4, v9")
    a(f"v_and_b32 v6, 1, v11")
    a(f"v_lshl_add_u32 v9, v6, 14, v9")
    a(f"s_lshl_b32 s10, s{sXCD}, 15")
    a(f"s_lshl_b32 s11, s{sIDX}, 9")
    a(f"s_add_u32 s10, s10, s11")
    a(f"s_add_u32 s10, s10, {QP}")
    lds_wait(QFL + 4, 1)
    a("s_waitcnt vmcnt(0)")
    stamp(19)
    ACC = 4
    first = True
    for d in range(8):
        m16 = (0x11 << (d & 3)) << (8 * (d >> 2))
        m32 = m16 | (m16 << 16)
        a(f"s_mov_b32 vcc_lo, {m32:#x}\ns_mov_b32 vcc_hi, {m32:#x}")
        a(f"v_cndmask_b32 v10, v7, v8, vcc")
        for blk in range(4):
            a(f"ds_read_b128 {R(16 + blk*4)}, v10 offset:{blk*64}")
        for blk in range(4):
            t = 32 + (blk & 1) * 4
            perm_operand(t, W + blk * 32, d)
            a(f"s_waitcnt lgkmcnt({3-blk})")
            a(f"v_mfma_f32_16x16x32_bf16 {R(2)}, {R(16 + blk*4)}, {R(t)}, {'0' if first else R(2)}")
            first = False
    for d in range(4):
        tag4(2 + d)
    if 'Q' not in skip:
        a(f"buffer_store_dwordx4 {R(2)}, v9, {S4(rWS)}, s10 offen {qpol}")
    a(f"v_mov_b32 v8, {QFL+4}\nv_mov_b32 v7, 2")
    a("ds_write_b32 v8, v7")
    a("s_waitcnt lgkmcnt(0)")
    stamp(3)
    if hpt:
        a(f"s_bitcmp1_b32 s{sIDX}, 0")
        a("s_cbranch_scc1 L_ptB")
        a(f"v_lshrrev_b32 v9, 1, v{vLANE}")
        a(f"v_lshlrev_b32 v9, 9, v9")
        a(f"v_and_b32 v10, 1, v{vLANE}")
        a(f"v_lshl_add_u32 v9, v10, 7, v9")
        a(f"s_lshr_b32 s9, s{sL}, 2")
        a(f"s_lshl_b32 s10, s9, 14")
        a(f"s_and_b32 s9, s{sIDX}, 3")
        a(f"s_lshl_b32 s9, s9, 7")
        a(f"s_add_u32 s10, s10, s9")
        a(f"s_add_u32 s10, s10, {OP}")
        a(f"buffer_load_dword v16, v9, {S4(rWS)}, s10 offen {ptpol}")
        a(f"v_bfe_u32 v9, v{vLANE}, 2, 2")
        a(f"v_lshlrev_b32 v9, 12, v9")
        a(f"v_and_b32 v10, 3, v{vLANE}")
        a(f"v_lshl_add_u32 v9, v10, 7, v9")
        a(f"s_lshl_b32 s10, s{sIDX}, 13")
        a(f"s_lshl_b32 s9, s{sXCD}, 9")
        a(f"s_add_u32 s10, s10, s9")
        a(f"s_add_u32 s10, s10, {XP}")
        a(f"buffer_load_dword v17, v9, {S4(rWS)}, s10 offen {ptpol}")
        a("s_branch L_fin")
        a("L_ptB:")
        a(f"v_and_b32 v9, 7, v{vLANE}")
        a(f"v_lshlrev_b32 v9, 7, v9")
        a(f"s_lshl_b32 s10, s{sBI}, 10")
        a(f"s_add_u32 s10, s10, {HP}")
        a(f"buffer_load_dword v16, v9, {S4(rWS)}, s10 offen {ptpol}")
    a("s_branch L_fin")

    QF, DT, PT, KV = 16, 24, 32, 40
    if pure >= 2:
        def drop(l):
            if "buffer_store" in l:
                if pure in (3, 4): return True
                if pure == 5 and "sc1" in l: return True
                if pure == 6 and "sc1" not in l: return True
            if "buffer_load" in l and "sc1" in l and pure in (2, 4, 5, 6): return True
            return False
        a.lines = [l for l in a.lines if not drop(l)]
    a("L_att:")
    a(f"s_lshl_b32 s{sKV}, s{sL}, 18")
    a(f"s_lshl_b32 s9, s{sWAVE}, 12")
    a(f"s_add_u32 s{sKV}, s{sKV}, s9")
    a(f"v_lshlrev_b32 v{vOV}, 4, v{vLANE}")
    a(f"v_and_b32 v6, 3, v{vLANE}")
    a(f"v_lshlrev_b32 v6, 10, v6")
    a(f"v_bfe_u32 v5, v{vLANE}, 2, 1")
    a(f"v_lshl_add_u32 v6, v5, 8, v6")
    a(f"v_lshl_add_u32 v{vOK}, v7, 4, v6")
    if klin == 1:
        a(f"v_and_b32 v6, 7, v{vLANE}\nv_lshlrev_b32 v6, 8, v6\nv_lshl_add_u32 v{vOK}, v7, 4, v6")
    if klin == 2:
        a(f"v_mov_b32 v{vOK}, v{vOV}")
    a(f"v_mov_b32 v4, {QFL}")
    a("s_mov_b64 vcc, 0")
    kargs()
    srd(rK, pK, 0x4000000)
    srd(rV, pV, 0x4000000)
    srd(rWS, pWS, WS_BYTES)
    a("s_barrier")
    def tile_setup(va, vb, so, sp, skip):
        l1, l2 = a.label("Lts"), a.label("Lts")
        a(f"v_lshrrev_b32 v{va}, 4, v{vLANE}")
        a(f"v_and_b32 v{vb}, 15, v{vLANE}")
        a(f"s_bitcmp1_b32 s{sIDX}, 0")
        a(f"s_cbranch_scc1 {l1}")
        srd(rT2, pWO, 8388608)
        a("s_mov_b32 s20, 64")
        a(f"s_lshl_b32 s{so}, s{sAI}, 19")
        a(f"s_lshl_b32 s9, s{sXCD}, 8")
        a(f"s_add_u32 s{so}, s{so}, s9")
        a(f"s_mov_b32 s{sp}, 2048")
        a(f"s_branch {l2}")
        a(f"{l1}:")
        a(f"s_cmp_ge_u32 s{sBI}, 112")
        a(f"s_cselect_b32 s20, 0, 64")
        srd(rT2, pW1, 7340032)
        a(f"s_and_b32 s{so}, s{sBI}, 3")
        a(f"s_mul_i32 s{so}, s{so}, {256*7168}")
        a(f"s_lshr_b32 s9, s{sBI}, 2")
        a(f"s_lshl_b32 s9, s9, 8")
        a(f"s_add_u32 s{so}, s{so}, s9")
        a(f"s_mov_b32 s{sp}, 7168")
        a(f"{l2}:")
        a(f"v_mul_lo_u32 v{va}, v{va}, s{sp}")
        a(f"v_lshl_add_u32 v{va}, v{vb}, 4, v{va}")
        a(f"s_lshl_b32 s{sp}, s{sp}, 2")

    def tile_rest(vm, va, so, sp, lo_, hi_):
        t = None
        a(f"s_add_u32 s11, s{sWAVE}, {8*lo_}")
        a(f"s_mul_i32 s9, s11, s{sp}")
        a(f"s_add_u32 s9, s9, s{so}")
        a(f"s_lshl_b32 m0, s11, 10")
        a(f"s_lshl_b32 s11, s{sp}, 3")
        for i in range(lo_, hi_):
            t = vm.issue(f"buffer_load_dwordx4 v{va}, {S4(rT2)}, s9 offen {nt} lds")
            if i + 1 < hi_:
                a(f"s_add_u32 m0, m0, 8192")
                a(f"s_add_u32 s9, s9, s11")
        return t

    def claim(fail, va=4, vb=5):
        a(f"v_mov_b32 v{va}, {QFL}\nv_mov_b32 v{vb}, 1")
        a("s_mov_b64 exec, 1")
        a(f"ds_add_rtn_u32 v{vb}, v{va}, v{vb} offset:16")
        a(FULL)
        a("s_waitcnt lgkmcnt(0)")
        a(f"v_readfirstlane_b32 s21, v{vb}")
        a(f"s_cmp_ge_u32 s21, s20")
        a(f"s_cbranch_scc1 {fail}")
        a("s_lshl_b32 m0, s21, 10")
        a("s_mul_i32 s9, s21, s19")
        a("s_add_u32 s9, s9, s18")
        a(f"buffer_load_dwordx4 v2, {S4(rT2)}, s9 offen {nt} lds")

    def claim_all():
        lp, dn = a.label("Lca"), a.label("Lcad")
        a(f"{lp}:")
        claim(dn)
        a(f"s_branch {lp}")
        a(f"{dn}:")

    if kgate:
        lds_wait(QFL + 20, 1)
        a(f"v_mov_b32 v4, {QFL}")
        a("s_mov_b64 vcc, 0")
    load_epoch()
    thr_n = [0]

    if xmask:
        a(f"s_lshr_b32 s74, {xmask}, s{sXCD}")

    def wait_x(T, extra):
        if xmask and T:
            lsk = a.label("Lx")
            a("s_bitcmp1_b32 s74, 0")
            a(f"s_cbranch_scc1 {lsk}")
            wait_n(T)
            a(f"{lsk}:")
            wait_n(T + extra)
        else:
            wait_n(T)

    def thr_wait():
        if thr2 == thr:
            wait_x(thr, xk)
            return
        thr_n[0] += 1
        lsk = a.label("Lthr")
        a(f"s_cbranch_vccnz {lsk}")
        if thr_n[0] % 2 == 0:
            a("ds_read_b32 v5, v4")
        a(f"s_waitcnt vmcnt({thr-1})")
        if thr_n[0] % 2 == 0:
            a("s_waitcnt lgkmcnt(0)")
            a("v_cmp_eq_u32 vcc, 2, v5")
        a(f"{lsk}:")
        wait_n(thr2)

    vm = Vm(a)
    order = [2, 3, 0, 1, 4, 5, 6, 7]
    pos = {s: i for i, s in enumerate(order)}
    tk = {}
    for s in order:
        a(f"s_add_u32 s9, s{sKV}, {pos[s]*32768}")
        for t in range(2):
            for h in range(2):
                if thr:
                    thr_wait()
                tk[s] = vm.issue(f"buffer_load_dwordx4 {R(KV + s*16 + t*8 + h*4)}, v{vOK}, {S4(rK)}, s9 offen offset:{(t*512 + h*128, t*2048 + h*128, t*2048 + h*1024)[klin]} {nt}")
    vblk = [KV + 32, KV + 64, KV + 96, KV + 32]
    tv = [None] * 4

    def vload(v):
        for e in range(8):
            if e % 4 == 0:
                a(f"s_add_u32 s9, s{sKV}, {(2*v + e//4)*32768}")
            wait_n(thrv)
            tv[v] = vm.issue(f"buffer_load_dwordx4 {R(vblk[v] + e*4)}, v{vOV}, {S4(rV)}, s9 offen offset:{(e % 4)*1024} {nt}")
    vnext = [0]

    def vslot():
        if not fine:
            return
        n = vnext[0]
        vnext[0] += 1
        v, e = n // 8, n % 8
        if e % 4 == 0:
            a(f"s_add_u32 s{sDU}, s{sKV}, {(2*v + e//4)*32768}")
        wait_x(thrv, xv)
        tv[v] = vm.issue(f"buffer_load_dwordx4 {R(vblk[v] + e*4)}, v{vOV}, {S4(rV)}, s{sDU} offen offset:{(e % 4)*1024} {nt}")
    stamp(20)
    if pure:
        vm.wait(tk[3]); vload(0); vm.wait(tk[5]); vload(1); vm.wait(tk[7]); vload(2); vm.wait(tv[0]); vload(3)
        a("s_waitcnt vmcnt(0)")
        stamp(8)
        a("s_branch L_fin")
    get_tag()
    tile_setup(2, 5, 18, 19, None)
    if fill:
        a("L_fill:")
        wait_n(thr)
        a(f"v_mov_b32 v4, {QFL}")
        a("ds_read_b32 v5, v4")
        a("s_waitcnt lgkmcnt(0)")
        a("v_cmp_eq_u32 vcc, 2, v5")
        a("s_cbranch_vccnz L_filld")
        claim("L_fillx")
        a("s_branch L_fill")
        a("L_fillx:")
    lds_wait(QFL, 2)
    a("L_filld:")
    stamp(5)
    a(f"v_and_b32 v8, 7, v{vLANE}")
    a(f"v_lshlrev_b32 v9, 8, v8")
    a(f"v_lshl_add_u32 v9, v7, 4, v9")
    a(f"v_add_u32 v9, {QB}, v9")
    a(f"ds_read_b128 {R(QF)}, v9")
    a(f"ds_read_b128 {R(QF+4)}, v9 offset:128")
    a("s_waitcnt lgkmcnt(0)")
    Sreg = [PT, PT + 4, KV, KV + 4, KV + 8, KV + 12, KV + 16, KV + 20]

    def qk_mfma(s, X, Y):
        vm.wait(tk[s])
        k0 = KV + s * 16
        a(f"v_mfma_f32_16x16x32_bf16 {R(X)}, {R(k0)}, {R(QF)}, 0")
        a(f"v_mfma_f32_16x16x32_bf16 {R(Y)}, {R(k0+8)}, {R(QF)}, 0")
        a(f"v_mfma_f32_16x16x32_bf16 {R(X)}, {R(k0+4)}, {R(QF+4)}, {R(X)}")
        a(f"v_mfma_f32_16x16x32_bf16 {R(Y)}, {R(k0+12)}, {R(QF+4)}, {R(Y)}")

    def qk_post(p, X, Y):
        S = Sreg[p]
        for r in range(4):
            a(f"v_permlane32_swap_b32 v{X+r}, v{Y+r}")
        for r in range(4):
            dpp_add(S + r, Y + r, X + r, 8)
        for r in (0, 2):
            rnd2(S + r, S + r + 1, 4)
            a(f"v_mul_f32 v{S+r}, s{sSCALE}, v{S+r}\nv_mul_f32 v{S+r+1}, s{sSCALE}, v{S+r+1}")
            rnd2(S + r, S + r + 1, 4)
        if p == 0:
            a(f"v_max3_f32 v5, v{S}, v{S+1}, v{S+2}")
            a(f"v_max_f32 v5, v5, v{S+3}")
        else:
            a(f"v_max3_f32 v5, v5, v{S}, v{S+1}")
            a(f"v_max3_f32 v5, v5, v{S+2}, v{S+3}")
    qk_mfma(2, PT, DT)
    qk_mfma(3, PT + 4, DT + 4)
    if not fine:
        vload(0)
    vslot()
    qk_post(0, PT, DT)
    vslot()
    qk_post(1, PT + 4, DT + 4)
    for s in (0, 1, 4, 5, 6, 7):
        vslot()
        qk_mfma(s, DT, DT + 4)
        if s == 5 and not fine:
            vload(1)
        qk_post(pos[s], DT, DT + 4)
    vslot()
    allred(5, 6, "v_max_f32", (32, 16))
    a(f"v_lshlrev_b32 v9, 5, v8")
    a(f"v_add_u32 v10, {MX}, v9")
    a(f"s_lshl_b32 s9, s{sWAVE}, 2")
    a(f"v_add_u32 v11, s9, v10")
    a("s_mov_b64 exec, 0xff")
    a(f"ds_write_b32 v11, v5")
    a(FULL)
    if vearly and not fine:
        vload(2)
    vslot()
    a("s_waitcnt lgkmcnt(0)")
    stamp(6)
    a("s_barrier")
    vslot()
    a(f"v_mov_b32 v4, {QFL+8}")
    a(f"ds_read_b128 {R(16)}, v10")
    a(f"ds_read_b128 {R(20)}, v10 offset:16")
    a(f"ds_read_b32 v4, v4")
    a("s_waitcnt lgkmcnt(0)")
    a(f"v_readfirstlane_b32 s{sLOC}, v4")
    a(f"v_max3_f32 v5, v16, v17, v18\nv_max3_f32 v5, v5, v19, v20\nv_max3_f32 v5, v5, v21, v22\nv_max_f32 v5, v5, v23")
    a(f"v_mul_f32 v6, s{sLOG2E}, v5")
    a("v_mov_b32 v4, 0")
    sl = [Sreg[p] + r for p in range(8) for r in range(4)]
    for i, x in enumerate(sl):
        if i in (8, 20):
            vslot()
        a(f"v_fma_f32 v{x}, v{x}, s{sLOG2E}, -v6")
        a(f"v_exp_f32 v{x}, v{x}")
        if i:
            a(f"v_add_f32 v4, v4, v{sl[i-1]}")
    a(f"v_add_f32 v4, v4, v{sl[31]}")
    vslot()
    for i in range(16):
        a(f"v_cvt_pk_bf16_f32 v{QF+i}, v{sl[2*i]}, v{sl[2*i+1]}")
    allred(4, 6, "v_add_f32", (32, 16))
    a("s_mov_b64 exec, 0xff")
    a(f"ds_write_b32 v11, v4 offset:{LX-MX}")
    a(FULL)
    vslot()
    a("s_waitcnt lgkmcnt(0)")
    a("s_barrier")
    vslot()
    a(f"s_cmp_lg_u32 s{sWAVE}, 4")
    a("s_cbranch_scc1 L_noml")
    a(f"ds_read_b128 {R(32)}, v10 offset:{LX-MX}")
    a(f"ds_read_b128 {R(36)}, v10 offset:{LX-MX+16}")
    a(f"s_lshl_b32 s10, s{sL}, 7")
    a(f"s_add_u32 s10, s10, {ML}")
    a(f"v_lshlrev_b32 v9, 4, v8")
    a("s_waitcnt lgkmcnt(0)")
    a("v_add_f32 v32, v32, v33\nv_add_f32 v34, v34, v35\nv_add_f32 v36, v36, v37\nv_add_f32 v38, v38, v39")
    a("v_add_f32 v32, v32, v34\nv_add_f32 v36, v36, v38\nv_add_f32 v33, v32, v36")
    tag_trunc(32, 5)
    tag_trunc(33, 33)
    a("v_mov_b32 v34, v32\nv_mov_b32 v35, v33")
    a("s_mov_b64 exec, 0xff")
    store_grp("buffer_store_dwordx4", R(32), 9, 10)
    a(FULL)
    a("L_noml:")
    if not vearly and not fine:
        vload(2)
    a(f"v_mul_u32_u24 v9, 528, v8")
    a(f"v_lshrrev_b32 v10, 4, v{vLANE}")
    a(f"v_lshl_add_u32 v9, v10, 4, v9")
    a(f"s_mul_i32 s9, s{sWAVE}, 4224")
    a(f"s_add_u32 s9, s9, {OC}")
    a(f"v_add_u32 v9, s9, v9")
    a(f"v_lshrrev_b32 v10, 5, v{vLANE}")
    a(f"v_mul_u32_u24 v10, {4*4224}, v10")
    a(f"v_and_b32 v11, 31, v{vLANE}")
    a(f"v_lshlrev_b32 v11, 4, v11")
    a(f"s_mul_i32 s9, s{sWAVE}, 528")
    a(f"s_add_u32 s9, s9, {OC}")
    a(f"v_add3_u32 v10, v10, v11, s9")
    a(f"s_lshl_b32 s10, s{sXCD}, 3")
    a(f"s_add_u32 s10, s10, s{sWAVE}")
    a(f"s_lshl_b32 s10, s10, 5")
    a(f"s_add_u32 s10, s10, s{sIDX}")
    a(f"s_lshl_b32 s11, s10, 9")
    a(f"s_add_u32 s11, s11, {OP}")
    if prew:
        prewrite(PT, 4, 8, 11)
        a(f"s_bitcmp1_b32 s{sIDX}, 0")
        a("s_cbranch_scc1 L_pwB")
        a(f"s_lshr_b32 s9, s{sWAVE}, 2")
        a(f"s_add_u32 s9, s9, s{sIDX}")
        a(f"s_lshl_b32 s9, s9, 13")
        a(f"s_lshl_b32 s10, s{sXCD}, 9")
        a(f"s_add_u32 s9, s9, s10")
        a(f"s_and_b32 s10, s{sWAVE}, 3")
        a(f"s_lshl_b32 s10, s10, 7")
        a(f"s_add_u32 s9, s9, s10")
        a(f"s_add_u32 s9, s9, {XP}")
        prewrite(PT, 3, 12, 9)
        a("s_branch L_pwD")
        a("L_pwB:")
        a(f"s_cmp_ge_u32 s{sBI}, 112")
        a("s_cbranch_scc1 L_pwD")
        a(f"s_lshl_b32 s9, s{sBI}, 10")
        a(f"s_lshl_b32 s10, s{sWAVE}, 6")
        a(f"s_add_u32 s9, s9, s10")
        a(f"s_add_u32 s9, s9, {HP}")
        prewrite(PT, 2, 9, 9)
        a("L_pwD:")
    SA = KV
    MLR, F = 104, 120
    a("s_mov_b32 s94, 0x00ff00ff\ns_mov_b32 s95, 0x00ff00ff")

    def mlloads():
        for i in range(4):
            a(f"buffer_load_dwordx4 {R(MLR + 4*i)}, v15, {S4(rWS)}, s89 offen offset:{i*1024} sc1")
    for v in range(4):
        if v == 3 and (w1pre or bpre):
            a(f"s_bitcmp1_b32 s{sIDX}, 0")
            a("s_cbranch_scc1 L_bp")
            for i in range(w1pre):
                claim("L_nw1p")
            a(f"s_waitcnt vmcnt({w1pre})")
            a("s_branch L_w1pd")
            a("L_bp:")
            for i in range(bpre):
                claim("L_nw1p")
            a(f"s_waitcnt vmcnt({bpre})")
            a("s_branch L_w1pd")
            a("L_nw1p:")
            vm.wait(tv[v])
            a("L_w1pd:")
        else:
            vm.wait(tv[v])
        for d in range(8):
            if v == 0 or (v in (1, 2) and d % 2 == 0):
                vslot()
            t = PT + (d & 1) * 4
            perm_operand(t, vblk[v], d)
            c = "0" if v == 0 else R(SA + d * 4)
            a(f"v_mfma_f32_16x16x32_bf16 {R(SA + d*4)}, {R(t)}, {R(QF + v*4)}, {c}")
            if v == 3 and ovl and d >= 2:
                a("s_mov_b64 exec, s[94:95]")
                a(f"ds_write_b128 v9, {R(SA + (d-2)*4)} offset:{(d-2)*64}")
                a(FULL)
        if v == 0 and not fine:
            vload(3)
        if v == 1:
            a(f"v_lshlrev_b32 v15, 7, v7")
            a(f"s_andn2_b32 s88, 1, s{sIDX}")
            a(f"s_lshl_b32 s88, s88, 3")
            a(f"s_or_b32 s88, s88, s{sWAVE}")
            a(f"s_cmp_ge_u32 s88, 2")
            a("s_cbranch_scc1 L_noml2")
            a(f"s_lshl_b32 s89, s{sXCD}, 12")
            a(f"s_lshr_b32 s9, s{sIDX}, 2")
            a(f"s_lshl_b32 s9, s9, 4")
            a(f"s_add_u32 s89, s89, s9")
            a(f"s_add_u32 s89, s89, {ML}")
            mlloads()
            a(f"v_lshlrev_b32 v0, 9, v7")
            a(f"v_lshl_add_u32 v0, v8, 4, v0")
            a(f"s_lshr_b32 s9, s{sL}, 2")
            a(f"s_lshl_b32 s90, s9, 14")
            a(f"s_and_b32 s9, s{sIDX}, 2")
            a(f"s_add_u32 s9, s9, s{sWAVE}")
            a(f"s_lshl_b32 s9, s9, 7")
            a(f"s_add_u32 s90, s90, s9")
            a(f"s_add_u32 s90, s90, {OP}")
            for i in range(1, 4):
                a(f"s_add_u32 s{90+i}, s90, {i*4096}")
            if pretouch:
                for i in range(4):
                    a(f"buffer_load_dword v{MLR+16+i}, v0, {S4(rWS)}, s{90+i} offen sc1")
            a("L_noml2:")
    assert not fine or vnext[0] == 32
    stamp(7)
    a(MASK8)
    for d in range(6 if ovl else 0, 8):
        a(f"ds_write_b128 v9, {R(SA + d*4)} offset:{d*64}")
    a(FULL)
    a(f"s_cmp_ge_u32 s88, 2")
    a("s_cbranch_scc1 L_nof")
    pollx(mlloads, lambda: check_regs(range(MLR, MLR + 16)), pre_issued=True)
    a(f"v_max3_f32 v5, v{MLR}, v{MLR+4}, v{MLR+8}\nv_max_f32 v5, v5, v{MLR+12}")
    dpp_max(5, 5, 5, 8)
    allred(5, 6, "v_max_f32", (16, 32))
    for i in range(4):
        a(f"v_sub_f32 v{F+i}, v{MLR+4*i}, v5")
        a(f"v_mul_f32 v{F+i}, s{sLOG2E}, v{F+i}")
        a(f"v_exp_f32 v{F+i}, v{F+i}")
    a(f"v_mul_f32 v5, v{F}, v{MLR+1}")
    for i in range(1, 4):
        a(f"v_fmac_f32 v5, v{F+i}, v{MLR+1+4*i}")
    dpp_add(5, 5, 5, 8)
    allred(5, 6, "v_add_f32", (16, 32))
    a("v_rcp_f32 v5, v5")
    for i in range(4):
        a(f"v_mul_f32 v{F+i}, v{F+i}, v5")
    a(f"s_add_u32 s89, s{sL}, s{sWAVE}")
    a(f"s_sub_u32 s89, s89, 1")
    a(f"s_mul_i32 s89, s89, {128*ofstr}")
    a(f"s_add_u32 s89, s89, {OF}")
    a("L_nof:")
    a("s_waitcnt lgkmcnt(0)")
    a("s_barrier")
    for k in range(4):
        a(f"ds_read_b128 {R(16 + 4*k)}, v10 offset:{k*4224}")
    a("s_waitcnt lgkmcnt(0)")
    for r in range(4):
        a(f"v_add_f32 v{16+r}, v{16+r}, v{20+r}\nv_add_f32 v{24+r}, v{24+r}, v{28+r}")
    for r in range(4):
        a(f"v_add_f32 v{16+r}, v{16+r}, v{24+r}")
    for r in range(4):
        a(f"v_mov_b32 v{20+r}, v{16+r}")
    for r in range(4):
        a(f"v_permlane32_swap_b32 v{16+r}, v{20+r}")
    for r in range(4):
        a(f"v_add_f32 v{16+r}, v{16+r}, v{20+r}")
    for r in range(4):
        tag_trunc(16 + r, 16 + r)
    a("s_mov_b32 exec_hi, 0")
    store_grp("buffer_store_dwordx4", R(16), 11, 11)
    a(FULL)
    stamp(8)

    def h1a():
        ln = a.label("Lnoh1a")
        a(f"s_cmp_ge_u32 s88, 2")
        a(f"s_cbranch_scc1 {ln}")

        def oloads():
            for i in range(4):
                a(f"buffer_load_dwordx4 {R(MLR + 4*i)}, v0, {S4(rWS)}, s{90+i} offen sc1")
        pollx(oloads, lambda: check_regs(range(MLR, MLR + 16)), slp=0)
        for k in range(4):
            a(f"v_mul_f32 v{MLR+k}, v{F}, v{MLR+k}")
            a(f"v_mul_f32 v{MLR+8+k}, v{F+2}, v{MLR+8+k}")
        for k in range(4):
            a(f"v_fmac_f32 v{MLR+k}, v{F+1}, v{MLR+4+k}")
            a(f"v_fmac_f32 v{MLR+8+k}, v{F+3}, v{MLR+12+k}")
        for k in range(4):
            a(f"v_add_f32 v{MLR+k}, v{MLR+k}, v{MLR+8+k}")
        red4(MLR, (8,))
        a(f"v_cvt_pk_bf16_f32 v{MLR}, v{MLR}, v{MLR}")
        a(f"v_bfi_b32 v{MLR}, s{sHI}, v{MLR}, v{vTAG}")
        untr(MLR)
        a("s_mov_b64 exec, 0xff")
        a(f"buffer_store_dwordx4 {R(MLR)}, v{vOV}, {S4(rWS)}, s89 offen sc1")
        a(FULL)
        stamp(24)
        if ackst:
            a("s_waitcnt vmcnt(0)")
            stamp(29)
        a(f"{ln}:")
    h1a()
    if notail:
        a("s_branch L_fin")
    a(f"s_bitcmp1_b32 s{sIDX}, 0")
    a("s_cbranch_scc1 L_tailB")

    def gemv8(W, Bv, acc, vrd):
        for s in range(8):
            a(f"ds_read_b128 {R(Bv + 4*s)}, v{vrd} offset:{s*64}")
        for s in range(8):
            a(f"s_waitcnt lgkmcnt({7-s})")
            c = "0" if s == 0 else R(acc)
            a(f"v_mfma_f32_16x16x32_bf16 {R(acc)}, {R(W + s*4)}, {R(Bv + 4*s)}, {c}")
        a(f"s_mov_b32 exec_lo, 0x00030003\ns_mov_b32 exec_hi, 0x00030003")
        for r in range(4):
            tag_trunc(acc + r, acc + r)

    vm = Vm(a)
    claim_all()
    WOP, W2O, W2R, AD, B1V = 72, 104, 136, 40, 29
    a(f"v_lshrrev_b32 v7, 4, v{vLANE}")
    a(f"v_and_b32 v9, 15, v{vLANE}")
    a(f"v_lshrrev_b32 v10, 5, v{vLANE}")
    a(f"v_and_b32 v5, 1, v7")
    a(f"v_lshlrev_b32 v20, 6, v5")
    a(f"v_bfe_u32 v6, v{vLANE}, 2, 2")
    a(f"v_lshl_add_u32 v20, v6, 3, v20")
    a(f"v_add_u32 v20, v20, v10")
    a(f"v_lshlrev_b32 v20, 8, v20")
    a(f"v_and_b32 v6, 3, v{vLANE}")
    a(f"v_lshl_add_u32 v20, v6, 3, v20")
    a(f"s_lshl_b32 s9, s{sWAVE}, 5")
    a(f"v_add_u32 v20, s9, v20")
    a(f"v_lshlrev_b32 v28, 12, v5")
    a(f"v_lshl_add_u32 v28, v9, 5, v28")
    a(f"v_lshl_add_u32 v28, v10, 4, v28")
    a(f"s_lshl_b32 s14, s{sBI}, 13")
    a(f"s_lshl_b32 s9, s{sWAVE}, 9")
    a(f"s_add_u32 s14, s14, s9")
    a(f"s_add_u32 s14, s14, {YP}")
    a(f"v_and_b32 v11, 31, v{vLANE}")
    a(f"v_lshlrev_b32 v21, 14, v10")
    a(f"v_lshl_add_u32 v21, v11, 4, v21")
    a(f"s_lshl_b32 s74, s{sAI}, 10")
    a(f"s_add_u32 s74, s74, {OF}")
    a(f"s_lshl_b32 s9, s{sWAVE}, 10")
    a(f"s_add_u32 s9, s9, {OB}")
    a(f"v_lshlrev_b32 v22, 9, v10")
    a(f"v_lshl_add_u32 v22, v11, 3, v22")
    a(f"v_add_u32 v22, s9, v22")
    a(f"v_and_b32 v5, 1, v{vLANE}")
    a(f"v_lshlrev_b32 v23, 9, v5")
    a(f"v_lshl_add_u32 v23, v7, 4, v23")
    a(f"v_add_u32 v23, s9, v23")
    a(f"v_lshlrev_b32 v24, 12, v5")
    a(f"v_lshl_add_u32 v24, v7, 4, v24")
    a(f"s_lshl_b32 s73, s{sAI}, 13")
    a(f"s_lshl_b32 s9, s{sXCD}, 9")
    a(f"s_add_u32 s73, s73, s9")
    a(f"s_lshl_b32 s9, s{sWAVE}, 6")
    a(f"s_add_u32 s73, s73, s9")
    a(f"s_add_u32 s73, s73, {XP}")
    srd(rT0, pW2, 7340032)
    srd(rT1, pB1, 7168)
    a(f"v_lshlrev_b32 v30, 14, v7")
    a(f"v_lshl_add_u32 v30, v9, 4, v30")
    a(f"s_lshl_b32 s15, s{sBI}, 16")
    a(f"s_lshl_b32 s9, s{sWAVE}, 8")
    a(f"s_add_u32 s15, s15, s9")
    kperm(4, 5)
    a(f"v_and_b32 v6, 7, v{vLANE}")
    a(f"v_lshl_add_u32 v31, v6, 2, v4")
    a(f"v_lshlrev_b32 v31, 1, v31")
    a(f"v_bfe_u32 v8, v{vLANE}, 3, 1")
    a(f"v_lshl_add_u32 v26, v8, 6, v31")
    a(f"s_lshl_b32 s9, s{sWAVE}, 7")
    a(f"s_add_u32 s9, s9, {H1B}")
    a(f"v_add_u32 v26, s9, v26")
    a(f"v_bfe_u32 v5, v{vLANE}, 2, 1")
    a(f"v_lshlrev_b32 v27, 6, v5")
    a(f"v_lshl_add_u32 v27, v7, 4, v27")
    a(f"v_add_u32 v27, s9, v27")
    a(f"v_lshlrev_b32 v25, 10, v7")
    a(f"v_lshl_add_u32 v25, v8, 9, v25")
    a(f"v_lshl_add_u32 v25, v6, 4, v25")
    a(f"s_and_b32 s9, s{sBI}, 3")
    a(f"s_lshl_b32 s89, s9, 7")
    a(f"s_andn2_b32 s10, s{sBI}, 3")
    a(f"s_lshl_b32 s10, s10, 10")
    a(f"s_add_u32 s89, s89, s10")
    a(f"s_add_u32 s89, s89, {HP}")
    GA, XV, B2V, GB, SV, TV = 72, 73, 74, 75, 76, 77
    consumer_ids()
    a(f"v_lshrrev_b32 v6, 3, v{vLANE}")
    a(f"v_and_b32 v8, 7, v{vLANE}")
    a(f"v_lshl_add_u32 v11, v8, 2, v4")
    a(f"v_lshlrev_b32 v5, 2, v11")
    a(f"v_add_u32 v2, {XB}, v5")
    a(f"s_mul_i32 s88, s75, {xstr}")
    a(f"s_add_u32 s88, s88, {XH}")
    a(f"v_lshlrev_b32 v0, 13, v6")
    a(f"v_lshl_add_u32 v0, v8, 4, v0")
    for r in range(32):
        a(f"v_mov_b32 v{AD+r}, 0")
    a("s_waitcnt vmcnt(0)")
    a("s_barrier")
    for s in range(8):
        for h in range(2):
            a(f"ds_read_b64_tr_b16 {R(WOP + s*4 + h*2, 2)}, v20 offset:{WT + 32768*(s >> 2) + 8192*h + 512*(s & 3)}")
    stamp(26)

    def ldOF():
        a(f"buffer_load_dwordx4 {R(32)}, v21, {S4(rWS)}, s74 offen sc1")
        a(f"buffer_load_dwordx4 {R(36)}, v21, {S4(rWS)}, s74 offen offset:512 sc1")
    pollx(ldOF, lambda: check_regs(range(32, 40)))
    stamp(9)
    for k in range(4):
        a(f"v_perm_b32 v{16+k}, v{33+2*k}, v{32+2*k}, s{sSELHI}")
    a(f"ds_write_b64 v22, {R(16, 2)}")
    a(f"ds_write_b64 v22, {R(18, 2)} offset:256")
    a("s_waitcnt lgkmcnt(0)")
    gemv8(WOP, 104, 32, 23)
    store_grp("buffer_store_dwordx4", R(32), 24, 73)
    a(FULL)
    stamp(10)
    a(f"s_cmp_ge_u32 s{sBI}, 112")
    a("s_cbranch_scc1 L_fin")
    a(f"s_cmp_ge_u32 s{sAI}, 8")
    a("s_cbranch_scc1 L_noh2")
    a(f"s_cmp_lg_u32 s{sWAVE}, 7")
    a("s_cbranch_scc1 L_h2d")
    a(f"ds_read_b32 v{GA}, v2 offset:384")
    a(f"ds_read_b32 v{XV}, v2 offset:512")
    a(f"ds_read_b32 v{B2V}, v2 offset:256")
    a(f"ds_read_b32 v{GB}, v2 offset:128")
    a(f"ds_read_b32 v{SV}, v2")
    a(f"ds_read_b32 v{TV}, v2 offset:640")
    a(f"v_mov_b32 v96, v{vOV}")
    a(f"s_mov_b32 s9, {xrec + 16}")
    a("v_writelane_b32 v96, s9, 8")
    a(f"s_mov_b32 s9, {xrec}")
    a("v_writelane_b32 v96, s9, 16")
    a(f"s_add_u32 s10, s75, {XP}")
    a(f"s_add_u32 s11, s75, {XP + 65536}")
    a("s_mov_b32 s94, 0xff00ff00\ns_mov_b32 s95, 0xff00ff00")
    SM = "s[94:95]"
    a("s_waitcnt lgkmcnt(0)")
    a(f"v_cndmask_b32 v81, 1.0, v{TV}, {SM}")

    def xloads():
        a(f"buffer_load_dwordx4 {R(84)}, v0, {S4(rWS)}, s10 offen sc1")
        a(f"buffer_load_dwordx4 {R(88)}, v0, {S4(rWS)}, s11 offen sc1")
    pollx(xloads, lambda: check_regs(range(84, 92)), slp=0)
    stamp(11)
    for k in range(4):
        a(f"v_add_f32 v{84+k}, v{84+k}, v{88+k}")
    red4(84, (8,))
    rnd1(84, 84)
    a(f"v_mul_f32 v84, v{GA}, v84")
    rnd1(84, 84)
    a(f"v_add_f32 v84, v{XV}, v84")
    rnd1(XV, 84)
    a(f"v_mul_f32 v94, v{XV}, v{TV}")
    a(f"v_or_b32 v84, v{vTAG}, v{XV}")
    a(f"v_cndmask_b32 v82, v{XV}, v{SV}, {SM}")
    a(f"v_cndmask_b32 v80, v{XV}, v94, {SM}")
    a(f"v_cndmask_b32 v94, v94, 0, {SM}")
    a(f"v_mul_f32 v92, v80, v81")
    a(f"v_mul_f32 v93, v80, v82")
    a(f"v_mul_f32 v95, v94, v94")
    untr(84)
    publish_moments(92, 88, 84)
    stamp(12)
    a("s_branch L_h2d")
    a("L_noh2:")
    if w2delay:
        a(f"s_sleep {w2delay}")
    a("L_h2d:")
    a("s_barrier")
    for e in range(8):
        if e % 2 == 0:
            a(f"s_add_u32 s9, s15, {e*2048}")
        a(f"buffer_load_dwordx4 {R(W2R + e*4)}, v30, {S4(rT0)}, s9 offen offset:{(e % 2)*2048} {nt}")
    a(f"s_lshl_b32 s9, s{sBI}, 6")
    a(f"buffer_load_ushort v{B1V}, v31, {S4(rT1)}, s9 offen")
    a("s_waitcnt vmcnt(0)")
    for d in range(8):
        perm_operand(W2O + d * 4, W2R, d)
    lo(B1V, B1V)
    stamp(27)
    pollx(lambda: a(f"buffer_load_dwordx4 {R(136)}, v25, {S4(rWS)}, s89 offen sc1"), lambda: check_regs(range(136, 140)), slp=0)
    stamp(23)
    red4(136, ())
    rnd1(136, 136)
    a(f"v_add_f32 v136, v136, v{B1V}")
    rnd1(136, 136)
    a("v_mul_f32 v137, v136, v136")
    a("v_mul_f32 v137, 0x3d372713, v137")
    a("v_fma_f32 v137, v137, v136, v136")
    a("v_mul_f32 v137, 0xc0135761, v137")
    a("v_exp_f32 v137, v137")
    a("v_add_f32 v137, 1.0, v137")
    a("v_rcp_f32 v137, v137")
    a("v_mul_f32 v136, v136, v137")
    a("v_cvt_pk_bf16_f32 v136, v136, v136")
    a("ds_write_b16 v26, v136")
    a("s_waitcnt lgkmcnt(0)")
    for d in range(8):
        m16 = (0x11 << (d & 3)) << (8 * (d >> 2))
        m32 = m16 | (m16 << 16)
        a(f"s_mov_b32 exec_lo, {m32:#x}\ns_mov_b32 exec_hi, {m32:#x}")
        a(f"ds_read_b128 {R(AD + 4*d)}, v27")
    a(FULL)
    for d in range(8):
        a(f"s_waitcnt lgkmcnt({7-d})")
        c = "0" if d == 0 else R(136)
        a(f"v_mfma_f32_16x16x32_bf16 {R(136)}, {R(AD + 4*d)}, {R(W2O + 4*d)}, {c}")
    for r in range(4):
        tag_trunc(136 + r, 136 + r)
    a(f"buffer_store_dwordx4 {R(136)}, v28, {S4(rWS)}, s14 offen sc1")
    stamp(28)
    a(f"s_cmp_ge_u32 s{sAI}, 8")
    a("s_cbranch_scc1 L_fin")
    srd(rT3, pOUT, 4096)
    a(f"s_mul_i32 s11, s{sWAVE}, {14*8192}")
    a(f"s_add_u32 s11, s11, s75")
    a(f"s_add_u32 s11, s11, {YP}")
    a(f"s_add_u32 s15, s11, {8*8192}")
    a(f"s_lshl_b32 s9, s{sWAVE}, 2")
    a(f"s_add_u32 s9, s9, {FB}")
    a(f"v_lshl_add_u32 v9, v11, 5, s9")
    a(f"v_lshlrev_b32 v8, 5, v11")
    a(f"v_add_u32 v8, {FB}, v8")
    a(f"s_lshr_b32 s10, s75, 1")
    a(f"v_lshlrev_b32 v10, 1, v11")
    for r in range(44, 48):
        a(f"v_mov_b32 v{r}, 0")
    a(f"s_mov_b32 s94, -1\ns_mov_b32 s95, 0xffff")

    def ldH4():
        a(f"buffer_load_dwordx4 {R(40)}, v0, {S4(rWS)}, s11 offen sc1")
        a(f"s_and_saveexec_b64 s[{sEX}:{sEX+1}], s[94:95]")
        a(f"buffer_load_dwordx4 {R(44)}, v0, {S4(rWS)}, s15 offen sc1")

    def ckH4():
        for r in range(44, 48):
            a(f"v_xor_b32 v{r}, v{vTAG}, v{r}")
        a(f"s_mov_b64 exec, s[{sEX}:{sEX+1}]")
        check_regs(range(40, 44))
        a(f"v_or3_b32 v{vBAD}, v{vBAD}, v44, v45")
        a(f"v_or3_b32 v{vBAD}, v{vBAD}, v46, v47")
    if h4delay:
        a(f"s_sleep {h4delay}")
    pollx(ldH4, ckH4)
    stamp(13)
    for r in range(4):
        a(f"v_add_f32 v{40+r}, v{40+r}, v{44+r}")
    red4(40, (8,))
    a("ds_write_b32 v9, v40")
    a("s_waitcnt lgkmcnt(0)")
    a("s_barrier")
    a(f"s_cmp_lg_u32 s{sWAVE}, 7")
    a("s_cbranch_scc1 L_fin")
    a(f"ds_read_b128 {R(40)}, v8")
    a(f"ds_read_b128 {R(44)}, v8 offset:16")
    a("s_waitcnt lgkmcnt(0)")
    for r in range(4):
        a(f"v_add_f32 v{40+r}, v{40+r}, v{44+r}")
    a("v_add_f32 v40, v40, v41\nv_add_f32 v42, v42, v43\nv_add_f32 v40, v40, v42")
    rnd1(40, 40)
    a(f"v_add_f32 v40, v{B2V}, v40")
    rnd1(40, 40)
    a(f"v_mul_f32 v40, v{GB}, v40")
    rnd1(40, 40)
    a(f"v_add_f32 v40, v{XV}, v40")
    a("v_cvt_pk_bf16_f32 v40, v40, v40")
    a(MASK8)
    a(f"buffer_store_short v40, v10, {S4(rT3)}, s10 offen")
    a(FULL)
    a("s_cmp_lg_u32 s2, 0")
    a("s_cbranch_scc1 L_fin")
    a(f"v_mov_b32 v4, s{sEP}")
    a("v_mov_b32 v5, 0")
    a("s_mov_b64 exec, 1")
    a(f"buffer_store_dword v4, v5, {S4(rWS)}, 0 offen offset:{EPOCH} sc1")
    a("s_mov_b64 exec, -1")

    a("s_branch L_fin")

    a("L_tailB:")
    a(f"s_cmp_ge_u32 s{sBI}, 112")
    a("s_cbranch_scc1 L_fin")
    W1O = 72
    XR, SB, CB, MR = 32, 36, 16, 136
    a(f"v_lshrrev_b32 v7, 4, v{vLANE}")
    a(f"s_and_b32 s9, s{sBI}, 3")
    a(f"s_lshl_b32 s13, s9, 10")
    a(f"s_lshl_b32 s10, s{sWAVE}, 12")
    a(f"s_add_u32 s13, s13, s10")
    a(f"s_add_u32 s15, s13, {X1 + 8192}")
    a(f"s_add_u32 s88, s13, {X1 + 16384}")
    a(f"s_mul_i32 s74, s13, {xstr}")
    a(f"s_add_u32 s74, s74, {XH}")
    a(f"v_lshrrev_b32 v6, 1, v{vLANE}")
    a(f"v_and_b32 v5, 1, v{vLANE}")
    a(f"v_lshlrev_b32 v20, 7, v6")
    a(f"v_lshl_add_u32 v20, v5, 4, v20")
    a(f"v_mul_u32_u24 v21, {128*xstr}, v6")
    a(f"v_lshl_add_u32 v21, v5, 4, v21")
    a(f"s_add_u32 s89, s10, {XS + 8192}")
    a(f"s_mul_i32 s91, s{sWAVE}, {4096*xstr}")
    a(f"s_add_u32 s91, s91, {XH + xrec}")
    a(f"s_lshl_b32 s10, s{sWAVE}, 9")
    a(f"s_add_u32 s10, s10, {YB}")
    a(f"v_lshl_add_u32 v22, v{vLANE}, 3, s10")
    a(f"v_lshlrev_b32 v23, 9, v5")
    a(f"v_lshl_add_u32 v24, v7, 4, v23")
    a(f"v_add_u32 v23, {YB}, v24")
    a(f"s_lshl_b32 s90, s{sBI}, 10")
    a(f"s_lshl_b32 s9, s{sWAVE}, 6")
    a(f"s_add_u32 s90, s90, s9")
    a(f"s_add_u32 s90, s90, {HP}")
    a(f"v_bfe_u32 v25, v{vLANE}, 2, 2")
    a(f"v_lshl_add_u32 v25, v7, 3, v25")
    a(f"v_lshlrev_b32 v25, 8, v25")
    a(f"v_and_b32 v6, 3, v{vLANE}")
    a(f"v_lshl_add_u32 v25, v6, 3, v25")
    a(f"s_lshl_b32 s9, s{sWAVE}, 5")
    a(f"v_add_u32 v25, s9, v25")
    a(f"v_lshrrev_b32 v6, 3, v{vLANE}")
    a(f"v_and_b32 v8, 7, v{vLANE}")
    a(f"v_mul_u32_u24 v26, {128*xstr}, v6")
    a(f"v_lshl_add_u32 v26, v8, 4, v26")
    a("s_barrier")
    vm = Vm(a)

    def ldS():
        a(f"buffer_load_dwordx4 {R(SB)}, v{vOV}, {S4(rWS)}, s15 offen sc1")
        a(f"buffer_load_dwordx4 {R(CB)}, v{vOV}, {S4(rWS)}, s88 offen sc1")
        a(f"buffer_load_dwordx4 {R(MR)}, v20, {S4(rWS)}, s89 offen sc1")
    LANE_OF = [0, 32, 16, 48, 1, 33]
    a(f"s_cmp_ge_u32 s{sWAVE}, 2")
    a("s_cbranch_scc1 L_nocst")
    pollx(ldS, lambda: check_regs(list(range(SB, SB + 4)) + list(range(CB, CB + 4)) + list(range(MR, MR + 4))))
    red4(MR, (2, 4, 8))
    a(f"v_mul_f32 v{MR}, 0x3a800000, v{MR}")
    for k in range(5):
        a(f"v_readlane_b32 s9, v{MR}, {LANE_OF[k]}")
        a(f"v_mov_b32 v{144+k}, s9")
    a("L_nocst:")
    claim_all()
    a("s_waitcnt vmcnt(0)")
    a("s_barrier")
    for s in range(8):
        for h in range(2):
            a(f"ds_read_b64_tr_b16 {R(W1O + s*4 + h*2, 2)}, v25 offset:{WT + 8192*s + 1024*h}")
    stamp(26)
    a(f"s_cmp_ge_u32 s{sWAVE}, 2")
    a("s_cbranch_scc1 L_ydone")

    def ldH3():
        a(f"buffer_load_dwordx4 {R(XR)}, v26, {S4(rWS)}, s74 offen sc1")
        a(f"buffer_load_dwordx4 {R(MR)}, v21, {S4(rWS)}, s91 offen sc1")
    pollx(ldH3, lambda: check_regs(list(range(XR, XR + 4)) + list(range(MR, MR + 4))), slp=h3slp)
    stamp(10)
    red4(MR, (2, 4, 8))
    a(f"v_mul_f32 v{MR}, 0x3a800000, v{MR}")
    for k, sr in enumerate((10, 11, 12, 13, 15, 88)):
        a(f"v_readlane_b32 s{sr}, v{MR}, {LANE_OF[k]}")

    def stats_tail(mean, ex2, t, mb, rs):
        a(f"v_fma_f32 v{ex2}, -v{mean}, v{mean}, v{ex2}")
        a(f"v_max_f32 v{ex2}, 0, v{ex2}")
        a(f"v_cvt_pk_bf16_f32 v{t}, v{mean}, v{ex2}")
        hi(ex2, t)
        lo(mb, t)
        a(f"v_add_f32 v{ex2}, 0x3727c5ac, v{ex2}")
        rnd1(ex2, ex2)
        a(f"v_sqrt_f32 v{ex2}, v{ex2}")
        rnd1(ex2, ex2)
        a(f"v_rcp_f32 v{rs}, v{ex2}")
    a("v_mov_b32 v5, s10\nv_mov_b32 v6, s11")
    stats_tail(5, 6, 60, 140, 141)
    a(f"v_fma_f32 v150, -v140, v144, s12")
    a(f"v_mul_f32 v151, v140, v145")
    a(f"v_fma_f32 v151, -2.0, s15, v151")
    a(f"v_fma_f32 v151, v140, v151, s13")
    a(f"v_fma_f32 v152, -v140, v146, s88")
    for k in (0, 2):
        a(f"v_sub_f32 v{XR+k}, v{XR+k}, v140\nv_sub_f32 v{XR+k+1}, v{XR+k+1}, v140")
    for k in (0, 2):
        rnd2(XR + k, XR + k + 1, 60 + k // 2)
    a(f"v_fma_f32 v5, v141, v150, v147")
    a(f"v_mul_f32 v151, v141, v151")
    a(f"v_fma_f32 v151, 2.0, v152, v151")
    a(f"v_fma_f32 v6, v141, v151, v148")
    for k in range(4):
        a(f"v_mul_f32 v{XR+k}, v{XR+k}, v141")
    for k in (0, 2):
        rnd2(XR + k, XR + k + 1, 60 + k // 2)
    stats_tail(5, 6, 62, 142, 143)
    for k in range(4):
        a(f"v_mul_f32 v{XR+k}, v{XR+k}, v{CB+k}")
    for k in (0, 2):
        rnd2(XR + k, XR + k + 1, 60 + k // 2)
    for k in range(4):
        a(f"v_add_f32 v{XR+k}, v{XR+k}, v{SB+k}")
    for k in (0, 2):
        rnd2(XR + k, XR + k + 1, 60 + k // 2)
    for k in range(4):
        a(f"v_sub_f32 v{XR+k}, v{XR+k}, v142")
    for k in (0, 2):
        rnd2(XR + k, XR + k + 1, 60 + k // 2)
    for k in range(4):
        a(f"v_mul_f32 v{XR+k}, v{XR+k}, v143")
    a(f"v_cvt_pk_bf16_f32 v28, v{XR}, v{XR+1}\nv_cvt_pk_bf16_f32 v29, v{XR+2}, v{XR+3}")
    a(f"ds_write_b64 v22, {R(28, 2)}")
    a("s_waitcnt lgkmcnt(0)")
    a("L_ydone:")
    a("s_barrier")
    gemv8(W1O, 136, 32, 23)
    store_grp("buffer_store_dwordx4", R(32), 24, 90)
    a(FULL)
    stamp(22)

    a("L_fin:")
    if stamps and dbgstamps:
        stamp(15)
        a(f"s_cmp_lg_u32 s2, {dbgstamps - 1}")
        a("s_cbranch_scc1 L_end")
        a("s_load_dwordx2 s[10:11], s[0:1], 104")
        a("s_waitcnt lgkmcnt(0)")
        srd(rT0, 10, 256)
        slots = [1, 2, 3, 4, 20, 6, 8, 24, 9, 10, 11, 12, 22, 13, 15, 21]
        a("v_mov_b32 v4, 200")
        for i, k in enumerate(slots):
            a(f"s_mov_b32 s9, {4*i}")
            a(f"v_writelane_b32 v4, s9, {k}")
        a(f"v_readlane_b32 s9, v{vST}, 0")
        a(f"v_subrev_u32 v5, s9, v{vST}")
        a(f"v_cmp_ne_u32 vcc, 0, v{vST}")
        a("s_mov_b64 exec, vcc")
        a(f"buffer_atomic_umax v5, v4, {S4(rT0)}, 0 offen sc1")
    elif stamps:
        stamp(15)
        a(f"s_mul_i32 s9, s2, {NWAVES}")
        a(f"s_add_u32 s9, s9, s{sW12}")
        a(f"s_lshl_b32 s9, s9, 7")
        a(f"s_add_u32 s9, s9, {STAMP}")
        a(f"v_lshlrev_b32 v4, 2, v{vLANE}")
        a("s_mov_b32 exec_hi, 0")
        a(f"buffer_store_dword v{vST}, v4, {S4(rWS)}, s9 offen")
    a("L_end:")
    a("s_endpgm")
    a('.section .rodata,"a"')
    a(".p2align 6")
    a(f".amdhsa_kernel {NAME}_kernel")
    for l in (".amdhsa_next_free_vgpr 168", ".amdhsa_next_free_sgpr 102", ".amdhsa_accum_offset 168",
              ".amdhsa_group_segment_fixed_size 0", ".amdhsa_kernarg_size 120", ".amdhsa_user_sgpr_count 2",
              ".amdhsa_user_sgpr_kernarg_segment_ptr 1", ".amdhsa_system_sgpr_workgroup_id_x 1",
              ".amdhsa_float_denorm_mode_32 3"):
        a(l)
    a(".end_amdhsa_kernel")
    return pre + a.finish()


if __name__ == "__main__":
    out = sys.argv[1] if len(sys.argv) > 1 else f"cdna_kernels/{NAME}.s"
    kw = {}
    for arg in sys.argv[2:]:
        k, v = arg.split("=")
        kw[k] = eval(v)
    open(out, "w").write(gen(**kw))
```

```python
import sys
from asmlib import Asm, Vm

NAME = "adaLN_cond__gqa_block_cached__mixer_channel_mlp__decode"

EPOCH = 0
ML = 0x1000
X1 = 0x9000
MODP = 0x140000
QP = 0x30000
MA = 0xB0000
HP = 0xE0000
XP = 0x100000
DUAL = 0x90000
OF = 0x500000
QFN = 0x80000
XS = 0x88000
XH = 0x180000
XID = 0x78000
OP = 0x200000
YP = 0x300000
STAMP = 0x800000
WS_BYTES = 0x10000000
WT = 0
OC = 0x10000
QB = 0x18400
HB = 0x18C00
ZB = 0x18E00
MX = 0x19000
LX = 0x19100
OB = 0x10000
ST = 0x19600
YB = 0x19800
RED = 0x1A800
H1B = 0x1B000
QFL = 0x1B400
XB = 0x1B480
FB = 0x1B800
LDS_BYTES = 0x1BC00
TAGM = 0x3ff
T4 = 3
NWAVES = 12

sWAVE, sL, sXCD, sIDX, sAI, sTAG = 3, 4, 5, 6, 7, 8
pX, pK, pV, pWQ, pWO, pW1, pB1, pW2, pB2, pC, pWM, pOUT, pWS = 16, 18, 20, 22, 24, 28, 30, 32, 34, 36, 38, 40, 42
rK, rV, rWS, rT0, rT1, rT2, rT3 = 44, 48, 52, 56, 60, 64, 68
sDU = 72
sSELLO, sSELHI, sHI, sLOG2E, sSCALE, sSPIN, sEP, sTM = 76, 77, 78, 79, 80, 81, 82, 83
sEX = 84
sBI = 86
sKV = 87
sW12 = 100
sLOC = 101
vLANE, vOK, vOV = 1, 2, 3
vBAD, vTAG, vST = 12, 13, 14


def gen(stamps=False, dbgstamps=False, codewarm=True, spin=200000, sleep=0, nt="nt", w1_early=True,
        thr=4, thr2=4, thrq=0, thrb=12, thrv=6, notail=False, quiet=0, pin=0, fill=0, mbgate=0, kgate=0, bpre=0, w2delay=0, wpre=0, xmask=0, xk=1, xv=2, ofstr=1, xstr=33, onest=1, w2x2=0, pipe='', spread=0, ackst=0, pslp=2, w1pre=4, ovl=1, w1late=1, h3slp=None, h3split=0, fullrec=0, ptall='mqfdoxy', wq_dyn=1, fine=1, qpol='sc1', ptpol='sc1', agate=1, xdelay=20, skip='', hpt=0, prew=0, b2stage=1, h4delay=0, pretouch=0, noloc=0, noma=0, bdelay=0, adelay=0, nomodfin=0, pure=0, klin=0, vearly=0, fake=0, attdma=True, thrw=3, cslp=1, w1pol=None):
    a = Asm()
    hdr = open(f"cdna_kernels/{NAME}.s.ref").read().split("\n")
    head = [l for l in hdr if l.startswith(";") and "@launch" not in l]
    pre = "\n".join(head) + f"\n; @launch grid=(256,1,1) block=({64*NWAVES},1,1) lds={LDS_BYTES}\n"
    a('.amdgcn_target "amdgcn-amd-amdhsa--gfx950"')
    a(".text")
    a(f".globl {NAME}_kernel")
    a(".p2align 8")
    a(f".type {NAME}_kernel,@function")
    a(f"{NAME}_kernel:")

    def srd(d, p, n):
        a(f"s_mov_b32 s{d}, s{p}\ns_mov_b32 s{d+1}, s{p+1}\ns_mov_b32 s{d+2}, {n}\ns_mov_b32 s{d+3}, 0x20000")

    def R(b, n=4):
        return f"v[{b}:{b+n-1}]"

    def S4(b):
        return f"s[{b}:{b+3}]"

    def stamp(k):
        if stamps == 1 or (stamps == 2 and k in (8, 15)):
            a(f"s_memrealtime s[96:97]\ns_waitcnt lgkmcnt(0)\nv_writelane_b32 v{vST}, s96, {k}")

    def lo(d, p):
        a(f"v_lshlrev_b32 v{d}, 16, v{p}")

    def hi(d, p):
        a(f"v_and_b32 v{d}, s{sHI}, v{p}")

    def rnd1(d, s):
        a(f"v_cvt_pk_bf16_f32 v{d}, v{s}, v{s}")
        lo(d, d)

    def rnd2(x, y, t):
        a(f"v_cvt_pk_bf16_f32 v{t}, v{x}, v{y}")
        lo(x, t)
        hi(y, t)

    def tag_round(d, s):
        a(f"v_add_u32 v{d}, 0x200, v{s}")
        a(f"v_bfi_b32 v{d}, s{sTM}, v{vTAG}, v{d}")

    def tag_trunc(d, s):
        a(f"v_bfi_b32 v{d}, s{sTM}, v{vTAG}, v{s}")

    def check_regs(regs, first=True):
        for r in regs:
            a(f"v_xor_b32 v{r}, v{vTAG}, v{r}")
        regs = list(regs)
        if first:
            a(f"v_or_b32 v{vBAD}, v{regs[0]}, v{regs[1]}")
            regs = regs[2:]
        for i in range(0, len(regs), 2):
            a(f"v_or3_b32 v{vBAD}, v{vBAD}, v{regs[i]}, v{regs[i+1]}")

    def dpp_add(d, s_rot, s1, ror):
        a(f"v_add_f32_dpp v{d}, v{s_rot}, v{s1} row_ror:{ror} row_mask:0xf bank_mask:0xf")

    def dpp_max(d, s_rot, s1, ror):
        a(f"v_max_f32_dpp v{d}, v{s_rot}, v{s1} row_ror:{ror} row_mask:0xf bank_mask:0xf")

    def allred(x, t, op, which):
        for w in which:
            a(f"v_mov_b32 v{t}, v{x}")
            a(f"v_permlane{w}_swap_b32 v{x}, v{t}")
            a(f"{op} v{x}, v{x}, v{t}")

    def red4(b, rors):
        a(f"v_permlane32_swap_b32 v{b}, v{b+1}")
        a(f"v_permlane32_swap_b32 v{b+2}, v{b+3}")
        a(f"v_add_f32 v{b}, v{b}, v{b+1}")
        a(f"v_add_f32 v{b+2}, v{b+2}, v{b+3}")
        a(f"v_permlane16_swap_b32 v{b}, v{b+2}")
        a(f"v_add_f32 v{b}, v{b}, v{b+2}")
        for r in rors:
            dpp_add(b, b, b, r)

    def perm_operand(dst, blk, d):
        sel = sSELHI if d & 1 else sSELLO
        for k in range(4):
            a(f"v_perm_b32 v{dst+k}, v{blk + (2*k+1)*4 + (d >> 1)}, v{blk + 2*k*4 + (d >> 1)}, s{sel}")

    def ln_stats(su, sq, t, mb, rs):
        a(f"v_mul_f32 v{su}, 0x3a800000, v{su}")
        a(f"v_mul_f32 v{sq}, 0x3a800000, v{sq}")
        a(f"v_fma_f32 v{sq}, -v{su}, v{su}, v{sq}")
        a(f"v_max_f32 v{sq}, 0, v{sq}")
        a(f"v_cvt_pk_bf16_f32 v{t}, v{su}, v{sq}")
        lo(mb, t)
        hi(sq, t)
        a(f"v_add_f32 v{sq}, 0x3727c5ac, v{sq}")
        rnd1(sq, sq)
        a(f"v_sqrt_f32 v{sq}, v{sq}")
        rnd1(sq, sq)
        a(f"v_rcp_f32 v{rs}, v{sq}")

    def ln_apply(x, y, t, mb, rs, last_round=True):
        a(f"v_sub_f32 v{x}, v{x}, v{mb}")
        a(f"v_sub_f32 v{y}, v{y}, v{mb}")
        rnd2(x, y, t)
        a(f"v_mul_f32 v{x}, v{x}, v{rs}")
        a(f"v_mul_f32 v{y}, v{y}, v{rs}")
        if last_round:
            rnd2(x, y, t)

    def check2(pairs_regs):
        first = True
        for b in pairs_regs:
            a(f"v_xor_b32 v{b+1}, s{sEP}, v{b+1}")
            a(f"v_xor_b32 v{b+3}, s{sEP}, v{b+3}")
            if first:
                a(f"v_or_b32 v{vBAD}, v{b+1}, v{b+3}")
                first = False
            else:
                a(f"v_or3_b32 v{vBAD}, v{vBAD}, v{b+1}, v{b+3}")

    def pollx(loads, check, f2=False, dual=False, pre_issued=False, between=None, slp=None, name=None):
        if name and name in skip:
            a("s_waitcnt vmcnt(0)")
            a("s_mov_b64 exec, -1")
            return
        lp, dn, ck = a.label("Lpoll"), a.label("Ldone"), a.label("Lchk")
        a(f"s_mov_b32 s{sSPIN}, {0 if (fake and slp in (cslp, 16)) else spin | 7}")
        if pre_issued:
            a(f"s_branch {ck}")
        inst = stamps == 1 and name in ("a", "b", "c", "x")
        if inst:
            a("s_mov_b32 s94, 0\ns_mov_b32 s95, 0")
        a(f"{lp}:")
        if inst:
            a("s_memrealtime s[90:91]")
        loads()
        if pre_issued != "landed":
            a(f"{ck}:")
        a("s_waitcnt vmcnt(0)")
        if pre_issued == "landed":
            a(f"{ck}:")
        if inst:
            a("s_memrealtime s[92:93]\ns_waitcnt lgkmcnt(0)")
            a("s_sub_u32 s92, s92, s90\ns_max_u32 s94, s94, s92\ns_add_u32 s95, s95, 1")
        check()
        if not f2:
            a(f"v_and_b32 v{vBAD}, s{sTM}, v{vBAD}")
        a(f"v_cmp_ne_u32 vcc, 0, v{vBAD}")
        a(f"s_cbranch_vccz {dn}")
        a("s_mov_b64 exec, vcc")
        sl = sleep if slp is None else slp
        if sl:
            a(f"s_sleep {sl}")
        a(f"s_sub_u32 s{sSPIN}, s{sSPIN}, 1")
        a(f"s_cbranch_scc0 {lp}")
        a(f"{dn}:")
        a("s_mov_b64 exec, -1")
        if inst:
            k = {"a": 26, "b": 28, "c": 28, "x": 26}[name]
            a(f"v_writelane_b32 v{vST}, s94, {k}\nv_writelane_b32 v{vST}, s95, {k+1}")

    def pollp(load, nl, final, sets, sm=94, init=None):
        lp, dn = a.label("Lpp"), a.label("Lppd")
        M = f"s[{sm}:{sm+1}]"
        n = 4 * nl
        a(f"s_mov_b64 {M}, exec")
        a(f"s_mov_b32 s{sSPIN}, {spin}")
        load(sets[0])
        if pslp:
            a(f"s_sleep {pslp}")
        load(sets[1])
        a(f"{lp}:")
        for k in range(3):
            if pslp:
                a(f"s_sleep {pslp}")
            load(sets[(k + 2) % 3])
            a(f"s_waitcnt vmcnt({2*nl})")
            b = sets[k]
            check_regs(range(b, b + n))
            a(f"v_and_b32 v{vBAD}, s{sTM}, v{vBAD}")
            a(f"v_cmp_eq_u32 vcc, 0, v{vBAD}")
            a("s_mov_b64 exec, vcc")
            for i in range(n):
                a(f"v_mov_b32 v{final[i]}, v{b+i}")
            a(f"s_andn2_b64 {M}, {M}, vcc")
            a(f"s_cbranch_scc0 {dn}")
            a(f"s_mov_b64 exec, {M}")
        a(f"s_sub_u32 s{sSPIN}, s{sSPIN}, 1")
        a(f"s_cbranch_scc0 {lp}")
        a(f"{dn}:")
        a("s_mov_b64 exec, -1")

    def dual_exchange(store_wt, loads, check):
        l1, ok, dn = a.label("Lfx"), a.label("Lfxok"), a.label("Lfxdn")
        a(f"s_mov_b32 s{sDU}, {DUAL}")
        a(f"s_mov_b32 s{sSPIN}, 24")
        a(f"{l1}:")
        loads()
        a("s_waitcnt vmcnt(0)")
        check()
        a(f"v_and_b32 v{vBAD}, s{sTM}, v{vBAD}")
        a(f"v_cmp_ne_u32 vcc, 0, v{vBAD}")
        a(f"s_cbranch_vccz {ok}")
        a("s_mov_b64 exec, vcc")
        a(f"s_sub_u32 s{sSPIN}, s{sSPIN}, 1")
        a(f"s_cbranch_scc0 {l1}")
        a(f"s_mov_b64 s[{sEX}:{sEX+1}], exec")
        store_wt()
        a(f"s_mov_b64 exec, s[{sEX}:{sEX+1}]")
        pollx(loads, check, dual=True)
        a(f"s_branch {dn}")
        a(f"{ok}:")
        store_wt()
        a("s_mov_b64 exec, -1")
        a(f"{dn}:")

    def store_grp(op, data, vaddr, soff):
        l1, l2 = a.label("Lsg"), a.label("Lsgd")
        a(f"s_cmp_eq_u32 s{sLOC}, 1")
        a(f"s_cbranch_scc1 {l1}")
        a(f"{op} {data}, v{vaddr}, {S4(rWS)}, s{soff} offen sc1")
        a(f"s_branch {l2}")
        a(f"{l1}:")
        a(f"{op} {data}, v{vaddr}, {S4(rWS)}, s{soff} offen")
        a(f"{l2}:")

    def prewrite(t, nl_log2, bshift, soff):
        if not prew:
            return
        for k in range(4):
            a(f"v_xor_b32 v{t+k}, 1, v{vTAG}")
        a(f"v_lshrrev_b32 v{t+4}, {nl_log2}, v{vLANE}")
        a(f"v_lshlrev_b32 v{t+4}, {bshift-4}, v{t+4}")
        a(f"v_and_or_b32 v{t+4}, v{vLANE}, {(1 << nl_log2) - 1}, v{t+4}")
        a(f"v_lshlrev_b32 v{t+4}, 4, v{t+4}")
        n = 2 << nl_log2
        a(f"s_mov_b64 exec, {(1 << n) - 1:#x}" if n < 32 else "s_mov_b32 exec_hi, 0")
        a(f"buffer_store_dwordx4 {R(t)}, v{t+4}, {S4(rWS)}, s{soff} offen")
        a("s_mov_b64 exec, -1")

    def store_dual(op, data, vaddr, soff, off=0):
        a(f"s_add_u32 s9, s{soff}, {DUAL}")
        a(f"{op} {data}, v{vaddr}, {S4(rWS)}, s9 offen offset:{off}")
        a(f"{op} {data}, v{vaddr}, {S4(rWS)}, s{soff} offen offset:{off} sc1")

    def untr(b):
        a(f"v_mov_b32 v{b+1}, v{b}")
        a(f"v_permlane32_swap_b32 v{b}, v{b+1}")
        a(f"v_mov_b32 v{b+2}, v{b}")
        a(f"v_mov_b32 v{b+3}, v{b+1}")
        a(f"v_permlane16_swap_b32 v{b}, v{b+2}")
        a(f"v_permlane16_swap_b32 v{b+1}, v{b+3}")

    def kperm(d, t):
        a(f"v_bfe_u32 v{d}, v{vLANE}, 4, 1")
        a(f"v_lshrrev_b32 v{t}, 5, v{vLANE}")
        a(f"v_lshl_or_b32 v{d}, v{d}, 1, v{t}")

    xrec = 128 * (xstr // 2)
    MASK8 = "s_mov_b32 exec_lo, 0x00ff00ff\ns_mov_b32 exec_hi, 0x00ff00ff"
    FULL = "s_mov_b64 exec, -1"

    a("s_cmp_ge_u32 s2, 256")
    a("s_cbranch_scc1 L_end")
    a("s_load_dwordx16 s[16:31], s[0:1], 0")
    a("s_load_dwordx8 s[32:39], s[0:1], 64")
    a("s_load_dwordx2 s[40:41], s[0:1], 96")
    a("s_load_dwordx2 s[42:43], s[0:1], 112")
    if pin:
        a("s_memrealtime s[98:99]")
    if stamps:
        a(f"v_mov_b32 v{vST}, 0")
        a("s_memrealtime s[98:99]")
    a(f"v_lshrrev_b32 v4, 6, v0")
    a(f"v_and_b32 v{vLANE}, 63, v0")
    a(f"v_readfirstlane_b32 s{sW12}, v4")
    a(f"s_and_b32 s{sXCD}, s2, 7")
    a(f"s_lshr_b32 s{sIDX}, s2, 3")
    a(f"s_lshl_b32 s{sL}, s{sXCD}, 5")
    a(f"s_add_u32 s{sL}, s{sL}, s{sIDX}")
    a(f"s_lshr_b32 s{sAI}, s{sIDX}, 1")
    a(f"s_lshr_b32 s9, s{sAI}, 2")
    a(f"s_lshl_b32 s9, s9, 3")
    a(f"s_add_u32 s9, s9, s{sXCD}")
    a(f"s_lshl_b32 s{sBI}, s9, 2")
    a(f"s_and_b32 s9, s{sAI}, 3")
    a(f"s_add_u32 s{sBI}, s{sBI}, s9")
    a(f"s_mov_b32 s{sSELLO}, 0x05040100")
    a(f"s_mov_b32 s{sSELHI}, 0x07060302")
    a(f"s_mov_b32 s{sHI}, 0xffff0000")
    a(f"s_mov_b32 s{sLOG2E}, 0x3fb8aa3b")
    a(f"s_mov_b32 s{sSCALE}, 0x3db504f3")
    a(f"s_mov_b32 s{sTM}, {TAGM}")
    a(f"v_lshrrev_b32 v7, 3, v{vLANE}")
    a(f"s_sub_u32 s{sWAVE}, s{sW12}, 4")
    a(f"s_cmp_lg_u32 s{sW12}, 0")
    a("s_cbranch_scc1 L_noinit")
    a(f"v_lshlrev_b32 v4, 2, v{vLANE}")
    a(f"v_add_u32 v4, {ZB}, v4")
    a("v_mov_b32 v5, 0")
    a("ds_write_b32 v4, v5")
    a(f"ds_write_b32 v4, v5 offset:{QFL - ZB - 128}")
    a("L_noinit:")

    def kargs():
        a("s_waitcnt lgkmcnt(0)")
        if stamps:
            a(f"v_writelane_b32 v{vST}, s98, 0")

    def load_epoch():
        a(f"s_load_dword s{sEP}, s[{pWS}:{pWS+1}], {EPOCH}")

    def get_tag():
        a("s_waitcnt lgkmcnt(0)")
        a(f"s_add_u32 s{sEP}, s{sEP}, 1")
        a(f"s_and_b32 s{sTAG}, s{sEP}, {TAGM}")
        a(f"v_mov_b32 v{vTAG}, s{sTAG}")

    def wait_q():
        lp, dn = a.label("Lwq"), a.label("Lwqd")
        a(f"v_mov_b32 v4, {QFL}")
        a(f"s_mov_b32 s{sSPIN}, {spin*20}")
        a(f"{lp}:")
        a("ds_read_b32 v5, v4")
        a("s_waitcnt lgkmcnt(0)")
        a("v_cmp_ne_u32 vcc, 0, v5")
        a(f"s_cbranch_vccnz {dn}")
        a("s_sleep 1")
        a(f"s_sub_u32 s{sSPIN}, s{sSPIN}, 1")
        a(f"s_cbranch_scc0 {lp}")
        a(f"{dn}:")

    def wait_n(T):
        if T:
            a(f"s_waitcnt vmcnt({T-1})")

    def mod_tile(ngrp, srow0, scol, T, after_issue, before_issue):
        ACC, PT, W = 32, 64, 72
        vm = Vm(a)
        a(f"s_mul_i32 s10, s{srow0}, 12288")
        a(f"s_add_u32 s10, s10, s{scol}")
        a(f"s_mov_b32 s9, {8*12288}")
        a(f"v_mul_lo_u32 v8, v7, s9")
        a(f"v_and_b32 v9, 7, v{vLANE}")
        a(f"v_lshl_add_u32 v8, v9, 4, v8")
        a(f"v_bfe_u32 v10, v{vLANE}, 2, 1")
        a(f"v_lshlrev_b32 v10, 11, v10")
        a(f"v_lshl_add_u32 v10, v7, 4, v10")
        a(f"s_lshl_b32 s11, s{srow0}, 1")
        before_issue()
        srd(rT0, pWM, 12582912)
        srd(rT1, pC, 4096)
        for q4 in range(ngrp):
            tc = vm.issue(f"buffer_load_dwordx4 {R(ACC + q4*4)}, v10, {S4(rT1)}, s11 offen offset:{q4*128}")
        toks = {}

        def grp(q4):
            for e in range(8):
                a(f"s_add_u32 s9, s10, {(64*q4+e)*12288}")
                wait_n(T)
                toks[q4] = vm.issue(f"buffer_load_dwordx4 {R(W + (q4 % 3)*32 + e*4)}, v8, {S4(rT0)}, s9 offen {nt}")
        for q4 in range(min(ngrp, 3)):
            grp(q4)
        after_issue()
        if pure == 1:
            if ngrp == 4:
                vm.wait(toks[0])
                grp(3)
            a("s_waitcnt vmcnt(0)")
            a("s_branch L_fin")
        vm.wait(tc)
        a(f"s_mov_b32 s9, 0xbfb8aa3b")
        for i in range(4 * ngrp):
            lo(4, ACC + i)
            hi(5, ACC + i)
            a(f"v_mul_f32 v6, s9, v4\nv_mul_f32 v11, s9, v5")
            a(f"v_exp_f32 v6, v6\nv_exp_f32 v11, v11")
            a(f"v_add_f32 v6, 1.0, v6\nv_add_f32 v11, 1.0, v11")
            a(f"v_rcp_f32 v6, v6\nv_rcp_f32 v11, v11")
            a(f"v_mul_f32 v4, v4, v6\nv_mul_f32 v5, v5, v11")
            a(f"v_cvt_pk_bf16_f32 v{16+i}, v4, v5")
        a(f"v_and_b32 v11, 3, v{vLANE}")
        a(f"v_bfe_u32 v10, v{vLANE}, 4, 1")
        a(f"v_lshl_add_u32 v9, v10, 2, v11")
        a(f"v_lshrrev_b32 v10, 5, v{vLANE}")
        a(f"v_lshl_add_u32 v9, v9, 1, v10")
        a(f"v_bfe_u32 v10, v{vLANE}, 2, 1")
        for q4 in range(ngrp):
            vm.wait(toks[q4])
            for d in range(8):
                t = PT + (d & 1) * 4
                perm_operand(t, W + (q4 % 3) * 32, d)
                c = "0" if q4 == 0 else R(ACC + d * 4)
                a(f"v_mfma_f32_16x16x32_bf16 {R(ACC + d*4)}, {R(t)}, {R(16 + q4*4)}, {c}")
            if q4 + 3 < ngrp:
                grp(q4 + 3)
        O = 72
        for d in range(4):
            for r in range(4):
                a(f"v_permlane32_swap_b32 v{ACC + d*4 + r}, v{ACC + (d+4)*4 + r}")
        for d in range(4):
            for r in range(4):
                dpp_add(O + r * 4 + d, ACC + (d + 4) * 4 + r, ACC + d * 4 + r, 8)
        for r in range(1, 4):
            a(f"v_cmp_eq_u32 vcc, {r}, v11")
            for d in range(4):
                a(f"v_cndmask_b32 v{O+d}, v{O+d}, v{O + r*4 + d}, vcc")

    def tag4(d):
        a(f"v_add_u32 v{d}, {(T4+1)//2}, v{d}")
        a(f"v_bfi_b32 v{d}, {T4}, v{vTAG}, v{d}")

    def check4(regs):
        regs = list(regs)
        for r in regs:
            a(f"v_xor_b32 v{r}, v15, v{r}")
        a(f"v_or_b32 v{vBAD}, v{regs[0]}, v{regs[1]}")
        for i in range(2, len(regs), 2):
            a(f"v_or3_b32 v{vBAD}, v{vBAD}, v{regs[i]}, v{regs[i+1]}")
        a(f"v_and_b32 v{vBAD}, {T4}, v{vBAD}")
        a(f"v_or_b32_dpp v{vBAD}, v{vBAD}, v{vBAD} quad_perm:[1,0,3,2] row_mask:0xf bank_mask:0xf")
        a(f"v_or_b32_dpp v{vBAD}, v{vBAD}, v{vBAD} quad_perm:[2,3,0,1] row_mask:0xf bank_mask:0xf")
        a(f"v_or_b32_dpp v{vBAD}, v{vBAD}, v{vBAD} row_half_mirror row_mask:0xf bank_mask:0xf")

    def lds_wait(addr, val, cmp="eq"):
        lp, dn = a.label("Lw"), a.label("Lwd")
        a(f"v_mov_b32 v4, {addr}")
        a(f"s_mov_b32 s{sSPIN}, {spin*20}")
        a(f"{lp}:")
        a("ds_read_b32 v5, v4")
        a("s_waitcnt lgkmcnt(0)")
        a(f"v_cmp_{cmp}_u32 vcc, {val}, v5")
        a(f"s_cbranch_vccnz {dn}")
        a("s_sleep 1")
        a(f"s_sub_u32 s{sSPIN}, s{sSPIN}, 1")
        a(f"s_cbranch_scc0 {lp}")
        a(f"{dn}:")

    def get_loc():
        lp, dn = a.label("Lw"), a.label("Lwd")
        a(f"v_mov_b32 v4, {QFL+8}")
        a(f"s_mov_b32 s{sSPIN}, {spin*20}")
        a(f"{lp}:")
        a("ds_read_b32 v5, v4")
        a("s_waitcnt lgkmcnt(0)")
        a(f"v_cmp_ne_u32 vcc, 0, v5")
        a(f"s_cbranch_vccnz {dn}")
        a("s_sleep 1")
        a(f"s_sub_u32 s{sSPIN}, s{sSPIN}, 1")
        a(f"s_cbranch_scc0 {lp}")
        a(f"{dn}:")
        a(f"v_readfirstlane_b32 s{sLOC}, v5")

    def publish_moments(M, soff, with_quad=None):
        red4(M, ())
        a(f"v_add_f32_dpp v{M}, v{M}, v{M} quad_perm:[1,0,3,2] row_mask:0xf bank_mask:0xf")
        a(f"v_add_f32_dpp v{M}, v{M}, v{M} quad_perm:[2,3,0,1] row_mask:0xf bank_mask:0xf")
        a(f"v_add_f32_dpp v{M}, v{M}, v{M} row_half_mirror row_mask:0xf bank_mask:0xf")
        tag_round(M, M)
        untr(M)
        if with_quad is not None:
            a("s_mov_b64 exec, 0xff")
            for k in range(4):
                a(f"v_mov_b32 v{M+k}, v{with_quad+k}")
            a("s_mov_b64 exec, 0x101ff")
            a(f"buffer_store_dwordx4 {R(M)}, v{M+4}, {S4(rWS)}, s{soff} offen sc1")
            a(FULL)
            return
        a("s_mov_b64 exec, 0x101")
        a(f"buffer_store_dwordx4 {R(M)}, v{M+4}, {S4(rWS)}, s{soff} offen sc1")
        a(FULL)

    def moment_addr(d, kp, soff, kind):
        a(f"v_lshlrev_b32 v{d}, 1, v{vLANE}")
        a(f"s_add_u32 s{soff}, s75, {XS + kind*8192}")

    def hopB1():
        a(f"v_and_b32 v15, {T4}, v{vTAG}")
        a(f"v_lshrrev_b32 v7, 3, v{vLANE}")
        a(f"v_and_b32 v8, 7, v{vLANE}")
        a(f"v_lshlrev_b32 v9, 15, v7")
        a(f"v_lshl_add_u32 v9, v8, 4, v9")
        a(f"s_lshl_b32 s10, s{sL}, 7")
        a(f"s_add_u32 s11, s10, {QFN}")
        a(f"s_add_u32 s10, s10, {QP}")
        a(f"v_lshlrev_b32 v10, 4, v{vLANE}")
        get_loc()
        lds_wait(QFL + 4, 2)
        if bdelay:
            a(f"s_sleep {bdelay}")
        pollx(lambda: a(f"buffer_load_dwordx4 {R(32)}, v9, {S4(rWS)}, s10 offen sc1"), lambda: check4(range(32, 36)),
              f2=True, slp=cslp, name='b')
        red4(32, (8,))
        a("v_cvt_pk_bf16_f32 v32, v32, v32")
        a(f"v_bfi_b32 v32, s{sHI}, v32, v{vTAG}")
        untr(32)
        a("s_mov_b64 exec, 0xff")
        store_grp("buffer_store_dwordx4", R(32), 10, 11)
        a(FULL)
        a(f"v_mov_b32 v4, {QFL+4}\nv_mov_b32 v5, 3")
        a("ds_write_b32 v4, v5")
        a("s_waitcnt lgkmcnt(0)")
        stamp(14)
        a("s_branch L_fin")

    def hopB2():
        a(f"v_lshlrev_b32 v9, 4, v{vLANE}")
        a(f"s_lshl_b32 s10, s{sXCD}, 12")
        a(f"s_add_u32 s10, s10, {QFN}")
        lds_wait(QFL + 4, 3)

        def ld():
            for i in range(4):
                a(f"buffer_load_dwordx4 {R(32 + i*4)}, v9, {S4(rWS)}, s10 offen offset:{i*1024} sc1")
        pollx(ld, lambda: check_regs(range(32, 48)), slp=cslp, name='c')
        for e in range(8):
            a(f"v_perm_b32 v{48+e}, v{33+2*e}, v{32+2*e}, s{sSELHI}")
        a(f"v_and_b32 v9, 15, v{vLANE}")
        a(f"v_lshlrev_b32 v9, 4, v9")
        a(f"v_bfe_u32 v10, v{vLANE}, 4, 1")
        a(f"v_lshl_add_u32 v9, v10, 3, v9")
        a(f"v_lshrrev_b32 v10, 5, v{vLANE}")
        a(f"v_lshl_add_u32 v9, v10, 8, v9")
        a(f"v_add_u32 v9, {QB}, v9")
        for i in range(4):
            a(f"ds_write_b64 v9, {R(48 + 2*i, 2)} offset:{i*512}")
        a(f"v_mov_b32 v4, {QFL}\nv_mov_b32 v5, 2")
        a("s_waitcnt lgkmcnt(0)")
        a("ds_write_b32 v4, v5")
        a("s_waitcnt lgkmcnt(0)")
        stamp(4)
        a("s_branch L_fin")

    def hopB(half):
        a(f"v_and_b32 v15, {T4}, v{vTAG}")
        a(f"v_lshlrev_b32 v9, 4, v{vLANE}")
        a(f"s_lshl_b32 s10, s{sXCD}, 12")
        a(f"s_add_u32 s10, s10, {QP + half*2048}")
        for i in range(bdelay):
            a("s_sleep 37")

        def ld():
            for p in range(8):
                a(f"s_add_u32 s9, s10, {p*32768}")
                for i in range(2):
                    a(f"buffer_load_dwordx4 {R(32 + p*8 + i*4)}, v9, {S4(rWS)}, s9 offen offset:{i*1024} sc1")
        pollx(ld, lambda: check4(range(32, 96)), f2=True, slp=cslp)
        for st in (32, 16, 8):
            for e in range(st):
                a(f"v_add_f32 v{32+e}, v{32+e}, v{32+st+e}")
        for e in range(4):
            a(f"v_cvt_pk_bf16_f32 v{40+e}, v{32+2*e}, v{33+2*e}")
        a(f"v_lshlrev_b32 v9, 3, v{vLANE}")
        a(f"v_add_u32 v9, {QB + half*1024}, v9")
        for i in range(2):
            a(f"ds_write_b64 v9, {R(40 + 2*i, 2)} offset:{i*512}")
        a(f"v_mov_b32 v4, {QFL}\nv_mov_b32 v5, 1")
        a("s_waitcnt lgkmcnt(0)")
        a("s_mov_b64 exec, 1")
        a("ds_add_u32 v4, v5")
        a(FULL)
        a("s_waitcnt lgkmcnt(0)")
        stamp(4)
        a("s_branch L_fin")

    def f2_pack(src, dst):
        for k in range(4):
            a(f"v_mov_b32 v{dst+2*k}, v{src+k}")
            a(f"v_mov_b32 v{dst+2*k+1}, s{sEP}")

    def consumer_ids():
        a(f"s_lshr_b32 s12, s{sAI}, 2")
        a(f"s_and_b32 s13, s{sAI}, 3")
        a(f"s_lshl_b32 s13, s13, 5")
        a(f"s_lshl_b32 s9, s{sXCD}, 7")
        a(f"s_add_u32 s13, s13, s9")
        a(f"s_lshl_b32 s75, s12, 12")
        a(f"s_lshl_b32 s9, s13, 2")
        a(f"s_add_u32 s75, s75, s9")

    def w1_dma(vm, T, lo_=0, hi_=8, va=8, vb=9, sa=10, sb=11):
        srd(rT0, pW1, 7340032)
        a(f"v_lshrrev_b32 v{va}, 4, v{vLANE}")
        a(f"v_mul_u32_u24 v{va}, 7168, v{va}")
        a(f"v_and_b32 v{vb}, 15, v{vLANE}")
        a(f"v_lshl_add_u32 v{va}, v{vb}, 4, v{va}")
        a(f"s_and_b32 s{sa}, s{sBI}, 3")
        a(f"s_lshl_b32 s{sa}, s{sa}, 3")
        a(f"s_add_u32 s{sa}, s{sa}, s{sWAVE}")
        a(f"s_mul_i32 s{sa}, s{sa}, {32*7168}")
        a(f"s_lshr_b32 s{sb}, s{sBI}, 2")
        a(f"s_lshl_b32 s{sb}, s{sb}, 8")
        a(f"s_add_u32 s{sa}, s{sa}, s{sb}")
        a(f"s_lshl_b32 s{sb}, s{sWAVE}, 13")
        t = None
        for i in range(lo_, hi_):
            a(f"s_add_u32 m0, s{sb}, {WT + i*1024}")
            a(f"s_add_u32 s9, s{sa}, {4*i*7168}")
            wait_n(T)
            t = vm.issue(f"buffer_load_dwordx4 v{va}, {S4(rT0)}, s9 offen {nt} lds")
        return t

    a(f"s_cmp_eq_u32 s{sW12}, 1")
    a("s_cbranch_scc1 L_moda")
    a(f"s_cmp_ge_u32 s{sW12}, 4")
    a("s_cbranch_scc1 L_att")
    a(f"s_cmp_eq_u32 s{sW12}, 0")
    a("s_cbranch_scc1 L_chain")
    a(f"s_cmp_eq_u32 s{sW12}, 2")
    a("s_cbranch_scc1 L_red")

    if codewarm:
        lw = a.label("Lnowarm")
        a(f"s_cmp_lt_u32 s{sIDX}, 30")
        a(f"s_cbranch_scc1 {lw}")
        a("s_getpc_b64 s[10:11]")
        a("L_pc0:")
        a(f"v_lshlrev_b32 v8, 4, v{vLANE}")
        a(f"s_mov_b32 s9, 0")
        lp = a.label("Lwarm")
        a(f"{lp}:")
        a(f"v_min_u32 v9, L_end-L_pc0-16, v8")
        a(f"global_load_dwordx4 {R(64)}, v9, s[10:11]")
        a(f"v_add_u32 v8, 1024, v8")
        a(f"s_add_u32 s9, s9, 1024")
        a(f"s_cmp_lt_u32 s9, L_end-L_pc0")
        a(f"s_cbranch_scc1 {lp}")
        a(f"{lw}:")
    a(f"v_lshrrev_b32 v11, 4, v{vLANE}")
    a(f"s_mov_b32 s9, {8*12288}")
    a(f"v_mul_lo_u32 v8, v11, s9")
    a(f"v_and_b32 v9, 15, v{vLANE}")
    a(f"v_lshl_add_u32 v8, v9, 4, v8")
    a(f"v_and_b32 v6, 1, v{vLANE}")
    a(f"v_lshlrev_b32 v10, 11, v6")
    a(f"v_lshl_add_u32 v10, v11, 4, v10")
    a(f"s_and_b32 s12, s{sIDX}, 7")
    a(f"s_lshr_b32 s14, s{sIDX}, 3")
    a(f"s_mul_i32 s10, s12, {128*12288}")
    a(f"s_lshl_b32 s14, s14, 3")
    a(f"s_add_u32 s14, s14, s{sXCD}")
    a(f"s_lshl_b32 s9, s14, 8")
    a(f"s_add_u32 s10, s10, s9")
    a(f"s_add_u32 s10, s10, 4096")
    a(f"s_lshl_b32 s11, s12, 8")
    a(f"s_lshl_b32 s15, s12, 15")
    a(f"s_lshl_b32 s9, s14, 9")
    a(f"s_add_u32 s15, s15, s9")
    a(f"s_add_u32 s15, s15, {MODP}")
    kargs()
    load_epoch()
    srd(rWS, pWS, WS_BYTES)
    srd(rT0, pWM, 12582912)
    srd(rT1, pC, 4096)
    a("s_barrier")
    if mbgate:
        lds_wait(QFL + 4, mbgate, "le")
    BO, ACC, PTm, Wm = 16, 32, 64, 72
    vm = Vm(a)
    for blk in range(4):
        tc = vm.issue(f"buffer_load_dwordx4 {R(BO + blk*4)}, v10, {S4(rT1)}, s11 offen offset:{blk*64}")
    toks = {}

    def mblk(blk):
        for e in range(8):
            a(f"s_add_u32 s9, s10, {(32*blk+e)*12288}")
            wait_n(thrb)
            toks[blk] = vm.issue(f"buffer_load_dwordx4 {R(Wm + (blk % 3)*32 + e*4)}, v8, {S4(rT0)}, s9 offen {nt}")
    mblk(0)
    mblk(1)
    mblk(2)
    get_tag()
    vm.wait(tc)
    a(f"s_mov_b32 s13, 0xbfb8aa3b")
    for blk in range(4):
        for i in range(4 * blk, 4 * blk + 4):
            lo(4, BO + i)
            hi(5, BO + i)
            a(f"v_mul_f32 v2, s13, v4\nv_mul_f32 v3, s13, v5")
            a(f"v_exp_f32 v2, v2\nv_exp_f32 v3, v3")
            a(f"v_add_f32 v2, 1.0, v2\nv_add_f32 v3, 1.0, v3")
            a(f"v_rcp_f32 v2, v2\nv_rcp_f32 v3, v3")
            a(f"v_mul_f32 v4, v4, v2\nv_mul_f32 v5, v5, v3")
            a(f"v_cvt_pk_bf16_f32 v{BO+i}, v4, v5")
        vm.wait(toks[blk])
        for d in range(8):
            t = PTm + (d & 1) * 4
            perm_operand(t, Wm + (blk % 3) * 32, d)
            c = "0" if blk == 0 else R(ACC + d * 4)
            a(f"v_mfma_f32_16x16x32_bf16 {R(ACC + d*4)}, {R(t)}, {R(BO + blk*4)}, {c}")
        if blk + 3 < 4:
            mblk(blk + 3)
    a(f"v_bfe_u32 v9, v{vLANE}, 1, 1")
    a(f"v_bfe_u32 v10, v{vLANE}, 2, 2")
    a("v_cmp_eq_u32 vcc, 1, v9")
    for i in range(16):
        a(f"v_cndmask_b32 v{ACC+i}, v{ACC+i}, v{ACC+16+i}, vcc")
    for r in range(1, 4):
        a(f"v_cmp_eq_u32 vcc, {r}, v10")
        for k in range(4):
            a(f"v_cndmask_b32 v{ACC+4*k}, v{ACC+4*k}, v{ACC+4*k+r}, vcc")
    for k in range(4):
        tag_round(16 + k, ACC + 4 * k)
    a(f"v_lshl_add_u32 v10, v11, 2, v10")
    a(f"v_lshl_add_u32 v9, v10, 1, v9")
    a(f"v_lshlrev_b32 v9, 4, v9")
    a(f"v_lshl_add_u32 v9, v6, 14, v9")
    get_loc()
    store_grp("buffer_store_dwordx4", R(16), 9, 15)
    stamp(16)
    a(f"s_bitcmp1_b32 s{sIDX}, 0")
    a("s_cbranch_scc1 L_fin")
    a(f"s_cmp_ge_u32 s{sAI}, 8")
    a("s_cbranch_scc1 L_fin")
    GA, XV, B2V = 32, 48, 49
    lds_wait(QFL, 2)
    consumer_ids()
    srd(rT0, pX, 4096)
    srd(rT1, pB2, 2048)
    kperm(4, 5)
    a(f"v_and_b32 v8, 7, v{vLANE}")
    a(f"v_lshl_add_u32 v11, v8, 2, v4")
    a(f"v_lshlrev_b32 v5, 1, v11")
    a(f"s_lshr_b32 s9, s75, 1")
    a(f"buffer_load_ushort v{XV}, v5, {S4(rT0)}, s9 offen")
    a(f"s_lshl_b32 s9, s13, 1")
    a(f"buffer_load_ushort v{B2V}, v5, {S4(rT1)}, s9 offen")
    a(f"v_lshlrev_b32 v10, 15, v7")
    a(f"v_lshl_add_u32 v10, v8, 4, v10")
    a(f"s_lshl_b32 s14, s12, 14")
    a(f"s_lshl_b32 s9, s13, 2")
    a(f"s_add_u32 s14, s14, s9")

    def gloads():
        for k in range(4):
            a(f"s_add_u32 s9, s14, {MODP + k*4096}")
            a(f"buffer_load_dwordx4 {R(GA + 4*k)}, v10, {S4(rWS)}, s9 offen sc1")
    pollx(gloads, lambda: check_regs(range(GA, GA + 16)), slp=16, name='m')
    for k in range(4):
        red4(GA + 4 * k, (8,))
    rnd2(GA, GA + 12, 5)
    rnd2(GA + 4, GA + 8, 5)
    a(f"v_add_f32 v{GA+8}, 1.0, v{GA+8}")
    rnd1(GA + 8, GA + 8)
    a(f"v_or_b32 v{GA+4}, v{vTAG}, v{GA+4}\nv_or_b32 v{GA+8}, v{vTAG}, v{GA+8}")
    a(f"v_lshlrev_b32 v9, 2, v11")
    a(f"s_add_u32 s9, s75, {X1 + 8192}")
    a(f"s_add_u32 s10, s75, {X1 + 16384}")
    a(f"v_mov_b32 v60, v{GA+4}\nv_mov_b32 v64, v{GA+8}")
    untr(60)
    untr(64)
    a(f"v_lshlrev_b32 v68, 4, v{vLANE}")
    a("s_mov_b64 exec, 0xff")
    a(f"buffer_store_dwordx4 {R(60)}, v68, {S4(rWS)}, s9 offen sc1")
    a(f"buffer_store_dwordx4 {R(64)}, v68, {S4(rWS)}, s10 offen sc1")
    a(FULL)
    lo(XV, XV)
    lo(B2V, B2V)
    a(f"v_add_u32 v5, {XB}, v9")
    a(f"ds_write_b32 v5, v{GA+12} offset:128")
    a(f"ds_write_b32 v5, v{B2V} offset:256")
    a(f"ds_write_b32 v5, v{GA} offset:384")
    a(f"ds_write_b32 v5, v{XV} offset:512")
    a(f"v_xor_b32 v{GA+4}, v{vTAG}, v{GA+4}\nv_xor_b32 v{GA+8}, v{vTAG}, v{GA+8}")
    a(f"ds_write_b32 v5, v{GA+4}")
    a(f"ds_write_b32 v5, v{GA+8} offset:640")
    moment_addr(56, 4, 10, 1)
    a(f"v_mov_b32 v52, v{GA+8}")
    a(f"v_mul_f32 v53, v{GA+8}, v{GA+8}")
    a(f"v_mul_f32 v54, v{GA+8}, v{GA+4}")
    a(f"v_mov_b32 v55, v{GA+4}")
    a("s_mov_b32 exec_lo, 0xff00ff00\ns_mov_b32 exec_hi, 0xff00ff00")
    a(f"v_mul_f32 v52, v{GA+4}, v{GA+4}")
    a("v_mov_b32 v53, 0\nv_mov_b32 v54, 0\nv_mov_b32 v55, 0")
    a(FULL)
    publish_moments(52, 10)
    a("s_waitcnt lgkmcnt(0)")
    a("s_branch L_fin")

    a("L_moda:")
    a("s_setprio 3")
    a(f"s_lshr_b32 s12, s{sIDX}, 2")
    a(f"s_lshl_b32 s13, s12, 7")
    a(f"s_bfe_u32 s14, s{sIDX}, 0x10001")
    a(f"s_and_b32 s15, s{sIDX}, 1")
    a(f"s_lshl_b32 s88, s14, 11")
    a(f"s_lshl_b32 s9, s{sXCD}, 8")
    a(f"s_add_u32 s88, s88, s9")
    a(f"s_lshl_b32 s9, s15, 7")
    a(f"s_add_u32 s88, s88, s9")

    def after_a():
        a("s_barrier")
        load_epoch()
        srd(rWS, pWS, WS_BYTES)
        get_tag()
        a(f"s_lshl_b32 s13, s{sXCD}, 14")
        a(f"s_lshl_b32 s9, s12, 11")
        a(f"s_add_u32 s13, s13, s9")
        a(f"s_lshl_b32 s9, s14, 10")
        a(f"s_add_u32 s13, s13, s9")
        a(f"s_lshl_b32 s9, s15, 8")
        a(f"s_add_u32 s13, s13, s9")
        a(f"s_add_u32 s13, s13, {MA}")
        prewrite(64, 4, 9, 13)
    mod_tile(2, 13, 88, 0, after_a, kargs)
    for d in range(4):
        tag4(72 + d)
    a(f"v_lshlrev_b32 v9, 4, v9")
    a(f"v_lshl_add_u32 v9, v10, 9, v9")
    a(MASK8)
    a(f"buffer_store_dwordx4 {R(72)}, v9, {S4(rWS)}, s13 offen")
    a(FULL)
    a(f"v_mov_b32 v4, {QFL+12}\nv_mov_b32 v5, 1")
    a("ds_write_b32 v4, v5")
    stamp(1)
    a("s_getreg_b32 s88, hwreg(HW_REG_XCC_ID)")
    a("s_lshl_b32 s88, s88, 12")
    if xdelay:
        a(f"s_sleep {xdelay}")
    a(f"v_and_b32 v8, 31, v{vLANE}")
    a(f"v_lshlrev_b32 v8, 7, v8")
    a(f"s_lshl_b32 s10, s{sXCD}, 12")
    a(f"s_add_u32 s10, s10, {XID}")
    pollx(lambda: a(f"buffer_load_dwordx4 {R(32)}, v8, {S4(rWS)}, s10 offen sc1"), lambda: check_regs(range(32, 36)), name='x')
    if 'x' in skip:
        a("v_mov_b32 v32, s88")
    a("v_cmp_ne_u32 vcc, s88, v32")
    a("s_cmp_eq_u64 vcc, 0")
    a(f"s_cselect_b32 s{sLOC}, {2 if noloc else 1}, 2")
    a(f"v_mov_b32 v4, {QFL+8}\nv_mov_b32 v5, s{sLOC}")
    a("ds_write_b32 v4, v5")
    stamp(25)
    a(f"s_cmp_eq_u32 s{sLOC}, 1")
    a("s_cbranch_scc1 L_maok")
    a(MASK8)
    a(f"buffer_store_dwordx4 {R(72)}, v9, {S4(rWS)}, s13 offen sc1")
    a(FULL)
    a("L_maok:")
    if b2stage:
        hopB2()
    else:
        lds_wait(QFL + 4, 2)
        hopB(0)

    a("L_red:")
    kargs()
    srd(rWS, pWS, WS_BYTES)
    load_epoch()
    a("s_barrier")
    a("s_setprio 3")
    vm = Vm(a)
    srd(rT1, pX, 4096)
    a(f"v_lshrrev_b32 v10, 5, v{vLANE}")
    a(f"v_and_b32 v11, 31, v{vLANE}")
    a(f"v_lshlrev_b32 v9, 11, v10")
    a(f"v_lshl_add_u32 v9, v11, 4, v9")
    for q in range(4):
        vm.issue(f"buffer_load_dwordx4 {R(72 + q*4)}, v9, {S4(rT1)}, 0 offen offset:{q*512}")
    a(f"v_lshlrev_b32 v9, 11, v10")
    a(f"v_lshl_add_u32 v9, v11, 3, v9")
    a(f"s_lshl_b32 s11, s{sXCD}, 8")
    tx = vm.issue(f"buffer_load_dwordx2 {R(88, 2)}, v9, {S4(rT1)}, s11 offen")
    a("s_getreg_b32 s88, hwreg(HW_REG_XCC_ID)")
    a("s_lshl_b32 s88, s88, 12")
    a(f"v_lshlrev_b32 v4, 4, v{vLANE}")
    a(f"s_lshl_b32 s9, s{sL}, 7")
    a(f"s_add_u32 s9, s9, {XID}")
    get_tag()
    a(f"v_or_b32 v96, s88, v{vTAG}")
    a("v_mov_b32 v97, v96\nv_mov_b32 v98, v96\nv_mov_b32 v99, v96")
    a("s_mov_b64 exec, 0xff")
    if 'X' not in skip:
        a(f"buffer_store_dwordx4 {R(96)}, v4, {S4(rWS)}, s9 offen sc1")
    a(FULL)
    a(f"s_add_u32 s9, s9, {QFN - XID}")
    prewrite(100, 2, 6, 9)
    if pure == 1:
        a("s_branch L_fin")
    def touch(n, lo_bits, hi_shift, base):
        a(f"v_lshrrev_b32 v101, {lo_bits}, v{vLANE}")
        a(f"v_lshlrev_b32 v101, {hi_shift - 7}, v101")
        a(f"v_and_or_b32 v101, v{vLANE}, {(1 << lo_bits) - 1}, v101")
        a(f"v_lshlrev_b32 v101, 7, v101")
        a(f"s_add_u32 s9, s9, {base}")
        if n < 64:
            a(f"s_mov_b64 exec, {(1 << n) - 1:#x}" if n < 32 else "s_mov_b32 exec_hi, 0")
        a(f"buffer_load_dword v100, v101, {S4(rWS)}, s9 offen")
        if n < 64:
            a(FULL)
    if 'm' in ptall:
        a(f"s_lshl_b32 s9, s{sXCD}, 14\ns_lshl_b32 s10, s{sAI}, 10\ns_add_u32 s9, s9, s10")
        a(f"s_and_b32 s10, s{sIDX}, 1\ns_lshl_b32 s10, s10, 8\ns_add_u32 s9, s9, s10")
        touch(4, 1, 9, MA)
    if 'q' in ptall:
        a(f"s_lshl_b32 s9, s{sXCD}, 15\ns_lshl_b32 s10, s{sIDX}, 9\ns_add_u32 s9, s9, s10")
        touch(8, 2, 14, QP)
    if 'f' in ptall:
        for base in (QFN, OF, ML):
            a(f"s_mul_i32 s9, s{sL}, {128 * (ofstr if base == OF else 1)}")
            touch(1, 0, 7, base)
    if 'd' in ptall:
        a(f"s_and_b32 s9, s{sIDX}, 7\ns_lshl_b32 s9, s9, 15")
        a(f"s_lshr_b32 s10, s{sIDX}, 3\ns_lshl_b32 s10, s10, 12\ns_add_u32 s9, s9, s10")
        a(f"s_lshl_b32 s10, s{sXCD}, 9\ns_add_u32 s9, s9, s10")
        touch(8, 2, 14, MODP)
    if 'o' in ptall:
        a(f"s_lshl_b32 s9, s{sXCD}, 17\ns_lshl_b32 s10, s{sIDX}, 9\ns_add_u32 s9, s9, s10")
        touch(32, 2, 14, OP)
    a(f"s_bitcmp1_b32 s{sIDX}, 0")
    a("s_cbranch_scc1 L_tB")
    if 'x' in ptall:
        a(f"s_lshl_b32 s9, s{sAI}, 13\ns_lshl_b32 s10, s{sXCD}, 9\ns_add_u32 s9, s9, s10")
        touch(8, 2, 12, XP)
    a(f"s_cmp_ge_u32 s{sBI}, 112")
    a("s_cbranch_scc1 L_tD")
    if 'y' in ptall:
        a(f"s_lshl_b32 s9, s{sBI}, 13")
        touch(64, 6, 13, YP)
    if 'x' in ptall:
        a(f"s_cmp_ge_u32 s{sAI}, 8")
        a("s_cbranch_scc1 L_tD")
        consumer_ids()
        a("s_mov_b32 s9, s75")
        touch(2, 0, 13, X1 + 8192)
        a("s_mov_b32 s9, s75")
        touch(1, 0, 13, XS + 8192)
        a(f"s_mul_i32 s9, s75, {xstr}")
        touch(1, 0, 7, XH)
        a(f"s_mul_i32 s9, s75, {xstr}")
        touch(1, 0, 7, XH + xrec)
    a("s_branch L_tD")
    a("L_tB:")
    a(f"s_cmp_ge_u32 s{sBI}, 112")
    a("s_cbranch_scc1 L_tD")
    if 'x' in ptall:
        a(f"s_lshl_b32 s9, s{sBI}, 10")
        touch(8, 3, 10, HP)
    a("L_tD:")
    nmin = ('X' not in skip) + ('m' in ptall) + ('q' in ptall) + 3 * ('f' in ptall) + ('d' in ptall) + ('o' in ptall)
    a(f"s_waitcnt vmcnt({nmin})")
    a("v_mov_b32 v4, 0\nv_mov_b32 v5, 0")
    for i in range(16):
        lo(6, 72 + i)
        hi(8, 72 + i)
        a(f"v_add_f32 v4, v4, v6\nv_fmac_f32 v5, v6, v6")
        a(f"v_add_f32 v4, v4, v8\nv_fmac_f32 v5, v8, v8")
    for r in (1, 2, 4, 8):
        dpp_add(4, 4, 4, r)
        dpp_add(5, 5, 5, r)
    allred(4, 6, "v_add_f32", (16,))
    allred(5, 6, "v_add_f32", (16,))
    ln_stats(4, 5, 6, 8, 9)
    for i in range(2):
        lo(24 + 2 * i, 88 + i)
        hi(25 + 2 * i, 88 + i)
        ln_apply(24 + 2 * i, 25 + 2 * i, 6, 8, 9)
    a(f"v_and_b32 v15, {T4}, v{vTAG}")
    a(f"v_lshlrev_b32 v9, 4, v{vLANE}")
    a(f"s_lshl_b32 s10, s{sXCD}, 14")
    a(f"s_add_u32 s10, s10, {MA}")

    if agate:
        lds_wait(QFL + 12, 1)
    if adelay:
        a(f"s_sleep {adelay}")

    def ldA():
        for p in range(8):
            if p % 2 == 0:
                a(f"s_add_u32 s9, s10, {p*2048}")
            for wh in range(2):
                a(f"buffer_load_dwordx4 {R(32 + p*8 + wh*4)}, v9, {S4(rWS)}, s9 offen offset:{(p % 2)*2048 + wh*1024} sc1")
    pollx(ldA, lambda: check4(range(32, 96)), f2=True, slp=cslp, name='a')
    stamp(2)
    for st in (32, 16, 8):
        for e in range(st):
            a(f"v_add_f32 v{32+e}, v{32+e}, v{32+st+e}")
    for i in range(2):
        s0, c0, l0 = 32 + 2 * i, 36 + 2 * i, 24 + 2 * i
        rnd2(s0, s0 + 1, 6)
        rnd2(c0, c0 + 1, 6)
        a(f"v_add_f32 v{c0}, 1.0, v{c0}\nv_add_f32 v{c0+1}, 1.0, v{c0+1}")
        rnd2(c0, c0 + 1, 6)
        a(f"v_mul_f32 v{c0}, v{c0}, v{l0}\nv_mul_f32 v{c0+1}, v{c0+1}, v{l0+1}")
        rnd2(c0, c0 + 1, 6)
        a(f"v_add_f32 v{c0}, v{c0}, v{s0}\nv_add_f32 v{c0+1}, v{c0+1}, v{s0+1}")
        a(f"v_cvt_pk_bf16_f32 v{40+i}, v{c0}, v{c0+1}")
    a(f"v_lshlrev_b32 v9, 3, v{vLANE}")
    a(f"v_add_u32 v9, {HB}, v9")
    a(f"ds_write_b64 v9, {R(40, 2)}")
    a(f"v_mov_b32 v4, {QFL+4}\nv_mov_b32 v5, 1")
    a("s_waitcnt lgkmcnt(0)")
    a("ds_write_b32 v4, v5")
    stamp(17)
    if b2stage:
        hopB1()
    else:
        lds_wait(QFL + 4, 2)
        hopB(1)

    a("L_chain:")
    a("s_setprio 3")
    W = 40
    a(f"v_lshrrev_b32 v11, 4, v{vLANE}")
    a(f"v_lshlrev_b32 v8, 16, v11")
    a(f"v_and_b32 v15, 15, v{vLANE}")
    a(f"v_lshl_add_u32 v8, v15, 4, v8")
    a(f"s_lshl_b32 s10, s{sXCD}, 20")
    a(f"s_lshl_b32 s11, s{sIDX}, 8")
    a(f"s_add_u32 s10, s10, s11")
    kargs()
    srd(rT0, pWQ, 8388608)
    srd(rWS, pWS, WS_BYTES)
    load_epoch()
    a("s_barrier")
    for blk in range(4):
        for e in range(8):
            a(f"s_add_u32 s9, s10, {(32*blk+e)*8192}")
            wait_n(thrq)
            a(f"buffer_load_dwordx4 {R(W + blk*32 + e*4)}, v8, {S4(rT0)}, s9 offen {nt}")
    if kgate:
        a(f"s_waitcnt vmcnt({kgate})")
        a(f"v_mov_b32 v4, {QFL+20}\nv_mov_b32 v5, 1")
        a("ds_write_b32 v4, v5")
    if stamps == 1:
        a("s_waitcnt vmcnt(0)")
        stamp(18)
    if pure == 1:
        a("s_branch L_fin")
    get_tag()
    a(f"v_bfe_u32 v6, v{vLANE}, 2, 1")
    a(f"v_lshlrev_b32 v8, 8, v6")
    a(f"v_lshl_add_u32 v8, v11, 4, v8")
    a(f"v_add_u32 v8, {HB}, v8")
    a(f"v_mov_b32 v7, {ZB}")
    a(f"v_lshrrev_b32 v9, 5, v{vLANE}")
    a(f"v_lshl_add_u32 v9, v9, 4, v15")
    a(f"v_lshlrev_b32 v9, 4, v9")
    a(f"v_and_b32 v6, 1, v11")
    a(f"v_lshl_add_u32 v9, v6, 14, v9")
    a(f"s_lshl_b32 s10, s{sXCD}, 15")
    a(f"s_lshl_b32 s11, s{sIDX}, 9")
    a(f"s_add_u32 s10, s10, s11")
    a(f"s_add_u32 s10, s10, {QP}")
    lds_wait(QFL + 4, 1)
    a("s_waitcnt vmcnt(0)")
    stamp(19)
    ACC = 4
    first = True
    for d in range(8):
        m16 = (0x11 << (d & 3)) << (8 * (d >> 2))
        m32 = m16 | (m16 << 16)
        a(f"s_mov_b32 vcc_lo, {m32:#x}\ns_mov_b32 vcc_hi, {m32:#x}")
        a(f"v_cndmask_b32 v10, v7, v8, vcc")
        for blk in range(4):
            a(f"ds_read_b128 {R(16 + blk*4)}, v10 offset:{blk*64}")
        for blk in range(4):
            t = 32 + (blk & 1) * 4
            perm_operand(t, W + blk * 32, d)
            a(f"s_waitcnt lgkmcnt({3-blk})")
            a(f"v_mfma_f32_16x16x32_bf16 {R(2)}, {R(16 + blk*4)}, {R(t)}, {'0' if first else R(2)}")
            first = False
    for d in range(4):
        tag4(2 + d)
    if 'Q' not in skip:
        a(f"buffer_store_dwordx4 {R(2)}, v9, {S4(rWS)}, s10 offen {qpol}")
    a(f"v_mov_b32 v8, {QFL+4}\nv_mov_b32 v7, 2")
    a("ds_write_b32 v8, v7")
    a("s_waitcnt lgkmcnt(0)")
    stamp(3)
    if hpt:
        a(f"s_bitcmp1_b32 s{sIDX}, 0")
        a("s_cbranch_scc1 L_ptB")
        a(f"v_lshrrev_b32 v9, 1, v{vLANE}")
        a(f"v_lshlrev_b32 v9, 9, v9")
        a(f"v_and_b32 v10, 1, v{vLANE}")
        a(f"v_lshl_add_u32 v9, v10, 7, v9")
        a(f"s_lshr_b32 s9, s{sL}, 2")
        a(f"s_lshl_b32 s10, s9, 14")
        a(f"s_and_b32 s9, s{sIDX}, 3")
        a(f"s_lshl_b32 s9, s9, 7")
        a(f"s_add_u32 s10, s10, s9")
        a(f"s_add_u32 s10, s10, {OP}")
        a(f"buffer_load_dword v16, v9, {S4(rWS)}, s10 offen {ptpol}")
        a(f"v_bfe_u32 v9, v{vLANE}, 2, 2")
        a(f"v_lshlrev_b32 v9, 12, v9")
        a(f"v_and_b32 v10, 3, v{vLANE}")
        a(f"v_lshl_add_u32 v9, v10, 7, v9")
        a(f"s_lshl_b32 s10, s{sIDX}, 13")
        a(f"s_lshl_b32 s9, s{sXCD}, 9")
        a(f"s_add_u32 s10, s10, s9")
        a(f"s_add_u32 s10, s10, {XP}")
        a(f"buffer_load_dword v17, v9, {S4(rWS)}, s10 offen {ptpol}")
        a("s_branch L_fin")
        a("L_ptB:")
        a(f"v_and_b32 v9, 7, v{vLANE}")
        a(f"v_lshlrev_b32 v9, 7, v9")
        a(f"s_lshl_b32 s10, s{sBI}, 10")
        a(f"s_add_u32 s10, s10, {HP}")
        a(f"buffer_load_dword v16, v9, {S4(rWS)}, s10 offen {ptpol}")
    a("s_branch L_fin")

    QF, DT, PT, KV = 16, 24, 32, 40
    if pure >= 2:
        def drop(l):
            if "buffer_store" in l:
                if pure in (3, 4): return True
                if pure == 5 and "sc1" in l: return True
                if pure == 6 and "sc1" not in l: return True
            if "buffer_load" in l and "sc1" in l and pure in (2, 4, 5, 6): return True
            return False
        a.lines = [l for l in a.lines if not drop(l)]
    a("L_att:")
    a(f"s_lshl_b32 s{sKV}, s{sL}, 18")
    a(f"s_lshl_b32 s9, s{sWAVE}, 12")
    a(f"s_add_u32 s{sKV}, s{sKV}, s9")
    a(f"v_lshlrev_b32 v{vOV}, 4, v{vLANE}")
    a(f"v_and_b32 v6, 3, v{vLANE}")
    a(f"v_lshlrev_b32 v6, 10, v6")
    a(f"v_bfe_u32 v5, v{vLANE}, 2, 1")
    a(f"v_lshl_add_u32 v6, v5, 8, v6")
    a(f"v_lshl_add_u32 v{vOK}, v7, 4, v6")
    if klin == 1:
        a(f"v_and_b32 v6, 7, v{vLANE}\nv_lshlrev_b32 v6, 8, v6\nv_lshl_add_u32 v{vOK}, v7, 4, v6")
    if klin == 2:
        a(f"v_mov_b32 v{vOK}, v{vOV}")
    a(f"v_mov_b32 v4, {QFL}")
    a("s_mov_b64 vcc, 0")
    kargs()
    srd(rK, pK, 0x4000000)
    srd(rV, pV, 0x4000000)
    srd(rWS, pWS, WS_BYTES)
    a("s_barrier")
    def tile_setup(va, vb, so, sp, skip):
        l1, l2 = a.label("Lts"), a.label("Lts")
        a(f"v_lshrrev_b32 v{va}, 4, v{vLANE}")
        a(f"v_and_b32 v{vb}, 15, v{vLANE}")
        a(f"s_bitcmp1_b32 s{sIDX}, 0")
        a(f"s_cbranch_scc1 {l1}")
        srd(rT2, pWO, 8388608)
        a("s_mov_b32 s20, 64")
        a(f"s_lshl_b32 s{so}, s{sAI}, 19")
        a(f"s_lshl_b32 s9, s{sXCD}, 8")
        a(f"s_add_u32 s{so}, s{so}, s9")
        a(f"s_mov_b32 s{sp}, 2048")
        a(f"s_branch {l2}")
        a(f"{l1}:")
        a(f"s_cmp_ge_u32 s{sBI}, 112")
        a(f"s_cselect_b32 s20, 0, 64")
        srd(rT2, pW1, 7340032)
        a(f"s_and_b32 s{so}, s{sBI}, 3")
        a(f"s_mul_i32 s{so}, s{so}, {256*7168}")
        a(f"s_lshr_b32 s9, s{sBI}, 2")
        a(f"s_lshl_b32 s9, s9, 8")
        a(f"s_add_u32 s{so}, s{so}, s9")
        a(f"s_mov_b32 s{sp}, 7168")
        a(f"{l2}:")
        a(f"v_mul_lo_u32 v{va}, v{va}, s{sp}")
        a(f"v_lshl_add_u32 v{va}, v{vb}, 4, v{va}")
        a(f"s_lshl_b32 s{sp}, s{sp}, 2")

    def tile_rest(vm, va, so, sp, lo_, hi_):
        t = None
        a(f"s_add_u32 s11, s{sWAVE}, {8*lo_}")
        a(f"s_mul_i32 s9, s11, s{sp}")
        a(f"s_add_u32 s9, s9, s{so}")
        a(f"s_lshl_b32 m0, s11, 10")
        a(f"s_lshl_b32 s11, s{sp}, 3")
        for i in range(lo_, hi_):
            t = vm.issue(f"buffer_load_dwordx4 v{va}, {S4(rT2)}, s9 offen {nt} lds")
            if i + 1 < hi_:
                a(f"s_add_u32 m0, m0, 8192")
                a(f"s_add_u32 s9, s9, s11")
        return t

    def claim(fail, va=4, vb=5):
        a(f"v_mov_b32 v{va}, {QFL}\nv_mov_b32 v{vb}, 1")
        a("s_mov_b64 exec, 1")
        a(f"ds_add_rtn_u32 v{vb}, v{va}, v{vb} offset:16")
        a(FULL)
        a("s_waitcnt lgkmcnt(0)")
        a(f"v_readfirstlane_b32 s21, v{vb}")
        a(f"s_cmp_ge_u32 s21, s20")
        a(f"s_cbranch_scc1 {fail}")
        a("s_lshl_b32 m0, s21, 10")
        a("s_mul_i32 s9, s21, s19")
        a("s_add_u32 s9, s9, s18")
        a(f"buffer_load_dwordx4 v2, {S4(rT2)}, s9 offen {nt} lds")

    def claim_all():
        lp, dn = a.label("Lca"), a.label("Lcad")
        a(f"{lp}:")
        claim(dn)
        a(f"s_branch {lp}")
        a(f"{dn}:")

    if kgate:
        lds_wait(QFL + 20, 1)
        a(f"v_mov_b32 v4, {QFL}")
        a("s_mov_b64 vcc, 0")
    load_epoch()
    thr_n = [0]

    if xmask:
        a(f"s_lshr_b32 s74, {xmask}, s{sXCD}")

    def wait_x(T, extra):
        if xmask and T:
            lsk = a.label("Lx")
            a("s_bitcmp1_b32 s74, 0")
            a(f"s_cbranch_scc1 {lsk}")
            wait_n(T)
            a(f"{lsk}:")
            wait_n(T + extra)
        else:
            wait_n(T)

    def thr_wait():
        if thr2 == thr:
            wait_x(thr, xk)
            return
        thr_n[0] += 1
        lsk = a.label("Lthr")
        a(f"s_cbranch_vccnz {lsk}")
        if thr_n[0] % 2 == 0:
            a("ds_read_b32 v5, v4")
        a(f"s_waitcnt vmcnt({thr-1})")
        if thr_n[0] % 2 == 0:
            a("s_waitcnt lgkmcnt(0)")
            a("v_cmp_eq_u32 vcc, 2, v5")
        a(f"{lsk}:")
        wait_n(thr2)

    vm = Vm(a)
    order = [2, 3, 0, 1, 4, 5, 6, 7]
    pos = {s: i for i, s in enumerate(order)}
    tk = {}
    for s in order:
        a(f"s_add_u32 s9, s{sKV}, {pos[s]*32768}")
        for t in range(2):
            for h in range(2):
                if thr:
                    thr_wait()
                tk[s] = vm.issue(f"buffer_load_dwordx4 {R(KV + s*16 + t*8 + h*4)}, v{vOK}, {S4(rK)}, s9 offen offset:{(t*512 + h*128, t*2048 + h*128, t*2048 + h*1024)[klin]} {nt}")
    vblk = [KV + 32, KV + 64, KV + 96, KV + 32]
    tv = [None] * 4

    def vload(v):
        for e in range(8):
            if e % 4 == 0:
                a(f"s_add_u32 s9, s{sKV}, {(2*v + e//4)*32768}")
            wait_n(thrv)
            tv[v] = vm.issue(f"buffer_load_dwordx4 {R(vblk[v] + e*4)}, v{vOV}, {S4(rV)}, s9 offen offset:{(e % 4)*1024} {nt}")
    vnext = [0]

    def vslot():
        if not fine:
            return
        n = vnext[0]
        vnext[0] += 1
        v, e = n // 8, n % 8
        if e % 4 == 0:
            a(f"s_add_u32 s{sDU}, s{sKV}, {(2*v + e//4)*32768}")
        wait_x(thrv, xv)
        tv[v] = vm.issue(f"buffer_load_dwordx4 {R(vblk[v] + e*4)}, v{vOV}, {S4(rV)}, s{sDU} offen offset:{(e % 4)*1024} {nt}")
    stamp(20)
    if pure:
        vm.wait(tk[3]); vload(0); vm.wait(tk[5]); vload(1); vm.wait(tk[7]); vload(2); vm.wait(tv[0]); vload(3)
        a("s_waitcnt vmcnt(0)")
        stamp(8)
        a("s_branch L_fin")
    get_tag()
    tile_setup(2, 5, 18, 19, None)
    if fill:
        a("L_fill:")
        wait_n(thr)
        a(f"v_mov_b32 v4, {QFL}")
        a("ds_read_b32 v5, v4")
        a("s_waitcnt lgkmcnt(0)")
        a("v_cmp_eq_u32 vcc, 2, v5")
        a("s_cbranch_vccnz L_filld")
        claim("L_fillx")
        a("s_branch L_fill")
        a("L_fillx:")
    lds_wait(QFL, 2)
    a("L_filld:")
    stamp(5)
    a(f"v_and_b32 v8, 7, v{vLANE}")
    a(f"v_lshlrev_b32 v9, 8, v8")
    a(f"v_lshl_add_u32 v9, v7, 4, v9")
    a(f"v_add_u32 v9, {QB}, v9")
    a(f"ds_read_b128 {R(QF)}, v9")
    a(f"ds_read_b128 {R(QF+4)}, v9 offset:128")
    a("s_waitcnt lgkmcnt(0)")
    Sreg = [PT, PT + 4, KV, KV + 4, KV + 8, KV + 12, KV + 16, KV + 20]

    def qk_mfma(s, X, Y):
        vm.wait(tk[s])
        k0 = KV + s * 16
        a(f"v_mfma_f32_16x16x32_bf16 {R(X)}, {R(k0)}, {R(QF)}, 0")
        a(f"v_mfma_f32_16x16x32_bf16 {R(Y)}, {R(k0+8)}, {R(QF)}, 0")
        a(f"v_mfma_f32_16x16x32_bf16 {R(X)}, {R(k0+4)}, {R(QF+4)}, {R(X)}")
        a(f"v_mfma_f32_16x16x32_bf16 {R(Y)}, {R(k0+12)}, {R(QF+4)}, {R(Y)}")

    def qk_post(p, X, Y):
        S = Sreg[p]
        for r in range(4):
            a(f"v_permlane32_swap_b32 v{X+r}, v{Y+r}")
        for r in range(4):
            dpp_add(S + r, Y + r, X + r, 8)
        for r in (0, 2):
            rnd2(S + r, S + r + 1, 4)
            a(f"v_mul_f32 v{S+r}, s{sSCALE}, v{S+r}\nv_mul_f32 v{S+r+1}, s{sSCALE}, v{S+r+1}")
            rnd2(S + r, S + r + 1, 4)
        if p == 0:
            a(f"v_max3_f32 v5, v{S}, v{S+1}, v{S+2}")
            a(f"v_max_f32 v5, v5, v{S+3}")
        else:
            a(f"v_max3_f32 v5, v5, v{S}, v{S+1}")
            a(f"v_max3_f32 v5, v5, v{S+2}, v{S+3}")
    qk_mfma(2, PT, DT)
    qk_mfma(3, PT + 4, DT + 4)
    if not fine:
        vload(0)
    vslot()
    qk_post(0, PT, DT)
    vslot()
    qk_post(1, PT + 4, DT + 4)
    for s in (0, 1, 4, 5, 6, 7):
        vslot()
        qk_mfma(s, DT, DT + 4)
        if s == 5 and not fine:
            vload(1)
        qk_post(pos[s], DT, DT + 4)
    vslot()
    allred(5, 6, "v_max_f32", (32, 16))
    a(f"v_lshlrev_b32 v9, 5, v8")
    a(f"v_add_u32 v10, {MX}, v9")
    a(f"s_lshl_b32 s9, s{sWAVE}, 2")
    a(f"v_add_u32 v11, s9, v10")
    a("s_mov_b64 exec, 0xff")
    a(f"ds_write_b32 v11, v5")
    a(FULL)
    if vearly and not fine:
        vload(2)
    vslot()
    a("s_waitcnt lgkmcnt(0)")
    stamp(6)
    a("s_barrier")
    vslot()
    a(f"v_mov_b32 v4, {QFL+8}")
    a(f"ds_read_b128 {R(16)}, v10")
    a(f"ds_read_b128 {R(20)}, v10 offset:16")
    a(f"ds_read_b32 v4, v4")
    a("s_waitcnt lgkmcnt(0)")
    a(f"v_readfirstlane_b32 s{sLOC}, v4")
    a(f"v_max3_f32 v5, v16, v17, v18\nv_max3_f32 v5, v5, v19, v20\nv_max3_f32 v5, v5, v21, v22\nv_max_f32 v5, v5, v23")
    a(f"v_mul_f32 v6, s{sLOG2E}, v5")
    a("v_mov_b32 v4, 0")
    sl = [Sreg[p] + r for p in range(8) for r in range(4)]
    for i, x in enumerate(sl):
        if i in (8, 20):
            vslot()
        a(f"v_fma_f32 v{x}, v{x}, s{sLOG2E}, -v6")
        a(f"v_exp_f32 v{x}, v{x}")
        if i:
            a(f"v_add_f32 v4, v4, v{sl[i-1]}")
    a(f"v_add_f32 v4, v4, v{sl[31]}")
    vslot()
    for i in range(16):
        a(f"v_cvt_pk_bf16_f32 v{QF+i}, v{sl[2*i]}, v{sl[2*i+1]}")
    allred(4, 6, "v_add_f32", (32, 16))
    a("s_mov_b64 exec, 0xff")
    a(f"ds_write_b32 v11, v4 offset:{LX-MX}")
    a(FULL)
    vslot()
    a("s_waitcnt lgkmcnt(0)")
    a("s_barrier")
    vslot()
    a(f"s_cmp_lg_u32 s{sWAVE}, 4")
    a("s_cbranch_scc1 L_noml")
    a(f"ds_read_b128 {R(32)}, v10 offset:{LX-MX}")
    a(f"ds_read_b128 {R(36)}, v10 offset:{LX-MX+16}")
    a(f"s_lshl_b32 s10, s{sL}, 7")
    a(f"s_add_u32 s10, s10, {ML}")
    a(f"v_lshlrev_b32 v9, 4, v8")
    a("s_waitcnt lgkmcnt(0)")
    a("v_add_f32 v32, v32, v33\nv_add_f32 v34, v34, v35\nv_add_f32 v36, v36, v37\nv_add_f32 v38, v38, v39")
    a("v_add_f32 v32, v32, v34\nv_add_f32 v36, v36, v38\nv_add_f32 v33, v32, v36")
    tag_trunc(32, 5)
    tag_trunc(33, 33)
    a("v_mov_b32 v34, v32\nv_mov_b32 v35, v33")
    a("s_mov_b64 exec, 0xff")
    store_grp("buffer_store_dwordx4", R(32), 9, 10)
    a(FULL)
    a("L_noml:")
    if not vearly and not fine:
        vload(2)
    a(f"v_mul_u32_u24 v9, 528, v8")
    a(f"v_lshrrev_b32 v10, 4, v{vLANE}")
    a(f"v_lshl_add_u32 v9, v10, 4, v9")
    a(f"s_mul_i32 s9, s{sWAVE}, 4224")
    a(f"s_add_u32 s9, s9, {OC}")
    a(f"v_add_u32 v9, s9, v9")
    a(f"v_lshrrev_b32 v10, 5, v{vLANE}")
    a(f"v_mul_u32_u24 v10, {4*4224}, v10")
    a(f"v_and_b32 v11, 31, v{vLANE}")
    a(f"v_lshlrev_b32 v11, 4, v11")
    a(f"s_mul_i32 s9, s{sWAVE}, 528")
    a(f"s_add_u32 s9, s9, {OC}")
    a(f"v_add3_u32 v10, v10, v11, s9")
    a(f"s_lshl_b32 s10, s{sXCD}, 3")
    a(f"s_add_u32 s10, s10, s{sWAVE}")
    a(f"s_lshl_b32 s10, s10, 5")
    a(f"s_add_u32 s10, s10, s{sIDX}")
    a(f"s_lshl_b32 s11, s10, 9")
    a(f"s_add_u32 s11, s11, {OP}")
    if prew:
        prewrite(PT, 4, 8, 11)
        a(f"s_bitcmp1_b32 s{sIDX}, 0")
        a("s_cbranch_scc1 L_pwB")
        a(f"s_lshr_b32 s9, s{sWAVE}, 2")
        a(f"s_add_u32 s9, s9, s{sIDX}")
        a(f"s_lshl_b32 s9, s9, 13")
        a(f"s_lshl_b32 s10, s{sXCD}, 9")
        a(f"s_add_u32 s9, s9, s10")
        a(f"s_and_b32 s10, s{sWAVE}, 3")
        a(f"s_lshl_b32 s10, s10, 7")
        a(f"s_add_u32 s9, s9, s10")
        a(f"s_add_u32 s9, s9, {XP}")
        prewrite(PT, 3, 12, 9)
        a("s_branch L_pwD")
        a("L_pwB:")
        a(f"s_cmp_ge_u32 s{sBI}, 112")
        a("s_cbranch_scc1 L_pwD")
        a(f"s_lshl_b32 s9, s{sBI}, 10")
        a(f"s_lshl_b32 s10, s{sWAVE}, 6")
        a(f"s_add_u32 s9, s9, s10")
        a(f"s_add_u32 s9, s9, {HP}")
        prewrite(PT, 2, 9, 9)
        a("L_pwD:")
    SA = KV
    MLR, F = 104, 120
    a("s_mov_b32 s94, 0x00ff00ff\ns_mov_b32 s95, 0x00ff00ff")

    def mlloads():
        for i in range(4):
            a(f"buffer_load_dwordx4 {R(MLR + 4*i)}, v15, {S4(rWS)}, s89 offen offset:{i*1024} sc1")
    for v in range(4):
        if v == 3 and (w1pre or bpre):
            a(f"s_bitcmp1_b32 s{sIDX}, 0")
            a("s_cbranch_scc1 L_bp")
            for i in range(w1pre):
                claim("L_nw1p")
            a(f"s_waitcnt vmcnt({w1pre})")
            a("s_branch L_w1pd")
            a("L_bp:")
            for i in range(bpre):
                claim("L_nw1p")
            a(f"s_waitcnt vmcnt({bpre})")
            a("s_branch L_w1pd")
            a("L_nw1p:")
            vm.wait(tv[v])
            a("L_w1pd:")
        else:
            vm.wait(tv[v])
        for d in range(8):
            if v == 0 or (v in (1, 2) and d % 2 == 0):
                vslot()
            t = PT + (d & 1) * 4
            perm_operand(t, vblk[v], d)
            c = "0" if v == 0 else R(SA + d * 4)
            a(f"v_mfma_f32_16x16x32_bf16 {R(SA + d*4)}, {R(t)}, {R(QF + v*4)}, {c}")
            if v == 3 and ovl and d >= 2:
                a("s_mov_b64 exec, s[94:95]")
                a(f"ds_write_b128 v9, {R(SA + (d-2)*4)} offset:{(d-2)*64}")
                a(FULL)
        if v == 0 and not fine:
            vload(3)
        if v == 1:
            a(f"v_lshlrev_b32 v15, 7, v7")
            a(f"s_andn2_b32 s88, 1, s{sIDX}")
            a(f"s_lshl_b32 s88, s88, 3")
            a(f"s_or_b32 s88, s88, s{sWAVE}")
            a(f"s_cmp_ge_u32 s88, 2")
            a("s_cbranch_scc1 L_noml2")
            a(f"s_lshl_b32 s89, s{sXCD}, 12")
            a(f"s_lshr_b32 s9, s{sIDX}, 2")
            a(f"s_lshl_b32 s9, s9, 4")
            a(f"s_add_u32 s89, s89, s9")
            a(f"s_add_u32 s89, s89, {ML}")
            mlloads()
            a(f"v_lshlrev_b32 v0, 9, v7")
            a(f"v_lshl_add_u32 v0, v8, 4, v0")
            a(f"s_lshr_b32 s9, s{sL}, 2")
            a(f"s_lshl_b32 s90, s9, 14")
            a(f"s_and_b32 s9, s{sIDX}, 2")
            a(f"s_add_u32 s9, s9, s{sWAVE}")
            a(f"s_lshl_b32 s9, s9, 7")
            a(f"s_add_u32 s90, s90, s9")
            a(f"s_add_u32 s90, s90, {OP}")
            for i in range(1, 4):
                a(f"s_add_u32 s{90+i}, s90, {i*4096}")
            if pretouch:
                for i in range(4):
                    a(f"buffer_load_dword v{MLR+16+i}, v0, {S4(rWS)}, s{90+i} offen sc1")
            a("L_noml2:")
    assert not fine or vnext[0] == 32
    stamp(7)
    a(MASK8)
    for d in range(6 if ovl else 0, 8):
        a(f"ds_write_b128 v9, {R(SA + d*4)} offset:{d*64}")
    a(FULL)
    a(f"s_cmp_ge_u32 s88, 2")
    a("s_cbranch_scc1 L_nof")
    pollx(mlloads, lambda: check_regs(range(MLR, MLR + 16)), pre_issued=True)
    a(f"v_max3_f32 v5, v{MLR}, v{MLR+4}, v{MLR+8}\nv_max_f32 v5, v5, v{MLR+12}")
    dpp_max(5, 5, 5, 8)
    allred(5, 6, "v_max_f32", (16, 32))
    for i in range(4):
        a(f"v_sub_f32 v{F+i}, v{MLR+4*i}, v5")
        a(f"v_mul_f32 v{F+i}, s{sLOG2E}, v{F+i}")
        a(f"v_exp_f32 v{F+i}, v{F+i}")
    a(f"v_mul_f32 v5, v{F}, v{MLR+1}")
    for i in range(1, 4):
        a(f"v_fmac_f32 v5, v{F+i}, v{MLR+1+4*i}")
    dpp_add(5, 5, 5, 8)
    allred(5, 6, "v_add_f32", (16, 32))
    a("v_rcp_f32 v5, v5")
    for i in range(4):
        a(f"v_mul_f32 v{F+i}, v{F+i}, v5")
    a(f"s_add_u32 s89, s{sL}, s{sWAVE}")
    a(f"s_sub_u32 s89, s89, 1")
    a(f"s_mul_i32 s89, s89, {128*ofstr}")
    a(f"s_add_u32 s89, s89, {OF}")
    a("L_nof:")
    a("s_waitcnt lgkmcnt(0)")
    a("s_barrier")
    for k in range(4):
        a(f"ds_read_b128 {R(16 + 4*k)}, v10 offset:{k*4224}")
    a("s_waitcnt lgkmcnt(0)")
    for r in range(4):
        a(f"v_add_f32 v{16+r}, v{16+r}, v{20+r}\nv_add_f32 v{24+r}, v{24+r}, v{28+r}")
    for r in range(4):
        a(f"v_add_f32 v{16+r}, v{16+r}, v{24+r}")
    for r in range(4):
        a(f"v_mov_b32 v{20+r}, v{16+r}")
    for r in range(4):
        a(f"v_permlane32_swap_b32 v{16+r}, v{20+r}")
    for r in range(4):
        a(f"v_add_f32 v{16+r}, v{16+r}, v{20+r}")
    for r in range(4):
        tag_trunc(16 + r, 16 + r)
    a("s_mov_b32 exec_hi, 0")
    store_grp("buffer_store_dwordx4", R(16), 11, 11)
    a(FULL)
    stamp(8)

    def h1a():
        ln = a.label("Lnoh1a")
        a(f"s_cmp_ge_u32 s88, 2")
        a(f"s_cbranch_scc1 {ln}")

        def oloads():
            for i in range(4):
                a(f"buffer_load_dwordx4 {R(MLR + 4*i)}, v0, {S4(rWS)}, s{90+i} offen sc1")
        pollx(oloads, lambda: check_regs(range(MLR, MLR + 16)), slp=0)
        for k in range(4):
            a(f"v_mul_f32 v{MLR+k}, v{F}, v{MLR+k}")
            a(f"v_mul_f32 v{MLR+8+k}, v{F+2}, v{MLR+8+k}")
        for k in range(4):
            a(f"v_fmac_f32 v{MLR+k}, v{F+1}, v{MLR+4+k}")
            a(f"v_fmac_f32 v{MLR+8+k}, v{F+3}, v{MLR+12+k}")
        for k in range(4):
            a(f"v_add_f32 v{MLR+k}, v{MLR+k}, v{MLR+8+k}")
        red4(MLR, (8,))
        a(f"v_cvt_pk_bf16_f32 v{MLR}, v{MLR}, v{MLR}")
        a(f"v_bfi_b32 v{MLR}, s{sHI}, v{MLR}, v{vTAG}")
        untr(MLR)
        a("s_mov_b64 exec, 0xff")
        a(f"buffer_store_dwordx4 {R(MLR)}, v{vOV}, {S4(rWS)}, s89 offen sc1")
        a(FULL)
        stamp(24)
        if ackst:
            a("s_waitcnt vmcnt(0)")
            stamp(29)
        a(f"{ln}:")
    h1a()
    if notail:
        a("s_branch L_fin")
    a(f"s_bitcmp1_b32 s{sIDX}, 0")
    a("s_cbranch_scc1 L_tailB")

    def gemv8(W, Bv, acc, vrd):
        for s in range(8):
            a(f"ds_read_b128 {R(Bv + 4*s)}, v{vrd} offset:{s*64}")
        for s in range(8):
            a(f"s_waitcnt lgkmcnt({7-s})")
            c = "0" if s == 0 else R(acc)
            a(f"v_mfma_f32_16x16x32_bf16 {R(acc)}, {R(W + s*4)}, {R(Bv + 4*s)}, {c}")
        a(f"s_mov_b32 exec_lo, 0x00030003\ns_mov_b32 exec_hi, 0x00030003")
        for r in range(4):
            tag_trunc(acc + r, acc + r)

    vm = Vm(a)
    claim_all()
    WOP, W2O, W2R, AD, B1V = 72, 104, 136, 40, 29
    a(f"v_lshrrev_b32 v7, 4, v{vLANE}")
    a(f"v_and_b32 v9, 15, v{vLANE}")
    a(f"v_lshrrev_b32 v10, 5, v{vLANE}")
    a(f"v_and_b32 v5, 1, v7")
    a(f"v_lshlrev_b32 v20, 6, v5")
    a(f"v_bfe_u32 v6, v{vLANE}, 2, 2")
    a(f"v_lshl_add_u32 v20, v6, 3, v20")
    a(f"v_add_u32 v20, v20, v10")
    a(f"v_lshlrev_b32 v20, 8, v20")
    a(f"v_and_b32 v6, 3, v{vLANE}")
    a(f"v_lshl_add_u32 v20, v6, 3, v20")
    a(f"s_lshl_b32 s9, s{sWAVE}, 5")
    a(f"v_add_u32 v20, s9, v20")
    a(f"v_lshlrev_b32 v28, 12, v5")
    a(f"v_lshl_add_u32 v28, v9, 5, v28")
    a(f"v_lshl_add_u32 v28, v10, 4, v28")
    a(f"s_lshl_b32 s14, s{sBI}, 13")
    a(f"s_lshl_b32 s9, s{sWAVE}, 9")
    a(f"s_add_u32 s14, s14, s9")
    a(f"s_add_u32 s14, s14, {YP}")
    a(f"v_and_b32 v11, 31, v{vLANE}")
    a(f"v_lshlrev_b32 v21, 14, v10")
    a(f"v_lshl_add_u32 v21, v11, 4, v21")
    a(f"s_lshl_b32 s74, s{sAI}, 10")
    a(f"s_add_u32 s74, s74, {OF}")
    a(f"s_lshl_b32 s9, s{sWAVE}, 10")
    a(f"s_add_u32 s9, s9, {OB}")
    a(f"v_lshlrev_b32 v22, 9, v10")
    a(f"v_lshl_add_u32 v22, v11, 3, v22")
    a(f"v_add_u32 v22, s9, v22")
    a(f"v_and_b32 v5, 1, v{vLANE}")
    a(f"v_lshlrev_b32 v23, 9, v5")
    a(f"v_lshl_add_u32 v23, v7, 4, v23")
    a(f"v_add_u32 v23, s9, v23")
    a(f"v_lshlrev_b32 v24, 12, v5")
    a(f"v_lshl_add_u32 v24, v7, 4, v24")
    a(f"s_lshl_b32 s73, s{sAI}, 13")
    a(f"s_lshl_b32 s9, s{sXCD}, 9")
    a(f"s_add_u32 s73, s73, s9")
    a(f"s_lshl_b32 s9, s{sWAVE}, 6")
    a(f"s_add_u32 s73, s73, s9")
    a(f"s_add_u32 s73, s73, {XP}")
    srd(rT0, pW2, 7340032)
    srd(rT1, pB1, 7168)
    a(f"v_lshlrev_b32 v30, 14, v7")
    a(f"v_lshl_add_u32 v30, v9, 4, v30")
    a(f"s_lshl_b32 s15, s{sBI}, 16")
    a(f"s_lshl_b32 s9, s{sWAVE}, 8")
    a(f"s_add_u32 s15, s15, s9")
    kperm(4, 5)
    a(f"v_and_b32 v6, 7, v{vLANE}")
    a(f"v_lshl_add_u32 v31, v6, 2, v4")
    a(f"v_lshlrev_b32 v31, 1, v31")
    a(f"v_bfe_u32 v8, v{vLANE}, 3, 1")
    a(f"v_lshl_add_u32 v26, v8, 6, v31")
    a(f"s_lshl_b32 s9, s{sWAVE}, 7")
    a(f"s_add_u32 s9, s9, {H1B}")
    a(f"v_add_u32 v26, s9, v26")
    a(f"v_bfe_u32 v5, v{vLANE}, 2, 1")
    a(f"v_lshlrev_b32 v27, 6, v5")
    a(f"v_lshl_add_u32 v27, v7, 4, v27")
    a(f"v_add_u32 v27, s9, v27")
    a(f"v_lshlrev_b32 v25, 10, v7")
    a(f"v_lshl_add_u32 v25, v8, 9, v25")
    a(f"v_lshl_add_u32 v25, v6, 4, v25")
    a(f"s_and_b32 s9, s{sBI}, 3")
    a(f"s_lshl_b32 s89, s9, 7")
    a(f"s_andn2_b32 s10, s{sBI}, 3")
    a(f"s_lshl_b32 s10, s10, 10")
    a(f"s_add_u32 s89, s89, s10")
    a(f"s_add_u32 s89, s89, {HP}")
    GA, XV, B2V, GB, SV, TV = 72, 73, 74, 75, 76, 77
    consumer_ids()
    a(f"v_lshrrev_b32 v6, 3, v{vLANE}")
    a(f"v_and_b32 v8, 7, v{vLANE}")
    a(f"v_lshl_add_u32 v11, v8, 2, v4")
    a(f"v_lshlrev_b32 v5, 2, v11")
    a(f"v_add_u32 v2, {XB}, v5")
    a(f"s_mul_i32 s88, s75, {xstr}")
    a(f"s_add_u32 s88, s88, {XH}")
    a(f"v_lshlrev_b32 v0, 13, v6")
    a(f"v_lshl_add_u32 v0, v8, 4, v0")
    for r in range(32):
        a(f"v_mov_b32 v{AD+r}, 0")
    a("s_waitcnt vmcnt(0)")
    a("s_barrier")
    for s in range(8):
        for h in range(2):
            a(f"ds_read_b64_tr_b16 {R(WOP + s*4 + h*2, 2)}, v20 offset:{WT + 32768*(s >> 2) + 8192*h + 512*(s & 3)}")
    stamp(26)

    def ldOF():
        a(f"buffer_load_dwordx4 {R(32)}, v21, {S4(rWS)}, s74 offen sc1")
        a(f"buffer_load_dwordx4 {R(36)}, v21, {S4(rWS)}, s74 offen offset:512 sc1")
    pollx(ldOF, lambda: check_regs(range(32, 40)))
    stamp(9)
    for k in range(4):
        a(f"v_perm_b32 v{16+k}, v{33+2*k}, v{32+2*k}, s{sSELHI}")
    a(f"ds_write_b64 v22, {R(16, 2)}")
    a(f"ds_write_b64 v22, {R(18, 2)} offset:256")
    a("s_waitcnt lgkmcnt(0)")
    gemv8(WOP, 104, 32, 23)
    store_grp("buffer_store_dwordx4", R(32), 24, 73)
    a(FULL)
    stamp(10)
    a(f"s_cmp_ge_u32 s{sBI}, 112")
    a("s_cbranch_scc1 L_fin")
    a(f"s_cmp_ge_u32 s{sAI}, 8")
    a("s_cbranch_scc1 L_noh2")
    a(f"s_cmp_lg_u32 s{sWAVE}, 7")
    a("s_cbranch_scc1 L_h2d")
    a(f"ds_read_b32 v{GA}, v2 offset:384")
    a(f"ds_read_b32 v{XV}, v2 offset:512")
    a(f"ds_read_b32 v{B2V}, v2 offset:256")
    a(f"ds_read_b32 v{GB}, v2 offset:128")
    a(f"ds_read_b32 v{SV}, v2")
    a(f"ds_read_b32 v{TV}, v2 offset:640")
    a(f"v_mov_b32 v96, v{vOV}")
    a(f"s_mov_b32 s9, {xrec + 16}")
    a("v_writelane_b32 v96, s9, 8")
    a(f"s_mov_b32 s9, {xrec}")
    a("v_writelane_b32 v96, s9, 16")
    a(f"s_add_u32 s10, s75, {XP}")
    a(f"s_add_u32 s11, s75, {XP + 65536}")
    a("s_mov_b32 s94, 0xff00ff00\ns_mov_b32 s95, 0xff00ff00")
    SM = "s[94:95]"
    a("s_waitcnt lgkmcnt(0)")
    a(f"v_cndmask_b32 v81, 1.0, v{TV}, {SM}")

    def xloads():
        a(f"buffer_load_dwordx4 {R(84)}, v0, {S4(rWS)}, s10 offen sc1")
        a(f"buffer_load_dwordx4 {R(88)}, v0, {S4(rWS)}, s11 offen sc1")
    pollx(xloads, lambda: check_regs(range(84, 92)), slp=0)
    stamp(11)
    for k in range(4):
        a(f"v_add_f32 v{84+k}, v{84+k}, v{88+k}")
    red4(84, (8,))
    rnd1(84, 84)
    a(f"v_mul_f32 v84, v{GA}, v84")
    rnd1(84, 84)
    a(f"v_add_f32 v84, v{XV}, v84")
    rnd1(XV, 84)
    a(f"v_mul_f32 v94, v{XV}, v{TV}")
    a(f"v_or_b32 v84, v{vTAG}, v{XV}")
    a(f"v_cndmask_b32 v82, v{XV}, v{SV}, {SM}")
    a(f"v_cndmask_b32 v80, v{XV}, v94, {SM}")
    a(f"v_cndmask_b32 v94, v94, 0, {SM}")
    a(f"v_mul_f32 v92, v80, v81")
    a(f"v_mul_f32 v93, v80, v82")
    a(f"v_mul_f32 v95, v94, v94")
    untr(84)
    publish_moments(92, 88, 84)
    stamp(12)
    a("s_branch L_h2d")
    a("L_noh2:")
    if w2delay:
        a(f"s_sleep {w2delay}")
    a("L_h2d:")
    a("s_barrier")
    for e in range(8):
        if e % 2 == 0:
            a(f"s_add_u32 s9, s15, {e*2048}")
        a(f"buffer_load_dwordx4 {R(W2R + e*4)}, v30, {S4(rT0)}, s9 offen offset:{(e % 2)*2048} {nt}")
    a(f"s_lshl_b32 s9, s{sBI}, 6")
    a(f"buffer_load_ushort v{B1V}, v31, {S4(rT1)}, s9 offen")
    a("s_waitcnt vmcnt(0)")
    for d in range(8):
        perm_operand(W2O + d * 4, W2R, d)
    lo(B1V, B1V)
    stamp(27)
    pollx(lambda: a(f"buffer_load_dwordx4 {R(136)}, v25, {S4(rWS)}, s89 offen sc1"), lambda: check_regs(range(136, 140)), slp=0)
    stamp(23)
    red4(136, ())
    rnd1(136, 136)
    a(f"v_add_f32 v136, v136, v{B1V}")
    rnd1(136, 136)
    a("v_mul_f32 v137, v136, v136")
    a("v_mul_f32 v137, 0x3d372713, v137")
    a("v_fma_f32 v137, v137, v136, v136")
    a("v_mul_f32 v137, 0xc0135761, v137")
    a("v_exp_f32 v137, v137")
    a("v_add_f32 v137, 1.0, v137")
    a("v_rcp_f32 v137, v137")
    a("v_mul_f32 v136, v136, v137")
    a("v_cvt_pk_bf16_f32 v136, v136, v136")
    a("ds_write_b16 v26, v136")
    a("s_waitcnt lgkmcnt(0)")
    for d in range(8):
        m16 = (0x11 << (d & 3)) << (8 * (d >> 2))
        m32 = m16 | (m16 << 16)
        a(f"s_mov_b32 exec_lo, {m32:#x}\ns_mov_b32 exec_hi, {m32:#x}")
        a(f"ds_read_b128 {R(AD + 4*d)}, v27")
    a(FULL)
    for d in range(8):
        a(f"s_waitcnt lgkmcnt({7-d})")
        c = "0" if d == 0 else R(136)
        a(f"v_mfma_f32_16x16x32_bf16 {R(136)}, {R(AD + 4*d)}, {R(W2O + 4*d)}, {c}")
    for r in range(4):
        tag_trunc(136 + r, 136 + r)
    a(f"buffer_store_dwordx4 {R(136)}, v28, {S4(rWS)}, s14 offen sc1")
    stamp(28)
    a(f"s_cmp_ge_u32 s{sAI}, 8")
    a("s_cbranch_scc1 L_fin")
    srd(rT3, pOUT, 4096)
    a(f"s_mul_i32 s11, s{sWAVE}, {14*8192}")
    a(f"s_add_u32 s11, s11, s75")
    a(f"s_add_u32 s11, s11, {YP}")
    a(f"s_add_u32 s15, s11, {8*8192}")
    a(f"s_lshl_b32 s9, s{sWAVE}, 2")
    a(f"s_add_u32 s9, s9, {FB}")
    a(f"v_lshl_add_u32 v9, v11, 5, s9")
    a(f"v_lshlrev_b32 v8, 5, v11")
    a(f"v_add_u32 v8, {FB}, v8")
    a(f"s_lshr_b32 s10, s75, 1")
    a(f"v_lshlrev_b32 v10, 1, v11")
    for r in range(44, 48):
        a(f"v_mov_b32 v{r}, 0")
    a(f"s_mov_b32 s94, -1\ns_mov_b32 s95, 0xffff")

    def ldH4():
        a(f"buffer_load_dwordx4 {R(40)}, v0, {S4(rWS)}, s11 offen sc1")
        a(f"s_and_saveexec_b64 s[{sEX}:{sEX+1}], s[94:95]")
        a(f"buffer_load_dwordx4 {R(44)}, v0, {S4(rWS)}, s15 offen sc1")

    def ckH4():
        for r in range(44, 48):
            a(f"v_xor_b32 v{r}, v{vTAG}, v{r}")
        a(f"s_mov_b64 exec, s[{sEX}:{sEX+1}]")
        check_regs(range(40, 44))
        a(f"v_or3_b32 v{vBAD}, v{vBAD}, v44, v45")
        a(f"v_or3_b32 v{vBAD}, v{vBAD}, v46, v47")
    if h4delay:
        a(f"s_sleep {h4delay}")
    pollx(ldH4, ckH4)
    stamp(13)
    for r in range(4):
        a(f"v_add_f32 v{40+r}, v{40+r}, v{44+r}")
    red4(40, (8,))
    a("ds_write_b32 v9, v40")
    a("s_waitcnt lgkmcnt(0)")
    a("s_barrier")
    a(f"s_cmp_lg_u32 s{sWAVE}, 7")
    a("s_cbranch_scc1 L_fin")
    a(f"ds_read_b128 {R(40)}, v8")
    a(f"ds_read_b128 {R(44)}, v8 offset:16")
    a("s_waitcnt lgkmcnt(0)")
    for r in range(4):
        a(f"v_add_f32 v{40+r}, v{40+r}, v{44+r}")
    a("v_add_f32 v40, v40, v41\nv_add_f32 v42, v42, v43\nv_add_f32 v40, v40, v42")
    rnd1(40, 40)
    a(f"v_add_f32 v40, v{B2V}, v40")
    rnd1(40, 40)
    a(f"v_mul_f32 v40, v{GB}, v40")
    rnd1(40, 40)
    a(f"v_add_f32 v40, v{XV}, v40")
    a("v_cvt_pk_bf16_f32 v40, v40, v40")
    a(MASK8)
    a(f"buffer_store_short v40, v10, {S4(rT3)}, s10 offen")
    a(FULL)
    a("s_cmp_lg_u32 s2, 0")
    a("s_cbranch_scc1 L_fin")
    if pin:
        a("L_pin:")
        a("s_memrealtime s[96:97]")
        a("s_waitcnt lgkmcnt(0)")
        a("s_sub_u32 s96, s96, s98")
        a(f"s_cmp_lt_u32 s96, {pin}")
        a("s_cbranch_scc1 L_pin")
    a(f"v_mov_b32 v4, s{sEP}")
    a("v_mov_b32 v5, 0")
    a("s_mov_b64 exec, 1")
    a(f"buffer_store_dword v4, v5, {S4(rWS)}, 0 offen offset:{EPOCH} sc1")
    a("s_mov_b64 exec, -1")

    a("s_branch L_fin")

    a("L_tailB:")
    a(f"s_cmp_ge_u32 s{sBI}, 112")
    a("s_cbranch_scc1 L_fin")
    W1O = 72
    XR, SB, CB, MR = 32, 36, 16, 136
    a(f"v_lshrrev_b32 v7, 4, v{vLANE}")
    a(f"s_and_b32 s9, s{sBI}, 3")
    a(f"s_lshl_b32 s13, s9, 10")
    a(f"s_lshl_b32 s10, s{sWAVE}, 12")
    a(f"s_add_u32 s13, s13, s10")
    a(f"s_add_u32 s15, s13, {X1 + 8192}")
    a(f"s_add_u32 s88, s13, {X1 + 16384}")
    a(f"s_mul_i32 s74, s13, {xstr}")
    a(f"s_add_u32 s74, s74, {XH}")
    a(f"v_lshrrev_b32 v6, 1, v{vLANE}")
    a(f"v_and_b32 v5, 1, v{vLANE}")
    a(f"v_lshlrev_b32 v20, 7, v6")
    a(f"v_lshl_add_u32 v20, v5, 4, v20")
    a(f"v_mul_u32_u24 v21, {128*xstr}, v6")
    a(f"v_lshl_add_u32 v21, v5, 4, v21")
    a(f"s_add_u32 s89, s10, {XS + 8192}")
    a(f"s_mul_i32 s91, s{sWAVE}, {4096*xstr}")
    a(f"s_add_u32 s91, s91, {XH + xrec}")
    a(f"s_lshl_b32 s10, s{sWAVE}, 9")
    a(f"s_add_u32 s10, s10, {YB}")
    a(f"v_lshl_add_u32 v22, v{vLANE}, 3, s10")
    a(f"v_lshlrev_b32 v23, 9, v5")
    a(f"v_lshl_add_u32 v24, v7, 4, v23")
    a(f"v_add_u32 v23, {YB}, v24")
    a(f"s_lshl_b32 s90, s{sBI}, 10")
    a(f"s_lshl_b32 s9, s{sWAVE}, 6")
    a(f"s_add_u32 s90, s90, s9")
    a(f"s_add_u32 s90, s90, {HP}")
    a(f"v_bfe_u32 v25, v{vLANE}, 2, 2")
    a(f"v_lshl_add_u32 v25, v7, 3, v25")
    a(f"v_lshlrev_b32 v25, 8, v25")
    a(f"v_and_b32 v6, 3, v{vLANE}")
    a(f"v_lshl_add_u32 v25, v6, 3, v25")
    a(f"s_lshl_b32 s9, s{sWAVE}, 5")
    a(f"v_add_u32 v25, s9, v25")
    a(f"v_lshrrev_b32 v6, 3, v{vLANE}")
    a(f"v_and_b32 v8, 7, v{vLANE}")
    a(f"v_mul_u32_u24 v26, {128*xstr}, v6")
    a(f"v_lshl_add_u32 v26, v8, 4, v26")
    a("s_barrier")
    vm = Vm(a)

    def ldS():
        a(f"buffer_load_dwordx4 {R(SB)}, v{vOV}, {S4(rWS)}, s15 offen sc1")
        a(f"buffer_load_dwordx4 {R(CB)}, v{vOV}, {S4(rWS)}, s88 offen sc1")
        a(f"buffer_load_dwordx4 {R(MR)}, v20, {S4(rWS)}, s89 offen sc1")
    LANE_OF = [0, 32, 16, 48, 1, 33]
    a(f"s_cmp_ge_u32 s{sWAVE}, 2")
    a("s_cbranch_scc1 L_nocst")
    pollx(ldS, lambda: check_regs(list(range(SB, SB + 4)) + list(range(CB, CB + 4)) + list(range(MR, MR + 4))))
    red4(MR, (2, 4, 8))
    a(f"v_mul_f32 v{MR}, 0x3a800000, v{MR}")
    for k in range(5):
        a(f"v_readlane_b32 s9, v{MR}, {LANE_OF[k]}")
        a(f"v_mov_b32 v{144+k}, s9")
    a("L_nocst:")
    claim_all()
    a("s_waitcnt vmcnt(0)")
    a("s_barrier")
    for s in range(8):
        for h in range(2):
            a(f"ds_read_b64_tr_b16 {R(W1O + s*4 + h*2, 2)}, v25 offset:{WT + 8192*s + 1024*h}")
    stamp(26)
    a(f"s_cmp_ge_u32 s{sWAVE}, 2")
    a("s_cbranch_scc1 L_ydone")

    def ldH3():
        a(f"buffer_load_dwordx4 {R(XR)}, v26, {S4(rWS)}, s74 offen sc1")
        a(f"buffer_load_dwordx4 {R(MR)}, v21, {S4(rWS)}, s91 offen sc1")
    pollx(ldH3, lambda: check_regs(list(range(XR, XR + 4)) + list(range(MR, MR + 4))), slp=h3slp)
    stamp(10)
    red4(MR, (2, 4, 8))
    a(f"v_mul_f32 v{MR}, 0x3a800000, v{MR}")
    for k, sr in enumerate((10, 11, 12, 13, 15, 88)):
        a(f"v_readlane_b32 s{sr}, v{MR}, {LANE_OF[k]}")

    def stats_tail(mean, ex2, t, mb, rs):
        a(f"v_fma_f32 v{ex2}, -v{mean}, v{mean}, v{ex2}")
        a(f"v_max_f32 v{ex2}, 0, v{ex2}")
        a(f"v_cvt_pk_bf16_f32 v{t}, v{mean}, v{ex2}")
        hi(ex2, t)
        lo(mb, t)
        a(f"v_add_f32 v{ex2}, 0x3727c5ac, v{ex2}")
        rnd1(ex2, ex2)
        a(f"v_sqrt_f32 v{ex2}, v{ex2}")
        rnd1(ex2, ex2)
        a(f"v_rcp_f32 v{rs}, v{ex2}")
    a("v_mov_b32 v5, s10\nv_mov_b32 v6, s11")
    stats_tail(5, 6, 60, 140, 141)
    a(f"v_fma_f32 v150, -v140, v144, s12")
    a(f"v_mul_f32 v151, v140, v145")
    a(f"v_fma_f32 v151, -2.0, s15, v151")
    a(f"v_fma_f32 v151, v140, v151, s13")
    a(f"v_fma_f32 v152, -v140, v146, s88")
    for k in (0, 2):
        a(f"v_sub_f32 v{XR+k}, v{XR+k}, v140\nv_sub_f32 v{XR+k+1}, v{XR+k+1}, v140")
    for k in (0, 2):
        rnd2(XR + k, XR + k + 1, 60 + k // 2)
    a(f"v_fma_f32 v5, v141, v150, v147")
    a(f"v_mul_f32 v151, v141, v151")
    a(f"v_fma_f32 v151, 2.0, v152, v151")
    a(f"v_fma_f32 v6, v141, v151, v148")
    for k in range(4):
        a(f"v_mul_f32 v{XR+k}, v{XR+k}, v141")
    for k in (0, 2):
        rnd2(XR + k, XR + k + 1, 60 + k // 2)
    stats_tail(5, 6, 62, 142, 143)
    for k in range(4):
        a(f"v_mul_f32 v{XR+k}, v{XR+k}, v{CB+k}")
    for k in (0, 2):
        rnd2(XR + k, XR + k + 1, 60 + k // 2)
    for k in range(4):
        a(f"v_add_f32 v{XR+k}, v{XR+k}, v{SB+k}")
    for k in (0, 2):
        rnd2(XR + k, XR + k + 1, 60 + k // 2)
    for k in range(4):
        a(f"v_sub_f32 v{XR+k}, v{XR+k}, v142")
    for k in (0, 2):
        rnd2(XR + k, XR + k + 1, 60 + k // 2)
    for k in range(4):
        a(f"v_mul_f32 v{XR+k}, v{XR+k}, v143")
    a(f"v_cvt_pk_bf16_f32 v28, v{XR}, v{XR+1}\nv_cvt_pk_bf16_f32 v29, v{XR+2}, v{XR+3}")
    a(f"ds_write_b64 v22, {R(28, 2)}")
    a("s_waitcnt lgkmcnt(0)")
    a("L_ydone:")
    a("s_barrier")
    gemv8(W1O, 136, 32, 23)
    store_grp("buffer_store_dwordx4", R(32), 24, 90)
    a(FULL)
    stamp(22)

    a("L_fin:")
    if stamps and dbgstamps:
        stamp(15)
        a(f"s_cmp_lg_u32 s2, {dbgstamps - 1}")
        a("s_cbranch_scc1 L_end")
        a("s_load_dwordx2 s[10:11], s[0:1], 104")
        a("s_waitcnt lgkmcnt(0)")
        srd(rT0, 10, 256)
        slots = [1, 2, 3, 4, 20, 6, 8, 24, 9, 10, 11, 12, 22, 13, 15, 21]
        a("v_mov_b32 v4, 200")
        for i, k in enumerate(slots):
            a(f"s_mov_b32 s9, {4*i}")
            a(f"v_writelane_b32 v4, s9, {k}")
        a(f"v_readlane_b32 s9, v{vST}, 0")
        a(f"v_subrev_u32 v5, s9, v{vST}")
        a(f"v_cmp_ne_u32 vcc, 0, v{vST}")
        a("s_mov_b64 exec, vcc")
        a(f"buffer_atomic_umax v5, v4, {S4(rT0)}, 0 offen sc1")
    elif stamps:
        stamp(15)
        a(f"s_mul_i32 s9, s2, {NWAVES}")
        a(f"s_add_u32 s9, s9, s{sW12}")
        a(f"s_lshl_b32 s9, s9, 7")
        a(f"s_add_u32 s9, s9, {STAMP}")
        a(f"v_lshlrev_b32 v4, 2, v{vLANE}")
        a("s_mov_b32 exec_hi, 0")
        a(f"buffer_store_dword v{vST}, v4, {S4(rWS)}, s9 offen")
    a("L_end:")
    a("s_endpgm")
    a('.section .rodata,"a"')
    a(".p2align 6")
    a(f".amdhsa_kernel {NAME}_kernel")
    for l in (".amdhsa_next_free_vgpr 168", ".amdhsa_next_free_sgpr 102", ".amdhsa_accum_offset 168",
              ".amdhsa_group_segment_fixed_size 0", ".amdhsa_kernarg_size 120", ".amdhsa_user_sgpr_count 2",
              ".amdhsa_user_sgpr_kernarg_segment_ptr 1", ".amdhsa_system_sgpr_workgroup_id_x 1",
              ".amdhsa_float_denorm_mode_32 3"):
        a(l)
    a(".end_amdhsa_kernel")
    return pre + a.finish()


if __name__ == "__main__":
    out = sys.argv[1] if len(sys.argv) > 1 else f"cdna_kernels/{NAME}.s"
    kw = {}
    for arg in sys.argv[2:]:
        k, v = arg.split("=")
        kw[k] = eval(v)
    open(out, "w").write(gen(**kw))
```

```python
import sys
from asmlib import Asm, Vm

NAME = "adaLN_cond__gqa_block_cached__mixer_channel_mlp__decode"

EPOCH = 0
ML = 0x1000
X1 = 0x9000
MODP = 0x140000
QP = 0x30000
MA = 0xB0000
HP = 0xE0000
XP = 0x100000
DUAL = 0x90000
OF = 0x500000
QFN = 0x80000
XS = 0x88000
XH = 0x180000
XID = 0x78000
OP = 0x200000
YP = 0x300000
STAMP = 0x800000
WS_BYTES = 0x10000000
WT = 0
OC = 0x10000
QB = 0x18400
HB = 0x18C00
ZB = 0x18E00
MX = 0x19000
LX = 0x19100
OB = 0x10000
ST = 0x19600
YB = 0x19800
RED = 0x1A800
H1B = 0x1B000
QFL = 0x1B400
XB = 0x1B480
FB = 0x1B800
LDS_BYTES = 0x1BC00
TAGM = 0x3ff
T4 = 3
NWAVES = 12

sWAVE, sL, sXCD, sIDX, sAI, sTAG = 3, 4, 5, 6, 7, 8
pX, pK, pV, pWQ, pWO, pW1, pB1, pW2, pB2, pC, pWM, pOUT, pWS = 16, 18, 20, 22, 24, 28, 30, 32, 34, 36, 38, 40, 42
rK, rV, rWS, rT0, rT1, rT2, rT3 = 44, 48, 52, 56, 60, 64, 68
sDU = 72
sSELLO, sSELHI, sHI, sLOG2E, sSCALE, sSPIN, sEP, sTM = 76, 77, 78, 79, 80, 81, 82, 83
sEX = 84
sBI = 86
sKV = 87
sW12 = 100
sLOC = 101
vLANE, vOK, vOV = 1, 2, 3
vBAD, vTAG, vST = 12, 13, 14


def gen(stamps=False, dbgstamps=False, codewarm=True, spin=200000, sleep=0, nt="nt", w1_early=True,
        thr=4, thr2=4, thrq=0, thrb=0, thrv=6, notail=False, quiet=0, sg='', sgslp=0, kvmap=0, roti=1, v0lds=0, nohelp=0, w1delay=0, w1thr=0, pin=0, fill=0, mbgate=0, kgate=0, bpre=0, w2delay=0, wpre=0, xmask=0, xk=1, xv=2, ofstr=1, xstr=33, onest=1, w2x2=0, pipe='', spread=0, ackst=0, pslp=2, w1pre=5, ovl=1, w1late=1, h3slp=None, h3split=0, fullrec=0, ptall='mqfdoxy', wq_dyn=1, fine=1, qpol='sc1', ptpol='sc1', agate=1, xdelay=20, skip='', hpt=0, prew=0, b2stage=1, h4delay=0, pretouch=0, noloc=0, noma=0, bdelay=0, adelay=0, nomodfin=0, pure=0, klin=0, vearly=0, fake=0, attdma=True, thrw=3, cslp=1, w1pol=None):
    a = Asm()
    hdr = open(f"cdna_kernels/{NAME}.s.ref").read().split("\n")
    head = [l for l in hdr if l.startswith(";") and "@launch" not in l]
    pre = "\n".join(head) + f"\n; @launch grid=(256,1,1) block=({64*NWAVES},1,1) lds={LDS_BYTES}\n"
    a('.amdgcn_target "amdgcn-amd-amdhsa--gfx950"')
    a(".text")
    a(f".globl {NAME}_kernel")
    a(".p2align 8")
    a(f".type {NAME}_kernel,@function")
    a(f"{NAME}_kernel:")

    def srd(d, p, n):
        a(f"s_mov_b32 s{d}, s{p}\ns_mov_b32 s{d+1}, s{p+1}\ns_mov_b32 s{d+2}, {n}\ns_mov_b32 s{d+3}, 0x20000")

    def R(b, n=4):
        return f"v[{b}:{b+n-1}]"

    def S4(b):
        return f"s[{b}:{b+3}]"

    def stamp(k):
        if stamps == 1 or (stamps == 2 and k in (8, 15)):
            a(f"s_memrealtime s[96:97]\ns_waitcnt lgkmcnt(0)\nv_writelane_b32 v{vST}, s96, {k}")

    def lo(d, p):
        a(f"v_lshlrev_b32 v{d}, 16, v{p}")

    def hi(d, p):
        a(f"v_and_b32 v{d}, s{sHI}, v{p}")

    def rnd1(d, s):
        a(f"v_cvt_pk_bf16_f32 v{d}, v{s}, v{s}")
        lo(d, d)

    def rnd2(x, y, t):
        a(f"v_cvt_pk_bf16_f32 v{t}, v{x}, v{y}")
        lo(x, t)
        hi(y, t)

    def tag_round(d, s):
        a(f"v_add_u32 v{d}, 0x200, v{s}")
        a(f"v_bfi_b32 v{d}, s{sTM}, v{vTAG}, v{d}")

    def tag_trunc(d, s):
        a(f"v_bfi_b32 v{d}, s{sTM}, v{vTAG}, v{s}")

    def check_regs(regs, first=True):
        for r in regs:
            a(f"v_xor_b32 v{r}, v{vTAG}, v{r}")
        regs = list(regs)
        if first:
            a(f"v_or_b32 v{vBAD}, v{regs[0]}, v{regs[1]}")
            regs = regs[2:]
        for i in range(0, len(regs), 2):
            a(f"v_or3_b32 v{vBAD}, v{vBAD}, v{regs[i]}, v{regs[i+1]}")

    def dpp_add(d, s_rot, s1, ror):
        a(f"v_add_f32_dpp v{d}, v{s_rot}, v{s1} row_ror:{ror} row_mask:0xf bank_mask:0xf")

    def dpp_max(d, s_rot, s1, ror):
        a(f"v_max_f32_dpp v{d}, v{s_rot}, v{s1} row_ror:{ror} row_mask:0xf bank_mask:0xf")

    def allred(x, t, op, which):
        for w in which:
            a(f"v_mov_b32 v{t}, v{x}")
            a(f"v_permlane{w}_swap_b32 v{x}, v{t}")
            a(f"{op} v{x}, v{x}, v{t}")

    def red4(b, rors):
        a(f"v_permlane32_swap_b32 v{b}, v{b+1}")
        a(f"v_permlane32_swap_b32 v{b+2}, v{b+3}")
        a(f"v_add_f32 v{b}, v{b}, v{b+1}")
        a(f"v_add_f32 v{b+2}, v{b+2}, v{b+3}")
        a(f"v_permlane16_swap_b32 v{b}, v{b+2}")
        a(f"v_add_f32 v{b}, v{b}, v{b+2}")
        for r in rors:
            dpp_add(b, b, b, r)

    def perm_operand(dst, blk, d):
        sel = sSELHI if d & 1 else sSELLO
        for k in range(4):
            a(f"v_perm_b32 v{dst+k}, v{blk + (2*k+1)*4 + (d >> 1)}, v{blk + 2*k*4 + (d >> 1)}, s{sel}")

    def ln_stats(su, sq, t, mb, rs):
        a(f"v_mul_f32 v{su}, 0x3a800000, v{su}")
        a(f"v_mul_f32 v{sq}, 0x3a800000, v{sq}")
        a(f"v_fma_f32 v{sq}, -v{su}, v{su}, v{sq}")
        a(f"v_max_f32 v{sq}, 0, v{sq}")
        a(f"v_cvt_pk_bf16_f32 v{t}, v{su}, v{sq}")
        lo(mb, t)
        hi(sq, t)
        a(f"v_add_f32 v{sq}, 0x3727c5ac, v{sq}")
        rnd1(sq, sq)
        a(f"v_sqrt_f32 v{sq}, v{sq}")
        rnd1(sq, sq)
        a(f"v_rcp_f32 v{rs}, v{sq}")

    def ln_apply(x, y, t, mb, rs, last_round=True):
        a(f"v_sub_f32 v{x}, v{x}, v{mb}")
        a(f"v_sub_f32 v{y}, v{y}, v{mb}")
        rnd2(x, y, t)
        a(f"v_mul_f32 v{x}, v{x}, v{rs}")
        a(f"v_mul_f32 v{y}, v{y}, v{rs}")
        if last_round:
            rnd2(x, y, t)

    def check2(pairs_regs):
        first = True
        for b in pairs_regs:
            a(f"v_xor_b32 v{b+1}, s{sEP}, v{b+1}")
            a(f"v_xor_b32 v{b+3}, s{sEP}, v{b+3}")
            if first:
                a(f"v_or_b32 v{vBAD}, v{b+1}, v{b+3}")
                first = False
            else:
                a(f"v_or3_b32 v{vBAD}, v{vBAD}, v{b+1}, v{b+3}")

    def pollx(loads, check, f2=False, dual=False, pre_issued=False, between=None, slp=None, name=None):
        if name and name in skip:
            a("s_waitcnt vmcnt(0)")
            a("s_mov_b64 exec, -1")
            return
        lp, dn, ck = a.label("Lpoll"), a.label("Ldone"), a.label("Lchk")
        a(f"s_mov_b32 s{sSPIN}, {0 if (fake and slp in (cslp, 16)) else spin | 7}")
        if pre_issued:
            a(f"s_branch {ck}")
        inst = stamps == 1 and name in ("a", "b", "c", "x")
        if inst:
            a("s_mov_b32 s94, 0\ns_mov_b32 s95, 0")
        a(f"{lp}:")
        if inst:
            a("s_memrealtime s[90:91]")
        loads()
        if pre_issued != "landed":
            a(f"{ck}:")
        a("s_waitcnt vmcnt(0)")
        if pre_issued == "landed":
            a(f"{ck}:")
        if inst:
            a("s_memrealtime s[92:93]\ns_waitcnt lgkmcnt(0)")
            a("s_sub_u32 s92, s92, s90\ns_max_u32 s94, s94, s92\ns_add_u32 s95, s95, 1")
        check()
        if not f2:
            a(f"v_and_b32 v{vBAD}, s{sTM}, v{vBAD}")
        a(f"v_cmp_ne_u32 vcc, 0, v{vBAD}")
        a(f"s_cbranch_vccz {dn}")
        a("s_mov_b64 exec, vcc")
        sl = sleep if slp is None else slp
        if sl:
            a(f"s_sleep {sl}")
        a(f"s_sub_u32 s{sSPIN}, s{sSPIN}, 1")
        a(f"s_cbranch_scc0 {lp}")
        a(f"{dn}:")
        a("s_mov_b64 exec, -1")
        if inst:
            k = {"a": 26, "b": 28, "c": 28, "x": 26}[name]
            a(f"v_writelane_b32 v{vST}, s94, {k}\nv_writelane_b32 v{vST}, s95, {k+1}")

    def pollp(load, nl, final, sets, sm=94, init=None):
        lp, dn = a.label("Lpp"), a.label("Lppd")
        M = f"s[{sm}:{sm+1}]"
        n = 4 * nl
        a(f"s_mov_b64 {M}, exec")
        a(f"s_mov_b32 s{sSPIN}, {spin}")
        load(sets[0])
        if pslp:
            a(f"s_sleep {pslp}")
        load(sets[1])
        a(f"{lp}:")
        for k in range(3):
            if pslp:
                a(f"s_sleep {pslp}")
            load(sets[(k + 2) % 3])
            a(f"s_waitcnt vmcnt({2*nl})")
            b = sets[k]
            check_regs(range(b, b + n))
            a(f"v_and_b32 v{vBAD}, s{sTM}, v{vBAD}")
            a(f"v_cmp_eq_u32 vcc, 0, v{vBAD}")
            a("s_mov_b64 exec, vcc")
            for i in range(n):
                a(f"v_mov_b32 v{final[i]}, v{b+i}")
            a(f"s_andn2_b64 {M}, {M}, vcc")
            a(f"s_cbranch_scc0 {dn}")
            a(f"s_mov_b64 exec, {M}")
        a(f"s_sub_u32 s{sSPIN}, s{sSPIN}, 1")
        a(f"s_cbranch_scc0 {lp}")
        a(f"{dn}:")
        a("s_mov_b64 exec, -1")

    def sgate(soff, offs):
        lp, dn = a.label("Lsg"), a.label("Lsgd")
        a(f"s_add_u32 s92, s{pWS}, s{soff}")
        a(f"s_addc_u32 s93, s{pWS+1}, 0")
        a(f"s_mov_b32 s{sSPIN}, 2000")
        a(f"{lp}:")
        for i, o in enumerate(offs):
            a(f"s_load_dword s{16+i}, s[92:93], {o} glc")
        a("s_waitcnt lgkmcnt(0)")
        a(f"s_xor_b32 s9, s16, s{sTAG}")
        for i in range(1, len(offs)):
            a(f"s_xor_b32 s{16+i}, s{16+i}, s{sTAG}")
            a(f"s_or_b32 s9, s9, s{16+i}")
        a(f"s_and_b32 s9, s9, s{sTM}")
        a(f"s_cbranch_scc0 {dn}")
        if sgslp:
            a(f"s_sleep {sgslp}")
        a(f"s_sub_u32 s{sSPIN}, s{sSPIN}, 1")
        a(f"s_cbranch_scc0 {lp}")
        a(f"{dn}:")

    def dual_exchange(store_wt, loads, check):
        l1, ok, dn = a.label("Lfx"), a.label("Lfxok"), a.label("Lfxdn")
        a(f"s_mov_b32 s{sDU}, {DUAL}")
        a(f"s_mov_b32 s{sSPIN}, 24")
        a(f"{l1}:")
        loads()
        a("s_waitcnt vmcnt(0)")
        check()
        a(f"v_and_b32 v{vBAD}, s{sTM}, v{vBAD}")
        a(f"v_cmp_ne_u32 vcc, 0, v{vBAD}")
        a(f"s_cbranch_vccz {ok}")
        a("s_mov_b64 exec, vcc")
        a(f"s_sub_u32 s{sSPIN}, s{sSPIN}, 1")
        a(f"s_cbranch_scc0 {l1}")
        a(f"s_mov_b64 s[{sEX}:{sEX+1}], exec")
        store_wt()
        a(f"s_mov_b64 exec, s[{sEX}:{sEX+1}]")
        pollx(loads, check, dual=True)
        a(f"s_branch {dn}")
        a(f"{ok}:")
        store_wt()
        a("s_mov_b64 exec, -1")
        a(f"{dn}:")

    def store_grp(op, data, vaddr, soff):
        l1, l2 = a.label("Lsg"), a.label("Lsgd")
        a(f"s_cmp_eq_u32 s{sLOC}, 1")
        a(f"s_cbranch_scc1 {l1}")
        a(f"{op} {data}, v{vaddr}, {S4(rWS)}, s{soff} offen sc1")
        a(f"s_branch {l2}")
        a(f"{l1}:")
        a(f"{op} {data}, v{vaddr}, {S4(rWS)}, s{soff} offen")
        a(f"{l2}:")

    def prewrite(t, nl_log2, bshift, soff):
        if not prew:
            return
        for k in range(4):
            a(f"v_xor_b32 v{t+k}, 1, v{vTAG}")
        a(f"v_lshrrev_b32 v{t+4}, {nl_log2}, v{vLANE}")
        a(f"v_lshlrev_b32 v{t+4}, {bshift-4}, v{t+4}")
        a(f"v_and_or_b32 v{t+4}, v{vLANE}, {(1 << nl_log2) - 1}, v{t+4}")
        a(f"v_lshlrev_b32 v{t+4}, 4, v{t+4}")
        n = 2 << nl_log2
        a(f"s_mov_b64 exec, {(1 << n) - 1:#x}" if n < 32 else "s_mov_b32 exec_hi, 0")
        a(f"buffer_store_dwordx4 {R(t)}, v{t+4}, {S4(rWS)}, s{soff} offen")
        a("s_mov_b64 exec, -1")

    def store_dual(op, data, vaddr, soff, off=0):
        a(f"s_add_u32 s9, s{soff}, {DUAL}")
        a(f"{op} {data}, v{vaddr}, {S4(rWS)}, s9 offen offset:{off}")
        a(f"{op} {data}, v{vaddr}, {S4(rWS)}, s{soff} offen offset:{off} sc1")

    def untr(b):
        a(f"v_mov_b32 v{b+1}, v{b}")
        a(f"v_permlane32_swap_b32 v{b}, v{b+1}")
        a(f"v_mov_b32 v{b+2}, v{b}")
        a(f"v_mov_b32 v{b+3}, v{b+1}")
        a(f"v_permlane16_swap_b32 v{b}, v{b+2}")
        a(f"v_permlane16_swap_b32 v{b+1}, v{b+3}")

    def pk(op, d, x, y, n=4, ybc=False, neg=False):
        for k in range(0, n, 2):
            if ybc:
                yb, hi_ = y & ~1, y & 1
                m = f" op_sel:[0,{hi_}] op_sel_hi:[1,{hi_}]" + (" neg_lo:[0,1] neg_hi:[0,1]" if neg else "")
                a(f"v_pk_{op}_f32 {R(d+k, 2)}, {R(x+k, 2)}, {R(yb, 2)}{m}")
            else:
                a(f"v_pk_{op}_f32 {R(d+k, 2)}, {R(x+k, 2)}, {R(y+k, 2)}")

    def pkfma(d, x, f, n=4):
        fb, hi_ = f & ~1, f & 1
        for k in range(0, n, 2):
            a(f"v_pk_fma_f32 {R(d+k, 2)}, {R(x+k, 2)}, {R(fb, 2)}, {R(d+k, 2)} op_sel:[0,{hi_},0] op_sel_hi:[1,{hi_},1]")

    def kperm(d, t):
        a(f"v_bfe_u32 v{d}, v{vLANE}, 4, 1")
        a(f"v_lshrrev_b32 v{t}, 5, v{vLANE}")
        a(f"v_lshl_or_b32 v{d}, v{d}, 1, v{t}")

    xrec = 128 * (xstr // 2)
    MASK8 = "s_mov_b32 exec_lo, 0x00ff00ff\ns_mov_b32 exec_hi, 0x00ff00ff"
    FULL = "s_mov_b64 exec, -1"

    a("s_cmp_ge_u32 s2, 256")
    a("s_cbranch_scc1 L_end")
    a("s_load_dwordx16 s[16:31], s[0:1], 0")
    a("s_load_dwordx8 s[32:39], s[0:1], 64")
    a("s_load_dwordx2 s[40:41], s[0:1], 96")
    a("s_load_dwordx2 s[42:43], s[0:1], 112")
    if pin:
        a("s_memrealtime s[98:99]")
    if stamps:
        a(f"v_mov_b32 v{vST}, 0")
        a("s_memrealtime s[98:99]")
    a(f"v_lshrrev_b32 v4, 6, v0")
    a(f"v_and_b32 v{vLANE}, 63, v0")
    a(f"v_readfirstlane_b32 s{sW12}, v4")
    a(f"s_and_b32 s{sXCD}, s2, 7")
    a(f"s_lshr_b32 s{sIDX}, s2, 3")
    a(f"s_lshl_b32 s{sL}, s{sXCD}, 5")
    a(f"s_add_u32 s{sL}, s{sL}, s{sIDX}")
    a(f"s_lshr_b32 s{sAI}, s{sIDX}, 1")
    a(f"s_lshr_b32 s9, s{sAI}, 2")
    a(f"s_lshl_b32 s9, s9, 3")
    a(f"s_add_u32 s9, s9, s{sXCD}")
    a(f"s_lshl_b32 s{sBI}, s9, 2")
    a(f"s_and_b32 s9, s{sAI}, 3")
    a(f"s_add_u32 s{sBI}, s{sBI}, s9")
    a(f"s_mov_b32 s{sSELLO}, 0x05040100")
    a(f"s_mov_b32 s{sSELHI}, 0x07060302")
    a(f"s_mov_b32 s{sHI}, 0xffff0000")
    a(f"s_mov_b32 s{sLOG2E}, 0x3fb8aa3b")
    a(f"s_mov_b32 s{sSCALE}, 0x3db504f3")
    a(f"s_mov_b32 s{sTM}, {TAGM}")
    a(f"v_lshrrev_b32 v7, 3, v{vLANE}")
    a(f"s_sub_u32 s{sWAVE}, s{sW12}, 4")
    a(f"s_cmp_lg_u32 s{sW12}, 0")
    a("s_cbranch_scc1 L_noinit")
    a(f"v_lshlrev_b32 v4, 2, v{vLANE}")
    a(f"v_add_u32 v4, {ZB}, v4")
    a("v_mov_b32 v5, 0")
    a("ds_write_b32 v4, v5")
    a(f"ds_write_b32 v4, v5 offset:{QFL - ZB - 128}")
    a("L_noinit:")

    def kargs():
        a("s_waitcnt lgkmcnt(0)")
        if stamps:
            a(f"v_writelane_b32 v{vST}, s98, 0")

    def load_epoch():
        a(f"s_load_dword s{sEP}, s[{pWS}:{pWS+1}], {EPOCH}")

    def get_tag():
        a("s_waitcnt lgkmcnt(0)")
        a(f"s_add_u32 s{sEP}, s{sEP}, 1")
        a(f"s_and_b32 s{sTAG}, s{sEP}, {TAGM}")
        a(f"v_mov_b32 v{vTAG}, s{sTAG}")

    def wait_q():
        lp, dn = a.label("Lwq"), a.label("Lwqd")
        a(f"v_mov_b32 v4, {QFL}")
        a(f"s_mov_b32 s{sSPIN}, {spin*20}")
        a(f"{lp}:")
        a("ds_read_b32 v5, v4")
        a("s_waitcnt lgkmcnt(0)")
        a("v_cmp_ne_u32 vcc, 0, v5")
        a(f"s_cbranch_vccnz {dn}")
        a("s_sleep 1")
        a(f"s_sub_u32 s{sSPIN}, s{sSPIN}, 1")
        a(f"s_cbranch_scc0 {lp}")
        a(f"{dn}:")

    def wait_n(T):
        if T:
            a(f"s_waitcnt vmcnt({T-1})")

    def mod_tile(ngrp, srow0, scol, T, after_issue, before_issue):
        ACC, PT, W = 32, 64, 72
        vm = Vm(a)
        a(f"s_mul_i32 s10, s{srow0}, 12288")
        a(f"s_add_u32 s10, s10, s{scol}")
        a(f"s_mov_b32 s9, {8*12288}")
        a(f"v_mul_lo_u32 v8, v7, s9")
        a(f"v_and_b32 v9, 7, v{vLANE}")
        a(f"v_lshl_add_u32 v8, v9, 4, v8")
        a(f"v_bfe_u32 v10, v{vLANE}, 2, 1")
        a(f"v_lshlrev_b32 v10, 11, v10")
        a(f"v_lshl_add_u32 v10, v7, 4, v10")
        a(f"s_lshl_b32 s11, s{srow0}, 1")
        before_issue()
        srd(rT0, pWM, 12582912)
        srd(rT1, pC, 4096)
        for q4 in range(ngrp):
            tc = vm.issue(f"buffer_load_dwordx4 {R(ACC + q4*4)}, v10, {S4(rT1)}, s11 offen offset:{q4*128}")
        toks = {}

        def grp(q4):
            for e in range(8):
                a(f"s_add_u32 s9, s10, {(64*q4+e)*12288}")
                wait_n(T)
                toks[q4] = vm.issue(f"buffer_load_dwordx4 {R(W + (q4 % 3)*32 + e*4)}, v8, {S4(rT0)}, s9 offen {nt}")
        for q4 in range(min(ngrp, 3)):
            grp(q4)
        after_issue()
        if pure == 1:
            if ngrp == 4:
                vm.wait(toks[0])
                grp(3)
            a("s_waitcnt vmcnt(0)")
            a("s_branch L_fin")
        vm.wait(tc)
        a(f"s_mov_b32 s9, 0xbfb8aa3b")
        for i in range(4 * ngrp):
            lo(4, ACC + i)
            hi(5, ACC + i)
            a(f"v_mul_f32 v6, s9, v4\nv_mul_f32 v11, s9, v5")
            a(f"v_exp_f32 v6, v6\nv_exp_f32 v11, v11")
            a(f"v_add_f32 v6, 1.0, v6\nv_add_f32 v11, 1.0, v11")
            a(f"v_rcp_f32 v6, v6\nv_rcp_f32 v11, v11")
            a(f"v_mul_f32 v4, v4, v6\nv_mul_f32 v5, v5, v11")
            a(f"v_cvt_pk_bf16_f32 v{16+i}, v4, v5")
        a(f"v_and_b32 v11, 3, v{vLANE}")
        a(f"v_bfe_u32 v10, v{vLANE}, 4, 1")
        a(f"v_lshl_add_u32 v9, v10, 2, v11")
        a(f"v_lshrrev_b32 v10, 5, v{vLANE}")
        a(f"v_lshl_add_u32 v9, v9, 1, v10")
        a(f"v_bfe_u32 v10, v{vLANE}, 2, 1")
        for q4 in range(ngrp):
            vm.wait(toks[q4])
            for d in range(8):
                t = PT + (d & 1) * 4
                perm_operand(t, W + (q4 % 3) * 32, d)
                c = "0" if q4 == 0 else R(ACC + d * 4)
                a(f"v_mfma_f32_16x16x32_bf16 {R(ACC + d*4)}, {R(t)}, {R(16 + q4*4)}, {c}")
            if q4 + 3 < ngrp:
                grp(q4 + 3)
        O = 72
        for d in range(4):
            for r in range(4):
                a(f"v_permlane32_swap_b32 v{ACC + d*4 + r}, v{ACC + (d+4)*4 + r}")
        for d in range(4):
            for r in range(4):
                dpp_add(O + r * 4 + d, ACC + (d + 4) * 4 + r, ACC + d * 4 + r, 8)
        for r in range(1, 4):
            a(f"v_cmp_eq_u32 vcc, {r}, v11")
            for d in range(4):
                a(f"v_cndmask_b32 v{O+d}, v{O+d}, v{O + r*4 + d}, vcc")

    def tag4(d):
        a(f"v_add_u32 v{d}, {(T4+1)//2}, v{d}")
        a(f"v_bfi_b32 v{d}, {T4}, v{vTAG}, v{d}")

    def check4(regs):
        regs = list(regs)
        for r in regs:
            a(f"v_xor_b32 v{r}, v15, v{r}")
        a(f"v_or_b32 v{vBAD}, v{regs[0]}, v{regs[1]}")
        for i in range(2, len(regs), 2):
            a(f"v_or3_b32 v{vBAD}, v{vBAD}, v{regs[i]}, v{regs[i+1]}")
        a(f"v_and_b32 v{vBAD}, {T4}, v{vBAD}")
        a(f"v_or_b32_dpp v{vBAD}, v{vBAD}, v{vBAD} quad_perm:[1,0,3,2] row_mask:0xf bank_mask:0xf")
        a(f"v_or_b32_dpp v{vBAD}, v{vBAD}, v{vBAD} quad_perm:[2,3,0,1] row_mask:0xf bank_mask:0xf")
        a(f"v_or_b32_dpp v{vBAD}, v{vBAD}, v{vBAD} row_half_mirror row_mask:0xf bank_mask:0xf")

    def lds_wait(addr, val, cmp="eq"):
        lp, dn = a.label("Lw"), a.label("Lwd")
        a(f"v_mov_b32 v4, {addr}")
        a(f"s_mov_b32 s{sSPIN}, {spin*20}")
        a(f"{lp}:")
        a("ds_read_b32 v5, v4")
        a("s_waitcnt lgkmcnt(0)")
        a(f"v_cmp_{cmp}_u32 vcc, {val}, v5")
        a(f"s_cbranch_vccnz {dn}")
        a("s_sleep 1")
        a(f"s_sub_u32 s{sSPIN}, s{sSPIN}, 1")
        a(f"s_cbranch_scc0 {lp}")
        a(f"{dn}:")

    def get_loc():
        lp, dn = a.label("Lw"), a.label("Lwd")
        a(f"v_mov_b32 v4, {QFL+8}")
        a(f"s_mov_b32 s{sSPIN}, {spin*20}")
        a(f"{lp}:")
        a("ds_read_b32 v5, v4")
        a("s_waitcnt lgkmcnt(0)")
        a(f"v_cmp_ne_u32 vcc, 0, v5")
        a(f"s_cbranch_vccnz {dn}")
        a("s_sleep 1")
        a(f"s_sub_u32 s{sSPIN}, s{sSPIN}, 1")
        a(f"s_cbranch_scc0 {lp}")
        a(f"{dn}:")
        a(f"v_readfirstlane_b32 s{sLOC}, v5")

    def publish_moments(M, soff, with_quad=None):
        red4(M, ())
        a(f"v_add_f32_dpp v{M}, v{M}, v{M} quad_perm:[1,0,3,2] row_mask:0xf bank_mask:0xf")
        a(f"v_add_f32_dpp v{M}, v{M}, v{M} quad_perm:[2,3,0,1] row_mask:0xf bank_mask:0xf")
        a(f"v_add_f32_dpp v{M}, v{M}, v{M} row_half_mirror row_mask:0xf bank_mask:0xf")
        tag_round(M, M)
        untr(M)
        if with_quad is not None:
            a("s_mov_b64 exec, 0xff")
            for k in range(4):
                a(f"v_mov_b32 v{M+k}, v{with_quad+k}")
            a("s_mov_b64 exec, 0x101ff")
            a(f"buffer_store_dwordx4 {R(M)}, v{M+4}, {S4(rWS)}, s{soff} offen sc1")
            a(FULL)
            return
        a("s_mov_b64 exec, 0x101")
        a(f"buffer_store_dwordx4 {R(M)}, v{M+4}, {S4(rWS)}, s{soff} offen sc1")
        a(FULL)

    def moment_addr(d, kp, soff, kind):
        a(f"v_lshlrev_b32 v{d}, 1, v{vLANE}")
        a(f"s_add_u32 s{soff}, s75, {XS + kind*8192}")

    def hopB1():
        a(f"v_and_b32 v15, {T4}, v{vTAG}")
        a(f"v_lshrrev_b32 v7, 3, v{vLANE}")
        a(f"v_and_b32 v8, 7, v{vLANE}")
        a(f"v_lshlrev_b32 v9, 15, v7")
        a(f"v_lshl_add_u32 v9, v8, 4, v9")
        a(f"s_lshl_b32 s10, s{sL}, 7")
        a(f"s_add_u32 s11, s10, {QFN}")
        a(f"s_add_u32 s10, s10, {QP}")
        a(f"v_lshlrev_b32 v10, 4, v{vLANE}")
        get_loc()
        lds_wait(QFL + 4, 2)
        if bdelay:
            a(f"s_sleep {bdelay}")
        pollx(lambda: a(f"buffer_load_dwordx4 {R(32)}, v9, {S4(rWS)}, s10 offen sc1"), lambda: check4(range(32, 36)),
              f2=True, slp=cslp, name='b')
        red4(32, (8,))
        a("v_cvt_pk_bf16_f32 v32, v32, v32")
        a(f"v_bfi_b32 v32, s{sHI}, v32, v{vTAG}")
        untr(32)
        a("s_mov_b64 exec, 0xff")
        store_grp("buffer_store_dwordx4", R(32), 10, 11)
        a(FULL)
        a(f"v_mov_b32 v4, {QFL+4}\nv_mov_b32 v5, 3")
        a("ds_write_b32 v4, v5")
        a("s_waitcnt lgkmcnt(0)")
        stamp(14)
        a("s_branch L_fin")

    def hopB2():
        a(f"v_lshlrev_b32 v9, 4, v{vLANE}")
        a(f"s_lshl_b32 s10, s{sXCD}, 12")
        a(f"s_add_u32 s10, s10, {QFN}")
        lds_wait(QFL + 4, 3)

        def ld():
            for i in range(4):
                a(f"buffer_load_dwordx4 {R(32 + i*4)}, v9, {S4(rWS)}, s10 offen offset:{i*1024} sc1")
        pollx(ld, lambda: check_regs(range(32, 48)), slp=cslp, name='c')
        for e in range(8):
            a(f"v_perm_b32 v{48+e}, v{33+2*e}, v{32+2*e}, s{sSELHI}")
        a(f"v_and_b32 v9, 15, v{vLANE}")
        a(f"v_lshlrev_b32 v9, 4, v9")
        a(f"v_bfe_u32 v10, v{vLANE}, 4, 1")
        a(f"v_lshl_add_u32 v9, v10, 3, v9")
        a(f"v_lshrrev_b32 v10, 5, v{vLANE}")
        a(f"v_lshl_add_u32 v9, v10, 8, v9")
        a(f"v_add_u32 v9, {QB}, v9")
        for i in range(4):
            a(f"ds_write_b64 v9, {R(48 + 2*i, 2)} offset:{i*512}")
        a(f"v_mov_b32 v4, {QFL}\nv_mov_b32 v5, 2")
        a("s_waitcnt lgkmcnt(0)")
        a("ds_write_b32 v4, v5")
        a("s_waitcnt lgkmcnt(0)")
        stamp(4)
        a("s_branch L_fin")

    def hopB(half):
        a(f"v_and_b32 v15, {T4}, v{vTAG}")
        a(f"v_lshlrev_b32 v9, 4, v{vLANE}")
        a(f"s_lshl_b32 s10, s{sXCD}, 12")
        a(f"s_add_u32 s10, s10, {QP + half*2048}")
        for i in range(bdelay):
            a("s_sleep 37")

        def ld():
            for p in range(8):
                a(f"s_add_u32 s9, s10, {p*32768}")
                for i in range(2):
                    a(f"buffer_load_dwordx4 {R(32 + p*8 + i*4)}, v9, {S4(rWS)}, s9 offen offset:{i*1024} sc1")
        pollx(ld, lambda: check4(range(32, 96)), f2=True, slp=cslp)
        for st in (32, 16, 8):
            for e in range(st):
                a(f"v_add_f32 v{32+e}, v{32+e}, v{32+st+e}")
        for e in range(4):
            a(f"v_cvt_pk_bf16_f32 v{40+e}, v{32+2*e}, v{33+2*e}")
        a(f"v_lshlrev_b32 v9, 3, v{vLANE}")
        a(f"v_add_u32 v9, {QB + half*1024}, v9")
        for i in range(2):
            a(f"ds_write_b64 v9, {R(40 + 2*i, 2)} offset:{i*512}")
        a(f"v_mov_b32 v4, {QFL}\nv_mov_b32 v5, 1")
        a("s_waitcnt lgkmcnt(0)")
        a("s_mov_b64 exec, 1")
        a("ds_add_u32 v4, v5")
        a(FULL)
        a("s_waitcnt lgkmcnt(0)")
        stamp(4)
        a("s_branch L_fin")

    def f2_pack(src, dst):
        for k in range(4):
            a(f"v_mov_b32 v{dst+2*k}, v{src+k}")
            a(f"v_mov_b32 v{dst+2*k+1}, s{sEP}")

    def consumer_ids():
        a(f"s_lshr_b32 s12, s{sAI}, 2")
        a(f"s_and_b32 s13, s{sAI}, 3")
        a(f"s_lshl_b32 s13, s13, 5")
        a(f"s_lshl_b32 s9, s{sXCD}, 7")
        a(f"s_add_u32 s13, s13, s9")
        a(f"s_lshl_b32 s75, s12, 12")
        a(f"s_lshl_b32 s9, s13, 2")
        a(f"s_add_u32 s75, s75, s9")

    def w1_dma(vm, T, lo_=0, hi_=8, va=8, vb=9, sa=10, sb=11):
        srd(rT0, pW1, 7340032)
        a(f"v_lshrrev_b32 v{va}, 4, v{vLANE}")
        a(f"v_mul_u32_u24 v{va}, 7168, v{va}")
        a(f"v_and_b32 v{vb}, 15, v{vLANE}")
        a(f"v_lshl_add_u32 v{va}, v{vb}, 4, v{va}")
        a(f"s_and_b32 s{sa}, s{sBI}, 3")
        a(f"s_lshl_b32 s{sa}, s{sa}, 3")
        a(f"s_add_u32 s{sa}, s{sa}, s{sWAVE}")
        a(f"s_mul_i32 s{sa}, s{sa}, {32*7168}")
        a(f"s_lshr_b32 s{sb}, s{sBI}, 2")
        a(f"s_lshl_b32 s{sb}, s{sb}, 8")
        a(f"s_add_u32 s{sa}, s{sa}, s{sb}")
        a(f"s_lshl_b32 s{sb}, s{sWAVE}, 13")
        t = None
        for i in range(lo_, hi_):
            a(f"s_add_u32 m0, s{sb}, {WT + i*1024}")
            a(f"s_add_u32 s9, s{sa}, {4*i*7168}")
            wait_n(T)
            t = vm.issue(f"buffer_load_dwordx4 v{va}, {S4(rT0)}, s9 offen {nt} lds")
        return t

    if nohelp:
        a(f"s_cmp_lt_u32 s{sW12}, 4")
        a("s_cbranch_scc1 L_end")
    a(f"s_cmp_eq_u32 s{sW12}, 1")
    a("s_cbranch_scc1 L_moda")
    a(f"s_cmp_ge_u32 s{sW12}, 4")
    a("s_cbranch_scc1 L_att")
    a(f"s_cmp_eq_u32 s{sW12}, 0")
    a("s_cbranch_scc1 L_chain")
    a(f"s_cmp_eq_u32 s{sW12}, 2")
    a("s_cbranch_scc1 L_red")

    if codewarm:
        lw = a.label("Lnowarm")
        a(f"s_cmp_lt_u32 s{sIDX}, 30")
        a(f"s_cbranch_scc1 {lw}")
        a("s_getpc_b64 s[10:11]")
        a("L_pc0:")
        a(f"v_lshlrev_b32 v8, 4, v{vLANE}")
        a(f"s_mov_b32 s9, 0")
        lp = a.label("Lwarm")
        a(f"{lp}:")
        a(f"v_min_u32 v9, L_end-L_pc0-16, v8")
        a(f"global_load_dwordx4 {R(64)}, v9, s[10:11]")
        a(f"v_add_u32 v8, 1024, v8")
        a(f"s_add_u32 s9, s9, 1024")
        a(f"s_cmp_lt_u32 s9, L_end-L_pc0")
        a(f"s_cbranch_scc1 {lp}")
        a(f"{lw}:")
    a(f"v_lshrrev_b32 v11, 4, v{vLANE}")
    a(f"s_mov_b32 s9, {8*12288}")
    a(f"v_mul_lo_u32 v8, v11, s9")
    a(f"v_and_b32 v9, 15, v{vLANE}")
    a(f"v_lshl_add_u32 v8, v9, 4, v8")
    a(f"v_and_b32 v6, 1, v{vLANE}")
    a(f"v_lshlrev_b32 v10, 11, v6")
    a(f"v_lshl_add_u32 v10, v11, 4, v10")
    a(f"s_and_b32 s12, s{sIDX}, 7")
    a(f"s_lshr_b32 s14, s{sIDX}, 3")
    a(f"s_mul_i32 s10, s12, {128*12288}")
    a(f"s_lshl_b32 s14, s14, 3")
    a(f"s_add_u32 s14, s14, s{sXCD}")
    a(f"s_lshl_b32 s9, s14, 8")
    a(f"s_add_u32 s10, s10, s9")
    a(f"s_add_u32 s10, s10, 4096")
    a(f"s_lshl_b32 s11, s12, 8")
    a(f"s_lshl_b32 s15, s12, 15")
    a(f"s_lshl_b32 s9, s14, 9")
    a(f"s_add_u32 s15, s15, s9")
    a(f"s_add_u32 s15, s15, {MODP}")
    kargs()
    load_epoch()
    srd(rWS, pWS, WS_BYTES)
    srd(rT0, pWM, 12582912)
    srd(rT1, pC, 4096)
    a("s_barrier")
    if mbgate:
        lds_wait(QFL + 4, mbgate, "le")
    BO, ACC, PTm, Wm = 16, 32, 64, 72
    vm = Vm(a)
    for blk in range(4):
        tc = vm.issue(f"buffer_load_dwordx4 {R(BO + blk*4)}, v10, {S4(rT1)}, s11 offen offset:{blk*64}")
    toks = {}

    def mblk(blk):
        for e in range(8):
            a(f"s_add_u32 s9, s10, {(32*blk+e)*12288}")
            wait_n(thrb)
            toks[blk] = vm.issue(f"buffer_load_dwordx4 {R(Wm + (blk % 3)*32 + e*4)}, v8, {S4(rT0)}, s9 offen {nt}")
    mblk(0)
    mblk(1)
    mblk(2)
    get_tag()
    vm.wait(tc)
    a(f"s_mov_b32 s13, 0xbfb8aa3b")
    for blk in range(4):
        for i in range(4 * blk, 4 * blk + 4):
            lo(4, BO + i)
            hi(5, BO + i)
            a(f"v_mul_f32 v2, s13, v4\nv_mul_f32 v3, s13, v5")
            a(f"v_exp_f32 v2, v2\nv_exp_f32 v3, v3")
            a(f"v_add_f32 v2, 1.0, v2\nv_add_f32 v3, 1.0, v3")
            a(f"v_rcp_f32 v2, v2\nv_rcp_f32 v3, v3")
            a(f"v_mul_f32 v4, v4, v2\nv_mul_f32 v5, v5, v3")
            a(f"v_cvt_pk_bf16_f32 v{BO+i}, v4, v5")
        vm.wait(toks[blk])
        for d in range(8):
            t = PTm + (d & 1) * 4
            perm_operand(t, Wm + (blk % 3) * 32, d)
            c = "0" if blk == 0 else R(ACC + d * 4)
            a(f"v_mfma_f32_16x16x32_bf16 {R(ACC + d*4)}, {R(t)}, {R(BO + blk*4)}, {c}")
        if blk + 3 < 4:
            mblk(blk + 3)
    a(f"v_bfe_u32 v9, v{vLANE}, 1, 1")
    a(f"v_bfe_u32 v10, v{vLANE}, 2, 2")
    a("v_cmp_eq_u32 vcc, 1, v9")
    for i in range(16):
        a(f"v_cndmask_b32 v{ACC+i}, v{ACC+i}, v{ACC+16+i}, vcc")
    for r in range(1, 4):
        a(f"v_cmp_eq_u32 vcc, {r}, v10")
        for k in range(4):
            a(f"v_cndmask_b32 v{ACC+4*k}, v{ACC+4*k}, v{ACC+4*k+r}, vcc")
    for k in range(4):
        tag_round(16 + k, ACC + 4 * k)
    a(f"v_lshl_add_u32 v10, v11, 2, v10")
    a(f"v_lshl_add_u32 v9, v10, 1, v9")
    a(f"v_lshlrev_b32 v9, 4, v9")
    a(f"v_lshl_add_u32 v9, v6, 14, v9")
    get_loc()
    store_grp("buffer_store_dwordx4", R(16), 9, 15)
    stamp(16)
    a(f"s_bitcmp1_b32 s{sIDX}, 0")
    a("s_cbranch_scc1 L_fin")
    a(f"s_cmp_ge_u32 s{sAI}, 8")
    a("s_cbranch_scc1 L_fin")
    GA, XV, B2V = 32, 48, 49
    lds_wait(QFL, 2)
    consumer_ids()
    srd(rT0, pX, 4096)
    srd(rT1, pB2, 2048)
    kperm(4, 5)
    a(f"v_and_b32 v8, 7, v{vLANE}")
    a(f"v_lshl_add_u32 v11, v8, 2, v4")
    a(f"v_lshlrev_b32 v5, 1, v11")
    a(f"s_lshr_b32 s9, s75, 1")
    a(f"buffer_load_ushort v{XV}, v5, {S4(rT0)}, s9 offen")
    a(f"s_lshl_b32 s9, s13, 1")
    a(f"buffer_load_ushort v{B2V}, v5, {S4(rT1)}, s9 offen")
    a(f"v_lshlrev_b32 v10, 15, v7")
    a(f"v_lshl_add_u32 v10, v8, 4, v10")
    a(f"s_lshl_b32 s14, s12, 14")
    a(f"s_lshl_b32 s9, s13, 2")
    a(f"s_add_u32 s14, s14, s9")

    def gloads():
        for k in range(4):
            a(f"s_add_u32 s9, s14, {MODP + k*4096}")
            a(f"buffer_load_dwordx4 {R(GA + 4*k)}, v10, {S4(rWS)}, s9 offen sc1")
    pollx(gloads, lambda: check_regs(range(GA, GA + 16)), slp=16, name='m')
    for k in range(4):
        red4(GA + 4 * k, (8,))
    rnd2(GA, GA + 12, 5)
    rnd2(GA + 4, GA + 8, 5)
    a(f"v_add_f32 v{GA+8}, 1.0, v{GA+8}")
    rnd1(GA + 8, GA + 8)
    a(f"v_or_b32 v{GA+4}, v{vTAG}, v{GA+4}\nv_or_b32 v{GA+8}, v{vTAG}, v{GA+8}")
    a(f"v_lshlrev_b32 v9, 2, v11")
    a(f"s_add_u32 s9, s75, {X1 + 8192}")
    a(f"s_add_u32 s10, s75, {X1 + 16384}")
    a(f"v_mov_b32 v60, v{GA+4}\nv_mov_b32 v64, v{GA+8}")
    untr(60)
    untr(64)
    a(f"v_lshlrev_b32 v68, 4, v{vLANE}")
    a("s_mov_b64 exec, 0xff")
    a(f"buffer_store_dwordx4 {R(60)}, v68, {S4(rWS)}, s9 offen sc1")
    a(f"buffer_store_dwordx4 {R(64)}, v68, {S4(rWS)}, s10 offen sc1")
    a(FULL)
    lo(XV, XV)
    lo(B2V, B2V)
    a(f"v_add_u32 v5, {XB}, v9")
    a(f"ds_write_b32 v5, v{GA+12} offset:128")
    a(f"ds_write_b32 v5, v{B2V} offset:256")
    a(f"ds_write_b32 v5, v{GA} offset:384")
    a(f"ds_write_b32 v5, v{XV} offset:512")
    a(f"v_xor_b32 v{GA+4}, v{vTAG}, v{GA+4}\nv_xor_b32 v{GA+8}, v{vTAG}, v{GA+8}")
    a(f"ds_write_b32 v5, v{GA+4}")
    a(f"ds_write_b32 v5, v{GA+8} offset:640")
    moment_addr(56, 4, 10, 1)
    a(f"v_mov_b32 v52, v{GA+8}")
    a(f"v_mul_f32 v53, v{GA+8}, v{GA+8}")
    a(f"v_mul_f32 v54, v{GA+8}, v{GA+4}")
    a(f"v_mov_b32 v55, v{GA+4}")
    a("s_mov_b32 exec_lo, 0xff00ff00\ns_mov_b32 exec_hi, 0xff00ff00")
    a(f"v_mul_f32 v52, v{GA+4}, v{GA+4}")
    a("v_mov_b32 v53, 0\nv_mov_b32 v54, 0\nv_mov_b32 v55, 0")
    a(FULL)
    publish_moments(52, 10)
    a("s_waitcnt lgkmcnt(0)")
    a("s_branch L_fin")

    a("L_moda:")
    a("s_setprio 3")
    a(f"s_lshr_b32 s12, s{sIDX}, 2")
    a(f"s_lshl_b32 s13, s12, 7")
    a(f"s_bfe_u32 s14, s{sIDX}, 0x10001")
    a(f"s_and_b32 s15, s{sIDX}, 1")
    a(f"s_lshl_b32 s88, s14, 11")
    a(f"s_lshl_b32 s9, s{sXCD}, 8")
    a(f"s_add_u32 s88, s88, s9")
    a(f"s_lshl_b32 s9, s15, 7")
    a(f"s_add_u32 s88, s88, s9")

    def after_a():
        a("s_barrier")
        load_epoch()
        srd(rWS, pWS, WS_BYTES)
        get_tag()
        a(f"s_lshl_b32 s13, s{sXCD}, 14")
        a(f"s_lshl_b32 s9, s12, 11")
        a(f"s_add_u32 s13, s13, s9")
        a(f"s_lshl_b32 s9, s14, 10")
        a(f"s_add_u32 s13, s13, s9")
        a(f"s_lshl_b32 s9, s15, 8")
        a(f"s_add_u32 s13, s13, s9")
        a(f"s_add_u32 s13, s13, {MA}")
        prewrite(64, 4, 9, 13)
    mod_tile(2, 13, 88, 0, after_a, kargs)
    for d in range(4):
        tag4(72 + d)
    a(f"v_lshlrev_b32 v9, 4, v9")
    a(f"v_lshl_add_u32 v9, v10, 9, v9")
    a(MASK8)
    a(f"buffer_store_dwordx4 {R(72)}, v9, {S4(rWS)}, s13 offen")
    a(FULL)
    a(f"v_mov_b32 v4, {QFL+12}\nv_mov_b32 v5, 1")
    a("ds_write_b32 v4, v5")
    stamp(1)
    a("s_getreg_b32 s88, hwreg(HW_REG_XCC_ID)")
    a("s_lshl_b32 s88, s88, 12")
    if xdelay:
        a(f"s_sleep {xdelay}")
    a(f"v_and_b32 v8, 31, v{vLANE}")
    a(f"v_lshlrev_b32 v8, 7, v8")
    a(f"s_lshl_b32 s10, s{sXCD}, 12")
    a(f"s_add_u32 s10, s10, {XID}")
    pollx(lambda: a(f"buffer_load_dwordx4 {R(32)}, v8, {S4(rWS)}, s10 offen sc1"), lambda: check_regs(range(32, 36)), name='x')
    if 'x' in skip:
        a("v_mov_b32 v32, s88")
    a("v_cmp_ne_u32 vcc, s88, v32")
    a("s_cmp_eq_u64 vcc, 0")
    a(f"s_cselect_b32 s{sLOC}, {2 if noloc else 1}, 2")
    a(f"v_mov_b32 v4, {QFL+8}\nv_mov_b32 v5, s{sLOC}")
    a("ds_write_b32 v4, v5")
    stamp(25)
    a(f"s_cmp_eq_u32 s{sLOC}, 1")
    a("s_cbranch_scc1 L_maok")
    a(MASK8)
    a(f"buffer_store_dwordx4 {R(72)}, v9, {S4(rWS)}, s13 offen sc1")
    a(FULL)
    a("L_maok:")
    if b2stage:
        hopB2()
    else:
        lds_wait(QFL + 4, 2)
        hopB(0)

    a("L_red:")
    kargs()
    srd(rWS, pWS, WS_BYTES)
    load_epoch()
    a("s_barrier")
    a("s_setprio 3")
    vm = Vm(a)
    srd(rT1, pX, 4096)
    a(f"v_lshrrev_b32 v10, 5, v{vLANE}")
    a(f"v_and_b32 v11, 31, v{vLANE}")
    a(f"v_lshlrev_b32 v9, 11, v10")
    a(f"v_lshl_add_u32 v9, v11, 4, v9")
    for q in range(4):
        vm.issue(f"buffer_load_dwordx4 {R(72 + q*4)}, v9, {S4(rT1)}, 0 offen offset:{q*512}")
    a(f"v_lshlrev_b32 v9, 11, v10")
    a(f"v_lshl_add_u32 v9, v11, 3, v9")
    a(f"s_lshl_b32 s11, s{sXCD}, 8")
    tx = vm.issue(f"buffer_load_dwordx2 {R(88, 2)}, v9, {S4(rT1)}, s11 offen")
    a("s_getreg_b32 s88, hwreg(HW_REG_XCC_ID)")
    a("s_lshl_b32 s88, s88, 12")
    a(f"v_lshlrev_b32 v4, 4, v{vLANE}")
    a(f"s_lshl_b32 s9, s{sL}, 7")
    a(f"s_add_u32 s9, s9, {XID}")
    get_tag()
    a(f"v_or_b32 v96, s88, v{vTAG}")
    a("v_mov_b32 v97, v96\nv_mov_b32 v98, v96\nv_mov_b32 v99, v96")
    a("s_mov_b64 exec, 0xff")
    if 'X' not in skip:
        a(f"buffer_store_dwordx4 {R(96)}, v4, {S4(rWS)}, s9 offen sc1")
    a(FULL)
    a(f"s_add_u32 s9, s9, {QFN - XID}")
    prewrite(100, 2, 6, 9)
    if pure == 1:
        a("s_branch L_fin")
    def touch(n, lo_bits, hi_shift, base):
        a(f"v_lshrrev_b32 v101, {lo_bits}, v{vLANE}")
        a(f"v_lshlrev_b32 v101, {hi_shift - 7}, v101")
        a(f"v_and_or_b32 v101, v{vLANE}, {(1 << lo_bits) - 1}, v101")
        a(f"v_lshlrev_b32 v101, 7, v101")
        a(f"s_add_u32 s9, s9, {base}")
        if n < 64:
            a(f"s_mov_b64 exec, {(1 << n) - 1:#x}" if n < 32 else "s_mov_b32 exec_hi, 0")
        a(f"buffer_load_dword v100, v101, {S4(rWS)}, s9 offen")
        if n < 64:
            a(FULL)
    if 'm' in ptall:
        a(f"s_lshl_b32 s9, s{sXCD}, 14\ns_lshl_b32 s10, s{sAI}, 10\ns_add_u32 s9, s9, s10")
        a(f"s_and_b32 s10, s{sIDX}, 1\ns_lshl_b32 s10, s10, 8\ns_add_u32 s9, s9, s10")
        touch(4, 1, 9, MA)
    if 'q' in ptall:
        a(f"s_lshl_b32 s9, s{sXCD}, 15\ns_lshl_b32 s10, s{sIDX}, 9\ns_add_u32 s9, s9, s10")
        touch(8, 2, 14, QP)
    if 'f' in ptall:
        for base in (QFN, OF, ML):
            a(f"s_mul_i32 s9, s{sL}, {128 * (ofstr if base == OF else 1)}")
            touch(1, 0, 7, base)
    if 'd' in ptall:
        a(f"s_and_b32 s9, s{sIDX}, 7\ns_lshl_b32 s9, s9, 15")
        a(f"s_lshr_b32 s10, s{sIDX}, 3\ns_lshl_b32 s10, s10, 12\ns_add_u32 s9, s9, s10")
        a(f"s_lshl_b32 s10, s{sXCD}, 9\ns_add_u32 s9, s9, s10")
        touch(8, 2, 14, MODP)
    if 'o' in ptall:
        a(f"s_lshl_b32 s9, s{sXCD}, 17\ns_lshl_b32 s10, s{sIDX}, 9\ns_add_u32 s9, s9, s10")
        touch(32, 2, 14, OP)
    a(f"s_bitcmp1_b32 s{sIDX}, 0")
    a("s_cbranch_scc1 L_tB")
    if 'x' in ptall:
        a(f"s_lshl_b32 s9, s{sAI}, 13\ns_lshl_b32 s10, s{sXCD}, 9\ns_add_u32 s9, s9, s10")
        touch(8, 2, 12, XP)
    a(f"s_cmp_ge_u32 s{sBI}, 112")
    a("s_cbranch_scc1 L_tD")
    if 'y' in ptall:
        a(f"s_lshl_b32 s9, s{sBI}, 13")
        touch(64, 6, 13, YP)
    if 'x' in ptall:
        a(f"s_cmp_ge_u32 s{sAI}, 8")
        a("s_cbranch_scc1 L_tD")
        consumer_ids()
        a("s_mov_b32 s9, s75")
        touch(2, 0, 13, X1 + 8192)
        a("s_mov_b32 s9, s75")
        touch(1, 0, 13, XS + 8192)
        a(f"s_mul_i32 s9, s75, {xstr}")
        touch(1, 0, 7, XH)
        a(f"s_mul_i32 s9, s75, {xstr}")
        touch(1, 0, 7, XH + xrec)
    a("s_branch L_tD")
    a("L_tB:")
    a(f"s_cmp_ge_u32 s{sBI}, 112")
    a("s_cbranch_scc1 L_tD")
    if 'x' in ptall:
        a(f"s_lshl_b32 s9, s{sBI}, 10")
        touch(8, 3, 10, HP)
    a("L_tD:")
    nmin = ('X' not in skip) + ('m' in ptall) + ('q' in ptall) + 3 * ('f' in ptall) + ('d' in ptall) + ('o' in ptall)
    a(f"s_waitcnt vmcnt({nmin})")
    a("v_mov_b32 v4, 0\nv_mov_b32 v5, 0")
    for i in range(16):
        lo(6, 72 + i)
        hi(8, 72 + i)
        a(f"v_add_f32 v4, v4, v6\nv_fmac_f32 v5, v6, v6")
        a(f"v_add_f32 v4, v4, v8\nv_fmac_f32 v5, v8, v8")
    for r in (1, 2, 4, 8):
        dpp_add(4, 4, 4, r)
        dpp_add(5, 5, 5, r)
    allred(4, 6, "v_add_f32", (16,))
    allred(5, 6, "v_add_f32", (16,))
    ln_stats(4, 5, 6, 8, 9)
    for i in range(2):
        lo(24 + 2 * i, 88 + i)
        hi(25 + 2 * i, 88 + i)
        ln_apply(24 + 2 * i, 25 + 2 * i, 6, 8, 9)
    a(f"v_and_b32 v15, {T4}, v{vTAG}")
    a(f"v_lshlrev_b32 v9, 4, v{vLANE}")
    a(f"s_lshl_b32 s10, s{sXCD}, 14")
    a(f"s_add_u32 s10, s10, {MA}")

    if agate:
        lds_wait(QFL + 12, 1)
    if adelay:
        a(f"s_sleep {adelay}")

    def ldA():
        for p in range(8):
            if p % 2 == 0:
                a(f"s_add_u32 s9, s10, {p*2048}")
            for wh in range(2):
                a(f"buffer_load_dwordx4 {R(32 + p*8 + wh*4)}, v9, {S4(rWS)}, s9 offen offset:{(p % 2)*2048 + wh*1024} sc1")
    pollx(ldA, lambda: check4(range(32, 96)), f2=True, slp=cslp, name='a')
    stamp(2)
    for st in (32, 16, 8):
        for e in range(st):
            a(f"v_add_f32 v{32+e}, v{32+e}, v{32+st+e}")
    for i in range(2):
        s0, c0, l0 = 32 + 2 * i, 36 + 2 * i, 24 + 2 * i
        rnd2(s0, s0 + 1, 6)
        rnd2(c0, c0 + 1, 6)
        a(f"v_add_f32 v{c0}, 1.0, v{c0}\nv_add_f32 v{c0+1}, 1.0, v{c0+1}")
        rnd2(c0, c0 + 1, 6)
        a(f"v_mul_f32 v{c0}, v{c0}, v{l0}\nv_mul_f32 v{c0+1}, v{c0+1}, v{l0+1}")
        rnd2(c0, c0 + 1, 6)
        a(f"v_add_f32 v{c0}, v{c0}, v{s0}\nv_add_f32 v{c0+1}, v{c0+1}, v{s0+1}")
        a(f"v_cvt_pk_bf16_f32 v{40+i}, v{c0}, v{c0+1}")
    a(f"v_lshlrev_b32 v9, 3, v{vLANE}")
    a(f"v_add_u32 v9, {HB}, v9")
    a(f"ds_write_b64 v9, {R(40, 2)}")
    a(f"v_mov_b32 v4, {QFL+4}\nv_mov_b32 v5, 1")
    a("s_waitcnt lgkmcnt(0)")
    a("ds_write_b32 v4, v5")
    stamp(17)
    if b2stage:
        hopB1()
    else:
        lds_wait(QFL + 4, 2)
        hopB(1)

    a("L_chain:")
    a("s_setprio 3")
    W = 40
    a(f"v_lshrrev_b32 v11, 4, v{vLANE}")
    a(f"v_lshlrev_b32 v8, 16, v11")
    a(f"v_and_b32 v15, 15, v{vLANE}")
    a(f"v_lshl_add_u32 v8, v15, 4, v8")
    a(f"s_lshl_b32 s10, s{sXCD}, 20")
    a(f"s_lshl_b32 s11, s{sIDX}, 8")
    a(f"s_add_u32 s10, s10, s11")
    kargs()
    srd(rT0, pWQ, 8388608)
    srd(rWS, pWS, WS_BYTES)
    load_epoch()
    a("s_barrier")
    for blk in range(4):
        for e in range(8):
            a(f"s_add_u32 s9, s10, {(32*blk+e)*8192}")
            wait_n(thrq)
            a(f"buffer_load_dwordx4 {R(W + blk*32 + e*4)}, v8, {S4(rT0)}, s9 offen {nt}")
    if kgate:
        a(f"s_waitcnt vmcnt({kgate})")
        a(f"v_mov_b32 v4, {QFL+20}\nv_mov_b32 v5, 1")
        a("ds_write_b32 v4, v5")
    if stamps == 1:
        a("s_waitcnt vmcnt(0)")
        stamp(18)
    if pure == 1:
        a("s_branch L_fin")
    get_tag()
    a(f"v_bfe_u32 v6, v{vLANE}, 2, 1")
    a(f"v_lshlrev_b32 v8, 8, v6")
    a(f"v_lshl_add_u32 v8, v11, 4, v8")
    a(f"v_add_u32 v8, {HB}, v8")
    a(f"v_mov_b32 v7, {ZB}")
    a(f"v_lshrrev_b32 v9, 5, v{vLANE}")
    a(f"v_lshl_add_u32 v9, v9, 4, v15")
    a(f"v_lshlrev_b32 v9, 4, v9")
    a(f"v_and_b32 v6, 1, v11")
    a(f"v_lshl_add_u32 v9, v6, 14, v9")
    a(f"s_lshl_b32 s10, s{sXCD}, 15")
    a(f"s_lshl_b32 s11, s{sIDX}, 9")
    a(f"s_add_u32 s10, s10, s11")
    a(f"s_add_u32 s10, s10, {QP}")
    lds_wait(QFL + 4, 1)
    a("s_waitcnt vmcnt(0)")
    stamp(19)
    ACC = 4
    first = True
    for d in range(8):
        m16 = (0x11 << (d & 3)) << (8 * (d >> 2))
        m32 = m16 | (m16 << 16)
        a(f"s_mov_b32 vcc_lo, {m32:#x}\ns_mov_b32 vcc_hi, {m32:#x}")
        a(f"v_cndmask_b32 v10, v7, v8, vcc")
        for blk in range(4):
            a(f"ds_read_b128 {R(16 + blk*4)}, v10 offset:{blk*64}")
        for blk in range(4):
            t = 32 + (blk & 1) * 4
            perm_operand(t, W + blk * 32, d)
            a(f"s_waitcnt lgkmcnt({3-blk})")
            a(f"v_mfma_f32_16x16x32_bf16 {R(2)}, {R(16 + blk*4)}, {R(t)}, {'0' if first else R(2)}")
            first = False
    for d in range(4):
        tag4(2 + d)
    if 'Q' not in skip:
        a(f"buffer_store_dwordx4 {R(2)}, v9, {S4(rWS)}, s10 offen {qpol}")
    a(f"v_mov_b32 v8, {QFL+4}\nv_mov_b32 v7, 2")
    a("ds_write_b32 v8, v7")
    a("s_waitcnt lgkmcnt(0)")
    stamp(3)
    if hpt:
        a(f"s_bitcmp1_b32 s{sIDX}, 0")
        a("s_cbranch_scc1 L_ptB")
        a(f"v_lshrrev_b32 v9, 1, v{vLANE}")
        a(f"v_lshlrev_b32 v9, 9, v9")
        a(f"v_and_b32 v10, 1, v{vLANE}")
        a(f"v_lshl_add_u32 v9, v10, 7, v9")
        a(f"s_lshr_b32 s9, s{sL}, 2")
        a(f"s_lshl_b32 s10, s9, 14")
        a(f"s_and_b32 s9, s{sIDX}, 3")
        a(f"s_lshl_b32 s9, s9, 7")
        a(f"s_add_u32 s10, s10, s9")
        a(f"s_add_u32 s10, s10, {OP}")
        a(f"buffer_load_dword v16, v9, {S4(rWS)}, s10 offen {ptpol}")
        a(f"v_bfe_u32 v9, v{vLANE}, 2, 2")
        a(f"v_lshlrev_b32 v9, 12, v9")
        a(f"v_and_b32 v10, 3, v{vLANE}")
        a(f"v_lshl_add_u32 v9, v10, 7, v9")
        a(f"s_lshl_b32 s10, s{sIDX}, 13")
        a(f"s_lshl_b32 s9, s{sXCD}, 9")
        a(f"s_add_u32 s10, s10, s9")
        a(f"s_add_u32 s10, s10, {XP}")
        a(f"buffer_load_dword v17, v9, {S4(rWS)}, s10 offen {ptpol}")
        a("s_branch L_fin")
        a("L_ptB:")
        a(f"v_and_b32 v9, 7, v{vLANE}")
        a(f"v_lshlrev_b32 v9, 7, v9")
        a(f"s_lshl_b32 s10, s{sBI}, 10")
        a(f"s_add_u32 s10, s10, {HP}")
        a(f"buffer_load_dword v16, v9, {S4(rWS)}, s10 offen {ptpol}")
    a("s_branch L_fin")

    QF, DT, PT, KV = 16, 24, 32, 40
    if pure >= 2:
        def drop(l):
            if "buffer_store" in l:
                if pure in (3, 4): return True
                if pure == 5 and "sc1" in l: return True
                if pure == 6 and "sc1" not in l: return True
            if "buffer_load" in l and "sc1" in l and pure in (2, 4, 5, 6): return True
            return False
        a.lines = [l for l in a.lines if not drop(l)]
    a("L_att:")
    if kvmap == 0:
        USTR = 32768
        a(f"s_lshl_b32 s{sKV}, s{sL}, 18")
        a(f"s_lshl_b32 s9, s{sWAVE}, 12")
    elif kvmap == 1:
        USTR = 1 << 20
        a(f"s_lshl_b32 s{sKV}, s{sXCD}, 23")
        a(f"s_lshl_b32 s9, s{sIDX}, 15")
        a(f"s_add_u32 s{sKV}, s{sKV}, s9")
        a(f"s_lshl_b32 s9, s{sWAVE}, 12")
    elif kvmap == 2:
        USTR = 1 << 20
        a(f"s_lshl_b32 s{sKV}, s{sXCD}, 23")
        a(f"s_lshl_b32 s9, s{sIDX}, 12")
        a(f"s_add_u32 s{sKV}, s{sKV}, s9")
        a(f"s_lshl_b32 s9, s{sWAVE}, 17")
    a(f"s_add_u32 s{sKV}, s{sKV}, s9")
    if roti:
        a(f"s_and_b32 s9, s{sIDX}, 7")
        a(f"s_mul_i32 s9, s9, {USTR}")
        a(f"s_add_u32 s{sKV}, s{sKV}, s9")
    a(f"v_lshlrev_b32 v{vOV}, 4, v{vLANE}")
    a(f"v_and_b32 v6, 3, v{vLANE}")
    a(f"v_lshlrev_b32 v6, 10, v6")
    a(f"v_bfe_u32 v5, v{vLANE}, 2, 1")
    a(f"v_lshl_add_u32 v6, v5, 8, v6")
    a(f"v_lshl_add_u32 v{vOK}, v7, 4, v6")
    if klin == 1:
        a(f"v_and_b32 v6, 7, v{vLANE}\nv_lshlrev_b32 v6, 8, v6\nv_lshl_add_u32 v{vOK}, v7, 4, v6")
    if klin == 2:
        a(f"v_mov_b32 v{vOK}, v{vOV}")
    a(f"v_mov_b32 v4, {QFL}")
    a("s_mov_b64 vcc, 0")
    kargs()
    srd(rK, pK, 0x4000000)
    srd(rV, pV, 0x4000000)
    srd(rWS, pWS, WS_BYTES)
    a("s_barrier")
    def tile_setup(va, vb, so, sp, skip):
        l1, l2 = a.label("Lts"), a.label("Lts")
        a(f"v_lshrrev_b32 v{va}, 4, v{vLANE}")
        a(f"v_and_b32 v{vb}, 15, v{vLANE}")
        a(f"s_bitcmp1_b32 s{sIDX}, 0")
        a(f"s_cbranch_scc1 {l1}")
        srd(rT2, pWO, 8388608)
        a("s_mov_b32 s20, 64")
        a(f"s_lshl_b32 s{so}, s{sAI}, 19")
        a(f"s_lshl_b32 s9, s{sXCD}, 8")
        a(f"s_add_u32 s{so}, s{so}, s9")
        a(f"s_mov_b32 s{sp}, 2048")
        a(f"s_branch {l2}")
        a(f"{l1}:")
        a(f"s_cmp_ge_u32 s{sBI}, 112")
        a(f"s_cselect_b32 s20, 0, 64")
        srd(rT2, pW1, 7340032)
        a(f"s_and_b32 s{so}, s{sBI}, 3")
        a(f"s_mul_i32 s{so}, s{so}, {256*7168}")
        a(f"s_lshr_b32 s9, s{sBI}, 2")
        a(f"s_lshl_b32 s9, s9, 8")
        a(f"s_add_u32 s{so}, s{so}, s9")
        a(f"s_mov_b32 s{sp}, 7168")
        a(f"{l2}:")
        a(f"v_mul_lo_u32 v{va}, v{va}, s{sp}")
        a(f"v_lshl_add_u32 v{va}, v{vb}, 4, v{va}")
        a(f"s_lshl_b32 s{sp}, s{sp}, 2")

    def tile_rest(vm, va, so, sp, lo_, hi_):
        t = None
        a(f"s_add_u32 s11, s{sWAVE}, {8*lo_}")
        a(f"s_mul_i32 s9, s11, s{sp}")
        a(f"s_add_u32 s9, s9, s{so}")
        a(f"s_lshl_b32 m0, s11, 10")
        a(f"s_lshl_b32 s11, s{sp}, 3")
        for i in range(lo_, hi_):
            t = vm.issue(f"buffer_load_dwordx4 v{va}, {S4(rT2)}, s9 offen {nt} lds")
            if i + 1 < hi_:
                a(f"s_add_u32 m0, m0, 8192")
                a(f"s_add_u32 s9, s9, s11")
        return t

    def claim(fail, va=4, vb=5):
        a(f"v_mov_b32 v{va}, {QFL}\nv_mov_b32 v{vb}, 1")
        a("s_mov_b64 exec, 1")
        a(f"ds_add_rtn_u32 v{vb}, v{va}, v{vb} offset:16")
        a(FULL)
        a("s_waitcnt lgkmcnt(0)")
        a(f"v_readfirstlane_b32 s21, v{vb}")
        a(f"s_cmp_ge_u32 s21, s20")
        a(f"s_cbranch_scc1 {fail}")
        a("s_lshl_b32 m0, s21, 10")
        a("s_mul_i32 s9, s21, s19")
        a("s_add_u32 s9, s9, s18")
        a(f"buffer_load_dwordx4 v2, {S4(rT2)}, s9 offen {nt} lds")

    def claim_all(T=0):
        lp, dn = a.label("Lca"), a.label("Lcad")
        a(f"{lp}:")
        wait_n(T)
        claim(dn)
        a(f"s_branch {lp}")
        a(f"{dn}:")

    if kgate:
        lds_wait(QFL + 20, 1)
        a(f"v_mov_b32 v4, {QFL}")
        a("s_mov_b64 vcc, 0")
    load_epoch()
    thr_n = [0]

    if xmask:
        a(f"s_lshr_b32 s74, {xmask}, s{sXCD}")

    def wait_x(T, extra):
        if xmask and T:
            lsk = a.label("Lx")
            a("s_bitcmp1_b32 s74, 0")
            a(f"s_cbranch_scc1 {lsk}")
            wait_n(T)
            a(f"{lsk}:")
            wait_n(T + extra)
        else:
            wait_n(T)

    def thr_wait():
        if thr2 == thr:
            wait_x(thr, xk)
            return
        thr_n[0] += 1
        lsk = a.label("Lthr")
        a(f"s_cbranch_vccnz {lsk}")
        if thr_n[0] % 2 == 0:
            a("ds_read_b32 v5, v4")
        a(f"s_waitcnt vmcnt({thr-1})")
        if thr_n[0] % 2 == 0:
            a("s_waitcnt lgkmcnt(0)")
            a("v_cmp_eq_u32 vcc, 2, v5")
        a(f"{lsk}:")
        wait_n(thr2)

    vm = Vm(a)
    order = [2, 3, 0, 1, 4, 5, 6, 7]
    pos = {s: i for i, s in enumerate(order)}
    tk = {}
    for s in order:
        a(f"s_xor_b32 s9, s{sKV}, {pos[s]*USTR}")
        for t in range(2):
            for h in range(2):
                if thr:
                    thr_wait()
                tk[s] = vm.issue(f"buffer_load_dwordx4 {R(KV + s*16 + t*8 + h*4)}, v{vOK}, {S4(rK)}, s9 offen offset:{(t*512 + h*128, t*2048 + h*128, t*2048 + h*1024)[klin]} {nt}")
    vblk = [KV + 32, KV + 64, KV + 96, KV + 32]
    tv = [None] * 4
    if v0lds:
        vblk = [KV + 96, KV + 32, KV + 64, KV + 96]
        for e in range(8):
            if e % 4 == 0:
                a(f"s_xor_b32 s9, s{sKV}, {(e//4)*USTR}")
                a(f"s_lshl_b32 s10, s{sWAVE}, 13")
                a(f"s_add_u32 m0, s10, {WT + (e//4)*4096}")
            thr_wait()
            tv[0] = vm.issue(f"buffer_load_dwordx4 v{vOV}, {S4(rV)}, s9 offen offset:{(e % 4)*1024} {nt} lds")

    def vload(v):
        for e in range(8):
            if e % 4 == 0:
                a(f"s_xor_b32 s9, s{sKV}, {(2*v + e//4)*USTR}")
            wait_n(thrv)
            tv[v] = vm.issue(f"buffer_load_dwordx4 {R(vblk[v] + e*4)}, v{vOV}, {S4(rV)}, s9 offen offset:{(e % 4)*1024} {nt}")
    vnext = [8 if v0lds else 0]

    def vslot():
        if not fine:
            return
        n = vnext[0]
        vnext[0] += 1
        v, e = n // 8, n % 8
        if e % 4 == 0:
            a(f"s_xor_b32 s{sDU}, s{sKV}, {(2*v + e//4)*USTR}")
        wait_x(thrv, xv)
        tv[v] = vm.issue(f"buffer_load_dwordx4 {R(vblk[v] + e*4)}, v{vOV}, {S4(rV)}, s{sDU} offen offset:{(e % 4)*1024} {nt}")
    stamp(20)
    if pure:
        vm.wait(tk[3]); vload(0); vm.wait(tk[5]); vload(1); vm.wait(tk[7]); vload(2); vm.wait(tv[0]); vload(3)
        a("s_waitcnt vmcnt(0)")
        stamp(8)
        a("s_branch L_fin")
    get_tag()
    tile_setup(2, 5, 18, 19, None)
    if fill:
        a("L_fill:")
        wait_n(thr)
        a(f"v_mov_b32 v4, {QFL}")
        a("ds_read_b32 v5, v4")
        a("s_waitcnt lgkmcnt(0)")
        a("v_cmp_eq_u32 vcc, 2, v5")
        a("s_cbranch_vccnz L_filld")
        claim("L_fillx")
        a("s_branch L_fill")
        a("L_fillx:")
    lds_wait(QFL, 2)
    a("L_filld:")
    stamp(5)
    a(f"v_and_b32 v8, 7, v{vLANE}")
    a(f"v_lshlrev_b32 v9, 8, v8")
    a(f"v_lshl_add_u32 v9, v7, 4, v9")
    a(f"v_add_u32 v9, {QB}, v9")
    a(f"ds_read_b128 {R(QF)}, v9")
    a(f"ds_read_b128 {R(QF+4)}, v9 offset:128")
    a("s_waitcnt lgkmcnt(0)")
    Sreg = [PT, PT + 4, KV, KV + 4, KV + 8, KV + 12, KV + 16, KV + 20]

    def qk_mfma(s, X, Y):
        vm.wait(tk[s])
        k0 = KV + s * 16
        a(f"v_mfma_f32_16x16x32_bf16 {R(X)}, {R(k0)}, {R(QF)}, 0")
        a(f"v_mfma_f32_16x16x32_bf16 {R(Y)}, {R(k0+8)}, {R(QF)}, 0")
        a(f"v_mfma_f32_16x16x32_bf16 {R(X)}, {R(k0+4)}, {R(QF+4)}, {R(X)}")
        a(f"v_mfma_f32_16x16x32_bf16 {R(Y)}, {R(k0+12)}, {R(QF+4)}, {R(Y)}")

    def qk_post(p, X, Y):
        S = Sreg[p]
        for r in range(4):
            a(f"v_permlane32_swap_b32 v{X+r}, v{Y+r}")
        for r in range(4):
            dpp_add(S + r, Y + r, X + r, 8)
        for r in (0, 2):
            rnd2(S + r, S + r + 1, 4)
            a(f"v_mul_f32 v{S+r}, s{sSCALE}, v{S+r}\nv_mul_f32 v{S+r+1}, s{sSCALE}, v{S+r+1}")
            rnd2(S + r, S + r + 1, 4)
        if p == 0:
            a(f"v_max3_f32 v5, v{S}, v{S+1}, v{S+2}")
            a(f"v_max_f32 v5, v5, v{S+3}")
        else:
            a(f"v_max3_f32 v5, v5, v{S}, v{S+1}")
            a(f"v_max3_f32 v5, v5, v{S+2}, v{S+3}")
    qk_mfma(2, PT, DT)
    qk_mfma(3, PT + 4, DT + 4)
    if not fine:
        vload(0)
    vslot()
    qk_post(0, PT, DT)
    vslot()
    qk_post(1, PT + 4, DT + 4)
    for s in (0, 1, 4, 5, 6, 7):
        vslot()
        qk_mfma(s, DT, DT + 4)
        if s == 5 and not fine:
            vload(1)
        qk_post(pos[s], DT, DT + 4)
    vslot()
    if v0lds:
        a(f"s_lshl_b32 s9, s{sWAVE}, 13")
        a(f"v_add_u32 v9, s9, v{vOV}")
        vm.wait(tv[0])
        for e in range(8):
            a(f"ds_read_b128 {R(vblk[0] + e*4)}, v9 offset:{WT + e*1024}")
    allred(5, 6, "v_max_f32", (32, 16))
    a(f"v_lshlrev_b32 v9, 5, v8")
    a(f"v_add_u32 v10, {MX}, v9")
    a(f"s_lshl_b32 s9, s{sWAVE}, 2")
    a(f"v_add_u32 v11, s9, v10")
    a("s_mov_b64 exec, 0xff")
    a(f"ds_write_b32 v11, v5")
    a(FULL)
    if vearly and not fine:
        vload(2)
    vslot()
    a("s_waitcnt lgkmcnt(0)")
    stamp(6)
    a("s_barrier")
    vslot()
    a(f"v_mov_b32 v4, {QFL+8}")
    a(f"ds_read_b128 {R(16)}, v10")
    a(f"ds_read_b128 {R(20)}, v10 offset:16")
    a(f"ds_read_b32 v4, v4")
    a("s_waitcnt lgkmcnt(0)")
    a(f"v_readfirstlane_b32 s{sLOC}, v4")
    a(f"v_max3_f32 v5, v16, v17, v18\nv_max3_f32 v5, v5, v19, v20\nv_max3_f32 v5, v5, v21, v22\nv_max_f32 v5, v5, v23")
    a(f"v_mul_f32 v6, s{sLOG2E}, v5")
    a("v_mov_b32 v4, 0")
    sl = [Sreg[p] + r for p in range(8) for r in range(4)]
    for i, x in enumerate(sl):
        if i in (8, 20):
            vslot()
        a(f"v_fma_f32 v{x}, v{x}, s{sLOG2E}, -v6")
        a(f"v_exp_f32 v{x}, v{x}")
        if i:
            a(f"v_add_f32 v4, v4, v{sl[i-1]}")
    a(f"v_add_f32 v4, v4, v{sl[31]}")
    vslot()
    for i in range(16):
        a(f"v_cvt_pk_bf16_f32 v{QF+i}, v{sl[2*i]}, v{sl[2*i+1]}")
    allred(4, 6, "v_add_f32", (32, 16))
    a("s_mov_b64 exec, 0xff")
    a(f"ds_write_b32 v11, v4 offset:{LX-MX}")
    a(FULL)
    vslot()
    a("s_waitcnt lgkmcnt(0)")
    a("s_barrier")
    vslot()
    a(f"s_cmp_lg_u32 s{sWAVE}, 4")
    a("s_cbranch_scc1 L_noml")
    a(f"ds_read_b128 {R(32)}, v10 offset:{LX-MX}")
    a(f"ds_read_b128 {R(36)}, v10 offset:{LX-MX+16}")
    a(f"s_lshl_b32 s10, s{sL}, 7")
    a(f"s_add_u32 s10, s10, {ML}")
    a(f"v_lshlrev_b32 v9, 4, v8")
    a("s_waitcnt lgkmcnt(0)")
    a("v_add_f32 v32, v32, v33\nv_add_f32 v34, v34, v35\nv_add_f32 v36, v36, v37\nv_add_f32 v38, v38, v39")
    a("v_add_f32 v32, v32, v34\nv_add_f32 v36, v36, v38\nv_add_f32 v33, v32, v36")
    tag_trunc(32, 5)
    tag_trunc(33, 33)
    a("v_mov_b32 v34, v32\nv_mov_b32 v35, v33")
    a("s_mov_b64 exec, 0xff")
    store_grp("buffer_store_dwordx4", R(32), 9, 10)
    a(FULL)
    a("L_noml:")
    if not vearly and not fine:
        vload(2)
    a(f"v_mul_u32_u24 v9, 528, v8")
    a(f"v_lshrrev_b32 v10, 4, v{vLANE}")
    a(f"v_lshl_add_u32 v9, v10, 4, v9")
    a(f"s_mul_i32 s9, s{sWAVE}, 4224")
    a(f"s_add_u32 s9, s9, {OC}")
    a(f"v_add_u32 v9, s9, v9")
    a(f"v_lshrrev_b32 v10, 5, v{vLANE}")
    a(f"v_mul_u32_u24 v10, {4*4224}, v10")
    a(f"v_and_b32 v11, 31, v{vLANE}")
    a(f"v_lshlrev_b32 v11, 4, v11")
    a(f"s_mul_i32 s9, s{sWAVE}, 528")
    a(f"s_add_u32 s9, s9, {OC}")
    a(f"v_add3_u32 v10, v10, v11, s9")
    a(f"s_lshl_b32 s10, s{sXCD}, 3")
    a(f"s_add_u32 s10, s10, s{sWAVE}")
    a(f"s_lshl_b32 s10, s10, 5")
    a(f"s_add_u32 s10, s10, s{sIDX}")
    a(f"s_lshl_b32 s11, s10, 9")
    a(f"s_add_u32 s11, s11, {OP}")
    if prew:
        prewrite(PT, 4, 8, 11)
        a(f"s_bitcmp1_b32 s{sIDX}, 0")
        a("s_cbranch_scc1 L_pwB")
        a(f"s_lshr_b32 s9, s{sWAVE}, 2")
        a(f"s_add_u32 s9, s9, s{sIDX}")
        a(f"s_lshl_b32 s9, s9, 13")
        a(f"s_lshl_b32 s10, s{sXCD}, 9")
        a(f"s_add_u32 s9, s9, s10")
        a(f"s_and_b32 s10, s{sWAVE}, 3")
        a(f"s_lshl_b32 s10, s10, 7")
        a(f"s_add_u32 s9, s9, s10")
        a(f"s_add_u32 s9, s9, {XP}")
        prewrite(PT, 3, 12, 9)
        a("s_branch L_pwD")
        a("L_pwB:")
        a(f"s_cmp_ge_u32 s{sBI}, 112")
        a("s_cbranch_scc1 L_pwD")
        a(f"s_lshl_b32 s9, s{sBI}, 10")
        a(f"s_lshl_b32 s10, s{sWAVE}, 6")
        a(f"s_add_u32 s9, s9, s10")
        a(f"s_add_u32 s9, s9, {HP}")
        prewrite(PT, 2, 9, 9)
        a("L_pwD:")
    SA = KV
    MLR, F = (72, 88) if v0lds else (104, 120)
    a("s_mov_b32 s94, 0x00ff00ff\ns_mov_b32 s95, 0x00ff00ff")

    def mlloads():
        for i in range(4):
            a(f"buffer_load_dwordx4 {R(MLR + 4*i)}, v15, {S4(rWS)}, s89 offen offset:{i*1024} sc1")
    OPS = KV + 96
    assert not v0lds

    def perm_k(k):
        for d in range(8):
            sel = sSELHI if d & 1 else sSELLO
            a(f"v_perm_b32 v{OPS + 4*d + k}, v{vblk[3] + (2*k+1)*4 + (d >> 1)}, v{vblk[3] + 2*k*4 + (d >> 1)}, s{sel}")
    for v in range(4):
        if v == 3:
            vm.wait(tv[3] - 4)
            a(f"s_cmp_ge_u32 s88, 2")
            a("s_cbranch_scc1 L_nof")
            pollx(mlloads, lambda: check_regs(range(MLR, MLR + 16)), pre_issued='landed')
            a(f"v_max3_f32 v5, v{MLR}, v{MLR+4}, v{MLR+8}\nv_max_f32 v5, v5, v{MLR+12}")
            dpp_max(5, 5, 5, 8)
            allred(5, 6, "v_max_f32", (16, 32))
            for i in range(4):
                a(f"v_sub_f32 v{F+i}, v{MLR+4*i}, v5")
                a(f"v_mul_f32 v{F+i}, s{sLOG2E}, v{F+i}")
                a(f"v_exp_f32 v{F+i}, v{F+i}")
            a(f"v_mul_f32 v5, v{F}, v{MLR+1}")
            for i in range(1, 4):
                a(f"v_fmac_f32 v5, v{F+i}, v{MLR+1+4*i}")
            dpp_add(5, 5, 5, 8)
            allred(5, 6, "v_add_f32", (16, 32))
            a("v_rcp_f32 v5, v5")
            for i in range(4):
                a(f"v_mul_f32 v{F+i}, v{F+i}, v5")
            a(f"s_add_u32 s89, s{sL}, s{sWAVE}")
            a(f"s_sub_u32 s89, s89, 1")
            a(f"s_mul_i32 s89, s89, {128*ofstr}")
            a(f"s_add_u32 s89, s89, {OF}")
            a("L_nof:")
            perm_k(0)
            perm_k(1)
            a(f"s_bitcmp1_b32 s{sIDX}, 0")
            a("s_cbranch_scc1 L_nw1p")
            for i in range(w1pre):
                claim("L_nw1p")
            a(f"s_waitcnt vmcnt({w1pre + 2})")
            perm_k(2)
            a(f"s_waitcnt vmcnt({w1pre})")
            a("s_branch L_w1pd")
            a("L_nw1p:")
            a(f"s_waitcnt vmcnt(2)")
            perm_k(2)
            a(f"s_waitcnt vmcnt(0)")
            a("L_w1pd:")
            perm_k(3)
            for d in range(8):
                a(f"v_mfma_f32_16x16x32_bf16 {R(SA + d*4)}, {R(OPS + 4*d)}, {R(QF + v*4)}, {R(SA + d*4)}")
            continue
        vm.wait(tv[v])
        for d in range(8):
            if v == 0 or d % 2 == 0:
                vslot()
            t = PT + (d & 1) * 4
            perm_operand(t, vblk[v], d)
            c = "0" if v == 0 else R(SA + d * 4)
            a(f"v_mfma_f32_16x16x32_bf16 {R(SA + d*4)}, {R(t)}, {R(QF + v*4)}, {c}")
        if v == 0 and not fine:
            vload(3)
        if v == 1:
            a(f"v_lshlrev_b32 v15, 7, v7")
            a(f"s_andn2_b32 s88, 1, s{sIDX}")
            a(f"s_lshl_b32 s88, s88, 3")
            a(f"s_or_b32 s88, s88, s{sWAVE}")
            a(f"s_cmp_ge_u32 s88, 2")
            a("s_cbranch_scc1 L_noml2")
            a(f"s_lshl_b32 s89, s{sXCD}, 12")
            a(f"s_lshr_b32 s9, s{sIDX}, 2")
            a(f"s_lshl_b32 s9, s9, 4")
            a(f"s_add_u32 s89, s89, s9")
            a(f"s_add_u32 s89, s89, {ML}")
            mlloads()
            a(f"v_lshlrev_b32 v0, 9, v7")
            a(f"v_lshl_add_u32 v0, v8, 4, v0")
            a(f"s_lshr_b32 s9, s{sL}, 2")
            a(f"s_lshl_b32 s90, s9, 14")
            a(f"s_and_b32 s9, s{sIDX}, 2")
            a(f"s_add_u32 s9, s9, s{sWAVE}")
            a(f"s_lshl_b32 s9, s9, 7")
            a(f"s_add_u32 s90, s90, s9")
            a(f"s_add_u32 s90, s90, {OP}")
            for i in range(1, 4):
                a(f"s_add_u32 s{90+i}, s90, {i*4096}")
            if pretouch:
                for i in range(4):
                    a(f"buffer_load_dword v{MLR+16+i}, v0, {S4(rWS)}, s{90+i} offen sc1")
            a("L_noml2:")
    assert not fine or vnext[0] == 32
    stamp(7)
    a(MASK8)
    for d in range(8):
        a(f"ds_write_b128 v9, {R(SA + d*4)} offset:{d*64}")
    a(FULL)
    a("s_waitcnt lgkmcnt(0)")
    a("s_barrier")
    for k in range(4):
        a(f"ds_read_b128 {R(16 + 4*k)}, v10 offset:{k*4224}")
    a("s_waitcnt lgkmcnt(0)")
    pk("add", 16, 16, 20)
    pk("add", 24, 24, 28)
    pk("add", 20, 16, 24)
    pk("add", 16, 16, 24)
    for r in range(4):
        a(f"v_permlane32_swap_b32 v{16+r}, v{20+r}")
    pk("add", 16, 16, 20)
    for r in range(4):
        tag_trunc(16 + r, 16 + r)
    a("s_mov_b32 exec_hi, 0")
    store_grp("buffer_store_dwordx4", R(16), 11, 11)
    a(FULL)
    stamp(8)

    def h1a():
        ln = a.label("Lnoh1a")
        a(f"s_cmp_ge_u32 s88, 2")
        a(f"s_cbranch_scc1 {ln}")

        def oloads():
            for i in range(4):
                a(f"buffer_load_dwordx4 {R(MLR + 4*i)}, v0, {S4(rWS)}, s{90+i} offen sc1")
        pollx(oloads, lambda: check_regs(range(MLR, MLR + 16)), slp=0)
        pk("mul", MLR, MLR, F, ybc=True)
        pk("mul", MLR + 8, MLR + 8, F + 2, ybc=True)
        pkfma(MLR, MLR + 4, F + 1)
        pkfma(MLR + 8, MLR + 12, F + 3)
        pk("add", MLR, MLR, MLR + 8)
        red4(MLR, (8,))
        a(f"v_cvt_pk_bf16_f32 v{MLR}, v{MLR}, v{MLR}")
        a(f"v_bfi_b32 v{MLR}, s{sHI}, v{MLR}, v{vTAG}")
        untr(MLR)
        a("s_mov_b64 exec, 0xff")
        a(f"buffer_store_dwordx4 {R(MLR)}, v{vOV}, {S4(rWS)}, s89 offen sc1")
        a(FULL)
        stamp(24)
        if ackst:
            a("s_waitcnt vmcnt(0)")
            stamp(29)
        a(f"{ln}:")
    h1a()
    if notail:
        a("s_branch L_fin")
    a(f"s_bitcmp1_b32 s{sIDX}, 0")
    a("s_cbranch_scc1 L_tailB")

    def gemv8(W, Bv, acc, vrd):
        for s in range(8):
            a(f"ds_read_b128 {R(Bv + 4*s)}, v{vrd} offset:{s*64}")
        for s in range(8):
            a(f"s_waitcnt lgkmcnt({7-s})")
            c = "0" if s == 0 else R(acc)
            a(f"v_mfma_f32_16x16x32_bf16 {R(acc)}, {R(W + s*4)}, {R(Bv + 4*s)}, {c}")
        a(f"s_mov_b32 exec_lo, 0x00030003\ns_mov_b32 exec_hi, 0x00030003")
        for r in range(4):
            tag_trunc(acc + r, acc + r)

    vm = Vm(a)
    claim_all()
    WOP, W2O, W2R, AD, B1V = 72, 104, 136, 40, 29
    a(f"v_lshrrev_b32 v7, 4, v{vLANE}")
    a(f"v_and_b32 v9, 15, v{vLANE}")
    a(f"v_lshrrev_b32 v10, 5, v{vLANE}")
    a(f"v_and_b32 v5, 1, v7")
    a(f"v_lshlrev_b32 v20, 6, v5")
    a(f"v_bfe_u32 v6, v{vLANE}, 2, 2")
    a(f"v_lshl_add_u32 v20, v6, 3, v20")
    a(f"v_add_u32 v20, v20, v10")
    a(f"v_lshlrev_b32 v20, 8, v20")
    a(f"v_and_b32 v6, 3, v{vLANE}")
    a(f"v_lshl_add_u32 v20, v6, 3, v20")
    a(f"s_lshl_b32 s9, s{sWAVE}, 5")
    a(f"v_add_u32 v20, s9, v20")
    a(f"v_lshlrev_b32 v28, 12, v5")
    a(f"v_lshl_add_u32 v28, v9, 5, v28")
    a(f"v_lshl_add_u32 v28, v10, 4, v28")
    a(f"s_lshl_b32 s14, s{sBI}, 13")
    a(f"s_lshl_b32 s9, s{sWAVE}, 9")
    a(f"s_add_u32 s14, s14, s9")
    a(f"s_add_u32 s14, s14, {YP}")
    a(f"v_and_b32 v11, 31, v{vLANE}")
    a(f"v_lshlrev_b32 v21, 14, v10")
    a(f"v_lshl_add_u32 v21, v11, 4, v21")
    a(f"s_lshl_b32 s74, s{sAI}, 10")
    a(f"s_add_u32 s74, s74, {OF}")
    a(f"s_lshl_b32 s9, s{sWAVE}, 10")
    a(f"s_add_u32 s9, s9, {OB}")
    a(f"v_lshlrev_b32 v22, 9, v10")
    a(f"v_lshl_add_u32 v22, v11, 3, v22")
    a(f"v_add_u32 v22, s9, v22")
    a(f"v_and_b32 v5, 1, v{vLANE}")
    a(f"v_lshlrev_b32 v23, 9, v5")
    a(f"v_lshl_add_u32 v23, v7, 4, v23")
    a(f"v_add_u32 v23, s9, v23")
    a(f"v_lshlrev_b32 v24, 12, v5")
    a(f"v_lshl_add_u32 v24, v7, 4, v24")
    a(f"s_lshl_b32 s73, s{sAI}, 13")
    a(f"s_lshl_b32 s9, s{sXCD}, 9")
    a(f"s_add_u32 s73, s73, s9")
    a(f"s_lshl_b32 s9, s{sWAVE}, 6")
    a(f"s_add_u32 s73, s73, s9")
    a(f"s_add_u32 s73, s73, {XP}")
    srd(rT0, pW2, 7340032)
    srd(rT1, pB1, 7168)
    a(f"v_lshlrev_b32 v30, 14, v7")
    a(f"v_lshl_add_u32 v30, v9, 4, v30")
    a(f"s_lshl_b32 s15, s{sBI}, 16")
    a(f"s_lshl_b32 s9, s{sWAVE}, 8")
    a(f"s_add_u32 s15, s15, s9")
    kperm(4, 5)
    a(f"v_and_b32 v6, 7, v{vLANE}")
    a(f"v_lshl_add_u32 v31, v6, 2, v4")
    a(f"v_lshlrev_b32 v31, 1, v31")
    a(f"v_bfe_u32 v8, v{vLANE}, 3, 1")
    a(f"v_lshl_add_u32 v26, v8, 6, v31")
    a(f"s_lshl_b32 s9, s{sWAVE}, 7")
    a(f"s_add_u32 s9, s9, {H1B}")
    a(f"v_add_u32 v26, s9, v26")
    a(f"v_bfe_u32 v5, v{vLANE}, 2, 1")
    a(f"v_lshlrev_b32 v27, 6, v5")
    a(f"v_lshl_add_u32 v27, v7, 4, v27")
    a(f"v_add_u32 v27, s9, v27")
    a(f"v_lshlrev_b32 v25, 10, v7")
    a(f"v_lshl_add_u32 v25, v8, 9, v25")
    a(f"v_lshl_add_u32 v25, v6, 4, v25")
    a(f"s_and_b32 s9, s{sBI}, 3")
    a(f"s_lshl_b32 s89, s9, 7")
    a(f"s_andn2_b32 s10, s{sBI}, 3")
    a(f"s_lshl_b32 s10, s10, 10")
    a(f"s_add_u32 s89, s89, s10")
    a(f"s_add_u32 s89, s89, {HP}")
    GA, XV, B2V, GB, SV, TV = 72, 73, 74, 75, 76, 77
    consumer_ids()
    a(f"v_lshrrev_b32 v6, 3, v{vLANE}")
    a(f"v_and_b32 v8, 7, v{vLANE}")
    a(f"v_lshl_add_u32 v11, v8, 2, v4")
    a(f"v_lshlrev_b32 v5, 2, v11")
    a(f"v_add_u32 v2, {XB}, v5")
    a(f"s_mul_i32 s88, s75, {xstr}")
    a(f"s_add_u32 s88, s88, {XH}")
    a(f"v_lshlrev_b32 v0, 13, v6")
    a(f"v_lshl_add_u32 v0, v8, 4, v0")
    for r in range(32):
        a(f"v_mov_b32 v{AD+r}, 0")
    a("s_waitcnt vmcnt(0)")
    a("s_barrier")
    for s in range(8):
        for h in range(2):
            a(f"ds_read_b64_tr_b16 {R(WOP + s*4 + h*2, 2)}, v20 offset:{WT + 32768*(s >> 2) + 8192*h + 512*(s & 3)}")
    stamp(26)

    def ldOF():
        a(f"buffer_load_dwordx4 {R(32)}, v21, {S4(rWS)}, s74 offen sc1")
        a(f"buffer_load_dwordx4 {R(36)}, v21, {S4(rWS)}, s74 offen offset:512 sc1")
    if '1' in sg:
        a(f"s_lshl_b32 s9, s{sWAVE}, 7")
        a(f"s_add_u32 s10, s74, s9")
        sgate(10, [0, 16384])
        a("s_barrier")
    pollx(ldOF, lambda: check_regs(range(32, 40)))
    stamp(9)
    for k in range(4):
        a(f"v_perm_b32 v{16+k}, v{33+2*k}, v{32+2*k}, s{sSELHI}")
    a(f"ds_write_b64 v22, {R(16, 2)}")
    a(f"ds_write_b64 v22, {R(18, 2)} offset:256")
    a("s_waitcnt lgkmcnt(0)")
    gemv8(WOP, 104, 32, 23)
    store_grp("buffer_store_dwordx4", R(32), 24, 73)
    a(FULL)
    stamp(10)
    a(f"s_cmp_ge_u32 s{sBI}, 112")
    a("s_cbranch_scc1 L_fin")
    a(f"s_cmp_ge_u32 s{sAI}, 8")
    a("s_cbranch_scc1 L_noh2")
    a(f"s_cmp_lg_u32 s{sWAVE}, 7")
    a("s_cbranch_scc1 L_h2d")
    a(f"ds_read_b32 v{GA}, v2 offset:384")
    a(f"ds_read_b32 v{XV}, v2 offset:512")
    a(f"ds_read_b32 v{B2V}, v2 offset:256")
    a(f"ds_read_b32 v{GB}, v2 offset:128")
    a(f"ds_read_b32 v{SV}, v2")
    a(f"ds_read_b32 v{TV}, v2 offset:640")
    a(f"v_mov_b32 v96, v{vOV}")
    a(f"s_mov_b32 s9, {xrec + 16}")
    a("v_writelane_b32 v96, s9, 8")
    a(f"s_mov_b32 s9, {xrec}")
    a("v_writelane_b32 v96, s9, 16")
    a(f"s_add_u32 s10, s75, {XP}")
    a(f"s_add_u32 s11, s75, {XP + 65536}")
    a("s_mov_b32 s94, 0xff00ff00\ns_mov_b32 s95, 0xff00ff00")
    SM = "s[94:95]"
    a("s_waitcnt lgkmcnt(0)")
    a(f"v_cndmask_b32 v81, 1.0, v{TV}, {SM}")

    def xloads():
        a(f"buffer_load_dwordx4 {R(84)}, v0, {S4(rWS)}, s10 offen sc1")
        a(f"buffer_load_dwordx4 {R(88)}, v0, {S4(rWS)}, s11 offen sc1")
    pollx(xloads, lambda: check_regs(range(84, 92)), slp=0)
    stamp(11)
    pk("add", 84, 84, 88)
    red4(84, (8,))
    rnd1(84, 84)
    a(f"v_mul_f32 v84, v{GA}, v84")
    rnd1(84, 84)
    a(f"v_add_f32 v84, v{XV}, v84")
    rnd1(XV, 84)
    a(f"v_mul_f32 v94, v{XV}, v{TV}")
    a(f"v_or_b32 v84, v{vTAG}, v{XV}")
    a(f"v_cndmask_b32 v82, v{XV}, v{SV}, {SM}")
    a(f"v_cndmask_b32 v80, v{XV}, v94, {SM}")
    a(f"v_cndmask_b32 v94, v94, 0, {SM}")
    a(f"v_mul_f32 v92, v80, v81")
    a(f"v_mul_f32 v93, v80, v82")
    a(f"v_mul_f32 v95, v94, v94")
    untr(84)
    publish_moments(92, 88, 84)
    stamp(12)
    a("s_cmp_lg_u32 s2, 0")
    a("s_cbranch_scc1 L_h2d")
    if pin:
        a("L_pin:")
        a("s_memrealtime s[96:97]")
        a("s_waitcnt lgkmcnt(0)")
        a("s_sub_u32 s96, s96, s98")
        a(f"s_cmp_lt_u32 s96, {pin}")
        a("s_cbranch_scc1 L_pin")
    a(f"v_mov_b32 v98, s{sEP}")
    a("v_mov_b32 v99, 0")
    a("s_mov_b64 exec, 1")
    a(f"buffer_store_dword v98, v99, {S4(rWS)}, 0 offen offset:{EPOCH} sc1")
    a("s_mov_b64 exec, -1")
    a("s_branch L_h2d")
    a("L_noh2:")
    if w2delay:
        a(f"s_sleep {w2delay}")
    a("L_h2d:")
    a("s_barrier")
    for e in range(8):
        if e % 2 == 0:
            a(f"s_add_u32 s9, s15, {e*2048}")
        a(f"buffer_load_dwordx4 {R(W2R + e*4)}, v30, {S4(rT0)}, s9 offen offset:{(e % 2)*2048} {nt}")
    a(f"s_lshl_b32 s9, s{sBI}, 6")
    a(f"buffer_load_ushort v{B1V}, v31, {S4(rT1)}, s9 offen")
    a("s_waitcnt vmcnt(0)")
    for d in range(8):
        perm_operand(W2O + d * 4, W2R, d)
    lo(B1V, B1V)
    stamp(27)
    pollx(lambda: a(f"buffer_load_dwordx4 {R(136)}, v25, {S4(rWS)}, s89 offen sc1"), lambda: check_regs(range(136, 140)), slp=0)
    stamp(23)
    red4(136, ())
    rnd1(136, 136)
    a(f"v_add_f32 v136, v136, v{B1V}")
    rnd1(136, 136)
    a("v_mul_f32 v137, v136, v136")
    a("v_mul_f32 v137, 0x3d372713, v137")
    a("v_fma_f32 v137, v137, v136, v136")
    a("v_mul_f32 v137, 0xc0135761, v137")
    a("v_exp_f32 v137, v137")
    a("v_add_f32 v137, 1.0, v137")
    a("v_rcp_f32 v137, v137")
    a("v_mul_f32 v136, v136, v137")
    a("v_cvt_pk_bf16_f32 v136, v136, v136")
    a("ds_write_b16 v26, v136")
    a("s_waitcnt lgkmcnt(0)")
    for d in range(8):
        m16 = (0x11 << (d & 3)) << (8 * (d >> 2))
        m32 = m16 | (m16 << 16)
        a(f"s_mov_b32 exec_lo, {m32:#x}\ns_mov_b32 exec_hi, {m32:#x}")
        a(f"ds_read_b128 {R(AD + 4*d)}, v27")
    a(FULL)
    for d in range(8):
        a(f"s_waitcnt lgkmcnt({7-d})")
        c = "0" if d == 0 else R(136)
        a(f"v_mfma_f32_16x16x32_bf16 {R(136)}, {R(AD + 4*d)}, {R(W2O + 4*d)}, {c}")
    for r in range(4):
        tag_trunc(136 + r, 136 + r)
    a(f"buffer_store_dwordx4 {R(136)}, v28, {S4(rWS)}, s14 offen sc1")
    stamp(28)
    a(f"s_cmp_ge_u32 s{sAI}, 8")
    a("s_cbranch_scc1 L_fin")
    srd(rT3, pOUT, 4096)
    a(f"s_mul_i32 s11, s{sWAVE}, {14*8192}")
    a(f"s_add_u32 s11, s11, s75")
    a(f"s_add_u32 s11, s11, {YP}")
    a(f"s_add_u32 s15, s11, {8*8192}")
    a(f"s_lshl_b32 s9, s{sWAVE}, 2")
    a(f"s_add_u32 s9, s9, {FB}")
    a(f"v_lshl_add_u32 v9, v11, 5, s9")
    a(f"v_lshlrev_b32 v8, 5, v11")
    a(f"v_add_u32 v8, {FB}, v8")
    a(f"s_lshr_b32 s10, s75, 1")
    a(f"v_lshlrev_b32 v10, 1, v11")
    for r in range(44, 48):
        a(f"v_mov_b32 v{r}, 0")
    a(f"s_mov_b32 s94, -1\ns_mov_b32 s95, 0xffff")

    def ldH4():
        a(f"buffer_load_dwordx4 {R(40)}, v0, {S4(rWS)}, s11 offen sc1")
        a(f"s_and_saveexec_b64 s[{sEX}:{sEX+1}], s[94:95]")
        a(f"buffer_load_dwordx4 {R(44)}, v0, {S4(rWS)}, s15 offen sc1")

    def ckH4():
        for r in range(44, 48):
            a(f"v_xor_b32 v{r}, v{vTAG}, v{r}")
        a(f"s_mov_b64 exec, s[{sEX}:{sEX+1}]")
        check_regs(range(40, 44))
        a(f"v_or3_b32 v{vBAD}, v{vBAD}, v44, v45")
        a(f"v_or3_b32 v{vBAD}, v{vBAD}, v46, v47")
    if h4delay:
        a(f"s_sleep {h4delay}")
    if '4' in sg:
        sgate(11, [k * 8192 for k in range(14)])
    pollx(ldH4, ckH4)
    stamp(13)
    pk("add", 40, 40, 44)
    red4(40, (8,))
    a("ds_write_b32 v9, v40")
    a("s_waitcnt lgkmcnt(0)")
    a("s_barrier")
    a(f"s_cmp_lg_u32 s{sWAVE}, 7")
    a("s_cbranch_scc1 L_fin")
    a(f"ds_read_b128 {R(40)}, v8")
    a(f"ds_read_b128 {R(44)}, v8 offset:16")
    a("s_waitcnt lgkmcnt(0)")
    pk("add", 40, 40, 44)
    a("v_add_f32 v40, v40, v41\nv_add_f32 v42, v42, v43\nv_add_f32 v40, v40, v42")
    rnd1(40, 40)
    a(f"v_add_f32 v40, v{B2V}, v40")
    rnd1(40, 40)
    a(f"v_mul_f32 v40, v{GB}, v40")
    rnd1(40, 40)
    a(f"v_add_f32 v40, v{XV}, v40")
    a("v_cvt_pk_bf16_f32 v40, v40, v40")
    a(MASK8)
    a(f"buffer_store_short v40, v10, {S4(rT3)}, s10 offen")
    a(FULL)

    a("s_branch L_fin")

    a("L_tailB:")
    a(f"s_cmp_ge_u32 s{sBI}, 112")
    a("s_cbranch_scc1 L_fin")
    W1O = 72
    XR, SB, CB, MR = 32, 36, 16, 136
    a(f"v_lshrrev_b32 v7, 4, v{vLANE}")
    a(f"s_and_b32 s9, s{sBI}, 3")
    a(f"s_lshl_b32 s13, s9, 10")
    a(f"s_lshl_b32 s10, s{sWAVE}, 12")
    a(f"s_add_u32 s13, s13, s10")
    a(f"s_add_u32 s15, s13, {X1 + 8192}")
    a(f"s_add_u32 s88, s13, {X1 + 16384}")
    a(f"s_mul_i32 s74, s13, {xstr}")
    a(f"s_add_u32 s74, s74, {XH}")
    a(f"v_lshrrev_b32 v6, 1, v{vLANE}")
    a(f"v_and_b32 v5, 1, v{vLANE}")
    a(f"v_lshlrev_b32 v20, 7, v6")
    a(f"v_lshl_add_u32 v20, v5, 4, v20")
    a(f"v_mul_u32_u24 v21, {128*xstr}, v6")
    a(f"v_lshl_add_u32 v21, v5, 4, v21")
    a(f"s_add_u32 s89, s10, {XS + 8192}")
    a(f"s_mul_i32 s91, s{sWAVE}, {4096*xstr}")
    a(f"s_add_u32 s91, s91, {XH + xrec}")
    a(f"s_lshl_b32 s10, s{sWAVE}, 9")
    a(f"s_add_u32 s10, s10, {YB}")
    a(f"v_lshl_add_u32 v22, v{vLANE}, 3, s10")
    a(f"v_lshlrev_b32 v23, 9, v5")
    a(f"v_lshl_add_u32 v24, v7, 4, v23")
    a(f"v_add_u32 v23, {YB}, v24")
    a(f"s_lshl_b32 s90, s{sBI}, 10")
    a(f"s_lshl_b32 s9, s{sWAVE}, 6")
    a(f"s_add_u32 s90, s90, s9")
    a(f"s_add_u32 s90, s90, {HP}")
    a(f"v_bfe_u32 v25, v{vLANE}, 2, 2")
    a(f"v_lshl_add_u32 v25, v7, 3, v25")
    a(f"v_lshlrev_b32 v25, 8, v25")
    a(f"v_and_b32 v6, 3, v{vLANE}")
    a(f"v_lshl_add_u32 v25, v6, 3, v25")
    a(f"s_lshl_b32 s9, s{sWAVE}, 5")
    a(f"v_add_u32 v25, s9, v25")
    a(f"v_lshrrev_b32 v6, 3, v{vLANE}")
    a(f"v_and_b32 v8, 7, v{vLANE}")
    a(f"v_mul_u32_u24 v26, {128*xstr}, v6")
    a(f"v_lshl_add_u32 v26, v8, 4, v26")
    a("s_barrier")
    vm = Vm(a)

    def ldS():
        a(f"buffer_load_dwordx4 {R(SB)}, v{vOV}, {S4(rWS)}, s15 offen sc1")
        a(f"buffer_load_dwordx4 {R(CB)}, v{vOV}, {S4(rWS)}, s88 offen sc1")
        a(f"buffer_load_dwordx4 {R(MR)}, v20, {S4(rWS)}, s89 offen sc1")
    LANE_OF = [0, 32, 16, 48, 1, 33]
    a(f"s_cmp_ge_u32 s{sWAVE}, 2")
    a("s_cbranch_scc1 L_nocst")
    pollx(ldS, lambda: check_regs(list(range(SB, SB + 4)) + list(range(CB, CB + 4)) + list(range(MR, MR + 4))))
    red4(MR, (2, 4, 8))
    a(f"v_mul_f32 v{MR}, 0x3a800000, v{MR}")
    for k in range(5):
        a(f"v_readlane_b32 s9, v{MR}, {LANE_OF[k]}")
        a(f"v_mov_b32 v{144+k}, s9")
    a("L_nocst:")
    if w1delay:
        a(f"s_sleep {w1delay}")
    claim_all(w1thr)
    a("s_waitcnt vmcnt(0)")
    a("s_barrier")
    for s in range(8):
        for h in range(2):
            a(f"ds_read_b64_tr_b16 {R(W1O + s*4 + h*2, 2)}, v25 offset:{WT + 8192*s + 1024*h}")
    stamp(26)
    if '3' in sg:
        a(f"s_mul_i32 s10, s{sWAVE}, {512*xstr}")
        a(f"s_add_u32 s10, s10, {XH + xrec}")
        sgate(10, [(b * 32 + k) * 128 * xstr for b in range(2) for k in range(4)])
        a("s_barrier")
    a(f"s_cmp_ge_u32 s{sWAVE}, 2")
    a("s_cbranch_scc1 L_ydone")

    def ldH3():
        a(f"buffer_load_dwordx4 {R(XR)}, v26, {S4(rWS)}, s74 offen sc1")
        a(f"buffer_load_dwordx4 {R(MR)}, v21, {S4(rWS)}, s91 offen sc1")
    pollx(ldH3, lambda: check_regs(list(range(XR, XR + 4)) + list(range(MR, MR + 4))), slp=h3slp)
    stamp(10)
    red4(MR, (2, 4, 8))
    a(f"v_mul_f32 v{MR}, 0x3a800000, v{MR}")
    for k, sr in enumerate((10, 11, 12, 13, 15, 88)):
        a(f"v_readlane_b32 s{sr}, v{MR}, {LANE_OF[k]}")

    def stats_tail(mean, ex2, t, mb, rs):
        a(f"v_fma_f32 v{ex2}, -v{mean}, v{mean}, v{ex2}")
        a(f"v_max_f32 v{ex2}, 0, v{ex2}")
        a(f"v_cvt_pk_bf16_f32 v{t}, v{mean}, v{ex2}")
        hi(ex2, t)
        lo(mb, t)
        a(f"v_add_f32 v{ex2}, 0x3727c5ac, v{ex2}")
        rnd1(ex2, ex2)
        a(f"v_sqrt_f32 v{ex2}, v{ex2}")
        rnd1(ex2, ex2)
        a(f"v_rcp_f32 v{rs}, v{ex2}")
    a("v_mov_b32 v5, s10\nv_mov_b32 v6, s11")
    stats_tail(5, 6, 60, 140, 141)
    a(f"v_fma_f32 v150, -v140, v144, s12")
    a(f"v_mul_f32 v151, v140, v145")
    a(f"v_fma_f32 v151, -2.0, s15, v151")
    a(f"v_fma_f32 v151, v140, v151, s13")
    a(f"v_fma_f32 v152, -v140, v146, s88")
    pk("add", XR, XR, 140, ybc=True, neg=True)
    for k in (0, 2):
        rnd2(XR + k, XR + k + 1, 60 + k // 2)
    a(f"v_fma_f32 v5, v141, v150, v147")
    a(f"v_mul_f32 v151, v141, v151")
    a(f"v_fma_f32 v151, 2.0, v152, v151")
    a(f"v_fma_f32 v6, v141, v151, v148")
    pk("mul", XR, XR, 141, ybc=True)
    for k in (0, 2):
        rnd2(XR + k, XR + k + 1, 60 + k // 2)
    stats_tail(5, 6, 62, 142, 143)
    pk("mul", XR, XR, CB)
    for k in (0, 2):
        rnd2(XR + k, XR + k + 1, 60 + k // 2)
    pk("add", XR, XR, SB)
    for k in (0, 2):
        rnd2(XR + k, XR + k + 1, 60 + k // 2)
    pk("add", XR, XR, 142, ybc=True, neg=True)
    for k in (0, 2):
        rnd2(XR + k, XR + k + 1, 60 + k // 2)
    pk("mul", XR, XR, 143, ybc=True)
    a(f"v_cvt_pk_bf16_f32 v28, v{XR}, v{XR+1}\nv_cvt_pk_bf16_f32 v29, v{XR+2}, v{XR+3}")
    a(f"ds_write_b64 v22, {R(28, 2)}")
    a("s_waitcnt lgkmcnt(0)")
    a("L_ydone:")
    a("s_barrier")
    gemv8(W1O, 136, 32, 23)
    store_grp("buffer_store_dwordx4", R(32), 24, 90)
    a(FULL)
    stamp(22)

    a("L_fin:")
    if stamps and dbgstamps:
        stamp(15)
        a(f"s_cmp_lg_u32 s2, {dbgstamps - 1}")
        a("s_cbranch_scc1 L_end")
        a("s_load_dwordx2 s[10:11], s[0:1], 104")
        a("s_waitcnt lgkmcnt(0)")
        srd(rT0, 10, 256)
        slots = [1, 2, 3, 4, 20, 6, 8, 24, 9, 10, 11, 12, 22, 13, 15, 21]
        a("v_mov_b32 v4, 200")
        for i, k in enumerate(slots):
            a(f"s_mov_b32 s9, {4*i}")
            a(f"v_writelane_b32 v4, s9, {k}")
        a(f"v_readlane_b32 s9, v{vST}, 0")
        a(f"v_subrev_u32 v5, s9, v{vST}")
        a(f"v_cmp_ne_u32 vcc, 0, v{vST}")
        a("s_mov_b64 exec, vcc")
        a(f"buffer_atomic_umax v5, v4, {S4(rT0)}, 0 offen sc1")
    elif stamps:
        stamp(15)
        a(f"s_mul_i32 s9, s2, {NWAVES}")
        a(f"s_add_u32 s9, s9, s{sW12}")
        a(f"s_lshl_b32 s9, s9, 7")
        a(f"s_add_u32 s9, s9, {STAMP}")
        a(f"v_lshlrev_b32 v4, 2, v{vLANE}")
        a("s_mov_b32 exec_hi, 0")
        a(f"buffer_store_dword v{vST}, v4, {S4(rWS)}, s9 offen")
    a("L_end:")
    a("s_endpgm")
    a('.section .rodata,"a"')
    a(".p2align 6")
    a(f".amdhsa_kernel {NAME}_kernel")
    for l in (".amdhsa_next_free_vgpr 168", ".amdhsa_next_free_sgpr 102", ".amdhsa_accum_offset 168",
              ".amdhsa_group_segment_fixed_size 0", ".amdhsa_kernarg_size 120", ".amdhsa_user_sgpr_count 2",
              ".amdhsa_user_sgpr_kernarg_segment_ptr 1", ".amdhsa_system_sgpr_workgroup_id_x 1",
              ".amdhsa_float_denorm_mode_32 3"):
        a(l)
    a(".end_amdhsa_kernel")
    return pre + a.finish()


if __name__ == "__main__":
    out = sys.argv[1] if len(sys.argv) > 1 else f"cdna_kernels/{NAME}.s"
    kw = {}
    for arg in sys.argv[2:]:
        k, v = arg.split("=")
        kw[k] = eval(v)
    open(out, "w").write(gen(**kw))
```

```python
import sys
from asmlib import Asm, Vm

NAME = "adaLN_cond__gqa_block_cached__mixer_channel_mlp__decode"

EPOCH = 0
ML = 0x1000
X1 = 0x9000
MODP = 0x140000
QP = 0x30000
MA = 0xB0000
HP = 0xE0000
XP = 0x100000
DUAL = 0x90000
OF = 0x500000
QFN = 0x80000
XS = 0x88000
XH = 0x180000
LF = 0x90000
XID = 0x78000
OP = 0x200000
YP = 0x300000
STAMP = 0x800000
WS_BYTES = 0x10000000
WT = 0
OC = 0x10000
QB = 0x18400
HB = 0x18C00
ZB = 0x18E00
MX = 0x19000
LX = 0x19100
OB = 0x10000
ST = 0x19600
YB = 0x19800
RED = 0x1A800
H1B = 0x1B000
QFL = 0x1B400
XB = 0x1B480
FB = 0x1B800
LDS_BYTES = 0x1BC00
TAGM = 0x3ff
T4 = 3
NWAVES = 12

sWAVE, sL, sXCD, sIDX, sAI, sTAG = 3, 4, 5, 6, 7, 8
pX, pK, pV, pWQ, pWO, pW1, pB1, pW2, pB2, pC, pWM, pOUT, pWS = 16, 18, 20, 22, 24, 28, 30, 32, 34, 36, 38, 40, 42
rK, rV, rWS, rT0, rT1, rT2, rT3 = 44, 48, 52, 56, 60, 64, 68
sDU = 72
sSELLO, sSELHI, sHI, sLOG2E, sSCALE, sSPIN, sEP, sTM = 76, 77, 78, 79, 80, 81, 82, 83
sEX = 84
sBI = 86
sKV = 87
sW12 = 100
sLOC = 101
vLANE, vOK, vOV = 1, 2, 3
vBAD, vTAG, vST = 12, 13, 14


def gen(stamps=False, dbgstamps=False, codewarm=True, spin=200000, sleep=0, nt="nt", w1_early=True,
        thr=4, thr2=4, thrq=0, thrb=0, thrv=6, notail=False, quiet=0, nsrv=16, hu3=1, h4ack=1, sg='', sgslp=0, kvmap=0, roti=1, v0lds=0, nohelp=0, w1delay=0, w1thr=0, pin=0, fill=0, mbgate=0, kgate=0, bpre=0, w2delay=0, wpre=0, xmask=0, xk=1, xv=2, ofstr=1, xstr=33, onest=1, w2x2=0, pipe='', spread=0, ackst=0, pslp=2, w1pre=5, ovl=1, w1late=1, h3slp=None, h3split=0, fullrec=0, ptall='mqfdoxy', wq_dyn=1, fine=1, qpol='sc1', ptpol='sc1', agate=1, xdelay=0, lateb=0, skip='', hpt=0, prew=0, b2stage=1, h4delay=0, pretouch=0, noloc=0, noma=0, bdelay=0, adelay=0, nomodfin=0, pure=0, klin=0, vearly=0, fake=0, attdma=True, thrw=3, cslp=0, w1pol=None):
    a = Asm()
    hdr = open(f"cdna_kernels/{NAME}.s.ref").read().split("\n")
    head = [l for l in hdr if l.startswith(";") and "@launch" not in l]
    pre = "\n".join(head) + f"\n; @launch grid=(256,1,1) block=({64*NWAVES},1,1) lds={LDS_BYTES}\n"
    a('.amdgcn_target "amdgcn-amd-amdhsa--gfx950"')
    a(".text")
    a(f".globl {NAME}_kernel")
    a(".p2align 8")
    a(f".type {NAME}_kernel,@function")
    a(f"{NAME}_kernel:")

    def srd(d, p, n):
        a(f"s_mov_b32 s{d}, s{p}\ns_mov_b32 s{d+1}, s{p+1}\ns_mov_b32 s{d+2}, {n}\ns_mov_b32 s{d+3}, 0x20000")

    def R(b, n=4):
        return f"v[{b}:{b+n-1}]"

    def S4(b):
        return f"s[{b}:{b+3}]"

    def stamp(k):
        if stamps == 1 or (stamps == 2 and k in (8, 15)):
            a(f"s_memrealtime s[96:97]\ns_waitcnt lgkmcnt(0)\nv_writelane_b32 v{vST}, s96, {k}")

    def lo(d, p):
        a(f"v_lshlrev_b32 v{d}, 16, v{p}")

    def hi(d, p):
        a(f"v_and_b32 v{d}, s{sHI}, v{p}")

    def rnd1(d, s):
        a(f"v_cvt_pk_bf16_f32 v{d}, v{s}, v{s}")
        lo(d, d)

    def rnd2(x, y, t):
        a(f"v_cvt_pk_bf16_f32 v{t}, v{x}, v{y}")
        lo(x, t)
        hi(y, t)

    def tag_round(d, s):
        a(f"v_add_u32 v{d}, 0x200, v{s}")
        a(f"v_bfi_b32 v{d}, s{sTM}, v{vTAG}, v{d}")

    def tag_trunc(d, s):
        a(f"v_bfi_b32 v{d}, s{sTM}, v{vTAG}, v{s}")

    def check_regs(regs, first=True):
        for r in regs:
            a(f"v_xor_b32 v{r}, v{vTAG}, v{r}")
        regs = list(regs)
        if first:
            a(f"v_or_b32 v{vBAD}, v{regs[0]}, v{regs[1]}")
            regs = regs[2:]
        for i in range(0, len(regs), 2):
            a(f"v_or3_b32 v{vBAD}, v{vBAD}, v{regs[i]}, v{regs[i+1]}")

    def dpp_add(d, s_rot, s1, ror):
        a(f"v_add_f32_dpp v{d}, v{s_rot}, v{s1} row_ror:{ror} row_mask:0xf bank_mask:0xf")

    def dpp_max(d, s_rot, s1, ror):
        a(f"v_max_f32_dpp v{d}, v{s_rot}, v{s1} row_ror:{ror} row_mask:0xf bank_mask:0xf")

    def allred(x, t, op, which):
        for w in which:
            a(f"v_mov_b32 v{t}, v{x}")
            a(f"v_permlane{w}_swap_b32 v{x}, v{t}")
            a(f"{op} v{x}, v{x}, v{t}")

    def red4(b, rors):
        a(f"v_permlane32_swap_b32 v{b}, v{b+1}")
        a(f"v_permlane32_swap_b32 v{b+2}, v{b+3}")
        a(f"v_add_f32 v{b}, v{b}, v{b+1}")
        a(f"v_add_f32 v{b+2}, v{b+2}, v{b+3}")
        a(f"v_permlane16_swap_b32 v{b}, v{b+2}")
        a(f"v_add_f32 v{b}, v{b}, v{b+2}")
        for r in rors:
            dpp_add(b, b, b, r)

    def perm_operand(dst, blk, d):
        sel = sSELHI if d & 1 else sSELLO
        for k in range(4):
            a(f"v_perm_b32 v{dst+k}, v{blk + (2*k+1)*4 + (d >> 1)}, v{blk + 2*k*4 + (d >> 1)}, s{sel}")

    def ln_stats(su, sq, t, mb, rs):
        a(f"v_mul_f32 v{su}, 0x3a800000, v{su}")
        a(f"v_mul_f32 v{sq}, 0x3a800000, v{sq}")
        a(f"v_fma_f32 v{sq}, -v{su}, v{su}, v{sq}")
        a(f"v_max_f32 v{sq}, 0, v{sq}")
        a(f"v_cvt_pk_bf16_f32 v{t}, v{su}, v{sq}")
        lo(mb, t)
        hi(sq, t)
        a(f"v_add_f32 v{sq}, 0x3727c5ac, v{sq}")
        rnd1(sq, sq)
        a(f"v_sqrt_f32 v{sq}, v{sq}")
        rnd1(sq, sq)
        a(f"v_rcp_f32 v{rs}, v{sq}")

    def ln_apply(x, y, t, mb, rs, last_round=True):
        a(f"v_sub_f32 v{x}, v{x}, v{mb}")
        a(f"v_sub_f32 v{y}, v{y}, v{mb}")
        rnd2(x, y, t)
        a(f"v_mul_f32 v{x}, v{x}, v{rs}")
        a(f"v_mul_f32 v{y}, v{y}, v{rs}")
        if last_round:
            rnd2(x, y, t)

    def check2(pairs_regs):
        first = True
        for b in pairs_regs:
            a(f"v_xor_b32 v{b+1}, s{sEP}, v{b+1}")
            a(f"v_xor_b32 v{b+3}, s{sEP}, v{b+3}")
            if first:
                a(f"v_or_b32 v{vBAD}, v{b+1}, v{b+3}")
                first = False
            else:
                a(f"v_or3_b32 v{vBAD}, v{vBAD}, v{b+1}, v{b+3}")

    def pollx(loads, check, f2=False, dual=False, pre_issued=False, between=None, slp=None, name=None):
        if name and name in skip:
            a("s_waitcnt vmcnt(0)")
            a("s_mov_b64 exec, -1")
            return
        lp, dn, ck = a.label("Lpoll"), a.label("Ldone"), a.label("Lchk")
        a(f"s_mov_b32 s{sSPIN}, {0 if (fake and slp in (cslp, 16)) else spin | 7}")
        if pre_issued:
            a(f"s_branch {ck}")
        inst = stamps == 1 and name in ("a", "b", "c", "x")
        if inst:
            a("s_mov_b32 s94, 0\ns_mov_b32 s95, 0")
        a(f"{lp}:")
        if inst:
            a("s_memrealtime s[90:91]")
        loads()
        if pre_issued != "landed":
            a(f"{ck}:")
        a("s_waitcnt vmcnt(0)")
        if pre_issued == "landed":
            a(f"{ck}:")
        if inst:
            a("s_memrealtime s[92:93]\ns_waitcnt lgkmcnt(0)")
            a("s_sub_u32 s92, s92, s90\ns_max_u32 s94, s94, s92\ns_add_u32 s95, s95, 1")
        check()
        if not f2:
            a(f"v_and_b32 v{vBAD}, s{sTM}, v{vBAD}")
        a(f"v_cmp_ne_u32 vcc, 0, v{vBAD}")
        a(f"s_cbranch_vccz {dn}")
        a("s_mov_b64 exec, vcc")
        sl = sleep if slp is None else slp
        if sl:
            a(f"s_sleep {sl}")
        a(f"s_sub_u32 s{sSPIN}, s{sSPIN}, 1")
        a(f"s_cbranch_scc0 {lp}")
        a(f"{dn}:")
        a("s_mov_b64 exec, -1")
        if inst:
            k = {"a": 26, "b": 28, "c": 28, "x": 26}[name]
            a(f"v_writelane_b32 v{vST}, s94, {k}\nv_writelane_b32 v{vST}, s95, {k+1}")

    def pollp(load, nl, final, sets, sm=94, init=None):
        lp, dn = a.label("Lpp"), a.label("Lppd")
        M = f"s[{sm}:{sm+1}]"
        n = 4 * nl
        a(f"s_mov_b64 {M}, exec")
        a(f"s_mov_b32 s{sSPIN}, {spin}")
        load(sets[0])
        if pslp:
            a(f"s_sleep {pslp}")
        load(sets[1])
        a(f"{lp}:")
        for k in range(3):
            if pslp:
                a(f"s_sleep {pslp}")
            load(sets[(k + 2) % 3])
            a(f"s_waitcnt vmcnt({2*nl})")
            b = sets[k]
            check_regs(range(b, b + n))
            a(f"v_and_b32 v{vBAD}, s{sTM}, v{vBAD}")
            a(f"v_cmp_eq_u32 vcc, 0, v{vBAD}")
            a("s_mov_b64 exec, vcc")
            for i in range(n):
                a(f"v_mov_b32 v{final[i]}, v{b+i}")
            a(f"s_andn2_b64 {M}, {M}, vcc")
            a(f"s_cbranch_scc0 {dn}")
            a(f"s_mov_b64 exec, {M}")
        a(f"s_sub_u32 s{sSPIN}, s{sSPIN}, 1")
        a(f"s_cbranch_scc0 {lp}")
        a(f"{dn}:")
        a("s_mov_b64 exec, -1")

    def sgate(soff, offs):
        lp, dn = a.label("Lsg"), a.label("Lsgd")
        a(f"s_add_u32 s92, s{pWS}, s{soff}")
        a(f"s_addc_u32 s93, s{pWS+1}, 0")
        a(f"s_mov_b32 s{sSPIN}, 2000")
        a(f"{lp}:")
        for i, o in enumerate(offs):
            a(f"s_load_dword s{16+i}, s[92:93], {o} glc")
        a("s_waitcnt lgkmcnt(0)")
        a(f"s_xor_b32 s9, s16, s{sTAG}")
        for i in range(1, len(offs)):
            a(f"s_xor_b32 s{16+i}, s{16+i}, s{sTAG}")
            a(f"s_or_b32 s9, s9, s{16+i}")
        a(f"s_and_b32 s9, s9, s{sTM}")
        a(f"s_cbranch_scc0 {dn}")
        if sgslp:
            a(f"s_sleep {sgslp}")
        a(f"s_sub_u32 s{sSPIN}, s{sSPIN}, 1")
        a(f"s_cbranch_scc0 {lp}")
        a(f"{dn}:")

    def dual_exchange(store_wt, loads, check):
        l1, ok, dn = a.label("Lfx"), a.label("Lfxok"), a.label("Lfxdn")
        a(f"s_mov_b32 s{sDU}, {DUAL}")
        a(f"s_mov_b32 s{sSPIN}, 24")
        a(f"{l1}:")
        loads()
        a("s_waitcnt vmcnt(0)")
        check()
        a(f"v_and_b32 v{vBAD}, s{sTM}, v{vBAD}")
        a(f"v_cmp_ne_u32 vcc, 0, v{vBAD}")
        a(f"s_cbranch_vccz {ok}")
        a("s_mov_b64 exec, vcc")
        a(f"s_sub_u32 s{sSPIN}, s{sSPIN}, 1")
        a(f"s_cbranch_scc0 {l1}")
        a(f"s_mov_b64 s[{sEX}:{sEX+1}], exec")
        store_wt()
        a(f"s_mov_b64 exec, s[{sEX}:{sEX+1}]")
        pollx(loads, check, dual=True)
        a(f"s_branch {dn}")
        a(f"{ok}:")
        store_wt()
        a("s_mov_b64 exec, -1")
        a(f"{dn}:")

    def store_grp(op, data, vaddr, soff):
        l1, l2 = a.label("Lsg"), a.label("Lsgd")
        a(f"s_cmp_eq_u32 s{sLOC}, 1")
        a(f"s_cbranch_scc1 {l1}")
        a(f"{op} {data}, v{vaddr}, {S4(rWS)}, s{soff} offen sc1")
        a(f"s_branch {l2}")
        a(f"{l1}:")
        a(f"{op} {data}, v{vaddr}, {S4(rWS)}, s{soff} offen")
        a(f"{l2}:")

    def prewrite(t, nl_log2, bshift, soff):
        if not prew:
            return
        for k in range(4):
            a(f"v_xor_b32 v{t+k}, 1, v{vTAG}")
        a(f"v_lshrrev_b32 v{t+4}, {nl_log2}, v{vLANE}")
        a(f"v_lshlrev_b32 v{t+4}, {bshift-4}, v{t+4}")
        a(f"v_and_or_b32 v{t+4}, v{vLANE}, {(1 << nl_log2) - 1}, v{t+4}")
        a(f"v_lshlrev_b32 v{t+4}, 4, v{t+4}")
        n = 2 << nl_log2
        a(f"s_mov_b64 exec, {(1 << n) - 1:#x}" if n < 32 else "s_mov_b32 exec_hi, 0")
        a(f"buffer_store_dwordx4 {R(t)}, v{t+4}, {S4(rWS)}, s{soff} offen")
        a("s_mov_b64 exec, -1")

    def store_dual(op, data, vaddr, soff, off=0):
        a(f"s_add_u32 s9, s{soff}, {DUAL}")
        a(f"{op} {data}, v{vaddr}, {S4(rWS)}, s9 offen offset:{off}")
        a(f"{op} {data}, v{vaddr}, {S4(rWS)}, s{soff} offen offset:{off} sc1")

    def untr(b):
        a(f"v_mov_b32 v{b+1}, v{b}")
        a(f"v_permlane32_swap_b32 v{b}, v{b+1}")
        a(f"v_mov_b32 v{b+2}, v{b}")
        a(f"v_mov_b32 v{b+3}, v{b+1}")
        a(f"v_permlane16_swap_b32 v{b}, v{b+2}")
        a(f"v_permlane16_swap_b32 v{b+1}, v{b+3}")

    def pk(op, d, x, y, n=4, ybc=False, neg=False):
        for k in range(0, n, 2):
            if ybc:
                yb, hi_ = y & ~1, y & 1
                m = f" op_sel:[0,{hi_}] op_sel_hi:[1,{hi_}]" + (" neg_lo:[0,1] neg_hi:[0,1]" if neg else "")
                a(f"v_pk_{op}_f32 {R(d+k, 2)}, {R(x+k, 2)}, {R(yb, 2)}{m}")
            else:
                a(f"v_pk_{op}_f32 {R(d+k, 2)}, {R(x+k, 2)}, {R(y+k, 2)}")

    def pkfma(d, x, f, n=4):
        fb, hi_ = f & ~1, f & 1
        for k in range(0, n, 2):
            a(f"v_pk_fma_f32 {R(d+k, 2)}, {R(x+k, 2)}, {R(fb, 2)}, {R(d+k, 2)} op_sel:[0,{hi_},0] op_sel_hi:[1,{hi_},1]")

    def kperm(d, t):
        a(f"v_bfe_u32 v{d}, v{vLANE}, 4, 1")
        a(f"v_lshrrev_b32 v{t}, 5, v{vLANE}")
        a(f"v_lshl_or_b32 v{d}, v{d}, 1, v{t}")

    xrec = 128 * (xstr // 2)
    MASK8 = "s_mov_b32 exec_lo, 0x00ff00ff\ns_mov_b32 exec_hi, 0x00ff00ff"
    FULL = "s_mov_b64 exec, -1"

    a("s_cmp_ge_u32 s2, 256")
    a("s_cbranch_scc1 L_end")
    a("s_load_dwordx16 s[16:31], s[0:1], 0")
    a("s_load_dwordx8 s[32:39], s[0:1], 64")
    a("s_load_dwordx2 s[40:41], s[0:1], 96")
    a("s_load_dwordx2 s[42:43], s[0:1], 112")
    if pin:
        a("s_memrealtime s[98:99]")
    if stamps:
        a(f"v_mov_b32 v{vST}, 0")
        a("s_memrealtime s[98:99]")
    a(f"v_lshrrev_b32 v4, 6, v0")
    a(f"v_and_b32 v{vLANE}, 63, v0")
    a(f"v_readfirstlane_b32 s{sW12}, v4")
    a(f"s_and_b32 s{sXCD}, s2, 7")
    a(f"s_lshr_b32 s{sIDX}, s2, 3")
    a(f"s_lshl_b32 s{sL}, s{sXCD}, 5")
    a(f"s_add_u32 s{sL}, s{sL}, s{sIDX}")
    a(f"s_lshr_b32 s{sAI}, s{sIDX}, 1")
    a(f"s_lshr_b32 s9, s{sAI}, 2")
    a(f"s_lshl_b32 s9, s9, 3")
    a(f"s_add_u32 s9, s9, s{sXCD}")
    a(f"s_lshl_b32 s{sBI}, s9, 2")
    a(f"s_and_b32 s9, s{sAI}, 3")
    a(f"s_add_u32 s{sBI}, s{sBI}, s9")
    a(f"s_mov_b32 s{sSELLO}, 0x05040100")
    a(f"s_mov_b32 s{sSELHI}, 0x07060302")
    a(f"s_mov_b32 s{sHI}, 0xffff0000")
    a(f"s_mov_b32 s{sLOG2E}, 0x3fb8aa3b")
    a(f"s_mov_b32 s{sSCALE}, 0x3db504f3")
    a(f"s_mov_b32 s{sTM}, {TAGM}")
    a(f"v_lshrrev_b32 v7, 3, v{vLANE}")
    a(f"s_sub_u32 s{sWAVE}, s{sW12}, 4")
    a(f"s_cmp_lg_u32 s{sW12}, 0")
    a("s_cbranch_scc1 L_noinit")
    a(f"v_lshlrev_b32 v4, 2, v{vLANE}")
    a(f"v_add_u32 v4, {ZB}, v4")
    a("v_mov_b32 v5, 0")
    a("ds_write_b32 v4, v5")
    a(f"ds_write_b32 v4, v5 offset:{QFL - ZB - 128}")
    a("L_noinit:")

    def kargs():
        a("s_waitcnt lgkmcnt(0)")
        if stamps:
            a(f"v_writelane_b32 v{vST}, s98, 0")

    def load_epoch():
        a(f"s_load_dword s{sEP}, s[{pWS}:{pWS+1}], {EPOCH}")

    def get_tag():
        a("s_waitcnt lgkmcnt(0)")
        a(f"s_add_u32 s{sEP}, s{sEP}, 1")
        a(f"s_and_b32 s{sTAG}, s{sEP}, {TAGM}")
        a(f"v_mov_b32 v{vTAG}, s{sTAG}")

    def wait_q():
        lp, dn = a.label("Lwq"), a.label("Lwqd")
        a(f"v_mov_b32 v4, {QFL}")
        a(f"s_mov_b32 s{sSPIN}, {spin*20}")
        a(f"{lp}:")
        a("ds_read_b32 v5, v4")
        a("s_waitcnt lgkmcnt(0)")
        a("v_cmp_ne_u32 vcc, 0, v5")
        a(f"s_cbranch_vccnz {dn}")
        a("s_sleep 1")
        a(f"s_sub_u32 s{sSPIN}, s{sSPIN}, 1")
        a(f"s_cbranch_scc0 {lp}")
        a(f"{dn}:")

    def wait_n(T):
        if T:
            a(f"s_waitcnt vmcnt({T-1})")

    def mod_tile(ngrp, srow0, scol, T, after_issue, before_issue):
        ACC, PT, W = 32, 64, 72
        vm = Vm(a)
        a(f"s_mul_i32 s10, s{srow0}, 12288")
        a(f"s_add_u32 s10, s10, s{scol}")
        a(f"s_mov_b32 s9, {8*12288}")
        a(f"v_mul_lo_u32 v8, v7, s9")
        a(f"v_and_b32 v9, 7, v{vLANE}")
        a(f"v_lshl_add_u32 v8, v9, 4, v8")
        a(f"v_bfe_u32 v10, v{vLANE}, 2, 1")
        a(f"v_lshlrev_b32 v10, 11, v10")
        a(f"v_lshl_add_u32 v10, v7, 4, v10")
        a(f"s_lshl_b32 s11, s{srow0}, 1")
        before_issue()
        srd(rT0, pWM, 12582912)
        srd(rT1, pC, 4096)
        for q4 in range(ngrp):
            tc = vm.issue(f"buffer_load_dwordx4 {R(ACC + q4*4)}, v10, {S4(rT1)}, s11 offen offset:{q4*128}")
        toks = {}

        def grp(q4):
            for e in range(8):
                a(f"s_add_u32 s9, s10, {(64*q4+e)*12288}")
                wait_n(T)
                toks[q4] = vm.issue(f"buffer_load_dwordx4 {R(W + (q4 % 3)*32 + e*4)}, v8, {S4(rT0)}, s9 offen {nt}")
        for q4 in range(min(ngrp, 3)):
            grp(q4)
        after_issue()
        if pure == 1:
            if ngrp == 4:
                vm.wait(toks[0])
                grp(3)
            a("s_waitcnt vmcnt(0)")
            a("s_branch L_fin")
        vm.wait(tc)
        a(f"s_mov_b32 s9, 0xbfb8aa3b")
        for i in range(4 * ngrp):
            lo(4, ACC + i)
            hi(5, ACC + i)
            a(f"v_mul_f32 v6, s9, v4\nv_mul_f32 v11, s9, v5")
            a(f"v_exp_f32 v6, v6\nv_exp_f32 v11, v11")
            a(f"v_add_f32 v6, 1.0, v6\nv_add_f32 v11, 1.0, v11")
            a(f"v_rcp_f32 v6, v6\nv_rcp_f32 v11, v11")
            a(f"v_mul_f32 v4, v4, v6\nv_mul_f32 v5, v5, v11")
            a(f"v_cvt_pk_bf16_f32 v{16+i}, v4, v5")
        a(f"v_and_b32 v11, 3, v{vLANE}")
        a(f"v_bfe_u32 v10, v{vLANE}, 4, 1")
        a(f"v_lshl_add_u32 v9, v10, 2, v11")
        a(f"v_lshrrev_b32 v10, 5, v{vLANE}")
        a(f"v_lshl_add_u32 v9, v9, 1, v10")
        a(f"v_bfe_u32 v10, v{vLANE}, 2, 1")
        for q4 in range(ngrp):
            vm.wait(toks[q4])
            for d in range(8):
                t = PT + (d & 1) * 4
                perm_operand(t, W + (q4 % 3) * 32, d)
                c = "0" if q4 == 0 else R(ACC + d * 4)
                a(f"v_mfma_f32_16x16x32_bf16 {R(ACC + d*4)}, {R(t)}, {R(16 + q4*4)}, {c}")
            if q4 + 3 < ngrp:
                grp(q4 + 3)
        O = 72
        for d in range(4):
            for r in range(4):
                a(f"v_permlane32_swap_b32 v{ACC + d*4 + r}, v{ACC + (d+4)*4 + r}")
        for d in range(4):
            for r in range(4):
                dpp_add(O + r * 4 + d, ACC + (d + 4) * 4 + r, ACC + d * 4 + r, 8)
        for r in range(1, 4):
            a(f"v_cmp_eq_u32 vcc, {r}, v11")
            for d in range(4):
                a(f"v_cndmask_b32 v{O+d}, v{O+d}, v{O + r*4 + d}, vcc")

    def tag4(d):
        a(f"v_add_u32 v{d}, {(T4+1)//2}, v{d}")
        a(f"v_bfi_b32 v{d}, {T4}, v{vTAG}, v{d}")

    def check4(regs):
        regs = list(regs)
        for r in regs:
            a(f"v_xor_b32 v{r}, v15, v{r}")
        a(f"v_or_b32 v{vBAD}, v{regs[0]}, v{regs[1]}")
        for i in range(2, len(regs), 2):
            a(f"v_or3_b32 v{vBAD}, v{vBAD}, v{regs[i]}, v{regs[i+1]}")
        a(f"v_and_b32 v{vBAD}, {T4}, v{vBAD}")
        a(f"v_or_b32_dpp v{vBAD}, v{vBAD}, v{vBAD} quad_perm:[1,0,3,2] row_mask:0xf bank_mask:0xf")
        a(f"v_or_b32_dpp v{vBAD}, v{vBAD}, v{vBAD} quad_perm:[2,3,0,1] row_mask:0xf bank_mask:0xf")
        a(f"v_or_b32_dpp v{vBAD}, v{vBAD}, v{vBAD} row_half_mirror row_mask:0xf bank_mask:0xf")

    def lds_wait(addr, val, cmp="eq"):
        lp, dn = a.label("Lw"), a.label("Lwd")
        a(f"v_mov_b32 v4, {addr}")
        a(f"s_mov_b32 s{sSPIN}, {spin*20}")
        a(f"{lp}:")
        a("ds_read_b32 v5, v4")
        a("s_waitcnt lgkmcnt(0)")
        a(f"v_cmp_{cmp}_u32 vcc, {val}, v5")
        a(f"s_cbranch_vccnz {dn}")
        a("s_sleep 1")
        a(f"s_sub_u32 s{sSPIN}, s{sSPIN}, 1")
        a(f"s_cbranch_scc0 {lp}")
        a(f"{dn}:")

    def get_loc():
        lp, dn = a.label("Lw"), a.label("Lwd")
        a(f"v_mov_b32 v4, {QFL+8}")
        a(f"s_mov_b32 s{sSPIN}, {spin*20}")
        a(f"{lp}:")
        a("ds_read_b32 v5, v4")
        a("s_waitcnt lgkmcnt(0)")
        a(f"v_cmp_ne_u32 vcc, 0, v5")
        a(f"s_cbranch_vccnz {dn}")
        a("s_sleep 1")
        a(f"s_sub_u32 s{sSPIN}, s{sSPIN}, 1")
        a(f"s_cbranch_scc0 {lp}")
        a(f"{dn}:")
        a(f"v_readfirstlane_b32 s{sLOC}, v5")

    def publish_moments(M, soff, with_quad=None):
        red4(M, ())
        a(f"v_add_f32_dpp v{M}, v{M}, v{M} quad_perm:[1,0,3,2] row_mask:0xf bank_mask:0xf")
        a(f"v_add_f32_dpp v{M}, v{M}, v{M} quad_perm:[2,3,0,1] row_mask:0xf bank_mask:0xf")
        a(f"v_add_f32_dpp v{M}, v{M}, v{M} row_half_mirror row_mask:0xf bank_mask:0xf")
        tag_round(M, M)
        untr(M)
        if with_quad is not None:
            a("s_mov_b64 exec, 0xff")
            for k in range(4):
                a(f"v_mov_b32 v{M+k}, v{with_quad+k}")
            a("s_mov_b64 exec, 0x101ff")
            a(f"buffer_store_dwordx4 {R(M)}, v{M+4}, {S4(rWS)}, s{soff} offen sc1")
            a(FULL)
            return
        a("s_mov_b64 exec, 0x101")
        a(f"buffer_store_dwordx4 {R(M)}, v{M+4}, {S4(rWS)}, s{soff} offen sc1")
        a(FULL)

    def moment_addr(d, kp, soff, kind):
        a(f"v_lshlrev_b32 v{d}, 1, v{vLANE}")
        a(f"s_add_u32 s{soff}, s75, {XS + kind*8192}")

    def hopB1():
        a(f"v_and_b32 v15, {T4}, v{vTAG}")
        a(f"v_lshrrev_b32 v7, 3, v{vLANE}")
        a(f"v_and_b32 v8, 7, v{vLANE}")
        a(f"v_lshlrev_b32 v9, 15, v7")
        a(f"v_lshl_add_u32 v9, v8, 4, v9")
        a(f"s_lshl_b32 s10, s{sL}, 7")
        a(f"s_add_u32 s11, s10, {QFN}")
        a(f"s_add_u32 s10, s10, {QP}")
        a(f"v_lshlrev_b32 v10, 4, v{vLANE}")
        get_loc()
        lds_wait(QFL + 4, 2)
        if bdelay:
            a(f"s_sleep {bdelay}")
        pollx(lambda: a(f"buffer_load_dwordx4 {R(32)}, v9, {S4(rWS)}, s10 offen sc1"), lambda: check4(range(32, 36)),
              f2=True, slp=cslp, name='b')
        red4(32, (8,))
        a("v_cvt_pk_bf16_f32 v32, v32, v32")
        a(f"v_bfi_b32 v32, s{sHI}, v32, v{vTAG}")
        untr(32)
        a("s_mov_b64 exec, 0xff")
        store_grp("buffer_store_dwordx4", R(32), 10, 11)
        a(FULL)
        a(f"v_mov_b32 v4, {QFL+4}\nv_mov_b32 v5, 3")
        a("ds_write_b32 v4, v5")
        a("s_waitcnt lgkmcnt(0)")
        stamp(14)
        a("s_branch L_fin")

    def hopB2():
        a(f"v_lshlrev_b32 v9, 4, v{vLANE}")
        a(f"s_lshl_b32 s10, s{sXCD}, 12")
        a(f"s_add_u32 s10, s10, {QFN}")
        lds_wait(QFL + 4, 3)

        def ld():
            for i in range(4):
                a(f"buffer_load_dwordx4 {R(32 + i*4)}, v9, {S4(rWS)}, s10 offen offset:{i*1024} sc1")
        pollx(ld, lambda: check_regs(range(32, 48)), slp=cslp, name='c')
        for e in range(8):
            a(f"v_perm_b32 v{48+e}, v{33+2*e}, v{32+2*e}, s{sSELHI}")
        a(f"v_and_b32 v9, 7, v{vLANE}")
        a(f"v_lshlrev_b32 v9, 5, v9")
        a(f"v_bfe_u32 v10, v{vLANE}, 3, 2")
        a(f"v_lshl_add_u32 v9, v10, 3, v9")
        a(f"v_lshrrev_b32 v10, 5, v{vLANE}")
        a(f"v_lshl_add_u32 v9, v10, 8, v9")
        a(f"v_add_u32 v9, {QB}, v9")
        for i in range(4):
            a(f"ds_write_b64 v9, {R(48 + 2*i, 2)} offset:{i*512}")
        a(f"v_mov_b32 v4, {QFL}\nv_mov_b32 v5, 2")
        a("s_waitcnt lgkmcnt(0)")
        a("ds_write_b32 v4, v5")
        a("s_waitcnt lgkmcnt(0)")
        stamp(4)
        a("s_branch L_fin")

    def hopB(half):
        a(f"v_and_b32 v15, {T4}, v{vTAG}")
        a(f"v_lshlrev_b32 v9, 4, v{vLANE}")
        a(f"s_lshl_b32 s10, s{sXCD}, 12")
        a(f"s_add_u32 s10, s10, {QP + half*2048}")
        for i in range(bdelay):
            a("s_sleep 37")

        def ld():
            for p in range(8):
                a(f"s_add_u32 s9, s10, {p*32768}")
                for i in range(2):
                    a(f"buffer_load_dwordx4 {R(32 + p*8 + i*4)}, v9, {S4(rWS)}, s9 offen offset:{i*1024} sc1")
        pollx(ld, lambda: check4(range(32, 96)), f2=True, slp=cslp)
        for st in (32, 16, 8):
            for e in range(st):
                a(f"v_add_f32 v{32+e}, v{32+e}, v{32+st+e}")
        for e in range(4):
            a(f"v_cvt_pk_bf16_f32 v{40+e}, v{32+2*e}, v{33+2*e}")
        a(f"v_lshlrev_b32 v9, 3, v{vLANE}")
        a(f"v_add_u32 v9, {QB + half*1024}, v9")
        for i in range(2):
            a(f"ds_write_b64 v9, {R(40 + 2*i, 2)} offset:{i*512}")
        a(f"v_mov_b32 v4, {QFL}\nv_mov_b32 v5, 1")
        a("s_waitcnt lgkmcnt(0)")
        a("s_mov_b64 exec, 1")
        a("ds_add_u32 v4, v5")
        a(FULL)
        a("s_waitcnt lgkmcnt(0)")
        stamp(4)
        a("s_branch L_fin")

    def f2_pack(src, dst):
        for k in range(4):
            a(f"v_mov_b32 v{dst+2*k}, v{src+k}")
            a(f"v_mov_b32 v{dst+2*k+1}, s{sEP}")

    def consumer_ids():
        a(f"s_lshr_b32 s12, s{sAI}, 2")
        a(f"s_and_b32 s13, s{sAI}, 3")
        a(f"s_lshl_b32 s13, s13, 5")
        a(f"s_lshl_b32 s9, s{sXCD}, 7")
        a(f"s_add_u32 s13, s13, s9")
        a(f"s_lshl_b32 s75, s12, 12")
        a(f"s_lshl_b32 s9, s13, 2")
        a(f"s_add_u32 s75, s75, s9")

    def w1_dma(vm, T, lo_=0, hi_=8, va=8, vb=9, sa=10, sb=11):
        srd(rT0, pW1, 7340032)
        a(f"v_lshrrev_b32 v{va}, 4, v{vLANE}")
        a(f"v_mul_u32_u24 v{va}, 7168, v{va}")
        a(f"v_and_b32 v{vb}, 15, v{vLANE}")
        a(f"v_lshl_add_u32 v{va}, v{vb}, 4, v{va}")
        a(f"s_and_b32 s{sa}, s{sBI}, 3")
        a(f"s_lshl_b32 s{sa}, s{sa}, 3")
        a(f"s_add_u32 s{sa}, s{sa}, s{sWAVE}")
        a(f"s_mul_i32 s{sa}, s{sa}, {32*7168}")
        a(f"s_lshr_b32 s{sb}, s{sBI}, 2")
        a(f"s_lshl_b32 s{sb}, s{sb}, 8")
        a(f"s_add_u32 s{sa}, s{sa}, s{sb}")
        a(f"s_lshl_b32 s{sb}, s{sWAVE}, 13")
        t = None
        for i in range(lo_, hi_):
            a(f"s_add_u32 m0, s{sb}, {WT + i*1024}")
            a(f"s_add_u32 s9, s{sa}, {4*i*7168}")
            wait_n(T)
            t = vm.issue(f"buffer_load_dwordx4 v{va}, {S4(rT0)}, s9 offen {nt} lds")
        return t

    if nohelp:
        a(f"s_cmp_lt_u32 s{sW12}, 4")
        a("s_cbranch_scc1 L_end")
    a(f"s_cmp_eq_u32 s{sW12}, 1")
    a("s_cbranch_scc1 L_moda")
    a(f"s_cmp_ge_u32 s{sW12}, 4")
    a("s_cbranch_scc1 L_att")
    a(f"s_cmp_eq_u32 s{sW12}, 0")
    a("s_cbranch_scc1 L_chain")
    a(f"s_cmp_eq_u32 s{sW12}, 2")
    a("s_cbranch_scc1 L_red")

    if codewarm:
        lw = a.label("Lnowarm")
        a(f"s_cmp_lt_u32 s{sIDX}, 30")
        a(f"s_cbranch_scc1 {lw}")
        a("s_getpc_b64 s[10:11]")
        a("L_pc0:")
        a(f"v_lshlrev_b32 v8, 4, v{vLANE}")
        a(f"s_mov_b32 s9, 0")
        lp = a.label("Lwarm")
        a(f"{lp}:")
        a(f"v_min_u32 v9, L_end-L_pc0-16, v8")
        a(f"global_load_dwordx4 {R(64)}, v9, s[10:11]")
        a(f"v_add_u32 v8, 1024, v8")
        a(f"s_add_u32 s9, s9, 1024")
        a(f"s_cmp_lt_u32 s9, L_end-L_pc0")
        a(f"s_cbranch_scc1 {lp}")
        a(f"{lw}:")
    a(f"v_lshrrev_b32 v11, 4, v{vLANE}")
    a(f"s_mov_b32 s9, {8*12288}")
    a(f"v_mul_lo_u32 v8, v11, s9")
    a(f"v_and_b32 v9, 15, v{vLANE}")
    a(f"v_lshl_add_u32 v8, v9, 4, v8")
    a(f"v_and_b32 v6, 1, v{vLANE}")
    a(f"v_lshlrev_b32 v10, 11, v6")
    a(f"v_lshl_add_u32 v10, v11, 4, v10")
    a(f"s_and_b32 s12, s{sIDX}, 7")
    a(f"s_lshr_b32 s14, s{sIDX}, 3")
    a(f"s_mul_i32 s10, s12, {128*12288}")
    a(f"s_lshl_b32 s14, s14, 3")
    a(f"s_add_u32 s14, s14, s{sXCD}")
    a(f"s_lshl_b32 s9, s14, 8")
    a(f"s_add_u32 s10, s10, s9")
    a(f"s_add_u32 s10, s10, 4096")
    a(f"s_lshl_b32 s11, s12, 8")
    a(f"s_lshl_b32 s15, s12, 15")
    a(f"s_lshl_b32 s9, s14, 9")
    a(f"s_add_u32 s15, s15, s9")
    a(f"s_add_u32 s15, s15, {MODP}")
    kargs()
    load_epoch()
    srd(rWS, pWS, WS_BYTES)
    srd(rT0, pWM, 12582912)
    srd(rT1, pC, 4096)
    a("s_barrier")
    if mbgate:
        lds_wait(QFL + 4, mbgate, "le")
    BO, ACC, PTm, Wm = 16, 32, 64, 72
    vm = Vm(a)
    for blk in range(4):
        tc = vm.issue(f"buffer_load_dwordx4 {R(BO + blk*4)}, v10, {S4(rT1)}, s11 offen offset:{blk*64}")
    toks = {}

    def mblk(blk):
        for e in range(8):
            a(f"s_add_u32 s9, s10, {(32*blk+e)*12288}")
            wait_n(thrb)
            toks[blk] = vm.issue(f"buffer_load_dwordx4 {R(Wm + (blk % 3)*32 + e*4)}, v8, {S4(rT0)}, s9 offen {nt}")
    mblk(0)
    mblk(1)
    mblk(2)
    get_tag()
    vm.wait(tc)
    a(f"s_mov_b32 s13, 0xbfb8aa3b")
    for blk in range(4):
        for i in range(4 * blk, 4 * blk + 4):
            lo(4, BO + i)
            hi(5, BO + i)
            a(f"v_mul_f32 v2, s13, v4\nv_mul_f32 v3, s13, v5")
            a(f"v_exp_f32 v2, v2\nv_exp_f32 v3, v3")
            a(f"v_add_f32 v2, 1.0, v2\nv_add_f32 v3, 1.0, v3")
            a(f"v_rcp_f32 v2, v2\nv_rcp_f32 v3, v3")
            a(f"v_mul_f32 v4, v4, v2\nv_mul_f32 v5, v5, v3")
            a(f"v_cvt_pk_bf16_f32 v{BO+i}, v4, v5")
        vm.wait(toks[blk])
        for d in range(8):
            t = PTm + (d & 1) * 4
            perm_operand(t, Wm + (blk % 3) * 32, d)
            c = "0" if blk == 0 else R(ACC + d * 4)
            a(f"v_mfma_f32_16x16x32_bf16 {R(ACC + d*4)}, {R(t)}, {R(BO + blk*4)}, {c}")
        if blk + 3 < 4:
            mblk(blk + 3)
    a(f"v_bfe_u32 v9, v{vLANE}, 1, 1")
    a(f"v_bfe_u32 v10, v{vLANE}, 2, 2")
    a("v_cmp_eq_u32 vcc, 1, v9")
    for i in range(16):
        a(f"v_cndmask_b32 v{ACC+i}, v{ACC+i}, v{ACC+16+i}, vcc")
    for r in range(1, 4):
        a(f"v_cmp_eq_u32 vcc, {r}, v10")
        for k in range(4):
            a(f"v_cndmask_b32 v{ACC+4*k}, v{ACC+4*k}, v{ACC+4*k+r}, vcc")
    for k in range(4):
        tag_round(16 + k, ACC + 4 * k)
    a(f"v_lshl_add_u32 v10, v11, 2, v10")
    a(f"v_lshl_add_u32 v9, v10, 1, v9")
    a(f"v_lshlrev_b32 v9, 4, v9")
    a(f"v_lshl_add_u32 v9, v6, 14, v9")
    get_loc()
    store_grp("buffer_store_dwordx4", R(16), 9, 15)
    stamp(16)
    a(f"s_bitcmp1_b32 s{sIDX}, 0")
    a("s_cbranch_scc1 L_fin")
    a(f"s_cmp_ge_u32 s{sAI}, 8")
    a("s_cbranch_scc1 L_fin")
    GA, XV, B2V = 32, 48, 49
    lds_wait(QFL, 2)
    consumer_ids()
    srd(rT0, pX, 4096)
    srd(rT1, pB2, 2048)
    kperm(4, 5)
    a(f"v_and_b32 v8, 7, v{vLANE}")
    a(f"v_lshl_add_u32 v11, v8, 2, v4")
    a(f"v_lshlrev_b32 v5, 1, v11")
    a(f"s_lshr_b32 s9, s75, 1")
    a(f"buffer_load_ushort v{XV}, v5, {S4(rT0)}, s9 offen")
    a(f"s_lshl_b32 s9, s13, 1")
    a(f"buffer_load_ushort v{B2V}, v5, {S4(rT1)}, s9 offen")
    a(f"v_lshlrev_b32 v10, 15, v7")
    a(f"v_lshl_add_u32 v10, v8, 4, v10")
    a(f"s_lshl_b32 s14, s12, 14")
    a(f"s_lshl_b32 s9, s13, 2")
    a(f"s_add_u32 s14, s14, s9")

    def gloads():
        for k in range(4):
            a(f"s_add_u32 s9, s14, {MODP + k*4096}")
            a(f"buffer_load_dwordx4 {R(GA + 4*k)}, v10, {S4(rWS)}, s9 offen sc1")
    pollx(gloads, lambda: check_regs(range(GA, GA + 16)), slp=16, name='m')
    for k in range(4):
        red4(GA + 4 * k, (8,))
    rnd2(GA, GA + 12, 5)
    rnd2(GA + 4, GA + 8, 5)
    a(f"v_add_f32 v{GA+8}, 1.0, v{GA+8}")
    rnd1(GA + 8, GA + 8)
    a(f"v_or_b32 v{GA+4}, v{vTAG}, v{GA+4}\nv_or_b32 v{GA+8}, v{vTAG}, v{GA+8}")
    a(f"v_lshlrev_b32 v9, 2, v11")
    a(f"s_add_u32 s9, s75, {X1 + 8192}")
    a(f"s_add_u32 s10, s75, {X1 + 16384}")
    a(f"v_mov_b32 v60, v{GA+4}\nv_mov_b32 v64, v{GA+8}")
    untr(60)
    untr(64)
    a(f"v_lshlrev_b32 v68, 4, v{vLANE}")
    a("s_mov_b64 exec, 0xff")
    a(f"buffer_store_dwordx4 {R(60)}, v68, {S4(rWS)}, s9 offen sc1")
    a(f"buffer_store_dwordx4 {R(64)}, v68, {S4(rWS)}, s10 offen sc1")
    a(FULL)
    lo(XV, XV)
    lo(B2V, B2V)
    a(f"v_add_u32 v5, {XB}, v9")
    a(f"ds_write_b32 v5, v{GA+12} offset:128")
    a(f"ds_write_b32 v5, v{B2V} offset:256")
    a(f"ds_write_b32 v5, v{GA} offset:384")
    a(f"ds_write_b32 v5, v{XV} offset:512")
    a(f"v_xor_b32 v{GA+4}, v{vTAG}, v{GA+4}\nv_xor_b32 v{GA+8}, v{vTAG}, v{GA+8}")
    a(f"ds_write_b32 v5, v{GA+4}")
    a(f"ds_write_b32 v5, v{GA+8} offset:640")
    moment_addr(56, 4, 10, 1)
    a(f"v_mov_b32 v52, v{GA+8}")
    a(f"v_mul_f32 v53, v{GA+8}, v{GA+8}")
    a(f"v_mul_f32 v54, v{GA+8}, v{GA+4}")
    a(f"v_mov_b32 v55, v{GA+4}")
    a("s_mov_b32 exec_lo, 0xff00ff00\ns_mov_b32 exec_hi, 0xff00ff00")
    a(f"v_mul_f32 v52, v{GA+4}, v{GA+4}")
    a("v_mov_b32 v53, 0\nv_mov_b32 v54, 0\nv_mov_b32 v55, 0")
    a(FULL)
    publish_moments(52, 10)
    a("s_waitcnt lgkmcnt(0)")
    a("s_branch L_fin")

    a("L_moda:")
    a("s_setprio 3")
    a(f"s_lshr_b32 s12, s{sIDX}, 2")
    a(f"s_lshl_b32 s13, s12, 7")
    a(f"s_bfe_u32 s14, s{sIDX}, 0x10001")
    a(f"s_and_b32 s15, s{sIDX}, 1")
    a(f"s_lshl_b32 s88, s14, 11")
    a(f"s_lshl_b32 s9, s{sXCD}, 8")
    a(f"s_add_u32 s88, s88, s9")
    a(f"s_lshl_b32 s9, s15, 7")
    a(f"s_add_u32 s88, s88, s9")

    def after_a():
        a("s_barrier")
        load_epoch()
        srd(rWS, pWS, WS_BYTES)
        get_tag()
        a(f"s_lshl_b32 s13, s{sXCD}, 14")
        a(f"s_lshl_b32 s9, s12, 11")
        a(f"s_add_u32 s13, s13, s9")
        a(f"s_lshl_b32 s9, s14, 10")
        a(f"s_add_u32 s13, s13, s9")
        a(f"s_lshl_b32 s9, s15, 8")
        a(f"s_add_u32 s13, s13, s9")
        a(f"s_add_u32 s13, s13, {MA}")
        prewrite(64, 4, 9, 13)
    mod_tile(2, 13, 88, 0, after_a, kargs)
    for d in range(4):
        tag4(72 + d)
    a(f"v_lshlrev_b32 v9, 4, v9")
    a(f"v_lshl_add_u32 v9, v10, 9, v9")
    a(MASK8)
    a(f"buffer_store_dwordx4 {R(72)}, v9, {S4(rWS)}, s13 offen")
    a(FULL)
    a(f"v_mov_b32 v4, {QFL+12}\nv_mov_b32 v5, 1")
    a("ds_write_b32 v4, v5")
    stamp(1)
    a("s_getreg_b32 s88, hwreg(HW_REG_XCC_ID)")
    a("s_lshl_b32 s88, s88, 12")
    if xdelay:
        a(f"s_sleep {xdelay}")
    else:
        a("s_waitcnt vmcnt(0)")
    a(f"v_and_b32 v8, 31, v{vLANE}")
    a(f"v_lshlrev_b32 v8, 7, v8")
    a(f"s_lshl_b32 s10, s{sXCD}, 12")
    a(f"s_add_u32 s10, s10, {XID}")
    pollx(lambda: a(f"buffer_load_dwordx4 {R(32)}, v8, {S4(rWS)}, s10 offen sc1"), lambda: check_regs(range(32, 36)), name='x')
    if 'x' in skip:
        a("v_mov_b32 v32, s88")
    a("v_cmp_ne_u32 vcc, s88, v32")
    a("s_cmp_eq_u64 vcc, 0")
    a(f"s_cselect_b32 s{sLOC}, {2 if noloc else 1}, 2")
    a(f"v_mov_b32 v4, {QFL+8}\nv_mov_b32 v5, s{sLOC}")
    a("ds_write_b32 v4, v5")
    stamp(25)
    a(f"s_cmp_eq_u32 s{sLOC}, 1")
    a("s_cbranch_scc1 L_maok")
    a(MASK8)
    a(f"buffer_store_dwordx4 {R(72)}, v9, {S4(rWS)}, s13 offen sc1")
    a(FULL)
    a("L_maok:")
    if b2stage:
        hopB2()
    else:
        lds_wait(QFL + 4, 2)
        hopB(0)

    a("L_red:")
    kargs()
    srd(rWS, pWS, WS_BYTES)
    load_epoch()
    a("s_barrier")
    a("s_setprio 3")
    vm = Vm(a)
    srd(rT1, pX, 4096)
    a(f"v_lshrrev_b32 v10, 5, v{vLANE}")
    a(f"v_and_b32 v11, 31, v{vLANE}")
    a(f"v_lshlrev_b32 v9, 11, v10")
    a(f"v_lshl_add_u32 v9, v11, 4, v9")
    for q in range(4):
        vm.issue(f"buffer_load_dwordx4 {R(72 + q*4)}, v9, {S4(rT1)}, 0 offen offset:{q*512}")
    a(f"v_lshlrev_b32 v9, 11, v10")
    a(f"v_lshl_add_u32 v9, v11, 3, v9")
    a(f"s_lshl_b32 s11, s{sXCD}, 8")
    tx = vm.issue(f"buffer_load_dwordx2 {R(88, 2)}, v9, {S4(rT1)}, s11 offen")
    a("s_getreg_b32 s88, hwreg(HW_REG_XCC_ID)")
    a("s_lshl_b32 s88, s88, 12")
    a(f"v_lshlrev_b32 v4, 4, v{vLANE}")
    a(f"s_lshl_b32 s9, s{sL}, 7")
    a(f"s_add_u32 s9, s9, {XID}")
    get_tag()
    a(f"v_or_b32 v96, s88, v{vTAG}")
    a("v_mov_b32 v97, v96\nv_mov_b32 v98, v96\nv_mov_b32 v99, v96")
    a("s_mov_b64 exec, 0xff")
    if 'X' not in skip:
        a(f"buffer_store_dwordx4 {R(96)}, v4, {S4(rWS)}, s9 offen sc1")
    a(FULL)
    a(f"s_add_u32 s9, s9, {QFN - XID}")
    prewrite(100, 2, 6, 9)
    if pure == 1:
        a("s_branch L_fin")
    def touch(n, lo_bits, hi_shift, base):
        a(f"v_lshrrev_b32 v101, {lo_bits}, v{vLANE}")
        a(f"v_lshlrev_b32 v101, {hi_shift - 7}, v101")
        a(f"v_and_or_b32 v101, v{vLANE}, {(1 << lo_bits) - 1}, v101")
        a(f"v_lshlrev_b32 v101, 7, v101")
        a(f"s_add_u32 s9, s9, {base}")
        if n < 64:
            a(f"s_mov_b64 exec, {(1 << n) - 1:#x}" if n < 32 else "s_mov_b32 exec_hi, 0")
        a(f"buffer_load_dword v100, v101, {S4(rWS)}, s9 offen")
        if n < 64:
            a(FULL)
    if 'm' in ptall:
        a(f"s_lshl_b32 s9, s{sXCD}, 14\ns_lshl_b32 s10, s{sAI}, 10\ns_add_u32 s9, s9, s10")
        a(f"s_and_b32 s10, s{sIDX}, 1\ns_lshl_b32 s10, s10, 8\ns_add_u32 s9, s9, s10")
        touch(4, 1, 9, MA)
    if 'q' in ptall:
        a(f"s_lshl_b32 s9, s{sXCD}, 15\ns_lshl_b32 s10, s{sIDX}, 9\ns_add_u32 s9, s9, s10")
        touch(8, 2, 14, QP)
    if 'f' in ptall:
        for base in (QFN, OF, ML):
            a(f"s_mul_i32 s9, s{sL}, {128 * (ofstr if base == OF else 1)}")
            touch(1, 0, 7, base)
    if 'd' in ptall:
        a(f"s_and_b32 s9, s{sIDX}, 7\ns_lshl_b32 s9, s9, 15")
        a(f"s_lshr_b32 s10, s{sIDX}, 3\ns_lshl_b32 s10, s10, 12\ns_add_u32 s9, s9, s10")
        a(f"s_lshl_b32 s10, s{sXCD}, 9\ns_add_u32 s9, s9, s10")
        touch(8, 2, 14, MODP)
    if 'o' in ptall:
        a(f"s_lshl_b32 s9, s{sXCD}, 17\ns_lshl_b32 s10, s{sIDX}, 9\ns_add_u32 s9, s9, s10")
        touch(32, 2, 14, OP)
    a(f"s_bitcmp1_b32 s{sIDX}, 0")
    a("s_cbranch_scc1 L_tB")
    if 'x' in ptall:
        a(f"s_lshl_b32 s9, s{sAI}, 13\ns_lshl_b32 s10, s{sXCD}, 9\ns_add_u32 s9, s9, s10")
        touch(8, 2, 12, XP)
    a(f"s_cmp_ge_u32 s{sBI}, 112")
    a("s_cbranch_scc1 L_tD")
    if 'y' in ptall:
        a(f"s_lshl_b32 s9, s{sBI}, 13")
        touch(64, 6, 13, YP)
    if 'x' in ptall:
        a(f"s_cmp_ge_u32 s{sAI}, 8")
        a("s_cbranch_scc1 L_tD")
        consumer_ids()
        a("s_mov_b32 s9, s75")
        touch(2, 0, 13, X1 + 8192)
        a("s_mov_b32 s9, s75")
        touch(1, 0, 13, XS + 8192)
        a(f"s_mul_i32 s9, s75, {xstr}")
        touch(1, 0, 7, XH)
        a(f"s_mul_i32 s9, s75, {xstr}")
        touch(1, 0, 7, XH + xrec)
    a("s_branch L_tD")
    a("L_tB:")
    a(f"s_cmp_ge_u32 s{sBI}, 112")
    a("s_cbranch_scc1 L_tD")
    if 'x' in ptall:
        a(f"s_lshl_b32 s9, s{sBI}, 10")
        touch(8, 3, 10, HP)
    a("L_tD:")
    nmin = ('X' not in skip) + ('m' in ptall) + ('q' in ptall) + 3 * ('f' in ptall) + ('d' in ptall) + ('o' in ptall)
    a(f"s_waitcnt vmcnt({nmin})")
    a("v_mov_b32 v4, 0\nv_mov_b32 v5, 0")
    for i in range(16):
        lo(6, 72 + i)
        hi(8, 72 + i)
        a(f"v_add_f32 v4, v4, v6\nv_fmac_f32 v5, v6, v6")
        a(f"v_add_f32 v4, v4, v8\nv_fmac_f32 v5, v8, v8")
    for r in (1, 2, 4, 8):
        dpp_add(4, 4, 4, r)
        dpp_add(5, 5, 5, r)
    allred(4, 6, "v_add_f32", (16,))
    allred(5, 6, "v_add_f32", (16,))
    ln_stats(4, 5, 6, 8, 9)
    for i in range(2):
        lo(24 + 2 * i, 88 + i)
        hi(25 + 2 * i, 88 + i)
        ln_apply(24 + 2 * i, 25 + 2 * i, 6, 8, 9)
    a(f"v_and_b32 v15, {T4}, v{vTAG}")
    a(f"v_lshlrev_b32 v9, 4, v{vLANE}")
    a(f"s_lshl_b32 s10, s{sXCD}, 14")
    a(f"s_add_u32 s10, s10, {MA}")

    if agate:
        lds_wait(QFL + 12, 1)
    if adelay:
        a(f"s_sleep {adelay}")

    def ldA():
        for p in range(8):
            if p % 2 == 0:
                a(f"s_add_u32 s9, s10, {p*2048}")
            for wh in range(2):
                a(f"buffer_load_dwordx4 {R(32 + p*8 + wh*4)}, v9, {S4(rWS)}, s9 offen offset:{(p % 2)*2048 + wh*1024} sc1")
    pollx(ldA, lambda: check4(range(32, 96)), f2=True, slp=cslp, name='a')
    stamp(2)
    for st in (32, 16, 8):
        for e in range(st):
            a(f"v_add_f32 v{32+e}, v{32+e}, v{32+st+e}")
    for i in range(2):
        s0, c0, l0 = 32 + 2 * i, 36 + 2 * i, 24 + 2 * i
        rnd2(s0, s0 + 1, 6)
        rnd2(c0, c0 + 1, 6)
        a(f"v_add_f32 v{c0}, 1.0, v{c0}\nv_add_f32 v{c0+1}, 1.0, v{c0+1}")
        rnd2(c0, c0 + 1, 6)
        a(f"v_mul_f32 v{c0}, v{c0}, v{l0}\nv_mul_f32 v{c0+1}, v{c0+1}, v{l0+1}")
        rnd2(c0, c0 + 1, 6)
        a(f"v_add_f32 v{c0}, v{c0}, v{s0}\nv_add_f32 v{c0+1}, v{c0+1}, v{s0+1}")
        a(f"v_cvt_pk_bf16_f32 v{40+i}, v{c0}, v{c0+1}")
    a(f"v_lshlrev_b32 v9, 3, v{vLANE}")
    a(f"v_add_u32 v9, {HB}, v9")
    a(f"ds_write_b64 v9, {R(40, 2)}")
    a(f"v_mov_b32 v4, {QFL+4}\nv_mov_b32 v5, 1")
    a("s_waitcnt lgkmcnt(0)")
    a("ds_write_b32 v4, v5")
    stamp(17)
    if b2stage:
        hopB1()
    else:
        lds_wait(QFL + 4, 2)
        hopB(1)

    a("L_chain:")
    a("s_setprio 3")
    W = 40
    a(f"v_lshrrev_b32 v11, 4, v{vLANE}")
    a(f"v_lshlrev_b32 v8, 13, v11")
    a(f"v_and_b32 v15, 15, v{vLANE}")
    a(f"v_lshl_add_u32 v8, v15, 4, v8")
    a(f"s_lshl_b32 s10, s{sXCD}, 20")
    a(f"s_lshl_b32 s11, s{sIDX}, 8")
    a(f"s_add_u32 s10, s10, s11")
    a(f"s_mov_b32 m0, {WT}")
    kargs()
    srd(rT0, pWQ, 8388608)
    srd(rWS, pWS, WS_BYTES)
    load_epoch()
    a("s_barrier")
    a("L_wql:")
    wait_n(thrq)
    a(f"buffer_load_dwordx4 v8, {S4(rT0)}, s10 offen {nt} lds")
    a("s_add_u32 s10, s10, 32768")
    a("s_add_u32 m0, m0, 1024")
    a(f"s_cmp_lt_u32 m0, {WT + 32768}")
    a("s_cbranch_scc1 L_wql")
    get_tag()
    a(f"v_and_b32 v6, 1, v{vLANE}")
    a(f"v_lshlrev_b32 v8, 8, v6")
    a(f"v_lshl_add_u32 v8, v11, 4, v8")
    a(f"v_add_u32 v8, {HB}, v8")
    a(f"v_bfe_u32 v7, v{vLANE}, 2, 2")
    a(f"v_lshl_add_u32 v7, v11, 3, v7")
    a(f"v_lshlrev_b32 v7, 8, v7")
    a(f"v_and_b32 v10, 3, v{vLANE}")
    a(f"v_lshl_add_u32 v7, v10, 3, v7")
    a(f"v_lshrrev_b32 v9, 1, v15")
    a(f"v_lshl_add_u32 v9, v11, 3, v9")
    a(f"v_lshlrev_b32 v9, 4, v9")
    a(f"v_lshl_add_u32 v9, v6, 14, v9")
    a(f"s_lshl_b32 s10, s{sXCD}, 15")
    a(f"s_lshl_b32 s11, s{sIDX}, 9")
    a(f"s_add_u32 s10, s10, s11")
    a(f"s_add_u32 s10, s10, {QP}")
    a("s_waitcnt vmcnt(0)")
    stamp(18)
    for ct in range(8):
        for k in range(4):
            for h in range(2):
                a(f"ds_read_b64_tr_b16 {R(W + ct*16 + k*4 + h*2, 2)}, v7 offset:{WT + 8192*k + 1024*h + 32*ct}")
    lds_wait(QFL + 4, 1)
    stamp(19)
    for k in range(4):
        a(f"ds_read_b128 {R(16 + k*4)}, v8 offset:{k*64}")
    a("s_waitcnt lgkmcnt(0)")

    def pick(ct):
        m32 = (3 << (2 * ct)) * 0x10001
        a(f"s_mov_b32 exec_lo, {m32:#x}\ns_mov_b32 exec_hi, {m32:#x}")
        for r in range(4):
            a(f"v_mov_b32 v{2+r}, v{32 + (ct & 1)*4 + r}")
        a(FULL)
    for ct in range(8):
        t = 32 + (ct & 1) * 4
        for k in range(4):
            a(f"v_mfma_f32_16x16x32_bf16 {R(t)}, {R(W + ct*16 + k*4)}, {R(16 + k*4)}, {'0' if k == 0 else R(t)}")
        if ct:
            pick(ct - 1)
    pick(7)
    for d in range(4):
        tag4(2 + d)
    if 'Q' not in skip:
        a(f"buffer_store_dwordx4 {R(2)}, v9, {S4(rWS)}, s10 offen {qpol}")
    a(f"v_mov_b32 v8, {QFL+4}\nv_mov_b32 v7, 2")
    a("ds_write_b32 v8, v7")
    a("s_waitcnt lgkmcnt(0)")
    stamp(3)
    if hpt:
        a(f"s_bitcmp1_b32 s{sIDX}, 0")
        a("s_cbranch_scc1 L_ptB")
        a(f"v_lshrrev_b32 v9, 1, v{vLANE}")
        a(f"v_lshlrev_b32 v9, 9, v9")
        a(f"v_and_b32 v10, 1, v{vLANE}")
        a(f"v_lshl_add_u32 v9, v10, 7, v9")
        a(f"s_lshr_b32 s9, s{sL}, 2")
        a(f"s_lshl_b32 s10, s9, 14")
        a(f"s_and_b32 s9, s{sIDX}, 3")
        a(f"s_lshl_b32 s9, s9, 7")
        a(f"s_add_u32 s10, s10, s9")
        a(f"s_add_u32 s10, s10, {OP}")
        a(f"buffer_load_dword v16, v9, {S4(rWS)}, s10 offen {ptpol}")
        a(f"v_bfe_u32 v9, v{vLANE}, 2, 2")
        a(f"v_lshlrev_b32 v9, 12, v9")
        a(f"v_and_b32 v10, 3, v{vLANE}")
        a(f"v_lshl_add_u32 v9, v10, 7, v9")
        a(f"s_lshl_b32 s10, s{sIDX}, 13")
        a(f"s_lshl_b32 s9, s{sXCD}, 9")
        a(f"s_add_u32 s10, s10, s9")
        a(f"s_add_u32 s10, s10, {XP}")
        a(f"buffer_load_dword v17, v9, {S4(rWS)}, s10 offen {ptpol}")
        a("s_branch L_fin")
        a("L_ptB:")
        a(f"v_and_b32 v9, 7, v{vLANE}")
        a(f"v_lshlrev_b32 v9, 7, v9")
        a(f"s_lshl_b32 s10, s{sBI}, 10")
        a(f"s_add_u32 s10, s10, {HP}")
        a(f"buffer_load_dword v16, v9, {S4(rWS)}, s10 offen {ptpol}")
    a("s_branch L_fin")

    QF, DT, PT, KV = 16, 24, 32, 40
    if pure >= 2:
        def drop(l):
            if "buffer_store" in l:
                if pure in (3, 4): return True
                if pure == 5 and "sc1" in l: return True
                if pure == 6 and "sc1" not in l: return True
            if "buffer_load" in l and "sc1" in l and pure in (2, 4, 5, 6): return True
            return False
        a.lines = [l for l in a.lines if not drop(l)]
    a("L_att:")
    if kvmap == 0:
        USTR = 32768
        a(f"s_lshl_b32 s{sKV}, s{sL}, 18")
        a(f"s_lshl_b32 s9, s{sWAVE}, 12")
    elif kvmap == 1:
        USTR = 1 << 20
        a(f"s_lshl_b32 s{sKV}, s{sXCD}, 23")
        a(f"s_lshl_b32 s9, s{sIDX}, 15")
        a(f"s_add_u32 s{sKV}, s{sKV}, s9")
        a(f"s_lshl_b32 s9, s{sWAVE}, 12")
    elif kvmap == 2:
        USTR = 1 << 20
        a(f"s_lshl_b32 s{sKV}, s{sXCD}, 23")
        a(f"s_lshl_b32 s9, s{sIDX}, 12")
        a(f"s_add_u32 s{sKV}, s{sKV}, s9")
        a(f"s_lshl_b32 s9, s{sWAVE}, 17")
    a(f"s_add_u32 s{sKV}, s{sKV}, s9")
    if roti:
        a(f"s_and_b32 s9, s{sIDX}, 7")
        a(f"s_mul_i32 s9, s9, {USTR}")
        a(f"s_add_u32 s{sKV}, s{sKV}, s9")
    a(f"v_lshlrev_b32 v{vOV}, 4, v{vLANE}")
    a(f"v_and_b32 v6, 3, v{vLANE}")
    a(f"v_lshlrev_b32 v6, 10, v6")
    a(f"v_bfe_u32 v5, v{vLANE}, 2, 1")
    a(f"v_lshl_add_u32 v6, v5, 8, v6")
    a(f"v_lshl_add_u32 v{vOK}, v7, 4, v6")
    if klin == 1:
        a(f"v_and_b32 v6, 7, v{vLANE}\nv_lshlrev_b32 v6, 8, v6\nv_lshl_add_u32 v{vOK}, v7, 4, v6")
    if klin == 2:
        a(f"v_mov_b32 v{vOK}, v{vOV}")
    a(f"v_mov_b32 v4, {QFL}")
    a("s_mov_b64 vcc, 0")
    kargs()
    srd(rK, pK, 0x4000000)
    if not lateb:
        srd(rV, pV, 0x4000000)
        srd(rWS, pWS, WS_BYTES)
        a("s_barrier")
    def tile_setup(va, vb, so, sp, skip):
        l1, l2 = a.label("Lts"), a.label("Lts")
        a(f"v_lshrrev_b32 v{va}, 4, v{vLANE}")
        a(f"v_and_b32 v{vb}, 15, v{vLANE}")
        a(f"s_bitcmp1_b32 s{sIDX}, 0")
        a(f"s_cbranch_scc1 {l1}")
        srd(rT2, pWO, 8388608)
        a("s_mov_b32 s20, 64")
        a(f"s_lshl_b32 s{so}, s{sAI}, 19")
        a(f"s_lshl_b32 s9, s{sXCD}, 8")
        a(f"s_add_u32 s{so}, s{so}, s9")
        a(f"s_mov_b32 s{sp}, 2048")
        a(f"s_branch {l2}")
        a(f"{l1}:")
        a(f"s_cmp_ge_u32 s{sBI}, 112")
        a(f"s_cselect_b32 s20, 0, 64")
        srd(rT2, pW1, 7340032)
        a(f"s_and_b32 s{so}, s{sBI}, 3")
        a(f"s_mul_i32 s{so}, s{so}, {256*7168}")
        a(f"s_lshr_b32 s9, s{sBI}, 2")
        a(f"s_lshl_b32 s9, s9, 8")
        a(f"s_add_u32 s{so}, s{so}, s9")
        a(f"s_mov_b32 s{sp}, 7168")
        a(f"{l2}:")
        a(f"v_mul_lo_u32 v{va}, v{va}, s{sp}")
        a(f"v_lshl_add_u32 v{va}, v{vb}, 4, v{va}")
        a(f"s_lshl_b32 s{sp}, s{sp}, 2")

    def tile_rest(vm, va, so, sp, lo_, hi_):
        t = None
        a(f"s_add_u32 s11, s{sWAVE}, {8*lo_}")
        a(f"s_mul_i32 s9, s11, s{sp}")
        a(f"s_add_u32 s9, s9, s{so}")
        a(f"s_lshl_b32 m0, s11, 10")
        a(f"s_lshl_b32 s11, s{sp}, 3")
        for i in range(lo_, hi_):
            t = vm.issue(f"buffer_load_dwordx4 v{va}, {S4(rT2)}, s9 offen {nt} lds")
            if i + 1 < hi_:
                a(f"s_add_u32 m0, m0, 8192")
                a(f"s_add_u32 s9, s9, s11")
        return t

    def claim(fail, va=4, vb=5):
        a(f"v_mov_b32 v{va}, {QFL}\nv_mov_b32 v{vb}, 1")
        a("s_mov_b64 exec, 1")
        a(f"ds_add_rtn_u32 v{vb}, v{va}, v{vb} offset:16")
        a(FULL)
        a("s_waitcnt lgkmcnt(0)")
        a(f"v_readfirstlane_b32 s21, v{vb}")
        a(f"s_cmp_ge_u32 s21, s20")
        a(f"s_cbranch_scc1 {fail}")
        a("s_lshl_b32 m0, s21, 10")
        a("s_mul_i32 s9, s21, s19")
        a("s_add_u32 s9, s9, s18")
        a(f"buffer_load_dwordx4 v2, {S4(rT2)}, s9 offen {nt} lds")

    def claim_all(T=0):
        lp, dn = a.label("Lca"), a.label("Lcad")
        a(f"{lp}:")
        wait_n(T)
        claim(dn)
        a(f"s_branch {lp}")
        a(f"{dn}:")

    if kgate:
        lds_wait(QFL + 20, 1)
        a(f"v_mov_b32 v4, {QFL}")
        a("s_mov_b64 vcc, 0")
    load_epoch()
    thr_n = [0]

    if xmask:
        a(f"s_lshr_b32 s74, {xmask}, s{sXCD}")

    def wait_x(T, extra):
        if xmask and T:
            lsk = a.label("Lx")
            a("s_bitcmp1_b32 s74, 0")
            a(f"s_cbranch_scc1 {lsk}")
            wait_n(T)
            a(f"{lsk}:")
            wait_n(T + extra)
        else:
            wait_n(T)

    def thr_wait():
        if thr2 == thr:
            wait_x(thr, xk)
            return
        thr_n[0] += 1
        lsk = a.label("Lthr")
        a(f"s_cbranch_vccnz {lsk}")
        if thr_n[0] % 2 == 0:
            a("ds_read_b32 v5, v4")
        a(f"s_waitcnt vmcnt({thr-1})")
        if thr_n[0] % 2 == 0:
            a("s_waitcnt lgkmcnt(0)")
            a("v_cmp_eq_u32 vcc, 2, v5")
        a(f"{lsk}:")
        wait_n(thr2)

    vm = Vm(a)
    order = [2, 3, 0, 1, 4, 5, 6, 7]
    pos = {s: i for i, s in enumerate(order)}
    tk = {}
    for s in order:
        a(f"s_xor_b32 s9, s{sKV}, {pos[s]*USTR}")
        for t in range(2):
            for h in range(2):
                if thr:
                    thr_wait()
                tk[s] = vm.issue(f"buffer_load_dwordx4 {R(KV + s*16 + t*8 + h*4)}, v{vOK}, {S4(rK)}, s9 offen offset:{(t*512 + h*128, t*2048 + h*128, t*2048 + h*1024)[klin]} {nt}")
                if lateb and vm.n == (lateb & 7):
                    srd(rV, pV, 0x4000000)
                    srd(rWS, pWS, WS_BYTES)
                    a("s_barrier")
    vblk = [KV + 32, KV + 64, KV + 96, KV + 32]
    tv = [None] * 4
    if v0lds:
        vblk = [KV + 96, KV + 32, KV + 64, KV + 96]
        for e in range(8):
            if e % 4 == 0:
                a(f"s_xor_b32 s9, s{sKV}, {(e//4)*USTR}")
                a(f"s_lshl_b32 s10, s{sWAVE}, 13")
                a(f"s_add_u32 m0, s10, {WT + (e//4)*4096}")
            thr_wait()
            tv[0] = vm.issue(f"buffer_load_dwordx4 v{vOV}, {S4(rV)}, s9 offen offset:{(e % 4)*1024} {nt} lds")

    def vload(v):
        for e in range(8):
            if e % 4 == 0:
                a(f"s_xor_b32 s9, s{sKV}, {(2*v + e//4)*USTR}")
            wait_n(thrv)
            tv[v] = vm.issue(f"buffer_load_dwordx4 {R(vblk[v] + e*4)}, v{vOV}, {S4(rV)}, s9 offen offset:{(e % 4)*1024} {nt}")
    vnext = [8 if v0lds else 0]

    def vslot():
        if not fine:
            return
        n = vnext[0]
        vnext[0] += 1
        v, e = n // 8, n % 8
        if e % 4 == 0:
            a(f"s_xor_b32 s{sDU}, s{sKV}, {(2*v + e//4)*USTR}")
        wait_x(thrv, xv)
        tv[v] = vm.issue(f"buffer_load_dwordx4 {R(vblk[v] + e*4)}, v{vOV}, {S4(rV)}, s{sDU} offen offset:{(e % 4)*1024} {nt}")
    stamp(20)
    if pure:
        vm.wait(tk[3]); vload(0); vm.wait(tk[5]); vload(1); vm.wait(tk[7]); vload(2); vm.wait(tv[0]); vload(3)
        a("s_waitcnt vmcnt(0)")
        stamp(8)
        a("s_branch L_fin")
    get_tag()
    tile_setup(2, 5, 18, 19, None)
    if fill:
        a("L_fill:")
        wait_n(thr)
        a(f"v_mov_b32 v4, {QFL}")
        a("ds_read_b32 v5, v4")
        a("s_waitcnt lgkmcnt(0)")
        a("v_cmp_eq_u32 vcc, 2, v5")
        a("s_cbranch_vccnz L_filld")
        claim("L_fillx")
        a("s_branch L_fill")
        a("L_fillx:")
    lds_wait(QFL, 2)
    a("L_filld:")
    stamp(5)
    a(f"v_and_b32 v8, 7, v{vLANE}")
    a(f"v_lshlrev_b32 v9, 8, v8")
    a(f"v_lshl_add_u32 v9, v7, 4, v9")
    a(f"v_add_u32 v9, {QB}, v9")
    a(f"ds_read_b128 {R(QF)}, v9")
    a(f"ds_read_b128 {R(QF+4)}, v9 offset:128")
    a("s_waitcnt lgkmcnt(0)")
    Sreg = [PT, PT + 4, KV, KV + 4, KV + 8, KV + 12, KV + 16, KV + 20]

    def qk_mfma(s, X, Y):
        vm.wait(tk[s])
        k0 = KV + s * 16
        a(f"v_mfma_f32_16x16x32_bf16 {R(X)}, {R(k0)}, {R(QF)}, 0")
        a(f"v_mfma_f32_16x16x32_bf16 {R(Y)}, {R(k0+8)}, {R(QF)}, 0")
        a(f"v_mfma_f32_16x16x32_bf16 {R(X)}, {R(k0+4)}, {R(QF+4)}, {R(X)}")
        a(f"v_mfma_f32_16x16x32_bf16 {R(Y)}, {R(k0+12)}, {R(QF+4)}, {R(Y)}")

    def qk_post(p, X, Y):
        S = Sreg[p]
        for r in range(4):
            a(f"v_permlane32_swap_b32 v{X+r}, v{Y+r}")
        for r in range(4):
            dpp_add(S + r, Y + r, X + r, 8)
        for r in (0, 2):
            rnd2(S + r, S + r + 1, 4)
            a(f"v_mul_f32 v{S+r}, s{sSCALE}, v{S+r}\nv_mul_f32 v{S+r+1}, s{sSCALE}, v{S+r+1}")
            rnd2(S + r, S + r + 1, 4)
        if p == 0:
            a(f"v_max3_f32 v5, v{S}, v{S+1}, v{S+2}")
            a(f"v_max_f32 v5, v5, v{S+3}")
        else:
            a(f"v_max3_f32 v5, v5, v{S}, v{S+1}")
            a(f"v_max3_f32 v5, v5, v{S+2}, v{S+3}")
    qk_mfma(2, PT, DT)
    qk_mfma(3, PT + 4, DT + 4)
    if not fine:
        vload(0)
    vslot()
    qk_post(0, PT, DT)
    vslot()
    qk_post(1, PT + 4, DT + 4)
    for s in (0, 1, 4, 5, 6, 7):
        vslot()
        qk_mfma(s, DT, DT + 4)
        if s == 5 and not fine:
            vload(1)
        qk_post(pos[s], DT, DT + 4)
    vslot()
    if v0lds:
        a(f"s_lshl_b32 s9, s{sWAVE}, 13")
        a(f"v_add_u32 v9, s9, v{vOV}")
        vm.wait(tv[0])
        for e in range(8):
            a(f"ds_read_b128 {R(vblk[0] + e*4)}, v9 offset:{WT + e*1024}")
    allred(5, 6, "v_max_f32", (32, 16))
    a(f"v_lshlrev_b32 v9, 5, v8")
    a(f"v_add_u32 v10, {MX}, v9")
    a(f"s_lshl_b32 s9, s{sWAVE}, 2")
    a(f"v_add_u32 v11, s9, v10")
    a("s_mov_b64 exec, 0xff")
    a(f"ds_write_b32 v11, v5")
    a(FULL)
    if vearly and not fine:
        vload(2)
    vslot()
    a("s_waitcnt lgkmcnt(0)")
    stamp(6)
    a("s_barrier")
    vslot()
    a(f"v_mov_b32 v4, {QFL+8}")
    a(f"ds_read_b128 {R(16)}, v10")
    a(f"ds_read_b128 {R(20)}, v10 offset:16")
    a(f"ds_read_b32 v4, v4")
    a("s_waitcnt lgkmcnt(0)")
    a(f"v_readfirstlane_b32 s{sLOC}, v4")
    a(f"v_max3_f32 v5, v16, v17, v18\nv_max3_f32 v5, v5, v19, v20\nv_max3_f32 v5, v5, v21, v22\nv_max_f32 v5, v5, v23")
    a(f"v_mul_f32 v6, s{sLOG2E}, v5")
    a("v_mov_b32 v4, 0")
    sl = [Sreg[p] + r for p in range(8) for r in range(4)]
    for i, x in enumerate(sl):
        if i in (8, 20):
            vslot()
        a(f"v_fma_f32 v{x}, v{x}, s{sLOG2E}, -v6")
        a(f"v_exp_f32 v{x}, v{x}")
        if i:
            a(f"v_add_f32 v4, v4, v{sl[i-1]}")
    a(f"v_add_f32 v4, v4, v{sl[31]}")
    vslot()
    for i in range(16):
        a(f"v_cvt_pk_bf16_f32 v{QF+i}, v{sl[2*i]}, v{sl[2*i+1]}")
    allred(4, 6, "v_add_f32", (32, 16))
    a("s_mov_b64 exec, 0xff")
    a(f"ds_write_b32 v11, v4 offset:{LX-MX}")
    a(FULL)
    vslot()
    a("s_waitcnt lgkmcnt(0)")
    a("s_barrier")
    vslot()
    a(f"s_cmp_lg_u32 s{sWAVE}, 4")
    a("s_cbranch_scc1 L_noml")
    a(f"ds_read_b128 {R(32)}, v10 offset:{LX-MX}")
    a(f"ds_read_b128 {R(36)}, v10 offset:{LX-MX+16}")
    a(f"s_lshl_b32 s10, s{sL}, 7")
    a(f"s_add_u32 s10, s10, {ML}")
    a(f"v_lshlrev_b32 v9, 4, v8")
    a("s_waitcnt lgkmcnt(0)")
    a("v_add_f32 v32, v32, v33\nv_add_f32 v34, v34, v35\nv_add_f32 v36, v36, v37\nv_add_f32 v38, v38, v39")
    a("v_add_f32 v32, v32, v34\nv_add_f32 v36, v36, v38\nv_add_f32 v33, v32, v36")
    tag_trunc(32, 5)
    tag_trunc(33, 33)
    a("v_mov_b32 v34, v32\nv_mov_b32 v35, v33")
    a("s_mov_b64 exec, 0xff")
    store_grp("buffer_store_dwordx4", R(32), 9, 10)
    a(FULL)
    a("L_noml:")
    if not vearly and not fine:
        vload(2)
    a(f"v_mul_u32_u24 v9, 528, v8")
    a(f"v_lshrrev_b32 v10, 4, v{vLANE}")
    a(f"v_lshl_add_u32 v9, v10, 4, v9")
    a(f"s_mul_i32 s9, s{sWAVE}, 4224")
    a(f"s_add_u32 s9, s9, {OC}")
    a(f"v_add_u32 v9, s9, v9")
    a(f"v_lshrrev_b32 v10, 5, v{vLANE}")
    a(f"v_mul_u32_u24 v10, {4*4224}, v10")
    a(f"v_and_b32 v11, 31, v{vLANE}")
    a(f"v_lshlrev_b32 v11, 4, v11")
    a(f"s_mul_i32 s9, s{sWAVE}, 528")
    a(f"s_add_u32 s9, s9, {OC}")
    a(f"v_add3_u32 v10, v10, v11, s9")
    a(f"s_lshl_b32 s10, s{sXCD}, 3")
    a(f"s_add_u32 s10, s10, s{sWAVE}")
    a(f"s_lshl_b32 s10, s10, 5")
    a(f"s_add_u32 s10, s10, s{sIDX}")
    a(f"s_lshl_b32 s11, s10, 9")
    a(f"s_add_u32 s11, s11, {OP}")
    if prew:
        prewrite(PT, 4, 8, 11)
        a(f"s_bitcmp1_b32 s{sIDX}, 0")
        a("s_cbranch_scc1 L_pwB")
        a(f"s_lshr_b32 s9, s{sWAVE}, 2")
        a(f"s_add_u32 s9, s9, s{sIDX}")
        a(f"s_lshl_b32 s9, s9, 13")
        a(f"s_lshl_b32 s10, s{sXCD}, 9")
        a(f"s_add_u32 s9, s9, s10")
        a(f"s_and_b32 s10, s{sWAVE}, 3")
        a(f"s_lshl_b32 s10, s10, 7")
        a(f"s_add_u32 s9, s9, s10")
        a(f"s_add_u32 s9, s9, {XP}")
        prewrite(PT, 3, 12, 9)
        a("s_branch L_pwD")
        a("L_pwB:")
        a(f"s_cmp_ge_u32 s{sBI}, 112")
        a("s_cbranch_scc1 L_pwD")
        a(f"s_lshl_b32 s9, s{sBI}, 10")
        a(f"s_lshl_b32 s10, s{sWAVE}, 6")
        a(f"s_add_u32 s9, s9, s10")
        a(f"s_add_u32 s9, s9, {HP}")
        prewrite(PT, 2, 9, 9)
        a("L_pwD:")
    SA = KV
    MLR, F = (72, 88) if v0lds else (104, 120)
    a("s_mov_b32 s94, 0x00ff00ff\ns_mov_b32 s95, 0x00ff00ff")

    def mlloads():
        for i in range(4):
            a(f"buffer_load_dwordx4 {R(MLR + 4*i)}, v15, {S4(rWS)}, s89 offen offset:{i*1024} sc1")
    OPS = KV + 96
    assert not v0lds

    def perm_k(k):
        for d in range(8):
            sel = sSELHI if d & 1 else sSELLO
            a(f"v_perm_b32 v{OPS + 4*d + k}, v{vblk[3] + (2*k+1)*4 + (d >> 1)}, v{vblk[3] + 2*k*4 + (d >> 1)}, s{sel}")
    for v in range(4):
        if v == 3:
            vm.wait(tv[3] - 4)
            a(f"s_cmp_ge_u32 s88, 32")
            a("s_cbranch_scc1 L_nof")
            pollx(mlloads, lambda: check_regs(range(MLR, MLR + 16)), pre_issued='landed')
            a(f"v_max3_f32 v5, v{MLR}, v{MLR+4}, v{MLR+8}\nv_max_f32 v5, v5, v{MLR+12}")
            dpp_max(5, 5, 5, 8)
            allred(5, 6, "v_max_f32", (16, 32))
            for i in range(4):
                a(f"v_sub_f32 v{F+i}, v{MLR+4*i}, v5")
                a(f"v_mul_f32 v{F+i}, s{sLOG2E}, v{F+i}")
                a(f"v_exp_f32 v{F+i}, v{F+i}")
            a(f"v_mul_f32 v5, v{F}, v{MLR+1}")
            for i in range(1, 4):
                a(f"v_fmac_f32 v5, v{F+i}, v{MLR+1+4*i}")
            dpp_add(5, 5, 5, 8)
            allred(5, 6, "v_add_f32", (16, 32))
            a("v_rcp_f32 v5, v5")
            for i in range(4):
                a(f"v_mul_f32 v{F+i}, v{F+i}, v5")
            a(f"s_lshl_b32 s89, s{sXCD}, 5")
            a(f"s_add_u32 s89, s89, s88")
            a(f"s_mul_i32 s89, s89, {128*ofstr}")
            a(f"s_add_u32 s89, s89, {OF}")
            a("L_nof:")
            perm_k(0)
            perm_k(1)
            a(f"s_bitcmp1_b32 s{sIDX}, 0")
            a("s_cbranch_scc1 L_nw1p")
            for i in range(w1pre):
                claim("L_nw1p")
            a(f"s_waitcnt vmcnt({w1pre + 2})")
            perm_k(2)
            a(f"s_waitcnt vmcnt({w1pre})")
            a("s_branch L_w1pd")
            a("L_nw1p:")
            a(f"s_waitcnt vmcnt(2)")
            perm_k(2)
            a(f"s_waitcnt vmcnt(0)")
            a("L_w1pd:")
            perm_k(3)
            for d in range(8):
                a(f"v_mfma_f32_16x16x32_bf16 {R(SA + d*4)}, {R(OPS + 4*d)}, {R(QF + v*4)}, {R(SA + d*4)}")
            continue
        vm.wait(tv[v])
        for d in range(8):
            if v == 0 or d % 2 == 0:
                vslot()
            t = PT + (d & 1) * 4
            perm_operand(t, vblk[v], d)
            c = "0" if v == 0 else R(SA + d * 4)
            a(f"v_mfma_f32_16x16x32_bf16 {R(SA + d*4)}, {R(t)}, {R(QF + v*4)}, {c}")
        if v == 0 and not fine:
            vload(3)
        if v == 1:
            wps = 32 // nsrv
            a(f"v_lshlrev_b32 v15, 7, v7")
            a(f"s_sub_u32 s88, s{sAI}, {16 - nsrv}")
            a(f"s_cselect_b32 s88, 64, s88")
            a(f"s_mul_i32 s88, s88, {wps}")
            a(f"s_add_u32 s88, s88, s{sWAVE}")
            a(f"s_cmp_ge_u32 s{sWAVE}, {wps}")
            a(f"s_cselect_b32 s88, 64, s88")
            a(f"s_bitcmp1_b32 s{sIDX}, 0")
            a(f"s_cselect_b32 s88, s88, 64")
            a(f"s_cmp_ge_u32 s88, 32")
            a("s_cbranch_scc1 L_noml2")
            a(f"s_lshl_b32 s89, s{sXCD}, 12")
            a(f"s_lshr_b32 s10, s88, 2")
            a(f"s_lshl_b32 s9, s10, 4")
            a(f"s_add_u32 s89, s89, s9")
            a(f"s_add_u32 s89, s89, {ML}")
            mlloads()
            a(f"v_lshlrev_b32 v0, 9, v7")
            a(f"v_lshl_add_u32 v0, v8, 4, v0")
            a(f"s_lshl_b32 s90, s{sXCD}, 3")
            a(f"s_add_u32 s90, s90, s10")
            a(f"s_lshl_b32 s90, s90, 14")
            a(f"s_and_b32 s9, s88, 3")
            a(f"s_lshl_b32 s9, s9, 7")
            a(f"s_add_u32 s90, s90, s9")
            a(f"s_add_u32 s90, s90, {OP}")
            for i in range(1, 4):
                a(f"s_add_u32 s{90+i}, s90, {i*4096}")
            a("L_noml2:")
    assert not fine or vnext[0] == 32
    stamp(7)
    a(MASK8)
    for d in range(8):
        a(f"ds_write_b128 v9, {R(SA + d*4)} offset:{d*64}")
    a(FULL)
    a("s_waitcnt lgkmcnt(0)")
    a("s_barrier")
    for k in range(4):
        a(f"ds_read_b128 {R(16 + 4*k)}, v10 offset:{k*4224}")
    a("s_waitcnt lgkmcnt(0)")
    pk("add", 16, 16, 20)
    pk("add", 24, 24, 28)
    pk("add", 20, 16, 24)
    pk("add", 16, 16, 24)
    for r in range(4):
        a(f"v_permlane32_swap_b32 v{16+r}, v{20+r}")
    pk("add", 16, 16, 20)
    for r in range(4):
        tag_trunc(16 + r, 16 + r)
    a("s_mov_b32 exec_hi, 0")
    store_grp("buffer_store_dwordx4", R(16), 11, 11)
    a(FULL)
    stamp(8)

    def h1a():
        ln = a.label("Lnoh1a")
        a(f"s_cmp_ge_u32 s88, 32")
        a(f"s_cbranch_scc1 {ln}")

        def oloads():
            for i in range(4):
                a(f"buffer_load_dwordx4 {R(MLR + 4*i)}, v0, {S4(rWS)}, s{90+i} offen sc1")
        pollx(oloads, lambda: check_regs(range(MLR, MLR + 16)), slp=0)
        pk("mul", MLR, MLR, F, ybc=True)
        pk("mul", MLR + 8, MLR + 8, F + 2, ybc=True)
        pkfma(MLR, MLR + 4, F + 1)
        pkfma(MLR + 8, MLR + 12, F + 3)
        pk("add", MLR, MLR, MLR + 8)
        red4(MLR, (8,))
        a(f"v_cvt_pk_bf16_f32 v{MLR}, v{MLR}, v{MLR}")
        a(f"v_bfi_b32 v{MLR}, s{sHI}, v{MLR}, v{vTAG}")
        untr(MLR)
        a("s_mov_b64 exec, 0xff")
        a(f"buffer_store_dwordx4 {R(MLR)}, v{vOV}, {S4(rWS)}, s89 offen sc1")
        a(FULL)
        stamp(24)
        if ackst:
            a("s_waitcnt vmcnt(0)")
            stamp(29)
        a(f"{ln}:")
    h1a()
    if notail:
        a("s_branch L_fin")
    a(f"s_bitcmp1_b32 s{sIDX}, 0")
    a("s_cbranch_scc1 L_tailB")

    def gemv8(W, Bv, acc, vrd):
        for s in range(8):
            a(f"ds_read_b128 {R(Bv + 4*s)}, v{vrd} offset:{s*64}")
        for s in range(8):
            a(f"s_waitcnt lgkmcnt({7-s})")
            c = "0" if s == 0 else R(acc)
            a(f"v_mfma_f32_16x16x32_bf16 {R(acc)}, {R(W + s*4)}, {R(Bv + 4*s)}, {c}")
        a(f"s_mov_b32 exec_lo, 0x00030003\ns_mov_b32 exec_hi, 0x00030003")
        for r in range(4):
            tag_trunc(acc + r, acc + r)

    vm = Vm(a)
    claim_all()
    WOP, W2O, W2R, AD, B1V = 72, 104, 136, 40, 29
    a(f"v_lshrrev_b32 v7, 4, v{vLANE}")
    a(f"v_and_b32 v9, 15, v{vLANE}")
    a(f"v_lshrrev_b32 v10, 5, v{vLANE}")
    a(f"v_and_b32 v5, 1, v7")
    a(f"v_lshlrev_b32 v20, 6, v5")
    a(f"v_bfe_u32 v6, v{vLANE}, 2, 2")
    a(f"v_lshl_add_u32 v20, v6, 3, v20")
    a(f"v_add_u32 v20, v20, v10")
    a(f"v_lshlrev_b32 v20, 8, v20")
    a(f"v_and_b32 v6, 3, v{vLANE}")
    a(f"v_lshl_add_u32 v20, v6, 3, v20")
    a(f"s_lshl_b32 s9, s{sWAVE}, 5")
    a(f"v_add_u32 v20, s9, v20")
    a(f"v_lshlrev_b32 v28, 12, v5")
    a(f"v_lshl_add_u32 v28, v9, 5, v28")
    a(f"v_lshl_add_u32 v28, v10, 4, v28")
    a(f"s_lshl_b32 s14, s{sBI}, 13")
    a(f"s_lshl_b32 s9, s{sWAVE}, 9")
    a(f"s_add_u32 s14, s14, s9")
    a(f"s_add_u32 s14, s14, {YP}")
    a(f"v_and_b32 v11, 31, v{vLANE}")
    a(f"v_lshlrev_b32 v21, 14, v10")
    a(f"v_lshl_add_u32 v21, v11, 4, v21")
    a(f"s_lshl_b32 s74, s{sAI}, 10")
    a(f"s_add_u32 s74, s74, {OF}")
    a(f"s_lshl_b32 s9, s{sWAVE}, 10")
    a(f"s_add_u32 s9, s9, {OB}")
    a(f"v_lshlrev_b32 v22, 9, v10")
    a(f"v_lshl_add_u32 v22, v11, 3, v22")
    a(f"v_add_u32 v22, s9, v22")
    a(f"v_and_b32 v5, 1, v{vLANE}")
    a(f"v_lshlrev_b32 v23, 9, v5")
    a(f"v_lshl_add_u32 v23, v7, 4, v23")
    a(f"v_add_u32 v23, s9, v23")
    a(f"v_lshlrev_b32 v24, 12, v5")
    a(f"v_lshl_add_u32 v24, v7, 4, v24")
    a(f"s_lshl_b32 s73, s{sAI}, 13")
    a(f"s_lshl_b32 s9, s{sXCD}, 9")
    a(f"s_add_u32 s73, s73, s9")
    a(f"s_lshl_b32 s9, s{sWAVE}, 6")
    a(f"s_add_u32 s73, s73, s9")
    a(f"s_add_u32 s73, s73, {XP}")
    srd(rT0, pW2, 7340032)
    srd(rT1, pB1, 7168)
    a(f"v_lshlrev_b32 v30, 14, v7")
    a(f"v_lshl_add_u32 v30, v9, 4, v30")
    a(f"s_lshl_b32 s15, s{sBI}, 16")
    a(f"s_lshl_b32 s9, s{sWAVE}, 8")
    a(f"s_add_u32 s15, s15, s9")
    kperm(4, 5)
    a(f"v_and_b32 v6, 7, v{vLANE}")
    a(f"v_lshl_add_u32 v31, v6, 2, v4")
    a(f"v_lshlrev_b32 v31, 1, v31")
    a(f"v_bfe_u32 v8, v{vLANE}, 3, 1")
    a(f"v_lshl_add_u32 v26, v8, 6, v31")
    a(f"s_lshl_b32 s9, s{sWAVE}, 7")
    a(f"s_add_u32 s9, s9, {H1B}")
    a(f"v_add_u32 v26, s9, v26")
    a(f"v_bfe_u32 v5, v{vLANE}, 2, 1")
    a(f"v_lshlrev_b32 v27, 6, v5")
    a(f"v_lshl_add_u32 v27, v7, 4, v27")
    a(f"v_add_u32 v27, s9, v27")
    a(f"v_lshlrev_b32 v25, 10, v7")
    a(f"v_lshl_add_u32 v25, v8, 9, v25")
    a(f"v_lshl_add_u32 v25, v6, 4, v25")
    a(f"s_and_b32 s9, s{sBI}, 3")
    a(f"s_lshl_b32 s89, s9, 7")
    a(f"s_andn2_b32 s10, s{sBI}, 3")
    a(f"s_lshl_b32 s10, s10, 10")
    a(f"s_add_u32 s89, s89, s10")
    a(f"s_add_u32 s89, s89, {HP}")
    GA, XV, B2V, GB, SV, TV = 136, 5, 6, 15, 137, 138
    consumer_ids()
    a(f"v_lshrrev_b32 v6, 3, v{vLANE}")
    a(f"v_and_b32 v8, 7, v{vLANE}")
    a(f"v_lshl_add_u32 v11, v8, 2, v4")
    a(f"v_lshlrev_b32 v5, 2, v11")
    a(f"v_add_u32 v2, {XB}, v5")
    a(f"s_mul_i32 s88, s75, {xstr}")
    a(f"s_add_u32 s88, s88, {XH}")
    a(f"v_lshlrev_b32 v0, 13, v6")
    a(f"v_lshl_add_u32 v0, v8, 4, v0")
    a(f"ds_read_b32 v{GA}, v2 offset:384")
    a(f"ds_read_b32 v{XV}, v2 offset:512")
    a(f"ds_read_b32 v{B2V}, v2 offset:256")
    a(f"ds_read_b32 v{GB}, v2 offset:128")
    a(f"ds_read_b32 v{SV}, v2")
    a(f"ds_read_b32 v{TV}, v2 offset:640")
    a(f"v_mov_b32 v144, v{vOV}")
    a(f"s_mov_b32 s9, {xrec + 16}")
    a("v_writelane_b32 v144, s9, 8")
    a(f"s_mov_b32 s9, {xrec}")
    a("v_writelane_b32 v144, s9, 16")
    for r in range(32):
        a(f"v_mov_b32 v{AD+r}, 0")
    def ldOF():
        a(f"buffer_load_dwordx4 {R(32)}, v21, {S4(rWS)}, s74 offen sc1")
        a(f"buffer_load_dwordx4 {R(36)}, v21, {S4(rWS)}, s74 offen offset:512 sc1")
    if '1' in sg:
        a(f"s_lshl_b32 s9, s{sWAVE}, 7")
        a(f"s_add_u32 s10, s74, s9")
        sgate(10, [0, 16384])
    a("s_waitcnt vmcnt(0)")
    a("s_barrier")
    if '1' in sg:
        ldOF()
    for s in range(8):
        for h in range(2):
            a(f"ds_read_b64_tr_b16 {R(WOP + s*4 + h*2, 2)}, v20 offset:{WT + 32768*(s >> 2) + 8192*h + 512*(s & 3)}")
    stamp(26)
    pollx(ldOF, lambda: check_regs(range(32, 40)), pre_issued=('1' in sg))
    stamp(9)
    for k in range(4):
        a(f"v_perm_b32 v{16+k}, v{33+2*k}, v{32+2*k}, s{sSELHI}")
    a(f"ds_write_b64 v22, {R(16, 2)}")
    a(f"ds_write_b64 v22, {R(18, 2)} offset:256")
    a("s_waitcnt lgkmcnt(0)")
    gemv8(WOP, 104, 32, 23)
    store_grp("buffer_store_dwordx4", R(32), 24, 73)
    a(FULL)
    stamp(10)
    a(f"s_cmp_ge_u32 s{sBI}, 112")
    a("s_cbranch_scc1 L_fin")
    a(f"s_cmp_ge_u32 s{sAI}, 8")
    a("s_cbranch_scc1 L_noh2")
    a(f"s_cmp_lg_u32 s{sWAVE}, 7")
    a("s_cbranch_scc1 L_h2d")
    a(f"s_add_u32 s10, s75, {XP}")
    a(f"s_add_u32 s11, s75, {XP + 65536}")
    a("s_mov_b32 s94, 0xff00ff00\ns_mov_b32 s95, 0xff00ff00")
    SM = "s[94:95]"
    a(f"v_cndmask_b32 v81, 1.0, v{TV}, {SM}")

    def xloads():
        a(f"buffer_load_dwordx4 {R(84)}, v0, {S4(rWS)}, s10 offen sc1")
        a(f"buffer_load_dwordx4 {R(88)}, v0, {S4(rWS)}, s11 offen sc1")
    pollx(xloads, lambda: check_regs(range(84, 92)), slp=0)
    stamp(11)
    pk("add", 84, 84, 88)
    red4(84, (8,))
    rnd1(84, 84)
    a(f"v_mul_f32 v84, v{GA}, v84")
    rnd1(84, 84)
    a(f"v_add_f32 v84, v{XV}, v84")
    rnd1(XV, 84)
    a(f"v_mul_f32 v142, v{XV}, v{TV}")
    a(f"v_or_b32 v84, v{vTAG}, v{XV}")
    a(f"v_cndmask_b32 v82, v{XV}, v{SV}, {SM}")
    a(f"v_cndmask_b32 v80, v{XV}, v142, {SM}")
    a(f"v_cndmask_b32 v142, v142, 0, {SM}")
    a(f"v_mul_f32 v140, v80, v81")
    a(f"v_mul_f32 v141, v80, v82")
    a(f"v_mul_f32 v143, v142, v142")
    untr(84)
    publish_moments(140, 88, 84)
    if hu3:
        a(f"s_lshl_b32 s10, s{sXCD}, 7")
        a(f"s_lshl_b32 s9, s{sAI}, 4")
        a(f"s_add_u32 s10, s10, s9")
        a(f"s_add_u32 s10, s10, {LF}")
        a("s_mov_b64 exec, 1")
        store_grp("buffer_store_dwordx4", R(84), vOV, 10)
        a(FULL)
    stamp(12)
    a("s_cmp_lg_u32 s2, 0")
    a("s_cbranch_scc1 L_h2d")
    if pin:
        a("L_pin:")
        a("s_memrealtime s[96:97]")
        a("s_waitcnt lgkmcnt(0)")
        a("s_sub_u32 s96, s96, s98")
        a(f"s_cmp_lt_u32 s96, {pin}")
        a("s_cbranch_scc1 L_pin")
    a(f"v_mov_b32 v98, s{sEP}")
    a("v_mov_b32 v99, 0")
    a("s_mov_b64 exec, 1")
    a(f"buffer_store_dword v98, v99, {S4(rWS)}, 0 offen offset:{EPOCH} sc1")
    a("s_mov_b64 exec, -1")
    a("s_branch L_h2d")
    a("L_noh2:")
    if w2delay:
        a(f"s_sleep {w2delay}")
    a("L_h2d:")
    a("s_barrier")
    for e in range(8):
        if e % 2 == 0:
            a(f"s_add_u32 s9, s15, {e*2048}")
        a(f"buffer_load_dwordx4 {R(W2R + e*4)}, v30, {S4(rT0)}, s9 offen offset:{(e % 2)*2048} {nt}")
    a(f"s_lshl_b32 s9, s{sBI}, 6")
    a(f"buffer_load_ushort v{B1V}, v31, {S4(rT1)}, s9 offen")
    a("s_waitcnt vmcnt(0)")
    for d in range(8):
        perm_operand(W2O + d * 4, W2R, d)
    lo(B1V, B1V)
    stamp(27)
    pollx(lambda: a(f"buffer_load_dwordx4 {R(136)}, v25, {S4(rWS)}, s89 offen sc1"), lambda: check_regs(range(136, 140)), slp=0)
    stamp(23)
    red4(136, ())
    rnd1(136, 136)
    a(f"v_add_f32 v136, v136, v{B1V}")
    rnd1(136, 136)
    a("v_mul_f32 v137, v136, v136")
    a("v_mul_f32 v137, 0x3d372713, v137")
    a("v_fma_f32 v137, v137, v136, v136")
    a("v_mul_f32 v137, 0xc0135761, v137")
    a("v_exp_f32 v137, v137")
    a("v_add_f32 v137, 1.0, v137")
    a("v_rcp_f32 v137, v137")
    a("v_mul_f32 v136, v136, v137")
    a("v_cvt_pk_bf16_f32 v136, v136, v136")
    a("ds_write_b16 v26, v136")
    a("s_waitcnt lgkmcnt(0)")
    for d in range(8):
        m16 = (0x11 << (d & 3)) << (8 * (d >> 2))
        m32 = m16 | (m16 << 16)
        a(f"s_mov_b32 exec_lo, {m32:#x}\ns_mov_b32 exec_hi, {m32:#x}")
        a(f"ds_read_b128 {R(AD + 4*d)}, v27")
    a(FULL)
    for d in range(8):
        a(f"s_waitcnt lgkmcnt({7-d})")
        c = "0" if d == 0 else R(136)
        a(f"v_mfma_f32_16x16x32_bf16 {R(136)}, {R(AD + 4*d)}, {R(W2O + 4*d)}, {c}")
    for r in range(4):
        tag_trunc(136 + r, 136 + r)
    a(f"buffer_store_dwordx4 {R(136)}, v28, {S4(rWS)}, s14 offen sc1")
    stamp(28)
    a(f"s_cmp_ge_u32 s{sAI}, 8")
    a("s_cbranch_scc1 L_fin")
    srd(rT3, pOUT, 4096)
    a(f"s_mul_i32 s11, s{sWAVE}, {14*8192}")
    a(f"s_add_u32 s11, s11, s75")
    a(f"s_add_u32 s11, s11, {YP}")
    a(f"s_add_u32 s15, s11, {8*8192}")
    a(f"s_lshl_b32 s9, s{sWAVE}, 2")
    a(f"s_add_u32 s9, s9, {FB}")
    a(f"v_lshl_add_u32 v9, v11, 5, s9")
    a(f"v_lshlrev_b32 v8, 5, v11")
    a(f"v_add_u32 v8, {FB}, v8")
    a(f"s_lshr_b32 s10, s75, 1")
    a(f"v_lshlrev_b32 v10, 1, v11")
    for r in range(44, 48):
        a(f"v_mov_b32 v{r}, 0")
    a(f"s_mov_b32 s94, -1\ns_mov_b32 s95, 0xffff")

    def ldH4():
        a(f"buffer_load_dwordx4 {R(40)}, v0, {S4(rWS)}, s11 offen sc1")
        a(f"s_and_saveexec_b64 s[{sEX}:{sEX+1}], s[94:95]")
        a(f"buffer_load_dwordx4 {R(44)}, v0, {S4(rWS)}, s15 offen sc1")

    def ckH4():
        for r in range(44, 48):
            a(f"v_xor_b32 v{r}, v{vTAG}, v{r}")
        a(f"s_mov_b64 exec, s[{sEX}:{sEX+1}]")
        check_regs(range(40, 44))
        a(f"v_or3_b32 v{vBAD}, v{vBAD}, v44, v45")
        a(f"v_or3_b32 v{vBAD}, v{vBAD}, v46, v47")
    if h4ack:
        a("s_waitcnt vmcnt(0)")
    if h4delay:
        a(f"s_sleep {h4delay}")
    if '4' in sg:
        sgate(11, [k * 8192 for k in range(14)])
    pollx(ldH4, ckH4)
    stamp(13)
    pk("add", 40, 40, 44)
    red4(40, (8,))
    a("ds_write_b32 v9, v40")
    a("s_waitcnt lgkmcnt(0)")
    a("s_barrier")
    a(f"s_cmp_lg_u32 s{sWAVE}, 7")
    a("s_cbranch_scc1 L_fin")
    a(f"ds_read_b128 {R(40)}, v8")
    a(f"ds_read_b128 {R(44)}, v8 offset:16")
    a("s_waitcnt lgkmcnt(0)")
    pk("add", 40, 40, 44)
    a("v_add_f32 v40, v40, v41\nv_add_f32 v42, v42, v43\nv_add_f32 v40, v40, v42")
    rnd1(40, 40)
    a(f"v_add_f32 v40, v{B2V}, v40")
    rnd1(40, 40)
    a(f"v_mul_f32 v40, v{GB}, v40")
    rnd1(40, 40)
    a(f"v_add_f32 v40, v{XV}, v40")
    a("v_cvt_pk_bf16_f32 v40, v40, v40")
    a(MASK8)
    a(f"buffer_store_short v40, v10, {S4(rT3)}, s10 offen")
    a(FULL)

    a("s_branch L_fin")

    a("L_tailB:")
    a(f"s_cmp_ge_u32 s{sBI}, 112")
    a("s_cbranch_scc1 L_fin")
    W1O = 72
    XR, SB, CB, MR = 32, 36, 16, 136
    a(f"v_lshrrev_b32 v7, 4, v{vLANE}")
    a(f"s_and_b32 s9, s{sBI}, 3")
    a(f"s_lshl_b32 s13, s9, 10")
    a(f"s_lshl_b32 s10, s{sWAVE}, 12")
    a(f"s_add_u32 s13, s13, s10")
    a(f"s_add_u32 s15, s13, {X1 + 8192}")
    a(f"s_add_u32 s88, s13, {X1 + 16384}")
    a(f"s_mul_i32 s74, s13, {xstr}")
    a(f"s_add_u32 s74, s74, {XH}")
    a(f"v_lshrrev_b32 v6, 1, v{vLANE}")
    a(f"v_and_b32 v5, 1, v{vLANE}")
    a(f"v_lshlrev_b32 v20, 7, v6")
    a(f"v_lshl_add_u32 v20, v5, 4, v20")
    a(f"v_mul_u32_u24 v21, {128*xstr}, v6")
    a(f"v_lshl_add_u32 v21, v5, 4, v21")
    a(f"s_add_u32 s89, s10, {XS + 8192}")
    a(f"s_mul_i32 s91, s{sWAVE}, {4096*xstr}")
    a(f"s_add_u32 s91, s91, {XH + xrec}")
    a(f"s_lshl_b32 s10, s{sWAVE}, 9")
    a(f"s_add_u32 s10, s10, {YB}")
    a(f"v_lshl_add_u32 v22, v{vLANE}, 3, s10")
    a(f"v_lshlrev_b32 v23, 9, v5")
    a(f"v_lshl_add_u32 v24, v7, 4, v23")
    a(f"v_add_u32 v23, {YB}, v24")
    a(f"s_lshl_b32 s90, s{sBI}, 10")
    a(f"s_lshl_b32 s9, s{sWAVE}, 6")
    a(f"s_add_u32 s90, s90, s9")
    a(f"s_add_u32 s90, s90, {HP}")
    a(f"v_bfe_u32 v25, v{vLANE}, 2, 2")
    a(f"v_lshl_add_u32 v25, v7, 3, v25")
    a(f"v_lshlrev_b32 v25, 8, v25")
    a(f"v_and_b32 v6, 3, v{vLANE}")
    a(f"v_lshl_add_u32 v25, v6, 3, v25")
    a(f"s_lshl_b32 s9, s{sWAVE}, 5")
    a(f"v_add_u32 v25, s9, v25")
    a(f"v_lshrrev_b32 v6, 3, v{vLANE}")
    a(f"v_and_b32 v8, 7, v{vLANE}")
    a(f"v_mul_u32_u24 v26, {128*xstr}, v6")
    a(f"v_lshl_add_u32 v26, v8, 4, v26")
    a("s_barrier")
    vm = Vm(a)

    def ldS():
        a(f"buffer_load_dwordx4 {R(SB)}, v{vOV}, {S4(rWS)}, s15 offen sc1")
        a(f"buffer_load_dwordx4 {R(CB)}, v{vOV}, {S4(rWS)}, s88 offen sc1")
        a(f"buffer_load_dwordx4 {R(MR)}, v20, {S4(rWS)}, s89 offen sc1")
    LANE_OF = [0, 32, 16, 48, 1, 33]
    a(f"s_cmp_ge_u32 s{sWAVE}, 2")
    a("s_cbranch_scc1 L_nocst")
    pollx(ldS, lambda: check_regs(list(range(SB, SB + 4)) + list(range(CB, CB + 4)) + list(range(MR, MR + 4))))
    red4(MR, (2, 4, 8))
    a(f"v_mul_f32 v{MR}, 0x3a800000, v{MR}")
    for k in range(5):
        a(f"v_readlane_b32 s9, v{MR}, {LANE_OF[k]}")
        a(f"v_mov_b32 v{144+k}, s9")
    a("L_nocst:")
    if w1delay:
        a(f"s_sleep {w1delay}")
    claim_all(w1thr)
    a("s_waitcnt vmcnt(0)")
    a("s_barrier")
    for s in range(8):
        for h in range(2):
            a(f"ds_read_b64_tr_b16 {R(W1O + s*4 + h*2, 2)}, v25 offset:{WT + 8192*s + 1024*h}")
    stamp(26)
    if '3' in sg:
        a(f"s_mul_i32 s10, s{sWAVE}, {512*xstr}")
        a(f"s_add_u32 s10, s10, {XH + xrec}")
        sgate(10, [(b * 32 + k) * 128 * xstr for b in range(2) for k in range(4)])
        a("s_barrier")
    a(f"s_cmp_ge_u32 s{sWAVE}, 2")
    a("s_cbranch_scc1 L_ydone")

    def ldH3():
        a(f"buffer_load_dwordx4 {R(XR)}, v26, {S4(rWS)}, s74 offen sc1")
        a(f"buffer_load_dwordx4 {R(MR)}, v21, {S4(rWS)}, s91 offen sc1")
    if hu3:
        a(f"s_lshl_b32 s10, s{sXCD}, 7")
        a(f"s_add_u32 s10, s10, {LF}")
        a("s_mov_b64 exec, 0xff")
        pollx(lambda: a(f"buffer_load_dwordx4 {R(XR)}, v{vOV}, {S4(rWS)}, s10 offen sc1"), lambda: check_regs(range(XR, XR + 4)))
        if hu3 > 1:
            a(f"s_sleep {hu3 - 1}")
    pollx(ldH3, lambda: check_regs(list(range(XR, XR + 4)) + list(range(MR, MR + 4))), slp=h3slp)
    stamp(10)
    red4(MR, (2, 4, 8))
    a(f"v_mul_f32 v{MR}, 0x3a800000, v{MR}")
    for k, sr in enumerate((10, 11, 12, 13, 15, 88)):
        a(f"v_readlane_b32 s{sr}, v{MR}, {LANE_OF[k]}")

    def stats_tail(mean, ex2, t, mb, rs):
        a(f"v_fma_f32 v{ex2}, -v{mean}, v{mean}, v{ex2}")
        a(f"v_max_f32 v{ex2}, 0, v{ex2}")
        a(f"v_cvt_pk_bf16_f32 v{t}, v{mean}, v{ex2}")
        hi(ex2, t)
        lo(mb, t)
        a(f"v_add_f32 v{ex2}, 0x3727c5ac, v{ex2}")
        rnd1(ex2, ex2)
        a(f"v_sqrt_f32 v{ex2}, v{ex2}")
        rnd1(ex2, ex2)
        a(f"v_rcp_f32 v{rs}, v{ex2}")
    a("v_mov_b32 v5, s10\nv_mov_b32 v6, s11")
    stats_tail(5, 6, 60, 140, 141)
    a(f"v_fma_f32 v150, -v140, v144, s12")
    a(f"v_mul_f32 v151, v140, v145")
    a(f"v_fma_f32 v151, -2.0, s15, v151")
    a(f"v_fma_f32 v151, v140, v151, s13")
    a(f"v_fma_f32 v152, -v140, v146, s88")
    pk("add", XR, XR, 140, ybc=True, neg=True)
    for k in (0, 2):
        rnd2(XR + k, XR + k + 1, 60 + k // 2)
    a(f"v_fma_f32 v5, v141, v150, v147")
    a(f"v_mul_f32 v151, v141, v151")
    a(f"v_fma_f32 v151, 2.0, v152, v151")
    a(f"v_fma_f32 v6, v141, v151, v148")
    pk("mul", XR, XR, 141, ybc=True)
    for k in (0, 2):
        rnd2(XR + k, XR + k + 1, 60 + k // 2)
    stats_tail(5, 6, 62, 142, 143)
    pk("mul", XR, XR, CB)
    for k in (0, 2):
        rnd2(XR + k, XR + k + 1, 60 + k // 2)
    pk("add", XR, XR, SB)
    for k in (0, 2):
        rnd2(XR + k, XR + k + 1, 60 + k // 2)
    pk("add", XR, XR, 142, ybc=True, neg=True)
    for k in (0, 2):
        rnd2(XR + k, XR + k + 1, 60 + k // 2)
    pk("mul", XR, XR, 143, ybc=True)
    a(f"v_cvt_pk_bf16_f32 v28, v{XR}, v{XR+1}\nv_cvt_pk_bf16_f32 v29, v{XR+2}, v{XR+3}")
    a(f"ds_write_b64 v22, {R(28, 2)}")
    a("s_waitcnt lgkmcnt(0)")
    a("L_ydone:")
    a("s_barrier")
    gemv8(W1O, 136, 32, 23)
    store_grp("buffer_store_dwordx4", R(32), 24, 90)
    a(FULL)
    stamp(22)

    a("L_fin:")
    if stamps and dbgstamps:
        stamp(15)
        a(f"s_cmp_lg_u32 s2, {dbgstamps - 1}")
        a("s_cbranch_scc1 L_end")
        a("s_load_dwordx2 s[10:11], s[0:1], 104")
        a("s_waitcnt lgkmcnt(0)")
        srd(rT0, 10, 256)
        slots = [1, 2, 3, 4, 20, 6, 8, 24, 9, 10, 11, 12, 22, 13, 15, 21]
        a("v_mov_b32 v4, 200")
        for i, k in enumerate(slots):
            a(f"s_mov_b32 s9, {4*i}")
            a(f"v_writelane_b32 v4, s9, {k}")
        a(f"v_readlane_b32 s9, v{vST}, 0")
        a(f"v_subrev_u32 v5, s9, v{vST}")
        a(f"v_cmp_ne_u32 vcc, 0, v{vST}")
        a("s_mov_b64 exec, vcc")
        a(f"buffer_atomic_umax v5, v4, {S4(rT0)}, 0 offen sc1")
    elif stamps:
        stamp(15)
        a(f"s_mul_i32 s9, s2, {NWAVES}")
        a(f"s_add_u32 s9, s9, s{sW12}")
        a(f"s_lshl_b32 s9, s9, 7")
        a(f"s_add_u32 s9, s9, {STAMP}")
        a(f"v_lshlrev_b32 v4, 2, v{vLANE}")
        a("s_mov_b32 exec_hi, 0")
        a(f"buffer_store_dword v{vST}, v4, {S4(rWS)}, s9 offen")
    a("L_end:")
    a("s_endpgm")
    a('.section .rodata,"a"')
    a(".p2align 6")
    a(f".amdhsa_kernel {NAME}_kernel")
    for l in (".amdhsa_next_free_vgpr 168", ".amdhsa_next_free_sgpr 102", ".amdhsa_accum_offset 168",
              ".amdhsa_group_segment_fixed_size 0", ".amdhsa_kernarg_size 120", ".amdhsa_user_sgpr_count 2",
              ".amdhsa_user_sgpr_kernarg_segment_ptr 1", ".amdhsa_system_sgpr_workgroup_id_x 1",
              ".amdhsa_float_denorm_mode_32 3"):
        a(l)
    a(".end_amdhsa_kernel")
    return pre + a.finish()


if __name__ == "__main__":
    out = sys.argv[1] if len(sys.argv) > 1 else f"cdna_kernels/{NAME}.s"
    kw = {}
    for arg in sys.argv[2:]:
        k, v = arg.split("=")
        kw[k] = eval(v)
    open(out, "w").write(gen(**kw))
```

```python
import sys
from asmlib import Asm, Vm

NAME = "adaLN_cond__gqa_block_cached__mixer_channel_mlp__decode"

EPOCH = 0
ML = 0x1000
X1 = 0x9000
MODP = 0x140000
QP = 0x30000
MA = 0xB0000
HP = 0xE0000
XP = 0x100000
DUAL = 0x90000
OF = 0x500000
QFN = 0x80000
XS = 0x88000
XH = 0x180000
LF = 0x90000
XID = 0x78000
OP = 0x200000
YP = 0x300000
STAMP = 0x800000
WS_BYTES = 0x10000000
WT = 0
OC = 0x10000
QB = 0x18400
HB = 0x18C00
ZB = 0x18E00
MX = 0x19000
LX = 0x19100
OB = 0x10000
ST = 0x19600
YB = 0x19800
RED = 0x1A800
H1B = 0x1B000
QFL = 0x1B400
XB = 0x1B480
FB = 0x1B800
LDS_BYTES = 0x1BC00
TAGM = 0x3ff
T4 = 3
NWAVES = 12

sWAVE, sL, sXCD, sIDX, sAI, sTAG = 3, 4, 5, 6, 7, 8
pX, pK, pV, pWQ, pWO, pW1, pB1, pW2, pB2, pC, pWM, pOUT, pWS = 16, 18, 20, 22, 24, 28, 30, 32, 34, 36, 38, 40, 42
rK, rV, rWS, rT0, rT1, rT2, rT3 = 44, 48, 52, 56, 60, 64, 68
sDU = 72
sSELLO, sSELHI, sHI, sLOG2E, sSCALE, sSPIN, sEP, sTM = 76, 77, 78, 79, 80, 81, 82, 83
sEX = 84
sBI = 86
sKV = 87
sW12 = 100
sLOC = 101
vLANE, vOK, vOV = 1, 2, 3
vBAD, vTAG, vST = 12, 13, 14


DOC = '''
;   (XCC id exchange) that all its workgroups share one L2; otherwise everything is written through (sc1).
'''


def gen(stamps=False, dbgstamps=False, codewarm=True, spin=200000, sleep=0, nt="nt", w1_early=True,
        thr=4, thr2=4, thrq=0, thrb=0, thrv=6, notail=False, quiet=0, nsrv=16, hu3=1, h4ack=1, sg='', sgslp=0, kvmap=0, roti=1, v0lds=0, nohelp=0, w1delay=0, w1thr=0, pin=0, fill=0, mbgate=0, kgate=0, bpre=0, w2delay=0, wpre=0, xmask=0, xk=1, xv=2, ofstr=1, xstr=33, onest=1, w2x2=0, pipe='', spread=0, ackst=0, pslp=2, w1pre=5, ovl=1, w1late=1, h3slp=None, h3split=0, fullrec=0, ptall='mqfdoxy', wq_dyn=1, fine=1, qpol='sc1', ptpol='sc1', agate=1, xdelay=0, lateb=0, skip='', hpt=0, prew=0, b2stage=1, h4delay=0, pretouch=0, noloc=0, noma=0, bdelay=0, adelay=0, nomodfin=0, pure=0, klin=0, vearly=0, fake=0, attdma=True, thrw=3, cslp=0, w1pol=None):
    a = Asm()
    hdr = open(f"cdna_kernels/{NAME}.s.ref").read().split("\n")
    head = [l for l in hdr if l.startswith(";") and "@launch" not in l]
    pre = "\n".join(head) + f"\n; @launch grid=(256,1,1) block=({64*NWAVES},1,1) lds={LDS_BYTES}" + DOC
    a('.amdgcn_target "amdgcn-amd-amdhsa--gfx950"')
    a(".text")
    a(f".globl {NAME}_kernel")
    a(".p2align 8")
    a(f".type {NAME}_kernel,@function")
    a(f"{NAME}_kernel:")

    def srd(d, p, n):
        a(f"s_mov_b32 s{d}, s{p}\ns_mov_b32 s{d+1}, s{p+1}\ns_mov_b32 s{d+2}, {n}\ns_mov_b32 s{d+3}, 0x20000")

    def R(b, n=4):
        return f"v[{b}:{b+n-1}]"

    def S4(b):
        return f"s[{b}:{b+3}]"

    def stamp(k):
        if stamps == 1 or (stamps == 2 and k in (8, 15)):
            a(f"s_memrealtime s[96:97]\ns_waitcnt lgkmcnt(0)\nv_writelane_b32 v{vST}, s96, {k}")

    def lo(d, p):
        a(f"v_lshlrev_b32 v{d}, 16, v{p}")

    def hi(d, p):
        a(f"v_and_b32 v{d}, s{sHI}, v{p}")

    def rnd1(d, s):
        a(f"v_cvt_pk_bf16_f32 v{d}, v{s}, v{s}")
        lo(d, d)

    def rnd2(x, y, t):
        a(f"v_cvt_pk_bf16_f32 v{t}, v{x}, v{y}")
        lo(x, t)
        hi(y, t)

    def tag_round(d, s):
        a(f"v_add_u32 v{d}, 0x200, v{s}")
        a(f"v_bfi_b32 v{d}, s{sTM}, v{vTAG}, v{d}")

    def tag_trunc(d, s):
        a(f"v_bfi_b32 v{d}, s{sTM}, v{vTAG}, v{s}")

    def check_regs(regs, first=True):
        for r in regs:
            a(f"v_xor_b32 v{r}, v{vTAG}, v{r}")
        regs = list(regs)
        if first:
            a(f"v_or_b32 v{vBAD}, v{regs[0]}, v{regs[1]}")
            regs = regs[2:]
        for i in range(0, len(regs), 2):
            a(f"v_or3_b32 v{vBAD}, v{vBAD}, v{regs[i]}, v{regs[i+1]}")

    def dpp_add(d, s_rot, s1, ror):
        a(f"v_add_f32_dpp v{d}, v{s_rot}, v{s1} row_ror:{ror} row_mask:0xf bank_mask:0xf")

    def dpp_max(d, s_rot, s1, ror):
        a(f"v_max_f32_dpp v{d}, v{s_rot}, v{s1} row_ror:{ror} row_mask:0xf bank_mask:0xf")

    def allred(x, t, op, which):
        for w in which:
            a(f"v_mov_b32 v{t}, v{x}")
            a(f"v_permlane{w}_swap_b32 v{x}, v{t}")
            a(f"{op} v{x}, v{x}, v{t}")

    def red4(b, rors):
        a(f"v_permlane32_swap_b32 v{b}, v{b+1}")
        a(f"v_permlane32_swap_b32 v{b+2}, v{b+3}")
        a(f"v_add_f32 v{b}, v{b}, v{b+1}")
        a(f"v_add_f32 v{b+2}, v{b+2}, v{b+3}")
        a(f"v_permlane16_swap_b32 v{b}, v{b+2}")
        a(f"v_add_f32 v{b}, v{b}, v{b+2}")
        for r in rors:
            dpp_add(b, b, b, r)

    def perm_operand(dst, blk, d):
        sel = sSELHI if d & 1 else sSELLO
        for k in range(4):
            a(f"v_perm_b32 v{dst+k}, v{blk + (2*k+1)*4 + (d >> 1)}, v{blk + 2*k*4 + (d >> 1)}, s{sel}")

    def ln_stats(su, sq, t, mb, rs):
        a(f"v_mul_f32 v{su}, 0x3a800000, v{su}")
        a(f"v_mul_f32 v{sq}, 0x3a800000, v{sq}")
        a(f"v_fma_f32 v{sq}, -v{su}, v{su}, v{sq}")
        a(f"v_max_f32 v{sq}, 0, v{sq}")
        a(f"v_cvt_pk_bf16_f32 v{t}, v{su}, v{sq}")
        lo(mb, t)
        hi(sq, t)
        a(f"v_add_f32 v{sq}, 0x3727c5ac, v{sq}")
        rnd1(sq, sq)
        a(f"v_sqrt_f32 v{sq}, v{sq}")
        rnd1(sq, sq)
        a(f"v_rcp_f32 v{rs}, v{sq}")

    def ln_apply(x, y, t, mb, rs, last_round=True):
        a(f"v_sub_f32 v{x}, v{x}, v{mb}")
        a(f"v_sub_f32 v{y}, v{y}, v{mb}")
        rnd2(x, y, t)
        a(f"v_mul_f32 v{x}, v{x}, v{rs}")
        a(f"v_mul_f32 v{y}, v{y}, v{rs}")
        if last_round:
            rnd2(x, y, t)

    def check2(pairs_regs):
        first = True
        for b in pairs_regs:
            a(f"v_xor_b32 v{b+1}, s{sEP}, v{b+1}")
            a(f"v_xor_b32 v{b+3}, s{sEP}, v{b+3}")
            if first:
                a(f"v_or_b32 v{vBAD}, v{b+1}, v{b+3}")
                first = False
            else:
                a(f"v_or3_b32 v{vBAD}, v{vBAD}, v{b+1}, v{b+3}")

    def pollx(loads, check, f2=False, dual=False, pre_issued=False, between=None, slp=None, name=None):
        if name and name in skip:
            a("s_waitcnt vmcnt(0)")
            a("s_mov_b64 exec, -1")
            return
        lp, dn, ck = a.label("Lpoll"), a.label("Ldone"), a.label("Lchk")
        a(f"s_mov_b32 s{sSPIN}, {0 if (fake and slp in (cslp, 16)) else spin | 7}")
        if pre_issued:
            a(f"s_branch {ck}")
        inst = stamps == 1 and name in ("a", "b", "c", "x")
        if inst:
            a("s_mov_b32 s94, 0\ns_mov_b32 s95, 0")
        a(f"{lp}:")
        if inst:
            a("s_memrealtime s[90:91]")
        loads()
        if pre_issued != "landed":
            a(f"{ck}:")
        a("s_waitcnt vmcnt(0)")
        if pre_issued == "landed":
            a(f"{ck}:")
        if inst:
            a("s_memrealtime s[92:93]\ns_waitcnt lgkmcnt(0)")
            a("s_sub_u32 s92, s92, s90\ns_max_u32 s94, s94, s92\ns_add_u32 s95, s95, 1")
        check()
        if not f2:
            a(f"v_and_b32 v{vBAD}, s{sTM}, v{vBAD}")
        a(f"v_cmp_ne_u32 vcc, 0, v{vBAD}")
        a(f"s_cbranch_vccz {dn}")
        a("s_mov_b64 exec, vcc")
        sl = sleep if slp is None else slp
        if sl:
            a(f"s_sleep {sl}")
        a(f"s_sub_u32 s{sSPIN}, s{sSPIN}, 1")
        a(f"s_cbranch_scc0 {lp}")
        a(f"{dn}:")
        a("s_mov_b64 exec, -1")
        if inst:
            k = {"a": 26, "b": 28, "c": 28, "x": 26}[name]
            a(f"v_writelane_b32 v{vST}, s94, {k}\nv_writelane_b32 v{vST}, s95, {k+1}")

    def pollp(load, nl, final, sets, sm=94, init=None):
        lp, dn = a.label("Lpp"), a.label("Lppd")
        M = f"s[{sm}:{sm+1}]"
        n = 4 * nl
        a(f"s_mov_b64 {M}, exec")
        a(f"s_mov_b32 s{sSPIN}, {spin}")
        load(sets[0])
        if pslp:
            a(f"s_sleep {pslp}")
        load(sets[1])
        a(f"{lp}:")
        for k in range(3):
            if pslp:
                a(f"s_sleep {pslp}")
            load(sets[(k + 2) % 3])
            a(f"s_waitcnt vmcnt({2*nl})")
            b = sets[k]
            check_regs(range(b, b + n))
            a(f"v_and_b32 v{vBAD}, s{sTM}, v{vBAD}")
            a(f"v_cmp_eq_u32 vcc, 0, v{vBAD}")
            a("s_mov_b64 exec, vcc")
            for i in range(n):
                a(f"v_mov_b32 v{final[i]}, v{b+i}")
            a(f"s_andn2_b64 {M}, {M}, vcc")
            a(f"s_cbranch_scc0 {dn}")
            a(f"s_mov_b64 exec, {M}")
        a(f"s_sub_u32 s{sSPIN}, s{sSPIN}, 1")
        a(f"s_cbranch_scc0 {lp}")
        a(f"{dn}:")
        a("s_mov_b64 exec, -1")

    def sgate(soff, offs):
        lp, dn = a.label("Lsg"), a.label("Lsgd")
        a(f"s_add_u32 s92, s{pWS}, s{soff}")
        a(f"s_addc_u32 s93, s{pWS+1}, 0")
        a(f"s_mov_b32 s{sSPIN}, 2000")
        a(f"{lp}:")
        for i, o in enumerate(offs):
            a(f"s_load_dword s{16+i}, s[92:93], {o} glc")
        a("s_waitcnt lgkmcnt(0)")
        a(f"s_xor_b32 s9, s16, s{sTAG}")
        for i in range(1, len(offs)):
            a(f"s_xor_b32 s{16+i}, s{16+i}, s{sTAG}")
            a(f"s_or_b32 s9, s9, s{16+i}")
        a(f"s_and_b32 s9, s9, s{sTM}")
        a(f"s_cbranch_scc0 {dn}")
        if sgslp:
            a(f"s_sleep {sgslp}")
        a(f"s_sub_u32 s{sSPIN}, s{sSPIN}, 1")
        a(f"s_cbranch_scc0 {lp}")
        a(f"{dn}:")

    def dual_exchange(store_wt, loads, check):
        l1, ok, dn = a.label("Lfx"), a.label("Lfxok"), a.label("Lfxdn")
        a(f"s_mov_b32 s{sDU}, {DUAL}")
        a(f"s_mov_b32 s{sSPIN}, 24")
        a(f"{l1}:")
        loads()
        a("s_waitcnt vmcnt(0)")
        check()
        a(f"v_and_b32 v{vBAD}, s{sTM}, v{vBAD}")
        a(f"v_cmp_ne_u32 vcc, 0, v{vBAD}")
        a(f"s_cbranch_vccz {ok}")
        a("s_mov_b64 exec, vcc")
        a(f"s_sub_u32 s{sSPIN}, s{sSPIN}, 1")
        a(f"s_cbranch_scc0 {l1}")
        a(f"s_mov_b64 s[{sEX}:{sEX+1}], exec")
        store_wt()
        a(f"s_mov_b64 exec, s[{sEX}:{sEX+1}]")
        pollx(loads, check, dual=True)
        a(f"s_branch {dn}")
        a(f"{ok}:")
        store_wt()
        a("s_mov_b64 exec, -1")
        a(f"{dn}:")

    def store_grp(op, data, vaddr, soff):
        l1, l2 = a.label("Lsg"), a.label("Lsgd")
        a(f"s_cmp_eq_u32 s{sLOC}, 1")
        a(f"s_cbranch_scc1 {l1}")
        a(f"{op} {data}, v{vaddr}, {S4(rWS)}, s{soff} offen sc1")
        a(f"s_branch {l2}")
        a(f"{l1}:")
        a(f"{op} {data}, v{vaddr}, {S4(rWS)}, s{soff} offen")
        a(f"{l2}:")

    def prewrite(t, nl_log2, bshift, soff):
        if not prew:
            return
        for k in range(4):
            a(f"v_xor_b32 v{t+k}, 1, v{vTAG}")
        a(f"v_lshrrev_b32 v{t+4}, {nl_log2}, v{vLANE}")
        a(f"v_lshlrev_b32 v{t+4}, {bshift-4}, v{t+4}")
        a(f"v_and_or_b32 v{t+4}, v{vLANE}, {(1 << nl_log2) - 1}, v{t+4}")
        a(f"v_lshlrev_b32 v{t+4}, 4, v{t+4}")
        n = 2 << nl_log2
        a(f"s_mov_b64 exec, {(1 << n) - 1:#x}" if n < 32 else "s_mov_b32 exec_hi, 0")
        a(f"buffer_store_dwordx4 {R(t)}, v{t+4}, {S4(rWS)}, s{soff} offen")
        a("s_mov_b64 exec, -1")

    def store_dual(op, data, vaddr, soff, off=0):
        a(f"s_add_u32 s9, s{soff}, {DUAL}")
        a(f"{op} {data}, v{vaddr}, {S4(rWS)}, s9 offen offset:{off}")
        a(f"{op} {data}, v{vaddr}, {S4(rWS)}, s{soff} offen offset:{off} sc1")

    def untr(b):
        a(f"v_mov_b32 v{b+1}, v{b}")
        a(f"v_permlane32_swap_b32 v{b}, v{b+1}")
        a(f"v_mov_b32 v{b+2}, v{b}")
        a(f"v_mov_b32 v{b+3}, v{b+1}")
        a(f"v_permlane16_swap_b32 v{b}, v{b+2}")
        a(f"v_permlane16_swap_b32 v{b+1}, v{b+3}")

    def pk(op, d, x, y, n=4, ybc=False, neg=False):
        for k in range(0, n, 2):
            if ybc:
                yb, hi_ = y & ~1, y & 1
                m = f" op_sel:[0,{hi_}] op_sel_hi:[1,{hi_}]" + (" neg_lo:[0,1] neg_hi:[0,1]" if neg else "")
                a(f"v_pk_{op}_f32 {R(d+k, 2)}, {R(x+k, 2)}, {R(yb, 2)}{m}")
            else:
                a(f"v_pk_{op}_f32 {R(d+k, 2)}, {R(x+k, 2)}, {R(y+k, 2)}")

    def pkfma(d, x, f, n=4):
        fb, hi_ = f & ~1, f & 1
        for k in range(0, n, 2):
            a(f"v_pk_fma_f32 {R(d+k, 2)}, {R(x+k, 2)}, {R(fb, 2)}, {R(d+k, 2)} op_sel:[0,{hi_},0] op_sel_hi:[1,{hi_},1]")

    def kperm(d, t):
        a(f"v_bfe_u32 v{d}, v{vLANE}, 4, 1")
        a(f"v_lshrrev_b32 v{t}, 5, v{vLANE}")
        a(f"v_lshl_or_b32 v{d}, v{d}, 1, v{t}")

    xrec = 128 * (xstr // 2)
    MASK8 = "s_mov_b32 exec_lo, 0x00ff00ff\ns_mov_b32 exec_hi, 0x00ff00ff"
    FULL = "s_mov_b64 exec, -1"

    a("s_cmp_ge_u32 s2, 256")
    a("s_cbranch_scc1 L_end")
    a("s_load_dwordx16 s[16:31], s[0:1], 0")
    a("s_load_dwordx8 s[32:39], s[0:1], 64")
    a("s_load_dwordx2 s[40:41], s[0:1], 96")
    a("s_load_dwordx2 s[42:43], s[0:1], 112")
    if pin:
        a("s_memrealtime s[98:99]")
    if stamps:
        a(f"v_mov_b32 v{vST}, 0")
        a("s_memrealtime s[98:99]")
    a(f"v_lshrrev_b32 v4, 6, v0")
    a(f"v_and_b32 v{vLANE}, 63, v0")
    a(f"v_readfirstlane_b32 s{sW12}, v4")
    a(f"s_and_b32 s{sXCD}, s2, 7")
    a(f"s_lshr_b32 s{sIDX}, s2, 3")
    a(f"s_lshl_b32 s{sL}, s{sXCD}, 5")
    a(f"s_add_u32 s{sL}, s{sL}, s{sIDX}")
    a(f"s_lshr_b32 s{sAI}, s{sIDX}, 1")
    a(f"s_lshr_b32 s9, s{sAI}, 2")
    a(f"s_lshl_b32 s9, s9, 3")
    a(f"s_add_u32 s9, s9, s{sXCD}")
    a(f"s_lshl_b32 s{sBI}, s9, 2")
    a(f"s_and_b32 s9, s{sAI}, 3")
    a(f"s_add_u32 s{sBI}, s{sBI}, s9")
    a(f"s_mov_b32 s{sSELLO}, 0x05040100")
    a(f"s_mov_b32 s{sSELHI}, 0x07060302")
    a(f"s_mov_b32 s{sHI}, 0xffff0000")
    a(f"s_mov_b32 s{sLOG2E}, 0x3fb8aa3b")
    a(f"s_mov_b32 s{sSCALE}, 0x3db504f3")
    a(f"s_mov_b32 s{sTM}, {TAGM}")
    a(f"v_lshrrev_b32 v7, 3, v{vLANE}")
    a(f"s_sub_u32 s{sWAVE}, s{sW12}, 4")
    a(f"s_cmp_lg_u32 s{sW12}, 0")
    a("s_cbranch_scc1 L_noinit")
    a(f"v_lshlrev_b32 v4, 2, v{vLANE}")
    a(f"v_add_u32 v4, {ZB}, v4")
    a("v_mov_b32 v5, 0")
    a("ds_write_b32 v4, v5")
    a(f"ds_write_b32 v4, v5 offset:{QFL - ZB - 128}")
    a("L_noinit:")

    def kargs():
        a("s_waitcnt lgkmcnt(0)")
        if stamps:
            a(f"v_writelane_b32 v{vST}, s98, 0")

    def load_epoch():
        a(f"s_load_dword s{sEP}, s[{pWS}:{pWS+1}], {EPOCH}")

    def get_tag():
        a("s_waitcnt lgkmcnt(0)")
        a(f"s_add_u32 s{sEP}, s{sEP}, 1")
        a(f"s_and_b32 s{sTAG}, s{sEP}, {TAGM}")
        a(f"v_mov_b32 v{vTAG}, s{sTAG}")

    def wait_q():
        lp, dn = a.label("Lwq"), a.label("Lwqd")
        a(f"v_mov_b32 v4, {QFL}")
        a(f"s_mov_b32 s{sSPIN}, {spin*20}")
        a(f"{lp}:")
        a("ds_read_b32 v5, v4")
        a("s_waitcnt lgkmcnt(0)")
        a("v_cmp_ne_u32 vcc, 0, v5")
        a(f"s_cbranch_vccnz {dn}")
        a("s_sleep 1")
        a(f"s_sub_u32 s{sSPIN}, s{sSPIN}, 1")
        a(f"s_cbranch_scc0 {lp}")
        a(f"{dn}:")

    def wait_n(T):
        if T:
            a(f"s_waitcnt vmcnt({T-1})")

    def mod_tile(ngrp, srow0, scol, T, after_issue, before_issue):
        ACC, PT, W = 32, 64, 72
        vm = Vm(a)
        a(f"s_mul_i32 s10, s{srow0}, 12288")
        a(f"s_add_u32 s10, s10, s{scol}")
        a(f"s_mov_b32 s9, {8*12288}")
        a(f"v_mul_lo_u32 v8, v7, s9")
        a(f"v_and_b32 v9, 7, v{vLANE}")
        a(f"v_lshl_add_u32 v8, v9, 4, v8")
        a(f"v_bfe_u32 v10, v{vLANE}, 2, 1")
        a(f"v_lshlrev_b32 v10, 11, v10")
        a(f"v_lshl_add_u32 v10, v7, 4, v10")
        a(f"s_lshl_b32 s11, s{srow0}, 1")
        before_issue()
        srd(rT0, pWM, 12582912)
        srd(rT1, pC, 4096)
        for q4 in range(ngrp):
            tc = vm.issue(f"buffer_load_dwordx4 {R(ACC + q4*4)}, v10, {S4(rT1)}, s11 offen offset:{q4*128}")
        toks = {}

        def grp(q4):
            for e in range(8):
                a(f"s_add_u32 s9, s10, {(64*q4+e)*12288}")
                wait_n(T)
                toks[q4] = vm.issue(f"buffer_load_dwordx4 {R(W + (q4 % 3)*32 + e*4)}, v8, {S4(rT0)}, s9 offen {nt}")
        for q4 in range(min(ngrp, 3)):
            grp(q4)
        after_issue()
        if pure == 1:
            if ngrp == 4:
                vm.wait(toks[0])
                grp(3)
            a("s_waitcnt vmcnt(0)")
            a("s_branch L_fin")
        vm.wait(tc)
        a(f"s_mov_b32 s9, 0xbfb8aa3b")
        for i in range(4 * ngrp):
            lo(4, ACC + i)
            hi(5, ACC + i)
            a(f"v_mul_f32 v6, s9, v4\nv_mul_f32 v11, s9, v5")
            a(f"v_exp_f32 v6, v6\nv_exp_f32 v11, v11")
            a(f"v_add_f32 v6, 1.0, v6\nv_add_f32 v11, 1.0, v11")
            a(f"v_rcp_f32 v6, v6\nv_rcp_f32 v11, v11")
            a(f"v_mul_f32 v4, v4, v6\nv_mul_f32 v5, v5, v11")
            a(f"v_cvt_pk_bf16_f32 v{16+i}, v4, v5")
        a(f"v_and_b32 v11, 3, v{vLANE}")
        a(f"v_bfe_u32 v10, v{vLANE}, 4, 1")
        a(f"v_lshl_add_u32 v9, v10, 2, v11")
        a(f"v_lshrrev_b32 v10, 5, v{vLANE}")
        a(f"v_lshl_add_u32 v9, v9, 1, v10")
        a(f"v_bfe_u32 v10, v{vLANE}, 2, 1")
        for q4 in range(ngrp):
            vm.wait(toks[q4])
            for d in range(8):
                t = PT + (d & 1) * 4
                perm_operand(t, W + (q4 % 3) * 32, d)
                c = "0" if q4 == 0 else R(ACC + d * 4)
                a(f"v_mfma_f32_16x16x32_bf16 {R(ACC + d*4)}, {R(t)}, {R(16 + q4*4)}, {c}")
            if q4 + 3 < ngrp:
                grp(q4 + 3)
        O = 72
        for d in range(4):
            for r in range(4):
                a(f"v_permlane32_swap_b32 v{ACC + d*4 + r}, v{ACC + (d+4)*4 + r}")
        for d in range(4):
            for r in range(4):
                dpp_add(O + r * 4 + d, ACC + (d + 4) * 4 + r, ACC + d * 4 + r, 8)
        for r in range(1, 4):
            a(f"v_cmp_eq_u32 vcc, {r}, v11")
            for d in range(4):
                a(f"v_cndmask_b32 v{O+d}, v{O+d}, v{O + r*4 + d}, vcc")

    def tag4(d):
        a(f"v_add_u32 v{d}, {(T4+1)//2}, v{d}")
        a(f"v_bfi_b32 v{d}, {T4}, v{vTAG}, v{d}")

    def check4(regs):
        regs = list(regs)
        for r in regs:
            a(f"v_xor_b32 v{r}, v15, v{r}")
        a(f"v_or_b32 v{vBAD}, v{regs[0]}, v{regs[1]}")
        for i in range(2, len(regs), 2):
            a(f"v_or3_b32 v{vBAD}, v{vBAD}, v{regs[i]}, v{regs[i+1]}")
        a(f"v_and_b32 v{vBAD}, {T4}, v{vBAD}")
        a(f"v_or_b32_dpp v{vBAD}, v{vBAD}, v{vBAD} quad_perm:[1,0,3,2] row_mask:0xf bank_mask:0xf")
        a(f"v_or_b32_dpp v{vBAD}, v{vBAD}, v{vBAD} quad_perm:[2,3,0,1] row_mask:0xf bank_mask:0xf")
        a(f"v_or_b32_dpp v{vBAD}, v{vBAD}, v{vBAD} row_half_mirror row_mask:0xf bank_mask:0xf")

    def lds_wait(addr, val, cmp="eq"):
        lp, dn = a.label("Lw"), a.label("Lwd")
        a(f"v_mov_b32 v4, {addr}")
        a(f"s_mov_b32 s{sSPIN}, {spin*20}")
        a(f"{lp}:")
        a("ds_read_b32 v5, v4")
        a("s_waitcnt lgkmcnt(0)")
        a(f"v_cmp_{cmp}_u32 vcc, {val}, v5")
        a(f"s_cbranch_vccnz {dn}")
        a("s_sleep 1")
        a(f"s_sub_u32 s{sSPIN}, s{sSPIN}, 1")
        a(f"s_cbranch_scc0 {lp}")
        a(f"{dn}:")

    def get_loc():
        lp, dn = a.label("Lw"), a.label("Lwd")
        a(f"v_mov_b32 v4, {QFL+8}")
        a(f"s_mov_b32 s{sSPIN}, {spin*20}")
        a(f"{lp}:")
        a("ds_read_b32 v5, v4")
        a("s_waitcnt lgkmcnt(0)")
        a(f"v_cmp_ne_u32 vcc, 0, v5")
        a(f"s_cbranch_vccnz {dn}")
        a("s_sleep 1")
        a(f"s_sub_u32 s{sSPIN}, s{sSPIN}, 1")
        a(f"s_cbranch_scc0 {lp}")
        a(f"{dn}:")
        a(f"v_readfirstlane_b32 s{sLOC}, v5")

    def publish_moments(M, soff, with_quad=None):
        red4(M, ())
        a(f"v_add_f32_dpp v{M}, v{M}, v{M} quad_perm:[1,0,3,2] row_mask:0xf bank_mask:0xf")
        a(f"v_add_f32_dpp v{M}, v{M}, v{M} quad_perm:[2,3,0,1] row_mask:0xf bank_mask:0xf")
        a(f"v_add_f32_dpp v{M}, v{M}, v{M} row_half_mirror row_mask:0xf bank_mask:0xf")
        untr(M)
        a(f"v_mov_b32 v{M+3}, s{sEP}")
        if with_quad is not None:
            a("s_mov_b64 exec, 0xff")
            for k in range(4):
                a(f"v_mov_b32 v{M+k}, v{with_quad+k}")
            a("s_mov_b64 exec, 0x101ff")
            a(f"buffer_store_dwordx4 {R(M)}, v{M+4}, {S4(rWS)}, s{soff} offen sc1")
            a(FULL)
            return
        a("s_mov_b64 exec, 0x101")
        a(f"buffer_store_dwordx4 {R(M)}, v{M+4}, {S4(rWS)}, s{soff} offen sc1")
        a(FULL)

    def moment_addr(d, kp, soff, kind):
        a(f"v_lshlrev_b32 v{d}, 1, v{vLANE}")
        a(f"s_add_u32 s{soff}, s75, {XS + kind*8192}")

    def hopB1():
        a(f"v_and_b32 v15, {T4}, v{vTAG}")
        a(f"v_lshrrev_b32 v7, 3, v{vLANE}")
        a(f"v_and_b32 v8, 7, v{vLANE}")
        a(f"v_lshlrev_b32 v9, 15, v7")
        a(f"v_lshl_add_u32 v9, v8, 4, v9")
        a(f"s_lshl_b32 s10, s{sL}, 7")
        a(f"s_add_u32 s11, s10, {QFN}")
        a(f"s_add_u32 s10, s10, {QP}")
        a(f"v_lshlrev_b32 v10, 4, v{vLANE}")
        get_loc()
        lds_wait(QFL + 4, 2)
        if bdelay:
            a(f"s_sleep {bdelay}")
        pollx(lambda: a(f"buffer_load_dwordx4 {R(32)}, v9, {S4(rWS)}, s10 offen sc1"), lambda: check4(range(32, 36)),
              f2=True, slp=cslp, name='b')
        red4(32, (8,))
        a("v_cvt_pk_bf16_f32 v32, v32, v32")
        a(f"v_bfi_b32 v32, s{sHI}, v32, v{vTAG}")
        untr(32)
        a("s_mov_b64 exec, 0xff")
        store_grp("buffer_store_dwordx4", R(32), 10, 11)
        a(FULL)
        a(f"v_mov_b32 v4, {QFL+4}\nv_mov_b32 v5, 3")
        a("ds_write_b32 v4, v5")
        a("s_waitcnt lgkmcnt(0)")
        stamp(14)
        a("s_branch L_fin")

    def hopB2():
        a(f"v_lshlrev_b32 v9, 4, v{vLANE}")
        a(f"s_lshl_b32 s10, s{sXCD}, 12")
        a(f"s_add_u32 s10, s10, {QFN}")
        lds_wait(QFL + 4, 3)

        def ld():
            for i in range(4):
                a(f"buffer_load_dwordx4 {R(32 + i*4)}, v9, {S4(rWS)}, s10 offen offset:{i*1024} sc1")
        pollx(ld, lambda: check_regs(range(32, 48)), slp=cslp, name='c')
        for e in range(8):
            a(f"v_perm_b32 v{48+e}, v{33+2*e}, v{32+2*e}, s{sSELHI}")
        a(f"v_and_b32 v9, 7, v{vLANE}")
        a(f"v_lshlrev_b32 v9, 5, v9")
        a(f"v_bfe_u32 v10, v{vLANE}, 3, 2")
        a(f"v_lshl_add_u32 v9, v10, 3, v9")
        a(f"v_lshrrev_b32 v10, 5, v{vLANE}")
        a(f"v_lshl_add_u32 v9, v10, 8, v9")
        a(f"v_add_u32 v9, {QB}, v9")
        for i in range(4):
            a(f"ds_write_b64 v9, {R(48 + 2*i, 2)} offset:{i*512}")
        a(f"v_mov_b32 v4, {QFL}\nv_mov_b32 v5, 2")
        a("s_waitcnt lgkmcnt(0)")
        a("ds_write_b32 v4, v5")
        a("s_waitcnt lgkmcnt(0)")
        stamp(4)
        a("s_branch L_fin")

    def hopB(half):
        a(f"v_and_b32 v15, {T4}, v{vTAG}")
        a(f"v_lshlrev_b32 v9, 4, v{vLANE}")
        a(f"s_lshl_b32 s10, s{sXCD}, 12")
        a(f"s_add_u32 s10, s10, {QP + half*2048}")
        for i in range(bdelay):
            a("s_sleep 37")

        def ld():
            for p in range(8):
                a(f"s_add_u32 s9, s10, {p*32768}")
                for i in range(2):
                    a(f"buffer_load_dwordx4 {R(32 + p*8 + i*4)}, v9, {S4(rWS)}, s9 offen offset:{i*1024} sc1")
        pollx(ld, lambda: check4(range(32, 96)), f2=True, slp=cslp)
        for st in (32, 16, 8):
            for e in range(st):
                a(f"v_add_f32 v{32+e}, v{32+e}, v{32+st+e}")
        for e in range(4):
            a(f"v_cvt_pk_bf16_f32 v{40+e}, v{32+2*e}, v{33+2*e}")
        a(f"v_lshlrev_b32 v9, 3, v{vLANE}")
        a(f"v_add_u32 v9, {QB + half*1024}, v9")
        for i in range(2):
            a(f"ds_write_b64 v9, {R(40 + 2*i, 2)} offset:{i*512}")
        a(f"v_mov_b32 v4, {QFL}\nv_mov_b32 v5, 1")
        a("s_waitcnt lgkmcnt(0)")
        a("s_mov_b64 exec, 1")
        a("ds_add_u32 v4, v5")
        a(FULL)
        a("s_waitcnt lgkmcnt(0)")
        stamp(4)
        a("s_branch L_fin")

    def f2_pack(src, dst):
        for k in range(4):
            a(f"v_mov_b32 v{dst+2*k}, v{src+k}")
            a(f"v_mov_b32 v{dst+2*k+1}, s{sEP}")

    def consumer_ids():
        a(f"s_lshr_b32 s12, s{sAI}, 2")
        a(f"s_and_b32 s13, s{sAI}, 3")
        a(f"s_lshl_b32 s13, s13, 5")
        a(f"s_lshl_b32 s9, s{sXCD}, 7")
        a(f"s_add_u32 s13, s13, s9")
        a(f"s_lshl_b32 s75, s12, 12")
        a(f"s_lshl_b32 s9, s13, 2")
        a(f"s_add_u32 s75, s75, s9")

    def w1_dma(vm, T, lo_=0, hi_=8, va=8, vb=9, sa=10, sb=11):
        srd(rT0, pW1, 7340032)
        a(f"v_lshrrev_b32 v{va}, 4, v{vLANE}")
        a(f"v_mul_u32_u24 v{va}, 7168, v{va}")
        a(f"v_and_b32 v{vb}, 15, v{vLANE}")
        a(f"v_lshl_add_u32 v{va}, v{vb}, 4, v{va}")
        a(f"s_and_b32 s{sa}, s{sBI}, 3")
        a(f"s_lshl_b32 s{sa}, s{sa}, 3")
        a(f"s_add_u32 s{sa}, s{sa}, s{sWAVE}")
        a(f"s_mul_i32 s{sa}, s{sa}, {32*7168}")
        a(f"s_lshr_b32 s{sb}, s{sBI}, 2")
        a(f"s_lshl_b32 s{sb}, s{sb}, 8")
        a(f"s_add_u32 s{sa}, s{sa}, s{sb}")
        a(f"s_lshl_b32 s{sb}, s{sWAVE}, 13")
        t = None
        for i in range(lo_, hi_):
            a(f"s_add_u32 m0, s{sb}, {WT + i*1024}")
            a(f"s_add_u32 s9, s{sa}, {4*i*7168}")
            wait_n(T)
            t = vm.issue(f"buffer_load_dwordx4 v{va}, {S4(rT0)}, s9 offen {nt} lds")
        return t

    if nohelp:
        a(f"s_cmp_lt_u32 s{sW12}, 4")
        a("s_cbranch_scc1 L_end")
    a(f"s_cmp_eq_u32 s{sW12}, 1")
    a("s_cbranch_scc1 L_moda")
    a(f"s_cmp_ge_u32 s{sW12}, 4")
    a("s_cbranch_scc1 L_att")
    a(f"s_cmp_eq_u32 s{sW12}, 0")
    a("s_cbranch_scc1 L_chain")
    a(f"s_cmp_eq_u32 s{sW12}, 2")
    a("s_cbranch_scc1 L_red")

    if codewarm:
        lw = a.label("Lnowarm")
        a(f"s_cmp_lt_u32 s{sIDX}, 30")
        a(f"s_cbranch_scc1 {lw}")
        a("s_getpc_b64 s[10:11]")
        a("L_pc0:")
        a(f"v_lshlrev_b32 v8, 4, v{vLANE}")
        a(f"s_mov_b32 s9, 0")
        lp = a.label("Lwarm")
        a(f"{lp}:")
        a(f"v_min_u32 v9, L_end-L_pc0-16, v8")
        a(f"global_load_dwordx4 {R(64)}, v9, s[10:11]")
        a(f"v_add_u32 v8, 1024, v8")
        a(f"s_add_u32 s9, s9, 1024")
        a(f"s_cmp_lt_u32 s9, L_end-L_pc0")
        a(f"s_cbranch_scc1 {lp}")
        a(f"{lw}:")
    a(f"v_lshrrev_b32 v11, 4, v{vLANE}")
    a(f"s_mov_b32 s9, {8*12288}")
    a(f"v_mul_lo_u32 v8, v11, s9")
    a(f"v_and_b32 v9, 15, v{vLANE}")
    a(f"v_lshl_add_u32 v8, v9, 4, v8")
    a(f"v_and_b32 v6, 1, v{vLANE}")
    a(f"v_lshlrev_b32 v10, 11, v6")
    a(f"v_lshl_add_u32 v10, v11, 4, v10")
    a(f"s_and_b32 s12, s{sIDX}, 7")
    a(f"s_lshr_b32 s14, s{sIDX}, 3")
    a(f"s_mul_i32 s10, s12, {128*12288}")
    a(f"s_lshl_b32 s14, s14, 3")
    a(f"s_add_u32 s14, s14, s{sXCD}")
    a(f"s_lshl_b32 s9, s14, 8")
    a(f"s_add_u32 s10, s10, s9")
    a(f"s_add_u32 s10, s10, 4096")
    a(f"s_lshl_b32 s11, s12, 8")
    a(f"s_lshl_b32 s15, s12, 15")
    a(f"s_lshl_b32 s9, s14, 9")
    a(f"s_add_u32 s15, s15, s9")
    a(f"s_add_u32 s15, s15, {MODP}")
    kargs()
    load_epoch()
    srd(rWS, pWS, WS_BYTES)
    srd(rT0, pWM, 12582912)
    srd(rT1, pC, 4096)
    a("s_barrier")
    if mbgate:
        lds_wait(QFL + 4, mbgate, "le")
    BO, ACC, PTm, Wm = 16, 32, 64, 72
    vm = Vm(a)
    for blk in range(4):
        tc = vm.issue(f"buffer_load_dwordx4 {R(BO + blk*4)}, v10, {S4(rT1)}, s11 offen offset:{blk*64}")
    toks = {}

    def mblk(blk):
        for e in range(8):
            a(f"s_add_u32 s9, s10, {(32*blk+e)*12288}")
            wait_n(thrb)
            toks[blk] = vm.issue(f"buffer_load_dwordx4 {R(Wm + (blk % 3)*32 + e*4)}, v8, {S4(rT0)}, s9 offen {nt}")
    mblk(0)
    mblk(1)
    mblk(2)
    get_tag()
    vm.wait(tc)
    a(f"s_mov_b32 s13, 0xbfb8aa3b")
    for blk in range(4):
        for i in range(4 * blk, 4 * blk + 4):
            lo(4, BO + i)
            hi(5, BO + i)
            a(f"v_mul_f32 v2, s13, v4\nv_mul_f32 v3, s13, v5")
            a(f"v_exp_f32 v2, v2\nv_exp_f32 v3, v3")
            a(f"v_add_f32 v2, 1.0, v2\nv_add_f32 v3, 1.0, v3")
            a(f"v_rcp_f32 v2, v2\nv_rcp_f32 v3, v3")
            a(f"v_mul_f32 v4, v4, v2\nv_mul_f32 v5, v5, v3")
            a(f"v_cvt_pk_bf16_f32 v{BO+i}, v4, v5")
        vm.wait(toks[blk])
        for d in range(8):
            t = PTm + (d & 1) * 4
            perm_operand(t, Wm + (blk % 3) * 32, d)
            c = "0" if blk == 0 else R(ACC + d * 4)
            a(f"v_mfma_f32_16x16x32_bf16 {R(ACC + d*4)}, {R(t)}, {R(BO + blk*4)}, {c}")
        if blk + 3 < 4:
            mblk(blk + 3)
    a(f"v_bfe_u32 v9, v{vLANE}, 1, 1")
    a(f"v_bfe_u32 v10, v{vLANE}, 2, 2")
    a("v_cmp_eq_u32 vcc, 1, v9")
    for i in range(16):
        a(f"v_cndmask_b32 v{ACC+i}, v{ACC+i}, v{ACC+16+i}, vcc")
    for r in range(1, 4):
        a(f"v_cmp_eq_u32 vcc, {r}, v10")
        for k in range(4):
            a(f"v_cndmask_b32 v{ACC+4*k}, v{ACC+4*k}, v{ACC+4*k+r}, vcc")
    for k in range(4):
        tag_round(16 + k, ACC + 4 * k)
    a(f"v_lshl_add_u32 v10, v11, 2, v10")
    a(f"v_lshl_add_u32 v9, v10, 1, v9")
    a(f"v_lshlrev_b32 v9, 4, v9")
    a(f"v_lshl_add_u32 v9, v6, 14, v9")
    get_loc()
    store_grp("buffer_store_dwordx4", R(16), 9, 15)
    stamp(16)
    a(f"s_bitcmp1_b32 s{sIDX}, 0")
    a("s_cbranch_scc1 L_fin")
    a(f"s_cmp_ge_u32 s{sAI}, 8")
    a("s_cbranch_scc1 L_fin")
    GA, XV, B2V = 32, 48, 49
    lds_wait(QFL, 2)
    consumer_ids()
    srd(rT0, pX, 4096)
    srd(rT1, pB2, 2048)
    kperm(4, 5)
    a(f"v_and_b32 v8, 7, v{vLANE}")
    a(f"v_lshl_add_u32 v11, v8, 2, v4")
    a(f"v_lshlrev_b32 v5, 1, v11")
    a(f"s_lshr_b32 s9, s75, 1")
    a(f"buffer_load_ushort v{XV}, v5, {S4(rT0)}, s9 offen")
    a(f"s_lshl_b32 s9, s13, 1")
    a(f"buffer_load_ushort v{B2V}, v5, {S4(rT1)}, s9 offen")
    a(f"v_lshlrev_b32 v10, 15, v7")
    a(f"v_lshl_add_u32 v10, v8, 4, v10")
    a(f"s_lshl_b32 s14, s12, 14")
    a(f"s_lshl_b32 s9, s13, 2")
    a(f"s_add_u32 s14, s14, s9")

    def gloads():
        for k in range(4):
            a(f"s_add_u32 s9, s14, {MODP + k*4096}")
            a(f"buffer_load_dwordx4 {R(GA + 4*k)}, v10, {S4(rWS)}, s9 offen sc1")
    pollx(gloads, lambda: check_regs(range(GA, GA + 16)), slp=16, name='m')
    for k in range(4):
        red4(GA + 4 * k, (8,))
    rnd2(GA, GA + 12, 5)
    rnd2(GA + 4, GA + 8, 5)
    a(f"v_add_f32 v{GA+8}, 1.0, v{GA+8}")
    rnd1(GA + 8, GA + 8)
    a(f"v_or_b32 v{GA+4}, v{vTAG}, v{GA+4}\nv_or_b32 v{GA+8}, v{vTAG}, v{GA+8}")
    a(f"v_lshlrev_b32 v9, 2, v11")
    a(f"s_add_u32 s9, s75, {X1 + 8192}")
    a(f"s_add_u32 s10, s75, {X1 + 16384}")
    a(f"v_mov_b32 v60, v{GA+4}\nv_mov_b32 v64, v{GA+8}")
    untr(60)
    untr(64)
    a(f"v_lshlrev_b32 v68, 4, v{vLANE}")
    a("s_mov_b64 exec, 0xff")
    a(f"buffer_store_dwordx4 {R(60)}, v68, {S4(rWS)}, s9 offen sc1")
    a(f"buffer_store_dwordx4 {R(64)}, v68, {S4(rWS)}, s10 offen sc1")
    a(FULL)
    lo(XV, XV)
    lo(B2V, B2V)
    a(f"v_add_u32 v5, {XB}, v9")
    a(f"ds_write_b32 v5, v{GA+12} offset:128")
    a(f"ds_write_b32 v5, v{B2V} offset:256")
    a(f"ds_write_b32 v5, v{GA} offset:384")
    a(f"ds_write_b32 v5, v{XV} offset:512")
    a(f"v_xor_b32 v{GA+4}, v{vTAG}, v{GA+4}\nv_xor_b32 v{GA+8}, v{vTAG}, v{GA+8}")
    a(f"ds_write_b32 v5, v{GA+4}")
    a(f"ds_write_b32 v5, v{GA+8} offset:640")
    moment_addr(56, 4, 10, 1)
    a(f"v_mov_b32 v52, v{GA+8}")
    a(f"v_mul_f32 v53, v{GA+8}, v{GA+8}")
    a(f"v_mul_f32 v54, v{GA+8}, v{GA+4}")
    a(f"v_mov_b32 v55, 0")
    a("s_mov_b32 exec_lo, 0xff00ff00\ns_mov_b32 exec_hi, 0xff00ff00")
    a(f"v_mov_b32 v52, v{GA+4}")
    a(f"v_mul_f32 v53, v{GA+4}, v{GA+4}")
    a("v_mov_b32 v54, 0")
    a(FULL)
    publish_moments(52, 10)
    a("s_waitcnt lgkmcnt(0)")
    a("s_branch L_fin")

    a("L_moda:")
    a("s_setprio 3")
    a(f"s_lshr_b32 s12, s{sIDX}, 2")
    a(f"s_lshl_b32 s13, s12, 7")
    a(f"s_bfe_u32 s14, s{sIDX}, 0x10001")
    a(f"s_and_b32 s15, s{sIDX}, 1")
    a(f"s_lshl_b32 s88, s14, 11")
    a(f"s_lshl_b32 s9, s{sXCD}, 8")
    a(f"s_add_u32 s88, s88, s9")
    a(f"s_lshl_b32 s9, s15, 7")
    a(f"s_add_u32 s88, s88, s9")

    def after_a():
        a("s_barrier")
        load_epoch()
        srd(rWS, pWS, WS_BYTES)
        get_tag()
        a(f"s_lshl_b32 s13, s{sXCD}, 14")
        a(f"s_lshl_b32 s9, s12, 11")
        a(f"s_add_u32 s13, s13, s9")
        a(f"s_lshl_b32 s9, s14, 10")
        a(f"s_add_u32 s13, s13, s9")
        a(f"s_lshl_b32 s9, s15, 8")
        a(f"s_add_u32 s13, s13, s9")
        a(f"s_add_u32 s13, s13, {MA}")
        prewrite(64, 4, 9, 13)
    mod_tile(2, 13, 88, 0, after_a, kargs)
    for d in range(4):
        tag4(72 + d)
    a(f"v_lshlrev_b32 v9, 4, v9")
    a(f"v_lshl_add_u32 v9, v10, 9, v9")
    a(MASK8)
    a(f"buffer_store_dwordx4 {R(72)}, v9, {S4(rWS)}, s13 offen")
    a(FULL)
    a(f"v_mov_b32 v4, {QFL+12}\nv_mov_b32 v5, 1")
    a("ds_write_b32 v4, v5")
    stamp(1)
    a("s_getreg_b32 s88, hwreg(HW_REG_XCC_ID)")
    a("s_lshl_b32 s88, s88, 12")
    if xdelay:
        a(f"s_sleep {xdelay}")
    else:
        a("s_waitcnt vmcnt(0)")
    a(f"v_and_b32 v8, 31, v{vLANE}")
    a(f"v_lshlrev_b32 v8, 7, v8")
    a(f"s_lshl_b32 s10, s{sXCD}, 12")
    a(f"s_add_u32 s10, s10, {XID}")
    pollx(lambda: a(f"buffer_load_dwordx4 {R(32)}, v8, {S4(rWS)}, s10 offen sc1"), lambda: check_regs(range(32, 36)), name='x')
    if 'x' in skip:
        a("v_mov_b32 v32, s88")
    a("v_cmp_ne_u32 vcc, s88, v32")
    a("s_cmp_eq_u64 vcc, 0")
    a(f"s_cselect_b32 s{sLOC}, {2 if noloc else 1}, 2")
    a(f"v_mov_b32 v4, {QFL+8}\nv_mov_b32 v5, s{sLOC}")
    a("ds_write_b32 v4, v5")
    stamp(25)
    a(f"s_cmp_eq_u32 s{sLOC}, 1")
    a("s_cbranch_scc1 L_maok")
    a(MASK8)
    a(f"buffer_store_dwordx4 {R(72)}, v9, {S4(rWS)}, s13 offen sc1")
    a(FULL)
    a("L_maok:")
    if b2stage:
        hopB2()
    else:
        lds_wait(QFL + 4, 2)
        hopB(0)

    a("L_red:")
    kargs()
    srd(rWS, pWS, WS_BYTES)
    load_epoch()
    a("s_barrier")
    a("s_setprio 3")
    vm = Vm(a)
    srd(rT1, pX, 4096)
    a(f"v_lshrrev_b32 v10, 5, v{vLANE}")
    a(f"v_and_b32 v11, 31, v{vLANE}")
    a(f"v_lshlrev_b32 v9, 11, v10")
    a(f"v_lshl_add_u32 v9, v11, 4, v9")
    for q in range(4):
        vm.issue(f"buffer_load_dwordx4 {R(72 + q*4)}, v9, {S4(rT1)}, 0 offen offset:{q*512}")
    a(f"v_lshlrev_b32 v9, 11, v10")
    a(f"v_lshl_add_u32 v9, v11, 3, v9")
    a(f"s_lshl_b32 s11, s{sXCD}, 8")
    tx = vm.issue(f"buffer_load_dwordx2 {R(88, 2)}, v9, {S4(rT1)}, s11 offen")
    a("s_getreg_b32 s88, hwreg(HW_REG_XCC_ID)")
    a("s_lshl_b32 s88, s88, 12")
    a(f"v_lshlrev_b32 v4, 4, v{vLANE}")
    a(f"s_lshl_b32 s9, s{sL}, 7")
    a(f"s_add_u32 s9, s9, {XID}")
    get_tag()
    a(f"v_or_b32 v96, s88, v{vTAG}")
    a("v_mov_b32 v97, v96\nv_mov_b32 v98, v96\nv_mov_b32 v99, v96")
    a("s_mov_b64 exec, 0xff")
    if 'X' not in skip:
        a(f"buffer_store_dwordx4 {R(96)}, v4, {S4(rWS)}, s9 offen sc1")
    a(FULL)
    a(f"s_add_u32 s9, s9, {QFN - XID}")
    prewrite(100, 2, 6, 9)
    if pure == 1:
        a("s_branch L_fin")
    def touch(n, lo_bits, hi_shift, base):
        a(f"v_lshrrev_b32 v101, {lo_bits}, v{vLANE}")
        a(f"v_lshlrev_b32 v101, {hi_shift - 7}, v101")
        a(f"v_and_or_b32 v101, v{vLANE}, {(1 << lo_bits) - 1}, v101")
        a(f"v_lshlrev_b32 v101, 7, v101")
        a(f"s_add_u32 s9, s9, {base}")
        if n < 64:
            a(f"s_mov_b64 exec, {(1 << n) - 1:#x}" if n < 32 else "s_mov_b32 exec_hi, 0")
        a(f"buffer_load_dword v100, v101, {S4(rWS)}, s9 offen")
        if n < 64:
            a(FULL)
    if 'm' in ptall:
        a(f"s_lshl_b32 s9, s{sXCD}, 14\ns_lshl_b32 s10, s{sAI}, 10\ns_add_u32 s9, s9, s10")
        a(f"s_and_b32 s10, s{sIDX}, 1\ns_lshl_b32 s10, s10, 8\ns_add_u32 s9, s9, s10")
        touch(4, 1, 9, MA)
    if 'q' in ptall:
        a(f"s_lshl_b32 s9, s{sXCD}, 15\ns_lshl_b32 s10, s{sIDX}, 9\ns_add_u32 s9, s9, s10")
        touch(8, 2, 14, QP)
    if 'f' in ptall:
        for base in (QFN, OF, ML):
            a(f"s_mul_i32 s9, s{sL}, {128 * (ofstr if base == OF else 1)}")
            touch(1, 0, 7, base)
    if 'd' in ptall:
        a(f"s_and_b32 s9, s{sIDX}, 7\ns_lshl_b32 s9, s9, 15")
        a(f"s_lshr_b32 s10, s{sIDX}, 3\ns_lshl_b32 s10, s10, 12\ns_add_u32 s9, s9, s10")
        a(f"s_lshl_b32 s10, s{sXCD}, 9\ns_add_u32 s9, s9, s10")
        touch(8, 2, 14, MODP)
    if 'o' in ptall:
        a(f"s_lshl_b32 s9, s{sXCD}, 17\ns_lshl_b32 s10, s{sIDX}, 9\ns_add_u32 s9, s9, s10")
        touch(32, 2, 14, OP)
    a(f"s_bitcmp1_b32 s{sIDX}, 0")
    a("s_cbranch_scc1 L_tB")
    if 'x' in ptall:
        a(f"s_lshl_b32 s9, s{sAI}, 13\ns_lshl_b32 s10, s{sXCD}, 9\ns_add_u32 s9, s9, s10")
        touch(8, 2, 12, XP)
    a(f"s_cmp_ge_u32 s{sBI}, 112")
    a("s_cbranch_scc1 L_tD")
    if 'y' in ptall:
        a(f"s_lshl_b32 s9, s{sBI}, 13")
        touch(64, 6, 13, YP)
    if 'x' in ptall:
        a(f"s_cmp_ge_u32 s{sAI}, 8")
        a("s_cbranch_scc1 L_tD")
        consumer_ids()
        a("s_mov_b32 s9, s75")
        touch(2, 0, 13, X1 + 8192)
        a("s_mov_b32 s9, s75")
        touch(1, 0, 13, XS + 8192)
        a(f"s_mul_i32 s9, s75, {xstr}")
        touch(1, 0, 7, XH)
        a(f"s_mul_i32 s9, s75, {xstr}")
        touch(1, 0, 7, XH + xrec)
    a("s_branch L_tD")
    a("L_tB:")
    a(f"s_cmp_ge_u32 s{sBI}, 112")
    a("s_cbranch_scc1 L_tD")
    if 'x' in ptall:
        a(f"s_lshl_b32 s9, s{sBI}, 10")
        touch(8, 3, 10, HP)
    a("L_tD:")
    nmin = ('X' not in skip) + ('m' in ptall) + ('q' in ptall) + 3 * ('f' in ptall) + ('d' in ptall) + ('o' in ptall)
    a(f"s_waitcnt vmcnt({nmin})")
    a("v_mov_b32 v4, 0\nv_mov_b32 v5, 0")
    for i in range(16):
        lo(6, 72 + i)
        hi(8, 72 + i)
        a(f"v_add_f32 v4, v4, v6\nv_fmac_f32 v5, v6, v6")
        a(f"v_add_f32 v4, v4, v8\nv_fmac_f32 v5, v8, v8")
    for r in (1, 2, 4, 8):
        dpp_add(4, 4, 4, r)
        dpp_add(5, 5, 5, r)
    allred(4, 6, "v_add_f32", (16,))
    allred(5, 6, "v_add_f32", (16,))
    ln_stats(4, 5, 6, 8, 9)
    for i in range(2):
        lo(24 + 2 * i, 88 + i)
        hi(25 + 2 * i, 88 + i)
        ln_apply(24 + 2 * i, 25 + 2 * i, 6, 8, 9)
    a(f"v_and_b32 v15, {T4}, v{vTAG}")
    a(f"v_lshlrev_b32 v9, 4, v{vLANE}")
    a(f"s_lshl_b32 s10, s{sXCD}, 14")
    a(f"s_add_u32 s10, s10, {MA}")

    if agate:
        lds_wait(QFL + 12, 1)
    if adelay:
        a(f"s_sleep {adelay}")

    def ldA():
        for p in range(8):
            if p % 2 == 0:
                a(f"s_add_u32 s9, s10, {p*2048}")
            for wh in range(2):
                a(f"buffer_load_dwordx4 {R(32 + p*8 + wh*4)}, v9, {S4(rWS)}, s9 offen offset:{(p % 2)*2048 + wh*1024} sc1")
    pollx(ldA, lambda: check4(range(32, 96)), f2=True, slp=cslp, name='a')
    stamp(2)
    for st in (32, 16, 8):
        for e in range(st):
            a(f"v_add_f32 v{32+e}, v{32+e}, v{32+st+e}")
    for i in range(2):
        s0, c0, l0 = 32 + 2 * i, 36 + 2 * i, 24 + 2 * i
        rnd2(s0, s0 + 1, 6)
        rnd2(c0, c0 + 1, 6)
        a(f"v_add_f32 v{c0}, 1.0, v{c0}\nv_add_f32 v{c0+1}, 1.0, v{c0+1}")
        rnd2(c0, c0 + 1, 6)
        a(f"v_mul_f32 v{c0}, v{c0}, v{l0}\nv_mul_f32 v{c0+1}, v{c0+1}, v{l0+1}")
        rnd2(c0, c0 + 1, 6)
        a(f"v_add_f32 v{c0}, v{c0}, v{s0}\nv_add_f32 v{c0+1}, v{c0+1}, v{s0+1}")
        a(f"v_cvt_pk_bf16_f32 v{40+i}, v{c0}, v{c0+1}")
    a(f"v_lshlrev_b32 v9, 3, v{vLANE}")
    a(f"v_add_u32 v9, {HB}, v9")
    a(f"ds_write_b64 v9, {R(40, 2)}")
    a(f"v_mov_b32 v4, {QFL+4}\nv_mov_b32 v5, 1")
    a("s_waitcnt lgkmcnt(0)")
    a("ds_write_b32 v4, v5")
    stamp(17)
    if b2stage:
        hopB1()
    else:
        lds_wait(QFL + 4, 2)
        hopB(1)

    a("L_chain:")
    a("s_setprio 3")
    W = 40
    a(f"v_lshrrev_b32 v11, 4, v{vLANE}")
    a(f"v_lshlrev_b32 v8, 13, v11")
    a(f"v_and_b32 v15, 15, v{vLANE}")
    a(f"v_lshl_add_u32 v8, v15, 4, v8")
    a(f"s_lshl_b32 s10, s{sXCD}, 20")
    a(f"s_lshl_b32 s11, s{sIDX}, 8")
    a(f"s_add_u32 s10, s10, s11")
    a(f"s_mov_b32 m0, {WT}")
    kargs()
    srd(rT0, pWQ, 8388608)
    srd(rWS, pWS, WS_BYTES)
    load_epoch()
    a("s_barrier")
    a("L_wql:")
    wait_n(thrq)
    a(f"buffer_load_dwordx4 v8, {S4(rT0)}, s10 offen {nt} lds")
    a("s_add_u32 s10, s10, 32768")
    a("s_add_u32 m0, m0, 1024")
    a(f"s_cmp_lt_u32 m0, {WT + 32768}")
    a("s_cbranch_scc1 L_wql")
    get_tag()
    a(f"v_and_b32 v6, 1, v{vLANE}")
    a(f"v_lshlrev_b32 v8, 8, v6")
    a(f"v_lshl_add_u32 v8, v11, 4, v8")
    a(f"v_add_u32 v8, {HB}, v8")
    a(f"v_bfe_u32 v7, v{vLANE}, 2, 2")
    a(f"v_lshl_add_u32 v7, v11, 3, v7")
    a(f"v_lshlrev_b32 v7, 8, v7")
    a(f"v_and_b32 v10, 3, v{vLANE}")
    a(f"v_lshl_add_u32 v7, v10, 3, v7")
    a(f"v_lshrrev_b32 v9, 1, v15")
    a(f"v_lshl_add_u32 v9, v11, 3, v9")
    a(f"v_lshlrev_b32 v9, 4, v9")
    a(f"v_lshl_add_u32 v9, v6, 14, v9")
    a(f"s_lshl_b32 s10, s{sXCD}, 15")
    a(f"s_lshl_b32 s11, s{sIDX}, 9")
    a(f"s_add_u32 s10, s10, s11")
    a(f"s_add_u32 s10, s10, {QP}")
    a("s_waitcnt vmcnt(0)")
    stamp(18)
    for ct in range(8):
        for k in range(4):
            for h in range(2):
                a(f"ds_read_b64_tr_b16 {R(W + ct*16 + k*4 + h*2, 2)}, v7 offset:{WT + 8192*k + 1024*h + 32*ct}")
    lds_wait(QFL + 4, 1)
    stamp(19)
    for k in range(4):
        a(f"ds_read_b128 {R(16 + k*4)}, v8 offset:{k*64}")
    a("s_waitcnt lgkmcnt(0)")

    def pick(ct):
        m32 = (3 << (2 * ct)) * 0x10001
        a(f"s_mov_b32 exec_lo, {m32:#x}\ns_mov_b32 exec_hi, {m32:#x}")
        for r in range(4):
            a(f"v_mov_b32 v{2+r}, v{32 + (ct & 1)*4 + r}")
        a(FULL)
    for ct in range(8):
        t = 32 + (ct & 1) * 4
        for k in range(4):
            a(f"v_mfma_f32_16x16x32_bf16 {R(t)}, {R(W + ct*16 + k*4)}, {R(16 + k*4)}, {'0' if k == 0 else R(t)}")
        if ct:
            pick(ct - 1)
    pick(7)
    for d in range(4):
        tag4(2 + d)
    if 'Q' not in skip:
        a(f"buffer_store_dwordx4 {R(2)}, v9, {S4(rWS)}, s10 offen {qpol}")
    a(f"v_mov_b32 v8, {QFL+4}\nv_mov_b32 v7, 2")
    a("ds_write_b32 v8, v7")
    a("s_waitcnt lgkmcnt(0)")
    stamp(3)
    if hpt:
        a(f"s_bitcmp1_b32 s{sIDX}, 0")
        a("s_cbranch_scc1 L_ptB")
        a(f"v_lshrrev_b32 v9, 1, v{vLANE}")
        a(f"v_lshlrev_b32 v9, 9, v9")
        a(f"v_and_b32 v10, 1, v{vLANE}")
        a(f"v_lshl_add_u32 v9, v10, 7, v9")
        a(f"s_lshr_b32 s9, s{sL}, 2")
        a(f"s_lshl_b32 s10, s9, 14")
        a(f"s_and_b32 s9, s{sIDX}, 3")
        a(f"s_lshl_b32 s9, s9, 7")
        a(f"s_add_u32 s10, s10, s9")
        a(f"s_add_u32 s10, s10, {OP}")
        a(f"buffer_load_dword v16, v9, {S4(rWS)}, s10 offen {ptpol}")
        a(f"v_bfe_u32 v9, v{vLANE}, 2, 2")
        a(f"v_lshlrev_b32 v9, 12, v9")
        a(f"v_and_b32 v10, 3, v{vLANE}")
        a(f"v_lshl_add_u32 v9, v10, 7, v9")
        a(f"s_lshl_b32 s10, s{sIDX}, 13")
        a(f"s_lshl_b32 s9, s{sXCD}, 9")
        a(f"s_add_u32 s10, s10, s9")
        a(f"s_add_u32 s10, s10, {XP}")
        a(f"buffer_load_dword v17, v9, {S4(rWS)}, s10 offen {ptpol}")
        a("s_branch L_fin")
        a("L_ptB:")
        a(f"v_and_b32 v9, 7, v{vLANE}")
        a(f"v_lshlrev_b32 v9, 7, v9")
        a(f"s_lshl_b32 s10, s{sBI}, 10")
        a(f"s_add_u32 s10, s10, {HP}")
        a(f"buffer_load_dword v16, v9, {S4(rWS)}, s10 offen {ptpol}")
    a("s_branch L_fin")

    QF, DT, PT, KV = 16, 24, 32, 40
    if pure >= 2:
        def drop(l):
            if "buffer_store" in l:
                if pure in (3, 4): return True
                if pure == 5 and "sc1" in l: return True
                if pure == 6 and "sc1" not in l: return True
            if "buffer_load" in l and "sc1" in l and pure in (2, 4, 5, 6): return True
            return False
        a.lines = [l for l in a.lines if not drop(l)]
    a("L_att:")
    if kvmap == 0:
        USTR = 32768
        a(f"s_lshl_b32 s{sKV}, s{sL}, 18")
        a(f"s_lshl_b32 s9, s{sWAVE}, 12")
    elif kvmap == 1:
        USTR = 1 << 20
        a(f"s_lshl_b32 s{sKV}, s{sXCD}, 23")
        a(f"s_lshl_b32 s9, s{sIDX}, 15")
        a(f"s_add_u32 s{sKV}, s{sKV}, s9")
        a(f"s_lshl_b32 s9, s{sWAVE}, 12")
    elif kvmap == 2:
        USTR = 1 << 20
        a(f"s_lshl_b32 s{sKV}, s{sXCD}, 23")
        a(f"s_lshl_b32 s9, s{sIDX}, 12")
        a(f"s_add_u32 s{sKV}, s{sKV}, s9")
        a(f"s_lshl_b32 s9, s{sWAVE}, 17")
    a(f"s_add_u32 s{sKV}, s{sKV}, s9")
    if roti:
        a(f"s_and_b32 s9, s{sIDX}, 7")
        a(f"s_mul_i32 s9, s9, {USTR}")
        a(f"s_add_u32 s{sKV}, s{sKV}, s9")
    a(f"v_lshlrev_b32 v{vOV}, 4, v{vLANE}")
    a(f"v_and_b32 v6, 3, v{vLANE}")
    a(f"v_lshlrev_b32 v6, 10, v6")
    a(f"v_bfe_u32 v5, v{vLANE}, 2, 1")
    a(f"v_lshl_add_u32 v6, v5, 8, v6")
    a(f"v_lshl_add_u32 v{vOK}, v7, 4, v6")
    if klin == 1:
        a(f"v_and_b32 v6, 7, v{vLANE}\nv_lshlrev_b32 v6, 8, v6\nv_lshl_add_u32 v{vOK}, v7, 4, v6")
    if klin == 2:
        a(f"v_mov_b32 v{vOK}, v{vOV}")
    a(f"v_mov_b32 v4, {QFL}")
    a("s_mov_b64 vcc, 0")
    kargs()
    srd(rK, pK, 0x4000000)
    if not lateb:
        srd(rV, pV, 0x4000000)
        srd(rWS, pWS, WS_BYTES)
        a("s_barrier")
    def tile_setup(va, vb, so, sp, skip):
        l1, l2 = a.label("Lts"), a.label("Lts")
        a(f"v_lshrrev_b32 v{va}, 4, v{vLANE}")
        a(f"v_and_b32 v{vb}, 15, v{vLANE}")
        a(f"s_bitcmp1_b32 s{sIDX}, 0")
        a(f"s_cbranch_scc1 {l1}")
        srd(rT2, pWO, 8388608)
        a("s_mov_b32 s20, 64")
        a(f"s_lshl_b32 s{so}, s{sAI}, 19")
        a(f"s_lshl_b32 s9, s{sXCD}, 8")
        a(f"s_add_u32 s{so}, s{so}, s9")
        a(f"s_mov_b32 s{sp}, 2048")
        a(f"s_branch {l2}")
        a(f"{l1}:")
        a(f"s_cmp_ge_u32 s{sBI}, 112")
        a(f"s_cselect_b32 s20, 0, 64")
        srd(rT2, pW1, 7340032)
        a(f"s_and_b32 s{so}, s{sBI}, 3")
        a(f"s_mul_i32 s{so}, s{so}, {256*7168}")
        a(f"s_lshr_b32 s9, s{sBI}, 2")
        a(f"s_lshl_b32 s9, s9, 8")
        a(f"s_add_u32 s{so}, s{so}, s9")
        a(f"s_mov_b32 s{sp}, 7168")
        a(f"{l2}:")
        a(f"v_mul_lo_u32 v{va}, v{va}, s{sp}")
        a(f"v_lshl_add_u32 v{va}, v{vb}, 4, v{va}")
        a(f"s_lshl_b32 s{sp}, s{sp}, 2")

    def tile_rest(vm, va, so, sp, lo_, hi_):
        t = None
        a(f"s_add_u32 s11, s{sWAVE}, {8*lo_}")
        a(f"s_mul_i32 s9, s11, s{sp}")
        a(f"s_add_u32 s9, s9, s{so}")
        a(f"s_lshl_b32 m0, s11, 10")
        a(f"s_lshl_b32 s11, s{sp}, 3")
        for i in range(lo_, hi_):
            t = vm.issue(f"buffer_load_dwordx4 v{va}, {S4(rT2)}, s9 offen {nt} lds")
            if i + 1 < hi_:
                a(f"s_add_u32 m0, m0, 8192")
                a(f"s_add_u32 s9, s9, s11")
        return t

    def claim(fail, va=4, vb=5):
        a(f"v_mov_b32 v{va}, {QFL}\nv_mov_b32 v{vb}, 1")
        a("s_mov_b64 exec, 1")
        a(f"ds_add_rtn_u32 v{vb}, v{va}, v{vb} offset:16")
        a(FULL)
        a("s_waitcnt lgkmcnt(0)")
        a(f"v_readfirstlane_b32 s21, v{vb}")
        a(f"s_cmp_ge_u32 s21, s20")
        a(f"s_cbranch_scc1 {fail}")
        a("s_lshl_b32 m0, s21, 10")
        a("s_mul_i32 s9, s21, s19")
        a("s_add_u32 s9, s9, s18")
        a(f"buffer_load_dwordx4 v2, {S4(rT2)}, s9 offen {nt} lds")

    def claim_all(T=0):
        lp, dn = a.label("Lca"), a.label("Lcad")
        a(f"{lp}:")
        wait_n(T)
        claim(dn)
        a(f"s_branch {lp}")
        a(f"{dn}:")

    if kgate:
        lds_wait(QFL + 20, 1)
        a(f"v_mov_b32 v4, {QFL}")
        a("s_mov_b64 vcc, 0")
    load_epoch()
    thr_n = [0]

    if xmask:
        a(f"s_lshr_b32 s74, {xmask}, s{sXCD}")

    def wait_x(T, extra):
        if xmask and T:
            lsk = a.label("Lx")
            a("s_bitcmp1_b32 s74, 0")
            a(f"s_cbranch_scc1 {lsk}")
            wait_n(T)
            a(f"{lsk}:")
            wait_n(T + extra)
        else:
            wait_n(T)

    def thr_wait():
        if thr2 == thr:
            wait_x(thr, xk)
            return
        thr_n[0] += 1
        lsk = a.label("Lthr")
        a(f"s_cbranch_vccnz {lsk}")
        if thr_n[0] % 2 == 0:
            a("ds_read_b32 v5, v4")
        a(f"s_waitcnt vmcnt({thr-1})")
        if thr_n[0] % 2 == 0:
            a("s_waitcnt lgkmcnt(0)")
            a("v_cmp_eq_u32 vcc, 2, v5")
        a(f"{lsk}:")
        wait_n(thr2)

    vm = Vm(a)
    order = [2, 3, 0, 1, 4, 5, 6, 7]
    pos = {s: i for i, s in enumerate(order)}
    tk = {}
    for s in order:
        a(f"s_xor_b32 s9, s{sKV}, {pos[s]*USTR}")
        for t in range(2):
            for h in range(2):
                if thr:
                    thr_wait()
                tk[s] = vm.issue(f"buffer_load_dwordx4 {R(KV + s*16 + t*8 + h*4)}, v{vOK}, {S4(rK)}, s9 offen offset:{(t*512 + h*128, t*2048 + h*128, t*2048 + h*1024)[klin]} {nt}")
                if lateb and vm.n == (lateb & 7):
                    srd(rV, pV, 0x4000000)
                    srd(rWS, pWS, WS_BYTES)
                    a("s_barrier")
    vblk = [KV + 32, KV + 64, KV + 96, KV + 32]
    tv = [None] * 4
    if v0lds:
        vblk = [KV + 96, KV + 32, KV + 64, KV + 96]
        for e in range(8):
            if e % 4 == 0:
                a(f"s_xor_b32 s9, s{sKV}, {(e//4)*USTR}")
                a(f"s_lshl_b32 s10, s{sWAVE}, 13")
                a(f"s_add_u32 m0, s10, {WT + (e//4)*4096}")
            thr_wait()
            tv[0] = vm.issue(f"buffer_load_dwordx4 v{vOV}, {S4(rV)}, s9 offen offset:{(e % 4)*1024} {nt} lds")

    def vload(v):
        for e in range(8):
            if e % 4 == 0:
                a(f"s_xor_b32 s9, s{sKV}, {(2*v + e//4)*USTR}")
            wait_n(thrv)
            tv[v] = vm.issue(f"buffer_load_dwordx4 {R(vblk[v] + e*4)}, v{vOV}, {S4(rV)}, s9 offen offset:{(e % 4)*1024} {nt}")
    vnext = [8 if v0lds else 0]

    def vslot():
        if not fine:
            return
        n = vnext[0]
        vnext[0] += 1
        v, e = n // 8, n % 8
        if e % 4 == 0:
            a(f"s_xor_b32 s{sDU}, s{sKV}, {(2*v + e//4)*USTR}")
        wait_x(thrv, xv)
        tv[v] = vm.issue(f"buffer_load_dwordx4 {R(vblk[v] + e*4)}, v{vOV}, {S4(rV)}, s{sDU} offen offset:{(e % 4)*1024} {nt}")
    stamp(20)
    if pure:
        vm.wait(tk[3]); vload(0); vm.wait(tk[5]); vload(1); vm.wait(tk[7]); vload(2); vm.wait(tv[0]); vload(3)
        a("s_waitcnt vmcnt(0)")
        stamp(8)
        a("s_branch L_fin")
    get_tag()
    tile_setup(2, 5, 18, 19, None)
    if fill:
        a("L_fill:")
        wait_n(thr)
        a(f"v_mov_b32 v4, {QFL}")
        a("ds_read_b32 v5, v4")
        a("s_waitcnt lgkmcnt(0)")
        a("v_cmp_eq_u32 vcc, 2, v5")
        a("s_cbranch_vccnz L_filld")
        claim("L_fillx")
        a("s_branch L_fill")
        a("L_fillx:")
    lds_wait(QFL, 2)
    a("L_filld:")
    stamp(5)
    a(f"v_and_b32 v8, 7, v{vLANE}")
    a(f"v_lshlrev_b32 v9, 8, v8")
    a(f"v_lshl_add_u32 v9, v7, 4, v9")
    a(f"v_add_u32 v9, {QB}, v9")
    a(f"ds_read_b128 {R(QF)}, v9")
    a(f"ds_read_b128 {R(QF+4)}, v9 offset:128")
    a("s_waitcnt lgkmcnt(0)")
    Sreg = [PT, PT + 4, KV, KV + 4, KV + 8, KV + 12, KV + 16, KV + 20]

    def qk_mfma(s, X, Y):
        vm.wait(tk[s])
        k0 = KV + s * 16
        a(f"v_mfma_f32_16x16x32_bf16 {R(X)}, {R(k0)}, {R(QF)}, 0")
        a(f"v_mfma_f32_16x16x32_bf16 {R(Y)}, {R(k0+8)}, {R(QF)}, 0")
        a(f"v_mfma_f32_16x16x32_bf16 {R(X)}, {R(k0+4)}, {R(QF+4)}, {R(X)}")
        a(f"v_mfma_f32_16x16x32_bf16 {R(Y)}, {R(k0+12)}, {R(QF+4)}, {R(Y)}")

    def qk_post(p, X, Y):
        S = Sreg[p]
        for r in range(4):
            a(f"v_permlane32_swap_b32 v{X+r}, v{Y+r}")
        for r in range(4):
            dpp_add(S + r, Y + r, X + r, 8)
        for r in (0, 2):
            rnd2(S + r, S + r + 1, 4)
            a(f"v_mul_f32 v{S+r}, s{sSCALE}, v{S+r}\nv_mul_f32 v{S+r+1}, s{sSCALE}, v{S+r+1}")
            rnd2(S + r, S + r + 1, 4)
        if p == 0:
            a(f"v_max3_f32 v5, v{S}, v{S+1}, v{S+2}")
            a(f"v_max_f32 v5, v5, v{S+3}")
        else:
            a(f"v_max3_f32 v5, v5, v{S}, v{S+1}")
            a(f"v_max3_f32 v5, v5, v{S+2}, v{S+3}")
    qk_mfma(2, PT, DT)
    qk_mfma(3, PT + 4, DT + 4)
    if not fine:
        vload(0)
    vslot()
    qk_post(0, PT, DT)
    vslot()
    qk_post(1, PT + 4, DT + 4)
    for s in (0, 1, 4, 5, 6, 7):
        vslot()
        qk_mfma(s, DT, DT + 4)
        if s == 5 and not fine:
            vload(1)
        qk_post(pos[s], DT, DT + 4)
    vslot()
    if v0lds:
        a(f"s_lshl_b32 s9, s{sWAVE}, 13")
        a(f"v_add_u32 v9, s9, v{vOV}")
        vm.wait(tv[0])
        for e in range(8):
            a(f"ds_read_b128 {R(vblk[0] + e*4)}, v9 offset:{WT + e*1024}")
    allred(5, 6, "v_max_f32", (32, 16))
    a(f"v_lshlrev_b32 v9, 5, v8")
    a(f"v_add_u32 v10, {MX}, v9")
    a(f"s_lshl_b32 s9, s{sWAVE}, 2")
    a(f"v_add_u32 v11, s9, v10")
    a("s_mov_b64 exec, 0xff")
    a(f"ds_write_b32 v11, v5")
    a(FULL)
    if vearly and not fine:
        vload(2)
    vslot()
    a("s_waitcnt lgkmcnt(0)")
    stamp(6)
    a("s_barrier")
    vslot()
    a(f"v_mov_b32 v4, {QFL+8}")
    a(f"ds_read_b128 {R(16)}, v10")
    a(f"ds_read_b128 {R(20)}, v10 offset:16")
    a(f"ds_read_b32 v4, v4")
    a("s_waitcnt lgkmcnt(0)")
    a(f"v_readfirstlane_b32 s{sLOC}, v4")
    a(f"v_max3_f32 v5, v16, v17, v18\nv_max3_f32 v5, v5, v19, v20\nv_max3_f32 v5, v5, v21, v22\nv_max_f32 v5, v5, v23")
    a(f"v_mul_f32 v6, s{sLOG2E}, v5")
    a("v_mov_b32 v4, 0")
    sl = [Sreg[p] + r for p in range(8) for r in range(4)]
    for i, x in enumerate(sl):
        if i in (8, 20):
            vslot()
        a(f"v_fma_f32 v{x}, v{x}, s{sLOG2E}, -v6")
        a(f"v_exp_f32 v{x}, v{x}")
        if i:
            a(f"v_add_f32 v4, v4, v{sl[i-1]}")
    a(f"v_add_f32 v4, v4, v{sl[31]}")
    vslot()
    for i in range(16):
        a(f"v_cvt_pk_bf16_f32 v{QF+i}, v{sl[2*i]}, v{sl[2*i+1]}")
    allred(4, 6, "v_add_f32", (32, 16))
    a("s_mov_b64 exec, 0xff")
    a(f"ds_write_b32 v11, v4 offset:{LX-MX}")
    a(FULL)
    vslot()
    a("s_waitcnt lgkmcnt(0)")
    a("s_barrier")
    vslot()
    a(f"s_cmp_lg_u32 s{sWAVE}, 4")
    a("s_cbranch_scc1 L_noml")
    a(f"ds_read_b128 {R(32)}, v10 offset:{LX-MX}")
    a(f"ds_read_b128 {R(36)}, v10 offset:{LX-MX+16}")
    a(f"s_lshl_b32 s10, s{sL}, 7")
    a(f"s_add_u32 s10, s10, {ML}")
    a(f"v_lshlrev_b32 v9, 4, v8")
    a("s_waitcnt lgkmcnt(0)")
    a("v_add_f32 v32, v32, v33\nv_add_f32 v34, v34, v35\nv_add_f32 v36, v36, v37\nv_add_f32 v38, v38, v39")
    a("v_add_f32 v32, v32, v34\nv_add_f32 v36, v36, v38\nv_add_f32 v33, v32, v36")
    tag_trunc(32, 5)
    tag_trunc(33, 33)
    a("v_mov_b32 v34, v32\nv_mov_b32 v35, v33")
    a("s_mov_b64 exec, 0xff")
    store_grp("buffer_store_dwordx4", R(32), 9, 10)
    a(FULL)
    a("L_noml:")
    if not vearly and not fine:
        vload(2)
    a(f"v_mul_u32_u24 v9, 528, v8")
    a(f"v_lshrrev_b32 v10, 4, v{vLANE}")
    a(f"v_lshl_add_u32 v9, v10, 4, v9")
    a(f"s_mul_i32 s9, s{sWAVE}, 4224")
    a(f"s_add_u32 s9, s9, {OC}")
    a(f"v_add_u32 v9, s9, v9")
    a(f"v_lshrrev_b32 v10, 5, v{vLANE}")
    a(f"v_mul_u32_u24 v10, {4*4224}, v10")
    a(f"v_and_b32 v11, 31, v{vLANE}")
    a(f"v_lshlrev_b32 v11, 4, v11")
    a(f"s_mul_i32 s9, s{sWAVE}, 528")
    a(f"s_add_u32 s9, s9, {OC}")
    a(f"v_add3_u32 v10, v10, v11, s9")
    a(f"s_lshl_b32 s10, s{sXCD}, 3")
    a(f"s_add_u32 s10, s10, s{sWAVE}")
    a(f"s_lshl_b32 s10, s10, 5")
    a(f"s_add_u32 s10, s10, s{sIDX}")
    a(f"s_lshl_b32 s11, s10, 9")
    a(f"s_add_u32 s11, s11, {OP}")
    if prew:
        prewrite(PT, 4, 8, 11)
        a(f"s_bitcmp1_b32 s{sIDX}, 0")
        a("s_cbranch_scc1 L_pwB")
        a(f"s_lshr_b32 s9, s{sWAVE}, 2")
        a(f"s_add_u32 s9, s9, s{sIDX}")
        a(f"s_lshl_b32 s9, s9, 13")
        a(f"s_lshl_b32 s10, s{sXCD}, 9")
        a(f"s_add_u32 s9, s9, s10")
        a(f"s_and_b32 s10, s{sWAVE}, 3")
        a(f"s_lshl_b32 s10, s10, 7")
        a(f"s_add_u32 s9, s9, s10")
        a(f"s_add_u32 s9, s9, {XP}")
        prewrite(PT, 3, 12, 9)
        a("s_branch L_pwD")
        a("L_pwB:")
        a(f"s_cmp_ge_u32 s{sBI}, 112")
        a("s_cbranch_scc1 L_pwD")
        a(f"s_lshl_b32 s9, s{sBI}, 10")
        a(f"s_lshl_b32 s10, s{sWAVE}, 6")
        a(f"s_add_u32 s9, s9, s10")
        a(f"s_add_u32 s9, s9, {HP}")
        prewrite(PT, 2, 9, 9)
        a("L_pwD:")
    SA = KV
    MLR, F = (72, 88) if v0lds else (104, 120)
    a("s_mov_b32 s94, 0x00ff00ff\ns_mov_b32 s95, 0x00ff00ff")

    def mlloads():
        for i in range(4):
            a(f"buffer_load_dwordx4 {R(MLR + 4*i)}, v15, {S4(rWS)}, s89 offen offset:{i*1024} sc1")
    OPS = KV + 96
    assert not v0lds

    def perm_k(k):
        for d in range(8):
            sel = sSELHI if d & 1 else sSELLO
            a(f"v_perm_b32 v{OPS + 4*d + k}, v{vblk[3] + (2*k+1)*4 + (d >> 1)}, v{vblk[3] + 2*k*4 + (d >> 1)}, s{sel}")
    for v in range(4):
        if v == 3:
            vm.wait(tv[3] - 4)
            a(f"s_cmp_ge_u32 s88, 32")
            a("s_cbranch_scc1 L_nof")
            pollx(mlloads, lambda: check_regs(range(MLR, MLR + 16)), pre_issued='landed')
            a(f"v_max3_f32 v5, v{MLR}, v{MLR+4}, v{MLR+8}\nv_max_f32 v5, v5, v{MLR+12}")
            dpp_max(5, 5, 5, 8)
            allred(5, 6, "v_max_f32", (16, 32))
            for i in range(4):
                a(f"v_sub_f32 v{F+i}, v{MLR+4*i}, v5")
                a(f"v_mul_f32 v{F+i}, s{sLOG2E}, v{F+i}")
                a(f"v_exp_f32 v{F+i}, v{F+i}")
            a(f"v_mul_f32 v5, v{F}, v{MLR+1}")
            for i in range(1, 4):
                a(f"v_fmac_f32 v5, v{F+i}, v{MLR+1+4*i}")
            dpp_add(5, 5, 5, 8)
            allred(5, 6, "v_add_f32", (16, 32))
            a("v_rcp_f32 v5, v5")
            for i in range(4):
                a(f"v_mul_f32 v{F+i}, v{F+i}, v5")
            a(f"s_lshl_b32 s89, s{sXCD}, 5")
            a(f"s_add_u32 s89, s89, s88")
            a(f"s_mul_i32 s89, s89, {128*ofstr}")
            a(f"s_add_u32 s89, s89, {OF}")
            a("L_nof:")
            perm_k(0)
            perm_k(1)
            a(f"s_bitcmp1_b32 s{sIDX}, 0")
            a("s_cbranch_scc1 L_nw1p")
            for i in range(w1pre):
                claim("L_nw1p")
            a(f"s_waitcnt vmcnt({w1pre + 2})")
            perm_k(2)
            a(f"s_waitcnt vmcnt({w1pre})")
            a("s_branch L_w1pd")
            a("L_nw1p:")
            a(f"s_waitcnt vmcnt(2)")
            perm_k(2)
            a(f"s_waitcnt vmcnt(0)")
            a("L_w1pd:")
            perm_k(3)
            for d in range(8):
                a(f"v_mfma_f32_16x16x32_bf16 {R(SA + d*4)}, {R(OPS + 4*d)}, {R(QF + v*4)}, {R(SA + d*4)}")
            continue
        vm.wait(tv[v])
        for d in range(8):
            if v == 0 or d % 2 == 0:
                vslot()
            t = PT + (d & 1) * 4
            perm_operand(t, vblk[v], d)
            c = "0" if v == 0 else R(SA + d * 4)
            a(f"v_mfma_f32_16x16x32_bf16 {R(SA + d*4)}, {R(t)}, {R(QF + v*4)}, {c}")
        if v == 0 and not fine:
            vload(3)
        if v == 1:
            wps = 32 // nsrv
            a(f"v_lshlrev_b32 v15, 7, v7")
            a(f"s_sub_u32 s88, s{sAI}, {16 - nsrv}")
            a(f"s_cselect_b32 s88, 64, s88")
            a(f"s_mul_i32 s88, s88, {wps}")
            a(f"s_add_u32 s88, s88, s{sWAVE}")
            a(f"s_cmp_ge_u32 s{sWAVE}, {wps}")
            a(f"s_cselect_b32 s88, 64, s88")
            a(f"s_bitcmp1_b32 s{sIDX}, 0")
            a(f"s_cselect_b32 s88, s88, 64")
            a(f"s_cmp_ge_u32 s88, 32")
            a("s_cbranch_scc1 L_noml2")
            a(f"s_lshl_b32 s89, s{sXCD}, 12")
            a(f"s_lshr_b32 s10, s88, 2")
            a(f"s_lshl_b32 s9, s10, 4")
            a(f"s_add_u32 s89, s89, s9")
            a(f"s_add_u32 s89, s89, {ML}")
            mlloads()
            a(f"v_lshlrev_b32 v0, 9, v7")
            a(f"v_lshl_add_u32 v0, v8, 4, v0")
            a(f"s_lshl_b32 s90, s{sXCD}, 3")
            a(f"s_add_u32 s90, s90, s10")
            a(f"s_lshl_b32 s90, s90, 14")
            a(f"s_and_b32 s9, s88, 3")
            a(f"s_lshl_b32 s9, s9, 7")
            a(f"s_add_u32 s90, s90, s9")
            a(f"s_add_u32 s90, s90, {OP}")
            for i in range(1, 4):
                a(f"s_add_u32 s{90+i}, s90, {i*4096}")
            a("L_noml2:")
    assert not fine or vnext[0] == 32
    stamp(7)
    a(MASK8)
    for d in range(8):
        a(f"ds_write_b128 v9, {R(SA + d*4)} offset:{d*64}")
    a(FULL)
    a("s_waitcnt lgkmcnt(0)")
    a("s_barrier")
    for k in range(4):
        a(f"ds_read_b128 {R(16 + 4*k)}, v10 offset:{k*4224}")
    a("s_waitcnt lgkmcnt(0)")
    pk("add", 16, 16, 20)
    pk("add", 24, 24, 28)
    pk("add", 20, 16, 24)
    pk("add", 16, 16, 24)
    for r in range(4):
        a(f"v_permlane32_swap_b32 v{16+r}, v{20+r}")
    pk("add", 16, 16, 20)
    for r in range(4):
        tag_trunc(16 + r, 16 + r)
    a("s_mov_b32 exec_hi, 0")
    store_grp("buffer_store_dwordx4", R(16), 11, 11)
    a(FULL)
    stamp(8)

    def h1a():
        ln = a.label("Lnoh1a")
        a(f"s_cmp_ge_u32 s88, 32")
        a(f"s_cbranch_scc1 {ln}")

        def oloads():
            for i in range(4):
                a(f"buffer_load_dwordx4 {R(MLR + 4*i)}, v0, {S4(rWS)}, s{90+i} offen sc1")
        pollx(oloads, lambda: check_regs(range(MLR, MLR + 16)), slp=0)
        pk("mul", MLR, MLR, F, ybc=True)
        pk("mul", MLR + 8, MLR + 8, F + 2, ybc=True)
        pkfma(MLR, MLR + 4, F + 1)
        pkfma(MLR + 8, MLR + 12, F + 3)
        pk("add", MLR, MLR, MLR + 8)
        red4(MLR, (8,))
        a(f"v_cvt_pk_bf16_f32 v{MLR}, v{MLR}, v{MLR}")
        a(f"v_bfi_b32 v{MLR}, s{sHI}, v{MLR}, v{vTAG}")
        untr(MLR)
        a("s_mov_b64 exec, 0xff")
        a(f"buffer_store_dwordx4 {R(MLR)}, v{vOV}, {S4(rWS)}, s89 offen sc1")
        a(FULL)
        stamp(24)
        if ackst:
            a("s_waitcnt vmcnt(0)")
            stamp(29)
        a(f"{ln}:")
    h1a()
    if notail:
        a("s_branch L_fin")
    a(f"s_bitcmp1_b32 s{sIDX}, 0")
    a("s_cbranch_scc1 L_tailB")

    def gemv8(W, Bv, acc, vrd):
        for s in range(8):
            a(f"ds_read_b128 {R(Bv + 4*s)}, v{vrd} offset:{s*64}")
        for s in range(8):
            a(f"s_waitcnt lgkmcnt({7-s})")
            c = "0" if s == 0 else R(acc)
            a(f"v_mfma_f32_16x16x32_bf16 {R(acc)}, {R(W + s*4)}, {R(Bv + 4*s)}, {c}")
        a(f"s_mov_b32 exec_lo, 0x00030003\ns_mov_b32 exec_hi, 0x00030003")
        for r in range(4):
            tag_trunc(acc + r, acc + r)

    vm = Vm(a)
    claim_all()
    WOP, W2O, W2R, AD, B1V = 72, 104, 136, 40, 29
    a(f"v_lshrrev_b32 v7, 4, v{vLANE}")
    a(f"v_and_b32 v9, 15, v{vLANE}")
    a(f"v_lshrrev_b32 v10, 5, v{vLANE}")
    a(f"v_and_b32 v5, 1, v7")
    a(f"v_lshlrev_b32 v20, 6, v5")
    a(f"v_bfe_u32 v6, v{vLANE}, 2, 2")
    a(f"v_lshl_add_u32 v20, v6, 3, v20")
    a(f"v_add_u32 v20, v20, v10")
    a(f"v_lshlrev_b32 v20, 8, v20")
    a(f"v_and_b32 v6, 3, v{vLANE}")
    a(f"v_lshl_add_u32 v20, v6, 3, v20")
    a(f"s_lshl_b32 s9, s{sWAVE}, 5")
    a(f"v_add_u32 v20, s9, v20")
    a(f"v_lshlrev_b32 v28, 12, v5")
    a(f"v_lshl_add_u32 v28, v9, 5, v28")
    a(f"v_lshl_add_u32 v28, v10, 4, v28")
    a(f"s_lshl_b32 s14, s{sBI}, 13")
    a(f"s_lshl_b32 s9, s{sWAVE}, 9")
    a(f"s_add_u32 s14, s14, s9")
    a(f"s_add_u32 s14, s14, {YP}")
    a(f"v_and_b32 v11, 31, v{vLANE}")
    a(f"v_lshlrev_b32 v21, 14, v10")
    a(f"v_lshl_add_u32 v21, v11, 4, v21")
    a(f"s_lshl_b32 s74, s{sAI}, 10")
    a(f"s_add_u32 s74, s74, {OF}")
    a(f"s_lshl_b32 s9, s{sWAVE}, 10")
    a(f"s_add_u32 s9, s9, {OB}")
    a(f"v_lshlrev_b32 v22, 9, v10")
    a(f"v_lshl_add_u32 v22, v11, 3, v22")
    a(f"v_add_u32 v22, s9, v22")
    a(f"v_and_b32 v5, 1, v{vLANE}")
    a(f"v_lshlrev_b32 v23, 9, v5")
    a(f"v_lshl_add_u32 v23, v7, 4, v23")
    a(f"v_add_u32 v23, s9, v23")
    a(f"v_lshlrev_b32 v24, 12, v5")
    a(f"v_lshl_add_u32 v24, v7, 4, v24")
    a(f"s_lshl_b32 s73, s{sAI}, 13")
    a(f"s_lshl_b32 s9, s{sXCD}, 9")
    a(f"s_add_u32 s73, s73, s9")
    a(f"s_lshl_b32 s9, s{sWAVE}, 6")
    a(f"s_add_u32 s73, s73, s9")
    a(f"s_add_u32 s73, s73, {XP}")
    srd(rT0, pW2, 7340032)
    srd(rT1, pB1, 7168)
    a(f"v_lshlrev_b32 v30, 14, v7")
    a(f"v_lshl_add_u32 v30, v9, 4, v30")
    a(f"s_lshl_b32 s15, s{sBI}, 16")
    a(f"s_lshl_b32 s9, s{sWAVE}, 8")
    a(f"s_add_u32 s15, s15, s9")
    kperm(4, 5)
    a(f"v_and_b32 v6, 7, v{vLANE}")
    a(f"v_lshl_add_u32 v31, v6, 2, v4")
    a(f"v_lshlrev_b32 v31, 1, v31")
    a(f"v_bfe_u32 v8, v{vLANE}, 3, 1")
    a(f"v_lshl_add_u32 v26, v8, 6, v31")
    a(f"s_lshl_b32 s9, s{sWAVE}, 7")
    a(f"s_add_u32 s9, s9, {H1B}")
    a(f"v_add_u32 v26, s9, v26")
    a(f"v_bfe_u32 v5, v{vLANE}, 2, 1")
    a(f"v_lshlrev_b32 v27, 6, v5")
    a(f"v_lshl_add_u32 v27, v7, 4, v27")
    a(f"v_add_u32 v27, s9, v27")
    a(f"v_lshlrev_b32 v25, 10, v7")
    a(f"v_lshl_add_u32 v25, v8, 9, v25")
    a(f"v_lshl_add_u32 v25, v6, 4, v25")
    a(f"s_and_b32 s9, s{sBI}, 3")
    a(f"s_lshl_b32 s89, s9, 7")
    a(f"s_andn2_b32 s10, s{sBI}, 3")
    a(f"s_lshl_b32 s10, s10, 10")
    a(f"s_add_u32 s89, s89, s10")
    a(f"s_add_u32 s89, s89, {HP}")
    GA, XV, B2V, GB, SV, TV = 136, 5, 6, 15, 137, 138
    consumer_ids()
    a(f"v_lshrrev_b32 v6, 3, v{vLANE}")
    a(f"v_and_b32 v8, 7, v{vLANE}")
    a(f"v_lshl_add_u32 v11, v8, 2, v4")
    a(f"v_lshlrev_b32 v5, 2, v11")
    a(f"v_add_u32 v2, {XB}, v5")
    a(f"s_mul_i32 s88, s75, {xstr}")
    a(f"s_add_u32 s88, s88, {XH}")
    a(f"v_lshlrev_b32 v0, 13, v6")
    a(f"v_lshl_add_u32 v0, v8, 4, v0")
    a(f"ds_read_b32 v{GA}, v2 offset:384")
    a(f"ds_read_b32 v{XV}, v2 offset:512")
    a(f"ds_read_b32 v{B2V}, v2 offset:256")
    a(f"ds_read_b32 v{GB}, v2 offset:128")
    a(f"ds_read_b32 v{SV}, v2")
    a(f"ds_read_b32 v{TV}, v2 offset:640")
    a(f"v_mov_b32 v144, v{vOV}")
    a(f"s_mov_b32 s9, {xrec + 16}")
    a("v_writelane_b32 v144, s9, 8")
    a(f"s_mov_b32 s9, {xrec}")
    a("v_writelane_b32 v144, s9, 16")
    for r in range(32):
        a(f"v_mov_b32 v{AD+r}, 0")
    def ldOF():
        a(f"buffer_load_dwordx4 {R(32)}, v21, {S4(rWS)}, s74 offen sc1")
        a(f"buffer_load_dwordx4 {R(36)}, v21, {S4(rWS)}, s74 offen offset:512 sc1")
    if '1' in sg:
        a(f"s_lshl_b32 s9, s{sWAVE}, 7")
        a(f"s_add_u32 s10, s74, s9")
        sgate(10, [0, 16384])
    a("s_waitcnt vmcnt(0)")
    a("s_barrier")
    if '1' in sg:
        ldOF()
    for s in range(8):
        for h in range(2):
            a(f"ds_read_b64_tr_b16 {R(WOP + s*4 + h*2, 2)}, v20 offset:{WT + 32768*(s >> 2) + 8192*h + 512*(s & 3)}")
    stamp(26)
    pollx(ldOF, lambda: check_regs(range(32, 40)), pre_issued=('1' in sg))
    stamp(9)
    for k in range(4):
        a(f"v_perm_b32 v{16+k}, v{33+2*k}, v{32+2*k}, s{sSELHI}")
    a(f"ds_write_b64 v22, {R(16, 2)}")
    a(f"ds_write_b64 v22, {R(18, 2)} offset:256")
    a("s_waitcnt lgkmcnt(0)")
    gemv8(WOP, 104, 32, 23)
    store_grp("buffer_store_dwordx4", R(32), 24, 73)
    a(FULL)
    stamp(10)
    a(f"s_cmp_ge_u32 s{sBI}, 112")
    a("s_cbranch_scc1 L_fin")
    a(f"s_cmp_ge_u32 s{sAI}, 8")
    a("s_cbranch_scc1 L_noh2")
    a(f"s_cmp_lg_u32 s{sWAVE}, 7")
    a("s_cbranch_scc1 L_h2d")
    a(f"s_add_u32 s10, s75, {XP}")
    a(f"s_add_u32 s11, s75, {XP + 65536}")
    a("s_mov_b32 s94, 0xff00ff00\ns_mov_b32 s95, 0xff00ff00")
    SM = "s[94:95]"
    a(f"v_cndmask_b32 v81, v{TV}, v{SV}, {SM}")
    a("v_mov_b32 v143, 0")

    def xloads():
        a(f"buffer_load_dwordx4 {R(84)}, v0, {S4(rWS)}, s10 offen sc1")
        a(f"buffer_load_dwordx4 {R(88)}, v0, {S4(rWS)}, s11 offen sc1")
    pollx(xloads, lambda: check_regs(range(84, 92)), slp=0)
    stamp(11)
    pk("add", 84, 84, 88)
    red4(84, (8,))
    rnd1(84, 84)
    a(f"v_mul_f32 v84, v{GA}, v84")
    rnd1(84, 84)
    a(f"v_add_f32 v84, v{XV}, v84")
    rnd1(XV, 84)
    a(f"v_mul_f32 v83, v{XV}, v{TV}")
    a(f"v_or_b32 v84, v{vTAG}, v{XV}")
    a(f"v_cndmask_b32 v82, v{XV}, v{TV}, {SM}")
    a(f"v_cndmask_b32 v80, v{XV}, v83, {SM}")
    a(f"v_cndmask_b32 v83, 1.0, v83, {SM}")
    a(f"v_mul_f32 v141, v80, v82")
    a(f"v_mul_f32 v142, v80, v81")
    a(f"v_mul_f32 v140, v80, v83")
    untr(84)
    publish_moments(140, 88, 84)
    if hu3:
        a(f"s_lshl_b32 s10, s{sXCD}, 7")
        a(f"s_lshl_b32 s9, s{sAI}, 4")
        a(f"s_add_u32 s10, s10, s9")
        a(f"s_add_u32 s10, s10, {LF}")
        a("s_mov_b64 exec, 1")
        store_grp("buffer_store_dwordx4", R(84), vOV, 10)
        a(FULL)
    stamp(12)
    a("s_cmp_lg_u32 s2, 0")
    a("s_cbranch_scc1 L_h2d")
    if pin:
        a("L_pin:")
        a("s_memrealtime s[96:97]")
        a("s_waitcnt lgkmcnt(0)")
        a("s_sub_u32 s96, s96, s98")
        a(f"s_cmp_lt_u32 s96, {pin}")
        a("s_cbranch_scc1 L_pin")
    a(f"v_mov_b32 v98, s{sEP}")
    a("v_mov_b32 v99, 0")
    a("s_mov_b64 exec, 1")
    a(f"buffer_store_dword v98, v99, {S4(rWS)}, 0 offen offset:{EPOCH} sc1")
    a("s_mov_b64 exec, -1")
    a("s_branch L_h2d")
    a("L_noh2:")
    if w2delay:
        a(f"s_sleep {w2delay}")
    a("L_h2d:")
    a("s_barrier")
    for e in range(8):
        if e % 2 == 0:
            a(f"s_add_u32 s9, s15, {e*2048}")
        a(f"buffer_load_dwordx4 {R(W2R + e*4)}, v30, {S4(rT0)}, s9 offen offset:{(e % 2)*2048} {nt}")
    a(f"s_lshl_b32 s9, s{sBI}, 6")
    a(f"buffer_load_ushort v{B1V}, v31, {S4(rT1)}, s9 offen")
    a("s_waitcnt vmcnt(0)")
    for d in range(8):
        perm_operand(W2O + d * 4, W2R, d)
    lo(B1V, B1V)
    stamp(27)
    pollx(lambda: a(f"buffer_load_dwordx4 {R(136)}, v25, {S4(rWS)}, s89 offen sc1"), lambda: check_regs(range(136, 140)), slp=0)
    stamp(23)
    red4(136, ())
    rnd1(136, 136)
    a(f"v_add_f32 v136, v136, v{B1V}")
    rnd1(136, 136)
    a("v_mul_f32 v137, v136, v136")
    a("v_mul_f32 v137, 0x3d372713, v137")
    a("v_fma_f32 v137, v137, v136, v136")
    a("v_mul_f32 v137, 0xc0135761, v137")
    a("v_exp_f32 v137, v137")
    a("v_add_f32 v137, 1.0, v137")
    a("v_rcp_f32 v137, v137")
    a("v_mul_f32 v136, v136, v137")
    a("v_cvt_pk_bf16_f32 v136, v136, v136")
    a("ds_write_b16 v26, v136")
    a("s_waitcnt lgkmcnt(0)")
    for d in range(8):
        m16 = (0x11 << (d & 3)) << (8 * (d >> 2))
        m32 = m16 | (m16 << 16)
        a(f"s_mov_b32 exec_lo, {m32:#x}\ns_mov_b32 exec_hi, {m32:#x}")
        a(f"ds_read_b128 {R(AD + 4*d)}, v27")
    a(FULL)
    for d in range(8):
        a(f"s_waitcnt lgkmcnt({7-d})")
        c = "0" if d == 0 else R(136)
        a(f"v_mfma_f32_16x16x32_bf16 {R(136)}, {R(AD + 4*d)}, {R(W2O + 4*d)}, {c}")
    for r in range(4):
        tag_trunc(136 + r, 136 + r)
    a(f"buffer_store_dwordx4 {R(136)}, v28, {S4(rWS)}, s14 offen sc1")
    stamp(28)
    a(f"s_cmp_ge_u32 s{sAI}, 8")
    a("s_cbranch_scc1 L_fin")
    srd(rT3, pOUT, 4096)
    a(f"s_mul_i32 s11, s{sWAVE}, {14*8192}")
    a(f"s_add_u32 s11, s11, s75")
    a(f"s_add_u32 s11, s11, {YP}")
    a(f"s_add_u32 s15, s11, {8*8192}")
    a(f"s_lshl_b32 s9, s{sWAVE}, 2")
    a(f"s_add_u32 s9, s9, {FB}")
    a(f"v_lshl_add_u32 v9, v11, 5, s9")
    a(f"v_lshlrev_b32 v8, 5, v11")
    a(f"v_add_u32 v8, {FB}, v8")
    a(f"s_lshr_b32 s10, s75, 1")
    a(f"v_lshlrev_b32 v10, 1, v11")
    for r in range(44, 48):
        a(f"v_mov_b32 v{r}, 0")
    a(f"s_mov_b32 s94, -1\ns_mov_b32 s95, 0xffff")

    def ldH4():
        a(f"buffer_load_dwordx4 {R(40)}, v0, {S4(rWS)}, s11 offen sc1")
        a(f"s_and_saveexec_b64 s[{sEX}:{sEX+1}], s[94:95]")
        a(f"buffer_load_dwordx4 {R(44)}, v0, {S4(rWS)}, s15 offen sc1")

    def ckH4():
        for r in range(44, 48):
            a(f"v_xor_b32 v{r}, v{vTAG}, v{r}")
        a(f"s_mov_b64 exec, s[{sEX}:{sEX+1}]")
        check_regs(range(40, 44))
        a(f"v_or3_b32 v{vBAD}, v{vBAD}, v44, v45")
        a(f"v_or3_b32 v{vBAD}, v{vBAD}, v46, v47")
    if h4ack:
        a("s_waitcnt vmcnt(0)")
    if h4delay:
        a(f"s_sleep {h4delay}")
    if '4' in sg:
        sgate(11, [k * 8192 for k in range(14)])
    pollx(ldH4, ckH4)
    stamp(13)
    pk("add", 40, 40, 44)
    red4(40, (8,))
    a("ds_write_b32 v9, v40")
    a("s_waitcnt lgkmcnt(0)")
    a("s_barrier")
    a(f"s_cmp_lg_u32 s{sWAVE}, 7")
    a("s_cbranch_scc1 L_fin")
    a(f"ds_read_b128 {R(40)}, v8")
    a(f"ds_read_b128 {R(44)}, v8 offset:16")
    a("s_waitcnt lgkmcnt(0)")
    pk("add", 40, 40, 44)
    a("v_add_f32 v40, v40, v41\nv_add_f32 v42, v42, v43\nv_add_f32 v40, v40, v42")
    rnd1(40, 40)
    a(f"v_add_f32 v40, v{B2V}, v40")
    rnd1(40, 40)
    a(f"v_mul_f32 v40, v{GB}, v40")
    rnd1(40, 40)
    a(f"v_add_f32 v40, v{XV}, v40")
    a("v_cvt_pk_bf16_f32 v40, v40, v40")
    a(MASK8)
    a(f"buffer_store_short v40, v10, {S4(rT3)}, s10 offen")
    a(FULL)

    a("s_branch L_fin")

    a("L_tailB:")
    a(f"s_cmp_ge_u32 s{sBI}, 112")
    a("s_cbranch_scc1 L_fin")
    W1O = 72
    XR, SB, CB, MR = 32, 36, 16, 136
    a(f"v_lshrrev_b32 v7, 4, v{vLANE}")
    a(f"s_and_b32 s9, s{sBI}, 3")
    a(f"s_lshl_b32 s13, s9, 10")
    a(f"s_lshl_b32 s10, s{sWAVE}, 12")
    a(f"s_add_u32 s13, s13, s10")
    a(f"s_add_u32 s15, s13, {X1 + 8192}")
    a(f"s_add_u32 s88, s13, {X1 + 16384}")
    a(f"s_mul_i32 s74, s13, {xstr}")
    a(f"s_add_u32 s74, s74, {XH}")
    a(f"v_lshrrev_b32 v6, 1, v{vLANE}")
    a(f"v_and_b32 v5, 1, v{vLANE}")
    a(f"v_lshlrev_b32 v20, 7, v6")
    a(f"v_lshl_add_u32 v20, v5, 4, v20")
    a(f"v_mul_u32_u24 v21, {128*xstr}, v6")
    a(f"v_lshl_add_u32 v21, v5, 4, v21")
    a(f"s_add_u32 s89, s10, {XS + 8192}")
    a(f"s_mul_i32 s91, s{sWAVE}, {4096*xstr}")
    a(f"s_add_u32 s91, s91, {XH + xrec}")
    a(f"s_lshl_b32 s10, s{sWAVE}, 9")
    a(f"s_add_u32 s10, s10, {YB}")
    a(f"v_lshl_add_u32 v22, v{vLANE}, 3, s10")
    a(f"v_lshlrev_b32 v23, 9, v5")
    a(f"v_lshl_add_u32 v24, v7, 4, v23")
    a(f"v_add_u32 v23, {YB}, v24")
    a(f"s_lshl_b32 s90, s{sBI}, 10")
    a(f"s_lshl_b32 s9, s{sWAVE}, 6")
    a(f"s_add_u32 s90, s90, s9")
    a(f"s_add_u32 s90, s90, {HP}")
    a(f"v_bfe_u32 v25, v{vLANE}, 2, 2")
    a(f"v_lshl_add_u32 v25, v7, 3, v25")
    a(f"v_lshlrev_b32 v25, 8, v25")
    a(f"v_and_b32 v6, 3, v{vLANE}")
    a(f"v_lshl_add_u32 v25, v6, 3, v25")
    a(f"s_lshl_b32 s9, s{sWAVE}, 5")
    a(f"v_add_u32 v25, s9, v25")
    a(f"v_lshrrev_b32 v6, 3, v{vLANE}")
    a(f"v_and_b32 v8, 7, v{vLANE}")
    a(f"v_mul_u32_u24 v26, {128*xstr}, v6")
    a(f"v_lshl_add_u32 v26, v8, 4, v26")
    a("s_barrier")
    vm = Vm(a)

    def ck_rec(regs):
        check_regs(regs)
        a(f"v_and_b32 v{vBAD}, s{sTM}, v{vBAD}")
        a(f"v_xor_b32 v{MR+3}, s{sEP}, v{MR+3}")
        a(f"v_or_b32 v{vBAD}, v{vBAD}, v{MR+3}")

    def ldS():
        a(f"buffer_load_dwordx4 {R(SB)}, v{vOV}, {S4(rWS)}, s15 offen sc1")
        a(f"buffer_load_dwordx4 {R(CB)}, v{vOV}, {S4(rWS)}, s88 offen sc1")
        a(f"buffer_load_dwordx4 {R(MR)}, v20, {S4(rWS)}, s89 offen sc1")
    LANE_OF = [0, 32, 16, 1, 33, 17]
    a(f"s_cmp_ge_u32 s{sWAVE}, 2")
    a("s_cbranch_scc1 L_nocst")
    pollx(ldS, lambda: ck_rec(list(range(SB, SB + 4)) + list(range(CB, CB + 4))), f2=True)
    red4(MR, (2, 4, 8))
    a(f"v_mul_f32 v{MR}, 0x3a800000, v{MR}")
    for k in range(5):
        a(f"v_readlane_b32 s9, v{MR}, {LANE_OF[k]}")
        a(f"v_mov_b32 v{144+k}, s9")
    a("L_nocst:")
    if w1delay:
        a(f"s_sleep {w1delay}")
    claim_all(w1thr)
    a("s_waitcnt vmcnt(0)")
    a("s_barrier")
    for s in range(8):
        for h in range(2):
            a(f"ds_read_b64_tr_b16 {R(W1O + s*4 + h*2, 2)}, v25 offset:{WT + 8192*s + 1024*h}")
    stamp(26)
    if '3' in sg:
        a(f"s_mul_i32 s10, s{sWAVE}, {512*xstr}")
        a(f"s_add_u32 s10, s10, {XH + xrec}")
        sgate(10, [(b * 32 + k) * 128 * xstr for b in range(2) for k in range(4)])
        a("s_barrier")
    a(f"s_cmp_ge_u32 s{sWAVE}, 2")
    a("s_cbranch_scc1 L_ydone")

    def ldH3():
        a(f"buffer_load_dwordx4 {R(XR)}, v26, {S4(rWS)}, s74 offen sc1")
        a(f"buffer_load_dwordx4 {R(MR)}, v21, {S4(rWS)}, s91 offen sc1")
    if hu3:
        a(f"s_lshl_b32 s10, s{sXCD}, 7")
        a(f"s_add_u32 s10, s10, {LF}")
        a("s_mov_b64 exec, 0xff")
        pollx(lambda: a(f"buffer_load_dwordx4 {R(XR)}, v{vOV}, {S4(rWS)}, s10 offen sc1"), lambda: check_regs(range(XR, XR + 4)))
        if hu3 > 1:
            a(f"s_sleep {hu3 - 1}")
    pollx(ldH3, lambda: ck_rec(range(XR, XR + 4)), f2=True, slp=h3slp)
    stamp(10)
    red4(MR, (2, 4, 8))
    a(f"v_mul_f32 v{MR}, 0x3a800000, v{MR}")
    for k, sr in enumerate((10, 11, 12, 13, 15, 88)):
        a(f"v_readlane_b32 s{sr}, v{MR}, {LANE_OF[k]}")

    def stats_tail(mean, ex2, t, mb, rs):
        a(f"v_fma_f32 v{ex2}, -v{mean}, v{mean}, v{ex2}")
        a(f"v_max_f32 v{ex2}, 0, v{ex2}")
        a(f"v_cvt_pk_bf16_f32 v{t}, v{mean}, v{ex2}")
        hi(ex2, t)
        lo(mb, t)
        a(f"v_add_f32 v{ex2}, 0x3727c5ac, v{ex2}")
        rnd1(ex2, ex2)
        a(f"v_sqrt_f32 v{ex2}, v{ex2}")
        rnd1(ex2, ex2)
        a(f"v_rcp_f32 v{rs}, v{ex2}")
    a("v_mov_b32 v5, s10\nv_mov_b32 v6, s11")
    stats_tail(5, 6, 60, 140, 141)
    a(f"v_fma_f32 v150, -v140, v144, s12")
    a(f"v_mul_f32 v151, v140, v145")
    a(f"v_fma_f32 v151, -2.0, s15, v151")
    a(f"v_fma_f32 v151, v140, v151, s13")
    a(f"v_fma_f32 v152, -v140, v146, s88")
    pk("add", XR, XR, 140, ybc=True, neg=True)
    for k in (0, 2):
        rnd2(XR + k, XR + k + 1, 60 + k // 2)
    a(f"v_fma_f32 v5, v141, v150, v147")
    a(f"v_mul_f32 v151, v141, v151")
    a(f"v_fma_f32 v151, 2.0, v152, v151")
    a(f"v_fma_f32 v6, v141, v151, v148")
    pk("mul", XR, XR, 141, ybc=True)
    for k in (0, 2):
        rnd2(XR + k, XR + k + 1, 60 + k // 2)
    stats_tail(5, 6, 62, 142, 143)
    pk("mul", XR, XR, CB)
    for k in (0, 2):
        rnd2(XR + k, XR + k + 1, 60 + k // 2)
    pk("add", XR, XR, SB)
    for k in (0, 2):
        rnd2(XR + k, XR + k + 1, 60 + k // 2)
    pk("add", XR, XR, 142, ybc=True, neg=True)
    for k in (0, 2):
        rnd2(XR + k, XR + k + 1, 60 + k // 2)
    pk("mul", XR, XR, 143, ybc=True)
    a(f"v_cvt_pk_bf16_f32 v28, v{XR}, v{XR+1}\nv_cvt_pk_bf16_f32 v29, v{XR+2}, v{XR+3}")
    a(f"ds_write_b64 v22, {R(28, 2)}")
    a("s_waitcnt lgkmcnt(0)")
    a("L_ydone:")
    a("s_barrier")
    gemv8(W1O, 136, 32, 23)
    store_grp("buffer_store_dwordx4", R(32), 24, 90)
    a(FULL)
    stamp(22)

    a("L_fin:")
    if stamps and dbgstamps:
        stamp(15)
        a(f"s_cmp_lg_u32 s2, {dbgstamps - 1}")
        a("s_cbranch_scc1 L_end")
        a("s_load_dwordx2 s[10:11], s[0:1], 104")
        a("s_waitcnt lgkmcnt(0)")
        srd(rT0, 10, 256)
        slots = [1, 2, 3, 4, 20, 6, 8, 24, 9, 10, 11, 12, 22, 13, 15, 21]
        a("v_mov_b32 v4, 200")
        for i, k in enumerate(slots):
            a(f"s_mov_b32 s9, {4*i}")
            a(f"v_writelane_b32 v4, s9, {k}")
        a(f"v_readlane_b32 s9, v{vST}, 0")
        a(f"v_subrev_u32 v5, s9, v{vST}")
        a(f"v_cmp_ne_u32 vcc, 0, v{vST}")
        a("s_mov_b64 exec, vcc")
        a(f"buffer_atomic_umax v5, v4, {S4(rT0)}, 0 offen sc1")
    elif stamps:
        stamp(15)
        a(f"s_mul_i32 s9, s2, {NWAVES}")
        a(f"s_add_u32 s9, s9, s{sW12}")
        a(f"s_lshl_b32 s9, s9, 7")
        a(f"s_add_u32 s9, s9, {STAMP}")
        a(f"v_lshlrev_b32 v4, 2, v{vLANE}")
        a("s_mov_b32 exec_hi, 0")
        a(f"buffer_store_dword v{vST}, v4, {S4(rWS)}, s9 offen")
    a("L_end:")
    a("s_endpgm")
    a('.section .rodata,"a"')
    a(".p2align 6")
    a(f".amdhsa_kernel {NAME}_kernel")
    for l in (".amdhsa_next_free_vgpr 168", ".amdhsa_next_free_sgpr 102", ".amdhsa_accum_offset 168",
              ".amdhsa_group_segment_fixed_size 0", ".amdhsa_kernarg_size 120", ".amdhsa_user_sgpr_count 2",
              ".amdhsa_user_sgpr_kernarg_segment_ptr 1", ".amdhsa_system_sgpr_workgroup_id_x 1",
              ".amdhsa_float_denorm_mode_32 3"):
        a(l)
    a(".end_amdhsa_kernel")
    return pre + a.finish()


if __name__ == "__main__":
    out = sys.argv[1] if len(sys.argv) > 1 else f"cdna_kernels/{NAME}.s"
    kw = {}
    for arg in sys.argv[2:]:
        k, v = arg.split("=")
        kw[k] = eval(v)
    open(out, "w").write(gen(**kw))
```

```python
import sys
from asmlib import Asm, Vm

NAME = "adaLN_cond__gqa_block_cached__mixer_channel_mlp__decode"

EPOCH = 0
ML = 0x1000
X1 = 0x9000
MODP = 0x140000
QP = 0x30000
MA = 0xB0000
HP = 0xE0000
XP = 0x100000
DUAL = 0x90000
OF = 0x500000
QFN = 0x80000
XS = 0x88000
XH = 0x180000
LF = 0x90000
XID = 0x78000
OP = 0x200000
YP = 0x300000
STAMP = 0x800000
WS_BYTES = 0x10000000
WT = 0
OC = 0x10000
QB = 0x18400
HB = 0x18C00
ZB = 0x18E00
MX = 0x19000
LX = 0x19100
OB = 0x10000
ST = 0x19600
YB = 0x19800
RED = 0x1A800
H1B = 0x1B000
QFL = 0x1B400
XB = 0x1B480
FB = 0x1B800
LDS_BYTES = 0x1BC00
TAGM = 0x3ff
T4 = 3
NWAVES = 12

sWAVE, sL, sXCD, sIDX, sAI, sTAG = 3, 4, 5, 6, 7, 8
pX, pK, pV, pWQ, pWO, pW1, pB1, pW2, pB2, pC, pWM, pOUT, pWS = 16, 18, 20, 22, 24, 28, 30, 32, 34, 36, 38, 40, 42
rK, rV, rWS, rT0, rT1, rT2, rT3 = 44, 48, 52, 56, 60, 64, 68
sDU = 72
sSELLO, sSELHI, sHI, sLOG2E, sSCALE, sSPIN, sEP, sTM = 76, 77, 78, 79, 80, 81, 82, 83
sEX = 84
sBI = 86
sKV = 87
sW12 = 100
sLOC = 101
vLANE, vOK, vOV = 1, 2, 3
vBAD, vTAG, vST = 12, 13, 14


DOC = '''
;   (XCC id exchange) that all its workgroups share one L2; otherwise everything is written through (sc1).
'''


def gen(stamps=False, dbgstamps=False, codewarm=True, spin=200000, sleep=0, nt="nt", w1_early=True,
        thr=4, thr2=4, thrq=0, thrb=0, thrv=6, notail=False, quiet=0, w2pre=1, w2all=0, of2=1, ofack=0, fold=1, swz=1, nsrv=16, hu3=1, h4ack=1, sg='1', sgslp=2, bpad=576, kvmap=0, roti=1, v0lds=0, nohelp=0, w1delay=0, w1thr=0, pin=0, fill=0, mbgate=0, kgate=0, bpre=0, w2delay=0, wpre=0, xmask=0, xk=1, xv=2, ofstr=1, xstr=33, onest=1, w2x2=0, pipe='', spread=0, ackst=0, pslp=2, w1pre=3, ovl=1, w1late=1, h3slp=None, h3split=0, fullrec=0, ptall='mqfdoxy', wq_dyn=1, fine=1, qpol='sc1', ptpol='sc1', agate=1, xdelay=0, lateb=0, skip='', hpt=0, prew=0, b2stage=1, h4delay=0, pretouch=0, noloc=0, noma=0, bdelay=0, adelay=0, nomodfin=0, pure=0, klin=0, vearly=0, fake=0, attdma=True, thrw=3, cslp=0, w1pol=None):
    a = Asm()
    hdr = open(f"cdna_kernels/{NAME}.s.ref").read().split("\n")
    head = [l for l in hdr if l.startswith(";") and "@launch" not in l]
    pre = "\n".join(head) + f"\n; @launch grid=(256,1,1) block=({64*NWAVES},1,1) lds={LDS_BYTES}" + DOC
    a('.amdgcn_target "amdgcn-amd-amdhsa--gfx950"')
    a(".text")
    a(f".globl {NAME}_kernel")
    a(".p2align 8")
    a(f".type {NAME}_kernel,@function")
    a(f"{NAME}_kernel:")

    def srd(d, p, n):
        a(f"s_mov_b32 s{d}, s{p}\ns_mov_b32 s{d+1}, s{p+1}\ns_mov_b32 s{d+2}, {n}\ns_mov_b32 s{d+3}, 0x20000")

    def R(b, n=4):
        return f"v[{b}:{b+n-1}]"

    def S4(b):
        return f"s[{b}:{b+3}]"

    def stamp(k):
        if stamps == 1 or (stamps == 2 and k in (8, 15)):
            a(f"s_memrealtime s[96:97]\ns_waitcnt lgkmcnt(0)\nv_writelane_b32 v{vST}, s96, {k}")

    def lo(d, p):
        a(f"v_lshlrev_b32 v{d}, 16, v{p}")

    def hi(d, p):
        a(f"v_and_b32 v{d}, s{sHI}, v{p}")

    def rnd1(d, s):
        a(f"v_cvt_pk_bf16_f32 v{d}, v{s}, v{s}")
        lo(d, d)

    def rnd2(x, y, t):
        a(f"v_cvt_pk_bf16_f32 v{t}, v{x}, v{y}")
        lo(x, t)
        hi(y, t)

    def tag_round(d, s):
        a(f"v_add_u32 v{d}, 0x200, v{s}")
        a(f"v_bfi_b32 v{d}, s{sTM}, v{vTAG}, v{d}")

    def tag_trunc(d, s):
        a(f"v_bfi_b32 v{d}, s{sTM}, v{vTAG}, v{s}")

    def check_regs(regs, first=True):
        for r in regs:
            a(f"v_xor_b32 v{r}, v{vTAG}, v{r}")
        regs = list(regs)
        if first:
            a(f"v_or_b32 v{vBAD}, v{regs[0]}, v{regs[1]}")
            regs = regs[2:]
        for i in range(0, len(regs), 2):
            a(f"v_or3_b32 v{vBAD}, v{vBAD}, v{regs[i]}, v{regs[i+1]}")

    def dpp_add(d, s_rot, s1, ror):
        a(f"v_add_f32_dpp v{d}, v{s_rot}, v{s1} row_ror:{ror} row_mask:0xf bank_mask:0xf")

    def dpp_max(d, s_rot, s1, ror):
        a(f"v_max_f32_dpp v{d}, v{s_rot}, v{s1} row_ror:{ror} row_mask:0xf bank_mask:0xf")

    def allred(x, t, op, which):
        for w in which:
            a(f"v_mov_b32 v{t}, v{x}")
            a(f"v_permlane{w}_swap_b32 v{x}, v{t}")
            a(f"{op} v{x}, v{x}, v{t}")

    def red4(b, rors):
        a(f"v_permlane32_swap_b32 v{b}, v{b+1}")
        a(f"v_permlane32_swap_b32 v{b+2}, v{b+3}")
        a(f"v_add_f32 v{b}, v{b}, v{b+1}")
        a(f"v_add_f32 v{b+2}, v{b+2}, v{b+3}")
        a(f"v_permlane16_swap_b32 v{b}, v{b+2}")
        a(f"v_add_f32 v{b}, v{b}, v{b+2}")
        for r in rors:
            dpp_add(b, b, b, r)

    def perm_operand(dst, blk, d):
        sel = sSELHI if d & 1 else sSELLO
        for k in range(4):
            a(f"v_perm_b32 v{dst+k}, v{blk + (2*k+1)*4 + (d >> 1)}, v{blk + 2*k*4 + (d >> 1)}, s{sel}")

    def ln_stats(su, sq, t, mb, rs):
        a(f"v_mul_f32 v{su}, 0x3a800000, v{su}")
        a(f"v_mul_f32 v{sq}, 0x3a800000, v{sq}")
        a(f"v_fma_f32 v{sq}, -v{su}, v{su}, v{sq}")
        a(f"v_max_f32 v{sq}, 0, v{sq}")
        a(f"v_cvt_pk_bf16_f32 v{t}, v{su}, v{sq}")
        lo(mb, t)
        hi(sq, t)
        a(f"v_add_f32 v{sq}, 0x3727c5ac, v{sq}")
        rnd1(sq, sq)
        a(f"v_sqrt_f32 v{sq}, v{sq}")
        rnd1(sq, sq)
        a(f"v_rcp_f32 v{rs}, v{sq}")

    def ln_apply(x, y, t, mb, rs, last_round=True):
        a(f"v_sub_f32 v{x}, v{x}, v{mb}")
        a(f"v_sub_f32 v{y}, v{y}, v{mb}")
        rnd2(x, y, t)
        a(f"v_mul_f32 v{x}, v{x}, v{rs}")
        a(f"v_mul_f32 v{y}, v{y}, v{rs}")
        if last_round:
            rnd2(x, y, t)

    def check2(pairs_regs):
        first = True
        for b in pairs_regs:
            a(f"v_xor_b32 v{b+1}, s{sEP}, v{b+1}")
            a(f"v_xor_b32 v{b+3}, s{sEP}, v{b+3}")
            if first:
                a(f"v_or_b32 v{vBAD}, v{b+1}, v{b+3}")
                first = False
            else:
                a(f"v_or3_b32 v{vBAD}, v{vBAD}, v{b+1}, v{b+3}")

    def pollx(loads, check, f2=False, dual=False, pre_issued=False, between=None, slp=None, name=None):
        if name and name in skip:
            a("s_waitcnt vmcnt(0)")
            a("s_mov_b64 exec, -1")
            return
        lp, dn, ck = a.label("Lpoll"), a.label("Ldone"), a.label("Lchk")
        a(f"s_mov_b32 s{sSPIN}, {0 if (fake and slp in (cslp, 16)) else spin | 7}")
        if pre_issued:
            a(f"s_branch {ck}")
        inst = stamps == 1 and name in ("a", "b", "c", "x")
        if inst:
            a("s_mov_b32 s94, 0\ns_mov_b32 s95, 0")
        a(f"{lp}:")
        if inst:
            a("s_memrealtime s[90:91]")
        loads()
        if pre_issued != "landed":
            a(f"{ck}:")
        a("s_waitcnt vmcnt(0)")
        if pre_issued == "landed":
            a(f"{ck}:")
        if inst:
            a("s_memrealtime s[92:93]\ns_waitcnt lgkmcnt(0)")
            a("s_sub_u32 s92, s92, s90\ns_max_u32 s94, s94, s92\ns_add_u32 s95, s95, 1")
        check()
        if not f2:
            a(f"v_and_b32 v{vBAD}, s{sTM}, v{vBAD}")
        a(f"v_cmp_ne_u32 vcc, 0, v{vBAD}")
        a(f"s_cbranch_vccz {dn}")
        a("s_mov_b64 exec, vcc")
        sl = sleep if slp is None else slp
        if sl:
            a(f"s_sleep {sl}")
        a(f"s_sub_u32 s{sSPIN}, s{sSPIN}, 1")
        a(f"s_cbranch_scc0 {lp}")
        a(f"{dn}:")
        a("s_mov_b64 exec, -1")
        if inst:
            k = {"a": 26, "b": 28, "c": 28, "x": 26}[name]
            a(f"v_writelane_b32 v{vST}, s94, {k}\nv_writelane_b32 v{vST}, s95, {k+1}")

    def pollp(load, nl, final, sets, sm=94, init=None):
        lp, dn = a.label("Lpp"), a.label("Lppd")
        M = f"s[{sm}:{sm+1}]"
        n = 4 * nl
        a(f"s_mov_b64 {M}, exec")
        a(f"s_mov_b32 s{sSPIN}, {spin}")
        load(sets[0])
        if pslp:
            a(f"s_sleep {pslp}")
        load(sets[1])
        a(f"{lp}:")
        for k in range(3):
            if pslp:
                a(f"s_sleep {pslp}")
            load(sets[(k + 2) % 3])
            a(f"s_waitcnt vmcnt({2*nl})")
            b = sets[k]
            check_regs(range(b, b + n))
            a(f"v_and_b32 v{vBAD}, s{sTM}, v{vBAD}")
            a(f"v_cmp_eq_u32 vcc, 0, v{vBAD}")
            a("s_mov_b64 exec, vcc")
            for i in range(n):
                a(f"v_mov_b32 v{final[i]}, v{b+i}")
            a(f"s_andn2_b64 {M}, {M}, vcc")
            a(f"s_cbranch_scc0 {dn}")
            a(f"s_mov_b64 exec, {M}")
        a(f"s_sub_u32 s{sSPIN}, s{sSPIN}, 1")
        a(f"s_cbranch_scc0 {lp}")
        a(f"{dn}:")
        a("s_mov_b64 exec, -1")

    def sgate(soff, offs):
        lp, dn = a.label("Lsg"), a.label("Lsgd")
        a(f"s_add_u32 s92, s{pWS}, s{soff}")
        a(f"s_addc_u32 s93, s{pWS+1}, 0")
        a(f"s_mov_b32 s{sSPIN}, 2000")
        a(f"{lp}:")
        for i, o in enumerate(offs):
            a(f"s_load_dword s{16+i}, s[92:93], {o} glc")
        a("s_waitcnt lgkmcnt(0)")
        a(f"s_xor_b32 s9, s16, s{sTAG}")
        for i in range(1, len(offs)):
            a(f"s_xor_b32 s{16+i}, s{16+i}, s{sTAG}")
            a(f"s_or_b32 s9, s9, s{16+i}")
        a(f"s_and_b32 s9, s9, s{sTM}")
        a(f"s_cbranch_scc0 {dn}")
        if sgslp:
            a(f"s_sleep {sgslp}")
        a(f"s_sub_u32 s{sSPIN}, s{sSPIN}, 1")
        a(f"s_cbranch_scc0 {lp}")
        a(f"{dn}:")

    def dual_exchange(store_wt, loads, check):
        l1, ok, dn = a.label("Lfx"), a.label("Lfxok"), a.label("Lfxdn")
        a(f"s_mov_b32 s{sDU}, {DUAL}")
        a(f"s_mov_b32 s{sSPIN}, 24")
        a(f"{l1}:")
        loads()
        a("s_waitcnt vmcnt(0)")
        check()
        a(f"v_and_b32 v{vBAD}, s{sTM}, v{vBAD}")
        a(f"v_cmp_ne_u32 vcc, 0, v{vBAD}")
        a(f"s_cbranch_vccz {ok}")
        a("s_mov_b64 exec, vcc")
        a(f"s_sub_u32 s{sSPIN}, s{sSPIN}, 1")
        a(f"s_cbranch_scc0 {l1}")
        a(f"s_mov_b64 s[{sEX}:{sEX+1}], exec")
        store_wt()
        a(f"s_mov_b64 exec, s[{sEX}:{sEX+1}]")
        pollx(loads, check, dual=True)
        a(f"s_branch {dn}")
        a(f"{ok}:")
        store_wt()
        a("s_mov_b64 exec, -1")
        a(f"{dn}:")

    def store_grp(op, data, vaddr, soff):
        l1, l2 = a.label("Lsg"), a.label("Lsgd")
        a(f"s_cmp_eq_u32 s{sLOC}, 1")
        a(f"s_cbranch_scc1 {l1}")
        a(f"{op} {data}, v{vaddr}, {S4(rWS)}, s{soff} offen sc1")
        a(f"s_branch {l2}")
        a(f"{l1}:")
        a(f"{op} {data}, v{vaddr}, {S4(rWS)}, s{soff} offen")
        a(f"{l2}:")

    def prewrite(t, nl_log2, bshift, soff):
        if not prew:
            return
        for k in range(4):
            a(f"v_xor_b32 v{t+k}, 1, v{vTAG}")
        a(f"v_lshrrev_b32 v{t+4}, {nl_log2}, v{vLANE}")
        a(f"v_lshlrev_b32 v{t+4}, {bshift-4}, v{t+4}")
        a(f"v_and_or_b32 v{t+4}, v{vLANE}, {(1 << nl_log2) - 1}, v{t+4}")
        a(f"v_lshlrev_b32 v{t+4}, 4, v{t+4}")
        n = 2 << nl_log2
        a(f"s_mov_b64 exec, {(1 << n) - 1:#x}" if n < 32 else "s_mov_b32 exec_hi, 0")
        a(f"buffer_store_dwordx4 {R(t)}, v{t+4}, {S4(rWS)}, s{soff} offen")
        a("s_mov_b64 exec, -1")

    def store_dual(op, data, vaddr, soff, off=0):
        a(f"s_add_u32 s9, s{soff}, {DUAL}")
        a(f"{op} {data}, v{vaddr}, {S4(rWS)}, s9 offen offset:{off}")
        a(f"{op} {data}, v{vaddr}, {S4(rWS)}, s{soff} offen offset:{off} sc1")

    def untr(b):
        a(f"v_mov_b32 v{b+1}, v{b}")
        a(f"v_permlane32_swap_b32 v{b}, v{b+1}")
        a(f"v_mov_b32 v{b+2}, v{b}")
        a(f"v_mov_b32 v{b+3}, v{b+1}")
        a(f"v_permlane16_swap_b32 v{b}, v{b+2}")
        a(f"v_permlane16_swap_b32 v{b+1}, v{b+3}")

    def pk(op, d, x, y, n=4, ybc=False, neg=False):
        for k in range(0, n, 2):
            if ybc:
                yb, hi_ = y & ~1, y & 1
                m = f" op_sel:[0,{hi_}] op_sel_hi:[1,{hi_}]" + (" neg_lo:[0,1] neg_hi:[0,1]" if neg else "")
                a(f"v_pk_{op}_f32 {R(d+k, 2)}, {R(x+k, 2)}, {R(yb, 2)}{m}")
            else:
                a(f"v_pk_{op}_f32 {R(d+k, 2)}, {R(x+k, 2)}, {R(y+k, 2)}")

    def pkfma(d, x, f, n=4):
        fb, hi_ = f & ~1, f & 1
        for k in range(0, n, 2):
            a(f"v_pk_fma_f32 {R(d+k, 2)}, {R(x+k, 2)}, {R(fb, 2)}, {R(d+k, 2)} op_sel:[0,{hi_},0] op_sel_hi:[1,{hi_},1]")

    def swz_read(d, t, u):
        if swz:
            a(f"v_bfe_u32 v{t}, v{vLANE}, 2, 3")
            a(f"v_lshlrev_b32 v{t}, 5, v{t}")
            a(f"v_xor_b32 v{d}, v{d}, v{t}")

    def kperm(d, t):
        a(f"v_bfe_u32 v{d}, v{vLANE}, 4, 1")
        a(f"v_lshrrev_b32 v{t}, 5, v{vLANE}")
        a(f"v_lshl_or_b32 v{d}, v{d}, 1, v{t}")

    xrec = 128 * (xstr // 2)
    MASK8 = "s_mov_b32 exec_lo, 0x00ff00ff\ns_mov_b32 exec_hi, 0x00ff00ff"
    FULL = "s_mov_b64 exec, -1"

    a("s_cmp_ge_u32 s2, 256")
    a("s_cbranch_scc1 L_end")
    a("s_load_dwordx16 s[16:31], s[0:1], 0")
    a("s_load_dwordx8 s[32:39], s[0:1], 64")
    a("s_load_dwordx2 s[40:41], s[0:1], 96")
    a("s_load_dwordx2 s[42:43], s[0:1], 112")
    if pin:
        a("s_memrealtime s[98:99]")
    if stamps:
        a(f"v_mov_b32 v{vST}, 0")
        a("s_memrealtime s[98:99]")
    a(f"v_lshrrev_b32 v4, 6, v0")
    a(f"v_and_b32 v{vLANE}, 63, v0")
    a(f"v_readfirstlane_b32 s{sW12}, v4")
    a(f"s_and_b32 s{sXCD}, s2, 7")
    a(f"s_lshr_b32 s{sIDX}, s2, 3")
    a(f"s_lshl_b32 s{sL}, s{sXCD}, 5")
    a(f"s_add_u32 s{sL}, s{sL}, s{sIDX}")
    a(f"s_lshr_b32 s{sAI}, s{sIDX}, 1")
    a(f"s_lshr_b32 s9, s{sAI}, 2")
    a(f"s_lshl_b32 s9, s9, 3")
    a(f"s_add_u32 s9, s9, s{sXCD}")
    a(f"s_lshl_b32 s{sBI}, s9, 2")
    a(f"s_and_b32 s9, s{sAI}, 3")
    a(f"s_add_u32 s{sBI}, s{sBI}, s9")
    a(f"s_mov_b32 s{sSELLO}, 0x05040100")
    a(f"s_mov_b32 s{sSELHI}, 0x07060302")
    a(f"s_mov_b32 s{sHI}, 0xffff0000")
    a(f"s_mov_b32 s{sLOG2E}, 0x3fb8aa3b")
    a(f"s_mov_b32 s{sSCALE}, 0x3db504f3")
    a(f"s_mov_b32 s{sTM}, {TAGM}")
    a(f"v_lshrrev_b32 v7, 3, v{vLANE}")
    a(f"s_sub_u32 s{sWAVE}, s{sW12}, 4")
    a(f"s_cmp_lg_u32 s{sW12}, 0")
    a("s_cbranch_scc1 L_noinit")
    a(f"v_lshlrev_b32 v4, 2, v{vLANE}")
    a(f"v_add_u32 v4, {ZB}, v4")
    a("v_mov_b32 v5, 0")
    a("ds_write_b32 v4, v5")
    a(f"ds_write_b32 v4, v5 offset:{QFL - ZB - 128}")
    a("L_noinit:")

    def kargs():
        a("s_waitcnt lgkmcnt(0)")
        if stamps:
            a(f"v_writelane_b32 v{vST}, s98, 0")

    def load_epoch():
        a(f"s_load_dword s{sEP}, s[{pWS}:{pWS+1}], {EPOCH}")

    def get_tag():
        a("s_waitcnt lgkmcnt(0)")
        a(f"s_add_u32 s{sEP}, s{sEP}, 1")
        a(f"s_and_b32 s{sTAG}, s{sEP}, {TAGM}")
        a(f"v_mov_b32 v{vTAG}, s{sTAG}")

    def wait_q():
        lp, dn = a.label("Lwq"), a.label("Lwqd")
        a(f"v_mov_b32 v4, {QFL}")
        a(f"s_mov_b32 s{sSPIN}, {spin*20}")
        a(f"{lp}:")
        a("ds_read_b32 v5, v4")
        a("s_waitcnt lgkmcnt(0)")
        a("v_cmp_ne_u32 vcc, 0, v5")
        a(f"s_cbranch_vccnz {dn}")
        a("s_sleep 1")
        a(f"s_sub_u32 s{sSPIN}, s{sSPIN}, 1")
        a(f"s_cbranch_scc0 {lp}")
        a(f"{dn}:")

    def wait_n(T):
        if T:
            a(f"s_waitcnt vmcnt({T-1})")

    def mod_tile(ngrp, srow0, scol, T, after_issue, before_issue):
        ACC, PT, W = 32, 64, 72
        vm = Vm(a)
        a(f"s_mul_i32 s10, s{srow0}, 12288")
        a(f"s_add_u32 s10, s10, s{scol}")
        a(f"s_mov_b32 s9, {8*12288}")
        a(f"v_mul_lo_u32 v8, v7, s9")
        a(f"v_and_b32 v9, 7, v{vLANE}")
        a(f"v_lshl_add_u32 v8, v9, 4, v8")
        a(f"v_bfe_u32 v10, v{vLANE}, 2, 1")
        a(f"v_lshlrev_b32 v10, 11, v10")
        a(f"v_lshl_add_u32 v10, v7, 4, v10")
        a(f"s_lshl_b32 s11, s{srow0}, 1")
        before_issue()
        srd(rT0, pWM, 12582912)
        srd(rT1, pC, 4096)
        for q4 in range(ngrp):
            tc = vm.issue(f"buffer_load_dwordx4 {R(ACC + q4*4)}, v10, {S4(rT1)}, s11 offen offset:{q4*128}")
        toks = {}

        def grp(q4):
            for e in range(8):
                a(f"s_add_u32 s9, s10, {(64*q4+e)*12288}")
                wait_n(T)
                toks[q4] = vm.issue(f"buffer_load_dwordx4 {R(W + (q4 % 3)*32 + e*4)}, v8, {S4(rT0)}, s9 offen {nt}")
        for q4 in range(min(ngrp, 3)):
            grp(q4)
        after_issue()
        if pure == 1:
            if ngrp == 4:
                vm.wait(toks[0])
                grp(3)
            a("s_waitcnt vmcnt(0)")
            a("s_branch L_fin")
        vm.wait(tc)
        a(f"s_mov_b32 s9, 0xbfb8aa3b")
        for i in range(4 * ngrp):
            lo(4, ACC + i)
            hi(5, ACC + i)
            a(f"v_mul_f32 v6, s9, v4\nv_mul_f32 v11, s9, v5")
            a(f"v_exp_f32 v6, v6\nv_exp_f32 v11, v11")
            a(f"v_add_f32 v6, 1.0, v6\nv_add_f32 v11, 1.0, v11")
            a(f"v_rcp_f32 v6, v6\nv_rcp_f32 v11, v11")
            a(f"v_mul_f32 v4, v4, v6\nv_mul_f32 v5, v5, v11")
            a(f"v_cvt_pk_bf16_f32 v{16+i}, v4, v5")
        a(f"v_and_b32 v11, 3, v{vLANE}")
        a(f"v_bfe_u32 v10, v{vLANE}, 4, 1")
        a(f"v_lshl_add_u32 v9, v10, 2, v11")
        a(f"v_lshrrev_b32 v10, 5, v{vLANE}")
        a(f"v_lshl_add_u32 v9, v9, 1, v10")
        a(f"v_bfe_u32 v10, v{vLANE}, 2, 1")
        for q4 in range(ngrp):
            vm.wait(toks[q4])
            for d in range(8):
                t = PT + (d & 1) * 4
                perm_operand(t, W + (q4 % 3) * 32, d)
                c = "0" if q4 == 0 else R(ACC + d * 4)
                a(f"v_mfma_f32_16x16x32_bf16 {R(ACC + d*4)}, {R(t)}, {R(16 + q4*4)}, {c}")
            if q4 + 3 < ngrp:
                grp(q4 + 3)
        O = 72
        for d in range(4):
            for r in range(4):
                a(f"v_permlane32_swap_b32 v{ACC + d*4 + r}, v{ACC + (d+4)*4 + r}")
        for d in range(4):
            for r in range(4):
                dpp_add(O + r * 4 + d, ACC + (d + 4) * 4 + r, ACC + d * 4 + r, 8)
        for r in range(1, 4):
            a(f"v_cmp_eq_u32 vcc, {r}, v11")
            for d in range(4):
                a(f"v_cndmask_b32 v{O+d}, v{O+d}, v{O + r*4 + d}, vcc")

    def tag4(d):
        a(f"v_add_u32 v{d}, {(T4+1)//2}, v{d}")
        a(f"v_bfi_b32 v{d}, {T4}, v{vTAG}, v{d}")

    def check4(regs):
        regs = list(regs)
        for r in regs:
            a(f"v_xor_b32 v{r}, v15, v{r}")
        a(f"v_or_b32 v{vBAD}, v{regs[0]}, v{regs[1]}")
        for i in range(2, len(regs), 2):
            a(f"v_or3_b32 v{vBAD}, v{vBAD}, v{regs[i]}, v{regs[i+1]}")
        a(f"v_and_b32 v{vBAD}, {T4}, v{vBAD}")
        a(f"v_or_b32_dpp v{vBAD}, v{vBAD}, v{vBAD} quad_perm:[1,0,3,2] row_mask:0xf bank_mask:0xf")
        a(f"v_or_b32_dpp v{vBAD}, v{vBAD}, v{vBAD} quad_perm:[2,3,0,1] row_mask:0xf bank_mask:0xf")
        a(f"v_or_b32_dpp v{vBAD}, v{vBAD}, v{vBAD} row_half_mirror row_mask:0xf bank_mask:0xf")

    def lds_wait(addr, val, cmp="eq"):
        lp, dn = a.label("Lw"), a.label("Lwd")
        a(f"v_mov_b32 v4, {addr}")
        a(f"s_mov_b32 s{sSPIN}, {spin*20}")
        a(f"{lp}:")
        a("ds_read_b32 v5, v4")
        a("s_waitcnt lgkmcnt(0)")
        a(f"v_cmp_{cmp}_u32 vcc, {val}, v5")
        a(f"s_cbranch_vccnz {dn}")
        a("s_sleep 1")
        a(f"s_sub_u32 s{sSPIN}, s{sSPIN}, 1")
        a(f"s_cbranch_scc0 {lp}")
        a(f"{dn}:")

    def get_loc():
        lp, dn = a.label("Lw"), a.label("Lwd")
        a(f"v_mov_b32 v4, {QFL+8}")
        a(f"s_mov_b32 s{sSPIN}, {spin*20}")
        a(f"{lp}:")
        a("ds_read_b32 v5, v4")
        a("s_waitcnt lgkmcnt(0)")
        a(f"v_cmp_ne_u32 vcc, 0, v5")
        a(f"s_cbranch_vccnz {dn}")
        a("s_sleep 1")
        a(f"s_sub_u32 s{sSPIN}, s{sSPIN}, 1")
        a(f"s_cbranch_scc0 {lp}")
        a(f"{dn}:")
        a(f"v_readfirstlane_b32 s{sLOC}, v5")

    def publish_moments(M, soff, with_quad=None):
        red4(M, ())
        a(f"v_add_f32_dpp v{M}, v{M}, v{M} quad_perm:[1,0,3,2] row_mask:0xf bank_mask:0xf")
        a(f"v_add_f32_dpp v{M}, v{M}, v{M} quad_perm:[2,3,0,1] row_mask:0xf bank_mask:0xf")
        a(f"v_add_f32_dpp v{M}, v{M}, v{M} row_half_mirror row_mask:0xf bank_mask:0xf")
        untr(M)
        a(f"v_mov_b32 v{M+3}, s{sEP}")
        if with_quad is not None:
            a("s_mov_b64 exec, 0xff")
            for k in range(4):
                a(f"v_mov_b32 v{M+k}, v{with_quad+k}")
            a("s_mov_b64 exec, 0x101ff")
            a(f"buffer_store_dwordx4 {R(M)}, v{M+4}, {S4(rWS)}, s{soff} offen sc1")
            a(FULL)
            return
        a("s_mov_b64 exec, 0x101")
        a(f"buffer_store_dwordx4 {R(M)}, v{M+4}, {S4(rWS)}, s{soff} offen sc1")
        a(FULL)

    def moment_addr(d, kp, soff, kind):
        a(f"v_lshlrev_b32 v{d}, 1, v{vLANE}")
        a(f"s_add_u32 s{soff}, s75, {XS + kind*8192}")

    def hopB1():
        a(f"v_and_b32 v15, {T4}, v{vTAG}")
        a(f"v_lshrrev_b32 v7, 3, v{vLANE}")
        a(f"v_and_b32 v8, 7, v{vLANE}")
        a(f"v_lshlrev_b32 v9, 15, v7")
        a(f"v_lshl_add_u32 v9, v8, 4, v9")
        a(f"s_lshl_b32 s10, s{sL}, 7")
        a(f"s_add_u32 s11, s10, {QFN}")
        a(f"s_add_u32 s10, s10, {QP}")
        a(f"v_lshlrev_b32 v10, 4, v{vLANE}")
        get_loc()
        lds_wait(QFL + 4, 2)
        if bdelay:
            a(f"s_sleep {bdelay}")
        pollx(lambda: a(f"buffer_load_dwordx4 {R(32)}, v9, {S4(rWS)}, s10 offen sc1"), lambda: check4(range(32, 36)),
              f2=True, slp=cslp, name='b')
        red4(32, (8,))
        a("v_cvt_pk_bf16_f32 v32, v32, v32")
        a(f"v_bfi_b32 v32, s{sHI}, v32, v{vTAG}")
        untr(32)
        a("s_mov_b64 exec, 0xff")
        store_grp("buffer_store_dwordx4", R(32), 10, 11)
        a(FULL)
        a(f"v_mov_b32 v4, {QFL+4}\nv_mov_b32 v5, 3")
        a("ds_write_b32 v4, v5")
        a("s_waitcnt lgkmcnt(0)")
        stamp(14)
        a("s_branch L_fin")

    def hopB2():
        a(f"v_lshlrev_b32 v9, 4, v{vLANE}")
        a(f"s_lshl_b32 s10, s{sXCD}, 12")
        a(f"s_add_u32 s10, s10, {QFN}")
        lds_wait(QFL + 4, 3)

        def ld():
            for i in range(4):
                a(f"buffer_load_dwordx4 {R(32 + i*4)}, v9, {S4(rWS)}, s10 offen offset:{i*1024} sc1")
        pollx(ld, lambda: check_regs(range(32, 48)), slp=cslp, name='c')
        for e in range(8):
            a(f"v_perm_b32 v{48+e}, v{33+2*e}, v{32+2*e}, s{sSELHI}")
        a(f"v_and_b32 v9, 7, v{vLANE}")
        a(f"v_lshlrev_b32 v9, 5, v9")
        a(f"v_bfe_u32 v10, v{vLANE}, 3, 2")
        a(f"v_lshl_add_u32 v9, v10, 3, v9")
        a(f"v_lshrrev_b32 v10, 5, v{vLANE}")
        a(f"v_lshl_add_u32 v9, v10, 8, v9")
        a(f"v_add_u32 v9, {QB}, v9")
        for i in range(4):
            a(f"ds_write_b64 v9, {R(48 + 2*i, 2)} offset:{i*512}")
        a(f"v_mov_b32 v4, {QFL}\nv_mov_b32 v5, 2")
        a("s_waitcnt lgkmcnt(0)")
        a("ds_write_b32 v4, v5")
        a("s_waitcnt lgkmcnt(0)")
        stamp(4)
        a("s_branch L_fin")

    def hopB(half):
        a(f"v_and_b32 v15, {T4}, v{vTAG}")
        a(f"v_lshlrev_b32 v9, 4, v{vLANE}")
        a(f"s_lshl_b32 s10, s{sXCD}, 12")
        a(f"s_add_u32 s10, s10, {QP + half*2048}")
        for i in range(bdelay):
            a("s_sleep 37")

        def ld():
            for p in range(8):
                a(f"s_add_u32 s9, s10, {p*32768}")
                for i in range(2):
                    a(f"buffer_load_dwordx4 {R(32 + p*8 + i*4)}, v9, {S4(rWS)}, s9 offen offset:{i*1024} sc1")
        pollx(ld, lambda: check4(range(32, 96)), f2=True, slp=cslp)
        for st in (32, 16, 8):
            for e in range(st):
                a(f"v_add_f32 v{32+e}, v{32+e}, v{32+st+e}")
        for e in range(4):
            a(f"v_cvt_pk_bf16_f32 v{40+e}, v{32+2*e}, v{33+2*e}")
        a(f"v_lshlrev_b32 v9, 3, v{vLANE}")
        a(f"v_add_u32 v9, {QB + half*1024}, v9")
        for i in range(2):
            a(f"ds_write_b64 v9, {R(40 + 2*i, 2)} offset:{i*512}")
        a(f"v_mov_b32 v4, {QFL}\nv_mov_b32 v5, 1")
        a("s_waitcnt lgkmcnt(0)")
        a("s_mov_b64 exec, 1")
        a("ds_add_u32 v4, v5")
        a(FULL)
        a("s_waitcnt lgkmcnt(0)")
        stamp(4)
        a("s_branch L_fin")

    def f2_pack(src, dst):
        for k in range(4):
            a(f"v_mov_b32 v{dst+2*k}, v{src+k}")
            a(f"v_mov_b32 v{dst+2*k+1}, s{sEP}")

    def consumer_ids():
        a(f"s_lshr_b32 s12, s{sAI}, 2")
        a(f"s_and_b32 s13, s{sAI}, 3")
        a(f"s_lshl_b32 s13, s13, 5")
        a(f"s_lshl_b32 s9, s{sXCD}, 7")
        a(f"s_add_u32 s13, s13, s9")
        a(f"s_lshl_b32 s75, s12, 12")
        a(f"s_lshl_b32 s9, s13, 2")
        a(f"s_add_u32 s75, s75, s9")

    def w1_dma(vm, T, lo_=0, hi_=8, va=8, vb=9, sa=10, sb=11):
        srd(rT0, pW1, 7340032)
        a(f"v_lshrrev_b32 v{va}, 4, v{vLANE}")
        a(f"v_mul_u32_u24 v{va}, 7168, v{va}")
        a(f"v_and_b32 v{vb}, 15, v{vLANE}")
        a(f"v_lshl_add_u32 v{va}, v{vb}, 4, v{va}")
        a(f"s_and_b32 s{sa}, s{sBI}, 3")
        a(f"s_lshl_b32 s{sa}, s{sa}, 3")
        a(f"s_add_u32 s{sa}, s{sa}, s{sWAVE}")
        a(f"s_mul_i32 s{sa}, s{sa}, {32*7168}")
        a(f"s_lshr_b32 s{sb}, s{sBI}, 2")
        a(f"s_lshl_b32 s{sb}, s{sb}, 8")
        a(f"s_add_u32 s{sa}, s{sa}, s{sb}")
        a(f"s_lshl_b32 s{sb}, s{sWAVE}, 13")
        t = None
        for i in range(lo_, hi_):
            a(f"s_add_u32 m0, s{sb}, {WT + i*1024}")
            a(f"s_add_u32 s9, s{sa}, {4*i*7168}")
            wait_n(T)
            t = vm.issue(f"buffer_load_dwordx4 v{va}, {S4(rT0)}, s9 offen {nt} lds")
        return t

    if nohelp:
        a(f"s_cmp_lt_u32 s{sW12}, 4")
        a("s_cbranch_scc1 L_end")
    a(f"s_cmp_eq_u32 s{sW12}, 1")
    a("s_cbranch_scc1 L_moda")
    a(f"s_cmp_ge_u32 s{sW12}, 4")
    a("s_cbranch_scc1 L_att")
    a(f"s_cmp_eq_u32 s{sW12}, 0")
    a("s_cbranch_scc1 L_chain")
    a(f"s_cmp_eq_u32 s{sW12}, 2")
    a("s_cbranch_scc1 L_red")

    if codewarm:
        lw = a.label("Lnowarm")
        a(f"s_cmp_lt_u32 s{sIDX}, 30")
        a(f"s_cbranch_scc1 {lw}")
        a("s_getpc_b64 s[10:11]")
        a("L_pc0:")
        a(f"v_lshlrev_b32 v8, 4, v{vLANE}")
        a(f"s_mov_b32 s9, 0")
        lp = a.label("Lwarm")
        a(f"{lp}:")
        a(f"v_min_u32 v9, L_end-L_pc0-16, v8")
        a(f"global_load_dwordx4 {R(64)}, v9, s[10:11]")
        a(f"v_add_u32 v8, 1024, v8")
        a(f"s_add_u32 s9, s9, 1024")
        a(f"s_cmp_lt_u32 s9, L_end-L_pc0")
        a(f"s_cbranch_scc1 {lp}")
        a(f"{lw}:")
    a(f"v_lshrrev_b32 v11, 4, v{vLANE}")
    a(f"s_mov_b32 s9, {8*12288}")
    a(f"v_mul_lo_u32 v8, v11, s9")
    a(f"v_and_b32 v9, 15, v{vLANE}")
    a(f"v_lshl_add_u32 v8, v9, 4, v8")
    a(f"v_and_b32 v6, 1, v{vLANE}")
    a(f"v_lshlrev_b32 v10, 11, v6")
    a(f"v_lshl_add_u32 v10, v11, 4, v10")
    a(f"s_and_b32 s12, s{sIDX}, 7")
    a(f"s_lshr_b32 s14, s{sIDX}, 3")
    a(f"s_mul_i32 s10, s12, {128*12288}")
    a(f"s_lshl_b32 s14, s14, 3")
    a(f"s_add_u32 s14, s14, s{sXCD}")
    a(f"s_lshl_b32 s9, s14, 8")
    a(f"s_add_u32 s10, s10, s9")
    a(f"s_add_u32 s10, s10, 4096")
    a(f"s_lshl_b32 s11, s12, 8")
    a(f"s_lshl_b32 s15, s12, 15")
    a(f"s_lshl_b32 s9, s14, 9")
    a(f"s_add_u32 s15, s15, s9")
    a(f"s_add_u32 s15, s15, {MODP}")
    kargs()
    load_epoch()
    srd(rWS, pWS, WS_BYTES)
    srd(rT0, pWM, 12582912)
    srd(rT1, pC, 4096)
    a("s_barrier")
    if mbgate:
        lds_wait(QFL + 4, mbgate, "le")
    BO, ACC, PTm, Wm = 16, 32, 64, 72
    vm = Vm(a)
    for blk in range(4):
        tc = vm.issue(f"buffer_load_dwordx4 {R(BO + blk*4)}, v10, {S4(rT1)}, s11 offen offset:{blk*64}")
    toks = {}

    def mblk(blk):
        for e in range(8):
            a(f"s_add_u32 s9, s10, {(32*blk+e)*12288}")
            wait_n(thrb)
            toks[blk] = vm.issue(f"buffer_load_dwordx4 {R(Wm + (blk % 3)*32 + e*4)}, v8, {S4(rT0)}, s9 offen {nt}")
    mblk(0)
    mblk(1)
    mblk(2)
    get_tag()
    vm.wait(tc)
    a(f"s_mov_b32 s13, 0xbfb8aa3b")
    for blk in range(4):
        for i in range(4 * blk, 4 * blk + 4):
            lo(4, BO + i)
            hi(5, BO + i)
            a(f"v_mul_f32 v2, s13, v4\nv_mul_f32 v3, s13, v5")
            a(f"v_exp_f32 v2, v2\nv_exp_f32 v3, v3")
            a(f"v_add_f32 v2, 1.0, v2\nv_add_f32 v3, 1.0, v3")
            a(f"v_rcp_f32 v2, v2\nv_rcp_f32 v3, v3")
            a(f"v_mul_f32 v4, v4, v2\nv_mul_f32 v5, v5, v3")
            a(f"v_cvt_pk_bf16_f32 v{BO+i}, v4, v5")
        vm.wait(toks[blk])
        for d in range(8):
            t = PTm + (d & 1) * 4
            perm_operand(t, Wm + (blk % 3) * 32, d)
            c = "0" if blk == 0 else R(ACC + d * 4)
            a(f"v_mfma_f32_16x16x32_bf16 {R(ACC + d*4)}, {R(t)}, {R(BO + blk*4)}, {c}")
        if blk + 3 < 4:
            mblk(blk + 3)
    a(f"v_bfe_u32 v9, v{vLANE}, 1, 1")
    a(f"v_bfe_u32 v10, v{vLANE}, 2, 2")
    a("v_cmp_eq_u32 vcc, 1, v9")
    for i in range(16):
        a(f"v_cndmask_b32 v{ACC+i}, v{ACC+i}, v{ACC+16+i}, vcc")
    for r in range(1, 4):
        a(f"v_cmp_eq_u32 vcc, {r}, v10")
        for k in range(4):
            a(f"v_cndmask_b32 v{ACC+4*k}, v{ACC+4*k}, v{ACC+4*k+r}, vcc")
    for k in range(4):
        tag_round(16 + k, ACC + 4 * k)
    a(f"v_lshl_add_u32 v10, v11, 2, v10")
    a(f"v_lshl_add_u32 v9, v10, 1, v9")
    a(f"v_lshlrev_b32 v9, 4, v9")
    a(f"v_lshl_add_u32 v9, v6, 14, v9")
    get_loc()
    store_grp("buffer_store_dwordx4", R(16), 9, 15)
    stamp(16)
    a(f"s_bitcmp1_b32 s{sIDX}, 0")
    a("s_cbranch_scc1 L_fin")
    a(f"s_cmp_ge_u32 s{sAI}, 8")
    a("s_cbranch_scc1 L_fin")
    GA, XV, B2V = 32, 48, 49
    lds_wait(QFL, 2)
    consumer_ids()
    srd(rT0, pX, 4096)
    srd(rT1, pB2, 2048)
    kperm(4, 5)
    a(f"v_and_b32 v8, 7, v{vLANE}")
    a(f"v_lshl_add_u32 v11, v8, 2, v4")
    a(f"v_lshlrev_b32 v5, 1, v11")
    a(f"s_lshr_b32 s9, s75, 1")
    a(f"buffer_load_ushort v{XV}, v5, {S4(rT0)}, s9 offen")
    a(f"s_lshl_b32 s9, s13, 1")
    a(f"buffer_load_ushort v{B2V}, v5, {S4(rT1)}, s9 offen")
    a(f"v_lshlrev_b32 v10, 15, v7")
    a(f"v_lshl_add_u32 v10, v8, 4, v10")
    a(f"s_lshl_b32 s14, s12, 14")
    a(f"s_lshl_b32 s9, s13, 2")
    a(f"s_add_u32 s14, s14, s9")

    def gloads():
        for k in range(4):
            a(f"s_add_u32 s9, s14, {MODP + k*4096}")
            a(f"buffer_load_dwordx4 {R(GA + 4*k)}, v10, {S4(rWS)}, s9 offen sc1")
    pollx(gloads, lambda: check_regs(range(GA, GA + 16)), slp=16, name='m')
    for k in range(4):
        red4(GA + 4 * k, (8,))
    rnd2(GA, GA + 12, 5)
    rnd2(GA + 4, GA + 8, 5)
    a(f"v_add_f32 v{GA+8}, 1.0, v{GA+8}")
    rnd1(GA + 8, GA + 8)
    a(f"v_or_b32 v{GA+4}, v{vTAG}, v{GA+4}\nv_or_b32 v{GA+8}, v{vTAG}, v{GA+8}")
    a(f"v_lshlrev_b32 v9, 2, v11")
    a(f"s_add_u32 s9, s75, {X1 + 8192}")
    a(f"s_add_u32 s10, s75, {X1 + 16384}")
    a(f"v_mov_b32 v60, v{GA+4}\nv_mov_b32 v64, v{GA+8}")
    untr(60)
    untr(64)
    a(f"v_lshlrev_b32 v68, 4, v{vLANE}")
    a("s_mov_b64 exec, 0xff")
    a(f"buffer_store_dwordx4 {R(60)}, v68, {S4(rWS)}, s9 offen sc1")
    a(f"buffer_store_dwordx4 {R(64)}, v68, {S4(rWS)}, s10 offen sc1")
    a(FULL)
    lo(XV, XV)
    lo(B2V, B2V)
    a(f"v_add_u32 v5, {XB}, v9")
    a(f"ds_write_b32 v5, v{GA+12} offset:128")
    a(f"ds_write_b32 v5, v{B2V} offset:256")
    a(f"ds_write_b32 v5, v{GA} offset:384")
    a(f"ds_write_b32 v5, v{XV} offset:512")
    a(f"v_xor_b32 v{GA+4}, v{vTAG}, v{GA+4}\nv_xor_b32 v{GA+8}, v{vTAG}, v{GA+8}")
    a(f"ds_write_b32 v5, v{GA+4}")
    a(f"ds_write_b32 v5, v{GA+8} offset:640")
    moment_addr(56, 4, 10, 1)
    a(f"v_mov_b32 v52, v{GA+8}")
    a(f"v_mul_f32 v53, v{GA+8}, v{GA+8}")
    a(f"v_mul_f32 v54, v{GA+8}, v{GA+4}")
    a(f"v_mov_b32 v55, 0")
    a("s_mov_b32 exec_lo, 0xff00ff00\ns_mov_b32 exec_hi, 0xff00ff00")
    a(f"v_mov_b32 v52, v{GA+4}")
    a(f"v_mul_f32 v53, v{GA+4}, v{GA+4}")
    a("v_mov_b32 v54, 0")
    a(FULL)
    publish_moments(52, 10)
    a("s_waitcnt lgkmcnt(0)")
    a("s_branch L_fin")

    a("L_moda:")
    a("s_setprio 3")
    a(f"s_lshr_b32 s12, s{sIDX}, 2")
    a(f"s_lshl_b32 s13, s12, 7")
    a(f"s_bfe_u32 s14, s{sIDX}, 0x10001")
    a(f"s_and_b32 s15, s{sIDX}, 1")
    a(f"s_lshl_b32 s88, s14, 11")
    a(f"s_lshl_b32 s9, s{sXCD}, 8")
    a(f"s_add_u32 s88, s88, s9")
    a(f"s_lshl_b32 s9, s15, 7")
    a(f"s_add_u32 s88, s88, s9")

    def after_a():
        a("s_barrier")
        load_epoch()
        srd(rWS, pWS, WS_BYTES)
        get_tag()
        a(f"s_lshl_b32 s13, s{sXCD}, 14")
        a(f"s_lshl_b32 s9, s12, 11")
        a(f"s_add_u32 s13, s13, s9")
        a(f"s_lshl_b32 s9, s14, 10")
        a(f"s_add_u32 s13, s13, s9")
        a(f"s_lshl_b32 s9, s15, 8")
        a(f"s_add_u32 s13, s13, s9")
        a(f"s_add_u32 s13, s13, {MA}")
        prewrite(64, 4, 9, 13)
    mod_tile(2, 13, 88, 0, after_a, kargs)
    for d in range(4):
        tag4(72 + d)
    a(f"v_lshlrev_b32 v9, 4, v9")
    a(f"v_lshl_add_u32 v9, v10, 9, v9")
    a(MASK8)
    a(f"buffer_store_dwordx4 {R(72)}, v9, {S4(rWS)}, s13 offen")
    a(FULL)
    a(f"v_mov_b32 v4, {QFL+12}\nv_mov_b32 v5, 1")
    a("ds_write_b32 v4, v5")
    stamp(1)
    a("s_getreg_b32 s88, hwreg(HW_REG_XCC_ID)")
    a("s_lshl_b32 s88, s88, 12")
    if xdelay:
        a(f"s_sleep {xdelay}")
    else:
        a("s_waitcnt vmcnt(0)")
    a(f"v_and_b32 v8, 31, v{vLANE}")
    a(f"v_lshlrev_b32 v8, 7, v8")
    a(f"s_lshl_b32 s10, s{sXCD}, 12")
    a(f"s_add_u32 s10, s10, {XID}")
    pollx(lambda: a(f"buffer_load_dwordx4 {R(32)}, v8, {S4(rWS)}, s10 offen sc1"), lambda: check_regs(range(32, 36)), name='x')
    if 'x' in skip:
        a("v_mov_b32 v32, s88")
    a("v_cmp_ne_u32 vcc, s88, v32")
    a("s_cmp_eq_u64 vcc, 0")
    a(f"s_cselect_b32 s{sLOC}, {2 if noloc else 1}, 2")
    a(f"v_mov_b32 v4, {QFL+8}\nv_mov_b32 v5, s{sLOC}")
    a("ds_write_b32 v4, v5")
    stamp(25)
    a(f"s_cmp_eq_u32 s{sLOC}, 1")
    a("s_cbranch_scc1 L_maok")
    a(MASK8)
    a(f"buffer_store_dwordx4 {R(72)}, v9, {S4(rWS)}, s13 offen sc1")
    a(FULL)
    a("L_maok:")
    if b2stage:
        hopB2()
    else:
        lds_wait(QFL + 4, 2)
        hopB(0)

    a("L_red:")
    kargs()
    srd(rWS, pWS, WS_BYTES)
    load_epoch()
    a("s_barrier")
    a("s_setprio 3")
    vm = Vm(a)
    srd(rT1, pX, 4096)
    a(f"v_lshrrev_b32 v10, 5, v{vLANE}")
    a(f"v_and_b32 v11, 31, v{vLANE}")
    a(f"v_lshlrev_b32 v9, 11, v10")
    a(f"v_lshl_add_u32 v9, v11, 4, v9")
    for q in range(4):
        vm.issue(f"buffer_load_dwordx4 {R(72 + q*4)}, v9, {S4(rT1)}, 0 offen offset:{q*512}")
    a(f"v_lshlrev_b32 v9, 11, v10")
    a(f"v_lshl_add_u32 v9, v11, 3, v9")
    a(f"s_lshl_b32 s11, s{sXCD}, 8")
    tx = vm.issue(f"buffer_load_dwordx2 {R(88, 2)}, v9, {S4(rT1)}, s11 offen")
    a("s_getreg_b32 s88, hwreg(HW_REG_XCC_ID)")
    a("s_lshl_b32 s88, s88, 12")
    a(f"v_lshlrev_b32 v4, 4, v{vLANE}")
    a(f"s_lshl_b32 s9, s{sL}, 7")
    a(f"s_add_u32 s9, s9, {XID}")
    get_tag()
    a(f"v_or_b32 v96, s88, v{vTAG}")
    a("v_mov_b32 v97, v96\nv_mov_b32 v98, v96\nv_mov_b32 v99, v96")
    a("s_mov_b64 exec, 0xff")
    if 'X' not in skip:
        a(f"buffer_store_dwordx4 {R(96)}, v4, {S4(rWS)}, s9 offen sc1")
    a(FULL)
    a(f"s_add_u32 s9, s9, {QFN - XID}")
    prewrite(100, 2, 6, 9)
    if pure == 1:
        a("s_branch L_fin")
    def touch(n, lo_bits, hi_shift, base):
        a(f"v_lshrrev_b32 v101, {lo_bits}, v{vLANE}")
        a(f"v_lshlrev_b32 v101, {hi_shift - 7}, v101")
        a(f"v_and_or_b32 v101, v{vLANE}, {(1 << lo_bits) - 1}, v101")
        a(f"v_lshlrev_b32 v101, 7, v101")
        a(f"s_add_u32 s9, s9, {base}")
        if n < 64:
            a(f"s_mov_b64 exec, {(1 << n) - 1:#x}" if n < 32 else "s_mov_b32 exec_hi, 0")
        a(f"buffer_load_dword v100, v101, {S4(rWS)}, s9 offen")
        if n < 64:
            a(FULL)
    if 'm' in ptall:
        a(f"s_lshl_b32 s9, s{sXCD}, 14\ns_lshl_b32 s10, s{sAI}, 10\ns_add_u32 s9, s9, s10")
        a(f"s_and_b32 s10, s{sIDX}, 1\ns_lshl_b32 s10, s10, 8\ns_add_u32 s9, s9, s10")
        touch(4, 1, 9, MA)
    if 'q' in ptall:
        a(f"s_lshl_b32 s9, s{sXCD}, 15\ns_lshl_b32 s10, s{sIDX}, 9\ns_add_u32 s9, s9, s10")
        touch(8, 2, 14, QP)
    if 'f' in ptall:
        for base in (QFN, OF, ML):
            a(f"s_mul_i32 s9, s{sL}, {128 * (ofstr if base == OF else 1)}")
            touch(1, 0, 7, base)
    if 'd' in ptall:
        a(f"s_and_b32 s9, s{sIDX}, 7\ns_lshl_b32 s9, s9, 15")
        a(f"s_lshr_b32 s10, s{sIDX}, 3\ns_lshl_b32 s10, s10, 12\ns_add_u32 s9, s9, s10")
        a(f"s_lshl_b32 s10, s{sXCD}, 9\ns_add_u32 s9, s9, s10")
        touch(8, 2, 14, MODP)
    if 'o' in ptall:
        a(f"s_lshl_b32 s9, s{sXCD}, 17\ns_lshl_b32 s10, s{sIDX}, 9\ns_add_u32 s9, s9, s10")
        touch(32, 2, 14, OP)
    a(f"s_bitcmp1_b32 s{sIDX}, 0")
    a("s_cbranch_scc1 L_tB")
    if 'x' in ptall:
        a(f"s_lshl_b32 s9, s{sAI}, 13\ns_lshl_b32 s10, s{sXCD}, 9\ns_add_u32 s9, s9, s10")
        touch(8, 2, 12, XP)
    a(f"s_cmp_ge_u32 s{sBI}, 112")
    a("s_cbranch_scc1 L_tD")
    if 'y' in ptall:
        a(f"s_lshl_b32 s9, s{sBI}, 13")
        touch(64, 6, 13, YP)
    if 'x' in ptall:
        a(f"s_cmp_ge_u32 s{sAI}, 8")
        a("s_cbranch_scc1 L_tD")
        consumer_ids()
        a("s_mov_b32 s9, s75")
        touch(2, 0, 13, X1 + 8192)
        a("s_mov_b32 s9, s75")
        touch(1, 0, 13, XS + 8192)
        a(f"s_mul_i32 s9, s75, {xstr}")
        touch(1, 0, 7, XH)
        a(f"s_mul_i32 s9, s75, {xstr}")
        touch(1, 0, 7, XH + xrec)
    a("s_branch L_tD")
    a("L_tB:")
    a(f"s_cmp_ge_u32 s{sBI}, 112")
    a("s_cbranch_scc1 L_tD")
    if 'x' in ptall:
        a(f"s_lshl_b32 s9, s{sBI}, 10")
        touch(8, 3, 10, HP)
    a("L_tD:")
    nmin = ('X' not in skip) + ('m' in ptall) + ('q' in ptall) + 3 * ('f' in ptall) + ('d' in ptall) + ('o' in ptall)
    a(f"s_waitcnt vmcnt({nmin})")
    a("v_mov_b32 v4, 0\nv_mov_b32 v5, 0")
    for i in range(16):
        lo(6, 72 + i)
        hi(8, 72 + i)
        a(f"v_add_f32 v4, v4, v6\nv_fmac_f32 v5, v6, v6")
        a(f"v_add_f32 v4, v4, v8\nv_fmac_f32 v5, v8, v8")
    for r in (1, 2, 4, 8):
        dpp_add(4, 4, 4, r)
        dpp_add(5, 5, 5, r)
    allred(4, 6, "v_add_f32", (16,))
    allred(5, 6, "v_add_f32", (16,))
    ln_stats(4, 5, 6, 8, 9)
    for i in range(2):
        lo(24 + 2 * i, 88 + i)
        hi(25 + 2 * i, 88 + i)
        ln_apply(24 + 2 * i, 25 + 2 * i, 6, 8, 9)
    a(f"v_and_b32 v15, {T4}, v{vTAG}")
    a(f"v_lshlrev_b32 v9, 4, v{vLANE}")
    a(f"s_lshl_b32 s10, s{sXCD}, 14")
    a(f"s_add_u32 s10, s10, {MA}")

    if agate:
        lds_wait(QFL + 12, 1)
    if adelay:
        a(f"s_sleep {adelay}")

    def ldA():
        for p in range(8):
            if p % 2 == 0:
                a(f"s_add_u32 s9, s10, {p*2048}")
            for wh in range(2):
                a(f"buffer_load_dwordx4 {R(32 + p*8 + wh*4)}, v9, {S4(rWS)}, s9 offen offset:{(p % 2)*2048 + wh*1024} sc1")
    pollx(ldA, lambda: check4(range(32, 96)), f2=True, slp=cslp, name='a')
    stamp(2)
    for st in (32, 16, 8):
        for e in range(st):
            a(f"v_add_f32 v{32+e}, v{32+e}, v{32+st+e}")
    for i in range(2):
        s0, c0, l0 = 32 + 2 * i, 36 + 2 * i, 24 + 2 * i
        rnd2(s0, s0 + 1, 6)
        rnd2(c0, c0 + 1, 6)
        a(f"v_add_f32 v{c0}, 1.0, v{c0}\nv_add_f32 v{c0+1}, 1.0, v{c0+1}")
        rnd2(c0, c0 + 1, 6)
        a(f"v_mul_f32 v{c0}, v{c0}, v{l0}\nv_mul_f32 v{c0+1}, v{c0+1}, v{l0+1}")
        rnd2(c0, c0 + 1, 6)
        a(f"v_add_f32 v{c0}, v{c0}, v{s0}\nv_add_f32 v{c0+1}, v{c0+1}, v{s0+1}")
        a(f"v_cvt_pk_bf16_f32 v{40+i}, v{c0}, v{c0+1}")
    a(f"v_lshlrev_b32 v9, 3, v{vLANE}")
    a(f"v_add_u32 v9, {HB}, v9")
    a(f"ds_write_b64 v9, {R(40, 2)}")
    a(f"v_mov_b32 v4, {QFL+4}\nv_mov_b32 v5, 1")
    a("s_waitcnt lgkmcnt(0)")
    a("ds_write_b32 v4, v5")
    stamp(17)
    if b2stage:
        hopB1()
    else:
        lds_wait(QFL + 4, 2)
        hopB(1)

    a("L_chain:")
    a("s_setprio 3")
    W = 40
    a(f"v_lshrrev_b32 v11, 4, v{vLANE}")
    a(f"v_lshlrev_b32 v8, 13, v11")
    a(f"v_and_b32 v15, 15, v{vLANE}")
    a(f"v_lshl_add_u32 v8, v15, 4, v8")
    if swz:
        a(f"v_lshlrev_b32 v6, 5, v11")
        a(f"v_xor_b32 v8, v8, v6")
        a(f"v_xor_b32 v9, 0x80, v8")
    a(f"s_lshl_b32 s10, s{sXCD}, 20")
    a(f"s_lshl_b32 s11, s{sIDX}, 8")
    a(f"s_add_u32 s10, s10, s11")
    a(f"s_mov_b32 m0, {WT}")
    kargs()
    srd(rT0, pWQ, 8388608)
    srd(rWS, pWS, WS_BYTES)
    load_epoch()
    a("s_barrier")
    a("L_wql:")
    for n in range(4):
        wait_n(thrq)
        a(f"buffer_load_dwordx4 v{9 if (swz and n >= 2) else 8}, {S4(rT0)}, s10 offen {nt} lds")
        a("s_add_u32 m0, m0, 1024")
        a("s_add_u32 s10, s10, 32768")
    a(f"s_cmp_lt_u32 m0, {WT + 32768}")
    a("s_cbranch_scc1 L_wql")
    get_tag()
    a(f"v_and_b32 v6, 1, v{vLANE}")
    a(f"v_lshlrev_b32 v8, 8, v6")
    a(f"v_lshl_add_u32 v8, v11, 4, v8")
    a(f"v_add_u32 v8, {HB}, v8")
    a(f"v_bfe_u32 v7, v{vLANE}, 2, 2")
    a(f"v_lshl_add_u32 v7, v11, 3, v7")
    a(f"v_lshlrev_b32 v7, 8, v7")
    a(f"v_and_b32 v10, 3, v{vLANE}")
    a(f"v_lshl_add_u32 v7, v10, 3, v7")
    swz_read(7, 10, 0)
    a(f"v_lshrrev_b32 v9, 1, v15")
    a(f"v_lshl_add_u32 v9, v11, 3, v9")
    a(f"v_lshlrev_b32 v9, 4, v9")
    a(f"v_lshl_add_u32 v9, v6, 14, v9")
    a(f"s_lshl_b32 s10, s{sXCD}, 15")
    a(f"s_lshl_b32 s11, s{sIDX}, 9")
    a(f"s_add_u32 s10, s10, s11")
    a(f"s_add_u32 s10, s10, {QP}")
    a("s_waitcnt vmcnt(0)")
    stamp(18)
    for ct in range(8):
        a(f"v_xor_b32 v10, {32*ct}, v7")
        for k in range(4):
            for h in range(2):
                a(f"ds_read_b64_tr_b16 {R(W + ct*16 + k*4 + h*2, 2)}, v10 offset:{WT + 8192*k + 1024*h}")
    lds_wait(QFL + 4, 1)
    stamp(19)
    for k in range(4):
        a(f"ds_read_b128 {R(16 + k*4)}, v8 offset:{k*64}")
    a("s_waitcnt lgkmcnt(0)")

    def pick(ct):
        m32 = (3 << (2 * ct)) * 0x10001
        a(f"s_mov_b32 exec_lo, {m32:#x}\ns_mov_b32 exec_hi, {m32:#x}")
        for r in range(4):
            a(f"v_mov_b32 v{2+r}, v{32 + (ct & 1)*4 + r}")
        a(FULL)
    for ct in range(8):
        t = 32 + (ct & 1) * 4
        for k in range(4):
            a(f"v_mfma_f32_16x16x32_bf16 {R(t)}, {R(W + ct*16 + k*4)}, {R(16 + k*4)}, {'0' if k == 0 else R(t)}")
        if ct:
            pick(ct - 1)
    pick(7)
    for d in range(4):
        tag4(2 + d)
    if 'Q' not in skip:
        a(f"buffer_store_dwordx4 {R(2)}, v9, {S4(rWS)}, s10 offen {qpol}")
    a(f"v_mov_b32 v8, {QFL+4}\nv_mov_b32 v7, 2")
    a("ds_write_b32 v8, v7")
    a("s_waitcnt lgkmcnt(0)")
    stamp(3)
    if hpt:
        a(f"s_bitcmp1_b32 s{sIDX}, 0")
        a("s_cbranch_scc1 L_ptB")
        a(f"v_lshrrev_b32 v9, 1, v{vLANE}")
        a(f"v_lshlrev_b32 v9, 9, v9")
        a(f"v_and_b32 v10, 1, v{vLANE}")
        a(f"v_lshl_add_u32 v9, v10, 7, v9")
        a(f"s_lshr_b32 s9, s{sL}, 2")
        a(f"s_lshl_b32 s10, s9, 14")
        a(f"s_and_b32 s9, s{sIDX}, 3")
        a(f"s_lshl_b32 s9, s9, 7")
        a(f"s_add_u32 s10, s10, s9")
        a(f"s_add_u32 s10, s10, {OP}")
        a(f"buffer_load_dword v16, v9, {S4(rWS)}, s10 offen {ptpol}")
        a(f"v_bfe_u32 v9, v{vLANE}, 2, 2")
        a(f"v_lshlrev_b32 v9, 12, v9")
        a(f"v_and_b32 v10, 3, v{vLANE}")
        a(f"v_lshl_add_u32 v9, v10, 7, v9")
        a(f"s_lshl_b32 s10, s{sIDX}, 13")
        a(f"s_lshl_b32 s9, s{sXCD}, 9")
        a(f"s_add_u32 s10, s10, s9")
        a(f"s_add_u32 s10, s10, {XP}")
        a(f"buffer_load_dword v17, v9, {S4(rWS)}, s10 offen {ptpol}")
        a("s_branch L_fin")
        a("L_ptB:")
        a(f"v_and_b32 v9, 7, v{vLANE}")
        a(f"v_lshlrev_b32 v9, 7, v9")
        a(f"s_lshl_b32 s10, s{sBI}, 10")
        a(f"s_add_u32 s10, s10, {HP}")
        a(f"buffer_load_dword v16, v9, {S4(rWS)}, s10 offen {ptpol}")
    a("s_branch L_fin")

    QF, DT, PT, KV = 16, 24, 32, 40
    if pure >= 2:
        def drop(l):
            if "buffer_store" in l:
                if pure in (3, 4): return True
                if pure == 5 and "sc1" in l: return True
                if pure == 6 and "sc1" not in l: return True
            if "buffer_load" in l and "sc1" in l and pure in (2, 4, 5, 6): return True
            return False
        a.lines = [l for l in a.lines if not drop(l)]
    a("L_att:")
    if kvmap == 0:
        USTR = 32768
        a(f"s_lshl_b32 s{sKV}, s{sL}, 18")
        a(f"s_lshl_b32 s9, s{sWAVE}, 12")
    elif kvmap == 1:
        USTR = 1 << 20
        a(f"s_lshl_b32 s{sKV}, s{sXCD}, 23")
        a(f"s_lshl_b32 s9, s{sIDX}, 15")
        a(f"s_add_u32 s{sKV}, s{sKV}, s9")
        a(f"s_lshl_b32 s9, s{sWAVE}, 12")
    elif kvmap == 2:
        USTR = 1 << 20
        a(f"s_lshl_b32 s{sKV}, s{sXCD}, 23")
        a(f"s_lshl_b32 s9, s{sIDX}, 12")
        a(f"s_add_u32 s{sKV}, s{sKV}, s9")
        a(f"s_lshl_b32 s9, s{sWAVE}, 17")
    a(f"s_add_u32 s{sKV}, s{sKV}, s9")
    if roti:
        a(f"s_and_b32 s9, s{sIDX}, 7")
        a(f"s_mul_i32 s9, s9, {USTR}")
        a(f"s_add_u32 s{sKV}, s{sKV}, s9")
    a(f"v_lshlrev_b32 v{vOV}, 4, v{vLANE}")
    a(f"v_and_b32 v6, 3, v{vLANE}")
    a(f"v_lshlrev_b32 v6, 10, v6")
    a(f"v_bfe_u32 v5, v{vLANE}, 2, 1")
    a(f"v_lshl_add_u32 v6, v5, 8, v6")
    a(f"v_lshl_add_u32 v{vOK}, v7, 4, v6")
    if klin == 1:
        a(f"v_and_b32 v6, 7, v{vLANE}\nv_lshlrev_b32 v6, 8, v6\nv_lshl_add_u32 v{vOK}, v7, 4, v6")
    if klin == 2:
        a(f"v_mov_b32 v{vOK}, v{vOV}")
    a(f"v_mov_b32 v4, {QFL}")
    a("s_mov_b64 vcc, 0")
    kargs()
    srd(rK, pK, 0x4000000)
    if not lateb:
        srd(rV, pV, 0x4000000)
        srd(rWS, pWS, WS_BYTES)
        a("s_barrier")
    def tile_setup(va, vb, so, sp, skip):
        l1, l2 = a.label("Lts"), a.label("Lts")
        a(f"v_lshrrev_b32 v{va}, 4, v{vLANE}")
        a(f"v_and_b32 v{vb}, 15, v{vLANE}")
        a(f"s_bitcmp1_b32 s{sIDX}, 0")
        a(f"s_cbranch_scc1 {l1}")
        srd(rT2, pWO, 8388608)
        a("s_mov_b32 s20, 64")
        a("s_mov_b32 s16, 3\ns_mov_b32 s17, 4")
        a(f"s_lshl_b32 s{so}, s{sAI}, 19")
        a(f"s_lshl_b32 s9, s{sXCD}, 8")
        a(f"s_add_u32 s{so}, s{so}, s9")
        a(f"s_mov_b32 s{sp}, 2048")
        a(f"s_branch {l2}")
        a(f"{l1}:")
        a(f"s_cmp_ge_u32 s{sBI}, 112")
        a(f"s_cselect_b32 s20, 0, 64")
        a("s_mov_b32 s16, 0\ns_mov_b32 s17, 1")
        if swz:
            a(f"v_lshlrev_b32 v4, 1, v{va}")
            a(f"v_xor_b32 v{vb}, v{vb}, v4")
        srd(rT2, pW1, 7340032)
        a(f"s_and_b32 s{so}, s{sBI}, 3")
        a(f"s_mul_i32 s{so}, s{so}, {256*7168}")
        a(f"s_lshr_b32 s9, s{sBI}, 2")
        a(f"s_lshl_b32 s9, s9, 8")
        a(f"s_add_u32 s{so}, s{so}, s9")
        a(f"s_mov_b32 s{sp}, 7168")
        a(f"{l2}:")
        a(f"v_mul_lo_u32 v{va}, v{va}, s{sp}")
        a(f"v_lshl_add_u32 v{va}, v{vb}, 4, v{va}")
        a(f"s_lshl_b32 s{sp}, s{sp}, 2")

    def tile_rest(vm, va, so, sp, lo_, hi_):
        t = None
        a(f"s_add_u32 s11, s{sWAVE}, {8*lo_}")
        a(f"s_mul_i32 s9, s11, s{sp}")
        a(f"s_add_u32 s9, s9, s{so}")
        a(f"s_lshl_b32 m0, s11, 10")
        a(f"s_lshl_b32 s11, s{sp}, 3")
        for i in range(lo_, hi_):
            t = vm.issue(f"buffer_load_dwordx4 v{va}, {S4(rT2)}, s9 offen {nt} lds")
            if i + 1 < hi_:
                a(f"s_add_u32 m0, m0, 8192")
                a(f"s_add_u32 s9, s9, s11")
        return t

    def claim(fail, va=4, vb=5):
        a(f"v_mov_b32 v{va}, {QFL}\nv_mov_b32 v{vb}, 1")
        a("s_mov_b64 exec, 1")
        a(f"ds_add_rtn_u32 v{vb}, v{va}, v{vb} offset:16")
        a(FULL)
        a("s_waitcnt lgkmcnt(0)")
        a(f"v_readfirstlane_b32 s21, v{vb}")
        a(f"s_cmp_ge_u32 s21, s20")
        a(f"s_cbranch_scc1 {fail}")
        a("s_lshl_b32 m0, s21, 10")
        a("s_mul_i32 s9, s21, s19")
        a("s_add_u32 s9, s9, s18")
        if swz:
            a("s_lshr_b32 s22, s21, 1\ns_and_b32 s22, s22, s16\ns_lshl_b32 s22, s22, 5")
            a("s_lshr_b32 s21, s21, s17\ns_and_b32 s21, s21, 1\ns_lshl_b32 s21, s21, 7\ns_or_b32 s22, s22, s21")
            a(f"v_xor_b32 v{va}, s22, v2")
            a(f"buffer_load_dwordx4 v{va}, {S4(rT2)}, s9 offen {nt} lds")
        else:
            a(f"buffer_load_dwordx4 v2, {S4(rT2)}, s9 offen {nt} lds")

    def claim_all(T=0):
        lp, dn = a.label("Lca"), a.label("Lcad")
        a(f"{lp}:")
        wait_n(T)
        claim(dn)
        a(f"s_branch {lp}")
        a(f"{dn}:")

    if kgate:
        lds_wait(QFL + 20, 1)
        a(f"v_mov_b32 v4, {QFL}")
        a("s_mov_b64 vcc, 0")
    load_epoch()
    thr_n = [0]

    if xmask:
        a(f"s_lshr_b32 s74, {xmask}, s{sXCD}")

    def wait_x(T, extra):
        if xmask and T:
            lsk = a.label("Lx")
            a("s_bitcmp1_b32 s74, 0")
            a(f"s_cbranch_scc1 {lsk}")
            wait_n(T)
            a(f"{lsk}:")
            wait_n(T + extra)
        else:
            wait_n(T)

    def thr_wait():
        if thr2 == thr:
            wait_x(thr, xk)
            return
        thr_n[0] += 1
        lsk = a.label("Lthr")
        a(f"s_cbranch_vccnz {lsk}")
        if thr_n[0] % 2 == 0:
            a("ds_read_b32 v5, v4")
        a(f"s_waitcnt vmcnt({thr-1})")
        if thr_n[0] % 2 == 0:
            a("s_waitcnt lgkmcnt(0)")
            a("v_cmp_eq_u32 vcc, 2, v5")
        a(f"{lsk}:")
        wait_n(thr2)

    vm = Vm(a)
    order = [2, 3, 0, 1, 4, 5, 6, 7]
    pos = {s: i for i, s in enumerate(order)}
    tk = {}
    for s in order:
        a(f"s_xor_b32 s9, s{sKV}, {pos[s]*USTR}")
        for t in range(2):
            for h in range(2):
                if thr:
                    thr_wait()
                tk[s] = vm.issue(f"buffer_load_dwordx4 {R(KV + s*16 + t*8 + h*4)}, v{vOK}, {S4(rK)}, s9 offen offset:{(t*512 + h*128, t*2048 + h*128, t*2048 + h*1024)[klin]} {nt}")
                if lateb and vm.n == (lateb & 7):
                    srd(rV, pV, 0x4000000)
                    srd(rWS, pWS, WS_BYTES)
                    a("s_barrier")
    vblk = [KV + 32, KV + 64, KV + 96, KV + 32]
    tv = [None] * 4
    if v0lds:
        vblk = [KV + 96, KV + 32, KV + 64, KV + 96]
        for e in range(8):
            if e % 4 == 0:
                a(f"s_xor_b32 s9, s{sKV}, {(e//4)*USTR}")
                a(f"s_lshl_b32 s10, s{sWAVE}, 13")
                a(f"s_add_u32 m0, s10, {WT + (e//4)*4096}")
            thr_wait()
            tv[0] = vm.issue(f"buffer_load_dwordx4 v{vOV}, {S4(rV)}, s9 offen offset:{(e % 4)*1024} {nt} lds")

    def vload(v):
        for e in range(8):
            if e % 4 == 0:
                a(f"s_xor_b32 s9, s{sKV}, {(2*v + e//4)*USTR}")
            wait_n(thrv)
            tv[v] = vm.issue(f"buffer_load_dwordx4 {R(vblk[v] + e*4)}, v{vOV}, {S4(rV)}, s9 offen offset:{(e % 4)*1024} {nt}")
    vnext = [8 if v0lds else 0]

    def vslot():
        if not fine:
            return
        n = vnext[0]
        vnext[0] += 1
        v, e = n // 8, n % 8
        if e % 4 == 0:
            a(f"s_xor_b32 s{sDU}, s{sKV}, {(2*v + e//4)*USTR}")
        wait_x(thrv, xv)
        tv[v] = vm.issue(f"buffer_load_dwordx4 {R(vblk[v] + e*4)}, v{vOV}, {S4(rV)}, s{sDU} offen offset:{(e % 4)*1024} {nt}")
    stamp(20)
    if pure:
        vm.wait(tk[3]); vload(0); vm.wait(tk[5]); vload(1); vm.wait(tk[7]); vload(2); vm.wait(tv[0]); vload(3)
        a("s_waitcnt vmcnt(0)")
        stamp(8)
        a("s_branch L_fin")
    get_tag()
    tile_setup(2, 5, 18, 19, None)
    if fill:
        a("L_fill:")
        wait_n(thr)
        a(f"v_mov_b32 v4, {QFL}")
        a("ds_read_b32 v5, v4")
        a("s_waitcnt lgkmcnt(0)")
        a("v_cmp_eq_u32 vcc, 2, v5")
        a("s_cbranch_vccnz L_filld")
        claim("L_fillx")
        a("s_branch L_fill")
        a("L_fillx:")
    lds_wait(QFL, 2)
    a("L_filld:")
    stamp(5)
    a(f"v_and_b32 v8, 7, v{vLANE}")
    a(f"v_lshlrev_b32 v9, 8, v8")
    a(f"v_lshl_add_u32 v9, v7, 4, v9")
    a(f"v_add_u32 v9, {QB}, v9")
    a(f"ds_read_b128 {R(QF)}, v9")
    a(f"ds_read_b128 {R(QF+4)}, v9 offset:128")
    a("s_waitcnt lgkmcnt(0)")
    Sreg = [PT, PT + 4, KV, KV + 4, KV + 8, KV + 12, KV + 16, KV + 20]

    def qk_mfma(s, X, Y):
        vm.wait(tk[s])
        k0 = KV + s * 16
        a(f"v_mfma_f32_16x16x32_bf16 {R(X)}, {R(k0)}, {R(QF)}, 0")
        a(f"v_mfma_f32_16x16x32_bf16 {R(Y)}, {R(k0+8)}, {R(QF)}, 0")
        a(f"v_mfma_f32_16x16x32_bf16 {R(X)}, {R(k0+4)}, {R(QF+4)}, {R(X)}")
        a(f"v_mfma_f32_16x16x32_bf16 {R(Y)}, {R(k0+12)}, {R(QF+4)}, {R(Y)}")

    def qk_post(p, X, Y):
        S = Sreg[p]
        for r in range(4):
            a(f"v_permlane32_swap_b32 v{X+r}, v{Y+r}")
        for r in range(4):
            dpp_add(S + r, Y + r, X + r, 8)
        for r in (0, 2):
            rnd2(S + r, S + r + 1, 4)
            a(f"v_mul_f32 v{S+r}, s{sSCALE}, v{S+r}\nv_mul_f32 v{S+r+1}, s{sSCALE}, v{S+r+1}")
            rnd2(S + r, S + r + 1, 4)
        if p == 0:
            a(f"v_max3_f32 v5, v{S}, v{S+1}, v{S+2}")
            a(f"v_max_f32 v5, v5, v{S+3}")
        else:
            a(f"v_max3_f32 v5, v5, v{S}, v{S+1}")
            a(f"v_max3_f32 v5, v5, v{S+2}, v{S+3}")
    qk_mfma(2, PT, DT)
    qk_mfma(3, PT + 4, DT + 4)
    if not fine:
        vload(0)
    vslot()
    qk_post(0, PT, DT)
    vslot()
    qk_post(1, PT + 4, DT + 4)
    for s in (0, 1, 4, 5, 6, 7):
        vslot()
        qk_mfma(s, DT, DT + 4)
        if s == 5 and not fine:
            vload(1)
        qk_post(pos[s], DT, DT + 4)
    vslot()
    if v0lds:
        a(f"s_lshl_b32 s9, s{sWAVE}, 13")
        a(f"v_add_u32 v9, s9, v{vOV}")
        vm.wait(tv[0])
        for e in range(8):
            a(f"ds_read_b128 {R(vblk[0] + e*4)}, v9 offset:{WT + e*1024}")
    allred(5, 6, "v_max_f32", (32, 16))
    a(f"v_lshlrev_b32 v9, 5, v8")
    a(f"v_add_u32 v10, {MX}, v9")
    a(f"s_lshl_b32 s9, s{sWAVE}, 2")
    a(f"v_add_u32 v11, s9, v10")
    a("s_mov_b64 exec, 0xff")
    a(f"ds_write_b32 v11, v5")
    a(FULL)
    if vearly and not fine:
        vload(2)
    vslot()
    a("s_waitcnt lgkmcnt(0)")
    stamp(6)
    a("s_barrier")
    vslot()
    a(f"v_mov_b32 v4, {QFL+8}")
    a(f"ds_read_b128 {R(16)}, v10")
    a(f"ds_read_b128 {R(20)}, v10 offset:16")
    a(f"ds_read_b32 v4, v4")
    a("s_waitcnt lgkmcnt(0)")
    a(f"v_readfirstlane_b32 s{sLOC}, v4")
    a(f"v_max3_f32 v5, v16, v17, v18\nv_max3_f32 v5, v5, v19, v20\nv_max3_f32 v5, v5, v21, v22\nv_max_f32 v5, v5, v23")
    a(f"v_mul_f32 v6, s{sLOG2E}, v5")
    a("v_mov_b32 v4, 0")
    sl = [Sreg[p] + r for p in range(8) for r in range(4)]
    for i, x in enumerate(sl):
        if i in (8, 20):
            vslot()
        a(f"v_fma_f32 v{x}, v{x}, s{sLOG2E}, -v6")
        a(f"v_exp_f32 v{x}, v{x}")
        if i:
            a(f"v_add_f32 v4, v4, v{sl[i-1]}")
    a(f"v_add_f32 v4, v4, v{sl[31]}")
    vslot()
    for i in range(16):
        a(f"v_cvt_pk_bf16_f32 v{QF+i}, v{sl[2*i]}, v{sl[2*i+1]}")
    PH = KV + 16
    if fold:
        a("s_mov_b32 exec_lo, 0xff00ff00\ns_mov_b32 exec_hi, 0xff00ff00")
        for i in range(16):
            a(f"v_mov_b32 v{QF+i}, 0")
        a(FULL)
        for i in range(16):
            a(f"v_mov_b32_dpp v{PH+i}, v{QF+i} row_ror:8 row_mask:0xf bank_mask:0xf")
    allred(4, 6, "v_add_f32", (32, 16))
    a("s_mov_b64 exec, 0xff")
    a(f"ds_write_b32 v11, v4 offset:{LX-MX}")
    a(FULL)
    vslot()
    a("s_waitcnt lgkmcnt(0)")
    a("s_barrier")
    vslot()
    a(f"s_cmp_lg_u32 s{sWAVE}, 4")
    a("s_cbranch_scc1 L_noml")
    a(f"ds_read_b128 {R(32)}, v10 offset:{LX-MX}")
    a(f"ds_read_b128 {R(36)}, v10 offset:{LX-MX+16}")
    a(f"s_lshl_b32 s10, s{sL}, 7")
    a(f"s_add_u32 s10, s10, {ML}")
    a(f"v_lshlrev_b32 v9, 4, v8")
    a("s_waitcnt lgkmcnt(0)")
    a("v_add_f32 v32, v32, v33\nv_add_f32 v34, v34, v35\nv_add_f32 v36, v36, v37\nv_add_f32 v38, v38, v39")
    a("v_add_f32 v32, v32, v34\nv_add_f32 v36, v36, v38\nv_add_f32 v33, v32, v36")
    tag_trunc(32, 5)
    tag_trunc(33, 33)
    a("v_mov_b32 v34, v32\nv_mov_b32 v35, v33")
    a("s_mov_b64 exec, 0xff")
    store_grp("buffer_store_dwordx4", R(32), 9, 10)
    a(FULL)
    a("L_noml:")
    if not vearly and not fine:
        vload(2)
    a(f"v_mul_u32_u24 v9, 528, v8")
    a(f"v_lshrrev_b32 v10, 4, v{vLANE}")
    a(f"v_lshl_add_u32 v9, v10, 4, v9")
    if fold:
        a(f"v_bfe_u32 v10, v{vLANE}, 3, 1")
        a(f"v_lshl_add_u32 v9, v10, 8, v9")
    a(f"s_mul_i32 s9, s{sWAVE}, 4224")
    a(f"s_add_u32 s9, s9, {OC}")
    a(f"v_add_u32 v9, s9, v9")
    a(f"v_lshrrev_b32 v10, 5, v{vLANE}")
    a(f"v_mul_u32_u24 v10, {4*4224}, v10")
    a(f"v_and_b32 v11, 31, v{vLANE}")
    a(f"v_lshlrev_b32 v11, 4, v11")
    a(f"s_mul_i32 s9, s{sWAVE}, 528")
    a(f"s_add_u32 s9, s9, {OC}")
    a(f"v_add3_u32 v10, v10, v11, s9")
    a(f"s_lshl_b32 s10, s{sXCD}, 3")
    a(f"s_add_u32 s10, s10, s{sWAVE}")
    a(f"s_lshl_b32 s10, s10, 5")
    a(f"s_add_u32 s10, s10, s{sIDX}")
    a(f"s_lshl_b32 s11, s10, 9")
    a(f"s_add_u32 s11, s11, {OP}")
    if prew:
        prewrite(PT, 4, 8, 11)
        a(f"s_bitcmp1_b32 s{sIDX}, 0")
        a("s_cbranch_scc1 L_pwB")
        a(f"s_lshr_b32 s9, s{sWAVE}, 2")
        a(f"s_add_u32 s9, s9, s{sIDX}")
        a(f"s_lshl_b32 s9, s9, 13")
        a(f"s_lshl_b32 s10, s{sXCD}, 9")
        a(f"s_add_u32 s9, s9, s10")
        a(f"s_and_b32 s10, s{sWAVE}, 3")
        a(f"s_lshl_b32 s10, s10, 7")
        a(f"s_add_u32 s9, s9, s10")
        a(f"s_add_u32 s9, s9, {XP}")
        prewrite(PT, 3, 12, 9)
        a("s_branch L_pwD")
        a("L_pwB:")
        a(f"s_cmp_ge_u32 s{sBI}, 112")
        a("s_cbranch_scc1 L_pwD")
        a(f"s_lshl_b32 s9, s{sBI}, 10")
        a(f"s_lshl_b32 s10, s{sWAVE}, 6")
        a(f"s_add_u32 s9, s9, s10")
        a(f"s_add_u32 s9, s9, {HP}")
        prewrite(PT, 2, 9, 9)
        a("L_pwD:")
    SA = KV
    MLR, F = (72, 88) if v0lds else (104, 120)
    a("s_mov_b32 s94, 0x00ff00ff\ns_mov_b32 s95, 0x00ff00ff")

    def mlloads():
        for i in range(4):
            a(f"buffer_load_dwordx4 {R(MLR + 4*i)}, v15, {S4(rWS)}, s89 offen offset:{i*1024} sc1")
    OPS = KV + 96
    assert not v0lds

    def pv_mfma(v, d, t):
        acc = SA + (d & 3 if fold else d) * 4
        P = (PH if fold and d >= 4 else QF) + v * 4
        c = "0" if (v == 0 and not (fold and d >= 4)) else R(acc)
        a(f"v_mfma_f32_16x16x32_bf16 {R(acc)}, {R(t)}, {R(P)}, {c}")

    def perm_k(k):
        for d in range(8):
            sel = sSELHI if d & 1 else sSELLO
            a(f"v_perm_b32 v{OPS + 4*d + k}, v{vblk[3] + (2*k+1)*4 + (d >> 1)}, v{vblk[3] + 2*k*4 + (d >> 1)}, s{sel}")
    for v in range(4):
        if v == 3:
            vm.wait(tv[3] - 4)
            a(f"s_cmp_ge_u32 s88, 32")
            a("s_cbranch_scc1 L_nof")
            pollx(mlloads, lambda: check_regs(range(MLR, MLR + 16)), pre_issued='landed')
            a(f"v_max3_f32 v5, v{MLR}, v{MLR+4}, v{MLR+8}\nv_max_f32 v5, v5, v{MLR+12}")
            dpp_max(5, 5, 5, 8)
            allred(5, 6, "v_max_f32", (16, 32))
            for i in range(4):
                a(f"v_sub_f32 v{F+i}, v{MLR+4*i}, v5")
                a(f"v_mul_f32 v{F+i}, s{sLOG2E}, v{F+i}")
                a(f"v_exp_f32 v{F+i}, v{F+i}")
            a(f"v_mul_f32 v5, v{F}, v{MLR+1}")
            for i in range(1, 4):
                a(f"v_fmac_f32 v5, v{F+i}, v{MLR+1+4*i}")
            dpp_add(5, 5, 5, 8)
            allred(5, 6, "v_add_f32", (16, 32))
            a("v_rcp_f32 v5, v5")
            for i in range(4):
                a(f"v_mul_f32 v{F+i}, v{F+i}, v5")
            a(f"s_lshl_b32 s89, s{sXCD}, 5")
            a(f"s_add_u32 s89, s89, s88")
            a(f"s_mul_i32 s89, s89, {128*ofstr}")
            a(f"s_add_u32 s89, s89, {OF}")
            a("L_nof:")
            perm_k(0)
            perm_k(1)
            a(f"s_bitcmp1_b32 s{sIDX}, 0")
            a("s_cbranch_scc1 L_nw1p")
            for i in range(w1pre):
                claim("L_nw1p")
            a(f"s_waitcnt vmcnt({w1pre + 2})")
            perm_k(2)
            a(f"s_waitcnt vmcnt({w1pre})")
            a("s_branch L_w1pd")
            a("L_nw1p:")
            a(f"s_waitcnt vmcnt(2)")
            perm_k(2)
            a(f"s_waitcnt vmcnt(0)")
            a("L_w1pd:")
            perm_k(3)
            for d in range(8):
                pv_mfma(v, d, OPS + 4 * d)
            continue
        vm.wait(tv[v])
        for d in range(8):
            if v == 0 or d % 2 == 0:
                vslot()
            t = PT + (d & 1) * 4
            perm_operand(t, vblk[v], d)
            pv_mfma(v, d, t)
        if v == 0 and not fine:
            vload(3)
        if v == 1:
            wps = 32 // nsrv
            a(f"v_lshlrev_b32 v15, 7, v7")
            a(f"s_sub_u32 s88, s{sAI}, {16 - nsrv}")
            a(f"s_cselect_b32 s88, 64, s88")
            a(f"s_mul_i32 s88, s88, {wps}")
            a(f"s_add_u32 s88, s88, s{sWAVE}")
            a(f"s_cmp_ge_u32 s{sWAVE}, {wps}")
            a(f"s_cselect_b32 s88, 64, s88")
            a(f"s_bitcmp1_b32 s{sIDX}, 0")
            a(f"s_cselect_b32 s88, s88, 64")
            a(f"s_cmp_ge_u32 s88, 32")
            a("s_cbranch_scc1 L_noml2")
            a(f"s_lshl_b32 s89, s{sXCD}, 12")
            a(f"s_lshr_b32 s10, s88, 2")
            a(f"s_lshl_b32 s9, s10, 4")
            a(f"s_add_u32 s89, s89, s9")
            a(f"s_add_u32 s89, s89, {ML}")
            mlloads()
            a(f"v_lshlrev_b32 v0, 9, v7")
            a(f"v_lshl_add_u32 v0, v8, 4, v0")
            a(f"s_lshl_b32 s90, s{sXCD}, 3")
            a(f"s_add_u32 s90, s90, s10")
            a(f"s_lshl_b32 s90, s90, 14")
            a(f"s_and_b32 s9, s88, 3")
            a(f"s_lshl_b32 s9, s9, 7")
            a(f"s_add_u32 s90, s90, s9")
            a(f"s_add_u32 s90, s90, {OP}")
            for i in range(1, 4):
                a(f"s_add_u32 s{90+i}, s90, {i*4096}")
            a("L_noml2:")
    assert not fine or vnext[0] == 32
    stamp(7)
    if not fold:
        a(MASK8)
    for d in range(4 if fold else 8):
        a(f"ds_write_b128 v9, {R(SA + d*4)} offset:{d*64}")
    if not fold:
        a(FULL)
    a("s_waitcnt lgkmcnt(0)")
    a("s_barrier")
    for k in range(4):
        a(f"ds_read_b128 {R(16 + 4*k)}, v10 offset:{k*4224}")
    a("s_waitcnt lgkmcnt(0)")
    pk("add", 16, 16, 20)
    pk("add", 24, 24, 28)
    pk("add", 20, 16, 24)
    pk("add", 16, 16, 24)
    for r in range(4):
        a(f"v_permlane32_swap_b32 v{16+r}, v{20+r}")
    pk("add", 16, 16, 20)
    for r in range(4):
        tag_trunc(16 + r, 16 + r)
    a("s_mov_b32 exec_hi, 0")
    store_grp("buffer_store_dwordx4", R(16), 11, 11)
    a(FULL)
    stamp(8)

    def h1a():
        ln = a.label("Lnoh1a")
        a(f"s_cmp_ge_u32 s88, 32")
        a(f"s_cbranch_scc1 {ln}")

        def oloads():
            for i in range(4):
                a(f"buffer_load_dwordx4 {R(MLR + 4*i)}, v0, {S4(rWS)}, s{90+i} offen sc1")
        pollx(oloads, lambda: check_regs(range(MLR, MLR + 16)), slp=0)
        pk("mul", MLR, MLR, F, ybc=True)
        pk("mul", MLR + 8, MLR + 8, F + 2, ybc=True)
        pkfma(MLR, MLR + 4, F + 1)
        pkfma(MLR + 8, MLR + 12, F + 3)
        pk("add", MLR, MLR, MLR + 8)
        red4(MLR, (8,))
        a(f"v_cvt_pk_bf16_f32 v{MLR}, v{MLR}, v{MLR}")
        a(f"v_bfi_b32 v{MLR}, s{sHI}, v{MLR}, v{vTAG}")
        untr(MLR)
        a("s_mov_b64 exec, 0xff")
        a(f"buffer_store_dwordx4 {R(MLR)}, v{vOV}, {S4(rWS)}, s89 offen sc1")
        a(FULL)
        stamp(24)
        if ackst:
            a("s_waitcnt vmcnt(0)")
            stamp(29)
        a(f"{ln}:")
    h1a()
    if notail:
        a("s_branch L_fin")
    a(f"s_bitcmp1_b32 s{sIDX}, 0")
    a("s_cbranch_scc1 L_tailB")

    def gemv8(W, Bv, acc, vrd, wread=None):
        n = 3 if wread else 1
        for s in range(8):
            if wread:
                wread(s)
            a(f"ds_read_b128 {R(Bv + 4*s)}, v{vrd} offset:{s*64}")
        for s in range(8):
            a(f"s_waitcnt lgkmcnt({min(15, n*(7-s))})")
            c = "0" if s == 0 else R(acc)
            a(f"v_mfma_f32_16x16x32_bf16 {R(acc)}, {R(W + s*4)}, {R(Bv + 4*s)}, {c}")
        a(f"s_mov_b32 exec_lo, 0x00030003\ns_mov_b32 exec_hi, 0x00030003")
        for r in range(4):
            tag_trunc(acc + r, acc + r)

    vm = Vm(a)
    claim_all()
    WOP, W2O, W2R, AD, B1V = 72, 104, 136, 40, 29
    a(f"v_lshrrev_b32 v7, 4, v{vLANE}")
    a(f"v_and_b32 v9, 15, v{vLANE}")
    a(f"v_lshrrev_b32 v10, 5, v{vLANE}")
    a(f"v_and_b32 v5, 1, v7")
    a(f"v_lshlrev_b32 v20, 6, v5")
    a(f"v_bfe_u32 v6, v{vLANE}, 2, 2")
    a(f"v_lshl_add_u32 v20, v6, 3, v20")
    a(f"v_add_u32 v20, v20, v10")
    a(f"v_lshlrev_b32 v20, 8, v20")
    a(f"v_and_b32 v6, 3, v{vLANE}")
    a(f"v_lshl_add_u32 v20, v6, 3, v20")
    a(f"s_lshl_b32 s9, s{sWAVE}, 5")
    a(f"v_add_u32 v20, s9, v20")
    swz_read(20, 6, 0)
    a(f"v_lshlrev_b32 v28, 12, v5")
    a(f"v_lshl_add_u32 v28, v9, 5, v28")
    a(f"v_lshl_add_u32 v28, v10, 4, v28")
    a(f"s_lshl_b32 s14, s{sBI}, 13")
    a(f"s_lshl_b32 s9, s{sWAVE}, 9")
    a(f"s_add_u32 s14, s14, s9")
    a(f"s_add_u32 s14, s14, {YP}")
    a(f"v_and_b32 v11, 31, v{vLANE}")
    a(f"v_lshlrev_b32 v21, 14, v10")
    a(f"v_lshl_add_u32 v21, v11, 4, v21")
    a(f"s_lshl_b32 s74, s{sAI}, 10")
    a(f"s_add_u32 s74, s74, {OF}")
    a(f"s_mul_i32 s9, s{sWAVE}, {2*bpad}")
    a(f"s_add_u32 s9, s9, {OB}")
    a(f"v_mul_u32_u24 v22, {bpad}, v10")
    a(f"v_lshl_add_u32 v22, v11, 3, v22")
    a(f"v_add_u32 v22, s9, v22")
    a(f"v_and_b32 v5, 1, v{vLANE}")
    a(f"v_mul_u32_u24 v23, {bpad}, v5")
    a(f"v_lshl_add_u32 v23, v7, 4, v23")
    a(f"v_add_u32 v23, s9, v23")
    a(f"v_lshlrev_b32 v24, 12, v5")
    a(f"v_lshl_add_u32 v24, v7, 4, v24")
    a(f"s_lshl_b32 s73, s{sAI}, 13")
    a(f"s_lshl_b32 s9, s{sXCD}, 9")
    a(f"s_add_u32 s73, s73, s9")
    a(f"s_lshl_b32 s9, s{sWAVE}, 6")
    a(f"s_add_u32 s73, s73, s9")
    a(f"s_add_u32 s73, s73, {XP}")
    srd(rT0, pW2, 7340032)
    srd(rT1, pB1, 7168)
    a(f"v_lshlrev_b32 v30, 14, v7")
    a(f"v_lshl_add_u32 v30, v9, 4, v30")
    a(f"s_lshl_b32 s15, s{sBI}, 16")
    a(f"s_lshl_b32 s9, s{sWAVE}, 8")
    a(f"s_add_u32 s15, s15, s9")
    def w2row(e):
        a(f"s_add_u32 s9, s15, {e*2048}")
        a(f"buffer_load_dwordx4 {R(W2R + e*4)}, v30, {S4(rT0)}, s9 offen {nt}")
    if w2pre:
        a(f"s_cmp_ge_u32 s{sBI if w2all else sAI}, {112 if w2all else 8}")
        a("s_cbranch_scc1 L_nw2p")
        for e in range(8 - w2pre, 8):
            w2row(e)
        a("L_nw2p:")
    kperm(4, 5)
    a(f"v_and_b32 v6, 7, v{vLANE}")
    a(f"v_lshl_add_u32 v31, v6, 2, v4")
    a(f"v_lshlrev_b32 v31, 1, v31")
    a(f"v_bfe_u32 v8, v{vLANE}, 3, 1")
    a(f"v_lshl_add_u32 v26, v8, 6, v31")
    a(f"s_lshl_b32 s9, s{sWAVE}, 7")
    a(f"s_add_u32 s9, s9, {H1B}")
    a(f"v_add_u32 v26, s9, v26")
    a(f"v_bfe_u32 v5, v{vLANE}, 2, 1")
    a(f"v_lshlrev_b32 v27, 6, v5")
    a(f"v_lshl_add_u32 v27, v7, 4, v27")
    a(f"v_add_u32 v27, s9, v27")
    a(f"v_lshlrev_b32 v25, 10, v7")
    a(f"v_lshl_add_u32 v25, v8, 9, v25")
    a(f"v_lshl_add_u32 v25, v6, 4, v25")
    a(f"s_and_b32 s9, s{sBI}, 3")
    a(f"s_lshl_b32 s89, s9, 7")
    a(f"s_andn2_b32 s10, s{sBI}, 3")
    a(f"s_lshl_b32 s10, s10, 10")
    a(f"s_add_u32 s89, s89, s10")
    a(f"s_add_u32 s89, s89, {HP}")
    GA, XV, B2V, GB, SV, TV = 136, 5, 6, 15, 137, 138
    consumer_ids()
    a(f"v_lshrrev_b32 v6, 3, v{vLANE}")
    a(f"v_and_b32 v8, 7, v{vLANE}")
    a(f"v_lshl_add_u32 v11, v8, 2, v4")
    a(f"v_lshlrev_b32 v5, 2, v11")
    a(f"v_add_u32 v2, {XB}, v5")
    a(f"s_mul_i32 s88, s75, {xstr}")
    a(f"s_add_u32 s88, s88, {XH}")
    a(f"v_lshlrev_b32 v0, 13, v6")
    a(f"v_lshl_add_u32 v0, v8, 4, v0")
    a(f"ds_read_b32 v{GA}, v2 offset:384")
    a(f"ds_read_b32 v{XV}, v2 offset:512")
    a(f"ds_read_b32 v{B2V}, v2 offset:256")
    a(f"ds_read_b32 v{GB}, v2 offset:128")
    a(f"ds_read_b32 v{SV}, v2")
    a(f"ds_read_b32 v{TV}, v2 offset:640")
    a(f"v_mov_b32 v144, v{vOV}")
    a(f"s_mov_b32 s9, {xrec + 16}")
    a("v_writelane_b32 v144, s9, 8")
    a(f"s_mov_b32 s9, {xrec}")
    a("v_writelane_b32 v144, s9, 16")
    for r in range(32):
        a(f"v_mov_b32 v{AD+r}, 0")
    if of2:
        a(f"v_bfe_u32 v21, v{vLANE}, 3, 1")
        a(f"v_mul_u32_u24 v22, {bpad}, v21")
        a(f"v_lshlrev_b32 v21, 14, v21")
        a(f"v_lshl_add_u32 v21, v8, 4, v21")
        a(f"v_lshl_add_u32 v22, v8, 3, v22")
        a(f"s_lshl_b32 s9, s{sWAVE}, 6")
        a(f"s_add_u32 s9, s9, {YB}")
        a(f"v_add_u32 v22, s9, v22")
        a(f"v_and_b32 v23, 1, v{vLANE}")
        a(f"v_mul_u32_u24 v23, {bpad}, v23")
        a(f"v_lshl_add_u32 v23, v7, 4, v23")
        a(f"v_add_u32 v23, {YB}, v23")
        a(f"s_lshl_b32 s9, s{sWAVE}, 7")
        a(f"s_add_u32 s10, s74, s9")
        sgate(10, [0, 16384])
        stamp(29)
        a("s_mov_b64 exec, 0xffff")
        pollx(lambda: a(f"buffer_load_dwordx4 {R(32)}, v21, {S4(rWS)}, s10 offen sc1"), lambda: check_regs(range(32, 36)))
        a(f"v_perm_b32 v16, v33, v32, s{sSELHI}")
        a(f"v_perm_b32 v17, v35, v34, s{sSELHI}")
        a("s_mov_b64 exec, 0xffff")
        a(f"ds_write_b64 v22, {R(16, 2)}")
        a(FULL)
        a("s_waitcnt lgkmcnt(0)")
        stamp(9)
        a("s_barrier")
    else:
        def ldOF():
            a(f"buffer_load_dwordx4 {R(32)}, v21, {S4(rWS)}, s74 offen sc1")
            a(f"buffer_load_dwordx4 {R(36)}, v21, {S4(rWS)}, s74 offen offset:512 sc1")
        if '1' in sg:
            a(f"s_lshl_b32 s9, s{sWAVE}, 7")
            a(f"s_add_u32 s10, s74, s9")
            sgate(10, [0, 16384])
            stamp(29)
        a("s_waitcnt vmcnt(0)")
        stamp(30)
        a("s_barrier")
        ldOF()
        for s in range(8):
            for h in range(2):
                a(f"ds_read_b64_tr_b16 {R(WOP + s*4 + h*2, 2)}, v20 offset:{WT + 32768*(s >> 2) + 8192*h + 512*(s & 3)}")
        stamp(26)
        pollx(ldOF, lambda: check_regs(range(32, 40)), pre_issued=True)
        stamp(9)
        for k in range(4):
            a(f"v_perm_b32 v{16+k}, v{33+2*k}, v{32+2*k}, s{sSELHI}")
        a(f"ds_write_b64 v22, {R(16, 2)}")
        a(f"ds_write_b64 v22, {R(18, 2)} offset:256")
        a("s_waitcnt lgkmcnt(0)")
    def wo_read(s):
        for h in range(2):
            a(f"ds_read_b64_tr_b16 {R(WOP + s*4 + h*2, 2)}, v20 offset:{WT + 32768*(s >> 2) + 8192*h + 512*(s & 3)}")
    gemv8(WOP, 104, 32, 23, wo_read if of2 else None)
    store_grp("buffer_store_dwordx4", R(32), 24, 73)
    a(FULL)
    stamp(10)
    a(f"s_cmp_ge_u32 s{sBI}, 112")
    a("s_cbranch_scc1 L_fin")
    a(f"s_cmp_ge_u32 s{sAI}, 8")
    a("s_cbranch_scc1 L_noh2")
    a(f"s_cmp_lg_u32 s{sWAVE}, 7")
    a("s_cbranch_scc1 L_h2d")
    a(f"s_add_u32 s10, s75, {XP}")
    a(f"s_add_u32 s11, s75, {XP + 65536}")
    a("s_mov_b32 s94, 0xff00ff00\ns_mov_b32 s95, 0xff00ff00")
    SM = "s[94:95]"
    a(f"v_cndmask_b32 v81, v{TV}, v{SV}, {SM}")
    a("v_mov_b32 v143, 0")

    def xloads():
        a(f"buffer_load_dwordx4 {R(84)}, v0, {S4(rWS)}, s10 offen sc1")
        a(f"buffer_load_dwordx4 {R(88)}, v0, {S4(rWS)}, s11 offen sc1")
    pollx(xloads, lambda: check_regs(range(84, 92)), slp=0)
    stamp(11)
    pk("add", 84, 84, 88)
    red4(84, (8,))
    rnd1(84, 84)
    a(f"v_mul_f32 v84, v{GA}, v84")
    rnd1(84, 84)
    a(f"v_add_f32 v84, v{XV}, v84")
    rnd1(XV, 84)
    a(f"v_mul_f32 v83, v{XV}, v{TV}")
    a(f"v_or_b32 v84, v{vTAG}, v{XV}")
    a(f"v_cndmask_b32 v82, v{XV}, v{TV}, {SM}")
    a(f"v_cndmask_b32 v80, v{XV}, v83, {SM}")
    a(f"v_cndmask_b32 v83, 1.0, v83, {SM}")
    a(f"v_mul_f32 v141, v80, v82")
    a(f"v_mul_f32 v142, v80, v81")
    a(f"v_mul_f32 v140, v80, v83")
    untr(84)
    publish_moments(140, 88, 84)
    if hu3:
        a(f"s_lshl_b32 s10, s{sXCD}, 7")
        a(f"s_lshl_b32 s9, s{sAI}, 4")
        a(f"s_add_u32 s10, s10, s9")
        a(f"s_add_u32 s10, s10, {LF}")
        a("s_mov_b64 exec, 1")
        store_grp("buffer_store_dwordx4", R(84), vOV, 10)
        a(FULL)
    stamp(12)
    a("s_cmp_lg_u32 s2, 0")
    a("s_cbranch_scc1 L_h2d")
    if pin:
        a("L_pin:")
        a("s_memrealtime s[96:97]")
        a("s_waitcnt lgkmcnt(0)")
        a("s_sub_u32 s96, s96, s98")
        a(f"s_cmp_lt_u32 s96, {pin}")
        a("s_cbranch_scc1 L_pin")
    a(f"v_mov_b32 v98, s{sEP}")
    a("v_mov_b32 v99, 0")
    a("s_mov_b64 exec, 1")
    a(f"buffer_store_dword v98, v99, {S4(rWS)}, 0 offen offset:{EPOCH} sc1")
    a("s_mov_b64 exec, -1")
    a("s_branch L_h2d")
    a("L_noh2:")
    if w2delay:
        a(f"s_sleep {w2delay}")
    a("L_h2d:")
    a("s_barrier")
    for e in range(8 - w2pre):
        w2row(e)
    if w2pre and not w2all:
        a(f"s_cmp_lt_u32 s{sAI}, 8")
        a("s_cbranch_scc1 L_w2d")
        for e in range(8 - w2pre, 8):
            w2row(e)
        a("L_w2d:")
    a(f"s_lshl_b32 s9, s{sBI}, 6")
    a(f"buffer_load_ushort v{B1V}, v31, {S4(rT1)}, s9 offen")
    a("s_waitcnt vmcnt(0)")

    def ldHP():
        a(f"buffer_load_dwordx4 {R(32)}, v25, {S4(rWS)}, s89 offen sc1")
    ldHP()
    for d in range(8):
        perm_operand(W2O + d * 4, W2R, d)
    lo(B1V, B1V)
    stamp(27)
    pollx(ldHP, lambda: check_regs(range(32, 36)), slp=0, pre_issued=True)
    stamp(23)
    red4(32, ())
    rnd1(136, 32)
    a(f"v_add_f32 v136, v136, v{B1V}")
    rnd1(136, 136)
    a("v_mul_f32 v137, v136, v136")
    a("v_mul_f32 v137, 0x3d372713, v137")
    a("v_fma_f32 v137, v137, v136, v136")
    a("v_mul_f32 v137, 0xc0135761, v137")
    a("v_exp_f32 v137, v137")
    a("v_add_f32 v137, 1.0, v137")
    a("v_rcp_f32 v137, v137")
    a("v_mul_f32 v136, v136, v137")
    a("v_cvt_pk_bf16_f32 v136, v136, v136")
    a("ds_write_b16 v26, v136")
    a("s_waitcnt lgkmcnt(0)")
    for d in range(8):
        m16 = (0x11 << (d & 3)) << (8 * (d >> 2))
        m32 = m16 | (m16 << 16)
        a(f"s_mov_b32 exec_lo, {m32:#x}\ns_mov_b32 exec_hi, {m32:#x}")
        a(f"ds_read_b128 {R(AD + 4*d)}, v27")
    a(FULL)
    for d in range(8):
        a(f"s_waitcnt lgkmcnt({7-d})")
        c = "0" if d == 0 else R(136)
        a(f"v_mfma_f32_16x16x32_bf16 {R(136)}, {R(AD + 4*d)}, {R(W2O + 4*d)}, {c}")
    for r in range(4):
        tag_trunc(136 + r, 136 + r)
    a(f"buffer_store_dwordx4 {R(136)}, v28, {S4(rWS)}, s14 offen sc1")
    stamp(28)
    a(f"s_cmp_ge_u32 s{sAI}, 8")
    a("s_cbranch_scc1 L_fin")
    srd(rT3, pOUT, 4096)
    a(f"s_mul_i32 s11, s{sWAVE}, {14*8192}")
    a(f"s_add_u32 s11, s11, s75")
    a(f"s_add_u32 s11, s11, {YP}")
    a(f"s_add_u32 s15, s11, {8*8192}")
    a(f"s_lshl_b32 s9, s{sWAVE}, 2")
    a(f"s_add_u32 s9, s9, {FB}")
    a(f"v_lshl_add_u32 v9, v11, 5, s9")
    a(f"v_lshlrev_b32 v8, 5, v11")
    a(f"v_add_u32 v8, {FB}, v8")
    a(f"s_lshr_b32 s10, s75, 1")
    a(f"v_lshlrev_b32 v10, 1, v11")
    for r in range(44, 48):
        a(f"v_mov_b32 v{r}, 0")
    a(f"s_mov_b32 s94, -1\ns_mov_b32 s95, 0xffff")

    def ldH4():
        a(f"buffer_load_dwordx4 {R(40)}, v0, {S4(rWS)}, s11 offen sc1")
        a(f"s_and_saveexec_b64 s[{sEX}:{sEX+1}], s[94:95]")
        a(f"buffer_load_dwordx4 {R(44)}, v0, {S4(rWS)}, s15 offen sc1")

    def ckH4():
        for r in range(44, 48):
            a(f"v_xor_b32 v{r}, v{vTAG}, v{r}")
        a(f"s_mov_b64 exec, s[{sEX}:{sEX+1}]")
        check_regs(range(40, 44))
        a(f"v_or3_b32 v{vBAD}, v{vBAD}, v44, v45")
        a(f"v_or3_b32 v{vBAD}, v{vBAD}, v46, v47")
    if h4ack:
        a("s_waitcnt vmcnt(0)")
    if h4delay:
        a(f"s_sleep {h4delay}")
    if '4' in sg:
        sgate(11, [k * 8192 for k in range(14)])
    pollx(ldH4, ckH4)
    stamp(13)
    pk("add", 40, 40, 44)
    red4(40, (8,))
    a("ds_write_b32 v9, v40")
    a("s_waitcnt lgkmcnt(0)")
    a("s_barrier")
    a(f"s_cmp_lg_u32 s{sWAVE}, 7")
    a("s_cbranch_scc1 L_fin")
    a(f"ds_read_b128 {R(40)}, v8")
    a(f"ds_read_b128 {R(44)}, v8 offset:16")
    a("s_waitcnt lgkmcnt(0)")
    pk("add", 40, 40, 44)
    a("v_add_f32 v40, v40, v41\nv_add_f32 v42, v42, v43\nv_add_f32 v40, v40, v42")
    rnd1(40, 40)
    a(f"v_add_f32 v40, v{B2V}, v40")
    rnd1(40, 40)
    a(f"v_mul_f32 v40, v{GB}, v40")
    rnd1(40, 40)
    a(f"v_add_f32 v40, v{XV}, v40")
    a("v_cvt_pk_bf16_f32 v40, v40, v40")
    a(MASK8)
    a(f"buffer_store_short v40, v10, {S4(rT3)}, s10 offen")
    a(FULL)

    a("s_branch L_fin")

    a("L_tailB:")
    a(f"s_cmp_ge_u32 s{sBI}, 112")
    a("s_cbranch_scc1 L_fin")
    W1O = 72
    XR, SB, CB, MR = 32, 36, 16, 136
    a(f"v_lshrrev_b32 v7, 4, v{vLANE}")
    a(f"s_and_b32 s9, s{sBI}, 3")
    a(f"s_lshl_b32 s13, s9, 10")
    a(f"s_lshl_b32 s10, s{sWAVE}, 12")
    a(f"s_add_u32 s13, s13, s10")
    a(f"s_add_u32 s15, s13, {X1 + 8192}")
    a(f"s_add_u32 s88, s13, {X1 + 16384}")
    a(f"s_mul_i32 s74, s13, {xstr}")
    a(f"s_add_u32 s74, s74, {XH}")
    a(f"v_lshrrev_b32 v6, 1, v{vLANE}")
    a(f"v_and_b32 v5, 1, v{vLANE}")
    a(f"v_lshlrev_b32 v20, 7, v6")
    a(f"v_lshl_add_u32 v20, v5, 4, v20")
    a(f"v_mul_u32_u24 v21, {128*xstr}, v6")
    a(f"v_lshl_add_u32 v21, v5, 4, v21")
    a(f"s_add_u32 s89, s10, {XS + 8192}")
    a(f"s_mul_i32 s91, s{sWAVE}, {4096*xstr}")
    a(f"s_add_u32 s91, s91, {XH + xrec}")
    a(f"s_mul_i32 s10, s{sWAVE}, {bpad}")
    a(f"s_add_u32 s10, s10, {YB}")
    a(f"v_lshl_add_u32 v22, v{vLANE}, 3, s10")
    a(f"v_lshlrev_b32 v23, 9, v5")
    a(f"v_lshl_add_u32 v24, v7, 4, v23")
    a(f"v_mul_u32_u24 v23, {bpad}, v5")
    a(f"v_lshl_add_u32 v23, v7, 4, v23")
    a(f"v_add_u32 v23, {YB}, v23")
    a(f"s_lshl_b32 s90, s{sBI}, 10")
    a(f"s_lshl_b32 s9, s{sWAVE}, 6")
    a(f"s_add_u32 s90, s90, s9")
    a(f"s_add_u32 s90, s90, {HP}")
    a(f"v_bfe_u32 v25, v{vLANE}, 2, 2")
    a(f"v_lshl_add_u32 v25, v7, 3, v25")
    a(f"v_lshlrev_b32 v25, 8, v25")
    a(f"v_and_b32 v6, 3, v{vLANE}")
    a(f"v_lshl_add_u32 v25, v6, 3, v25")
    a(f"s_lshl_b32 s9, s{sWAVE}, 5")
    a(f"v_add_u32 v25, s9, v25")
    swz_read(25, 6, 0)
    a(f"v_lshrrev_b32 v6, 3, v{vLANE}")
    a(f"v_and_b32 v8, 7, v{vLANE}")
    a(f"v_mul_u32_u24 v26, {128*xstr}, v6")
    a(f"v_lshl_add_u32 v26, v8, 4, v26")
    if ofack:
        a("s_waitcnt vmcnt(0)")
    a("s_barrier")
    vm = Vm(a)

    def ck_rec(regs):
        check_regs(regs)
        a(f"v_and_b32 v{vBAD}, s{sTM}, v{vBAD}")
        a(f"v_xor_b32 v{MR+3}, s{sEP}, v{MR+3}")
        a(f"v_or_b32 v{vBAD}, v{vBAD}, v{MR+3}")

    def ldS():
        a(f"buffer_load_dwordx4 {R(SB)}, v{vOV}, {S4(rWS)}, s15 offen sc1")
        a(f"buffer_load_dwordx4 {R(CB)}, v{vOV}, {S4(rWS)}, s88 offen sc1")
        a(f"buffer_load_dwordx4 {R(MR)}, v20, {S4(rWS)}, s89 offen sc1")
    LANE_OF = [0, 32, 16, 1, 33, 17]
    a(f"s_cmp_ge_u32 s{sWAVE}, 2")
    a("s_cbranch_scc1 L_nocst")
    pollx(ldS, lambda: ck_rec(list(range(SB, SB + 4)) + list(range(CB, CB + 4))), f2=True)
    red4(MR, (2, 4, 8))
    a(f"v_mul_f32 v{MR}, 0x3a800000, v{MR}")
    for k in range(5):
        a(f"v_readlane_b32 s9, v{MR}, {LANE_OF[k]}")
        a(f"v_mov_b32 v{144+k}, s9")
    a("L_nocst:")
    if w1delay:
        a(f"s_sleep {w1delay}")
    claim_all(w1thr)
    a("s_waitcnt vmcnt(0)")
    a("s_barrier")
    for s in range(8):
        for h in range(2):
            a(f"ds_read_b64_tr_b16 {R(W1O + s*4 + h*2, 2)}, v25 offset:{WT + 8192*s + 1024*h}")
    stamp(26)
    if '3' in sg:
        a(f"s_mul_i32 s10, s{sWAVE}, {512*xstr}")
        a(f"s_add_u32 s10, s10, {XH + xrec}")
        sgate(10, [(b * 32 + k) * 128 * xstr for b in range(2) for k in range(4)])
        a("s_barrier")
    a(f"s_cmp_ge_u32 s{sWAVE}, 2")
    a("s_cbranch_scc1 L_ydone")

    def ldH3():
        a(f"buffer_load_dwordx4 {R(XR)}, v26, {S4(rWS)}, s74 offen sc1")
        a(f"buffer_load_dwordx4 {R(MR)}, v21, {S4(rWS)}, s91 offen sc1")
    if hu3:
        a(f"s_lshl_b32 s10, s{sXCD}, 7")
        a(f"s_add_u32 s10, s10, {LF}")
        a("s_mov_b64 exec, 0xff")
        pollx(lambda: a(f"buffer_load_dwordx4 {R(XR)}, v{vOV}, {S4(rWS)}, s10 offen sc1"), lambda: check_regs(range(XR, XR + 4)))
        if hu3 > 1:
            a(f"s_sleep {hu3 - 1}")
    pollx(ldH3, lambda: ck_rec(range(XR, XR + 4)), f2=True, slp=h3slp)
    stamp(10)
    red4(MR, (2, 4, 8))
    a(f"v_mul_f32 v{MR}, 0x3a800000, v{MR}")
    for k, sr in enumerate((10, 11, 12, 13, 15, 88)):
        a(f"v_readlane_b32 s{sr}, v{MR}, {LANE_OF[k]}")

    def stats_tail(mean, ex2, t, mb, rs):
        a(f"v_fma_f32 v{ex2}, -v{mean}, v{mean}, v{ex2}")
        a(f"v_max_f32 v{ex2}, 0, v{ex2}")
        a(f"v_cvt_pk_bf16_f32 v{t}, v{mean}, v{ex2}")
        hi(ex2, t)
        lo(mb, t)
        a(f"v_add_f32 v{ex2}, 0x3727c5ac, v{ex2}")
        rnd1(ex2, ex2)
        a(f"v_sqrt_f32 v{ex2}, v{ex2}")
        rnd1(ex2, ex2)
        a(f"v_rcp_f32 v{rs}, v{ex2}")
    a("v_mov_b32 v5, s10\nv_mov_b32 v6, s11")
    stats_tail(5, 6, 60, 140, 141)
    a(f"v_fma_f32 v150, -v140, v144, s12")
    a(f"v_mul_f32 v151, v140, v145")
    a(f"v_fma_f32 v151, -2.0, s15, v151")
    a(f"v_fma_f32 v151, v140, v151, s13")
    a(f"v_fma_f32 v152, -v140, v146, s88")
    pk("add", XR, XR, 140, ybc=True, neg=True)
    for k in (0, 2):
        rnd2(XR + k, XR + k + 1, 60 + k // 2)
    a(f"v_fma_f32 v5, v141, v150, v147")
    a(f"v_mul_f32 v151, v141, v151")
    a(f"v_fma_f32 v151, 2.0, v152, v151")
    a(f"v_fma_f32 v6, v141, v151, v148")
    pk("mul", XR, XR, 141, ybc=True)
    for k in (0, 2):
        rnd2(XR + k, XR + k + 1, 60 + k // 2)
    stats_tail(5, 6, 62, 142, 143)
    pk("mul", XR, XR, CB)
    for k in (0, 2):
        rnd2(XR + k, XR + k + 1, 60 + k // 2)
    pk("add", XR, XR, SB)
    for k in (0, 2):
        rnd2(XR + k, XR + k + 1, 60 + k // 2)
    pk("add", XR, XR, 142, ybc=True, neg=True)
    for k in (0, 2):
        rnd2(XR + k, XR + k + 1, 60 + k // 2)
    pk("mul", XR, XR, 143, ybc=True)
    a(f"v_cvt_pk_bf16_f32 v28, v{XR}, v{XR+1}\nv_cvt_pk_bf16_f32 v29, v{XR+2}, v{XR+3}")
    a(f"ds_write_b64 v22, {R(28, 2)}")
    a("s_waitcnt lgkmcnt(0)")
    a("L_ydone:")
    a("s_barrier")
    gemv8(W1O, 136, 32, 23)
    store_grp("buffer_store_dwordx4", R(32), 24, 90)
    a(FULL)
    stamp(22)

    a("L_fin:")
    if stamps and dbgstamps:
        stamp(15)
        a(f"s_cmp_lg_u32 s2, {dbgstamps - 1}")
        a("s_cbranch_scc1 L_end")
        a("s_load_dwordx2 s[10:11], s[0:1], 104")
        a("s_waitcnt lgkmcnt(0)")
        srd(rT0, 10, 256)
        slots = [1, 2, 3, 4, 20, 6, 8, 24, 9, 10, 11, 12, 22, 13, 15, 21]
        a("v_mov_b32 v4, 200")
        for i, k in enumerate(slots):
            a(f"s_mov_b32 s9, {4*i}")
            a(f"v_writelane_b32 v4, s9, {k}")
        a(f"v_readlane_b32 s9, v{vST}, 0")
        a(f"v_subrev_u32 v5, s9, v{vST}")
        a(f"v_cmp_ne_u32 vcc, 0, v{vST}")
        a("s_mov_b64 exec, vcc")
        a(f"buffer_atomic_umax v5, v4, {S4(rT0)}, 0 offen sc1")
    elif stamps:
        stamp(15)
        a(f"s_mul_i32 s9, s2, {NWAVES}")
        a(f"s_add_u32 s9, s9, s{sW12}")
        a(f"s_lshl_b32 s9, s9, 7")
        a(f"s_add_u32 s9, s9, {STAMP}")
        a(f"v_lshlrev_b32 v4, 2, v{vLANE}")
        a("s_mov_b32 exec_hi, 0")
        a(f"buffer_store_dword v{vST}, v4, {S4(rWS)}, s9 offen")
    a("L_end:")
    a("s_endpgm")
    a('.section .rodata,"a"')
    a(".p2align 6")
    a(f".amdhsa_kernel {NAME}_kernel")
    for l in (".amdhsa_next_free_vgpr 168", ".amdhsa_next_free_sgpr 102", ".amdhsa_accum_offset 168",
              ".amdhsa_group_segment_fixed_size 0", ".amdhsa_kernarg_size 120", ".amdhsa_user_sgpr_count 2",
              ".amdhsa_user_sgpr_kernarg_segment_ptr 1", ".amdhsa_system_sgpr_workgroup_id_x 1",
              ".amdhsa_float_denorm_mode_32 3"):
        a(l)
    a(".end_amdhsa_kernel")
    return pre + a.finish()


if __name__ == "__main__":
    out = sys.argv[1] if len(sys.argv) > 1 else f"cdna_kernels/{NAME}.s"
    kw = {}
    for arg in sys.argv[2:]:
        k, v = arg.split("=")
        kw[k] = eval(v)
    open(out, "w").write(gen(**kw))
```

```python
import sys
from asmlib import Asm, Vm

NAME = "adaLN_cond__gqa_block_cached__mixer_channel_mlp__decode"

EPOCH = 0
ML = 0x1000
X1 = 0x9000
MODP = 0x140000
QP = 0x30000
MA = 0xB0000
HP = 0xE0000
XP = 0x100000
DUAL = 0x90000
OF = 0x500000
QFN = 0x80000
XS = 0x88000
XH = 0x180000
LF = 0x90000
XID = 0x78000
OP = 0x200000
YP = 0x300000
STAMP = 0x800000
WS_BYTES = 0x10000000
WT = 0
OC = 0x10000
QB = 0x18400
HB = 0x18C00
ZB = 0x18E00
MX = 0x19000
LX = 0x19100
OB = 0x10000
ST = 0x19600
YB = 0x19800
RED = 0x1A800
H1B = 0x1B000
QFL = 0x1B400
XB = 0x1B480
FB = 0x1B800
LDS_BYTES = 0x1BC00
TAGM = 0x3ff
T4 = 3
NWAVES = 12

sWAVE, sL, sXCD, sIDX, sAI, sTAG = 3, 4, 5, 6, 7, 8
pX, pK, pV, pWQ, pWO, pW1, pB1, pW2, pB2, pC, pWM, pOUT, pWS = 16, 18, 20, 22, 24, 28, 30, 32, 34, 36, 38, 40, 42
rK, rV, rWS, rT0, rT1, rT2, rT3 = 44, 48, 52, 56, 60, 64, 68
sDU = 72
sSELLO, sSELHI, sHI, sLOG2E, sSCALE, sSPIN, sEP, sTM = 76, 77, 78, 79, 80, 81, 82, 83
sEX = 84
sBI = 86
sKV = 87
sW12 = 100
sLOC = 101
vLANE, vOK, vOV = 1, 2, 3
vBAD, vTAG, vST = 12, 13, 14


DOC = '''
;   (XCC id exchange) that all its workgroups share one L2; otherwise everything is written through (sc1).
'''


def gen(stamps=False, dbgstamps=False, codewarm=True, spin=200000, sleep=0, nt="nt", w1_early=True,
        thr=4, thr2=4, thrq=0, thrb=0, thrv=6, notail=False, quiet=0, tlbw=0, w2pre=1, w2all=0, of2=1, ofack=0, fold=1, swz=1, nsrv=16, hu3=1, h4ack=1, sg='1', sgslp=2, bpad=576, kvmap=0, roti=1, v0lds=0, nohelp=0, w1delay=0, w1thr=0, pin=0, fill=0, mbgate=0, kgate=0, bpre=0, w2delay=0, wpre=0, xmask=0, xk=1, xv=2, ofstr=1, xstr=33, onest=1, w2x2=0, pipe='', spread=0, ackst=0, pslp=2, w1pre=3, ovl=1, w1late=1, h3slp=None, h3split=0, fullrec=0, ptall='mqfdoxy', wq_dyn=1, fine=1, qpol='sc1', ptpol='sc1', agate=1, xdelay=0, lateb=0, skip='', hpt=0, prew=0, b2stage=1, h4delay=0, pretouch=0, noloc=0, noma=0, bdelay=0, adelay=0, nomodfin=0, pure=0, klin=0, vearly=0, fake=0, attdma=True, thrw=3, cslp=0, w1pol=None):
    a = Asm()
    hdr = open(f"cdna_kernels/{NAME}.s.ref").read().split("\n")
    head = [l for l in hdr if l.startswith(";") and "@launch" not in l]
    pre = "\n".join(head) + f"\n; @launch grid=(256,1,1) block=({64*NWAVES},1,1) lds={LDS_BYTES}" + DOC
    a('.amdgcn_target "amdgcn-amd-amdhsa--gfx950"')
    a(".text")
    a(f".globl {NAME}_kernel")
    a(".p2align 8")
    a(f".type {NAME}_kernel,@function")
    a(f"{NAME}_kernel:")

    def srd(d, p, n):
        a(f"s_mov_b32 s{d}, s{p}\ns_mov_b32 s{d+1}, s{p+1}\ns_mov_b32 s{d+2}, {n}\ns_mov_b32 s{d+3}, 0x20000")

    def R(b, n=4):
        return f"v[{b}:{b+n-1}]"

    def S4(b):
        return f"s[{b}:{b+3}]"

    def stamp(k):
        if stamps == 1 or (stamps == 2 and k in (8, 15)):
            a(f"s_memrealtime s[96:97]\ns_waitcnt lgkmcnt(0)\nv_writelane_b32 v{vST}, s96, {k}")

    def lo(d, p):
        a(f"v_lshlrev_b32 v{d}, 16, v{p}")

    def hi(d, p):
        a(f"v_and_b32 v{d}, s{sHI}, v{p}")

    def rnd1(d, s):
        a(f"v_cvt_pk_bf16_f32 v{d}, v{s}, v{s}")
        lo(d, d)

    def rnd2(x, y, t):
        a(f"v_cvt_pk_bf16_f32 v{t}, v{x}, v{y}")
        lo(x, t)
        hi(y, t)

    def tag_round(d, s):
        a(f"v_add_u32 v{d}, 0x200, v{s}")
        a(f"v_bfi_b32 v{d}, s{sTM}, v{vTAG}, v{d}")

    def tag_trunc(d, s):
        a(f"v_bfi_b32 v{d}, s{sTM}, v{vTAG}, v{s}")

    def check_regs(regs, first=True):
        for r in regs:
            a(f"v_xor_b32 v{r}, v{vTAG}, v{r}")
        regs = list(regs)
        if first:
            a(f"v_or_b32 v{vBAD}, v{regs[0]}, v{regs[1]}")
            regs = regs[2:]
        for i in range(0, len(regs), 2):
            a(f"v_or3_b32 v{vBAD}, v{vBAD}, v{regs[i]}, v{regs[i+1]}")

    def dpp_add(d, s_rot, s1, ror):
        a(f"v_add_f32_dpp v{d}, v{s_rot}, v{s1} row_ror:{ror} row_mask:0xf bank_mask:0xf")

    def dpp_max(d, s_rot, s1, ror):
        a(f"v_max_f32_dpp v{d}, v{s_rot}, v{s1} row_ror:{ror} row_mask:0xf bank_mask:0xf")

    def allred(x, t, op, which):
        for w in which:
            a(f"v_mov_b32 v{t}, v{x}")
            a(f"v_permlane{w}_swap_b32 v{x}, v{t}")
            a(f"{op} v{x}, v{x}, v{t}")

    def red4(b, rors):
        a(f"v_permlane32_swap_b32 v{b}, v{b+1}")
        a(f"v_permlane32_swap_b32 v{b+2}, v{b+3}")
        a(f"v_add_f32 v{b}, v{b}, v{b+1}")
        a(f"v_add_f32 v{b+2}, v{b+2}, v{b+3}")
        a(f"v_permlane16_swap_b32 v{b}, v{b+2}")
        a(f"v_add_f32 v{b}, v{b}, v{b+2}")
        for r in rors:
            dpp_add(b, b, b, r)

    def perm_operand(dst, blk, d):
        sel = sSELHI if d & 1 else sSELLO
        for k in range(4):
            a(f"v_perm_b32 v{dst+k}, v{blk + (2*k+1)*4 + (d >> 1)}, v{blk + 2*k*4 + (d >> 1)}, s{sel}")

    def ln_stats(su, sq, t, mb, rs):
        a(f"v_mul_f32 v{su}, 0x3a800000, v{su}")
        a(f"v_mul_f32 v{sq}, 0x3a800000, v{sq}")
        a(f"v_fma_f32 v{sq}, -v{su}, v{su}, v{sq}")
        a(f"v_max_f32 v{sq}, 0, v{sq}")
        a(f"v_cvt_pk_bf16_f32 v{t}, v{su}, v{sq}")
        lo(mb, t)
        hi(sq, t)
        a(f"v_add_f32 v{sq}, 0x3727c5ac, v{sq}")
        rnd1(sq, sq)
        a(f"v_sqrt_f32 v{sq}, v{sq}")
        rnd1(sq, sq)
        a(f"v_rcp_f32 v{rs}, v{sq}")

    def ln_apply(x, y, t, mb, rs, last_round=True):
        a(f"v_sub_f32 v{x}, v{x}, v{mb}")
        a(f"v_sub_f32 v{y}, v{y}, v{mb}")
        rnd2(x, y, t)
        a(f"v_mul_f32 v{x}, v{x}, v{rs}")
        a(f"v_mul_f32 v{y}, v{y}, v{rs}")
        if last_round:
            rnd2(x, y, t)

    def check2(pairs_regs):
        first = True
        for b in pairs_regs:
            a(f"v_xor_b32 v{b+1}, s{sEP}, v{b+1}")
            a(f"v_xor_b32 v{b+3}, s{sEP}, v{b+3}")
            if first:
                a(f"v_or_b32 v{vBAD}, v{b+1}, v{b+3}")
                first = False
            else:
                a(f"v_or3_b32 v{vBAD}, v{vBAD}, v{b+1}, v{b+3}")

    def pollx(loads, check, f2=False, dual=False, pre_issued=False, between=None, slp=None, name=None):
        if name and name in skip:
            a("s_waitcnt vmcnt(0)")
            a("s_mov_b64 exec, -1")
            return
        lp, dn, ck = a.label("Lpoll"), a.label("Ldone"), a.label("Lchk")
        a(f"s_mov_b32 s{sSPIN}, {0 if (fake and slp in (cslp, 16)) else spin | 7}")
        if pre_issued:
            a(f"s_branch {ck}")
        inst = stamps == 1 and name in ("a", "b", "c", "x")
        if inst:
            a("s_mov_b32 s94, 0\ns_mov_b32 s95, 0")
        a(f"{lp}:")
        if inst:
            a("s_memrealtime s[90:91]")
        loads()
        if pre_issued != "landed":
            a(f"{ck}:")
        a("s_waitcnt vmcnt(0)")
        if pre_issued == "landed":
            a(f"{ck}:")
        if inst:
            a("s_memrealtime s[92:93]\ns_waitcnt lgkmcnt(0)")
            a("s_sub_u32 s92, s92, s90\ns_max_u32 s94, s94, s92\ns_add_u32 s95, s95, 1")
        check()
        if not f2:
            a(f"v_and_b32 v{vBAD}, s{sTM}, v{vBAD}")
        a(f"v_cmp_ne_u32 vcc, 0, v{vBAD}")
        a(f"s_cbranch_vccz {dn}")
        a("s_mov_b64 exec, vcc")
        sl = sleep if slp is None else slp
        if sl:
            a(f"s_sleep {sl}")
        a(f"s_sub_u32 s{sSPIN}, s{sSPIN}, 1")
        a(f"s_cbranch_scc0 {lp}")
        a(f"{dn}:")
        a("s_mov_b64 exec, -1")
        if inst:
            k = {"a": 26, "b": 28, "c": 28, "x": 26}[name]
            a(f"v_writelane_b32 v{vST}, s94, {k}\nv_writelane_b32 v{vST}, s95, {k+1}")

    def pollp(load, nl, final, sets, sm=94, init=None):
        lp, dn = a.label("Lpp"), a.label("Lppd")
        M = f"s[{sm}:{sm+1}]"
        n = 4 * nl
        a(f"s_mov_b64 {M}, exec")
        a(f"s_mov_b32 s{sSPIN}, {spin}")
        load(sets[0])
        if pslp:
            a(f"s_sleep {pslp}")
        load(sets[1])
        a(f"{lp}:")
        for k in range(3):
            if pslp:
                a(f"s_sleep {pslp}")
            load(sets[(k + 2) % 3])
            a(f"s_waitcnt vmcnt({2*nl})")
            b = sets[k]
            check_regs(range(b, b + n))
            a(f"v_and_b32 v{vBAD}, s{sTM}, v{vBAD}")
            a(f"v_cmp_eq_u32 vcc, 0, v{vBAD}")
            a("s_mov_b64 exec, vcc")
            for i in range(n):
                a(f"v_mov_b32 v{final[i]}, v{b+i}")
            a(f"s_andn2_b64 {M}, {M}, vcc")
            a(f"s_cbranch_scc0 {dn}")
            a(f"s_mov_b64 exec, {M}")
        a(f"s_sub_u32 s{sSPIN}, s{sSPIN}, 1")
        a(f"s_cbranch_scc0 {lp}")
        a(f"{dn}:")
        a("s_mov_b64 exec, -1")

    def sgate(soff, offs):
        lp, dn = a.label("Lsg"), a.label("Lsgd")
        a(f"s_add_u32 s92, s{pWS}, s{soff}")
        a(f"s_addc_u32 s93, s{pWS+1}, 0")
        a(f"s_mov_b32 s{sSPIN}, 2000")
        a(f"{lp}:")
        for i, o in enumerate(offs):
            a(f"s_load_dword s{16+i}, s[92:93], {o} glc")
        a("s_waitcnt lgkmcnt(0)")
        a(f"s_xor_b32 s9, s16, s{sTAG}")
        for i in range(1, len(offs)):
            a(f"s_xor_b32 s{16+i}, s{16+i}, s{sTAG}")
            a(f"s_or_b32 s9, s9, s{16+i}")
        a(f"s_and_b32 s9, s9, s{sTM}")
        a(f"s_cbranch_scc0 {dn}")
        if sgslp:
            a(f"s_sleep {sgslp}")
        a(f"s_sub_u32 s{sSPIN}, s{sSPIN}, 1")
        a(f"s_cbranch_scc0 {lp}")
        a(f"{dn}:")

    def dual_exchange(store_wt, loads, check):
        l1, ok, dn = a.label("Lfx"), a.label("Lfxok"), a.label("Lfxdn")
        a(f"s_mov_b32 s{sDU}, {DUAL}")
        a(f"s_mov_b32 s{sSPIN}, 24")
        a(f"{l1}:")
        loads()
        a("s_waitcnt vmcnt(0)")
        check()
        a(f"v_and_b32 v{vBAD}, s{sTM}, v{vBAD}")
        a(f"v_cmp_ne_u32 vcc, 0, v{vBAD}")
        a(f"s_cbranch_vccz {ok}")
        a("s_mov_b64 exec, vcc")
        a(f"s_sub_u32 s{sSPIN}, s{sSPIN}, 1")
        a(f"s_cbranch_scc0 {l1}")
        a(f"s_mov_b64 s[{sEX}:{sEX+1}], exec")
        store_wt()
        a(f"s_mov_b64 exec, s[{sEX}:{sEX+1}]")
        pollx(loads, check, dual=True)
        a(f"s_branch {dn}")
        a(f"{ok}:")
        store_wt()
        a("s_mov_b64 exec, -1")
        a(f"{dn}:")

    def store_grp(op, data, vaddr, soff):
        l1, l2 = a.label("Lsg"), a.label("Lsgd")
        a(f"s_cmp_eq_u32 s{sLOC}, 1")
        a(f"s_cbranch_scc1 {l1}")
        a(f"{op} {data}, v{vaddr}, {S4(rWS)}, s{soff} offen sc1")
        a(f"s_branch {l2}")
        a(f"{l1}:")
        a(f"{op} {data}, v{vaddr}, {S4(rWS)}, s{soff} offen")
        a(f"{l2}:")

    def prewrite(t, nl_log2, bshift, soff):
        if not prew:
            return
        for k in range(4):
            a(f"v_xor_b32 v{t+k}, 1, v{vTAG}")
        a(f"v_lshrrev_b32 v{t+4}, {nl_log2}, v{vLANE}")
        a(f"v_lshlrev_b32 v{t+4}, {bshift-4}, v{t+4}")
        a(f"v_and_or_b32 v{t+4}, v{vLANE}, {(1 << nl_log2) - 1}, v{t+4}")
        a(f"v_lshlrev_b32 v{t+4}, 4, v{t+4}")
        n = 2 << nl_log2
        a(f"s_mov_b64 exec, {(1 << n) - 1:#x}" if n < 32 else "s_mov_b32 exec_hi, 0")
        a(f"buffer_store_dwordx4 {R(t)}, v{t+4}, {S4(rWS)}, s{soff} offen")
        a("s_mov_b64 exec, -1")

    def store_dual(op, data, vaddr, soff, off=0):
        a(f"s_add_u32 s9, s{soff}, {DUAL}")
        a(f"{op} {data}, v{vaddr}, {S4(rWS)}, s9 offen offset:{off}")
        a(f"{op} {data}, v{vaddr}, {S4(rWS)}, s{soff} offen offset:{off} sc1")

    def untr(b):
        a(f"v_mov_b32 v{b+1}, v{b}")
        a(f"v_permlane32_swap_b32 v{b}, v{b+1}")
        a(f"v_mov_b32 v{b+2}, v{b}")
        a(f"v_mov_b32 v{b+3}, v{b+1}")
        a(f"v_permlane16_swap_b32 v{b}, v{b+2}")
        a(f"v_permlane16_swap_b32 v{b+1}, v{b+3}")

    def pk(op, d, x, y, n=4, ybc=False, neg=False):
        for k in range(0, n, 2):
            if ybc:
                yb, hi_ = y & ~1, y & 1
                m = f" op_sel:[0,{hi_}] op_sel_hi:[1,{hi_}]" + (" neg_lo:[0,1] neg_hi:[0,1]" if neg else "")
                a(f"v_pk_{op}_f32 {R(d+k, 2)}, {R(x+k, 2)}, {R(yb, 2)}{m}")
            else:
                a(f"v_pk_{op}_f32 {R(d+k, 2)}, {R(x+k, 2)}, {R(y+k, 2)}")

    def pkfma(d, x, f, n=4):
        fb, hi_ = f & ~1, f & 1
        for k in range(0, n, 2):
            a(f"v_pk_fma_f32 {R(d+k, 2)}, {R(x+k, 2)}, {R(fb, 2)}, {R(d+k, 2)} op_sel:[0,{hi_},0] op_sel_hi:[1,{hi_},1]")

    def swz_read(d, t, u):
        if swz:
            a(f"v_bfe_u32 v{t}, v{vLANE}, 2, 3")
            a(f"v_lshlrev_b32 v{t}, 5, v{t}")
            a(f"v_xor_b32 v{d}, v{d}, v{t}")

    def kperm(d, t):
        a(f"v_bfe_u32 v{d}, v{vLANE}, 4, 1")
        a(f"v_lshrrev_b32 v{t}, 5, v{vLANE}")
        a(f"v_lshl_or_b32 v{d}, v{d}, 1, v{t}")

    xrec = 128 * (xstr // 2)
    MASK8 = "s_mov_b32 exec_lo, 0x00ff00ff\ns_mov_b32 exec_hi, 0x00ff00ff"
    FULL = "s_mov_b64 exec, -1"

    a("s_cmp_ge_u32 s2, 256")
    a("s_cbranch_scc1 L_end")
    a("s_load_dwordx16 s[16:31], s[0:1], 0")
    a("s_load_dwordx8 s[32:39], s[0:1], 64")
    a("s_load_dwordx2 s[40:41], s[0:1], 96")
    a("s_load_dwordx2 s[42:43], s[0:1], 112")
    if pin:
        a("s_memrealtime s[98:99]")
    if stamps:
        a(f"v_mov_b32 v{vST}, 0")
        a("s_memrealtime s[98:99]")
    a(f"v_lshrrev_b32 v4, 6, v0")
    a(f"v_and_b32 v{vLANE}, 63, v0")
    a(f"v_readfirstlane_b32 s{sW12}, v4")
    a(f"s_and_b32 s{sXCD}, s2, 7")
    a(f"s_lshr_b32 s{sIDX}, s2, 3")
    a(f"s_lshl_b32 s{sL}, s{sXCD}, 5")
    a(f"s_add_u32 s{sL}, s{sL}, s{sIDX}")
    a(f"s_lshr_b32 s{sAI}, s{sIDX}, 1")
    a(f"s_lshr_b32 s9, s{sAI}, 2")
    a(f"s_lshl_b32 s9, s9, 3")
    a(f"s_add_u32 s9, s9, s{sXCD}")
    a(f"s_lshl_b32 s{sBI}, s9, 2")
    a(f"s_and_b32 s9, s{sAI}, 3")
    a(f"s_add_u32 s{sBI}, s{sBI}, s9")
    a(f"s_mov_b32 s{sSELLO}, 0x05040100")
    a(f"s_mov_b32 s{sSELHI}, 0x07060302")
    a(f"s_mov_b32 s{sHI}, 0xffff0000")
    a(f"s_mov_b32 s{sLOG2E}, 0x3fb8aa3b")
    a(f"s_mov_b32 s{sSCALE}, 0x3db504f3")
    a(f"s_mov_b32 s{sTM}, {TAGM}")
    a(f"v_lshrrev_b32 v7, 3, v{vLANE}")
    a(f"s_sub_u32 s{sWAVE}, s{sW12}, 4")
    a(f"s_cmp_lg_u32 s{sW12}, 0")
    a("s_cbranch_scc1 L_noinit")
    a(f"v_lshlrev_b32 v4, 2, v{vLANE}")
    a(f"v_add_u32 v4, {ZB}, v4")
    a("v_mov_b32 v5, 0")
    a("ds_write_b32 v4, v5")
    a(f"ds_write_b32 v4, v5 offset:{QFL - ZB - 128}")
    a("L_noinit:")

    def kargs():
        a("s_waitcnt lgkmcnt(0)")
        if stamps:
            a(f"v_writelane_b32 v{vST}, s98, 0")

    def load_epoch():
        a(f"s_load_dword s{sEP}, s[{pWS}:{pWS+1}], {EPOCH}")

    def get_tag():
        a("s_waitcnt lgkmcnt(0)")
        a(f"s_add_u32 s{sEP}, s{sEP}, 1")
        a(f"s_and_b32 s{sTAG}, s{sEP}, {TAGM}")
        a(f"v_mov_b32 v{vTAG}, s{sTAG}")

    def wait_q():
        lp, dn = a.label("Lwq"), a.label("Lwqd")
        a(f"v_mov_b32 v4, {QFL}")
        a(f"s_mov_b32 s{sSPIN}, {spin*20}")
        a(f"{lp}:")
        a("ds_read_b32 v5, v4")
        a("s_waitcnt lgkmcnt(0)")
        a("v_cmp_ne_u32 vcc, 0, v5")
        a(f"s_cbranch_vccnz {dn}")
        a("s_sleep 1")
        a(f"s_sub_u32 s{sSPIN}, s{sSPIN}, 1")
        a(f"s_cbranch_scc0 {lp}")
        a(f"{dn}:")

    def wait_n(T):
        if T:
            a(f"s_waitcnt vmcnt({T-1})")

    def mod_tile(ngrp, srow0, scol, T, after_issue, before_issue):
        ACC, PT, W = 32, 64, 72
        vm = Vm(a)
        a(f"s_mul_i32 s10, s{srow0}, 12288")
        a(f"s_add_u32 s10, s10, s{scol}")
        a(f"s_mov_b32 s9, {8*12288}")
        a(f"v_mul_lo_u32 v8, v7, s9")
        a(f"v_and_b32 v9, 7, v{vLANE}")
        a(f"v_lshl_add_u32 v8, v9, 4, v8")
        a(f"v_bfe_u32 v10, v{vLANE}, 2, 1")
        a(f"v_lshlrev_b32 v10, 11, v10")
        a(f"v_lshl_add_u32 v10, v7, 4, v10")
        a(f"s_lshl_b32 s11, s{srow0}, 1")
        before_issue()
        srd(rT0, pWM, 12582912)
        srd(rT1, pC, 4096)
        for q4 in range(ngrp):
            tc = vm.issue(f"buffer_load_dwordx4 {R(ACC + q4*4)}, v10, {S4(rT1)}, s11 offen offset:{q4*128}")
        toks = {}

        def grp(q4):
            for e in range(8):
                a(f"s_add_u32 s9, s10, {(64*q4+e)*12288}")
                wait_n(T)
                toks[q4] = vm.issue(f"buffer_load_dwordx4 {R(W + (q4 % 3)*32 + e*4)}, v8, {S4(rT0)}, s9 offen {nt}")
        for q4 in range(min(ngrp, 3)):
            grp(q4)
        after_issue()
        if pure == 1:
            if ngrp == 4:
                vm.wait(toks[0])
                grp(3)
            a("s_waitcnt vmcnt(0)")
            a("s_branch L_fin")
        vm.wait(tc)
        a(f"s_mov_b32 s9, 0xbfb8aa3b")
        for i in range(4 * ngrp):
            lo(4, ACC + i)
            hi(5, ACC + i)
            a(f"v_mul_f32 v6, s9, v4\nv_mul_f32 v11, s9, v5")
            a(f"v_exp_f32 v6, v6\nv_exp_f32 v11, v11")
            a(f"v_add_f32 v6, 1.0, v6\nv_add_f32 v11, 1.0, v11")
            a(f"v_rcp_f32 v6, v6\nv_rcp_f32 v11, v11")
            a(f"v_mul_f32 v4, v4, v6\nv_mul_f32 v5, v5, v11")
            a(f"v_cvt_pk_bf16_f32 v{16+i}, v4, v5")
        a(f"v_and_b32 v11, 3, v{vLANE}")
        a(f"v_bfe_u32 v10, v{vLANE}, 4, 1")
        a(f"v_lshl_add_u32 v9, v10, 2, v11")
        a(f"v_lshrrev_b32 v10, 5, v{vLANE}")
        a(f"v_lshl_add_u32 v9, v9, 1, v10")
        a(f"v_bfe_u32 v10, v{vLANE}, 2, 1")
        for q4 in range(ngrp):
            vm.wait(toks[q4])
            for d in range(8):
                t = PT + (d & 1) * 4
                perm_operand(t, W + (q4 % 3) * 32, d)
                c = "0" if q4 == 0 else R(ACC + d * 4)
                a(f"v_mfma_f32_16x16x32_bf16 {R(ACC + d*4)}, {R(t)}, {R(16 + q4*4)}, {c}")
            if q4 + 3 < ngrp:
                grp(q4 + 3)
        O = 72
        for d in range(4):
            for r in range(4):
                a(f"v_permlane32_swap_b32 v{ACC + d*4 + r}, v{ACC + (d+4)*4 + r}")
        for d in range(4):
            for r in range(4):
                dpp_add(O + r * 4 + d, ACC + (d + 4) * 4 + r, ACC + d * 4 + r, 8)
        for r in range(1, 4):
            a(f"v_cmp_eq_u32 vcc, {r}, v11")
            for d in range(4):
                a(f"v_cndmask_b32 v{O+d}, v{O+d}, v{O + r*4 + d}, vcc")

    def tag4(d):
        a(f"v_add_u32 v{d}, {(T4+1)//2}, v{d}")
        a(f"v_bfi_b32 v{d}, {T4}, v{vTAG}, v{d}")

    def check4(regs):
        regs = list(regs)
        for r in regs:
            a(f"v_xor_b32 v{r}, v15, v{r}")
        a(f"v_or_b32 v{vBAD}, v{regs[0]}, v{regs[1]}")
        for i in range(2, len(regs), 2):
            a(f"v_or3_b32 v{vBAD}, v{vBAD}, v{regs[i]}, v{regs[i+1]}")
        a(f"v_and_b32 v{vBAD}, {T4}, v{vBAD}")
        a(f"v_or_b32_dpp v{vBAD}, v{vBAD}, v{vBAD} quad_perm:[1,0,3,2] row_mask:0xf bank_mask:0xf")
        a(f"v_or_b32_dpp v{vBAD}, v{vBAD}, v{vBAD} quad_perm:[2,3,0,1] row_mask:0xf bank_mask:0xf")
        a(f"v_or_b32_dpp v{vBAD}, v{vBAD}, v{vBAD} row_half_mirror row_mask:0xf bank_mask:0xf")

    def lds_wait(addr, val, cmp="eq"):
        lp, dn = a.label("Lw"), a.label("Lwd")
        a(f"v_mov_b32 v4, {addr}")
        a(f"s_mov_b32 s{sSPIN}, {spin*20}")
        a(f"{lp}:")
        a("ds_read_b32 v5, v4")
        a("s_waitcnt lgkmcnt(0)")
        a(f"v_cmp_{cmp}_u32 vcc, {val}, v5")
        a(f"s_cbranch_vccnz {dn}")
        a("s_sleep 1")
        a(f"s_sub_u32 s{sSPIN}, s{sSPIN}, 1")
        a(f"s_cbranch_scc0 {lp}")
        a(f"{dn}:")

    def get_loc():
        lp, dn = a.label("Lw"), a.label("Lwd")
        a(f"v_mov_b32 v4, {QFL+8}")
        a(f"s_mov_b32 s{sSPIN}, {spin*20}")
        a(f"{lp}:")
        a("ds_read_b32 v5, v4")
        a("s_waitcnt lgkmcnt(0)")
        a(f"v_cmp_ne_u32 vcc, 0, v5")
        a(f"s_cbranch_vccnz {dn}")
        a("s_sleep 1")
        a(f"s_sub_u32 s{sSPIN}, s{sSPIN}, 1")
        a(f"s_cbranch_scc0 {lp}")
        a(f"{dn}:")
        a(f"v_readfirstlane_b32 s{sLOC}, v5")

    def publish_moments(M, soff, with_quad=None):
        red4(M, ())
        a(f"v_add_f32_dpp v{M}, v{M}, v{M} quad_perm:[1,0,3,2] row_mask:0xf bank_mask:0xf")
        a(f"v_add_f32_dpp v{M}, v{M}, v{M} quad_perm:[2,3,0,1] row_mask:0xf bank_mask:0xf")
        a(f"v_add_f32_dpp v{M}, v{M}, v{M} row_half_mirror row_mask:0xf bank_mask:0xf")
        untr(M)
        a(f"v_mov_b32 v{M+3}, s{sEP}")
        if with_quad is not None:
            a("s_mov_b64 exec, 0xff")
            for k in range(4):
                a(f"v_mov_b32 v{M+k}, v{with_quad+k}")
            a("s_mov_b64 exec, 0x101ff")
            a(f"buffer_store_dwordx4 {R(M)}, v{M+4}, {S4(rWS)}, s{soff} offen sc1")
            a(FULL)
            return
        a("s_mov_b64 exec, 0x101")
        a(f"buffer_store_dwordx4 {R(M)}, v{M+4}, {S4(rWS)}, s{soff} offen sc1")
        a(FULL)

    def moment_addr(d, kp, soff, kind):
        a(f"v_lshlrev_b32 v{d}, 1, v{vLANE}")
        a(f"s_add_u32 s{soff}, s75, {XS + kind*8192}")

    def hopB1():
        a(f"v_and_b32 v15, {T4}, v{vTAG}")
        a(f"v_lshrrev_b32 v7, 3, v{vLANE}")
        a(f"v_and_b32 v8, 7, v{vLANE}")
        a(f"v_lshlrev_b32 v9, 15, v7")
        a(f"v_lshl_add_u32 v9, v8, 4, v9")
        a(f"s_lshl_b32 s10, s{sL}, 7")
        a(f"s_add_u32 s11, s10, {QFN}")
        a(f"s_add_u32 s10, s10, {QP}")
        a(f"v_lshlrev_b32 v10, 4, v{vLANE}")
        get_loc()
        lds_wait(QFL + 4, 2)
        if bdelay:
            a(f"s_sleep {bdelay}")
        pollx(lambda: a(f"buffer_load_dwordx4 {R(32)}, v9, {S4(rWS)}, s10 offen sc1"), lambda: check4(range(32, 36)),
              f2=True, slp=cslp, name='b')
        red4(32, (8,))
        a("v_cvt_pk_bf16_f32 v32, v32, v32")
        a(f"v_bfi_b32 v32, s{sHI}, v32, v{vTAG}")
        untr(32)
        a("s_mov_b64 exec, 0xff")
        store_grp("buffer_store_dwordx4", R(32), 10, 11)
        a(FULL)
        a(f"v_mov_b32 v4, {QFL+4}\nv_mov_b32 v5, 3")
        a("ds_write_b32 v4, v5")
        a("s_waitcnt lgkmcnt(0)")
        stamp(14)
        a("s_branch L_fin")

    def hopB2():
        a(f"v_lshlrev_b32 v9, 4, v{vLANE}")
        a(f"s_lshl_b32 s10, s{sXCD}, 12")
        a(f"s_add_u32 s10, s10, {QFN}")
        lds_wait(QFL + 4, 3)

        def ld():
            for i in range(4):
                a(f"buffer_load_dwordx4 {R(32 + i*4)}, v9, {S4(rWS)}, s10 offen offset:{i*1024} sc1")
        pollx(ld, lambda: check_regs(range(32, 48)), slp=cslp, name='c')
        for e in range(8):
            a(f"v_perm_b32 v{48+e}, v{33+2*e}, v{32+2*e}, s{sSELHI}")
        a(f"v_and_b32 v9, 7, v{vLANE}")
        a(f"v_lshlrev_b32 v9, 5, v9")
        a(f"v_bfe_u32 v10, v{vLANE}, 3, 2")
        a(f"v_lshl_add_u32 v9, v10, 3, v9")
        a(f"v_lshrrev_b32 v10, 5, v{vLANE}")
        a(f"v_lshl_add_u32 v9, v10, 8, v9")
        a(f"v_add_u32 v9, {QB}, v9")
        for i in range(4):
            a(f"ds_write_b64 v9, {R(48 + 2*i, 2)} offset:{i*512}")
        a(f"v_mov_b32 v4, {QFL}\nv_mov_b32 v5, 2")
        a("s_waitcnt lgkmcnt(0)")
        a("ds_write_b32 v4, v5")
        a("s_waitcnt lgkmcnt(0)")
        stamp(4)
        a("s_branch L_fin")

    def hopB(half):
        a(f"v_and_b32 v15, {T4}, v{vTAG}")
        a(f"v_lshlrev_b32 v9, 4, v{vLANE}")
        a(f"s_lshl_b32 s10, s{sXCD}, 12")
        a(f"s_add_u32 s10, s10, {QP + half*2048}")
        for i in range(bdelay):
            a("s_sleep 37")

        def ld():
            for p in range(8):
                a(f"s_add_u32 s9, s10, {p*32768}")
                for i in range(2):
                    a(f"buffer_load_dwordx4 {R(32 + p*8 + i*4)}, v9, {S4(rWS)}, s9 offen offset:{i*1024} sc1")
        pollx(ld, lambda: check4(range(32, 96)), f2=True, slp=cslp)
        for st in (32, 16, 8):
            for e in range(st):
                a(f"v_add_f32 v{32+e}, v{32+e}, v{32+st+e}")
        for e in range(4):
            a(f"v_cvt_pk_bf16_f32 v{40+e}, v{32+2*e}, v{33+2*e}")
        a(f"v_lshlrev_b32 v9, 3, v{vLANE}")
        a(f"v_add_u32 v9, {QB + half*1024}, v9")
        for i in range(2):
            a(f"ds_write_b64 v9, {R(40 + 2*i, 2)} offset:{i*512}")
        a(f"v_mov_b32 v4, {QFL}\nv_mov_b32 v5, 1")
        a("s_waitcnt lgkmcnt(0)")
        a("s_mov_b64 exec, 1")
        a("ds_add_u32 v4, v5")
        a(FULL)
        a("s_waitcnt lgkmcnt(0)")
        stamp(4)
        a("s_branch L_fin")

    def f2_pack(src, dst):
        for k in range(4):
            a(f"v_mov_b32 v{dst+2*k}, v{src+k}")
            a(f"v_mov_b32 v{dst+2*k+1}, s{sEP}")

    def consumer_ids():
        a(f"s_lshr_b32 s12, s{sAI}, 2")
        a(f"s_and_b32 s13, s{sAI}, 3")
        a(f"s_lshl_b32 s13, s13, 5")
        a(f"s_lshl_b32 s9, s{sXCD}, 7")
        a(f"s_add_u32 s13, s13, s9")
        a(f"s_lshl_b32 s75, s12, 12")
        a(f"s_lshl_b32 s9, s13, 2")
        a(f"s_add_u32 s75, s75, s9")

    def w1_dma(vm, T, lo_=0, hi_=8, va=8, vb=9, sa=10, sb=11):
        srd(rT0, pW1, 7340032)
        a(f"v_lshrrev_b32 v{va}, 4, v{vLANE}")
        a(f"v_mul_u32_u24 v{va}, 7168, v{va}")
        a(f"v_and_b32 v{vb}, 15, v{vLANE}")
        a(f"v_lshl_add_u32 v{va}, v{vb}, 4, v{va}")
        a(f"s_and_b32 s{sa}, s{sBI}, 3")
        a(f"s_lshl_b32 s{sa}, s{sa}, 3")
        a(f"s_add_u32 s{sa}, s{sa}, s{sWAVE}")
        a(f"s_mul_i32 s{sa}, s{sa}, {32*7168}")
        a(f"s_lshr_b32 s{sb}, s{sBI}, 2")
        a(f"s_lshl_b32 s{sb}, s{sb}, 8")
        a(f"s_add_u32 s{sa}, s{sa}, s{sb}")
        a(f"s_lshl_b32 s{sb}, s{sWAVE}, 13")
        t = None
        for i in range(lo_, hi_):
            a(f"s_add_u32 m0, s{sb}, {WT + i*1024}")
            a(f"s_add_u32 s9, s{sa}, {4*i*7168}")
            wait_n(T)
            t = vm.issue(f"buffer_load_dwordx4 v{va}, {S4(rT0)}, s9 offen {nt} lds")
        return t

    if nohelp:
        a(f"s_cmp_lt_u32 s{sW12}, 4")
        a("s_cbranch_scc1 L_end")
    a(f"s_cmp_eq_u32 s{sW12}, 1")
    a("s_cbranch_scc1 L_moda")
    a(f"s_cmp_ge_u32 s{sW12}, 4")
    a("s_cbranch_scc1 L_att")
    a(f"s_cmp_eq_u32 s{sW12}, 0")
    a("s_cbranch_scc1 L_chain")
    a(f"s_cmp_eq_u32 s{sW12}, 2")
    a("s_cbranch_scc1 L_red")

    if codewarm:
        lw = a.label("Lnowarm")
        a(f"s_cmp_lt_u32 s{sIDX}, 30")
        a(f"s_cbranch_scc1 {lw}")
        a("s_getpc_b64 s[10:11]")
        a("L_pc0:")
        a(f"v_lshlrev_b32 v8, 4, v{vLANE}")
        a(f"s_mov_b32 s9, 0")
        lp = a.label("Lwarm")
        a(f"{lp}:")
        a(f"v_min_u32 v9, L_end-L_pc0-16, v8")
        a(f"global_load_dwordx4 {R(64)}, v9, s[10:11]")
        a(f"v_add_u32 v8, 1024, v8")
        a(f"s_add_u32 s9, s9, 1024")
        a(f"s_cmp_lt_u32 s9, L_end-L_pc0")
        a(f"s_cbranch_scc1 {lp}")
        a(f"{lw}:")
    a(f"v_lshrrev_b32 v11, 4, v{vLANE}")
    a(f"s_mov_b32 s9, {8*12288}")
    a(f"v_mul_lo_u32 v8, v11, s9")
    a(f"v_and_b32 v9, 15, v{vLANE}")
    a(f"v_lshl_add_u32 v8, v9, 4, v8")
    a(f"v_and_b32 v6, 1, v{vLANE}")
    a(f"v_lshlrev_b32 v10, 11, v6")
    a(f"v_lshl_add_u32 v10, v11, 4, v10")
    a(f"s_and_b32 s12, s{sIDX}, 7")
    a(f"s_lshr_b32 s14, s{sIDX}, 3")
    a(f"s_mul_i32 s10, s12, {128*12288}")
    a(f"s_lshl_b32 s14, s14, 3")
    a(f"s_add_u32 s14, s14, s{sXCD}")
    a(f"s_lshl_b32 s9, s14, 8")
    a(f"s_add_u32 s10, s10, s9")
    a(f"s_add_u32 s10, s10, 4096")
    a(f"s_lshl_b32 s11, s12, 8")
    a(f"s_lshl_b32 s15, s12, 15")
    a(f"s_lshl_b32 s9, s14, 9")
    a(f"s_add_u32 s15, s15, s9")
    a(f"s_add_u32 s15, s15, {MODP}")
    kargs()
    load_epoch()
    srd(rWS, pWS, WS_BYTES)
    srd(rT0, pWM, 12582912)
    srd(rT1, pC, 4096)
    a("s_barrier")
    if mbgate:
        lds_wait(QFL + 4, mbgate, "le")
    BO, ACC, PTm, Wm = 16, 32, 64, 72
    vm = Vm(a)
    for blk in range(4):
        tc = vm.issue(f"buffer_load_dwordx4 {R(BO + blk*4)}, v10, {S4(rT1)}, s11 offen offset:{blk*64}")
    toks = {}

    def mblk(blk):
        for e in range(8):
            a(f"s_add_u32 s9, s10, {(32*blk+e)*12288}")
            wait_n(thrb)
            toks[blk] = vm.issue(f"buffer_load_dwordx4 {R(Wm + (blk % 3)*32 + e*4)}, v8, {S4(rT0)}, s9 offen {nt}")
    mblk(0)
    mblk(1)
    mblk(2)
    get_tag()
    vm.wait(tc)
    a(f"s_mov_b32 s13, 0xbfb8aa3b")
    for blk in range(4):
        for i in range(4 * blk, 4 * blk + 4):
            lo(4, BO + i)
            hi(5, BO + i)
            a(f"v_mul_f32 v2, s13, v4\nv_mul_f32 v3, s13, v5")
            a(f"v_exp_f32 v2, v2\nv_exp_f32 v3, v3")
            a(f"v_add_f32 v2, 1.0, v2\nv_add_f32 v3, 1.0, v3")
            a(f"v_rcp_f32 v2, v2\nv_rcp_f32 v3, v3")
            a(f"v_mul_f32 v4, v4, v2\nv_mul_f32 v5, v5, v3")
            a(f"v_cvt_pk_bf16_f32 v{BO+i}, v4, v5")
        vm.wait(toks[blk])
        for d in range(8):
            t = PTm + (d & 1) * 4
            perm_operand(t, Wm + (blk % 3) * 32, d)
            c = "0" if blk == 0 else R(ACC + d * 4)
            a(f"v_mfma_f32_16x16x32_bf16 {R(ACC + d*4)}, {R(t)}, {R(BO + blk*4)}, {c}")
        if blk + 3 < 4:
            mblk(blk + 3)
    a(f"v_bfe_u32 v9, v{vLANE}, 1, 1")
    a(f"v_bfe_u32 v10, v{vLANE}, 2, 2")
    a("v_cmp_eq_u32 vcc, 1, v9")
    for i in range(16):
        a(f"v_cndmask_b32 v{ACC+i}, v{ACC+i}, v{ACC+16+i}, vcc")
    for r in range(1, 4):
        a(f"v_cmp_eq_u32 vcc, {r}, v10")
        for k in range(4):
            a(f"v_cndmask_b32 v{ACC+4*k}, v{ACC+4*k}, v{ACC+4*k+r}, vcc")
    for k in range(4):
        tag_round(16 + k, ACC + 4 * k)
    a(f"v_lshl_add_u32 v10, v11, 2, v10")
    a(f"v_lshl_add_u32 v9, v10, 1, v9")
    a(f"v_lshlrev_b32 v9, 4, v9")
    a(f"v_lshl_add_u32 v9, v6, 14, v9")
    get_loc()
    store_grp("buffer_store_dwordx4", R(16), 9, 15)
    stamp(16)
    a(f"s_bitcmp1_b32 s{sIDX}, 0")
    a("s_cbranch_scc1 L_fin")
    a(f"s_cmp_ge_u32 s{sAI}, 8")
    a("s_cbranch_scc1 L_fin")
    GA, XV, B2V = 32, 48, 49
    lds_wait(QFL, 2)
    consumer_ids()
    srd(rT0, pX, 4096)
    srd(rT1, pB2, 2048)
    kperm(4, 5)
    a(f"v_and_b32 v8, 7, v{vLANE}")
    a(f"v_lshl_add_u32 v11, v8, 2, v4")
    a(f"v_lshlrev_b32 v5, 1, v11")
    a(f"s_lshr_b32 s9, s75, 1")
    a(f"buffer_load_ushort v{XV}, v5, {S4(rT0)}, s9 offen")
    a(f"s_lshl_b32 s9, s13, 1")
    a(f"buffer_load_ushort v{B2V}, v5, {S4(rT1)}, s9 offen")
    a(f"v_lshlrev_b32 v10, 15, v7")
    a(f"v_lshl_add_u32 v10, v8, 4, v10")
    a(f"s_lshl_b32 s14, s12, 14")
    a(f"s_lshl_b32 s9, s13, 2")
    a(f"s_add_u32 s14, s14, s9")

    def gloads():
        for k in range(4):
            a(f"s_add_u32 s9, s14, {MODP + k*4096}")
            a(f"buffer_load_dwordx4 {R(GA + 4*k)}, v10, {S4(rWS)}, s9 offen sc1")
    pollx(gloads, lambda: check_regs(range(GA, GA + 16)), slp=16, name='m')
    for k in range(4):
        red4(GA + 4 * k, (8,))
    rnd2(GA, GA + 12, 5)
    rnd2(GA + 4, GA + 8, 5)
    a(f"v_add_f32 v{GA+8}, 1.0, v{GA+8}")
    rnd1(GA + 8, GA + 8)
    a(f"v_or_b32 v{GA+4}, v{vTAG}, v{GA+4}\nv_or_b32 v{GA+8}, v{vTAG}, v{GA+8}")
    a(f"v_lshlrev_b32 v9, 2, v11")
    a(f"s_add_u32 s9, s75, {X1 + 8192}")
    a(f"s_add_u32 s10, s75, {X1 + 16384}")
    a(f"v_mov_b32 v60, v{GA+4}\nv_mov_b32 v64, v{GA+8}")
    untr(60)
    untr(64)
    a(f"v_lshlrev_b32 v68, 4, v{vLANE}")
    a("s_mov_b64 exec, 0xff")
    a(f"buffer_store_dwordx4 {R(60)}, v68, {S4(rWS)}, s9 offen sc1")
    a(f"buffer_store_dwordx4 {R(64)}, v68, {S4(rWS)}, s10 offen sc1")
    a(FULL)
    lo(XV, XV)
    lo(B2V, B2V)
    a(f"v_add_u32 v5, {XB}, v9")
    a(f"ds_write_b32 v5, v{GA+12} offset:128")
    a(f"ds_write_b32 v5, v{B2V} offset:256")
    a(f"ds_write_b32 v5, v{GA} offset:384")
    a(f"ds_write_b32 v5, v{XV} offset:512")
    a(f"v_xor_b32 v{GA+4}, v{vTAG}, v{GA+4}\nv_xor_b32 v{GA+8}, v{vTAG}, v{GA+8}")
    a(f"ds_write_b32 v5, v{GA+4}")
    a(f"ds_write_b32 v5, v{GA+8} offset:640")
    moment_addr(56, 4, 10, 1)
    a(f"v_mov_b32 v52, v{GA+8}")
    a(f"v_mul_f32 v53, v{GA+8}, v{GA+8}")
    a(f"v_mul_f32 v54, v{GA+8}, v{GA+4}")
    a(f"v_mov_b32 v55, 0")
    a("s_mov_b32 exec_lo, 0xff00ff00\ns_mov_b32 exec_hi, 0xff00ff00")
    a(f"v_mov_b32 v52, v{GA+4}")
    a(f"v_mul_f32 v53, v{GA+4}, v{GA+4}")
    a("v_mov_b32 v54, 0")
    a(FULL)
    publish_moments(52, 10)
    a("s_waitcnt lgkmcnt(0)")
    a("s_branch L_fin")

    a("L_moda:")
    a("s_setprio 3")
    a(f"s_lshr_b32 s12, s{sIDX}, 2")
    a(f"s_lshl_b32 s13, s12, 7")
    a(f"s_bfe_u32 s14, s{sIDX}, 0x10001")
    a(f"s_and_b32 s15, s{sIDX}, 1")
    a(f"s_lshl_b32 s88, s14, 11")
    a(f"s_lshl_b32 s9, s{sXCD}, 8")
    a(f"s_add_u32 s88, s88, s9")
    a(f"s_lshl_b32 s9, s15, 7")
    a(f"s_add_u32 s88, s88, s9")

    def after_a():
        a("s_barrier")
        load_epoch()
        srd(rWS, pWS, WS_BYTES)
        get_tag()
        a(f"s_lshl_b32 s13, s{sXCD}, 14")
        a(f"s_lshl_b32 s9, s12, 11")
        a(f"s_add_u32 s13, s13, s9")
        a(f"s_lshl_b32 s9, s14, 10")
        a(f"s_add_u32 s13, s13, s9")
        a(f"s_lshl_b32 s9, s15, 8")
        a(f"s_add_u32 s13, s13, s9")
        a(f"s_add_u32 s13, s13, {MA}")
        prewrite(64, 4, 9, 13)
    mod_tile(2, 13, 88, 0, after_a, kargs)
    for d in range(4):
        tag4(72 + d)
    a(f"v_lshlrev_b32 v9, 4, v9")
    a(f"v_lshl_add_u32 v9, v10, 9, v9")
    a(MASK8)
    a(f"buffer_store_dwordx4 {R(72)}, v9, {S4(rWS)}, s13 offen")
    a(FULL)
    a(f"v_mov_b32 v4, {QFL+12}\nv_mov_b32 v5, 1")
    a("ds_write_b32 v4, v5")
    stamp(1)
    a("s_getreg_b32 s88, hwreg(HW_REG_XCC_ID)")
    a("s_lshl_b32 s88, s88, 12")
    if xdelay:
        a(f"s_sleep {xdelay}")
    else:
        a("s_waitcnt vmcnt(0)")
    a(f"v_and_b32 v8, 31, v{vLANE}")
    a(f"v_lshlrev_b32 v8, 7, v8")
    a(f"s_lshl_b32 s10, s{sXCD}, 12")
    a(f"s_add_u32 s10, s10, {XID}")
    pollx(lambda: a(f"buffer_load_dwordx4 {R(32)}, v8, {S4(rWS)}, s10 offen sc1"), lambda: check_regs(range(32, 36)), name='x')
    if 'x' in skip:
        a("v_mov_b32 v32, s88")
    a("v_cmp_ne_u32 vcc, s88, v32")
    a("s_cmp_eq_u64 vcc, 0")
    a(f"s_cselect_b32 s{sLOC}, {2 if noloc else 1}, 2")
    a(f"v_mov_b32 v4, {QFL+8}\nv_mov_b32 v5, s{sLOC}")
    a("ds_write_b32 v4, v5")
    stamp(25)
    a(f"s_cmp_eq_u32 s{sLOC}, 1")
    a("s_cbranch_scc1 L_maok")
    a(MASK8)
    a(f"buffer_store_dwordx4 {R(72)}, v9, {S4(rWS)}, s13 offen sc1")
    a(FULL)
    a("L_maok:")
    if b2stage:
        hopB2()
    else:
        lds_wait(QFL + 4, 2)
        hopB(0)

    a("L_red:")
    kargs()
    srd(rWS, pWS, WS_BYTES)
    load_epoch()
    a("s_barrier")
    a("s_setprio 3")
    vm = Vm(a)
    srd(rT1, pX, 4096)
    a(f"v_lshrrev_b32 v10, 5, v{vLANE}")
    a(f"v_and_b32 v11, 31, v{vLANE}")
    a(f"v_lshlrev_b32 v9, 11, v10")
    a(f"v_lshl_add_u32 v9, v11, 4, v9")
    for q in range(4):
        vm.issue(f"buffer_load_dwordx4 {R(72 + q*4)}, v9, {S4(rT1)}, 0 offen offset:{q*512}")
    a(f"v_lshlrev_b32 v9, 11, v10")
    a(f"v_lshl_add_u32 v9, v11, 3, v9")
    a(f"s_lshl_b32 s11, s{sXCD}, 8")
    tx = vm.issue(f"buffer_load_dwordx2 {R(88, 2)}, v9, {S4(rT1)}, s11 offen")
    a("s_getreg_b32 s88, hwreg(HW_REG_XCC_ID)")
    a("s_lshl_b32 s88, s88, 12")
    a(f"v_lshlrev_b32 v4, 4, v{vLANE}")
    a(f"s_lshl_b32 s9, s{sL}, 7")
    a(f"s_add_u32 s9, s9, {XID}")
    get_tag()
    a(f"v_or_b32 v96, s88, v{vTAG}")
    a("v_mov_b32 v97, v96\nv_mov_b32 v98, v96\nv_mov_b32 v99, v96")
    a("s_mov_b64 exec, 0xff")
    if 'X' not in skip:
        a(f"buffer_store_dwordx4 {R(96)}, v4, {S4(rWS)}, s9 offen sc1")
    a(FULL)
    a(f"s_add_u32 s9, s9, {QFN - XID}")
    prewrite(100, 2, 6, 9)
    if pure == 1:
        a("s_branch L_fin")
    def touch(n, lo_bits, hi_shift, base):
        a(f"v_lshrrev_b32 v101, {lo_bits}, v{vLANE}")
        a(f"v_lshlrev_b32 v101, {hi_shift - 7}, v101")
        a(f"v_and_or_b32 v101, v{vLANE}, {(1 << lo_bits) - 1}, v101")
        a(f"v_lshlrev_b32 v101, 7, v101")
        a(f"s_add_u32 s9, s9, {base}")
        if n < 64:
            a(f"s_mov_b64 exec, {(1 << n) - 1:#x}" if n < 32 else "s_mov_b32 exec_hi, 0")
        a(f"buffer_load_dword v100, v101, {S4(rWS)}, s9 offen")
        if n < 64:
            a(FULL)
    if 'm' in ptall:
        a(f"s_lshl_b32 s9, s{sXCD}, 14\ns_lshl_b32 s10, s{sAI}, 10\ns_add_u32 s9, s9, s10")
        a(f"s_and_b32 s10, s{sIDX}, 1\ns_lshl_b32 s10, s10, 8\ns_add_u32 s9, s9, s10")
        touch(4, 1, 9, MA)
    if 'q' in ptall:
        a(f"s_lshl_b32 s9, s{sXCD}, 15\ns_lshl_b32 s10, s{sIDX}, 9\ns_add_u32 s9, s9, s10")
        touch(8, 2, 14, QP)
    if 'f' in ptall:
        for base in (QFN, OF, ML):
            a(f"s_mul_i32 s9, s{sL}, {128 * (ofstr if base == OF else 1)}")
            touch(1, 0, 7, base)
    if 'd' in ptall:
        a(f"s_and_b32 s9, s{sIDX}, 7\ns_lshl_b32 s9, s9, 15")
        a(f"s_lshr_b32 s10, s{sIDX}, 3\ns_lshl_b32 s10, s10, 12\ns_add_u32 s9, s9, s10")
        a(f"s_lshl_b32 s10, s{sXCD}, 9\ns_add_u32 s9, s9, s10")
        touch(8, 2, 14, MODP)
    if 'o' in ptall:
        a(f"s_lshl_b32 s9, s{sXCD}, 17\ns_lshl_b32 s10, s{sIDX}, 9\ns_add_u32 s9, s9, s10")
        touch(32, 2, 14, OP)
    a(f"s_bitcmp1_b32 s{sIDX}, 0")
    a("s_cbranch_scc1 L_tB")
    if 'x' in ptall:
        a(f"s_lshl_b32 s9, s{sAI}, 13\ns_lshl_b32 s10, s{sXCD}, 9\ns_add_u32 s9, s9, s10")
        touch(8, 2, 12, XP)
    a(f"s_cmp_ge_u32 s{sBI}, 112")
    a("s_cbranch_scc1 L_tD")
    if 'y' in ptall:
        a(f"s_lshl_b32 s9, s{sBI}, 13")
        touch(64, 6, 13, YP)
    if 'x' in ptall:
        a(f"s_cmp_ge_u32 s{sAI}, 8")
        a("s_cbranch_scc1 L_tD")
        consumer_ids()
        a("s_mov_b32 s9, s75")
        touch(2, 0, 13, X1 + 8192)
        a("s_mov_b32 s9, s75")
        touch(1, 0, 13, XS + 8192)
        a(f"s_mul_i32 s9, s75, {xstr}")
        touch(1, 0, 7, XH)
        a(f"s_mul_i32 s9, s75, {xstr}")
        touch(1, 0, 7, XH + xrec)
    a("s_branch L_tD")
    a("L_tB:")
    a(f"s_cmp_ge_u32 s{sBI}, 112")
    a("s_cbranch_scc1 L_tD")
    if 'x' in ptall:
        a(f"s_lshl_b32 s9, s{sBI}, 10")
        touch(8, 3, 10, HP)
    a("L_tD:")
    if tlbw:
        a("v_mov_b32 v101, 0")
        a("s_mov_b64 exec, 1")
        a(f"s_lshl_b32 s9, s{sL}, 18")
        for ptr, size, off in ((pV, 0x4000000, "s9"), (pWO, 8388608, "0"), (pW1, 7340032, "0"), (pW2, 7340032, "0"), (pB1, 7168, "0"), (pOUT, 4096, "0")):
            srd(rT2, ptr, size)
            a(f"buffer_load_dword v100, v101, {S4(rT2)}, {off} offen {nt}")
        a(FULL)
    nmin = 6 * bool(tlbw) + ('X' not in skip) + ('m' in ptall) + ('q' in ptall) + 3 * ('f' in ptall) + ('d' in ptall) + ('o' in ptall)
    a(f"s_waitcnt vmcnt({nmin})")
    a("v_mov_b32 v4, 0\nv_mov_b32 v5, 0")
    for i in range(16):
        lo(6, 72 + i)
        hi(8, 72 + i)
        a(f"v_add_f32 v4, v4, v6\nv_fmac_f32 v5, v6, v6")
        a(f"v_add_f32 v4, v4, v8\nv_fmac_f32 v5, v8, v8")
    for r in (1, 2, 4, 8):
        dpp_add(4, 4, 4, r)
        dpp_add(5, 5, 5, r)
    allred(4, 6, "v_add_f32", (16,))
    allred(5, 6, "v_add_f32", (16,))
    ln_stats(4, 5, 6, 8, 9)
    for i in range(2):
        lo(24 + 2 * i, 88 + i)
        hi(25 + 2 * i, 88 + i)
        ln_apply(24 + 2 * i, 25 + 2 * i, 6, 8, 9)
    a(f"v_and_b32 v15, {T4}, v{vTAG}")
    a(f"v_lshlrev_b32 v9, 4, v{vLANE}")
    a(f"s_lshl_b32 s10, s{sXCD}, 14")
    a(f"s_add_u32 s10, s10, {MA}")

    if agate:
        lds_wait(QFL + 12, 1)
    if adelay:
        a(f"s_sleep {adelay}")

    def ldA():
        for p in range(8):
            if p % 2 == 0:
                a(f"s_add_u32 s9, s10, {p*2048}")
            for wh in range(2):
                a(f"buffer_load_dwordx4 {R(32 + p*8 + wh*4)}, v9, {S4(rWS)}, s9 offen offset:{(p % 2)*2048 + wh*1024} sc1")
    pollx(ldA, lambda: check4(range(32, 96)), f2=True, slp=cslp, name='a')
    stamp(2)
    for st in (32, 16, 8):
        for e in range(st):
            a(f"v_add_f32 v{32+e}, v{32+e}, v{32+st+e}")
    for i in range(2):
        s0, c0, l0 = 32 + 2 * i, 36 + 2 * i, 24 + 2 * i
        rnd2(s0, s0 + 1, 6)
        rnd2(c0, c0 + 1, 6)
        a(f"v_add_f32 v{c0}, 1.0, v{c0}\nv_add_f32 v{c0+1}, 1.0, v{c0+1}")
        rnd2(c0, c0 + 1, 6)
        a(f"v_mul_f32 v{c0}, v{c0}, v{l0}\nv_mul_f32 v{c0+1}, v{c0+1}, v{l0+1}")
        rnd2(c0, c0 + 1, 6)
        a(f"v_add_f32 v{c0}, v{c0}, v{s0}\nv_add_f32 v{c0+1}, v{c0+1}, v{s0+1}")
        a(f"v_cvt_pk_bf16_f32 v{40+i}, v{c0}, v{c0+1}")
    a(f"v_lshlrev_b32 v9, 3, v{vLANE}")
    a(f"v_add_u32 v9, {HB}, v9")
    a(f"ds_write_b64 v9, {R(40, 2)}")
    a(f"v_mov_b32 v4, {QFL+4}\nv_mov_b32 v5, 1")
    a("s_waitcnt lgkmcnt(0)")
    a("ds_write_b32 v4, v5")
    stamp(17)
    if b2stage:
        hopB1()
    else:
        lds_wait(QFL + 4, 2)
        hopB(1)

    a("L_chain:")
    a("s_setprio 3")
    W = 40
    a(f"v_lshrrev_b32 v11, 4, v{vLANE}")
    a(f"v_lshlrev_b32 v8, 13, v11")
    a(f"v_and_b32 v15, 15, v{vLANE}")
    a(f"v_lshl_add_u32 v8, v15, 4, v8")
    if swz:
        a(f"v_lshlrev_b32 v6, 5, v11")
        a(f"v_xor_b32 v8, v8, v6")
        a(f"v_xor_b32 v9, 0x80, v8")
    a(f"s_lshl_b32 s10, s{sXCD}, 20")
    a(f"s_lshl_b32 s11, s{sIDX}, 8")
    a(f"s_add_u32 s10, s10, s11")
    a(f"s_mov_b32 m0, {WT}")
    kargs()
    srd(rT0, pWQ, 8388608)
    srd(rWS, pWS, WS_BYTES)
    load_epoch()
    a("s_barrier")
    a("L_wql:")
    for n in range(4):
        wait_n(thrq)
        a(f"buffer_load_dwordx4 v{9 if (swz and n >= 2) else 8}, {S4(rT0)}, s10 offen {nt} lds")
        a("s_add_u32 m0, m0, 1024")
        a("s_add_u32 s10, s10, 32768")
    a(f"s_cmp_lt_u32 m0, {WT + 32768}")
    a("s_cbranch_scc1 L_wql")
    get_tag()
    a(f"v_and_b32 v6, 1, v{vLANE}")
    a(f"v_lshlrev_b32 v8, 8, v6")
    a(f"v_lshl_add_u32 v8, v11, 4, v8")
    a(f"v_add_u32 v8, {HB}, v8")
    a(f"v_bfe_u32 v7, v{vLANE}, 2, 2")
    a(f"v_lshl_add_u32 v7, v11, 3, v7")
    a(f"v_lshlrev_b32 v7, 8, v7")
    a(f"v_and_b32 v10, 3, v{vLANE}")
    a(f"v_lshl_add_u32 v7, v10, 3, v7")
    swz_read(7, 10, 0)
    a(f"v_lshrrev_b32 v9, 1, v15")
    a(f"v_lshl_add_u32 v9, v11, 3, v9")
    a(f"v_lshlrev_b32 v9, 4, v9")
    a(f"v_lshl_add_u32 v9, v6, 14, v9")
    a(f"s_lshl_b32 s10, s{sXCD}, 15")
    a(f"s_lshl_b32 s11, s{sIDX}, 9")
    a(f"s_add_u32 s10, s10, s11")
    a(f"s_add_u32 s10, s10, {QP}")
    a("s_waitcnt vmcnt(0)")
    stamp(18)
    for ct in range(8):
        a(f"v_xor_b32 v10, {32*ct}, v7")
        for k in range(4):
            for h in range(2):
                a(f"ds_read_b64_tr_b16 {R(W + ct*16 + k*4 + h*2, 2)}, v10 offset:{WT + 8192*k + 1024*h}")
    lds_wait(QFL + 4, 1)
    stamp(19)
    for k in range(4):
        a(f"ds_read_b128 {R(16 + k*4)}, v8 offset:{k*64}")
    a("s_waitcnt lgkmcnt(0)")

    def pick(ct):
        m32 = (3 << (2 * ct)) * 0x10001
        a(f"s_mov_b32 exec_lo, {m32:#x}\ns_mov_b32 exec_hi, {m32:#x}")
        for r in range(4):
            a(f"v_mov_b32 v{2+r}, v{32 + (ct & 1)*4 + r}")
        a(FULL)
    for ct in range(8):
        t = 32 + (ct & 1) * 4
        for k in range(4):
            a(f"v_mfma_f32_16x16x32_bf16 {R(t)}, {R(W + ct*16 + k*4)}, {R(16 + k*4)}, {'0' if k == 0 else R(t)}")
        if ct:
            pick(ct - 1)
    pick(7)
    for d in range(4):
        tag4(2 + d)
    if 'Q' not in skip:
        a(f"buffer_store_dwordx4 {R(2)}, v9, {S4(rWS)}, s10 offen {qpol}")
    a(f"v_mov_b32 v8, {QFL+4}\nv_mov_b32 v7, 2")
    a("ds_write_b32 v8, v7")
    a("s_waitcnt lgkmcnt(0)")
    stamp(3)
    if hpt:
        a(f"s_bitcmp1_b32 s{sIDX}, 0")
        a("s_cbranch_scc1 L_ptB")
        a(f"v_lshrrev_b32 v9, 1, v{vLANE}")
        a(f"v_lshlrev_b32 v9, 9, v9")
        a(f"v_and_b32 v10, 1, v{vLANE}")
        a(f"v_lshl_add_u32 v9, v10, 7, v9")
        a(f"s_lshr_b32 s9, s{sL}, 2")
        a(f"s_lshl_b32 s10, s9, 14")
        a(f"s_and_b32 s9, s{sIDX}, 3")
        a(f"s_lshl_b32 s9, s9, 7")
        a(f"s_add_u32 s10, s10, s9")
        a(f"s_add_u32 s10, s10, {OP}")
        a(f"buffer_load_dword v16, v9, {S4(rWS)}, s10 offen {ptpol}")
        a(f"v_bfe_u32 v9, v{vLANE}, 2, 2")
        a(f"v_lshlrev_b32 v9, 12, v9")
        a(f"v_and_b32 v10, 3, v{vLANE}")
        a(f"v_lshl_add_u32 v9, v10, 7, v9")
        a(f"s_lshl_b32 s10, s{sIDX}, 13")
        a(f"s_lshl_b32 s9, s{sXCD}, 9")
        a(f"s_add_u32 s10, s10, s9")
        a(f"s_add_u32 s10, s10, {XP}")
        a(f"buffer_load_dword v17, v9, {S4(rWS)}, s10 offen {ptpol}")
        a("s_branch L_fin")
        a("L_ptB:")
        a(f"v_and_b32 v9, 7, v{vLANE}")
        a(f"v_lshlrev_b32 v9, 7, v9")
        a(f"s_lshl_b32 s10, s{sBI}, 10")
        a(f"s_add_u32 s10, s10, {HP}")
        a(f"buffer_load_dword v16, v9, {S4(rWS)}, s10 offen {ptpol}")
    a("s_branch L_fin")

    QF, DT, PT, KV = 16, 24, 32, 40
    if pure >= 2:
        def drop(l):
            if "buffer_store" in l:
                if pure in (3, 4): return True
                if pure == 5 and "sc1" in l: return True
                if pure == 6 and "sc1" not in l: return True
            if "buffer_load" in l and "sc1" in l and pure in (2, 4, 5, 6): return True
            return False
        a.lines = [l for l in a.lines if not drop(l)]
    a("L_att:")
    if kvmap == 0:
        USTR = 32768
        a(f"s_lshl_b32 s{sKV}, s{sL}, 18")
        a(f"s_lshl_b32 s9, s{sWAVE}, 12")
    elif kvmap == 1:
        USTR = 1 << 20
        a(f"s_lshl_b32 s{sKV}, s{sXCD}, 23")
        a(f"s_lshl_b32 s9, s{sIDX}, 15")
        a(f"s_add_u32 s{sKV}, s{sKV}, s9")
        a(f"s_lshl_b32 s9, s{sWAVE}, 12")
    elif kvmap == 2:
        USTR = 1 << 20
        a(f"s_lshl_b32 s{sKV}, s{sXCD}, 23")
        a(f"s_lshl_b32 s9, s{sIDX}, 12")
        a(f"s_add_u32 s{sKV}, s{sKV}, s9")
        a(f"s_lshl_b32 s9, s{sWAVE}, 17")
    a(f"s_add_u32 s{sKV}, s{sKV}, s9")
    if roti:
        a(f"s_and_b32 s9, s{sIDX}, 7")
        a(f"s_mul_i32 s9, s9, {USTR}")
        a(f"s_add_u32 s{sKV}, s{sKV}, s9")
    a(f"v_lshlrev_b32 v{vOV}, 4, v{vLANE}")
    a(f"v_and_b32 v6, 3, v{vLANE}")
    a(f"v_lshlrev_b32 v6, 10, v6")
    a(f"v_bfe_u32 v5, v{vLANE}, 2, 1")
    a(f"v_lshl_add_u32 v6, v5, 8, v6")
    a(f"v_lshl_add_u32 v{vOK}, v7, 4, v6")
    if klin == 1:
        a(f"v_and_b32 v6, 7, v{vLANE}\nv_lshlrev_b32 v6, 8, v6\nv_lshl_add_u32 v{vOK}, v7, 4, v6")
    if klin == 2:
        a(f"v_mov_b32 v{vOK}, v{vOV}")
    a(f"v_mov_b32 v4, {QFL}")
    a("s_mov_b64 vcc, 0")
    kargs()
    srd(rK, pK, 0x4000000)
    if not lateb:
        srd(rV, pV, 0x4000000)
        srd(rWS, pWS, WS_BYTES)
        a("s_barrier")
    def tile_setup(va, vb, so, sp, skip):
        l1, l2 = a.label("Lts"), a.label("Lts")
        a(f"v_lshrrev_b32 v{va}, 4, v{vLANE}")
        a(f"v_and_b32 v{vb}, 15, v{vLANE}")
        a(f"s_bitcmp1_b32 s{sIDX}, 0")
        a(f"s_cbranch_scc1 {l1}")
        srd(rT2, pWO, 8388608)
        a("s_mov_b32 s20, 64")
        a("s_mov_b32 s16, 3\ns_mov_b32 s17, 4")
        a(f"s_lshl_b32 s{so}, s{sAI}, 19")
        a(f"s_lshl_b32 s9, s{sXCD}, 8")
        a(f"s_add_u32 s{so}, s{so}, s9")
        a(f"s_mov_b32 s{sp}, 2048")
        a(f"s_branch {l2}")
        a(f"{l1}:")
        a(f"s_cmp_ge_u32 s{sBI}, 112")
        a(f"s_cselect_b32 s20, 0, 64")
        a("s_mov_b32 s16, 0\ns_mov_b32 s17, 1")
        if swz:
            a(f"v_lshlrev_b32 v4, 1, v{va}")
            a(f"v_xor_b32 v{vb}, v{vb}, v4")
        srd(rT2, pW1, 7340032)
        a(f"s_and_b32 s{so}, s{sBI}, 3")
        a(f"s_mul_i32 s{so}, s{so}, {256*7168}")
        a(f"s_lshr_b32 s9, s{sBI}, 2")
        a(f"s_lshl_b32 s9, s9, 8")
        a(f"s_add_u32 s{so}, s{so}, s9")
        a(f"s_mov_b32 s{sp}, 7168")
        a(f"{l2}:")
        a(f"v_mul_lo_u32 v{va}, v{va}, s{sp}")
        a(f"v_lshl_add_u32 v{va}, v{vb}, 4, v{va}")
        a(f"s_lshl_b32 s{sp}, s{sp}, 2")

    def tile_rest(vm, va, so, sp, lo_, hi_):
        t = None
        a(f"s_add_u32 s11, s{sWAVE}, {8*lo_}")
        a(f"s_mul_i32 s9, s11, s{sp}")
        a(f"s_add_u32 s9, s9, s{so}")
        a(f"s_lshl_b32 m0, s11, 10")
        a(f"s_lshl_b32 s11, s{sp}, 3")
        for i in range(lo_, hi_):
            t = vm.issue(f"buffer_load_dwordx4 v{va}, {S4(rT2)}, s9 offen {nt} lds")
            if i + 1 < hi_:
                a(f"s_add_u32 m0, m0, 8192")
                a(f"s_add_u32 s9, s9, s11")
        return t

    def claim(fail, va=4, vb=5):
        a(f"v_mov_b32 v{va}, {QFL}\nv_mov_b32 v{vb}, 1")
        a("s_mov_b64 exec, 1")
        a(f"ds_add_rtn_u32 v{vb}, v{va}, v{vb} offset:16")
        a(FULL)
        a("s_waitcnt lgkmcnt(0)")
        a(f"v_readfirstlane_b32 s21, v{vb}")
        a(f"s_cmp_ge_u32 s21, s20")
        a(f"s_cbranch_scc1 {fail}")
        a("s_lshl_b32 m0, s21, 10")
        a("s_mul_i32 s9, s21, s19")
        a("s_add_u32 s9, s9, s18")
        if swz:
            a("s_lshr_b32 s22, s21, 1\ns_and_b32 s22, s22, s16\ns_lshl_b32 s22, s22, 5")
            a("s_lshr_b32 s21, s21, s17\ns_and_b32 s21, s21, 1\ns_lshl_b32 s21, s21, 7\ns_or_b32 s22, s22, s21")
            a(f"v_xor_b32 v{va}, s22, v2")
            a(f"buffer_load_dwordx4 v{va}, {S4(rT2)}, s9 offen {nt} lds")
        else:
            a(f"buffer_load_dwordx4 v2, {S4(rT2)}, s9 offen {nt} lds")

    def claim_all(T=0):
        lp, dn = a.label("Lca"), a.label("Lcad")
        a(f"{lp}:")
        wait_n(T)
        claim(dn)
        a(f"s_branch {lp}")
        a(f"{dn}:")

    if kgate:
        lds_wait(QFL + 20, 1)
        a(f"v_mov_b32 v4, {QFL}")
        a("s_mov_b64 vcc, 0")
    load_epoch()
    thr_n = [0]

    if xmask:
        a(f"s_lshr_b32 s74, {xmask}, s{sXCD}")

    def wait_x(T, extra):
        if xmask and T:
            lsk = a.label("Lx")
            a("s_bitcmp1_b32 s74, 0")
            a(f"s_cbranch_scc1 {lsk}")
            wait_n(T)
            a(f"{lsk}:")
            wait_n(T + extra)
        else:
            wait_n(T)

    def thr_wait():
        if thr2 == thr:
            wait_x(thr, xk)
            return
        thr_n[0] += 1
        lsk = a.label("Lthr")
        a(f"s_cbranch_vccnz {lsk}")
        if thr_n[0] % 2 == 0:
            a("ds_read_b32 v5, v4")
        a(f"s_waitcnt vmcnt({thr-1})")
        if thr_n[0] % 2 == 0:
            a("s_waitcnt lgkmcnt(0)")
            a("v_cmp_eq_u32 vcc, 2, v5")
        a(f"{lsk}:")
        wait_n(thr2)

    vm = Vm(a)
    order = [2, 3, 0, 1, 4, 5, 6, 7]
    pos = {s: i for i, s in enumerate(order)}
    tk = {}
    for s in order:
        a(f"s_xor_b32 s9, s{sKV}, {pos[s]*USTR}")
        for t in range(2):
            for h in range(2):
                if thr:
                    thr_wait()
                tk[s] = vm.issue(f"buffer_load_dwordx4 {R(KV + s*16 + t*8 + h*4)}, v{vOK}, {S4(rK)}, s9 offen offset:{(t*512 + h*128, t*2048 + h*128, t*2048 + h*1024)[klin]} {nt}")
                if lateb and vm.n == (lateb & 7):
                    srd(rV, pV, 0x4000000)
                    srd(rWS, pWS, WS_BYTES)
                    a("s_barrier")
    vblk = [KV + 32, KV + 64, KV + 96, KV + 32]
    tv = [None] * 4
    if v0lds:
        vblk = [KV + 96, KV + 32, KV + 64, KV + 96]
        for e in range(8):
            if e % 4 == 0:
                a(f"s_xor_b32 s9, s{sKV}, {(e//4)*USTR}")
                a(f"s_lshl_b32 s10, s{sWAVE}, 13")
                a(f"s_add_u32 m0, s10, {WT + (e//4)*4096}")
            thr_wait()
            tv[0] = vm.issue(f"buffer_load_dwordx4 v{vOV}, {S4(rV)}, s9 offen offset:{(e % 4)*1024} {nt} lds")

    def vload(v):
        for e in range(8):
            if e % 4 == 0:
                a(f"s_xor_b32 s9, s{sKV}, {(2*v + e//4)*USTR}")
            wait_n(thrv)
            tv[v] = vm.issue(f"buffer_load_dwordx4 {R(vblk[v] + e*4)}, v{vOV}, {S4(rV)}, s9 offen offset:{(e % 4)*1024} {nt}")
    vnext = [8 if v0lds else 0]

    def vslot():
        if not fine:
            return
        n = vnext[0]
        vnext[0] += 1
        v, e = n // 8, n % 8
        if e % 4 == 0:
            a(f"s_xor_b32 s{sDU}, s{sKV}, {(2*v + e//4)*USTR}")
        wait_x(thrv, xv)
        tv[v] = vm.issue(f"buffer_load_dwordx4 {R(vblk[v] + e*4)}, v{vOV}, {S4(rV)}, s{sDU} offen offset:{(e % 4)*1024} {nt}")
    stamp(20)
    if pure:
        vm.wait(tk[3]); vload(0); vm.wait(tk[5]); vload(1); vm.wait(tk[7]); vload(2); vm.wait(tv[0]); vload(3)
        a("s_waitcnt vmcnt(0)")
        stamp(8)
        a("s_branch L_fin")
    get_tag()
    tile_setup(2, 5, 18, 19, None)
    if fill:
        a("L_fill:")
        wait_n(thr)
        a(f"v_mov_b32 v4, {QFL}")
        a("ds_read_b32 v5, v4")
        a("s_waitcnt lgkmcnt(0)")
        a("v_cmp_eq_u32 vcc, 2, v5")
        a("s_cbranch_vccnz L_filld")
        claim("L_fillx")
        a("s_branch L_fill")
        a("L_fillx:")
    lds_wait(QFL, 2)
    a("L_filld:")
    stamp(5)
    a(f"v_and_b32 v8, 7, v{vLANE}")
    a(f"v_lshlrev_b32 v9, 8, v8")
    a(f"v_lshl_add_u32 v9, v7, 4, v9")
    a(f"v_add_u32 v9, {QB}, v9")
    a(f"ds_read_b128 {R(QF)}, v9")
    a(f"ds_read_b128 {R(QF+4)}, v9 offset:128")
    a("s_waitcnt lgkmcnt(0)")
    Sreg = [PT, PT + 4, KV, KV + 4, KV + 8, KV + 12, KV + 16, KV + 20]

    def qk_mfma(s, X, Y):
        vm.wait(tk[s])
        k0 = KV + s * 16
        a(f"v_mfma_f32_16x16x32_bf16 {R(X)}, {R(k0)}, {R(QF)}, 0")
        a(f"v_mfma_f32_16x16x32_bf16 {R(Y)}, {R(k0+8)}, {R(QF)}, 0")
        a(f"v_mfma_f32_16x16x32_bf16 {R(X)}, {R(k0+4)}, {R(QF+4)}, {R(X)}")
        a(f"v_mfma_f32_16x16x32_bf16 {R(Y)}, {R(k0+12)}, {R(QF+4)}, {R(Y)}")

    def qk_post(p, X, Y):
        S = Sreg[p]
        for r in range(4):
            a(f"v_permlane32_swap_b32 v{X+r}, v{Y+r}")
        for r in range(4):
            dpp_add(S + r, Y + r, X + r, 8)
        for r in (0, 2):
            rnd2(S + r, S + r + 1, 4)
            a(f"v_mul_f32 v{S+r}, s{sSCALE}, v{S+r}\nv_mul_f32 v{S+r+1}, s{sSCALE}, v{S+r+1}")
            rnd2(S + r, S + r + 1, 4)
        if p == 0:
            a(f"v_max3_f32 v5, v{S}, v{S+1}, v{S+2}")
            a(f"v_max_f32 v5, v5, v{S+3}")
        else:
            a(f"v_max3_f32 v5, v5, v{S}, v{S+1}")
            a(f"v_max3_f32 v5, v5, v{S+2}, v{S+3}")
    qk_mfma(2, PT, DT)
    qk_mfma(3, PT + 4, DT + 4)
    if not fine:
        vload(0)
    vslot()
    qk_post(0, PT, DT)
    vslot()
    qk_post(1, PT + 4, DT + 4)
    for s in (0, 1, 4, 5, 6, 7):
        vslot()
        qk_mfma(s, DT, DT + 4)
        if s == 5 and not fine:
            vload(1)
        qk_post(pos[s], DT, DT + 4)
    vslot()
    if v0lds:
        a(f"s_lshl_b32 s9, s{sWAVE}, 13")
        a(f"v_add_u32 v9, s9, v{vOV}")
        vm.wait(tv[0])
        for e in range(8):
            a(f"ds_read_b128 {R(vblk[0] + e*4)}, v9 offset:{WT + e*1024}")
    allred(5, 6, "v_max_f32", (32, 16))
    a(f"v_lshlrev_b32 v9, 5, v8")
    a(f"v_add_u32 v10, {MX}, v9")
    a(f"s_lshl_b32 s9, s{sWAVE}, 2")
    a(f"v_add_u32 v11, s9, v10")
    a("s_mov_b64 exec, 0xff")
    a(f"ds_write_b32 v11, v5")
    a(FULL)
    if vearly and not fine:
        vload(2)
    vslot()
    a("s_waitcnt lgkmcnt(0)")
    stamp(6)
    a("s_barrier")
    vslot()
    a(f"v_mov_b32 v4, {QFL+8}")
    a(f"ds_read_b128 {R(16)}, v10")
    a(f"ds_read_b128 {R(20)}, v10 offset:16")
    a(f"ds_read_b32 v4, v4")
    a("s_waitcnt lgkmcnt(0)")
    a(f"v_readfirstlane_b32 s{sLOC}, v4")
    a(f"v_max3_f32 v5, v16, v17, v18\nv_max3_f32 v5, v5, v19, v20\nv_max3_f32 v5, v5, v21, v22\nv_max_f32 v5, v5, v23")
    a(f"v_mul_f32 v6, s{sLOG2E}, v5")
    a("v_mov_b32 v4, 0")
    sl = [Sreg[p] + r for p in range(8) for r in range(4)]
    for i, x in enumerate(sl):
        if i in (8, 20):
            vslot()
        a(f"v_fma_f32 v{x}, v{x}, s{sLOG2E}, -v6")
        a(f"v_exp_f32 v{x}, v{x}")
        if i:
            a(f"v_add_f32 v4, v4, v{sl[i-1]}")
    a(f"v_add_f32 v4, v4, v{sl[31]}")
    vslot()
    for i in range(16):
        a(f"v_cvt_pk_bf16_f32 v{QF+i}, v{sl[2*i]}, v{sl[2*i+1]}")
    PH = KV + 16
    if fold:
        a("s_mov_b32 exec_lo, 0xff00ff00\ns_mov_b32 exec_hi, 0xff00ff00")
        for i in range(16):
            a(f"v_mov_b32 v{QF+i}, 0")
        a(FULL)
        for i in range(16):
            a(f"v_mov_b32_dpp v{PH+i}, v{QF+i} row_ror:8 row_mask:0xf bank_mask:0xf")
    allred(4, 6, "v_add_f32", (32, 16))
    a("s_mov_b64 exec, 0xff")
    a(f"ds_write_b32 v11, v4 offset:{LX-MX}")
    a(FULL)
    vslot()
    a("s_waitcnt lgkmcnt(0)")
    a("s_barrier")
    vslot()
    a(f"s_cmp_lg_u32 s{sWAVE}, 4")
    a("s_cbranch_scc1 L_noml")
    a(f"ds_read_b128 {R(32)}, v10 offset:{LX-MX}")
    a(f"ds_read_b128 {R(36)}, v10 offset:{LX-MX+16}")
    a(f"s_lshl_b32 s10, s{sL}, 7")
    a(f"s_add_u32 s10, s10, {ML}")
    a(f"v_lshlrev_b32 v9, 4, v8")
    a("s_waitcnt lgkmcnt(0)")
    a("v_add_f32 v32, v32, v33\nv_add_f32 v34, v34, v35\nv_add_f32 v36, v36, v37\nv_add_f32 v38, v38, v39")
    a("v_add_f32 v32, v32, v34\nv_add_f32 v36, v36, v38\nv_add_f32 v33, v32, v36")
    tag_trunc(32, 5)
    tag_trunc(33, 33)
    a("v_mov_b32 v34, v32\nv_mov_b32 v35, v33")
    a("s_mov_b64 exec, 0xff")
    store_grp("buffer_store_dwordx4", R(32), 9, 10)
    a(FULL)
    a("L_noml:")
    if not vearly and not fine:
        vload(2)
    a(f"v_mul_u32_u24 v9, 528, v8")
    a(f"v_lshrrev_b32 v10, 4, v{vLANE}")
    a(f"v_lshl_add_u32 v9, v10, 4, v9")
    if fold:
        a(f"v_bfe_u32 v10, v{vLANE}, 3, 1")
        a(f"v_lshl_add_u32 v9, v10, 8, v9")
    a(f"s_mul_i32 s9, s{sWAVE}, 4224")
    a(f"s_add_u32 s9, s9, {OC}")
    a(f"v_add_u32 v9, s9, v9")
    a(f"v_lshrrev_b32 v10, 5, v{vLANE}")
    a(f"v_mul_u32_u24 v10, {4*4224}, v10")
    a(f"v_and_b32 v11, 31, v{vLANE}")
    a(f"v_lshlrev_b32 v11, 4, v11")
    a(f"s_mul_i32 s9, s{sWAVE}, 528")
    a(f"s_add_u32 s9, s9, {OC}")
    a(f"v_add3_u32 v10, v10, v11, s9")
    a(f"s_lshl_b32 s10, s{sXCD}, 3")
    a(f"s_add_u32 s10, s10, s{sWAVE}")
    a(f"s_lshl_b32 s10, s10, 5")
    a(f"s_add_u32 s10, s10, s{sIDX}")
    a(f"s_lshl_b32 s11, s10, 9")
    a(f"s_add_u32 s11, s11, {OP}")
    if prew:
        prewrite(PT, 4, 8, 11)
        a(f"s_bitcmp1_b32 s{sIDX}, 0")
        a("s_cbranch_scc1 L_pwB")
        a(f"s_lshr_b32 s9, s{sWAVE}, 2")
        a(f"s_add_u32 s9, s9, s{sIDX}")
        a(f"s_lshl_b32 s9, s9, 13")
        a(f"s_lshl_b32 s10, s{sXCD}, 9")
        a(f"s_add_u32 s9, s9, s10")
        a(f"s_and_b32 s10, s{sWAVE}, 3")
        a(f"s_lshl_b32 s10, s10, 7")
        a(f"s_add_u32 s9, s9, s10")
        a(f"s_add_u32 s9, s9, {XP}")
        prewrite(PT, 3, 12, 9)
        a("s_branch L_pwD")
        a("L_pwB:")
        a(f"s_cmp_ge_u32 s{sBI}, 112")
        a("s_cbranch_scc1 L_pwD")
        a(f"s_lshl_b32 s9, s{sBI}, 10")
        a(f"s_lshl_b32 s10, s{sWAVE}, 6")
        a(f"s_add_u32 s9, s9, s10")
        a(f"s_add_u32 s9, s9, {HP}")
        prewrite(PT, 2, 9, 9)
        a("L_pwD:")
    SA = KV
    MLR, F = (72, 88) if v0lds else (104, 120)
    a("s_mov_b32 s94, 0x00ff00ff\ns_mov_b32 s95, 0x00ff00ff")

    def mlloads():
        for i in range(4):
            a(f"buffer_load_dwordx4 {R(MLR + 4*i)}, v15, {S4(rWS)}, s89 offen offset:{i*1024} sc1")
    OPS = KV + 96
    assert not v0lds

    def pv_mfma(v, d, t):
        acc = SA + (d & 3 if fold else d) * 4
        P = (PH if fold and d >= 4 else QF) + v * 4
        c = "0" if (v == 0 and not (fold and d >= 4)) else R(acc)
        a(f"v_mfma_f32_16x16x32_bf16 {R(acc)}, {R(t)}, {R(P)}, {c}")

    def perm_k(k):
        for d in range(8):
            sel = sSELHI if d & 1 else sSELLO
            a(f"v_perm_b32 v{OPS + 4*d + k}, v{vblk[3] + (2*k+1)*4 + (d >> 1)}, v{vblk[3] + 2*k*4 + (d >> 1)}, s{sel}")
    for v in range(4):
        if v == 3:
            vm.wait(tv[3] - 4)
            a(f"s_cmp_ge_u32 s88, 32")
            a("s_cbranch_scc1 L_nof")
            pollx(mlloads, lambda: check_regs(range(MLR, MLR + 16)), pre_issued='landed')
            a(f"v_max3_f32 v5, v{MLR}, v{MLR+4}, v{MLR+8}\nv_max_f32 v5, v5, v{MLR+12}")
            dpp_max(5, 5, 5, 8)
            allred(5, 6, "v_max_f32", (16, 32))
            for i in range(4):
                a(f"v_sub_f32 v{F+i}, v{MLR+4*i}, v5")
                a(f"v_mul_f32 v{F+i}, s{sLOG2E}, v{F+i}")
                a(f"v_exp_f32 v{F+i}, v{F+i}")
            a(f"v_mul_f32 v5, v{F}, v{MLR+1}")
            for i in range(1, 4):
                a(f"v_fmac_f32 v5, v{F+i}, v{MLR+1+4*i}")
            dpp_add(5, 5, 5, 8)
            allred(5, 6, "v_add_f32", (16, 32))
            a("v_rcp_f32 v5, v5")
            for i in range(4):
                a(f"v_mul_f32 v{F+i}, v{F+i}, v5")
            a(f"s_lshl_b32 s89, s{sXCD}, 5")
            a(f"s_add_u32 s89, s89, s88")
            a(f"s_mul_i32 s89, s89, {128*ofstr}")
            a(f"s_add_u32 s89, s89, {OF}")
            a("L_nof:")
            perm_k(0)
            perm_k(1)
            a(f"s_bitcmp1_b32 s{sIDX}, 0")
            a("s_cbranch_scc1 L_nw1p")
            for i in range(w1pre):
                claim("L_nw1p")
            a(f"s_waitcnt vmcnt({w1pre + 2})")
            perm_k(2)
            a(f"s_waitcnt vmcnt({w1pre})")
            a("s_branch L_w1pd")
            a("L_nw1p:")
            a(f"s_waitcnt vmcnt(2)")
            perm_k(2)
            a(f"s_waitcnt vmcnt(0)")
            a("L_w1pd:")
            perm_k(3)
            for d in range(8):
                pv_mfma(v, d, OPS + 4 * d)
            continue
        vm.wait(tv[v])
        for d in range(8):
            if v == 0 or d % 2 == 0:
                vslot()
            t = PT + (d & 1) * 4
            perm_operand(t, vblk[v], d)
            pv_mfma(v, d, t)
        if v == 0 and not fine:
            vload(3)
        if v == 1:
            wps = 32 // nsrv
            a(f"v_lshlrev_b32 v15, 7, v7")
            a(f"s_sub_u32 s88, s{sAI}, {16 - nsrv}")
            a(f"s_cselect_b32 s88, 64, s88")
            a(f"s_mul_i32 s88, s88, {wps}")
            a(f"s_add_u32 s88, s88, s{sWAVE}")
            a(f"s_cmp_ge_u32 s{sWAVE}, {wps}")
            a(f"s_cselect_b32 s88, 64, s88")
            a(f"s_bitcmp1_b32 s{sIDX}, 0")
            a(f"s_cselect_b32 s88, s88, 64")
            a(f"s_cmp_ge_u32 s88, 32")
            a("s_cbranch_scc1 L_noml2")
            a(f"s_lshl_b32 s89, s{sXCD}, 12")
            a(f"s_lshr_b32 s10, s88, 2")
            a(f"s_lshl_b32 s9, s10, 4")
            a(f"s_add_u32 s89, s89, s9")
            a(f"s_add_u32 s89, s89, {ML}")
            mlloads()
            a(f"v_lshlrev_b32 v0, 9, v7")
            a(f"v_lshl_add_u32 v0, v8, 4, v0")
            a(f"s_lshl_b32 s90, s{sXCD}, 3")
            a(f"s_add_u32 s90, s90, s10")
            a(f"s_lshl_b32 s90, s90, 14")
            a(f"s_and_b32 s9, s88, 3")
            a(f"s_lshl_b32 s9, s9, 7")
            a(f"s_add_u32 s90, s90, s9")
            a(f"s_add_u32 s90, s90, {OP}")
            for i in range(1, 4):
                a(f"s_add_u32 s{90+i}, s90, {i*4096}")
            a("L_noml2:")
    assert not fine or vnext[0] == 32
    stamp(7)
    if not fold:
        a(MASK8)
    for d in range(4 if fold else 8):
        a(f"ds_write_b128 v9, {R(SA + d*4)} offset:{d*64}")
    if not fold:
        a(FULL)
    a("s_waitcnt lgkmcnt(0)")
    a("s_barrier")
    for k in range(4):
        a(f"ds_read_b128 {R(16 + 4*k)}, v10 offset:{k*4224}")
    a("s_waitcnt lgkmcnt(0)")
    pk("add", 16, 16, 20)
    pk("add", 24, 24, 28)
    pk("add", 20, 16, 24)
    pk("add", 16, 16, 24)
    for r in range(4):
        a(f"v_permlane32_swap_b32 v{16+r}, v{20+r}")
    pk("add", 16, 16, 20)
    for r in range(4):
        tag_trunc(16 + r, 16 + r)
    a("s_mov_b32 exec_hi, 0")
    store_grp("buffer_store_dwordx4", R(16), 11, 11)
    a(FULL)
    stamp(8)

    def h1a():
        ln = a.label("Lnoh1a")
        a(f"s_cmp_ge_u32 s88, 32")
        a(f"s_cbranch_scc1 {ln}")

        def oloads():
            for i in range(4):
                a(f"buffer_load_dwordx4 {R(MLR + 4*i)}, v0, {S4(rWS)}, s{90+i} offen sc1")
        pollx(oloads, lambda: check_regs(range(MLR, MLR + 16)), slp=0)
        pk("mul", MLR, MLR, F, ybc=True)
        pk("mul", MLR + 8, MLR + 8, F + 2, ybc=True)
        pkfma(MLR, MLR + 4, F + 1)
        pkfma(MLR + 8, MLR + 12, F + 3)
        pk("add", MLR, MLR, MLR + 8)
        red4(MLR, (8,))
        a(f"v_cvt_pk_bf16_f32 v{MLR}, v{MLR}, v{MLR}")
        a(f"v_bfi_b32 v{MLR}, s{sHI}, v{MLR}, v{vTAG}")
        untr(MLR)
        a("s_mov_b64 exec, 0xff")
        a(f"buffer_store_dwordx4 {R(MLR)}, v{vOV}, {S4(rWS)}, s89 offen sc1")
        a(FULL)
        stamp(24)
        if ackst:
            a("s_waitcnt vmcnt(0)")
            stamp(29)
        a(f"{ln}:")
    h1a()
    if notail:
        a("s_branch L_fin")
    a(f"s_bitcmp1_b32 s{sIDX}, 0")
    a("s_cbranch_scc1 L_tailB")

    def gemv8(W, Bv, acc, vrd, wread=None):
        n = 3 if wread else 1
        for s in range(8):
            if wread:
                wread(s)
            a(f"ds_read_b128 {R(Bv + 4*s)}, v{vrd} offset:{s*64}")
        for s in range(8):
            a(f"s_waitcnt lgkmcnt({min(15, n*(7-s))})")
            c = "0" if s == 0 else R(acc)
            a(f"v_mfma_f32_16x16x32_bf16 {R(acc)}, {R(W + s*4)}, {R(Bv + 4*s)}, {c}")
        a(f"s_mov_b32 exec_lo, 0x00030003\ns_mov_b32 exec_hi, 0x00030003")
        for r in range(4):
            tag_trunc(acc + r, acc + r)

    vm = Vm(a)
    claim_all()
    WOP, W2O, W2R, AD, B1V = 72, 104, 136, 40, 29
    a(f"v_lshrrev_b32 v7, 4, v{vLANE}")
    a(f"v_and_b32 v9, 15, v{vLANE}")
    a(f"v_lshrrev_b32 v10, 5, v{vLANE}")
    a(f"v_and_b32 v5, 1, v7")
    a(f"v_lshlrev_b32 v20, 6, v5")
    a(f"v_bfe_u32 v6, v{vLANE}, 2, 2")
    a(f"v_lshl_add_u32 v20, v6, 3, v20")
    a(f"v_add_u32 v20, v20, v10")
    a(f"v_lshlrev_b32 v20, 8, v20")
    a(f"v_and_b32 v6, 3, v{vLANE}")
    a(f"v_lshl_add_u32 v20, v6, 3, v20")
    a(f"s_lshl_b32 s9, s{sWAVE}, 5")
    a(f"v_add_u32 v20, s9, v20")
    swz_read(20, 6, 0)
    a(f"v_lshlrev_b32 v28, 12, v5")
    a(f"v_lshl_add_u32 v28, v9, 5, v28")
    a(f"v_lshl_add_u32 v28, v10, 4, v28")
    a(f"s_lshl_b32 s14, s{sBI}, 13")
    a(f"s_lshl_b32 s9, s{sWAVE}, 9")
    a(f"s_add_u32 s14, s14, s9")
    a(f"s_add_u32 s14, s14, {YP}")
    a(f"v_and_b32 v11, 31, v{vLANE}")
    a(f"v_lshlrev_b32 v21, 14, v10")
    a(f"v_lshl_add_u32 v21, v11, 4, v21")
    a(f"s_lshl_b32 s74, s{sAI}, 10")
    a(f"s_add_u32 s74, s74, {OF}")
    a(f"s_mul_i32 s9, s{sWAVE}, {2*bpad}")
    a(f"s_add_u32 s9, s9, {OB}")
    a(f"v_mul_u32_u24 v22, {bpad}, v10")
    a(f"v_lshl_add_u32 v22, v11, 3, v22")
    a(f"v_add_u32 v22, s9, v22")
    a(f"v_and_b32 v5, 1, v{vLANE}")
    a(f"v_mul_u32_u24 v23, {bpad}, v5")
    a(f"v_lshl_add_u32 v23, v7, 4, v23")
    a(f"v_add_u32 v23, s9, v23")
    a(f"v_lshlrev_b32 v24, 12, v5")
    a(f"v_lshl_add_u32 v24, v7, 4, v24")
    a(f"s_lshl_b32 s73, s{sAI}, 13")
    a(f"s_lshl_b32 s9, s{sXCD}, 9")
    a(f"s_add_u32 s73, s73, s9")
    a(f"s_lshl_b32 s9, s{sWAVE}, 6")
    a(f"s_add_u32 s73, s73, s9")
    a(f"s_add_u32 s73, s73, {XP}")
    srd(rT0, pW2, 7340032)
    srd(rT1, pB1, 7168)
    a(f"v_lshlrev_b32 v30, 14, v7")
    a(f"v_lshl_add_u32 v30, v9, 4, v30")
    a(f"s_lshl_b32 s15, s{sBI}, 16")
    a(f"s_lshl_b32 s9, s{sWAVE}, 8")
    a(f"s_add_u32 s15, s15, s9")
    def w2row(e):
        a(f"s_add_u32 s9, s15, {e*2048}")
        a(f"buffer_load_dwordx4 {R(W2R + e*4)}, v30, {S4(rT0)}, s9 offen {nt}")
    if w2pre:
        a(f"s_cmp_ge_u32 s{sBI if w2all else sAI}, {112 if w2all else 8}")
        a("s_cbranch_scc1 L_nw2p")
        for e in range(8 - w2pre, 8):
            w2row(e)
        a("L_nw2p:")
    kperm(4, 5)
    a(f"v_and_b32 v6, 7, v{vLANE}")
    a(f"v_lshl_add_u32 v31, v6, 2, v4")
    a(f"v_lshlrev_b32 v31, 1, v31")
    a(f"v_bfe_u32 v8, v{vLANE}, 3, 1")
    a(f"v_lshl_add_u32 v26, v8, 6, v31")
    a(f"s_lshl_b32 s9, s{sWAVE}, 7")
    a(f"s_add_u32 s9, s9, {H1B}")
    a(f"v_add_u32 v26, s9, v26")
    a(f"v_bfe_u32 v5, v{vLANE}, 2, 1")
    a(f"v_lshlrev_b32 v27, 6, v5")
    a(f"v_lshl_add_u32 v27, v7, 4, v27")
    a(f"v_add_u32 v27, s9, v27")
    a(f"v_lshlrev_b32 v25, 10, v7")
    a(f"v_lshl_add_u32 v25, v8, 9, v25")
    a(f"v_lshl_add_u32 v25, v6, 4, v25")
    a(f"s_and_b32 s9, s{sBI}, 3")
    a(f"s_lshl_b32 s89, s9, 7")
    a(f"s_andn2_b32 s10, s{sBI}, 3")
    a(f"s_lshl_b32 s10, s10, 10")
    a(f"s_add_u32 s89, s89, s10")
    a(f"s_add_u32 s89, s89, {HP}")
    GA, XV, B2V, GB, SV, TV = 136, 5, 6, 15, 137, 138
    consumer_ids()
    a(f"v_lshrrev_b32 v6, 3, v{vLANE}")
    a(f"v_and_b32 v8, 7, v{vLANE}")
    a(f"v_lshl_add_u32 v11, v8, 2, v4")
    a(f"v_lshlrev_b32 v5, 2, v11")
    a(f"v_add_u32 v2, {XB}, v5")
    a(f"s_mul_i32 s88, s75, {xstr}")
    a(f"s_add_u32 s88, s88, {XH}")
    a(f"v_lshlrev_b32 v0, 13, v6")
    a(f"v_lshl_add_u32 v0, v8, 4, v0")
    a(f"ds_read_b32 v{GA}, v2 offset:384")
    a(f"ds_read_b32 v{XV}, v2 offset:512")
    a(f"ds_read_b32 v{B2V}, v2 offset:256")
    a(f"ds_read_b32 v{GB}, v2 offset:128")
    a(f"ds_read_b32 v{SV}, v2")
    a(f"ds_read_b32 v{TV}, v2 offset:640")
    a(f"v_mov_b32 v144, v{vOV}")
    a(f"s_mov_b32 s9, {xrec + 16}")
    a("v_writelane_b32 v144, s9, 8")
    a(f"s_mov_b32 s9, {xrec}")
    a("v_writelane_b32 v144, s9, 16")
    for r in range(32):
        a(f"v_mov_b32 v{AD+r}, 0")
    if of2:
        a(f"v_bfe_u32 v21, v{vLANE}, 3, 1")
        a(f"v_mul_u32_u24 v22, {bpad}, v21")
        a(f"v_lshlrev_b32 v21, 14, v21")
        a(f"v_lshl_add_u32 v21, v8, 4, v21")
        a(f"v_lshl_add_u32 v22, v8, 3, v22")
        a(f"s_lshl_b32 s9, s{sWAVE}, 6")
        a(f"s_add_u32 s9, s9, {YB}")
        a(f"v_add_u32 v22, s9, v22")
        a(f"v_and_b32 v23, 1, v{vLANE}")
        a(f"v_mul_u32_u24 v23, {bpad}, v23")
        a(f"v_lshl_add_u32 v23, v7, 4, v23")
        a(f"v_add_u32 v23, {YB}, v23")
        a(f"s_lshl_b32 s9, s{sWAVE}, 7")
        a(f"s_add_u32 s10, s74, s9")
        sgate(10, [0, 16384])
        stamp(29)
        a("s_mov_b64 exec, 0xffff")
        pollx(lambda: a(f"buffer_load_dwordx4 {R(32)}, v21, {S4(rWS)}, s10 offen sc1"), lambda: check_regs(range(32, 36)))
        a(f"v_perm_b32 v16, v33, v32, s{sSELHI}")
        a(f"v_perm_b32 v17, v35, v34, s{sSELHI}")
        a("s_mov_b64 exec, 0xffff")
        a(f"ds_write_b64 v22, {R(16, 2)}")
        a(FULL)
        a("s_waitcnt lgkmcnt(0)")
        stamp(9)
        a("s_barrier")
    else:
        def ldOF():
            a(f"buffer_load_dwordx4 {R(32)}, v21, {S4(rWS)}, s74 offen sc1")
            a(f"buffer_load_dwordx4 {R(36)}, v21, {S4(rWS)}, s74 offen offset:512 sc1")
        if '1' in sg:
            a(f"s_lshl_b32 s9, s{sWAVE}, 7")
            a(f"s_add_u32 s10, s74, s9")
            sgate(10, [0, 16384])
            stamp(29)
        a("s_waitcnt vmcnt(0)")
        stamp(30)
        a("s_barrier")
        ldOF()
        for s in range(8):
            for h in range(2):
                a(f"ds_read_b64_tr_b16 {R(WOP + s*4 + h*2, 2)}, v20 offset:{WT + 32768*(s >> 2) + 8192*h + 512*(s & 3)}")
        stamp(26)
        pollx(ldOF, lambda: check_regs(range(32, 40)), pre_issued=True)
        stamp(9)
        for k in range(4):
            a(f"v_perm_b32 v{16+k}, v{33+2*k}, v{32+2*k}, s{sSELHI}")
        a(f"ds_write_b64 v22, {R(16, 2)}")
        a(f"ds_write_b64 v22, {R(18, 2)} offset:256")
        a("s_waitcnt lgkmcnt(0)")
    def wo_read(s):
        for h in range(2):
            a(f"ds_read_b64_tr_b16 {R(WOP + s*4 + h*2, 2)}, v20 offset:{WT + 32768*(s >> 2) + 8192*h + 512*(s & 3)}")
    gemv8(WOP, 104, 32, 23, wo_read if of2 else None)
    store_grp("buffer_store_dwordx4", R(32), 24, 73)
    a(FULL)
    stamp(10)
    a(f"s_cmp_ge_u32 s{sBI}, 112")
    a("s_cbranch_scc1 L_fin")
    a(f"s_cmp_ge_u32 s{sAI}, 8")
    a("s_cbranch_scc1 L_noh2")
    a(f"s_cmp_lg_u32 s{sWAVE}, 7")
    a("s_cbranch_scc1 L_h2d")
    a(f"s_add_u32 s10, s75, {XP}")
    a(f"s_add_u32 s11, s75, {XP + 65536}")
    a("s_mov_b32 s94, 0xff00ff00\ns_mov_b32 s95, 0xff00ff00")
    SM = "s[94:95]"
    a(f"v_cndmask_b32 v81, v{TV}, v{SV}, {SM}")
    a("v_mov_b32 v143, 0")

    def xloads():
        a(f"buffer_load_dwordx4 {R(84)}, v0, {S4(rWS)}, s10 offen sc1")
        a(f"buffer_load_dwordx4 {R(88)}, v0, {S4(rWS)}, s11 offen sc1")
    pollx(xloads, lambda: check_regs(range(84, 92)), slp=0)
    stamp(11)
    pk("add", 84, 84, 88)
    red4(84, (8,))
    rnd1(84, 84)
    a(f"v_mul_f32 v84, v{GA}, v84")
    rnd1(84, 84)
    a(f"v_add_f32 v84, v{XV}, v84")
    rnd1(XV, 84)
    a(f"v_mul_f32 v83, v{XV}, v{TV}")
    a(f"v_or_b32 v84, v{vTAG}, v{XV}")
    a(f"v_cndmask_b32 v82, v{XV}, v{TV}, {SM}")
    a(f"v_cndmask_b32 v80, v{XV}, v83, {SM}")
    a(f"v_cndmask_b32 v83, 1.0, v83, {SM}")
    a(f"v_mul_f32 v141, v80, v82")
    a(f"v_mul_f32 v142, v80, v81")
    a(f"v_mul_f32 v140, v80, v83")
    untr(84)
    publish_moments(140, 88, 84)
    if hu3:
        a(f"s_lshl_b32 s10, s{sXCD}, 7")
        a(f"s_lshl_b32 s9, s{sAI}, 4")
        a(f"s_add_u32 s10, s10, s9")
        a(f"s_add_u32 s10, s10, {LF}")
        a("s_mov_b64 exec, 1")
        store_grp("buffer_store_dwordx4", R(84), vOV, 10)
        a(FULL)
    stamp(12)
    a("s_cmp_lg_u32 s2, 0")
    a("s_cbranch_scc1 L_h2d")
    if pin:
        a("L_pin:")
        a("s_memrealtime s[96:97]")
        a("s_waitcnt lgkmcnt(0)")
        a("s_sub_u32 s96, s96, s98")
        a(f"s_cmp_lt_u32 s96, {pin}")
        a("s_cbranch_scc1 L_pin")
    a(f"v_mov_b32 v98, s{sEP}")
    a("v_mov_b32 v99, 0")
    a("s_mov_b64 exec, 1")
    a(f"buffer_store_dword v98, v99, {S4(rWS)}, 0 offen offset:{EPOCH} sc1")
    a("s_mov_b64 exec, -1")
    a("s_branch L_h2d")
    a("L_noh2:")
    if w2delay:
        a(f"s_sleep {w2delay}")
    a("L_h2d:")
    a("s_barrier")
    for e in range(8 - w2pre):
        w2row(e)
    if w2pre and not w2all:
        a(f"s_cmp_lt_u32 s{sAI}, 8")
        a("s_cbranch_scc1 L_w2d")
        for e in range(8 - w2pre, 8):
            w2row(e)
        a("L_w2d:")
    a(f"s_lshl_b32 s9, s{sBI}, 6")
    a(f"buffer_load_ushort v{B1V}, v31, {S4(rT1)}, s9 offen")
    a("s_waitcnt vmcnt(0)")

    def ldHP():
        a(f"buffer_load_dwordx4 {R(32)}, v25, {S4(rWS)}, s89 offen sc1")
    ldHP()
    for d in range(8):
        perm_operand(W2O + d * 4, W2R, d)
    lo(B1V, B1V)
    stamp(27)
    pollx(ldHP, lambda: check_regs(range(32, 36)), slp=0, pre_issued=True)
    stamp(23)
    red4(32, ())
    rnd1(136, 32)
    a(f"v_add_f32 v136, v136, v{B1V}")
    rnd1(136, 136)
    a("v_mul_f32 v137, v136, v136")
    a("v_mul_f32 v137, 0x3d372713, v137")
    a("v_fma_f32 v137, v137, v136, v136")
    a("v_mul_f32 v137, 0xc0135761, v137")
    a("v_exp_f32 v137, v137")
    a("v_add_f32 v137, 1.0, v137")
    a("v_rcp_f32 v137, v137")
    a("v_mul_f32 v136, v136, v137")
    a("v_cvt_pk_bf16_f32 v136, v136, v136")
    a("ds_write_b16 v26, v136")
    a("s_waitcnt lgkmcnt(0)")
    for d in range(8):
        m16 = (0x11 << (d & 3)) << (8 * (d >> 2))
        m32 = m16 | (m16 << 16)
        a(f"s_mov_b32 exec_lo, {m32:#x}\ns_mov_b32 exec_hi, {m32:#x}")
        a(f"ds_read_b128 {R(AD + 4*d)}, v27")
    a(FULL)
    for d in range(8):
        a(f"s_waitcnt lgkmcnt({7-d})")
        c = "0" if d == 0 else R(136)
        a(f"v_mfma_f32_16x16x32_bf16 {R(136)}, {R(AD + 4*d)}, {R(W2O + 4*d)}, {c}")
    for r in range(4):
        tag_trunc(136 + r, 136 + r)
    a(f"buffer_store_dwordx4 {R(136)}, v28, {S4(rWS)}, s14 offen sc1")
    stamp(28)
    a(f"s_cmp_ge_u32 s{sAI}, 8")
    a("s_cbranch_scc1 L_fin")
    srd(rT3, pOUT, 4096)
    a(f"s_mul_i32 s11, s{sWAVE}, {14*8192}")
    a(f"s_add_u32 s11, s11, s75")
    a(f"s_add_u32 s11, s11, {YP}")
    a(f"s_add_u32 s15, s11, {8*8192}")
    a(f"s_lshl_b32 s9, s{sWAVE}, 2")
    a(f"s_add_u32 s9, s9, {FB}")
    a(f"v_lshl_add_u32 v9, v11, 5, s9")
    a(f"v_lshlrev_b32 v8, 5, v11")
    a(f"v_add_u32 v8, {FB}, v8")
    a(f"s_lshr_b32 s10, s75, 1")
    a(f"v_lshlrev_b32 v10, 1, v11")
    for r in range(44, 48):
        a(f"v_mov_b32 v{r}, 0")
    a(f"s_mov_b32 s94, -1\ns_mov_b32 s95, 0xffff")

    def ldH4():
        a(f"buffer_load_dwordx4 {R(40)}, v0, {S4(rWS)}, s11 offen sc1")
        a(f"s_and_saveexec_b64 s[{sEX}:{sEX+1}], s[94:95]")
        a(f"buffer_load_dwordx4 {R(44)}, v0, {S4(rWS)}, s15 offen sc1")

    def ckH4():
        for r in range(44, 48):
            a(f"v_xor_b32 v{r}, v{vTAG}, v{r}")
        a(f"s_mov_b64 exec, s[{sEX}:{sEX+1}]")
        check_regs(range(40, 44))
        a(f"v_or3_b32 v{vBAD}, v{vBAD}, v44, v45")
        a(f"v_or3_b32 v{vBAD}, v{vBAD}, v46, v47")
    if h4ack:
        a("s_waitcnt vmcnt(0)")
    if h4delay:
        a(f"s_sleep {h4delay}")
    if '4' in sg:
        sgate(11, [k * 8192 for k in range(14)])
    pollx(ldH4, ckH4)
    stamp(13)
    pk("add", 40, 40, 44)
    red4(40, (8,))
    a("ds_write_b32 v9, v40")
    a("s_waitcnt lgkmcnt(0)")
    a("s_barrier")
    a(f"s_cmp_lg_u32 s{sWAVE}, 7")
    a("s_cbranch_scc1 L_fin")
    a(f"ds_read_b128 {R(40)}, v8")
    a(f"ds_read_b128 {R(44)}, v8 offset:16")
    a("s_waitcnt lgkmcnt(0)")
    pk("add", 40, 40, 44)
    a("v_add_f32 v40, v40, v41\nv_add_f32 v42, v42, v43\nv_add_f32 v40, v40, v42")
    rnd1(40, 40)
    a(f"v_add_f32 v40, v{B2V}, v40")
    rnd1(40, 40)
    a(f"v_mul_f32 v40, v{GB}, v40")
    rnd1(40, 40)
    a(f"v_add_f32 v40, v{XV}, v40")
    a("v_cvt_pk_bf16_f32 v40, v40, v40")
    a(MASK8)
    a(f"buffer_store_short v40, v10, {S4(rT3)}, s10 offen")
    a(FULL)

    a("s_branch L_fin")

    a("L_tailB:")
    a(f"s_cmp_ge_u32 s{sBI}, 112")
    a("s_cbranch_scc1 L_fin")
    W1O = 72
    XR, SB, CB, MR = 32, 36, 16, 136
    a(f"v_lshrrev_b32 v7, 4, v{vLANE}")
    a(f"s_and_b32 s9, s{sBI}, 3")
    a(f"s_lshl_b32 s13, s9, 10")
    a(f"s_lshl_b32 s10, s{sWAVE}, 12")
    a(f"s_add_u32 s13, s13, s10")
    a(f"s_add_u32 s15, s13, {X1 + 8192}")
    a(f"s_add_u32 s88, s13, {X1 + 16384}")
    a(f"s_mul_i32 s74, s13, {xstr}")
    a(f"s_add_u32 s74, s74, {XH}")
    a(f"v_lshrrev_b32 v6, 1, v{vLANE}")
    a(f"v_and_b32 v5, 1, v{vLANE}")
    a(f"v_lshlrev_b32 v20, 7, v6")
    a(f"v_lshl_add_u32 v20, v5, 4, v20")
    a(f"v_mul_u32_u24 v21, {128*xstr}, v6")
    a(f"v_lshl_add_u32 v21, v5, 4, v21")
    a(f"s_add_u32 s89, s10, {XS + 8192}")
    a(f"s_mul_i32 s91, s{sWAVE}, {4096*xstr}")
    a(f"s_add_u32 s91, s91, {XH + xrec}")
    a(f"s_mul_i32 s10, s{sWAVE}, {bpad}")
    a(f"s_add_u32 s10, s10, {YB}")
    a(f"v_lshl_add_u32 v22, v{vLANE}, 3, s10")
    a(f"v_lshlrev_b32 v23, 9, v5")
    a(f"v_lshl_add_u32 v24, v7, 4, v23")
    a(f"v_mul_u32_u24 v23, {bpad}, v5")
    a(f"v_lshl_add_u32 v23, v7, 4, v23")
    a(f"v_add_u32 v23, {YB}, v23")
    a(f"s_lshl_b32 s90, s{sBI}, 10")
    a(f"s_lshl_b32 s9, s{sWAVE}, 6")
    a(f"s_add_u32 s90, s90, s9")
    a(f"s_add_u32 s90, s90, {HP}")
    a(f"v_bfe_u32 v25, v{vLANE}, 2, 2")
    a(f"v_lshl_add_u32 v25, v7, 3, v25")
    a(f"v_lshlrev_b32 v25, 8, v25")
    a(f"v_and_b32 v6, 3, v{vLANE}")
    a(f"v_lshl_add_u32 v25, v6, 3, v25")
    a(f"s_lshl_b32 s9, s{sWAVE}, 5")
    a(f"v_add_u32 v25, s9, v25")
    swz_read(25, 6, 0)
    a(f"v_lshrrev_b32 v6, 3, v{vLANE}")
    a(f"v_and_b32 v8, 7, v{vLANE}")
    a(f"v_mul_u32_u24 v26, {128*xstr}, v6")
    a(f"v_lshl_add_u32 v26, v8, 4, v26")
    if ofack:
        a("s_waitcnt vmcnt(0)")
    a("s_barrier")
    vm = Vm(a)

    def ck_rec(regs):
        check_regs(regs)
        a(f"v_and_b32 v{vBAD}, s{sTM}, v{vBAD}")
        a(f"v_xor_b32 v{MR+3}, s{sEP}, v{MR+3}")
        a(f"v_or_b32 v{vBAD}, v{vBAD}, v{MR+3}")

    def ldS():
        a(f"buffer_load_dwordx4 {R(SB)}, v{vOV}, {S4(rWS)}, s15 offen sc1")
        a(f"buffer_load_dwordx4 {R(CB)}, v{vOV}, {S4(rWS)}, s88 offen sc1")
        a(f"buffer_load_dwordx4 {R(MR)}, v20, {S4(rWS)}, s89 offen sc1")
    LANE_OF = [0, 32, 16, 1, 33, 17]
    a(f"s_cmp_ge_u32 s{sWAVE}, 2")
    a("s_cbranch_scc1 L_nocst")
    pollx(ldS, lambda: ck_rec(list(range(SB, SB + 4)) + list(range(CB, CB + 4))), f2=True)
    red4(MR, (2, 4, 8))
    a(f"v_mul_f32 v{MR}, 0x3a800000, v{MR}")
    for k in range(5):
        a(f"v_readlane_b32 s9, v{MR}, {LANE_OF[k]}")
        a(f"v_mov_b32 v{144+k}, s9")
    a("L_nocst:")
    if w1delay:
        a(f"s_sleep {w1delay}")
    claim_all(w1thr)
    a("s_waitcnt vmcnt(0)")
    a("s_barrier")
    for s in range(8):
        for h in range(2):
            a(f"ds_read_b64_tr_b16 {R(W1O + s*4 + h*2, 2)}, v25 offset:{WT + 8192*s + 1024*h}")
    stamp(26)
    if '3' in sg:
        a(f"s_mul_i32 s10, s{sWAVE}, {512*xstr}")
        a(f"s_add_u32 s10, s10, {XH + xrec}")
        sgate(10, [(b * 32 + k) * 128 * xstr for b in range(2) for k in range(4)])
        a("s_barrier")
    a(f"s_cmp_ge_u32 s{sWAVE}, 2")
    a("s_cbranch_scc1 L_ydone")

    def ldH3():
        a(f"buffer_load_dwordx4 {R(XR)}, v26, {S4(rWS)}, s74 offen sc1")
        a(f"buffer_load_dwordx4 {R(MR)}, v21, {S4(rWS)}, s91 offen sc1")
    if hu3:
        a(f"s_lshl_b32 s10, s{sXCD}, 7")
        a(f"s_add_u32 s10, s10, {LF}")
        a("s_mov_b64 exec, 0xff")
        pollx(lambda: a(f"buffer_load_dwordx4 {R(XR)}, v{vOV}, {S4(rWS)}, s10 offen sc1"), lambda: check_regs(range(XR, XR + 4)))
        if hu3 > 1:
            a(f"s_sleep {hu3 - 1}")
    pollx(ldH3, lambda: ck_rec(range(XR, XR + 4)), f2=True, slp=h3slp)
    stamp(10)
    red4(MR, (2, 4, 8))
    a(f"v_mul_f32 v{MR}, 0x3a800000, v{MR}")
    for k, sr in enumerate((10, 11, 12, 13, 15, 88)):
        a(f"v_readlane_b32 s{sr}, v{MR}, {LANE_OF[k]}")

    def stats_tail(mean, ex2, t, mb, rs):
        a(f"v_fma_f32 v{ex2}, -v{mean}, v{mean}, v{ex2}")
        a(f"v_max_f32 v{ex2}, 0, v{ex2}")
        a(f"v_cvt_pk_bf16_f32 v{t}, v{mean}, v{ex2}")
        hi(ex2, t)
        lo(mb, t)
        a(f"v_add_f32 v{ex2}, 0x3727c5ac, v{ex2}")
        rnd1(ex2, ex2)
        a(f"v_sqrt_f32 v{ex2}, v{ex2}")
        rnd1(ex2, ex2)
        a(f"v_rcp_f32 v{rs}, v{ex2}")
    a("v_mov_b32 v5, s10\nv_mov_b32 v6, s11")
    stats_tail(5, 6, 60, 140, 141)
    a(f"v_fma_f32 v150, -v140, v144, s12")
    a(f"v_mul_f32 v151, v140, v145")
    a(f"v_fma_f32 v151, -2.0, s15, v151")
    a(f"v_fma_f32 v151, v140, v151, s13")
    a(f"v_fma_f32 v152, -v140, v146, s88")
    pk("add", XR, XR, 140, ybc=True, neg=True)
    for k in (0, 2):
        rnd2(XR + k, XR + k + 1, 60 + k // 2)
    a(f"v_fma_f32 v5, v141, v150, v147")
    a(f"v_mul_f32 v151, v141, v151")
    a(f"v_fma_f32 v151, 2.0, v152, v151")
    a(f"v_fma_f32 v6, v141, v151, v148")
    pk("mul", XR, XR, 141, ybc=True)
    for k in (0, 2):
        rnd2(XR + k, XR + k + 1, 60 + k // 2)
    stats_tail(5, 6, 62, 142, 143)
    pk("mul", XR, XR, CB)
    for k in (0, 2):
        rnd2(XR + k, XR + k + 1, 60 + k // 2)
    pk("add", XR, XR, SB)
    for k in (0, 2):
        rnd2(XR + k, XR + k + 1, 60 + k // 2)
    pk("add", XR, XR, 142, ybc=True, neg=True)
    for k in (0, 2):
        rnd2(XR + k, XR + k + 1, 60 + k // 2)
    pk("mul", XR, XR, 143, ybc=True)
    a(f"v_cvt_pk_bf16_f32 v28, v{XR}, v{XR+1}\nv_cvt_pk_bf16_f32 v29, v{XR+2}, v{XR+3}")
    a(f"ds_write_b64 v22, {R(28, 2)}")
    a("s_waitcnt lgkmcnt(0)")
    a("L_ydone:")
    a("s_barrier")
    gemv8(W1O, 136, 32, 23)
    store_grp("buffer_store_dwordx4", R(32), 24, 90)
    a(FULL)
    stamp(22)

    a("L_fin:")
    if stamps and dbgstamps:
        stamp(15)
        a(f"s_cmp_lg_u32 s2, {dbgstamps - 1}")
        a("s_cbranch_scc1 L_end")
        a("s_load_dwordx2 s[10:11], s[0:1], 104")
        a("s_waitcnt lgkmcnt(0)")
        srd(rT0, 10, 256)
        slots = [1, 2, 3, 4, 20, 6, 8, 24, 9, 10, 11, 12, 22, 13, 15, 21]
        a("v_mov_b32 v4, 200")
        for i, k in enumerate(slots):
            a(f"s_mov_b32 s9, {4*i}")
            a(f"v_writelane_b32 v4, s9, {k}")
        a(f"v_readlane_b32 s9, v{vST}, 0")
        a(f"v_subrev_u32 v5, s9, v{vST}")
        a(f"v_cmp_ne_u32 vcc, 0, v{vST}")
        a("s_mov_b64 exec, vcc")
        a(f"buffer_atomic_umax v5, v4, {S4(rT0)}, 0 offen sc1")
    elif stamps:
        stamp(15)
        a(f"s_mul_i32 s9, s2, {NWAVES}")
        a(f"s_add_u32 s9, s9, s{sW12}")
        a(f"s_lshl_b32 s9, s9, 7")
        a(f"s_add_u32 s9, s9, {STAMP}")
        a(f"v_lshlrev_b32 v4, 2, v{vLANE}")
        a("s_mov_b32 exec_hi, 0")
        a(f"buffer_store_dword v{vST}, v4, {S4(rWS)}, s9 offen")
    a("L_end:")
    a("s_endpgm")
    a('.section .rodata,"a"')
    a(".p2align 6")
    a(f".amdhsa_kernel {NAME}_kernel")
    for l in (".amdhsa_next_free_vgpr 168", ".amdhsa_next_free_sgpr 102", ".amdhsa_accum_offset 168",
              ".amdhsa_group_segment_fixed_size 0", ".amdhsa_kernarg_size 120", ".amdhsa_user_sgpr_count 2",
              ".amdhsa_user_sgpr_kernarg_segment_ptr 1", ".amdhsa_system_sgpr_workgroup_id_x 1",
              ".amdhsa_float_denorm_mode_32 3"):
        a(l)
    a(".end_amdhsa_kernel")
    return pre + a.finish()


if __name__ == "__main__":
    out = sys.argv[1] if len(sys.argv) > 1 else f"cdna_kernels/{NAME}.s"
    kw = {}
    for arg in sys.argv[2:]:
        k, v = arg.split("=")
        kw[k] = eval(v)
    open(out, "w").write(gen(**kw))
```

```python
import sys
from asmlib import Asm, Vm

NAME = "adaLN_cond__gqa_block_cached__mixer_channel_mlp__decode"

EPOCH = 0
ML = 0x1000
X1 = 0x9000
MODP = 0x140000
QP = 0x30000
MA = 0xB0000
HP = 0xE0000
XP = 0x100000
DUAL = 0x90000
OF = 0x500000
QFN = 0x80000
XS = 0x88000
XH = 0x180000
LF = 0x90000
XID = 0x78000
OP = 0x200000
YP = 0x300000
STAMP = 0x800000
WS_BYTES = 0x10000000
WT = 0
OC = 0x10000
QB = 0x18400
HB = 0x18C00
ZB = 0x18E00
MX = 0x19000
LX = 0x19100
OB = 0x10000
ST = 0x19600
YB = 0x19800
RED = 0x1A800
H1B = 0x1B000
QFL = 0x1B400
XB = 0x1B480
FB = 0x1B800
LDS_BYTES = 0x1BC00
TAGM = 0x3ff
T4 = 3
NWAVES = 12

sWAVE, sL, sXCD, sIDX, sAI, sTAG = 3, 4, 5, 6, 7, 8
pX, pK, pV, pWQ, pWO, pW1, pB1, pW2, pB2, pC, pWM, pOUT, pWS = 16, 18, 20, 22, 24, 28, 30, 32, 34, 36, 38, 40, 42
rK, rV, rWS, rT0, rT1, rT2, rT3 = 44, 48, 52, 56, 60, 64, 68
sDU = 72
sSELLO, sSELHI, sHI, sLOG2E, sSCALE, sSPIN, sEP, sTM = 76, 77, 78, 79, 80, 81, 82, 83
sEX = 84
sBI = 86
sKV = 87
sW12 = 100
sLOC = 101
vLANE, vOK, vOV = 1, 2, 3
vBAD, vTAG, vST = 12, 13, 14


DOC = '''
;   (XCC id exchange) that all its workgroups share one L2; otherwise everything is written through (sc1).
'''


def gen(stamps=False, dbgstamps=False, codewarm=True, spin=200000, sleep=0, nt="nt", w1_early=True,
        thr=4, thr2=4, thrq=0, thrb=0, thrv=6, notail=False, quiet=0, opol='', ofs=0, tlbw=0, w2pre=1, w2all=0, of2=1, ofack=0, fold=1, swz=1, nsrv=16, hu3=1, h4ack=1, sg='1', sgslp=2, bpad=576, kvmap=0, roti=1, v0lds=0, nohelp=0, w1delay=0, w1thr=0, pin=0, fill=0, mbgate=0, kgate=0, bpre=0, w2delay=0, wpre=0, xmask=0, xk=1, xv=2, ofstr=1, xstr=33, onest=1, w2x2=0, pipe='', spread=0, ackst=0, pslp=2, w1pre=3, ovl=1, w1late=1, h3slp=None, h3split=0, fullrec=0, ptall='mqfdoxy', wq_dyn=1, fine=1, qpol='sc1', ptpol='sc1', agate=1, xdelay=0, lateb=0, skip='', hpt=0, prew=0, b2stage=1, h4delay=0, pretouch=0, noloc=0, noma=0, bdelay=0, adelay=0, nomodfin=0, pure=0, klin=0, vearly=0, fake=0, attdma=True, thrw=3, cslp=0, w1pol=None):
    a = Asm()
    hdr = open(f"cdna_kernels/{NAME}.s.ref").read().split("\n")
    head = [l for l in hdr if l.startswith(";") and "@launch" not in l]
    pre = "\n".join(head) + f"\n; @launch grid=(256,1,1) block=({64*NWAVES},1,1) lds={LDS_BYTES}" + DOC
    a('.amdgcn_target "amdgcn-amd-amdhsa--gfx950"')
    a(".text")
    a(f".globl {NAME}_kernel")
    a(".p2align 8")
    a(f".type {NAME}_kernel,@function")
    a(f"{NAME}_kernel:")

    def srd(d, p, n):
        a(f"s_mov_b32 s{d}, s{p}\ns_mov_b32 s{d+1}, s{p+1}\ns_mov_b32 s{d+2}, {n}\ns_mov_b32 s{d+3}, 0x20000")

    def R(b, n=4):
        return f"v[{b}:{b+n-1}]"

    def S4(b):
        return f"s[{b}:{b+3}]"

    def stamp(k):
        if stamps == 1 or (stamps == 2 and k in (8, 15)):
            a(f"s_memrealtime s[96:97]\ns_waitcnt lgkmcnt(0)\nv_writelane_b32 v{vST}, s96, {k}")

    def lo(d, p):
        a(f"v_lshlrev_b32 v{d}, 16, v{p}")

    def hi(d, p):
        a(f"v_and_b32 v{d}, s{sHI}, v{p}")

    def rnd1(d, s):
        a(f"v_cvt_pk_bf16_f32 v{d}, v{s}, v{s}")
        lo(d, d)

    def rnd2(x, y, t):
        a(f"v_cvt_pk_bf16_f32 v{t}, v{x}, v{y}")
        lo(x, t)
        hi(y, t)

    def tag_round(d, s):
        a(f"v_add_u32 v{d}, 0x200, v{s}")
        a(f"v_bfi_b32 v{d}, s{sTM}, v{vTAG}, v{d}")

    def tag_trunc(d, s):
        a(f"v_bfi_b32 v{d}, s{sTM}, v{vTAG}, v{s}")

    def check_regs(regs, first=True):
        for r in regs:
            a(f"v_xor_b32 v{r}, v{vTAG}, v{r}")
        regs = list(regs)
        if first:
            a(f"v_or_b32 v{vBAD}, v{regs[0]}, v{regs[1]}")
            regs = regs[2:]
        for i in range(0, len(regs), 2):
            a(f"v_or3_b32 v{vBAD}, v{vBAD}, v{regs[i]}, v{regs[i+1]}")

    def dpp_add(d, s_rot, s1, ror):
        a(f"v_add_f32_dpp v{d}, v{s_rot}, v{s1} row_ror:{ror} row_mask:0xf bank_mask:0xf")

    def dpp_max(d, s_rot, s1, ror):
        a(f"v_max_f32_dpp v{d}, v{s_rot}, v{s1} row_ror:{ror} row_mask:0xf bank_mask:0xf")

    def allred(x, t, op, which):
        for w in which:
            a(f"v_mov_b32 v{t}, v{x}")
            a(f"v_permlane{w}_swap_b32 v{x}, v{t}")
            a(f"{op} v{x}, v{x}, v{t}")

    def red4(b, rors):
        a(f"v_permlane32_swap_b32 v{b}, v{b+1}")
        a(f"v_permlane32_swap_b32 v{b+2}, v{b+3}")
        a(f"v_add_f32 v{b}, v{b}, v{b+1}")
        a(f"v_add_f32 v{b+2}, v{b+2}, v{b+3}")
        a(f"v_permlane16_swap_b32 v{b}, v{b+2}")
        a(f"v_add_f32 v{b}, v{b}, v{b+2}")
        for r in rors:
            dpp_add(b, b, b, r)

    def perm_operand(dst, blk, d):
        sel = sSELHI if d & 1 else sSELLO
        for k in range(4):
            a(f"v_perm_b32 v{dst+k}, v{blk + (2*k+1)*4 + (d >> 1)}, v{blk + 2*k*4 + (d >> 1)}, s{sel}")

    def ln_stats(su, sq, t, mb, rs):
        a(f"v_mul_f32 v{su}, 0x3a800000, v{su}")
        a(f"v_mul_f32 v{sq}, 0x3a800000, v{sq}")
        a(f"v_fma_f32 v{sq}, -v{su}, v{su}, v{sq}")
        a(f"v_max_f32 v{sq}, 0, v{sq}")
        a(f"v_cvt_pk_bf16_f32 v{t}, v{su}, v{sq}")
        lo(mb, t)
        hi(sq, t)
        a(f"v_add_f32 v{sq}, 0x3727c5ac, v{sq}")
        rnd1(sq, sq)
        a(f"v_sqrt_f32 v{sq}, v{sq}")
        rnd1(sq, sq)
        a(f"v_rcp_f32 v{rs}, v{sq}")

    def ln_apply(x, y, t, mb, rs, last_round=True):
        a(f"v_sub_f32 v{x}, v{x}, v{mb}")
        a(f"v_sub_f32 v{y}, v{y}, v{mb}")
        rnd2(x, y, t)
        a(f"v_mul_f32 v{x}, v{x}, v{rs}")
        a(f"v_mul_f32 v{y}, v{y}, v{rs}")
        if last_round:
            rnd2(x, y, t)

    def check2(pairs_regs):
        first = True
        for b in pairs_regs:
            a(f"v_xor_b32 v{b+1}, s{sEP}, v{b+1}")
            a(f"v_xor_b32 v{b+3}, s{sEP}, v{b+3}")
            if first:
                a(f"v_or_b32 v{vBAD}, v{b+1}, v{b+3}")
                first = False
            else:
                a(f"v_or3_b32 v{vBAD}, v{vBAD}, v{b+1}, v{b+3}")

    def pollx(loads, check, f2=False, dual=False, pre_issued=False, between=None, slp=None, name=None):
        if name and name in skip:
            a("s_waitcnt vmcnt(0)")
            a("s_mov_b64 exec, -1")
            return
        lp, dn, ck = a.label("Lpoll"), a.label("Ldone"), a.label("Lchk")
        a(f"s_mov_b32 s{sSPIN}, {0 if (fake and slp in (cslp, 16)) else spin | 7}")
        if pre_issued:
            a(f"s_branch {ck}")
        inst = stamps == 1 and name in ("a", "b", "c", "x")
        if inst:
            a("s_mov_b32 s94, 0\ns_mov_b32 s95, 0")
        a(f"{lp}:")
        if inst:
            a("s_memrealtime s[90:91]")
        loads()
        if pre_issued != "landed":
            a(f"{ck}:")
        a("s_waitcnt vmcnt(0)")
        if pre_issued == "landed":
            a(f"{ck}:")
        if inst:
            a("s_memrealtime s[92:93]\ns_waitcnt lgkmcnt(0)")
            a("s_sub_u32 s92, s92, s90\ns_max_u32 s94, s94, s92\ns_add_u32 s95, s95, 1")
        check()
        if not f2:
            a(f"v_and_b32 v{vBAD}, s{sTM}, v{vBAD}")
        a(f"v_cmp_ne_u32 vcc, 0, v{vBAD}")
        a(f"s_cbranch_vccz {dn}")
        a("s_mov_b64 exec, vcc")
        sl = sleep if slp is None else slp
        if sl:
            a(f"s_sleep {sl}")
        a(f"s_sub_u32 s{sSPIN}, s{sSPIN}, 1")
        a(f"s_cbranch_scc0 {lp}")
        a(f"{dn}:")
        a("s_mov_b64 exec, -1")
        if inst:
            k = {"a": 26, "b": 28, "c": 28, "x": 26}[name]
            a(f"v_writelane_b32 v{vST}, s94, {k}\nv_writelane_b32 v{vST}, s95, {k+1}")

    def pollp(load, nl, final, sets, sm=94, init=None):
        lp, dn = a.label("Lpp"), a.label("Lppd")
        M = f"s[{sm}:{sm+1}]"
        n = 4 * nl
        a(f"s_mov_b64 {M}, exec")
        a(f"s_mov_b32 s{sSPIN}, {spin}")
        load(sets[0])
        if pslp:
            a(f"s_sleep {pslp}")
        load(sets[1])
        a(f"{lp}:")
        for k in range(3):
            if pslp:
                a(f"s_sleep {pslp}")
            load(sets[(k + 2) % 3])
            a(f"s_waitcnt vmcnt({2*nl})")
            b = sets[k]
            check_regs(range(b, b + n))
            a(f"v_and_b32 v{vBAD}, s{sTM}, v{vBAD}")
            a(f"v_cmp_eq_u32 vcc, 0, v{vBAD}")
            a("s_mov_b64 exec, vcc")
            for i in range(n):
                a(f"v_mov_b32 v{final[i]}, v{b+i}")
            a(f"s_andn2_b64 {M}, {M}, vcc")
            a(f"s_cbranch_scc0 {dn}")
            a(f"s_mov_b64 exec, {M}")
        a(f"s_sub_u32 s{sSPIN}, s{sSPIN}, 1")
        a(f"s_cbranch_scc0 {lp}")
        a(f"{dn}:")
        a("s_mov_b64 exec, -1")

    def sgate(soff, offs):
        lp, dn = a.label("Lsg"), a.label("Lsgd")
        a(f"s_add_u32 s92, s{pWS}, s{soff}")
        a(f"s_addc_u32 s93, s{pWS+1}, 0")
        a(f"s_mov_b32 s{sSPIN}, 2000")
        a(f"{lp}:")
        for i, o in enumerate(offs):
            a(f"s_load_dword s{16+i}, s[92:93], {o} glc")
        a("s_waitcnt lgkmcnt(0)")
        a(f"s_xor_b32 s9, s16, s{sTAG}")
        for i in range(1, len(offs)):
            a(f"s_xor_b32 s{16+i}, s{16+i}, s{sTAG}")
            a(f"s_or_b32 s9, s9, s{16+i}")
        a(f"s_and_b32 s9, s9, s{sTM}")
        a(f"s_cbranch_scc0 {dn}")
        if sgslp:
            a(f"s_sleep {sgslp}")
        a(f"s_sub_u32 s{sSPIN}, s{sSPIN}, 1")
        a(f"s_cbranch_scc0 {lp}")
        a(f"{dn}:")

    def dual_exchange(store_wt, loads, check):
        l1, ok, dn = a.label("Lfx"), a.label("Lfxok"), a.label("Lfxdn")
        a(f"s_mov_b32 s{sDU}, {DUAL}")
        a(f"s_mov_b32 s{sSPIN}, 24")
        a(f"{l1}:")
        loads()
        a("s_waitcnt vmcnt(0)")
        check()
        a(f"v_and_b32 v{vBAD}, s{sTM}, v{vBAD}")
        a(f"v_cmp_ne_u32 vcc, 0, v{vBAD}")
        a(f"s_cbranch_vccz {ok}")
        a("s_mov_b64 exec, vcc")
        a(f"s_sub_u32 s{sSPIN}, s{sSPIN}, 1")
        a(f"s_cbranch_scc0 {l1}")
        a(f"s_mov_b64 s[{sEX}:{sEX+1}], exec")
        store_wt()
        a(f"s_mov_b64 exec, s[{sEX}:{sEX+1}]")
        pollx(loads, check, dual=True)
        a(f"s_branch {dn}")
        a(f"{ok}:")
        store_wt()
        a("s_mov_b64 exec, -1")
        a(f"{dn}:")

    def store_grp(op, data, vaddr, soff):
        l1, l2 = a.label("Lsg"), a.label("Lsgd")
        a(f"s_cmp_eq_u32 s{sLOC}, 1")
        a(f"s_cbranch_scc1 {l1}")
        a(f"{op} {data}, v{vaddr}, {S4(rWS)}, s{soff} offen sc1")
        a(f"s_branch {l2}")
        a(f"{l1}:")
        a(f"{op} {data}, v{vaddr}, {S4(rWS)}, s{soff} offen")
        a(f"{l2}:")

    def prewrite(t, nl_log2, bshift, soff):
        if not prew:
            return
        for k in range(4):
            a(f"v_xor_b32 v{t+k}, 1, v{vTAG}")
        a(f"v_lshrrev_b32 v{t+4}, {nl_log2}, v{vLANE}")
        a(f"v_lshlrev_b32 v{t+4}, {bshift-4}, v{t+4}")
        a(f"v_and_or_b32 v{t+4}, v{vLANE}, {(1 << nl_log2) - 1}, v{t+4}")
        a(f"v_lshlrev_b32 v{t+4}, 4, v{t+4}")
        n = 2 << nl_log2
        a(f"s_mov_b64 exec, {(1 << n) - 1:#x}" if n < 32 else "s_mov_b32 exec_hi, 0")
        a(f"buffer_store_dwordx4 {R(t)}, v{t+4}, {S4(rWS)}, s{soff} offen")
        a("s_mov_b64 exec, -1")

    def store_dual(op, data, vaddr, soff, off=0):
        a(f"s_add_u32 s9, s{soff}, {DUAL}")
        a(f"{op} {data}, v{vaddr}, {S4(rWS)}, s9 offen offset:{off}")
        a(f"{op} {data}, v{vaddr}, {S4(rWS)}, s{soff} offen offset:{off} sc1")

    def untr(b):
        a(f"v_mov_b32 v{b+1}, v{b}")
        a(f"v_permlane32_swap_b32 v{b}, v{b+1}")
        a(f"v_mov_b32 v{b+2}, v{b}")
        a(f"v_mov_b32 v{b+3}, v{b+1}")
        a(f"v_permlane16_swap_b32 v{b}, v{b+2}")
        a(f"v_permlane16_swap_b32 v{b+1}, v{b+3}")

    def pk(op, d, x, y, n=4, ybc=False, neg=False):
        for k in range(0, n, 2):
            if ybc:
                yb, hi_ = y & ~1, y & 1
                m = f" op_sel:[0,{hi_}] op_sel_hi:[1,{hi_}]" + (" neg_lo:[0,1] neg_hi:[0,1]" if neg else "")
                a(f"v_pk_{op}_f32 {R(d+k, 2)}, {R(x+k, 2)}, {R(yb, 2)}{m}")
            else:
                a(f"v_pk_{op}_f32 {R(d+k, 2)}, {R(x+k, 2)}, {R(y+k, 2)}")

    def pkfma(d, x, f, n=4):
        fb, hi_ = f & ~1, f & 1
        for k in range(0, n, 2):
            a(f"v_pk_fma_f32 {R(d+k, 2)}, {R(x+k, 2)}, {R(fb, 2)}, {R(d+k, 2)} op_sel:[0,{hi_},0] op_sel_hi:[1,{hi_},1]")

    def swz_read(d, t, u):
        if swz:
            a(f"v_bfe_u32 v{t}, v{vLANE}, 2, 3")
            a(f"v_lshlrev_b32 v{t}, 5, v{t}")
            a(f"v_xor_b32 v{d}, v{d}, v{t}")

    def kperm(d, t):
        a(f"v_bfe_u32 v{d}, v{vLANE}, 4, 1")
        a(f"v_lshrrev_b32 v{t}, 5, v{vLANE}")
        a(f"v_lshl_or_b32 v{d}, v{d}, 1, v{t}")

    xrec = 128 * (xstr // 2)
    MASK8 = "s_mov_b32 exec_lo, 0x00ff00ff\ns_mov_b32 exec_hi, 0x00ff00ff"
    FULL = "s_mov_b64 exec, -1"

    a("s_cmp_ge_u32 s2, 256")
    a("s_cbranch_scc1 L_end")
    a("s_load_dwordx16 s[16:31], s[0:1], 0")
    a("s_load_dwordx8 s[32:39], s[0:1], 64")
    a("s_load_dwordx2 s[40:41], s[0:1], 96")
    a("s_load_dwordx2 s[42:43], s[0:1], 112")
    if pin:
        a("s_memrealtime s[98:99]")
    if stamps:
        a(f"v_mov_b32 v{vST}, 0")
        a("s_memrealtime s[98:99]")
    a(f"v_lshrrev_b32 v4, 6, v0")
    a(f"v_and_b32 v{vLANE}, 63, v0")
    a(f"v_readfirstlane_b32 s{sW12}, v4")
    a(f"s_and_b32 s{sXCD}, s2, 7")
    a(f"s_lshr_b32 s{sIDX}, s2, 3")
    a(f"s_lshl_b32 s{sL}, s{sXCD}, 5")
    a(f"s_add_u32 s{sL}, s{sL}, s{sIDX}")
    a(f"s_lshr_b32 s{sAI}, s{sIDX}, 1")
    a(f"s_lshr_b32 s9, s{sAI}, 2")
    a(f"s_lshl_b32 s9, s9, 3")
    a(f"s_add_u32 s9, s9, s{sXCD}")
    a(f"s_lshl_b32 s{sBI}, s9, 2")
    a(f"s_and_b32 s9, s{sAI}, 3")
    a(f"s_add_u32 s{sBI}, s{sBI}, s9")
    a(f"s_mov_b32 s{sSELLO}, 0x05040100")
    a(f"s_mov_b32 s{sSELHI}, 0x07060302")
    a(f"s_mov_b32 s{sHI}, 0xffff0000")
    a(f"s_mov_b32 s{sLOG2E}, 0x3fb8aa3b")
    a(f"s_mov_b32 s{sSCALE}, 0x3db504f3")
    a(f"s_mov_b32 s{sTM}, {TAGM}")
    a(f"v_lshrrev_b32 v7, 3, v{vLANE}")
    a(f"s_sub_u32 s{sWAVE}, s{sW12}, 4")
    a(f"s_cmp_lg_u32 s{sW12}, 0")
    a("s_cbranch_scc1 L_noinit")
    a(f"v_lshlrev_b32 v4, 2, v{vLANE}")
    a(f"v_add_u32 v4, {ZB}, v4")
    a("v_mov_b32 v5, 0")
    a("ds_write_b32 v4, v5")
    a(f"ds_write_b32 v4, v5 offset:{QFL - ZB - 128}")
    a("L_noinit:")

    def kargs():
        a("s_waitcnt lgkmcnt(0)")
        if stamps:
            a(f"v_writelane_b32 v{vST}, s98, 0")

    def load_epoch():
        a(f"s_load_dword s{sEP}, s[{pWS}:{pWS+1}], {EPOCH}")

    def get_tag():
        a("s_waitcnt lgkmcnt(0)")
        a(f"s_add_u32 s{sEP}, s{sEP}, 1")
        a(f"s_and_b32 s{sTAG}, s{sEP}, {TAGM}")
        a(f"v_mov_b32 v{vTAG}, s{sTAG}")

    def wait_q():
        lp, dn = a.label("Lwq"), a.label("Lwqd")
        a(f"v_mov_b32 v4, {QFL}")
        a(f"s_mov_b32 s{sSPIN}, {spin*20}")
        a(f"{lp}:")
        a("ds_read_b32 v5, v4")
        a("s_waitcnt lgkmcnt(0)")
        a("v_cmp_ne_u32 vcc, 0, v5")
        a(f"s_cbranch_vccnz {dn}")
        a("s_sleep 1")
        a(f"s_sub_u32 s{sSPIN}, s{sSPIN}, 1")
        a(f"s_cbranch_scc0 {lp}")
        a(f"{dn}:")

    def wait_n(T):
        if T:
            a(f"s_waitcnt vmcnt({T-1})")

    def mod_tile(ngrp, srow0, scol, T, after_issue, before_issue):
        ACC, PT, W = 32, 64, 72
        vm = Vm(a)
        a(f"s_mul_i32 s10, s{srow0}, 12288")
        a(f"s_add_u32 s10, s10, s{scol}")
        a(f"s_mov_b32 s9, {8*12288}")
        a(f"v_mul_lo_u32 v8, v7, s9")
        a(f"v_and_b32 v9, 7, v{vLANE}")
        a(f"v_lshl_add_u32 v8, v9, 4, v8")
        a(f"v_bfe_u32 v10, v{vLANE}, 2, 1")
        a(f"v_lshlrev_b32 v10, 11, v10")
        a(f"v_lshl_add_u32 v10, v7, 4, v10")
        a(f"s_lshl_b32 s11, s{srow0}, 1")
        before_issue()
        srd(rT0, pWM, 12582912)
        srd(rT1, pC, 4096)
        for q4 in range(ngrp):
            tc = vm.issue(f"buffer_load_dwordx4 {R(ACC + q4*4)}, v10, {S4(rT1)}, s11 offen offset:{q4*128}")
        toks = {}

        def grp(q4):
            for e in range(8):
                a(f"s_add_u32 s9, s10, {(64*q4+e)*12288}")
                wait_n(T)
                toks[q4] = vm.issue(f"buffer_load_dwordx4 {R(W + (q4 % 3)*32 + e*4)}, v8, {S4(rT0)}, s9 offen {nt}")
        for q4 in range(min(ngrp, 3)):
            grp(q4)
        after_issue()
        if pure == 1:
            if ngrp == 4:
                vm.wait(toks[0])
                grp(3)
            a("s_waitcnt vmcnt(0)")
            a("s_branch L_fin")
        vm.wait(tc)
        a(f"s_mov_b32 s9, 0xbfb8aa3b")
        for i in range(4 * ngrp):
            lo(4, ACC + i)
            hi(5, ACC + i)
            a(f"v_mul_f32 v6, s9, v4\nv_mul_f32 v11, s9, v5")
            a(f"v_exp_f32 v6, v6\nv_exp_f32 v11, v11")
            a(f"v_add_f32 v6, 1.0, v6\nv_add_f32 v11, 1.0, v11")
            a(f"v_rcp_f32 v6, v6\nv_rcp_f32 v11, v11")
            a(f"v_mul_f32 v4, v4, v6\nv_mul_f32 v5, v5, v11")
            a(f"v_cvt_pk_bf16_f32 v{16+i}, v4, v5")
        a(f"v_and_b32 v11, 3, v{vLANE}")
        a(f"v_bfe_u32 v10, v{vLANE}, 4, 1")
        a(f"v_lshl_add_u32 v9, v10, 2, v11")
        a(f"v_lshrrev_b32 v10, 5, v{vLANE}")
        a(f"v_lshl_add_u32 v9, v9, 1, v10")
        a(f"v_bfe_u32 v10, v{vLANE}, 2, 1")
        for q4 in range(ngrp):
            vm.wait(toks[q4])
            for d in range(8):
                t = PT + (d & 1) * 4
                perm_operand(t, W + (q4 % 3) * 32, d)
                c = "0" if q4 == 0 else R(ACC + d * 4)
                a(f"v_mfma_f32_16x16x32_bf16 {R(ACC + d*4)}, {R(t)}, {R(16 + q4*4)}, {c}")
            if q4 + 3 < ngrp:
                grp(q4 + 3)
        O = 72
        for d in range(4):
            for r in range(4):
                a(f"v_permlane32_swap_b32 v{ACC + d*4 + r}, v{ACC + (d+4)*4 + r}")
        for d in range(4):
            for r in range(4):
                dpp_add(O + r * 4 + d, ACC + (d + 4) * 4 + r, ACC + d * 4 + r, 8)
        for r in range(1, 4):
            a(f"v_cmp_eq_u32 vcc, {r}, v11")
            for d in range(4):
                a(f"v_cndmask_b32 v{O+d}, v{O+d}, v{O + r*4 + d}, vcc")

    def tag4(d):
        a(f"v_add_u32 v{d}, {(T4+1)//2}, v{d}")
        a(f"v_bfi_b32 v{d}, {T4}, v{vTAG}, v{d}")

    def check4(regs):
        regs = list(regs)
        for r in regs:
            a(f"v_xor_b32 v{r}, v15, v{r}")
        a(f"v_or_b32 v{vBAD}, v{regs[0]}, v{regs[1]}")
        for i in range(2, len(regs), 2):
            a(f"v_or3_b32 v{vBAD}, v{vBAD}, v{regs[i]}, v{regs[i+1]}")
        a(f"v_and_b32 v{vBAD}, {T4}, v{vBAD}")
        a(f"v_or_b32_dpp v{vBAD}, v{vBAD}, v{vBAD} quad_perm:[1,0,3,2] row_mask:0xf bank_mask:0xf")
        a(f"v_or_b32_dpp v{vBAD}, v{vBAD}, v{vBAD} quad_perm:[2,3,0,1] row_mask:0xf bank_mask:0xf")
        a(f"v_or_b32_dpp v{vBAD}, v{vBAD}, v{vBAD} row_half_mirror row_mask:0xf bank_mask:0xf")

    def lds_wait(addr, val, cmp="eq"):
        lp, dn = a.label("Lw"), a.label("Lwd")
        a(f"v_mov_b32 v4, {addr}")
        a(f"s_mov_b32 s{sSPIN}, {spin*20}")
        a(f"{lp}:")
        a("ds_read_b32 v5, v4")
        a("s_waitcnt lgkmcnt(0)")
        a(f"v_cmp_{cmp}_u32 vcc, {val}, v5")
        a(f"s_cbranch_vccnz {dn}")
        a("s_sleep 1")
        a(f"s_sub_u32 s{sSPIN}, s{sSPIN}, 1")
        a(f"s_cbranch_scc0 {lp}")
        a(f"{dn}:")

    def get_loc():
        lp, dn = a.label("Lw"), a.label("Lwd")
        a(f"v_mov_b32 v4, {QFL+8}")
        a(f"s_mov_b32 s{sSPIN}, {spin*20}")
        a(f"{lp}:")
        a("ds_read_b32 v5, v4")
        a("s_waitcnt lgkmcnt(0)")
        a(f"v_cmp_ne_u32 vcc, 0, v5")
        a(f"s_cbranch_vccnz {dn}")
        a("s_sleep 1")
        a(f"s_sub_u32 s{sSPIN}, s{sSPIN}, 1")
        a(f"s_cbranch_scc0 {lp}")
        a(f"{dn}:")
        a(f"v_readfirstlane_b32 s{sLOC}, v5")

    def publish_moments(M, soff, with_quad=None):
        red4(M, ())
        a(f"v_add_f32_dpp v{M}, v{M}, v{M} quad_perm:[1,0,3,2] row_mask:0xf bank_mask:0xf")
        a(f"v_add_f32_dpp v{M}, v{M}, v{M} quad_perm:[2,3,0,1] row_mask:0xf bank_mask:0xf")
        a(f"v_add_f32_dpp v{M}, v{M}, v{M} row_half_mirror row_mask:0xf bank_mask:0xf")
        untr(M)
        a(f"v_mov_b32 v{M+3}, s{sEP}")
        if with_quad is not None:
            a("s_mov_b64 exec, 0xff")
            for k in range(4):
                a(f"v_mov_b32 v{M+k}, v{with_quad+k}")
            a("s_mov_b64 exec, 0x101ff")
            a(f"buffer_store_dwordx4 {R(M)}, v{M+4}, {S4(rWS)}, s{soff} offen sc1")
            a(FULL)
            return
        a("s_mov_b64 exec, 0x101")
        a(f"buffer_store_dwordx4 {R(M)}, v{M+4}, {S4(rWS)}, s{soff} offen sc1")
        a(FULL)

    def moment_addr(d, kp, soff, kind):
        a(f"v_lshlrev_b32 v{d}, 1, v{vLANE}")
        a(f"s_add_u32 s{soff}, s75, {XS + kind*8192}")

    def hopB1():
        a(f"v_and_b32 v15, {T4}, v{vTAG}")
        a(f"v_lshrrev_b32 v7, 3, v{vLANE}")
        a(f"v_and_b32 v8, 7, v{vLANE}")
        a(f"v_lshlrev_b32 v9, 15, v7")
        a(f"v_lshl_add_u32 v9, v8, 4, v9")
        a(f"s_lshl_b32 s10, s{sL}, 7")
        a(f"s_add_u32 s11, s10, {QFN}")
        a(f"s_add_u32 s10, s10, {QP}")
        a(f"v_lshlrev_b32 v10, 4, v{vLANE}")
        get_loc()
        lds_wait(QFL + 4, 2)
        if bdelay:
            a(f"s_sleep {bdelay}")
        pollx(lambda: a(f"buffer_load_dwordx4 {R(32)}, v9, {S4(rWS)}, s10 offen sc1"), lambda: check4(range(32, 36)),
              f2=True, slp=cslp, name='b')
        red4(32, (8,))
        a("v_cvt_pk_bf16_f32 v32, v32, v32")
        a(f"v_bfi_b32 v32, s{sHI}, v32, v{vTAG}")
        untr(32)
        a("s_mov_b64 exec, 0xff")
        store_grp("buffer_store_dwordx4", R(32), 10, 11)
        a(FULL)
        a(f"v_mov_b32 v4, {QFL+4}\nv_mov_b32 v5, 3")
        a("ds_write_b32 v4, v5")
        a("s_waitcnt lgkmcnt(0)")
        stamp(14)
        a("s_branch L_fin")

    def hopB2():
        a(f"v_lshlrev_b32 v9, 4, v{vLANE}")
        a(f"s_lshl_b32 s10, s{sXCD}, 12")
        a(f"s_add_u32 s10, s10, {QFN}")
        lds_wait(QFL + 4, 3)

        def ld():
            for i in range(4):
                a(f"buffer_load_dwordx4 {R(32 + i*4)}, v9, {S4(rWS)}, s10 offen offset:{i*1024} sc1")
        pollx(ld, lambda: check_regs(range(32, 48)), slp=cslp, name='c')
        for e in range(8):
            a(f"v_perm_b32 v{48+e}, v{33+2*e}, v{32+2*e}, s{sSELHI}")
        a(f"v_and_b32 v9, 7, v{vLANE}")
        a(f"v_lshlrev_b32 v9, 5, v9")
        a(f"v_bfe_u32 v10, v{vLANE}, 3, 2")
        a(f"v_lshl_add_u32 v9, v10, 3, v9")
        a(f"v_lshrrev_b32 v10, 5, v{vLANE}")
        a(f"v_lshl_add_u32 v9, v10, 8, v9")
        a(f"v_add_u32 v9, {QB}, v9")
        for i in range(4):
            a(f"ds_write_b64 v9, {R(48 + 2*i, 2)} offset:{i*512}")
        a(f"v_mov_b32 v4, {QFL}\nv_mov_b32 v5, 2")
        a("s_waitcnt lgkmcnt(0)")
        a("ds_write_b32 v4, v5")
        a("s_waitcnt lgkmcnt(0)")
        stamp(4)
        a("s_branch L_fin")

    def hopB(half):
        a(f"v_and_b32 v15, {T4}, v{vTAG}")
        a(f"v_lshlrev_b32 v9, 4, v{vLANE}")
        a(f"s_lshl_b32 s10, s{sXCD}, 12")
        a(f"s_add_u32 s10, s10, {QP + half*2048}")
        for i in range(bdelay):
            a("s_sleep 37")

        def ld():
            for p in range(8):
                a(f"s_add_u32 s9, s10, {p*32768}")
                for i in range(2):
                    a(f"buffer_load_dwordx4 {R(32 + p*8 + i*4)}, v9, {S4(rWS)}, s9 offen offset:{i*1024} sc1")
        pollx(ld, lambda: check4(range(32, 96)), f2=True, slp=cslp)
        for st in (32, 16, 8):
            for e in range(st):
                a(f"v_add_f32 v{32+e}, v{32+e}, v{32+st+e}")
        for e in range(4):
            a(f"v_cvt_pk_bf16_f32 v{40+e}, v{32+2*e}, v{33+2*e}")
        a(f"v_lshlrev_b32 v9, 3, v{vLANE}")
        a(f"v_add_u32 v9, {QB + half*1024}, v9")
        for i in range(2):
            a(f"ds_write_b64 v9, {R(40 + 2*i, 2)} offset:{i*512}")
        a(f"v_mov_b32 v4, {QFL}\nv_mov_b32 v5, 1")
        a("s_waitcnt lgkmcnt(0)")
        a("s_mov_b64 exec, 1")
        a("ds_add_u32 v4, v5")
        a(FULL)
        a("s_waitcnt lgkmcnt(0)")
        stamp(4)
        a("s_branch L_fin")

    def f2_pack(src, dst):
        for k in range(4):
            a(f"v_mov_b32 v{dst+2*k}, v{src+k}")
            a(f"v_mov_b32 v{dst+2*k+1}, s{sEP}")

    def consumer_ids():
        a(f"s_lshr_b32 s12, s{sAI}, 2")
        a(f"s_and_b32 s13, s{sAI}, 3")
        a(f"s_lshl_b32 s13, s13, 5")
        a(f"s_lshl_b32 s9, s{sXCD}, 7")
        a(f"s_add_u32 s13, s13, s9")
        a(f"s_lshl_b32 s75, s12, 12")
        a(f"s_lshl_b32 s9, s13, 2")
        a(f"s_add_u32 s75, s75, s9")

    def w1_dma(vm, T, lo_=0, hi_=8, va=8, vb=9, sa=10, sb=11):
        srd(rT0, pW1, 7340032)
        a(f"v_lshrrev_b32 v{va}, 4, v{vLANE}")
        a(f"v_mul_u32_u24 v{va}, 7168, v{va}")
        a(f"v_and_b32 v{vb}, 15, v{vLANE}")
        a(f"v_lshl_add_u32 v{va}, v{vb}, 4, v{va}")
        a(f"s_and_b32 s{sa}, s{sBI}, 3")
        a(f"s_lshl_b32 s{sa}, s{sa}, 3")
        a(f"s_add_u32 s{sa}, s{sa}, s{sWAVE}")
        a(f"s_mul_i32 s{sa}, s{sa}, {32*7168}")
        a(f"s_lshr_b32 s{sb}, s{sBI}, 2")
        a(f"s_lshl_b32 s{sb}, s{sb}, 8")
        a(f"s_add_u32 s{sa}, s{sa}, s{sb}")
        a(f"s_lshl_b32 s{sb}, s{sWAVE}, 13")
        t = None
        for i in range(lo_, hi_):
            a(f"s_add_u32 m0, s{sb}, {WT + i*1024}")
            a(f"s_add_u32 s9, s{sa}, {4*i*7168}")
            wait_n(T)
            t = vm.issue(f"buffer_load_dwordx4 v{va}, {S4(rT0)}, s9 offen {nt} lds")
        return t

    if nohelp:
        a(f"s_cmp_lt_u32 s{sW12}, 4")
        a("s_cbranch_scc1 L_end")
    a(f"s_cmp_eq_u32 s{sW12}, 1")
    a("s_cbranch_scc1 L_moda")
    a(f"s_cmp_ge_u32 s{sW12}, 4")
    a("s_cbranch_scc1 L_att")
    a(f"s_cmp_eq_u32 s{sW12}, 0")
    a("s_cbranch_scc1 L_chain")
    a(f"s_cmp_eq_u32 s{sW12}, 2")
    a("s_cbranch_scc1 L_red")

    if codewarm:
        lw = a.label("Lnowarm")
        a(f"s_cmp_lt_u32 s{sIDX}, 30")
        a(f"s_cbranch_scc1 {lw}")
        a("s_getpc_b64 s[10:11]")
        a("L_pc0:")
        a(f"v_lshlrev_b32 v8, 4, v{vLANE}")
        a(f"s_mov_b32 s9, 0")
        lp = a.label("Lwarm")
        a(f"{lp}:")
        a(f"v_min_u32 v9, L_end-L_pc0-16, v8")
        a(f"global_load_dwordx4 {R(64)}, v9, s[10:11]")
        a(f"v_add_u32 v8, 1024, v8")
        a(f"s_add_u32 s9, s9, 1024")
        a(f"s_cmp_lt_u32 s9, L_end-L_pc0")
        a(f"s_cbranch_scc1 {lp}")
        a(f"{lw}:")
    a(f"v_lshrrev_b32 v11, 4, v{vLANE}")
    a(f"s_mov_b32 s9, {8*12288}")
    a(f"v_mul_lo_u32 v8, v11, s9")
    a(f"v_and_b32 v9, 15, v{vLANE}")
    a(f"v_lshl_add_u32 v8, v9, 4, v8")
    a(f"v_and_b32 v6, 1, v{vLANE}")
    a(f"v_lshlrev_b32 v10, 11, v6")
    a(f"v_lshl_add_u32 v10, v11, 4, v10")
    a(f"s_and_b32 s12, s{sIDX}, 7")
    a(f"s_lshr_b32 s14, s{sIDX}, 3")
    a(f"s_mul_i32 s10, s12, {128*12288}")
    a(f"s_lshl_b32 s14, s14, 3")
    a(f"s_add_u32 s14, s14, s{sXCD}")
    a(f"s_lshl_b32 s9, s14, 8")
    a(f"s_add_u32 s10, s10, s9")
    a(f"s_add_u32 s10, s10, 4096")
    a(f"s_lshl_b32 s11, s12, 8")
    a(f"s_lshl_b32 s15, s12, 15")
    a(f"s_lshl_b32 s9, s14, 9")
    a(f"s_add_u32 s15, s15, s9")
    a(f"s_add_u32 s15, s15, {MODP}")
    kargs()
    load_epoch()
    srd(rWS, pWS, WS_BYTES)
    srd(rT0, pWM, 12582912)
    srd(rT1, pC, 4096)
    a("s_barrier")
    if mbgate:
        lds_wait(QFL + 4, mbgate, "le")
    BO, ACC, PTm, Wm = 16, 32, 64, 72
    vm = Vm(a)
    for blk in range(4):
        tc = vm.issue(f"buffer_load_dwordx4 {R(BO + blk*4)}, v10, {S4(rT1)}, s11 offen offset:{blk*64}")
    toks = {}

    def mblk(blk):
        for e in range(8):
            a(f"s_add_u32 s9, s10, {(32*blk+e)*12288}")
            wait_n(thrb)
            toks[blk] = vm.issue(f"buffer_load_dwordx4 {R(Wm + (blk % 3)*32 + e*4)}, v8, {S4(rT0)}, s9 offen {nt}")
    mblk(0)
    mblk(1)
    mblk(2)
    get_tag()
    vm.wait(tc)
    a(f"s_mov_b32 s13, 0xbfb8aa3b")
    for blk in range(4):
        for i in range(4 * blk, 4 * blk + 4):
            lo(4, BO + i)
            hi(5, BO + i)
            a(f"v_mul_f32 v2, s13, v4\nv_mul_f32 v3, s13, v5")
            a(f"v_exp_f32 v2, v2\nv_exp_f32 v3, v3")
            a(f"v_add_f32 v2, 1.0, v2\nv_add_f32 v3, 1.0, v3")
            a(f"v_rcp_f32 v2, v2\nv_rcp_f32 v3, v3")
            a(f"v_mul_f32 v4, v4, v2\nv_mul_f32 v5, v5, v3")
            a(f"v_cvt_pk_bf16_f32 v{BO+i}, v4, v5")
        vm.wait(toks[blk])
        for d in range(8):
            t = PTm + (d & 1) * 4
            perm_operand(t, Wm + (blk % 3) * 32, d)
            c = "0" if blk == 0 else R(ACC + d * 4)
            a(f"v_mfma_f32_16x16x32_bf16 {R(ACC + d*4)}, {R(t)}, {R(BO + blk*4)}, {c}")
        if blk + 3 < 4:
            mblk(blk + 3)
    a(f"v_bfe_u32 v9, v{vLANE}, 1, 1")
    a(f"v_bfe_u32 v10, v{vLANE}, 2, 2")
    a("v_cmp_eq_u32 vcc, 1, v9")
    for i in range(16):
        a(f"v_cndmask_b32 v{ACC+i}, v{ACC+i}, v{ACC+16+i}, vcc")
    for r in range(1, 4):
        a(f"v_cmp_eq_u32 vcc, {r}, v10")
        for k in range(4):
            a(f"v_cndmask_b32 v{ACC+4*k}, v{ACC+4*k}, v{ACC+4*k+r}, vcc")
    for k in range(4):
        tag_round(16 + k, ACC + 4 * k)
    a(f"v_lshl_add_u32 v10, v11, 2, v10")
    a(f"v_lshl_add_u32 v9, v10, 1, v9")
    a(f"v_lshlrev_b32 v9, 4, v9")
    a(f"v_lshl_add_u32 v9, v6, 14, v9")
    get_loc()
    store_grp("buffer_store_dwordx4", R(16), 9, 15)
    stamp(16)
    a(f"s_bitcmp1_b32 s{sIDX}, 0")
    a("s_cbranch_scc1 L_fin")
    a(f"s_cmp_ge_u32 s{sAI}, 8")
    a("s_cbranch_scc1 L_fin")
    GA, XV, B2V = 32, 48, 49
    lds_wait(QFL, 2)
    consumer_ids()
    srd(rT0, pX, 4096)
    srd(rT1, pB2, 2048)
    kperm(4, 5)
    a(f"v_and_b32 v8, 7, v{vLANE}")
    a(f"v_lshl_add_u32 v11, v8, 2, v4")
    a(f"v_lshlrev_b32 v5, 1, v11")
    a(f"s_lshr_b32 s9, s75, 1")
    a(f"buffer_load_ushort v{XV}, v5, {S4(rT0)}, s9 offen")
    a(f"s_lshl_b32 s9, s13, 1")
    a(f"buffer_load_ushort v{B2V}, v5, {S4(rT1)}, s9 offen")
    a(f"v_lshlrev_b32 v10, 15, v7")
    a(f"v_lshl_add_u32 v10, v8, 4, v10")
    a(f"s_lshl_b32 s14, s12, 14")
    a(f"s_lshl_b32 s9, s13, 2")
    a(f"s_add_u32 s14, s14, s9")

    def gloads():
        for k in range(4):
            a(f"s_add_u32 s9, s14, {MODP + k*4096}")
            a(f"buffer_load_dwordx4 {R(GA + 4*k)}, v10, {S4(rWS)}, s9 offen sc1")
    pollx(gloads, lambda: check_regs(range(GA, GA + 16)), slp=16, name='m')
    for k in range(4):
        red4(GA + 4 * k, (8,))
    rnd2(GA, GA + 12, 5)
    rnd2(GA + 4, GA + 8, 5)
    a(f"v_add_f32 v{GA+8}, 1.0, v{GA+8}")
    rnd1(GA + 8, GA + 8)
    a(f"v_or_b32 v{GA+4}, v{vTAG}, v{GA+4}\nv_or_b32 v{GA+8}, v{vTAG}, v{GA+8}")
    a(f"v_lshlrev_b32 v9, 2, v11")
    a(f"s_add_u32 s9, s75, {X1 + 8192}")
    a(f"s_add_u32 s10, s75, {X1 + 16384}")
    a(f"v_mov_b32 v60, v{GA+4}\nv_mov_b32 v64, v{GA+8}")
    untr(60)
    untr(64)
    a(f"v_lshlrev_b32 v68, 4, v{vLANE}")
    a("s_mov_b64 exec, 0xff")
    a(f"buffer_store_dwordx4 {R(60)}, v68, {S4(rWS)}, s9 offen sc1")
    a(f"buffer_store_dwordx4 {R(64)}, v68, {S4(rWS)}, s10 offen sc1")
    a(FULL)
    lo(XV, XV)
    lo(B2V, B2V)
    a(f"v_add_u32 v5, {XB}, v9")
    a(f"ds_write_b32 v5, v{GA+12} offset:128")
    a(f"ds_write_b32 v5, v{B2V} offset:256")
    a(f"ds_write_b32 v5, v{GA} offset:384")
    a(f"ds_write_b32 v5, v{XV} offset:512")
    a(f"v_xor_b32 v{GA+4}, v{vTAG}, v{GA+4}\nv_xor_b32 v{GA+8}, v{vTAG}, v{GA+8}")
    a(f"ds_write_b32 v5, v{GA+4}")
    a(f"ds_write_b32 v5, v{GA+8} offset:640")
    moment_addr(56, 4, 10, 1)
    a(f"v_mov_b32 v52, v{GA+8}")
    a(f"v_mul_f32 v53, v{GA+8}, v{GA+8}")
    a(f"v_mul_f32 v54, v{GA+8}, v{GA+4}")
    a(f"v_mov_b32 v55, 0")
    a("s_mov_b32 exec_lo, 0xff00ff00\ns_mov_b32 exec_hi, 0xff00ff00")
    a(f"v_mov_b32 v52, v{GA+4}")
    a(f"v_mul_f32 v53, v{GA+4}, v{GA+4}")
    a("v_mov_b32 v54, 0")
    a(FULL)
    publish_moments(52, 10)
    a("s_waitcnt lgkmcnt(0)")
    a("s_branch L_fin")

    a("L_moda:")
    a("s_setprio 3")
    a(f"s_lshr_b32 s12, s{sIDX}, 2")
    a(f"s_lshl_b32 s13, s12, 7")
    a(f"s_bfe_u32 s14, s{sIDX}, 0x10001")
    a(f"s_and_b32 s15, s{sIDX}, 1")
    a(f"s_lshl_b32 s88, s14, 11")
    a(f"s_lshl_b32 s9, s{sXCD}, 8")
    a(f"s_add_u32 s88, s88, s9")
    a(f"s_lshl_b32 s9, s15, 7")
    a(f"s_add_u32 s88, s88, s9")

    def after_a():
        a("s_barrier")
        load_epoch()
        srd(rWS, pWS, WS_BYTES)
        get_tag()
        a(f"s_lshl_b32 s13, s{sXCD}, 14")
        a(f"s_lshl_b32 s9, s12, 11")
        a(f"s_add_u32 s13, s13, s9")
        a(f"s_lshl_b32 s9, s14, 10")
        a(f"s_add_u32 s13, s13, s9")
        a(f"s_lshl_b32 s9, s15, 8")
        a(f"s_add_u32 s13, s13, s9")
        a(f"s_add_u32 s13, s13, {MA}")
        prewrite(64, 4, 9, 13)
    mod_tile(2, 13, 88, 0, after_a, kargs)
    for d in range(4):
        tag4(72 + d)
    a(f"v_lshlrev_b32 v9, 4, v9")
    a(f"v_lshl_add_u32 v9, v10, 9, v9")
    a(MASK8)
    a(f"buffer_store_dwordx4 {R(72)}, v9, {S4(rWS)}, s13 offen")
    a(FULL)
    a(f"v_mov_b32 v4, {QFL+12}\nv_mov_b32 v5, 1")
    a("ds_write_b32 v4, v5")
    stamp(1)
    a("s_getreg_b32 s88, hwreg(HW_REG_XCC_ID)")
    a("s_lshl_b32 s88, s88, 12")
    if xdelay:
        a(f"s_sleep {xdelay}")
    else:
        a("s_waitcnt vmcnt(0)")
    a(f"v_and_b32 v8, 31, v{vLANE}")
    a(f"v_lshlrev_b32 v8, 7, v8")
    a(f"s_lshl_b32 s10, s{sXCD}, 12")
    a(f"s_add_u32 s10, s10, {XID}")
    pollx(lambda: a(f"buffer_load_dwordx4 {R(32)}, v8, {S4(rWS)}, s10 offen sc1"), lambda: check_regs(range(32, 36)), name='x')
    if 'x' in skip:
        a("v_mov_b32 v32, s88")
    a("v_cmp_ne_u32 vcc, s88, v32")
    a("s_cmp_eq_u64 vcc, 0")
    a(f"s_cselect_b32 s{sLOC}, {2 if noloc else 1}, 2")
    a(f"v_mov_b32 v4, {QFL+8}\nv_mov_b32 v5, s{sLOC}")
    a("ds_write_b32 v4, v5")
    stamp(25)
    a(f"s_cmp_eq_u32 s{sLOC}, 1")
    a("s_cbranch_scc1 L_maok")
    a(MASK8)
    a(f"buffer_store_dwordx4 {R(72)}, v9, {S4(rWS)}, s13 offen sc1")
    a(FULL)
    a("L_maok:")
    if b2stage:
        hopB2()
    else:
        lds_wait(QFL + 4, 2)
        hopB(0)

    a("L_red:")
    kargs()
    srd(rWS, pWS, WS_BYTES)
    load_epoch()
    a("s_barrier")
    a("s_setprio 3")
    vm = Vm(a)
    srd(rT1, pX, 4096)
    a(f"v_lshrrev_b32 v10, 5, v{vLANE}")
    a(f"v_and_b32 v11, 31, v{vLANE}")
    a(f"v_lshlrev_b32 v9, 11, v10")
    a(f"v_lshl_add_u32 v9, v11, 4, v9")
    for q in range(4):
        vm.issue(f"buffer_load_dwordx4 {R(72 + q*4)}, v9, {S4(rT1)}, 0 offen offset:{q*512}")
    a(f"v_lshlrev_b32 v9, 11, v10")
    a(f"v_lshl_add_u32 v9, v11, 3, v9")
    a(f"s_lshl_b32 s11, s{sXCD}, 8")
    tx = vm.issue(f"buffer_load_dwordx2 {R(88, 2)}, v9, {S4(rT1)}, s11 offen")
    a("s_getreg_b32 s88, hwreg(HW_REG_XCC_ID)")
    a("s_lshl_b32 s88, s88, 12")
    a(f"v_lshlrev_b32 v4, 4, v{vLANE}")
    a(f"s_lshl_b32 s9, s{sL}, 7")
    a(f"s_add_u32 s9, s9, {XID}")
    get_tag()
    a(f"v_or_b32 v96, s88, v{vTAG}")
    a("v_mov_b32 v97, v96\nv_mov_b32 v98, v96\nv_mov_b32 v99, v96")
    a("s_mov_b64 exec, 0xff")
    if 'X' not in skip:
        a(f"buffer_store_dwordx4 {R(96)}, v4, {S4(rWS)}, s9 offen sc1")
    a(FULL)
    a(f"s_add_u32 s9, s9, {QFN - XID}")
    prewrite(100, 2, 6, 9)
    if pure == 1:
        a("s_branch L_fin")
    def touch(n, lo_bits, hi_shift, base):
        a(f"v_lshrrev_b32 v101, {lo_bits}, v{vLANE}")
        a(f"v_lshlrev_b32 v101, {hi_shift - 7}, v101")
        a(f"v_and_or_b32 v101, v{vLANE}, {(1 << lo_bits) - 1}, v101")
        a(f"v_lshlrev_b32 v101, 7, v101")
        a(f"s_add_u32 s9, s9, {base}")
        if n < 64:
            a(f"s_mov_b64 exec, {(1 << n) - 1:#x}" if n < 32 else "s_mov_b32 exec_hi, 0")
        a(f"buffer_load_dword v100, v101, {S4(rWS)}, s9 offen")
        if n < 64:
            a(FULL)
    if 'm' in ptall:
        a(f"s_lshl_b32 s9, s{sXCD}, 14\ns_lshl_b32 s10, s{sAI}, 10\ns_add_u32 s9, s9, s10")
        a(f"s_and_b32 s10, s{sIDX}, 1\ns_lshl_b32 s10, s10, 8\ns_add_u32 s9, s9, s10")
        touch(4, 1, 9, MA)
    if 'q' in ptall:
        a(f"s_lshl_b32 s9, s{sXCD}, 15\ns_lshl_b32 s10, s{sIDX}, 9\ns_add_u32 s9, s9, s10")
        touch(8, 2, 14, QP)
    if 'f' in ptall:
        for base in (QFN, OF, ML):
            a(f"s_mul_i32 s9, s{sL}, {128 * (ofstr if base == OF else 1)}")
            touch(1, 0, 7, base)
    if 'd' in ptall:
        a(f"s_and_b32 s9, s{sIDX}, 7\ns_lshl_b32 s9, s9, 15")
        a(f"s_lshr_b32 s10, s{sIDX}, 3\ns_lshl_b32 s10, s10, 12\ns_add_u32 s9, s9, s10")
        a(f"s_lshl_b32 s10, s{sXCD}, 9\ns_add_u32 s9, s9, s10")
        touch(8, 2, 14, MODP)
    if 'o' in ptall:
        a(f"s_lshl_b32 s9, s{sXCD}, 17\ns_lshl_b32 s10, s{sIDX}, 9\ns_add_u32 s9, s9, s10")
        touch(32, 2, 14, OP)
    a(f"s_bitcmp1_b32 s{sIDX}, 0")
    a("s_cbranch_scc1 L_tB")
    if 'x' in ptall:
        a(f"s_lshl_b32 s9, s{sAI}, 13\ns_lshl_b32 s10, s{sXCD}, 9\ns_add_u32 s9, s9, s10")
        touch(8, 2, 12, XP)
    a(f"s_cmp_ge_u32 s{sBI}, 112")
    a("s_cbranch_scc1 L_tD")
    if 'y' in ptall:
        a(f"s_lshl_b32 s9, s{sBI}, 13")
        touch(64, 6, 13, YP)
    if 'x' in ptall:
        a(f"s_cmp_ge_u32 s{sAI}, 8")
        a("s_cbranch_scc1 L_tD")
        consumer_ids()
        a("s_mov_b32 s9, s75")
        touch(2, 0, 13, X1 + 8192)
        a("s_mov_b32 s9, s75")
        touch(1, 0, 13, XS + 8192)
        a(f"s_mul_i32 s9, s75, {xstr}")
        touch(1, 0, 7, XH)
        a(f"s_mul_i32 s9, s75, {xstr}")
        touch(1, 0, 7, XH + xrec)
    a("s_branch L_tD")
    a("L_tB:")
    a(f"s_cmp_ge_u32 s{sBI}, 112")
    a("s_cbranch_scc1 L_tD")
    if 'x' in ptall:
        a(f"s_lshl_b32 s9, s{sBI}, 10")
        touch(8, 3, 10, HP)
    a("L_tD:")
    if tlbw:
        a("v_mov_b32 v101, 0")
        a("s_mov_b64 exec, 1")
        a(f"s_lshl_b32 s9, s{sL}, 18")
        for ptr, size, off in ((pV, 0x4000000, "s9"), (pWO, 8388608, "0"), (pW1, 7340032, "0"), (pW2, 7340032, "0"), (pB1, 7168, "0"), (pOUT, 4096, "0")):
            srd(rT2, ptr, size)
            a(f"buffer_load_dword v100, v101, {S4(rT2)}, {off} offen {nt}")
        a(FULL)
    nmin = 6 * bool(tlbw) + ('X' not in skip) + ('m' in ptall) + ('q' in ptall) + 3 * ('f' in ptall) + ('d' in ptall) + ('o' in ptall)
    a(f"s_waitcnt vmcnt({nmin})")
    a("v_mov_b32 v4, 0\nv_mov_b32 v5, 0")
    for i in range(16):
        lo(6, 72 + i)
        hi(8, 72 + i)
        a(f"v_add_f32 v4, v4, v6\nv_fmac_f32 v5, v6, v6")
        a(f"v_add_f32 v4, v4, v8\nv_fmac_f32 v5, v8, v8")
    for r in (1, 2, 4, 8):
        dpp_add(4, 4, 4, r)
        dpp_add(5, 5, 5, r)
    allred(4, 6, "v_add_f32", (16,))
    allred(5, 6, "v_add_f32", (16,))
    ln_stats(4, 5, 6, 8, 9)
    for i in range(2):
        lo(24 + 2 * i, 88 + i)
        hi(25 + 2 * i, 88 + i)
        ln_apply(24 + 2 * i, 25 + 2 * i, 6, 8, 9)
    a(f"v_and_b32 v15, {T4}, v{vTAG}")
    a(f"v_lshlrev_b32 v9, 4, v{vLANE}")
    a(f"s_lshl_b32 s10, s{sXCD}, 14")
    a(f"s_add_u32 s10, s10, {MA}")

    if agate:
        lds_wait(QFL + 12, 1)
    if adelay:
        a(f"s_sleep {adelay}")

    def ldA():
        for p in range(8):
            if p % 2 == 0:
                a(f"s_add_u32 s9, s10, {p*2048}")
            for wh in range(2):
                a(f"buffer_load_dwordx4 {R(32 + p*8 + wh*4)}, v9, {S4(rWS)}, s9 offen offset:{(p % 2)*2048 + wh*1024} sc1")
    pollx(ldA, lambda: check4(range(32, 96)), f2=True, slp=cslp, name='a')
    stamp(2)
    for st in (32, 16, 8):
        for e in range(st):
            a(f"v_add_f32 v{32+e}, v{32+e}, v{32+st+e}")
    for i in range(2):
        s0, c0, l0 = 32 + 2 * i, 36 + 2 * i, 24 + 2 * i
        rnd2(s0, s0 + 1, 6)
        rnd2(c0, c0 + 1, 6)
        a(f"v_add_f32 v{c0}, 1.0, v{c0}\nv_add_f32 v{c0+1}, 1.0, v{c0+1}")
        rnd2(c0, c0 + 1, 6)
        a(f"v_mul_f32 v{c0}, v{c0}, v{l0}\nv_mul_f32 v{c0+1}, v{c0+1}, v{l0+1}")
        rnd2(c0, c0 + 1, 6)
        a(f"v_add_f32 v{c0}, v{c0}, v{s0}\nv_add_f32 v{c0+1}, v{c0+1}, v{s0+1}")
        a(f"v_cvt_pk_bf16_f32 v{40+i}, v{c0}, v{c0+1}")
    a(f"v_lshlrev_b32 v9, 3, v{vLANE}")
    a(f"v_add_u32 v9, {HB}, v9")
    a(f"ds_write_b64 v9, {R(40, 2)}")
    a(f"v_mov_b32 v4, {QFL+4}\nv_mov_b32 v5, 1")
    a("s_waitcnt lgkmcnt(0)")
    a("ds_write_b32 v4, v5")
    stamp(17)
    if b2stage:
        hopB1()
    else:
        lds_wait(QFL + 4, 2)
        hopB(1)

    a("L_chain:")
    a("s_setprio 3")
    W = 40
    a(f"v_lshrrev_b32 v11, 4, v{vLANE}")
    a(f"v_lshlrev_b32 v8, 13, v11")
    a(f"v_and_b32 v15, 15, v{vLANE}")
    a(f"v_lshl_add_u32 v8, v15, 4, v8")
    if swz:
        a(f"v_lshlrev_b32 v6, 5, v11")
        a(f"v_xor_b32 v8, v8, v6")
        a(f"v_xor_b32 v9, 0x80, v8")
    a(f"s_lshl_b32 s10, s{sXCD}, 20")
    a(f"s_lshl_b32 s11, s{sIDX}, 8")
    a(f"s_add_u32 s10, s10, s11")
    a(f"s_mov_b32 m0, {WT}")
    kargs()
    srd(rT0, pWQ, 8388608)
    srd(rWS, pWS, WS_BYTES)
    load_epoch()
    a("s_barrier")
    a("L_wql:")
    for n in range(4):
        wait_n(thrq)
        a(f"buffer_load_dwordx4 v{9 if (swz and n >= 2) else 8}, {S4(rT0)}, s10 offen {nt} lds")
        a("s_add_u32 m0, m0, 1024")
        a("s_add_u32 s10, s10, 32768")
    a(f"s_cmp_lt_u32 m0, {WT + 32768}")
    a("s_cbranch_scc1 L_wql")
    get_tag()
    a(f"v_and_b32 v6, 1, v{vLANE}")
    a(f"v_lshlrev_b32 v8, 8, v6")
    a(f"v_lshl_add_u32 v8, v11, 4, v8")
    a(f"v_add_u32 v8, {HB}, v8")
    a(f"v_bfe_u32 v7, v{vLANE}, 2, 2")
    a(f"v_lshl_add_u32 v7, v11, 3, v7")
    a(f"v_lshlrev_b32 v7, 8, v7")
    a(f"v_and_b32 v10, 3, v{vLANE}")
    a(f"v_lshl_add_u32 v7, v10, 3, v7")
    swz_read(7, 10, 0)
    a(f"v_lshrrev_b32 v9, 1, v15")
    a(f"v_lshl_add_u32 v9, v11, 3, v9")
    a(f"v_lshlrev_b32 v9, 4, v9")
    a(f"v_lshl_add_u32 v9, v6, 14, v9")
    a(f"s_lshl_b32 s10, s{sXCD}, 15")
    a(f"s_lshl_b32 s11, s{sIDX}, 9")
    a(f"s_add_u32 s10, s10, s11")
    a(f"s_add_u32 s10, s10, {QP}")
    a("s_waitcnt vmcnt(0)")
    stamp(18)
    for ct in range(8):
        a(f"v_xor_b32 v10, {32*ct}, v7")
        for k in range(4):
            for h in range(2):
                a(f"ds_read_b64_tr_b16 {R(W + ct*16 + k*4 + h*2, 2)}, v10 offset:{WT + 8192*k + 1024*h}")
    lds_wait(QFL + 4, 1)
    stamp(19)
    for k in range(4):
        a(f"ds_read_b128 {R(16 + k*4)}, v8 offset:{k*64}")
    a("s_waitcnt lgkmcnt(0)")

    def pick(ct):
        m32 = (3 << (2 * ct)) * 0x10001
        a(f"s_mov_b32 exec_lo, {m32:#x}\ns_mov_b32 exec_hi, {m32:#x}")
        for r in range(4):
            a(f"v_mov_b32 v{2+r}, v{32 + (ct & 1)*4 + r}")
        a(FULL)
    for ct in range(8):
        t = 32 + (ct & 1) * 4
        for k in range(4):
            a(f"v_mfma_f32_16x16x32_bf16 {R(t)}, {R(W + ct*16 + k*4)}, {R(16 + k*4)}, {'0' if k == 0 else R(t)}")
        if ct:
            pick(ct - 1)
    pick(7)
    for d in range(4):
        tag4(2 + d)
    if 'Q' not in skip:
        a(f"buffer_store_dwordx4 {R(2)}, v9, {S4(rWS)}, s10 offen {qpol}")
    a(f"v_mov_b32 v8, {QFL+4}\nv_mov_b32 v7, 2")
    a("ds_write_b32 v8, v7")
    a("s_waitcnt lgkmcnt(0)")
    stamp(3)
    if hpt:
        a(f"s_bitcmp1_b32 s{sIDX}, 0")
        a("s_cbranch_scc1 L_ptB")
        a(f"v_lshrrev_b32 v9, 1, v{vLANE}")
        a(f"v_lshlrev_b32 v9, 9, v9")
        a(f"v_and_b32 v10, 1, v{vLANE}")
        a(f"v_lshl_add_u32 v9, v10, 7, v9")
        a(f"s_lshr_b32 s9, s{sL}, 2")
        a(f"s_lshl_b32 s10, s9, 14")
        a(f"s_and_b32 s9, s{sIDX}, 3")
        a(f"s_lshl_b32 s9, s9, 7")
        a(f"s_add_u32 s10, s10, s9")
        a(f"s_add_u32 s10, s10, {OP}")
        a(f"buffer_load_dword v16, v9, {S4(rWS)}, s10 offen {ptpol}")
        a(f"v_bfe_u32 v9, v{vLANE}, 2, 2")
        a(f"v_lshlrev_b32 v9, 12, v9")
        a(f"v_and_b32 v10, 3, v{vLANE}")
        a(f"v_lshl_add_u32 v9, v10, 7, v9")
        a(f"s_lshl_b32 s10, s{sIDX}, 13")
        a(f"s_lshl_b32 s9, s{sXCD}, 9")
        a(f"s_add_u32 s10, s10, s9")
        a(f"s_add_u32 s10, s10, {XP}")
        a(f"buffer_load_dword v17, v9, {S4(rWS)}, s10 offen {ptpol}")
        a("s_branch L_fin")
        a("L_ptB:")
        a(f"v_and_b32 v9, 7, v{vLANE}")
        a(f"v_lshlrev_b32 v9, 7, v9")
        a(f"s_lshl_b32 s10, s{sBI}, 10")
        a(f"s_add_u32 s10, s10, {HP}")
        a(f"buffer_load_dword v16, v9, {S4(rWS)}, s10 offen {ptpol}")
    a("s_branch L_fin")

    QF, DT, PT, KV = 16, 24, 32, 40
    if pure >= 2:
        def drop(l):
            if "buffer_store" in l:
                if pure in (3, 4): return True
                if pure == 5 and "sc1" in l: return True
                if pure == 6 and "sc1" not in l: return True
            if "buffer_load" in l and "sc1" in l and pure in (2, 4, 5, 6): return True
            return False
        a.lines = [l for l in a.lines if not drop(l)]
    a("L_att:")
    if kvmap == 0:
        USTR = 32768
        a(f"s_lshl_b32 s{sKV}, s{sL}, 18")
        a(f"s_lshl_b32 s9, s{sWAVE}, 12")
    elif kvmap == 1:
        USTR = 1 << 20
        a(f"s_lshl_b32 s{sKV}, s{sXCD}, 23")
        a(f"s_lshl_b32 s9, s{sIDX}, 15")
        a(f"s_add_u32 s{sKV}, s{sKV}, s9")
        a(f"s_lshl_b32 s9, s{sWAVE}, 12")
    elif kvmap == 2:
        USTR = 1 << 20
        a(f"s_lshl_b32 s{sKV}, s{sXCD}, 23")
        a(f"s_lshl_b32 s9, s{sIDX}, 12")
        a(f"s_add_u32 s{sKV}, s{sKV}, s9")
        a(f"s_lshl_b32 s9, s{sWAVE}, 17")
    a(f"s_add_u32 s{sKV}, s{sKV}, s9")
    if roti:
        a(f"s_and_b32 s9, s{sIDX}, 7")
        if roti == 2:
            a(f"s_xor_b32 s9, s9, s{sXCD}")
        if roti == 3:
            a(f"s_and_b32 s10, s{sXCD}, 1\ns_lshl_b32 s10, s10, 2\ns_xor_b32 s9, s9, s10")
        if roti == 4:
            a(f"s_xor_b32 s9, s9, s{sWAVE}")
        a(f"s_mul_i32 s9, s9, {USTR}")
        a(f"s_add_u32 s{sKV}, s{sKV}, s9")
    a(f"v_lshlrev_b32 v{vOV}, 4, v{vLANE}")
    a(f"v_and_b32 v6, 3, v{vLANE}")
    a(f"v_lshlrev_b32 v6, 10, v6")
    a(f"v_bfe_u32 v5, v{vLANE}, 2, 1")
    a(f"v_lshl_add_u32 v6, v5, 8, v6")
    a(f"v_lshl_add_u32 v{vOK}, v7, 4, v6")
    if klin == 1:
        a(f"v_and_b32 v6, 7, v{vLANE}\nv_lshlrev_b32 v6, 8, v6\nv_lshl_add_u32 v{vOK}, v7, 4, v6")
    if klin == 2:
        a(f"v_mov_b32 v{vOK}, v{vOV}")
    a(f"v_mov_b32 v4, {QFL}")
    a("s_mov_b64 vcc, 0")
    kargs()
    srd(rK, pK, 0x4000000)
    if not lateb:
        srd(rV, pV, 0x4000000)
        srd(rWS, pWS, WS_BYTES)
        a("s_barrier")
    def tile_setup(va, vb, so, sp, skip):
        l1, l2 = a.label("Lts"), a.label("Lts")
        a(f"v_lshrrev_b32 v{va}, 4, v{vLANE}")
        a(f"v_and_b32 v{vb}, 15, v{vLANE}")
        a(f"s_bitcmp1_b32 s{sIDX}, 0")
        a(f"s_cbranch_scc1 {l1}")
        srd(rT2, pWO, 8388608)
        a("s_mov_b32 s20, 64")
        a("s_mov_b32 s16, 3\ns_mov_b32 s17, 4")
        a(f"s_lshl_b32 s{so}, s{sAI}, 19")
        a(f"s_lshl_b32 s9, s{sXCD}, 8")
        a(f"s_add_u32 s{so}, s{so}, s9")
        a(f"s_mov_b32 s{sp}, 2048")
        a(f"s_branch {l2}")
        a(f"{l1}:")
        a(f"s_cmp_ge_u32 s{sBI}, 112")
        a(f"s_cselect_b32 s20, 0, 64")
        a("s_mov_b32 s16, 0\ns_mov_b32 s17, 1")
        if swz:
            a(f"v_lshlrev_b32 v4, 1, v{va}")
            a(f"v_xor_b32 v{vb}, v{vb}, v4")
        srd(rT2, pW1, 7340032)
        a(f"s_and_b32 s{so}, s{sBI}, 3")
        a(f"s_mul_i32 s{so}, s{so}, {256*7168}")
        a(f"s_lshr_b32 s9, s{sBI}, 2")
        a(f"s_lshl_b32 s9, s9, 8")
        a(f"s_add_u32 s{so}, s{so}, s9")
        a(f"s_mov_b32 s{sp}, 7168")
        a(f"{l2}:")
        a(f"v_mul_lo_u32 v{va}, v{va}, s{sp}")
        a(f"v_lshl_add_u32 v{va}, v{vb}, 4, v{va}")
        a(f"s_lshl_b32 s{sp}, s{sp}, 2")

    def tile_rest(vm, va, so, sp, lo_, hi_):
        t = None
        a(f"s_add_u32 s11, s{sWAVE}, {8*lo_}")
        a(f"s_mul_i32 s9, s11, s{sp}")
        a(f"s_add_u32 s9, s9, s{so}")
        a(f"s_lshl_b32 m0, s11, 10")
        a(f"s_lshl_b32 s11, s{sp}, 3")
        for i in range(lo_, hi_):
            t = vm.issue(f"buffer_load_dwordx4 v{va}, {S4(rT2)}, s9 offen {nt} lds")
            if i + 1 < hi_:
                a(f"s_add_u32 m0, m0, 8192")
                a(f"s_add_u32 s9, s9, s11")
        return t

    def claim(fail, va=4, vb=5):
        a(f"v_mov_b32 v{va}, {QFL}\nv_mov_b32 v{vb}, 1")
        a("s_mov_b64 exec, 1")
        a(f"ds_add_rtn_u32 v{vb}, v{va}, v{vb} offset:16")
        a(FULL)
        a("s_waitcnt lgkmcnt(0)")
        a(f"v_readfirstlane_b32 s21, v{vb}")
        a(f"s_cmp_ge_u32 s21, s20")
        a(f"s_cbranch_scc1 {fail}")
        a("s_lshl_b32 m0, s21, 10")
        a("s_mul_i32 s9, s21, s19")
        a("s_add_u32 s9, s9, s18")
        if swz:
            a("s_lshr_b32 s22, s21, 1\ns_and_b32 s22, s22, s16\ns_lshl_b32 s22, s22, 5")
            a("s_lshr_b32 s21, s21, s17\ns_and_b32 s21, s21, 1\ns_lshl_b32 s21, s21, 7\ns_or_b32 s22, s22, s21")
            a(f"v_xor_b32 v{va}, s22, v2")
            a(f"buffer_load_dwordx4 v{va}, {S4(rT2)}, s9 offen {nt} lds")
        else:
            a(f"buffer_load_dwordx4 v2, {S4(rT2)}, s9 offen {nt} lds")

    def claim_all(T=0):
        lp, dn = a.label("Lca"), a.label("Lcad")
        a(f"{lp}:")
        wait_n(T)
        claim(dn)
        a(f"s_branch {lp}")
        a(f"{dn}:")

    if kgate:
        lds_wait(QFL + 20, 1)
        a(f"v_mov_b32 v4, {QFL}")
        a("s_mov_b64 vcc, 0")
    load_epoch()
    thr_n = [0]

    if xmask:
        a(f"s_lshr_b32 s74, {xmask}, s{sXCD}")

    def wait_x(T, extra):
        if xmask and T:
            lsk = a.label("Lx")
            a("s_bitcmp1_b32 s74, 0")
            a(f"s_cbranch_scc1 {lsk}")
            wait_n(T)
            a(f"{lsk}:")
            wait_n(T + extra)
        else:
            wait_n(T)

    def thr_wait():
        if thr2 == thr:
            wait_x(thr, xk)
            return
        thr_n[0] += 1
        lsk = a.label("Lthr")
        a(f"s_cbranch_vccnz {lsk}")
        if thr_n[0] % 2 == 0:
            a("ds_read_b32 v5, v4")
        a(f"s_waitcnt vmcnt({thr-1})")
        if thr_n[0] % 2 == 0:
            a("s_waitcnt lgkmcnt(0)")
            a("v_cmp_eq_u32 vcc, 2, v5")
        a(f"{lsk}:")
        wait_n(thr2)

    vm = Vm(a)
    order = [2, 3, 0, 1, 4, 5, 6, 7]
    pos = {s: i for i, s in enumerate(order)}
    tk = {}
    for s in order:
        a(f"s_xor_b32 s9, s{sKV}, {pos[s]*USTR}")
        for t in range(2):
            for h in range(2):
                if thr:
                    thr_wait()
                tk[s] = vm.issue(f"buffer_load_dwordx4 {R(KV + s*16 + t*8 + h*4)}, v{vOK}, {S4(rK)}, s9 offen offset:{(t*512 + h*128, t*2048 + h*128, t*2048 + h*1024)[klin]} {nt}")
                if lateb and vm.n == (lateb & 7):
                    srd(rV, pV, 0x4000000)
                    srd(rWS, pWS, WS_BYTES)
                    a("s_barrier")
    vblk = [KV + 32, KV + 64, KV + 96, KV + 32]
    tv = [None] * 4
    if v0lds:
        vblk = [KV + 96, KV + 32, KV + 64, KV + 96]
        for e in range(8):
            if e % 4 == 0:
                a(f"s_xor_b32 s9, s{sKV}, {(e//4)*USTR}")
                a(f"s_lshl_b32 s10, s{sWAVE}, 13")
                a(f"s_add_u32 m0, s10, {WT + (e//4)*4096}")
            thr_wait()
            tv[0] = vm.issue(f"buffer_load_dwordx4 v{vOV}, {S4(rV)}, s9 offen offset:{(e % 4)*1024} {nt} lds")

    def vload(v):
        for e in range(8):
            if e % 4 == 0:
                a(f"s_xor_b32 s9, s{sKV}, {(2*v + e//4)*USTR}")
            wait_n(thrv)
            tv[v] = vm.issue(f"buffer_load_dwordx4 {R(vblk[v] + e*4)}, v{vOV}, {S4(rV)}, s9 offen offset:{(e % 4)*1024} {nt}")
    vnext = [8 if v0lds else 0]

    def vslot():
        if not fine:
            return
        n = vnext[0]
        vnext[0] += 1
        v, e = n // 8, n % 8
        if e % 4 == 0:
            a(f"s_xor_b32 s{sDU}, s{sKV}, {(2*v + e//4)*USTR}")
        wait_x(thrv, xv)
        tv[v] = vm.issue(f"buffer_load_dwordx4 {R(vblk[v] + e*4)}, v{vOV}, {S4(rV)}, s{sDU} offen offset:{(e % 4)*1024} {nt}")
    stamp(20)
    if pure:
        vm.wait(tk[3]); vload(0); vm.wait(tk[5]); vload(1); vm.wait(tk[7]); vload(2); vm.wait(tv[0]); vload(3)
        a("s_waitcnt vmcnt(0)")
        stamp(8)
        a("s_branch L_fin")
    get_tag()
    tile_setup(2, 5, 18, 19, None)
    if fill:
        a("L_fill:")
        wait_n(thr)
        a(f"v_mov_b32 v4, {QFL}")
        a("ds_read_b32 v5, v4")
        a("s_waitcnt lgkmcnt(0)")
        a("v_cmp_eq_u32 vcc, 2, v5")
        a("s_cbranch_vccnz L_filld")
        claim("L_fillx")
        a("s_branch L_fill")
        a("L_fillx:")
    lds_wait(QFL, 2)
    a("L_filld:")
    stamp(5)
    a(f"v_and_b32 v8, 7, v{vLANE}")
    a(f"v_lshlrev_b32 v9, 8, v8")
    a(f"v_lshl_add_u32 v9, v7, 4, v9")
    a(f"v_add_u32 v9, {QB}, v9")
    a(f"ds_read_b128 {R(QF)}, v9")
    a(f"ds_read_b128 {R(QF+4)}, v9 offset:128")
    a("s_waitcnt lgkmcnt(0)")
    Sreg = [PT, PT + 4, KV, KV + 4, KV + 8, KV + 12, KV + 16, KV + 20]

    def qk_mfma(s, X, Y):
        vm.wait(tk[s])
        k0 = KV + s * 16
        a(f"v_mfma_f32_16x16x32_bf16 {R(X)}, {R(k0)}, {R(QF)}, 0")
        a(f"v_mfma_f32_16x16x32_bf16 {R(Y)}, {R(k0+8)}, {R(QF)}, 0")
        a(f"v_mfma_f32_16x16x32_bf16 {R(X)}, {R(k0+4)}, {R(QF+4)}, {R(X)}")
        a(f"v_mfma_f32_16x16x32_bf16 {R(Y)}, {R(k0+12)}, {R(QF+4)}, {R(Y)}")

    def qk_post(p, X, Y):
        S = Sreg[p]
        for r in range(4):
            a(f"v_permlane32_swap_b32 v{X+r}, v{Y+r}")
        for r in range(4):
            dpp_add(S + r, Y + r, X + r, 8)
        for r in (0, 2):
            rnd2(S + r, S + r + 1, 4)
            a(f"v_mul_f32 v{S+r}, s{sSCALE}, v{S+r}\nv_mul_f32 v{S+r+1}, s{sSCALE}, v{S+r+1}")
            rnd2(S + r, S + r + 1, 4)
        if p == 0:
            a(f"v_max3_f32 v5, v{S}, v{S+1}, v{S+2}")
            a(f"v_max_f32 v5, v5, v{S+3}")
        else:
            a(f"v_max3_f32 v5, v5, v{S}, v{S+1}")
            a(f"v_max3_f32 v5, v5, v{S+2}, v{S+3}")
    qk_mfma(2, PT, DT)
    qk_mfma(3, PT + 4, DT + 4)
    if not fine:
        vload(0)
    vslot()
    qk_post(0, PT, DT)
    vslot()
    qk_post(1, PT + 4, DT + 4)
    for s in (0, 1, 4, 5, 6, 7):
        vslot()
        qk_mfma(s, DT, DT + 4)
        if s == 5 and not fine:
            vload(1)
        qk_post(pos[s], DT, DT + 4)
    vslot()
    if v0lds:
        a(f"s_lshl_b32 s9, s{sWAVE}, 13")
        a(f"v_add_u32 v9, s9, v{vOV}")
        vm.wait(tv[0])
        for e in range(8):
            a(f"ds_read_b128 {R(vblk[0] + e*4)}, v9 offset:{WT + e*1024}")
    allred(5, 6, "v_max_f32", (32, 16))
    a(f"v_lshlrev_b32 v9, 5, v8")
    a(f"v_add_u32 v10, {MX}, v9")
    a(f"s_lshl_b32 s9, s{sWAVE}, 2")
    a(f"v_add_u32 v11, s9, v10")
    a("s_mov_b64 exec, 0xff")
    a(f"ds_write_b32 v11, v5")
    a(FULL)
    if vearly and not fine:
        vload(2)
    vslot()
    a("s_waitcnt lgkmcnt(0)")
    stamp(6)
    a("s_barrier")
    vslot()
    a(f"v_mov_b32 v4, {QFL+8}")
    a(f"ds_read_b128 {R(16)}, v10")
    a(f"ds_read_b128 {R(20)}, v10 offset:16")
    a(f"ds_read_b32 v4, v4")
    a("s_waitcnt lgkmcnt(0)")
    a(f"v_readfirstlane_b32 s{sLOC}, v4")
    a(f"v_max3_f32 v5, v16, v17, v18\nv_max3_f32 v5, v5, v19, v20\nv_max3_f32 v5, v5, v21, v22\nv_max_f32 v5, v5, v23")
    a(f"v_mul_f32 v6, s{sLOG2E}, v5")
    a("v_mov_b32 v4, 0")
    sl = [Sreg[p] + r for p in range(8) for r in range(4)]
    for i, x in enumerate(sl):
        if i in (8, 20):
            vslot()
        a(f"v_fma_f32 v{x}, v{x}, s{sLOG2E}, -v6")
        a(f"v_exp_f32 v{x}, v{x}")
        if i:
            a(f"v_add_f32 v4, v4, v{sl[i-1]}")
    a(f"v_add_f32 v4, v4, v{sl[31]}")
    vslot()
    for i in range(16):
        a(f"v_cvt_pk_bf16_f32 v{QF+i}, v{sl[2*i]}, v{sl[2*i+1]}")
    PH = KV + 16
    if fold:
        a("s_mov_b32 exec_lo, 0xff00ff00\ns_mov_b32 exec_hi, 0xff00ff00")
        for i in range(16):
            a(f"v_mov_b32 v{QF+i}, 0")
        a(FULL)
        for i in range(16):
            a(f"v_mov_b32_dpp v{PH+i}, v{QF+i} row_ror:8 row_mask:0xf bank_mask:0xf")
    allred(4, 6, "v_add_f32", (32, 16))
    a("s_mov_b64 exec, 0xff")
    a(f"ds_write_b32 v11, v4 offset:{LX-MX}")
    a(FULL)
    vslot()
    a("s_waitcnt lgkmcnt(0)")
    a("s_barrier")
    vslot()
    a(f"s_cmp_lg_u32 s{sWAVE}, 4")
    a("s_cbranch_scc1 L_noml")
    a(f"ds_read_b128 {R(32)}, v10 offset:{LX-MX}")
    a(f"ds_read_b128 {R(36)}, v10 offset:{LX-MX+16}")
    a(f"s_lshl_b32 s10, s{sL}, 7")
    a(f"s_add_u32 s10, s10, {ML}")
    a(f"v_lshlrev_b32 v9, 4, v8")
    a("s_waitcnt lgkmcnt(0)")
    a("v_add_f32 v32, v32, v33\nv_add_f32 v34, v34, v35\nv_add_f32 v36, v36, v37\nv_add_f32 v38, v38, v39")
    a("v_add_f32 v32, v32, v34\nv_add_f32 v36, v36, v38\nv_add_f32 v33, v32, v36")
    tag_trunc(32, 5)
    tag_trunc(33, 33)
    a("v_mov_b32 v34, v32\nv_mov_b32 v35, v33")
    a("s_mov_b64 exec, 0xff")
    store_grp("buffer_store_dwordx4", R(32), 9, 10)
    a(FULL)
    a("L_noml:")
    if not vearly and not fine:
        vload(2)
    a(f"v_mul_u32_u24 v9, 528, v8")
    a(f"v_lshrrev_b32 v10, 4, v{vLANE}")
    a(f"v_lshl_add_u32 v9, v10, 4, v9")
    if fold:
        a(f"v_bfe_u32 v10, v{vLANE}, 3, 1")
        a(f"v_lshl_add_u32 v9, v10, 8, v9")
    a(f"s_mul_i32 s9, s{sWAVE}, 4224")
    a(f"s_add_u32 s9, s9, {OC}")
    a(f"v_add_u32 v9, s9, v9")
    a(f"v_lshrrev_b32 v10, 5, v{vLANE}")
    a(f"v_mul_u32_u24 v10, {4*4224}, v10")
    a(f"v_and_b32 v11, 31, v{vLANE}")
    a(f"v_lshlrev_b32 v11, 4, v11")
    a(f"s_mul_i32 s9, s{sWAVE}, 528")
    a(f"s_add_u32 s9, s9, {OC}")
    a(f"v_add3_u32 v10, v10, v11, s9")
    a(f"s_lshl_b32 s10, s{sXCD}, 3")
    a(f"s_add_u32 s10, s10, s{sWAVE}")
    a(f"s_lshl_b32 s10, s10, 5")
    a(f"s_add_u32 s10, s10, s{sIDX}")
    a(f"s_lshl_b32 s11, s10, 9")
    a(f"s_add_u32 s11, s11, {OP}")
    if prew:
        prewrite(PT, 4, 8, 11)
        a(f"s_bitcmp1_b32 s{sIDX}, 0")
        a("s_cbranch_scc1 L_pwB")
        a(f"s_lshr_b32 s9, s{sWAVE}, 2")
        a(f"s_add_u32 s9, s9, s{sIDX}")
        a(f"s_lshl_b32 s9, s9, 13")
        a(f"s_lshl_b32 s10, s{sXCD}, 9")
        a(f"s_add_u32 s9, s9, s10")
        a(f"s_and_b32 s10, s{sWAVE}, 3")
        a(f"s_lshl_b32 s10, s10, 7")
        a(f"s_add_u32 s9, s9, s10")
        a(f"s_add_u32 s9, s9, {XP}")
        prewrite(PT, 3, 12, 9)
        a("s_branch L_pwD")
        a("L_pwB:")
        a(f"s_cmp_ge_u32 s{sBI}, 112")
        a("s_cbranch_scc1 L_pwD")
        a(f"s_lshl_b32 s9, s{sBI}, 10")
        a(f"s_lshl_b32 s10, s{sWAVE}, 6")
        a(f"s_add_u32 s9, s9, s10")
        a(f"s_add_u32 s9, s9, {HP}")
        prewrite(PT, 2, 9, 9)
        a("L_pwD:")
    SA = KV
    MLR, F = (72, 88) if v0lds else (104, 120)
    a("s_mov_b32 s94, 0x00ff00ff\ns_mov_b32 s95, 0x00ff00ff")

    def mlloads():
        for i in range(4):
            a(f"buffer_load_dwordx4 {R(MLR + 4*i)}, v15, {S4(rWS)}, s89 offen offset:{i*1024} sc1")
    OPS = KV + 96
    assert not v0lds

    def pv_mfma(v, d, t):
        acc = SA + (d & 3 if fold else d) * 4
        P = (PH if fold and d >= 4 else QF) + v * 4
        c = "0" if (v == 0 and not (fold and d >= 4)) else R(acc)
        a(f"v_mfma_f32_16x16x32_bf16 {R(acc)}, {R(t)}, {R(P)}, {c}")

    def perm_k(k):
        for d in range(8):
            sel = sSELHI if d & 1 else sSELLO
            a(f"v_perm_b32 v{OPS + 4*d + k}, v{vblk[3] + (2*k+1)*4 + (d >> 1)}, v{vblk[3] + 2*k*4 + (d >> 1)}, s{sel}")
    for v in range(4):
        if v == 3:
            vm.wait(tv[3] - 4)
            a(f"s_cmp_ge_u32 s88, 32")
            a("s_cbranch_scc1 L_nof")
            pollx(mlloads, lambda: check_regs(range(MLR, MLR + 16)), pre_issued='landed')
            a(f"v_max3_f32 v5, v{MLR}, v{MLR+4}, v{MLR+8}\nv_max_f32 v5, v5, v{MLR+12}")
            dpp_max(5, 5, 5, 8)
            allred(5, 6, "v_max_f32", (16, 32))
            for i in range(4):
                a(f"v_sub_f32 v{F+i}, v{MLR+4*i}, v5")
                a(f"v_mul_f32 v{F+i}, s{sLOG2E}, v{F+i}")
                a(f"v_exp_f32 v{F+i}, v{F+i}")
            a(f"v_mul_f32 v5, v{F}, v{MLR+1}")
            for i in range(1, 4):
                a(f"v_fmac_f32 v5, v{F+i}, v{MLR+1+4*i}")
            dpp_add(5, 5, 5, 8)
            allred(5, 6, "v_add_f32", (16, 32))
            a("v_rcp_f32 v5, v5")
            for i in range(4):
                a(f"v_mul_f32 v{F+i}, v{F+i}, v5")
            a(f"s_lshl_b32 s89, s{sXCD}, 5")
            a(f"s_add_u32 s89, s89, s88")
            a(f"s_mul_i32 s89, s89, {128*ofstr}")
            a(f"s_add_u32 s89, s89, {OF}")
            a("L_nof:")
            perm_k(0)
            perm_k(1)
            a(f"s_bitcmp1_b32 s{sIDX}, 0")
            a("s_cbranch_scc1 L_nw1p")
            for i in range(w1pre):
                claim("L_nw1p")
            a(f"s_waitcnt vmcnt({w1pre + 2})")
            perm_k(2)
            a(f"s_waitcnt vmcnt({w1pre})")
            a("s_branch L_w1pd")
            a("L_nw1p:")
            a(f"s_waitcnt vmcnt(2)")
            perm_k(2)
            a(f"s_waitcnt vmcnt(0)")
            a("L_w1pd:")
            perm_k(3)
            for d in range(8):
                pv_mfma(v, d, OPS + 4 * d)
            continue
        vm.wait(tv[v])
        for d in range(8):
            if v == 0 or d % 2 == 0:
                vslot()
            t = PT + (d & 1) * 4
            perm_operand(t, vblk[v], d)
            pv_mfma(v, d, t)
        if v == 0 and not fine:
            vload(3)
        if v == 1:
            wps = 32 // nsrv
            a(f"v_lshlrev_b32 v15, 7, v7")
            a(f"s_sub_u32 s88, s{sAI}, {16 - nsrv}")
            a(f"s_cselect_b32 s88, 64, s88")
            a(f"s_mul_i32 s88, s88, {wps}")
            a(f"s_add_u32 s88, s88, s{sWAVE}")
            a(f"s_cmp_ge_u32 s{sWAVE}, {wps}")
            a(f"s_cselect_b32 s88, 64, s88")
            a(f"s_bitcmp1_b32 s{sIDX}, 0")
            a(f"s_cselect_b32 s88, s88, 64")
            a(f"s_cmp_ge_u32 s88, 32")
            a("s_cbranch_scc1 L_noml2")
            a(f"s_lshl_b32 s89, s{sXCD}, 12")
            a(f"s_lshr_b32 s10, s88, 2")
            a(f"s_lshl_b32 s9, s10, 4")
            a(f"s_add_u32 s89, s89, s9")
            a(f"s_add_u32 s89, s89, {ML}")
            mlloads()
            a(f"v_lshlrev_b32 v0, 9, v7")
            a(f"v_lshl_add_u32 v0, v8, 4, v0")
            a(f"s_lshl_b32 s90, s{sXCD}, 3")
            a(f"s_add_u32 s90, s90, s10")
            a(f"s_lshl_b32 s90, s90, 14")
            a(f"s_and_b32 s9, s88, 3")
            a(f"s_lshl_b32 s9, s9, 7")
            a(f"s_add_u32 s90, s90, s9")
            a(f"s_add_u32 s90, s90, {OP}")
            for i in range(1, 4):
                a(f"s_add_u32 s{90+i}, s90, {i*4096}")
            a("L_noml2:")
    assert not fine or vnext[0] == 32
    stamp(7)
    if not fold:
        a(MASK8)
    for d in range(4 if fold else 8):
        a(f"ds_write_b128 v9, {R(SA + d*4)} offset:{d*64}")
    if not fold:
        a(FULL)
    a("s_waitcnt lgkmcnt(0)")
    a("s_barrier")
    for k in range(4):
        a(f"ds_read_b128 {R(16 + 4*k)}, v10 offset:{k*4224}")
    a("s_waitcnt lgkmcnt(0)")
    pk("add", 16, 16, 20)
    pk("add", 24, 24, 28)
    pk("add", 20, 16, 24)
    pk("add", 16, 16, 24)
    for r in range(4):
        a(f"v_permlane32_swap_b32 v{16+r}, v{20+r}")
    pk("add", 16, 16, 20)
    for r in range(4):
        tag_trunc(16 + r, 16 + r)
    a("s_mov_b32 exec_hi, 0")
    store_grp("buffer_store_dwordx4", R(16), 11, 11)
    a(FULL)
    stamp(8)

    def h1a():
        ln = a.label("Lnoh1a")
        a(f"s_cmp_ge_u32 s88, 32")
        a(f"s_cbranch_scc1 {ln}")

        def oloads():
            for i in range(4):
                a(f"buffer_load_dwordx4 {R(MLR + 4*i)}, v0, {S4(rWS)}, s{90+i} offen sc1")
        pollx(oloads, lambda: check_regs(range(MLR, MLR + 16)), slp=0)
        pk("mul", MLR, MLR, F, ybc=True)
        pk("mul", MLR + 8, MLR + 8, F + 2, ybc=True)
        pkfma(MLR, MLR + 4, F + 1)
        pkfma(MLR + 8, MLR + 12, F + 3)
        pk("add", MLR, MLR, MLR + 8)
        red4(MLR, (8,))
        if ofs:
            untr(MLR)
            a(f"v_cvt_pk_bf16_f32 v{MLR}, v{MLR}, v{MLR+1}")
            a(f"v_cvt_pk_bf16_f32 v{MLR+1}, v{MLR+2}, v{MLR+3}")
            a("s_mov_b64 vcc, 12")
            a(f"v_mov_b32 v{MLR+3}, s{sEP}")
            a(f"v_mov_b32_dpp v{MLR+2}, v{MLR} row_shl:6 row_mask:0xf bank_mask:0xf")
            a(f"v_mov_b32_dpp v{MLR+4}, v{MLR+1} row_shl:4 row_mask:0xf bank_mask:0xf")
            a(f"v_cndmask_b32 v{MLR+2}, v{MLR+2}, v{MLR+4}, vcc")
            a("s_mov_b64 exec, 0xff")
        else:
            a(f"v_cvt_pk_bf16_f32 v{MLR}, v{MLR}, v{MLR}")
            a(f"v_bfi_b32 v{MLR}, s{sHI}, v{MLR}, v{vTAG}")
            untr(MLR)
            a("s_mov_b64 exec, 0xff")
        a(f"buffer_store_dwordx4 {R(MLR)}, v{vOV}, {S4(rWS)}, s89 offen sc1")
        a(FULL)
        stamp(24)
        if ackst:
            a("s_waitcnt vmcnt(0)")
            stamp(29)
        a(f"{ln}:")
    h1a()
    if notail:
        a("s_branch L_fin")
    a(f"s_bitcmp1_b32 s{sIDX}, 0")
    a("s_cbranch_scc1 L_tailB")

    def gemv8(W, Bv, acc, vrd, wread=None):
        n = 3 if wread else 1
        for s in range(8):
            if wread:
                wread(s)
            a(f"ds_read_b128 {R(Bv + 4*s)}, v{vrd} offset:{s*64}")
        for s in range(8):
            a(f"s_waitcnt lgkmcnt({min(15, n*(7-s))})")
            c = "0" if s == 0 else R(acc)
            a(f"v_mfma_f32_16x16x32_bf16 {R(acc)}, {R(W + s*4)}, {R(Bv + 4*s)}, {c}")
        a(f"s_mov_b32 exec_lo, 0x00030003\ns_mov_b32 exec_hi, 0x00030003")
        for r in range(4):
            tag_trunc(acc + r, acc + r)

    vm = Vm(a)
    claim_all()
    WOP, W2O, W2R, AD, B1V = 72, 104, 136, 40, 29
    a(f"v_lshrrev_b32 v7, 4, v{vLANE}")
    a(f"v_and_b32 v9, 15, v{vLANE}")
    a(f"v_lshrrev_b32 v10, 5, v{vLANE}")
    a(f"v_and_b32 v5, 1, v7")
    a(f"v_lshlrev_b32 v20, 6, v5")
    a(f"v_bfe_u32 v6, v{vLANE}, 2, 2")
    a(f"v_lshl_add_u32 v20, v6, 3, v20")
    a(f"v_add_u32 v20, v20, v10")
    a(f"v_lshlrev_b32 v20, 8, v20")
    a(f"v_and_b32 v6, 3, v{vLANE}")
    a(f"v_lshl_add_u32 v20, v6, 3, v20")
    a(f"s_lshl_b32 s9, s{sWAVE}, 5")
    a(f"v_add_u32 v20, s9, v20")
    swz_read(20, 6, 0)
    a(f"v_lshlrev_b32 v28, 12, v5")
    a(f"v_lshl_add_u32 v28, v9, 5, v28")
    a(f"v_lshl_add_u32 v28, v10, 4, v28")
    a(f"s_lshl_b32 s14, s{sBI}, 13")
    a(f"s_lshl_b32 s9, s{sWAVE}, 9")
    a(f"s_add_u32 s14, s14, s9")
    a(f"s_add_u32 s14, s14, {YP}")
    a(f"v_and_b32 v11, 31, v{vLANE}")
    a(f"v_lshlrev_b32 v21, 14, v10")
    a(f"v_lshl_add_u32 v21, v11, 4, v21")
    a(f"s_lshl_b32 s74, s{sAI}, 10")
    a(f"s_add_u32 s74, s74, {OF}")
    a(f"s_mul_i32 s9, s{sWAVE}, {2*bpad}")
    a(f"s_add_u32 s9, s9, {OB}")
    a(f"v_mul_u32_u24 v22, {bpad}, v10")
    a(f"v_lshl_add_u32 v22, v11, 3, v22")
    a(f"v_add_u32 v22, s9, v22")
    a(f"v_and_b32 v5, 1, v{vLANE}")
    a(f"v_mul_u32_u24 v23, {bpad}, v5")
    a(f"v_lshl_add_u32 v23, v7, 4, v23")
    a(f"v_add_u32 v23, s9, v23")
    a(f"v_lshlrev_b32 v24, 12, v5")
    a(f"v_lshl_add_u32 v24, v7, 4, v24")
    a(f"s_lshl_b32 s73, s{sAI}, 13")
    a(f"s_lshl_b32 s9, s{sXCD}, 9")
    a(f"s_add_u32 s73, s73, s9")
    a(f"s_lshl_b32 s9, s{sWAVE}, 6")
    a(f"s_add_u32 s73, s73, s9")
    a(f"s_add_u32 s73, s73, {XP}")
    srd(rT0, pW2, 7340032)
    srd(rT1, pB1, 7168)
    a(f"v_lshlrev_b32 v30, 14, v7")
    a(f"v_lshl_add_u32 v30, v9, 4, v30")
    a(f"s_lshl_b32 s15, s{sBI}, 16")
    a(f"s_lshl_b32 s9, s{sWAVE}, 8")
    a(f"s_add_u32 s15, s15, s9")
    def w2row(e):
        a(f"s_add_u32 s9, s15, {e*2048}")
        a(f"buffer_load_dwordx4 {R(W2R + e*4)}, v30, {S4(rT0)}, s9 offen {nt}")
    if w2pre:
        a(f"s_cmp_ge_u32 s{sBI if w2all else sAI}, {112 if w2all else 8}")
        a("s_cbranch_scc1 L_nw2p")
        for e in range(8 - w2pre, 8):
            w2row(e)
        a("L_nw2p:")
    kperm(4, 5)
    a(f"v_and_b32 v6, 7, v{vLANE}")
    a(f"v_lshl_add_u32 v31, v6, 2, v4")
    a(f"v_lshlrev_b32 v31, 1, v31")
    a(f"v_bfe_u32 v8, v{vLANE}, 3, 1")
    a(f"v_lshl_add_u32 v26, v8, 6, v31")
    a(f"s_lshl_b32 s9, s{sWAVE}, 7")
    a(f"s_add_u32 s9, s9, {H1B}")
    a(f"v_add_u32 v26, s9, v26")
    a(f"v_bfe_u32 v5, v{vLANE}, 2, 1")
    a(f"v_lshlrev_b32 v27, 6, v5")
    a(f"v_lshl_add_u32 v27, v7, 4, v27")
    a(f"v_add_u32 v27, s9, v27")
    a(f"v_lshlrev_b32 v25, 10, v7")
    a(f"v_lshl_add_u32 v25, v8, 9, v25")
    a(f"v_lshl_add_u32 v25, v6, 4, v25")
    a(f"s_and_b32 s9, s{sBI}, 3")
    a(f"s_lshl_b32 s89, s9, 7")
    a(f"s_andn2_b32 s10, s{sBI}, 3")
    a(f"s_lshl_b32 s10, s10, 10")
    a(f"s_add_u32 s89, s89, s10")
    a(f"s_add_u32 s89, s89, {HP}")
    GA, XV, B2V, GB, SV, TV = 136, 5, 6, 15, 137, 138
    consumer_ids()
    a(f"v_lshrrev_b32 v6, 3, v{vLANE}")
    a(f"v_and_b32 v8, 7, v{vLANE}")
    a(f"v_lshl_add_u32 v11, v8, 2, v4")
    a(f"v_lshlrev_b32 v5, 2, v11")
    a(f"v_add_u32 v2, {XB}, v5")
    a(f"s_mul_i32 s88, s75, {xstr}")
    a(f"s_add_u32 s88, s88, {XH}")
    a(f"v_lshlrev_b32 v0, 13, v6")
    a(f"v_lshl_add_u32 v0, v8, 4, v0")
    a(f"ds_read_b32 v{GA}, v2 offset:384")
    a(f"ds_read_b32 v{XV}, v2 offset:512")
    a(f"ds_read_b32 v{B2V}, v2 offset:256")
    a(f"ds_read_b32 v{GB}, v2 offset:128")
    a(f"ds_read_b32 v{SV}, v2")
    a(f"ds_read_b32 v{TV}, v2 offset:640")
    a(f"v_mov_b32 v144, v{vOV}")
    a(f"s_mov_b32 s9, {xrec + 16}")
    a("v_writelane_b32 v144, s9, 8")
    a(f"s_mov_b32 s9, {xrec}")
    a("v_writelane_b32 v144, s9, 16")
    for r in range(32):
        a(f"v_mov_b32 v{AD+r}, 0")
    if of2:
        a(f"v_bfe_u32 v21, v{vLANE}, 3, 1")
        a(f"v_mul_u32_u24 v22, {bpad}, v21")
        a(f"v_lshlrev_b32 v21, 14, v21")
        a(f"v_lshl_add_u32 v21, v8, 4, v21")
        a(f"v_lshl_add_u32 v22, v8, 3, v22")
        a(f"s_lshl_b32 s9, s{sWAVE}, 6")
        a(f"s_add_u32 s9, s9, {YB}")
        a(f"v_add_u32 v22, s9, v22")
        a(f"v_and_b32 v23, 1, v{vLANE}")
        a(f"v_mul_u32_u24 v23, {bpad}, v23")
        a(f"v_lshl_add_u32 v23, v7, 4, v23")
        a(f"v_add_u32 v23, {YB}, v23")
        a(f"s_lshl_b32 s9, s{sWAVE}, 7")
        a(f"s_add_u32 s10, s74, s9")
        if ofs:
            a(f"v_bfe_u32 v21, v{vLANE}, 4, 1")
            a(f"v_mul_u32_u24 v22, {bpad}, v21")
            a(f"v_lshl_add_u32 v22, v9, 2, v22")
            a(f"s_lshl_b32 s9, s{sWAVE}, 6")
            a(f"s_add_u32 s9, s9, {YB}")
            a(f"v_add_u32 v22, s9, v22")
            a(f"s_add_u32 s12, s{pWS}, s10")
            a(f"s_addc_u32 s13, s{pWS+1}, 0")
            blk = [[16, 24, 32], [44, 64, 92]]
            G = lambda b, m: blk[b][m // 2] + 4 * (m % 2)
            a(f"s_mov_b32 s{sSPIN}, {spin}")
            a("L_ofs:")
            a("s_load_dwordx16 s[16:31], s[12:13], 0 glc")
            a("s_load_dwordx8 s[32:39], s[12:13], 64 glc")
            for k in range(3):
                a(f"s_load_dwordx8 s[{blk[1][k]}:{blk[1][k]+7}], s[12:13], {16384 + 32*k} glc")
            a("s_waitcnt lgkmcnt(0)")
            a(f"s_xor_b32 s9, s{G(0, 0)+3}, s{sEP}")
            for b in range(2):
                for m in range(6):
                    if b or m:
                        a(f"s_xor_b32 s11, s{G(b, m)+3}, s{sEP}")
                        a("s_or_b32 s9, s9, s11")
            a("s_cbranch_scc0 L_ofsd")
            if sgslp:
                a(f"s_sleep {sgslp}")
            a(f"s_sub_u32 s{sSPIN}, s{sSPIN}, 1")
            a("s_cbranch_scc0 L_ofs")
            a("L_ofsd:")
            for b in range(2):
                for m in range(6):
                    a(f"v_writelane_b32 v16, s{G(b, m)}, {16*b + 2*m}")
                    a(f"v_writelane_b32 v16, s{G(b, m)+1}, {16*b + 2*m + 1}")
                for m, D in enumerate((12, 14, 13, 15)):
                    a(f"v_writelane_b32 v16, s{G(b, m)+2}, {16*b + D}")
            a("s_mov_b32 exec_hi, 0")
            a("ds_write_b32 v22, v16")
            a(FULL)
            stamp(29)
            a("s_waitcnt vmcnt(0)")
        else:
            sgate(10, [0, 16384])
            stamp(29)
            a("s_mov_b64 exec, 0xffff")
            pollx(lambda: a(f"buffer_load_dwordx4 {R(32)}, v21, {S4(rWS)}, s10 offen sc1"), lambda: check_regs(range(32, 36)))
            a(f"v_perm_b32 v16, v33, v32, s{sSELHI}")
            a(f"v_perm_b32 v17, v35, v34, s{sSELHI}")
            a("s_mov_b64 exec, 0xffff")
            a(f"ds_write_b64 v22, {R(16, 2)}")
            a(FULL)
        a("s_waitcnt lgkmcnt(0)")
        stamp(9)
        a("s_barrier")
    else:
        def ldOF():
            a(f"buffer_load_dwordx4 {R(32)}, v21, {S4(rWS)}, s74 offen sc1")
            a(f"buffer_load_dwordx4 {R(36)}, v21, {S4(rWS)}, s74 offen offset:512 sc1")
        if '1' in sg:
            a(f"s_lshl_b32 s9, s{sWAVE}, 7")
            a(f"s_add_u32 s10, s74, s9")
            sgate(10, [0, 16384])
            stamp(29)
        a("s_waitcnt vmcnt(0)")
        stamp(30)
        a("s_barrier")
        ldOF()
        for s in range(8):
            for h in range(2):
                a(f"ds_read_b64_tr_b16 {R(WOP + s*4 + h*2, 2)}, v20 offset:{WT + 32768*(s >> 2) + 8192*h + 512*(s & 3)}")
        stamp(26)
        pollx(ldOF, lambda: check_regs(range(32, 40)), pre_issued=True)
        stamp(9)
        for k in range(4):
            a(f"v_perm_b32 v{16+k}, v{33+2*k}, v{32+2*k}, s{sSELHI}")
        a(f"ds_write_b64 v22, {R(16, 2)}")
        a(f"ds_write_b64 v22, {R(18, 2)} offset:256")
        a("s_waitcnt lgkmcnt(0)")
    def wo_read(s):
        for h in range(2):
            a(f"ds_read_b64_tr_b16 {R(WOP + s*4 + h*2, 2)}, v20 offset:{WT + 32768*(s >> 2) + 8192*h + 512*(s & 3)}")
    gemv8(WOP, 104, 32, 23, wo_read if of2 else None)
    store_grp("buffer_store_dwordx4", R(32), 24, 73)
    a(FULL)
    stamp(10)
    a(f"s_cmp_ge_u32 s{sBI}, 112")
    a("s_cbranch_scc1 L_fin")
    a(f"s_cmp_ge_u32 s{sAI}, 8")
    a("s_cbranch_scc1 L_noh2")
    a(f"s_cmp_lg_u32 s{sWAVE}, 7")
    a("s_cbranch_scc1 L_h2d")
    a(f"s_add_u32 s10, s75, {XP}")
    a(f"s_add_u32 s11, s75, {XP + 65536}")
    a("s_mov_b32 s94, 0xff00ff00\ns_mov_b32 s95, 0xff00ff00")
    SM = "s[94:95]"
    a(f"v_cndmask_b32 v81, v{TV}, v{SV}, {SM}")
    a("v_mov_b32 v143, 0")

    def xloads():
        a(f"buffer_load_dwordx4 {R(84)}, v0, {S4(rWS)}, s10 offen sc1")
        a(f"buffer_load_dwordx4 {R(88)}, v0, {S4(rWS)}, s11 offen sc1")
    pollx(xloads, lambda: check_regs(range(84, 92)), slp=0)
    stamp(11)
    pk("add", 84, 84, 88)
    red4(84, (8,))
    rnd1(84, 84)
    a(f"v_mul_f32 v84, v{GA}, v84")
    rnd1(84, 84)
    a(f"v_add_f32 v84, v{XV}, v84")
    rnd1(XV, 84)
    a(f"v_mul_f32 v83, v{XV}, v{TV}")
    a(f"v_or_b32 v84, v{vTAG}, v{XV}")
    a(f"v_cndmask_b32 v82, v{XV}, v{TV}, {SM}")
    a(f"v_cndmask_b32 v80, v{XV}, v83, {SM}")
    a(f"v_cndmask_b32 v83, 1.0, v83, {SM}")
    a(f"v_mul_f32 v141, v80, v82")
    a(f"v_mul_f32 v142, v80, v81")
    a(f"v_mul_f32 v140, v80, v83")
    untr(84)
    publish_moments(140, 88, 84)
    if hu3:
        a(f"s_lshl_b32 s10, s{sXCD}, 7")
        a(f"s_lshl_b32 s9, s{sAI}, 4")
        a(f"s_add_u32 s10, s10, s9")
        a(f"s_add_u32 s10, s10, {LF}")
        a("s_mov_b64 exec, 1")
        store_grp("buffer_store_dwordx4", R(84), vOV, 10)
        a(FULL)
    stamp(12)
    a("s_cmp_lg_u32 s2, 0")
    a("s_cbranch_scc1 L_h2d")
    if pin:
        a("L_pin:")
        a("s_memrealtime s[96:97]")
        a("s_waitcnt lgkmcnt(0)")
        a("s_sub_u32 s96, s96, s98")
        a(f"s_cmp_lt_u32 s96, {pin}")
        a("s_cbranch_scc1 L_pin")
    a(f"v_mov_b32 v98, s{sEP}")
    a("v_mov_b32 v99, 0")
    a("s_mov_b64 exec, 1")
    a(f"buffer_store_dword v98, v99, {S4(rWS)}, 0 offen offset:{EPOCH} sc1")
    a("s_mov_b64 exec, -1")
    a("s_branch L_h2d")
    a("L_noh2:")
    if w2delay:
        a(f"s_sleep {w2delay}")
    a("L_h2d:")
    a("s_barrier")
    for e in range(8 - w2pre):
        w2row(e)
    if w2pre and not w2all:
        a(f"s_cmp_lt_u32 s{sAI}, 8")
        a("s_cbranch_scc1 L_w2d")
        for e in range(8 - w2pre, 8):
            w2row(e)
        a("L_w2d:")
    a(f"s_lshl_b32 s9, s{sBI}, 6")
    a(f"buffer_load_ushort v{B1V}, v31, {S4(rT1)}, s9 offen")
    a("s_waitcnt vmcnt(0)")

    def ldHP():
        a(f"buffer_load_dwordx4 {R(32)}, v25, {S4(rWS)}, s89 offen sc1")
    ldHP()
    for d in range(8):
        perm_operand(W2O + d * 4, W2R, d)
    lo(B1V, B1V)
    stamp(27)
    pollx(ldHP, lambda: check_regs(range(32, 36)), slp=0, pre_issued=True)
    stamp(23)
    red4(32, ())
    rnd1(136, 32)
    a(f"v_add_f32 v136, v136, v{B1V}")
    rnd1(136, 136)
    a("v_mul_f32 v137, v136, v136")
    a("v_mul_f32 v137, 0x3d372713, v137")
    a("v_fma_f32 v137, v137, v136, v136")
    a("v_mul_f32 v137, 0xc0135761, v137")
    a("v_exp_f32 v137, v137")
    a("v_add_f32 v137, 1.0, v137")
    a("v_rcp_f32 v137, v137")
    a("v_mul_f32 v136, v136, v137")
    a("v_cvt_pk_bf16_f32 v136, v136, v136")
    a("ds_write_b16 v26, v136")
    a("s_waitcnt lgkmcnt(0)")
    for d in range(8):
        m16 = (0x11 << (d & 3)) << (8 * (d >> 2))
        m32 = m16 | (m16 << 16)
        a(f"s_mov_b32 exec_lo, {m32:#x}\ns_mov_b32 exec_hi, {m32:#x}")
        a(f"ds_read_b128 {R(AD + 4*d)}, v27")
    a(FULL)
    for d in range(8):
        a(f"s_waitcnt lgkmcnt({7-d})")
        c = "0" if d == 0 else R(136)
        a(f"v_mfma_f32_16x16x32_bf16 {R(136)}, {R(AD + 4*d)}, {R(W2O + 4*d)}, {c}")
    for r in range(4):
        tag_trunc(136 + r, 136 + r)
    a(f"buffer_store_dwordx4 {R(136)}, v28, {S4(rWS)}, s14 offen sc1")
    stamp(28)
    a(f"s_cmp_ge_u32 s{sAI}, 8")
    a("s_cbranch_scc1 L_fin")
    srd(rT3, pOUT, 4096)
    a(f"s_mul_i32 s11, s{sWAVE}, {14*8192}")
    a(f"s_add_u32 s11, s11, s75")
    a(f"s_add_u32 s11, s11, {YP}")
    a(f"s_add_u32 s15, s11, {8*8192}")
    a(f"s_lshl_b32 s9, s{sWAVE}, 2")
    a(f"s_add_u32 s9, s9, {FB}")
    a(f"v_lshl_add_u32 v9, v11, 5, s9")
    a(f"v_lshlrev_b32 v8, 5, v11")
    a(f"v_add_u32 v8, {FB}, v8")
    a(f"s_lshr_b32 s10, s75, 1")
    a(f"v_lshlrev_b32 v10, 1, v11")
    for r in range(44, 48):
        a(f"v_mov_b32 v{r}, 0")
    a(f"s_mov_b32 s94, -1\ns_mov_b32 s95, 0xffff")

    def ldH4():
        a(f"buffer_load_dwordx4 {R(40)}, v0, {S4(rWS)}, s11 offen sc1")
        a(f"s_and_saveexec_b64 s[{sEX}:{sEX+1}], s[94:95]")
        a(f"buffer_load_dwordx4 {R(44)}, v0, {S4(rWS)}, s15 offen sc1")

    def ckH4():
        for r in range(44, 48):
            a(f"v_xor_b32 v{r}, v{vTAG}, v{r}")
        a(f"s_mov_b64 exec, s[{sEX}:{sEX+1}]")
        check_regs(range(40, 44))
        a(f"v_or3_b32 v{vBAD}, v{vBAD}, v44, v45")
        a(f"v_or3_b32 v{vBAD}, v{vBAD}, v46, v47")
    if h4ack:
        a("s_waitcnt vmcnt(0)")
    if h4delay:
        a(f"s_sleep {h4delay}")
    if '4' in sg:
        sgate(11, [k * 8192 for k in range(14)])
    pollx(ldH4, ckH4)
    stamp(13)
    pk("add", 40, 40, 44)
    red4(40, (8,))
    a("ds_write_b32 v9, v40")
    a("s_waitcnt lgkmcnt(0)")
    a("s_barrier")
    a(f"s_cmp_lg_u32 s{sWAVE}, 7")
    a("s_cbranch_scc1 L_fin")
    a(f"ds_read_b128 {R(40)}, v8")
    a(f"ds_read_b128 {R(44)}, v8 offset:16")
    a("s_waitcnt lgkmcnt(0)")
    pk("add", 40, 40, 44)
    a("v_add_f32 v40, v40, v41\nv_add_f32 v42, v42, v43\nv_add_f32 v40, v40, v42")
    rnd1(40, 40)
    a(f"v_add_f32 v40, v{B2V}, v40")
    rnd1(40, 40)
    a(f"v_mul_f32 v40, v{GB}, v40")
    rnd1(40, 40)
    a(f"v_add_f32 v40, v{XV}, v40")
    a("v_cvt_pk_bf16_f32 v40, v40, v40")
    a(MASK8)
    a(f"buffer_store_short v40, v10, {S4(rT3)}, s10 offen {opol}")
    a(FULL)

    a("s_branch L_fin")

    a("L_tailB:")
    a(f"s_cmp_ge_u32 s{sBI}, 112")
    a("s_cbranch_scc1 L_fin")
    W1O = 72
    XR, SB, CB, MR = 32, 36, 16, 136
    a(f"v_lshrrev_b32 v7, 4, v{vLANE}")
    a(f"s_and_b32 s9, s{sBI}, 3")
    a(f"s_lshl_b32 s13, s9, 10")
    a(f"s_lshl_b32 s10, s{sWAVE}, 12")
    a(f"s_add_u32 s13, s13, s10")
    a(f"s_add_u32 s15, s13, {X1 + 8192}")
    a(f"s_add_u32 s88, s13, {X1 + 16384}")
    a(f"s_mul_i32 s74, s13, {xstr}")
    a(f"s_add_u32 s74, s74, {XH}")
    a(f"v_lshrrev_b32 v6, 1, v{vLANE}")
    a(f"v_and_b32 v5, 1, v{vLANE}")
    a(f"v_lshlrev_b32 v20, 7, v6")
    a(f"v_lshl_add_u32 v20, v5, 4, v20")
    a(f"v_mul_u32_u24 v21, {128*xstr}, v6")
    a(f"v_lshl_add_u32 v21, v5, 4, v21")
    a(f"s_add_u32 s89, s10, {XS + 8192}")
    a(f"s_mul_i32 s91, s{sWAVE}, {4096*xstr}")
    a(f"s_add_u32 s91, s91, {XH + xrec}")
    a(f"s_mul_i32 s10, s{sWAVE}, {bpad}")
    a(f"s_add_u32 s10, s10, {YB}")
    a(f"v_lshl_add_u32 v22, v{vLANE}, 3, s10")
    a(f"v_lshlrev_b32 v23, 9, v5")
    a(f"v_lshl_add_u32 v24, v7, 4, v23")
    a(f"v_mul_u32_u24 v23, {bpad}, v5")
    a(f"v_lshl_add_u32 v23, v7, 4, v23")
    a(f"v_add_u32 v23, {YB}, v23")
    a(f"s_lshl_b32 s90, s{sBI}, 10")
    a(f"s_lshl_b32 s9, s{sWAVE}, 6")
    a(f"s_add_u32 s90, s90, s9")
    a(f"s_add_u32 s90, s90, {HP}")
    a(f"v_bfe_u32 v25, v{vLANE}, 2, 2")
    a(f"v_lshl_add_u32 v25, v7, 3, v25")
    a(f"v_lshlrev_b32 v25, 8, v25")
    a(f"v_and_b32 v6, 3, v{vLANE}")
    a(f"v_lshl_add_u32 v25, v6, 3, v25")
    a(f"s_lshl_b32 s9, s{sWAVE}, 5")
    a(f"v_add_u32 v25, s9, v25")
    swz_read(25, 6, 0)
    a(f"v_lshrrev_b32 v6, 3, v{vLANE}")
    a(f"v_and_b32 v8, 7, v{vLANE}")
    a(f"v_mul_u32_u24 v26, {128*xstr}, v6")
    a(f"v_lshl_add_u32 v26, v8, 4, v26")
    if ofack:
        a("s_waitcnt vmcnt(0)")
    a("s_barrier")
    vm = Vm(a)

    def ck_rec(regs):
        check_regs(regs)
        a(f"v_and_b32 v{vBAD}, s{sTM}, v{vBAD}")
        a(f"v_xor_b32 v{MR+3}, s{sEP}, v{MR+3}")
        a(f"v_or_b32 v{vBAD}, v{vBAD}, v{MR+3}")

    def ldS():
        a(f"buffer_load_dwordx4 {R(SB)}, v{vOV}, {S4(rWS)}, s15 offen sc1")
        a(f"buffer_load_dwordx4 {R(CB)}, v{vOV}, {S4(rWS)}, s88 offen sc1")
        a(f"buffer_load_dwordx4 {R(MR)}, v20, {S4(rWS)}, s89 offen sc1")
    LANE_OF = [0, 32, 16, 1, 33, 17]
    a(f"s_cmp_ge_u32 s{sWAVE}, 2")
    a("s_cbranch_scc1 L_nocst")
    pollx(ldS, lambda: ck_rec(list(range(SB, SB + 4)) + list(range(CB, CB + 4))), f2=True)
    red4(MR, (2, 4, 8))
    a(f"v_mul_f32 v{MR}, 0x3a800000, v{MR}")
    for k in range(5):
        a(f"v_readlane_b32 s9, v{MR}, {LANE_OF[k]}")
        a(f"v_mov_b32 v{144+k}, s9")
    a("L_nocst:")
    if w1delay:
        a(f"s_sleep {w1delay}")
    claim_all(w1thr)
    a("s_waitcnt vmcnt(0)")
    a("s_barrier")
    for s in range(8):
        for h in range(2):
            a(f"ds_read_b64_tr_b16 {R(W1O + s*4 + h*2, 2)}, v25 offset:{WT + 8192*s + 1024*h}")
    stamp(26)
    if '3' in sg:
        a(f"s_mul_i32 s10, s{sWAVE}, {512*xstr}")
        a(f"s_add_u32 s10, s10, {XH + xrec}")
        sgate(10, [(b * 32 + k) * 128 * xstr for b in range(2) for k in range(4)])
        a("s_barrier")
    a(f"s_cmp_ge_u32 s{sWAVE}, 2")
    a("s_cbranch_scc1 L_ydone")

    def ldH3():
        a(f"buffer_load_dwordx4 {R(XR)}, v26, {S4(rWS)}, s74 offen sc1")
        a(f"buffer_load_dwordx4 {R(MR)}, v21, {S4(rWS)}, s91 offen sc1")
    if hu3:
        a(f"s_lshl_b32 s10, s{sXCD}, 7")
        a(f"s_add_u32 s10, s10, {LF}")
        a("s_mov_b64 exec, 0xff")
        pollx(lambda: a(f"buffer_load_dwordx4 {R(XR)}, v{vOV}, {S4(rWS)}, s10 offen sc1"), lambda: check_regs(range(XR, XR + 4)))
        if hu3 > 1:
            a(f"s_sleep {hu3 - 1}")
    pollx(ldH3, lambda: ck_rec(range(XR, XR + 4)), f2=True, slp=h3slp)
    stamp(10)
    red4(MR, (2, 4, 8))
    a(f"v_mul_f32 v{MR}, 0x3a800000, v{MR}")
    for k, sr in enumerate((10, 11, 12, 13, 15, 88)):
        a(f"v_readlane_b32 s{sr}, v{MR}, {LANE_OF[k]}")

    def stats_tail(mean, ex2, t, mb, rs):
        a(f"v_fma_f32 v{ex2}, -v{mean}, v{mean}, v{ex2}")
        a(f"v_max_f32 v{ex2}, 0, v{ex2}")
        a(f"v_cvt_pk_bf16_f32 v{t}, v{mean}, v{ex2}")
        hi(ex2, t)
        lo(mb, t)
        a(f"v_add_f32 v{ex2}, 0x3727c5ac, v{ex2}")
        rnd1(ex2, ex2)
        a(f"v_sqrt_f32 v{ex2}, v{ex2}")
        rnd1(ex2, ex2)
        a(f"v_rcp_f32 v{rs}, v{ex2}")
    a("v_mov_b32 v5, s10\nv_mov_b32 v6, s11")
    stats_tail(5, 6, 60, 140, 141)
    a(f"v_fma_f32 v150, -v140, v144, s12")
    a(f"v_mul_f32 v151, v140, v145")
    a(f"v_fma_f32 v151, -2.0, s15, v151")
    a(f"v_fma_f32 v151, v140, v151, s13")
    a(f"v_fma_f32 v152, -v140, v146, s88")
    pk("add", XR, XR, 140, ybc=True, neg=True)
    for k in (0, 2):
        rnd2(XR + k, XR + k + 1, 60 + k // 2)
    a(f"v_fma_f32 v5, v141, v150, v147")
    a(f"v_mul_f32 v151, v141, v151")
    a(f"v_fma_f32 v151, 2.0, v152, v151")
    a(f"v_fma_f32 v6, v141, v151, v148")
    pk("mul", XR, XR, 141, ybc=True)
    for k in (0, 2):
        rnd2(XR + k, XR + k + 1, 60 + k // 2)
    stats_tail(5, 6, 62, 142, 143)
    pk("mul", XR, XR, CB)
    for k in (0, 2):
        rnd2(XR + k, XR + k + 1, 60 + k // 2)
    pk("add", XR, XR, SB)
    for k in (0, 2):
        rnd2(XR + k, XR + k + 1, 60 + k // 2)
    pk("add", XR, XR, 142, ybc=True, neg=True)
    for k in (0, 2):
        rnd2(XR + k, XR + k + 1, 60 + k // 2)
    pk("mul", XR, XR, 143, ybc=True)
    a(f"v_cvt_pk_bf16_f32 v28, v{XR}, v{XR+1}\nv_cvt_pk_bf16_f32 v29, v{XR+2}, v{XR+3}")
    a(f"ds_write_b64 v22, {R(28, 2)}")
    a("s_waitcnt lgkmcnt(0)")
    a("L_ydone:")
    a("s_barrier")
    gemv8(W1O, 136, 32, 23)
    store_grp("buffer_store_dwordx4", R(32), 24, 90)
    a(FULL)
    stamp(22)

    a("L_fin:")
    if stamps and dbgstamps:
        stamp(15)
        a(f"s_cmp_lg_u32 s2, {dbgstamps - 1}")
        a("s_cbranch_scc1 L_end")
        a("s_load_dwordx2 s[10:11], s[0:1], 104")
        a("s_waitcnt lgkmcnt(0)")
        srd(rT0, 10, 256)
        slots = [1, 2, 3, 4, 20, 6, 8, 24, 9, 10, 11, 12, 22, 13, 15, 21]
        a("v_mov_b32 v4, 200")
        for i, k in enumerate(slots):
            a(f"s_mov_b32 s9, {4*i}")
            a(f"v_writelane_b32 v4, s9, {k}")
        a(f"v_readlane_b32 s9, v{vST}, 0")
        a(f"v_subrev_u32 v5, s9, v{vST}")
        a(f"v_cmp_ne_u32 vcc, 0, v{vST}")
        a("s_mov_b64 exec, vcc")
        a(f"buffer_atomic_umax v5, v4, {S4(rT0)}, 0 offen sc1")
    elif stamps:
        stamp(15)
        a(f"s_mul_i32 s9, s2, {NWAVES}")
        a(f"s_add_u32 s9, s9, s{sW12}")
        a(f"s_lshl_b32 s9, s9, 7")
        a(f"s_add_u32 s9, s9, {STAMP}")
        a(f"v_lshlrev_b32 v4, 2, v{vLANE}")
        a("s_mov_b32 exec_hi, 0")
        a(f"buffer_store_dword v{vST}, v4, {S4(rWS)}, s9 offen")
    a("L_end:")
    a("s_endpgm")
    a('.section .rodata,"a"')
    a(".p2align 6")
    a(f".amdhsa_kernel {NAME}_kernel")
    for l in (".amdhsa_next_free_vgpr 168", ".amdhsa_next_free_sgpr 102", ".amdhsa_accum_offset 168",
              ".amdhsa_group_segment_fixed_size 0", ".amdhsa_kernarg_size 120", ".amdhsa_user_sgpr_count 2",
              ".amdhsa_user_sgpr_kernarg_segment_ptr 1", ".amdhsa_system_sgpr_workgroup_id_x 1",
              ".amdhsa_float_denorm_mode_32 3"):
        a(l)
    a(".end_amdhsa_kernel")
    return pre + a.finish()


if __name__ == "__main__":
    out = sys.argv[1] if len(sys.argv) > 1 else f"cdna_kernels/{NAME}.s"
    kw = {}
    for arg in sys.argv[2:]:
        k, v = arg.split("=")
        kw[k] = eval(v)
    open(out, "w").write(gen(**kw))
```
